```python
import torch

def _softmax(x, axis=-1):
    return torch.softmax(x, dim=axis)

def _gelu(x):
    return torch.nn.functional.gelu(x, approximate='tanh')

def _silu(x):
    return torch.nn.functional.silu(x)

def _sigmoid(x):
    return torch.sigmoid(x)

def _layernorm(x, axis=-1, eps=1e-05):
    m = x.mean(dim=axis, keepdim=True)
    v = x.var(dim=axis, keepdim=True, unbiased=False)
    return (x - m) / torch.sqrt(v + eps)

def _scatter_add(tgt, idx, src, axis=0):
    return tgt.clone().index_add_(axis, idx, src)

def _segment_sum(src, seg, n):
    out = torch.zeros((n,) + src.shape[1:], dtype=src.dtype)
    return out.index_add_(0, seg, src)

def _pad(x, pw):
    flat = tuple((v for pair in reversed(pw) for v in pair))
    return torch.nn.functional.pad(x, flat)
kernel_name = 'recurrent_scan__ssm_conv_h3__mixer_gmlp__prompt'

def setup_inputs():

    _w = lambda a: (lambda t: t.to(torch.bfloat16) if t.is_floating_point() else t)(torch.as_tensor(a))

    def _A_setup():
        B, S, D = (1, 2048, 640)
        ks = 4
        return {'q': _w((lambda *s: torch.randn(*s, dtype=torch.bfloat16) * 0.05)(B, S, D)), 'k': _w((lambda *s: torch.randn(*s, dtype=torch.bfloat16) * 0.2)(B, S, D)), 'v': _w((lambda *s: torch.randn(*s, dtype=torch.bfloat16) * 0.2)(B, S, D)), 'shift_k': _w((lambda *s: torch.randn(*s, dtype=torch.bfloat16) * 0.2)(D, ks) * 0.5), 'ssm_k': _w((lambda *s: torch.randn(*s, dtype=torch.bfloat16) * 0.2)(D, S) * (1.0 / S ** 0.5)), 'ssm_D': _w((lambda *s: torch.randn(*s, dtype=torch.bfloat16) * 0.2)(D))}
    _A_in = _A_setup()

    def _B_setup():
        B, S, D, F = (1, 2048, 640, 1536)
        Fh = F // 2
        return {'x': _w((lambda *s: torch.randn(*s, dtype=torch.bfloat16) * 0.05)(B, S, D)), 'w_in': _w((lambda *s: torch.randn(*s, dtype=torch.bfloat16) * 0.8)(D, 2 * Fh)), 'w_sp': _w(0.01 * (lambda *s: torch.randn(*s, dtype=torch.bfloat16) * 0.8)(S, S)), 'b_sp': _w(1.0 + 0.01 * (lambda *s: torch.randn(*s, dtype=torch.bfloat16) * 0.1)(S)), 'w_out': _w((lambda *s: torch.randn(*s, dtype=torch.bfloat16) * 0.1)(Fh, D))}
    _B_in = _B_setup()
    return {'A_q': _A_in['q'], 'A_k': _A_in['k'], 'A_v': _A_in['v'], 'A_shift_k': _A_in['shift_k'], 'A_ssm_k': _A_in['ssm_k'], 'A_ssm_D': _A_in['ssm_D'], 'B_x': _B_in['x'], 'B_w_in': _B_in['w_in'], 'B_w_sp': _B_in['w_sp'], 'B_b_sp': _B_in['b_sp'], 'B_w_out': _B_in['w_out']}

def reference(A_q, A_k, A_v, A_shift_k, A_ssm_k, A_ssm_D, B_x, B_w_in, B_w_sp, B_b_sp, B_w_out):

    def _A_ref(q, k, v, shift_k, ssm_k, ssm_D):
        B, S, D = q.shape
        ks = shift_k.shape[-1]
        k_pad = _pad(k, ((0, 0), (ks - 1, 0), (0, 0)))
        k_shift = torch.zeros_like(k)
        for t in range(ks):
            k_shift = k_shift + k_pad[:, t:t + S, :] * shift_k[:, ks - 1 - t][None, None, :]
        kv = k_shift * v
        L = 2 * S
        kv_pad = _pad(kv, ((0, 0), (0, S), (0, 0)))
        kf_pad = _pad(ssm_k, ((0, 0), (0, S)))
        kv_f = (lambda x, axes=(-2, -1): torch.fft.rfft2(x.float(), dim=axes))(kv_pad[:, None, :, :], axes=(1, 2))
        kf_f = (lambda x, axes=(-2, -1): torch.fft.rfft2(x.float(), dim=axes))(kf_pad[:, None, :], axes=(1, 2))
        kf_f = (lambda x, *d: x.permute(*d))(kf_f, 1, 2, 0)
        y_f = kv_f * kf_f[None, :, :, :]
        y = (lambda x, s, axes=(-2, -1): torch.fft.irfft2(x, s=s, dim=axes).to(torch.bfloat16))(y_f, (1, L), axes=(1, 2))[:, 0, :S, :]
        y = y + kv * ssm_D[None, None, :]
        return q * y

    def _B_ref(x, w_in, w_sp, b_sp, w_out):
        B, S, D = x.shape
        F = w_in.shape[-1]
        Fh = F // 2
        z = _gelu(torch.einsum('bsd,df->bsf', x, w_in))
        z1 = z[..., :Fh].clone()
        z2 = _layernorm(z[..., Fh:], axis=-1)
        g = torch.einsum('ts,bsf->btf', w_sp, z2) + b_sp[None, :, None]
        return torch.einsum('bsf,fd->bsd', z1 * g, w_out)
    x = A_q
    xn = _layernorm(x, axis=-1)
    s = _A_ref(xn, A_k, A_v, A_shift_k, A_ssm_k, A_ssm_D)
    g = _silu(_B_ref(xn, B_w_in, B_w_sp, B_b_sp, B_w_out))
    return x + s * g
```

```python
from emit import Emitter
S = 2048; D = 640; F = 1536; FH = 768
KA = dict(q=0, k=8, v=16, shift_k=24, ssm_k=32, ssm_D=40, B_x=48, w_in=56, w_sp=64, b_sp=72, w_out=80, out=88, dbg=96, ws=104)
Z1F = 0x0000000
Z2F = 0x0300000
KVT = 0x0600000
YYT = 0x0900000
PF  = 0x0C00000
WOF = 0x0F00000
ST1 = 0x1000000
XCH = 0x1010000
WS_SIZE = 0x1100000
SRD3 = 0x00020000

import struct
def f32bits(x): return struct.unpack('<I', struct.pack('<f', x))[0]
def hexf(x): return '0x%08x' % f32bits(x)

def vr(a, n=1):
    return f'v{a}' if n == 1 else f'v[{a}:{a+n-1}]'
def sr(a, n=1):
    return f's{a}' if n == 1 else f's[{a}:{a+n-1}]'

def srd(e, dst, lo, size):
    e(f's_mov_b32 s{dst}, s{lo}')
    e(f's_and_b32 s{dst+1}, s{lo+1}, 0xffff')
    e(f's_mov_b32 s{dst+2}, {size}')
    e(f's_mov_b32 s{dst+3}, 0x20000')

def kernel_wrap(name, body, vgpr, sgpr=96):
    accum = (vgpr + 3) // 4 * 4
    return f""".globl {name}
.p2align 8
.type {name},@function
{name}:
{body}
.section .rodata,"a"
.p2align 6
.amdhsa_kernel {name}
  .amdhsa_next_free_vgpr {vgpr}
  .amdhsa_next_free_sgpr {sgpr}
  .amdhsa_accum_offset {accum}
  .amdhsa_group_segment_fixed_size 0
  .amdhsa_kernarg_size 112
  .amdhsa_user_sgpr_count 2
  .amdhsa_user_sgpr_kernarg_segment_ptr 1
  .amdhsa_system_sgpr_workgroup_id_x 1
  .amdhsa_float_denorm_mode_32 3
.end_amdhsa_kernel
.text
"""

def round_bf16(e, v, tmp=None):
    e(f'v_cvt_pk_bf16_f32 v{v}, v{v}, v{v}')
    e(f'v_lshlrev_b32 v{v}, 16, v{v}')

def ln_finalize(e, vsum, vsq, n, vm, vr_, t0, t1):
    inv = 1.0 / n
    e(f'v_mul_f32 v{vm}, {hexf(inv)}, v{vsum}')
    e(f'v_mul_f32 v{t0}, {hexf(inv)}, v{vsq}')
    e(f'v_fma_f32 v{t0}, -v{vm}, v{vm}, v{t0}')
    e(f'v_max_f32 v{t0}, 0, v{t0}')
    round_bf16(e, vm)
    round_bf16(e, t0)
    e(f'v_add_f32 v{t0}, {hexf(1e-5)}, v{t0}')
    round_bf16(e, t0)
    e(f'v_sqrt_f32 v{t0}, v{t0}')
    round_bf16(e, t0)
    e(f'v_rcp_f32 v{vr_}, v{t0}')

def set_exec(e, lo, hi):
    e(f's_mov_b32 exec_lo, {hex(lo)}')
    e(f's_mov_b32 exec_hi, {hex(hi)}')
```

```python
import re

def _regs(tok):
    tok = tok.strip()
    m = re.fullmatch(r'(-|\|)?(abs\()?([vas])\[(\d+):(\d+)\]\)?\|?', tok)
    if m:
        return [(m.group(3), i) for i in range(int(m.group(4)), int(m.group(5)) + 1)]
    m = re.fullmatch(r'(-|\|)?(abs\()?([vas])(\d+)\)?\|?', tok)
    if m:
        return [(m.group(3), int(m.group(4)))]
    if tok in ('vcc',):
        return [('s', 106), ('s', 107)]
    if tok == 'vcc_lo': return [('s', 106)]
    if tok == 'vcc_hi': return [('s', 107)]
    if tok == 'exec': return [('s', 126), ('s', 127)]
    if tok == 'exec_lo': return [('s', 126)]
    if tok == 'exec_hi': return [('s', 127)]
    if tok == 'm0': return [('s', 124)]
    return []

TRANS = ('v_exp_f32', 'v_log_f32', 'v_rcp_f32', 'v_rsq_f32', 'v_sqrt_f32', 'v_sin_f32', 'v_cos_f32')

class Ins:
    __slots__ = ('text', 'mn', 'ops', 'kind', 'wr', 'rd', 'srcC', 'srcAB', 'passes', 'dpp', 'lds_dma', 'wide_store', 'states')
    def __init__(self, text):
        self.text = text
        t = text.split(';')[0].strip()
        parts = t.split(None, 1)
        self.mn = parts[0]
        rest = parts[1] if len(parts) > 1 else ''
        ops = []; cur = ''; depth = 0
        for ch in rest:
            if ch == '[': depth += 1
            if ch == ']': depth -= 1
            if ch == ',' and depth == 0:
                ops.append(cur.strip()); cur = ''
            else:
                cur += ch
        if cur.strip(): ops.append(cur.strip())
        mods = ''
        if ops:
            sp = ops[-1].split(None, 1)
            ops[-1] = sp[0]
            if len(sp) > 1: mods = sp[1]
        self.ops = ops
        mn = self.mn
        self.wr = []; self.rd = []; self.srcC = []; self.srcAB = []; self.passes = 0
        self.dpp = ('row_' in mods or 'quad_perm' in mods or 'wave_' in mods or mn.endswith('_dpp'))
        self.lds_dma = False; self.wide_store = False; self.states = 1
        R = lambda i: _regs(ops[i]) if i < len(ops) else []
        if mn == 's_nop':
            self.kind = 'nop'; self.states = int(ops[0], 0) + 1
        elif mn.startswith('v_mfma'):
            self.kind = 'mfma'
            self.passes = 8 if '32x32x16' in mn else 4
            self.wr = R(0); self.srcAB = R(1) + R(2); self.srcC = R(3); self.rd = self.srcAB + self.srcC
        elif mn.startswith('v_'):
            self.kind = 'trans' if mn.replace('_e32', '').replace('_e64', '') in TRANS else 'valu'
            if mn.startswith('v_cmp'):
                self.wr = R(0); self.rd = sum((R(i) for i in range(1, len(ops))), [])
            elif mn.startswith('v_readfirstlane') or mn.startswith('v_readlane'):
                self.kind = 'rdlane'; self.wr = R(0); self.rd = sum((R(i) for i in range(1, len(ops))), [])
            elif mn.startswith('v_permlane'):
                self.kind = 'permlane'; self.wr = R(0) + R(1); self.rd = R(0) + R(1)
            elif '_co_' in mn:
                self.wr = R(0) + R(1); self.rd = sum((R(i) for i in range(2, len(ops))), [])
            else:
                self.wr = R(0); self.rd = sum((R(i) for i in range(1, len(ops))), [])
                if mn.startswith(('v_fmac', 'v_dot2c', 'v_mac', 'v_pk_fmac')) or self.dpp or 'd16' in mn or mn.startswith('v_writelane'):
                    self.rd += R(0)
                if mn.startswith('v_cndmask') and len(ops) == 3:
                    self.rd += [('s', 106), ('s', 107)]
        elif mn.startswith('ds_'):
            self.kind = 'ds'
            if mn.startswith(('ds_read', 'ds_bpermute', 'ds_permute', 'ds_swizzle')) or '_rtn' in mn:
                self.wr = R(0); self.rd = sum((R(i) for i in range(1, len(ops))), [])
            else:
                self.rd = sum((R(i) for i in range(len(ops))), [])
        elif mn.startswith(('buffer_', 'global_', 'flat_')):
            self.kind = 'vmem'
            allmods = mods + ' ' + ' '.join(ops)
            is_lds = (' lds' in (' ' + mods)) or '_lds_' in mn
            if mn in ('buffer_wbl2', 'buffer_inv'):
                pass
            elif is_lds:
                self.lds_dma = True
                self.rd = sum((R(i) for i in range(len(ops))), []) + [('s', 124)]
            elif '_load' in mn:
                self.wr = R(0); self.rd = sum((R(i) for i in range(1, len(ops))), [])
                if 'd16' in mn: self.rd += R(0)
            elif '_store' in mn:
                self.rd = sum((R(i) for i in range(len(ops))), [])
                if 'x3' in mn or 'x4' in mn:
                    self.wide_store = True
            elif '_atomic' in mn:
                self.rd = sum((R(i) for i in range(len(ops))), [])
                if 'sc0' in mods: self.wr = R(0)
        elif mn.startswith('s_'):
            self.kind = 'salu'
            if mn.startswith(('s_cmp', 's_cbranch', 's_branch', 's_waitcnt', 's_barrier', 's_endpgm', 's_sleep', 's_setprio', 's_bitcmp')):
                self.rd = sum((R(i) for i in range(len(ops))), [])
            else:
                self.wr = R(0); self.rd = sum((R(i) for i in range(1, len(ops))), [])
                if 'saveexec' in mn: self.wr += [('s', 126), ('s', 127)]
        else:
            raise ValueError('unknown instr ' + text)
    def store_data(self):
        if self.mn.startswith('buffer_'): return _regs(self.ops[0])
        return _regs(self.ops[1])

def need_states(p, c):
    n = 0
    pw = set(p.wr); cr = set(c.rd); cw = set(c.wr)
    pv = {r for r in pw if r[0] in 'va'}
    ps = {r for r in pw if r[0] == 's'}
    p_is_valu = p.kind in ('valu', 'trans', 'permlane', 'rdlane')
    c_is_valu = c.kind in ('valu', 'trans', 'permlane', 'rdlane')
    if p_is_valu:
        if c.kind == 'mfma' and pv & cr: n = max(n, 2)
        if ps:
            if c_is_valu and (ps & cr): n = max(n, 2)
            if c.kind == 'vmem' and (ps & cr): n = max(n, 5)
            if c.kind == 'rdlane' and (ps & cr): n = max(n, 4)
            if c.kind == 'salu' and (ps & cr): n = max(n, 1)
        if c.kind == 'rdlane' and pv & cr: n = max(n, 1)
        if c.dpp and c_is_valu and pv & cr: n = max(n, 2)
        if c.kind == 'permlane' and pv & cr: n = max(n, 2)
        if p.kind == 'trans' and c.kind != 'trans' and (c_is_valu or c.kind == 'mfma') and pv & cr: n = max(n, 1)
    if p.kind == 'mfma':
        big = {4: 8, 8: 12}[p.passes]; ovl = {4: 6, 8: 10}[p.passes]; war = {4: 3, 8: 7}[p.passes]
        D = set(p.wr)
        if c.kind == 'mfma':
            if D & set(c.srcAB): n = max(n, big)
            if D & set(c.srcC):
                if list(c.srcC) == list(p.wr) and c.passes == p.passes: pass
                else: n = max(n, ovl)
            elif D & cw: n = max(n, ovl)
        else:
            if D & (cr | cw): n = max(n, big)
        if c_is_valu and set(p.srcC) & cw: n = max(n, war)
    if p.kind == 'salu' and ('s', 124) in pw and c.lds_dma: n = max(n, 1)
    if p.wide_store and (c_is_valu or c.kind in ('mfma',)):
        if set(p.store_data()) & cw: n = max(n, 2)
    if p.wide_store and c.kind in ('ds', 'vmem') and set(p.store_data()) & cw: n = max(n, 1)
    return n

class Emitter:
    def __init__(self):
        self.items = []
    def __call__(self, text):
        for line in text.strip().split('\n'):
            line = line.strip()
            if not line: continue
            if line.startswith(';'):
                self.items.append(('c', line))
            elif line.endswith(':'):
                self.items.append(('l', line))
            else:
                self.items.append(('i', Ins(line)))
    def label(self, name): self.items.append(('l', name + ':'))
    def c(self, text): self.items.append(('c', '; ' + text))
    def finalize(self, window=14):
        out = []; hist = []
        nn = 0
        for kind, it in self.items:
            if kind != 'i':
                out.append((kind, it)); continue
            need = 0; dist = 0
            for p in reversed(hist):
                if dist >= window: break
                k = need_states(p, it)
                if k > dist: need = max(need, k - dist)
                dist += p.states
            if need > 0:
                nop = Ins(f's_nop {need - 1}')
                out.append(('i', nop)); hist.append(nop); nn += 1
            out.append(('i', it)); hist.append(it)
        self.items = out
        self._check_backedges(window)
        return nn
    def _check_backedges(self, window):
        idx = {}
        for n, (kind, it) in enumerate(self.items):
            if kind == 'l': idx[it[:-1]] = n
        for n, (kind, it) in enumerate(self.items):
            if kind == 'i' and it.mn.startswith(('s_cbranch', 's_branch')):
                tgt = it.ops[0]
                if tgt not in idx: continue
                t = idx[tgt]
                tail = [x for k, x in self.items[max(0, n - 3 * window):n + 1] if k == 'i']
                head = [x for k, x in self.items[t:t + 3 * window] if k == 'i']
                d_head = 0
                for h in head:
                    if d_head >= window: break
                    dist = d_head
                    for p in reversed(tail):
                        if dist >= window: break
                        k = need_states(p, h)
                        if k > dist:
                            raise RuntimeError(f'hazard across branch to {tgt}: {p.text} -> {h.text} needs {k} has {dist}')
                        dist += p.states
                    d_head += h.states
                    if h.mn in ('s_branch', 's_endpgm'): break
    def text(self):
        s = []
        for kind, it in self.items:
            if kind == 'i': s.append('  ' + it.text)
            else: s.append(it)
        return '\n'.join(s) + '\n'
```

```python
from common import *

WSLOT = 12288; NSLOT = 6
XB0 = NSLOT * WSLOT
XST = 8192
PREP = XB0 + 8 * XST
PREPV = PREP + 11520
MISC = XB0 + 10 * XST
L_M1 = MISC; L_R1 = MISC + 256
L_CSX = MISC + 512
L_PS = MISC + 1280
L_PQ = MISC + 1792
L_W2 = MISC + 2304
LDS1 = 163840

K1c = -2.0 * 1.4426950408889634 * 0.7978845608028654
K2c = K1c * 0.044715

def gen_k1(dbg=False):
    e = Emitter()
    sX, sW, sWS, sK, sV, sT = 8, 12, 16, 20, 24, 28
    s_rb, s_cb, s_w, s_wr, s_wc = 32, 33, 34, 35, 36
    s_i, s_j, s_off, s_t0, s_t1, s_t2 = 37, 38, 39, 40, 41, 42
    s_z2b, s_z1b, s_slotI, s_slotR, s_mask = 43, 44, 45, 46, 47
    s_k2 = 48
    s_one = 50
    s_ex = 52
    s_xo = 54
    sD = 56
    P = 60
    vLane, vQ, vL15 = 1, 2, 3
    vLX = 4
    vLW = 6
    vXA = 10
    vXB = 12
    vWb = 14
    vWa = 17
    vT = 20
    XF = 32
    WF = 48
    ACC = 72
    CS = 96
    ONE = 108
    SS = 112
    AP = 116
    E = 128
    e.c('---- k1: GEMM1 (LN1 folded) + gelu + LN2 + kv prep + w_out retile')
    e('s_cmp_ge_u32 s2, 256')
    e('s_cbranch_scc1 K1_END')
    e(f's_load_dwordx4 s[{P}:{P+3}], s[0:1], 0')
    e(f's_load_dwordx4 s[{P+4}:{P+7}], s[0:1], 16')
    e(f's_load_dwordx2 s[{P+8}:{P+9}], s[0:1], 56')
    e(f's_load_dwordx2 s[{P+10}:{P+11}], s[0:1], 80')
    e(f's_load_dwordx4 s[{P+12}:{P+15}], s[0:1], 96')
    e(f'v_and_b32 v{vLane}, 63, v0')
    e(f'v_lshrrev_b32 v{vT}, 6, v0')
    e(f'v_lshrrev_b32 v{vQ}, 4, v{vLane}')
    e(f'v_readfirstlane_b32 s{s_w}, v{vT}')
    e(f'v_and_b32 v{vL15}, 15, v{vLane}')
    e(f's_and_b32 s{s_t0}, s2, 7')
    e(f's_lshr_b32 s{s_t1}, s2, 3')
    e(f's_and_b32 s{s_t2}, s{s_t1}, 3')
    e(f's_lshl_b32 s{s_rb}, s{s_t0}, 2')
    e(f's_add_u32 s{s_rb}, s{s_rb}, s{s_t2}')
    e(f's_lshr_b32 s{s_cb}, s{s_t1}, 2')
    e(f's_lshr_b32 s{s_wr}, s{s_w}, 1')
    e(f's_and_b32 s{s_wc}, s{s_w}, 1')
    e(f's_mov_b32 s{s_mask}, 0xffff0000')
    vP = vT + 1; vPr = vT + 2
    e(f'v_mul_u32_u24 v{vPr}, 6554, v{vLane}')
    e(f'v_lshrrev_b32 v{vPr}, 16, v{vPr}')
    e(f'v_mul_u32_u24 v{vP}, 10, v{vPr}')
    e(f'v_sub_u32 v{vP}, v{vLane}, v{vP}')
    e(f'v_lshlrev_b32 v{vP}, 4, v{vP}')
    e(f'v_mul_u32_u24 v{vT+3}, 1280, v{vPr}')
    e(f'v_add_u32 v{vP}, v{vP}, v{vT+3}')
    e(f'v_lshrrev_b32 v{vT+3}, 3, v{vLane}')
    e(f'v_and_b32 v{vT+4}, 7, v{vLane}')
    e(f'v_lshrrev_b32 v{vT+5}, 1, v{vT+3}')
    e(f'v_xor_b32 v{vT+4}, v{vT+4}, v{vT+5}')
    e(f's_lshl_b32 s{s_t0}, s{s_rb}, 6')
    e(f's_lshl_b32 s{s_t1}, s{s_w}, 4')
    e(f's_add_u32 s{s_t0}, s{s_t0}, s{s_t1}')
    e(f'v_add_u32 v{vT+3}, s{s_t0}, v{vT+3}')
    e(f'v_mul_u32_u24 v{vT+3}, 1280, v{vT+3}')
    e(f'v_lshlrev_b32 v{vT+5}, 4, v{vT+4}')
    e(f'v_add_u32 v{vLX}, v{vT+3}, v{vT+5}')
    e(f'v_xor_b32 v{vT+5}, 64, v{vT+5}')
    e(f'v_add_u32 v{vLX+1}, v{vT+3}, v{vT+5}')
    e(f'v_add_u32 v{vLX+1}, {8*1280}, v{vLX+1}')
    for t in range(3):
        e(f'v_add_u32 v{vT+3}, {64*t}, v{vLane}')
        e(f'v_mul_u32_u24 v{vT+4}, 5462, v{vT+3}')
        e(f'v_lshrrev_b32 v{vT+4}, 16, v{vT+4}')
        e(f'v_mul_u32_u24 v{vT+5}, 12, v{vT+4}')
        e(f'v_sub_u32 v{vT+5}, v{vT+3}, v{vT+5}')
        e(f'v_lshrrev_b32 v{vT+6}, 2, v{vT+4}')
        e(f'v_and_b32 v{vT+6}, 2, v{vT+6}')
        e(f'v_xor_b32 v{vT+5}, v{vT+5}, v{vT+6}')
        e(f'v_lshlrev_b32 v{vT+5}, 4, v{vT+5}')
        e(f's_lshl_b32 s{s_t1}, s{s_w}, 4')
        e(f'v_add_u32 v{vT+4}, s{s_t1}, v{vT+4}')
        e(f'v_mul_u32_u24 v{vT+4}, 3072, v{vT+4}')
        e(f'v_add_u32 v{vLW+t}, v{vT+4}, v{vT+5}')
    e('s_waitcnt lgkmcnt(0)')
    srd(e, sX, P, S*D*2)
    srd(e, sK, P+2, S*D*2)
    srd(e, sV, P+4, S*D*2)
    srd(e, sW, P+8, D*F*2)
    srd(e, sWS, P+14, WS_SIZE)
    srd(e, sD, P+12, 256)
    e.c('prep tile DMA')
    e(f's_mov_b64 s[{s_ex}:{s_ex+1}], exec')
    set_exec(e, 0xffffffff, 0x0fffffff)
    e(f's_lshl_b32 s{s_t0}, s{s_rb}, 6')
    e(f's_mul_i32 s{s_t1}, s{s_w}, 18')
    e(f's_add_u32 s{s_t0}, s{s_t0}, s{s_t1}')
    e(f's_mul_i32 s{s_t2}, s{s_cb}, 160')
    e(f's_mul_i32 s{s_off}, s{s_t0}, 1280')
    e(f's_add_u32 s{s_off}, s{s_off}, s{s_t2}')
    e(f's_mul_i32 s{s_t1}, s{s_w}, {3*960}')
    e(f's_add_u32 s{s_xo}, s{s_t1}, {PREP}')
    e(f'v_mov_b32 v{vT+3}, v{vP}')
    e(f's_sub_u32 s{s_t1}, s{s_off}, {3*1280}')
    e(f's_cmp_eq_u32 s{s_t0}, 0')
    e('s_cbranch_scc0 K1_NONNEG')
    e(f'v_subrev_u32 v{vT+3}, {3*1280}, v{vP}')
    e(f'v_cmp_gt_u32 vcc, 3, v{vPr}')
    e(f'v_mov_b32 v{vT+4}, 0x80000000')
    e(f'v_cndmask_b32 v{vT+3}, v{vT+3}, v{vT+4}, vcc')
    e(f's_mov_b32 s{s_t1}, s{s_off}')
    e.label('K1_NONNEG')
    e(f's_mov_b32 m0, s{s_xo}')
    e('s_nop 0')
    e(f'buffer_load_dwordx4 v{vT+3}, s[{sK}:{sK+3}], s{s_t1} offen lds')
    for t in (1, 2):
        e(f's_add_u32 s{s_t1}, s{s_off}, {(6*t-3)*1280}')
        e(f's_add_u32 m0, s{s_xo}, {960*t}')
        e('s_nop 0')
        e(f'buffer_load_dwordx4 v{vP}, s[{sK}:{sK+3}], s{s_t1} offen lds')
    for t in range(3):
        e(f's_add_u32 s{s_t1}, s{s_off}, {6*t*1280}')
        e(f's_add_u32 m0, s{s_xo}, {11520 + 960*t}')
        e('s_nop 0')
        e(f'buffer_load_dwordx4 v{vP}, s[{sV}:{sV+3}], s{s_t1} offen lds')
    e(f's_mov_b64 exec, s[{s_ex}:{s_ex+1}]')
    SK = 200
    srd(e, sT, P+6, D*4*2)
    e(f'v_lshlrev_b32 v{vT+3}, 4, v{vLane}')
    e(f's_mul_i32 s{s_t1}, s{s_cb}, 640')
    e(f'buffer_load_dwordx4 v[{SK}:{SK+3}], v{vT+3}, s[{sT}:{sT+3}], s{s_t1} offen')
    WO = 204
    WR = 248 - 8
    e(f's_lshl_b32 s{s_t0}, s2, 2')
    e(f's_add_u32 s{s_t0}, s{s_t0}, s{s_w}')
    e(f's_mul_i32 s{s_t1}, s{s_t0}, 2731')
    e(f's_lshr_b32 s{s_t1}, s{s_t1}, 16')
    e(f's_mul_i32 s{s_t2}, s{s_t1}, 24')
    e(f's_sub_u32 s{s_t2}, s{s_t0}, s{s_t2}')
    e(f's_mov_b32 s{P+16}, s{s_t0}')
    srd(e, sT, P+10, FH*D*2)
    e(f'v_mul_u32_u24 v{vT+3}, {4*1280}, v{vQ}')
    e(f'v_lshlrev_b32 v{vT+4}, 1, v{vL15}')
    e(f'v_add_u32 v{vT+3}, v{vT+3}, v{vT+4}')
    e(f's_lshl_b32 s{s_t1}, s{s_t1}, 5')
    e(f's_mul_i32 s{s_t2}, s{s_t2}, {32*1280}')
    e(f's_add_u32 s{s_t1}, s{s_t1}, s{s_t2}')
    e(f's_add_u32 s{s_t2}, s{s_t1}, {16*1280}')
    for j in range(8):
        so = s_t1 if j < 4 else s_t2
        e(f'buffer_load_ushort v{WR + j}, v{vT+3}, s[{sT}:{sT+3}], s{so} offen offset:{(j%4)*1280}')
    e(f's_mul_i32 s{s_z2b}, s{s_cb}, 192')
    e(f's_mov_b32 s{s_z1b}, s{s_z2b}')
    e(f's_add_u32 s{s_z2b}, s{s_z2b}, {768*2}')
    def dma_x(stage):
        e(f's_lshl_b32 s{s_t0}, s{s_w}, 11')
        e(f's_add_u32 m0, s{s_t0}, {XB0 + stage*XST}')
        e(f's_movk_i32 s{s_t1}, {stage*128}')
        e(f'buffer_load_dwordx4 v{vLX}, s[{sX}:{sX+3}], s{s_t1} offen lds')
        e(f's_add_u32 m0, s{s_t0}, {XB0 + stage*XST + 1024}')
        e('s_nop 0')
        e(f'buffer_load_dwordx4 v{vLX+1}, s[{sX}:{sX+3}], s{s_t1} offen lds')
    def dma_w(s_soff, s_slot):
        e(f's_mul_i32 s{s_t0}, s{s_w}, 3072')
        e(f's_add_u32 s{s_t0}, s{s_t0}, s{s_slot}')
        for t in range(3):
            if t == 0: e(f's_mov_b32 m0, s{s_t0}')
            else: e(f's_add_u32 m0, s{s_t0}, {1024*t}')
            e('s_nop 0')
            e(f'buffer_load_dwordx4 v{vLW+t}, s[{sW}:{sW+3}], s{s_soff} offen lds')
    for st in range(6):
        dma_x(st)
        e(f's_add_u32 s{s_off}, s{s_z2b}, {st*64*3072}')
        e(f's_mov_b32 s{s_slotI}, {st*WSLOT}')
        dma_w(s_off, s_slotI)
    dma_x(6); dma_x(7)
    e(f'v_lshrrev_b32 v{vT+3}, 1, v{vL15}')
    e(f'v_xor_b32 v{vT+3}, v{vT+3}, v{vQ}')
    e(f'v_lshlrev_b32 v{vT+3}, 4, v{vT+3}')
    e(f'v_lshlrev_b32 v{vT+4}, 7, v{vL15}')
    e(f'v_add_u32 v{vT+3}, v{vT+3}, v{vT+4}')
    e(f's_lshl_b32 s{s_t0}, s{s_wr}, 12')
    e(f's_lshl_b32 s{s_t1}, s{s_wc}, 11')
    e(f's_add_u32 s{s_t0}, s{s_t0}, s{s_t1}')
    e(f's_add_u32 s{s_t0}, s{s_t0}, {XB0}')
    e(f'v_add_u32 v{vXA}, s{s_t0}, v{vT+3}')
    e(f'v_xor_b32 v{vT+4}, 64, v{vT+3}')
    e(f'v_add_u32 v{vXA+1}, s{s_t0}, v{vT+4}')
    e(f's_xor_b32 s{s_t1}, s{s_t1}, 2048')
    e(f's_lshl_b32 s{s_t0}, s{s_wr}, 12')
    e(f's_add_u32 s{s_t0}, s{s_t0}, s{s_t1}')
    e(f's_add_u32 s{s_t0}, s{s_t0}, {XB0}')
    e(f'v_add_u32 v{vXB}, s{s_t0}, v{vT+3}')
    e(f'v_add_u32 v{vXB+1}, s{s_t0}, v{vT+4}')
    e(f'v_lshrrev_b32 v{vT+3}, 2, v{vLane}')
    e(f'v_and_b32 v{vT+3}, 3, v{vT+3}')
    e(f'v_lshlrev_b32 v{vT+4}, 3, v{vQ}')
    e(f'v_add_u32 v{vT+3}, v{vT+3}, v{vT+4}')
    e(f'v_mul_u32_u24 v{vT+3}, 192, v{vT+3}')
    e(f'v_and_b32 v{vT+4}, 3, v{vLane}')
    e(f'v_lshlrev_b32 v{vT+4}, 3, v{vT+4}')
    e(f'v_add_u32 v{vT+3}, v{vT+3}, v{vT+4}')
    e(f'v_and_b32 v{vT+5}, 1, v{vQ}')
    e(f's_mul_i32 s{s_t0}, s{s_wc}, 3')
    for ft in range(3):
        e(f's_add_u32 s{s_t1}, s{s_t0}, {ft}')
        e(f'v_xor_b32 v{vT+4}, s{s_t1}, v{vT+5}')
        e(f'v_lshlrev_b32 v{vT+4}, 5, v{vT+4}')
        e(f'v_add_u32 v{vWb+ft}, v{vT+3}, v{vT+4}')
    for i in range(4): e(f'v_mov_b32 v{ONE+i}, 0x3f803f80')
    e(f's_mov_b32 s{s_k2}, {hexf(K2c)}'); e(f's_mov_b32 s{s_k2+1}, {hexf(K2c)}')
    e(f's_mov_b32 s{s_one}, 1.0'); e(f's_mov_b32 s{s_one+1}, 1.0')

    e.c('prep compute')
    e('s_waitcnt vmcnt(34)')
    e('s_barrier')
    KR = 128; VRr = 148; KP = 164; CP = 208; KVP = 216
    KR = 128
    VRr = 147
    KP = 164
    CP = 208
    KVP = 216
    e(f'v_lshlrev_b32 v{CP+0}, 16, v{SK+0}'); e(f'v_lshlrev_b32 v{CP+1}, 16, v{SK+2}')
    e(f'v_and_b32 v{CP+2}, s{s_mask}, v{SK+0}'); e(f'v_and_b32 v{CP+3}, s{s_mask}, v{SK+2}')
    e(f'v_lshlrev_b32 v{CP+4}, 16, v{SK+1}'); e(f'v_lshlrev_b32 v{CP+5}, 16, v{SK+3}')
    e(f'v_and_b32 v{CP+6}, s{s_mask}, v{SK+1}'); e(f'v_and_b32 v{CP+7}, s{s_mask}, v{SK+3}')
    e(f's_cmp_ge_u32 s{P+16}, 960')
    e('s_cbranch_scc1 K1_NOWOF')
    for j in range(4):
        e(f'v_lshl_or_b32 v{WO+j}, v{WR+2*j+1}, 16, v{WR+2*j}')
    e(f'v_lshlrev_b32 v{vT+3}, 4, v{vLane}')
    e(f's_lshl_b32 s{s_t0}, s{P+16}, 10')
    e(f's_add_u32 s{s_t0}, s{s_t0}, {WOF}')
    e(f'buffer_store_dwordx4 v[{WO}:{WO+3}], v{vT+3}, s[{sWS}:{sWS+3}], s{s_t0} offen')
    e.label('K1_NOWOF')
    e(f's_mul_i32 s{s_t0}, s{s_w}, {16*160}')
    e(f's_add_u32 s{s_t0}, s{s_t0}, {PREP}')
    e(f'v_lshlrev_b32 v{vT+3}, 2, v{vLane}')
    e(f'v_min_u32 v{vT+3}, 156, v{vT+3}')
    e(f'v_add_u32 v{vT+3}, s{s_t0}, v{vT+3}')
    for r in range(19):
        e(f'ds_read_b32 v{KR+r}, v{vT+3} offset:{r*160}')
        if r == 11: e('s_waitcnt lgkmcnt(8)')
    e('s_waitcnt lgkmcnt(0)')
    for r in range(16):
        e(f'ds_read_b32 v{VRr+r}, v{vT+3} offset:{11520 + r*160}')
        if r == 13: e('s_waitcnt lgkmcnt(8)')
    for r in range(19):
        e(f'v_lshlrev_b32 v{KP+2*r}, 16, v{KR+r}')
        e(f'v_and_b32 v{KP+2*r+1}, s{s_mask}, v{KR+r}')
    e('s_waitcnt lgkmcnt(0)')
    for i in range(16):
        t = KVP + 2*i
        e(f'v_pk_mul_f32 v[{t}:{t+1}], v[{CP+6}:{CP+7}], v[{KP+2*i}:{KP+2*i+1}]')
        e(f'v_pk_fma_f32 v[{t}:{t+1}], v[{CP+4}:{CP+5}], v[{KP+2*i+2}:{KP+2*i+3}], v[{t}:{t+1}]')
        e(f'v_pk_fma_f32 v[{t}:{t+1}], v[{CP+2}:{CP+3}], v[{KP+2*i+4}:{KP+2*i+5}], v[{t}:{t+1}]')
        e(f'v_pk_fma_f32 v[{t}:{t+1}], v[{CP+0}:{CP+1}], v[{KP+2*i+6}:{KP+2*i+7}], v[{t}:{t+1}]')
        e(f'v_lshlrev_b32 v{vT+4}, 16, v{VRr+i}')
        e(f'v_and_b32 v{vT+5}, s{s_mask}, v{VRr+i}')
        e(f'v_pk_mul_f32 v[{t}:{t+1}], v[{t}:{t+1}], v[{vT+4}:{vT+5}]')
    OUT = 128
    for dd in range(2):
        for g in range(2):
            for n in range(4):
                lo = KVP + 2*(8*g + 7 - 2*n) + dd
                hi = KVP + 2*(8*g + 6 - 2*n) + dd
                e(f'v_cvt_pk_bf16_f32 v{OUT + dd*8 + g*4 + n}, v{lo}, v{hi}')
    e(f'v_lshlrev_b32 v{vT+3}, 13, v{vLane}')
    e(f's_mul_i32 s{s_t0}, s{s_cb}, {80*4096}')
    e(f's_lshl_b32 s{s_t1}, s{s_rb}, 7')
    e(f's_add_u32 s{s_t0}, s{s_t0}, s{s_t1}')
    e(f's_lshl_b32 s{s_t1}, s{s_w}, 5')
    e(f's_add_u32 s{s_t0}, s{s_t0}, s{s_t1}')
    e(f's_add_u32 s{s_t0}, s{s_t0}, {KVT}')
    e(f's_add_u32 s{s_t1}, s{s_t0}, 4096')
    set_exec(e, 0xffffffff, 0xff)
    e(f'buffer_store_dwordx4 v[{OUT}:{OUT+3}], v{vT+3}, s[{sWS}:{sWS+3}], s{s_t0} offen')
    e(f'buffer_store_dwordx4 v[{OUT+4}:{OUT+7}], v{vT+3}, s[{sWS}:{sWS+3}], s{s_t0} offen offset:16')
    e(f'buffer_store_dwordx4 v[{OUT+8}:{OUT+11}], v{vT+3}, s[{sWS}:{sWS+3}], s{s_t1} offen')
    e(f'buffer_store_dwordx4 v[{OUT+12}:{OUT+15}], v{vT+3}, s[{sWS}:{sWS+3}], s{s_t1} offen offset:16')
    e(f's_mov_b64 exec, s[{s_ex}:{s_ex+1}]')
    e('s_barrier')
    dma_x(8); dma_x(9)
    for i in range(24): e(f'v_mov_b32 v{ACC+i}, 0')
    for i in range(12): e(f'v_mov_b32 v{CS+i}, 0')
    for i in range(4): e(f'v_mov_b32 v{SS+i}, 0')
    e('s_waitcnt vmcnt(37)')
    e('s_barrier')

    def reads(buf, ksl, xa, xb, wa):
        e(f'ds_read_b128 v[{XF+buf*8}:{XF+buf*8+3}], v{xa+ksl}')
        e(f'ds_read_b128 v[{XF+buf*8+4}:{XF+buf*8+7}], v{xb+ksl}')
        for ft in range(3):
            b = WF + buf*12 + ft*4
            e(f'ds_read_b64_tr_b16 v[{b}:{b+1}], v{wa+ft} offset:{ksl*6144}')
            e(f'ds_read_b64_tr_b16 v[{b+2}:{b+3}], v{wa+ft} offset:{ksl*6144+768}')
    def mfmas(buf, ksl, p, tag):
        for T in range(2):
            for ft in range(3):
                a = ACC + (T*3+ft)*4
                x = f'v[{XF+buf*8+T*4}:{XF+buf*8+T*4+3}]'
                w = f'v[{WF+buf*12+ft*4}:{WF+buf*12+ft*4+3}]'
                if p == 1: e(f'v_mfma_f32_16x16x32_bf16 v[{a}:{a+3}], {x}, {w}, v[{a}:{a+3}]')
                else:      e(f'v_mfma_f32_16x16x32_bf16 v[{a}:{a+3}], {w}, {x}, v[{a}:{a+3}]')
                if p == 1 and T == 0:
                    r = XF + buf*8 + ft
                    e(f'v_dot2c_f32_bf16 v{SS+0}, v{r}, v{ONE}')
                    e(f'v_dot2c_f32_bf16 v{SS+2}, v{r}, v{r}')
            if p == 1 and T == 0:
                r = XF + buf*8 + 3
                e(f'v_dot2c_f32_bf16 v{SS+1}, v{r}, v{ONE}')
                e(f'v_dot2c_f32_bf16 v{SS+3}, v{r}, v{r}')
        e(f's_cmp_eq_u32 s{s_wr}, {ksl}')
        e(f's_cbranch_scc0 K1_SK_{tag}')
        for ft in range(3):
            a = CS + ft*4
            w = f'v[{WF+buf*12+ft*4}:{WF+buf*12+ft*4+3}]'
            o = f'v[{ONE}:{ONE+3}]'
            if p == 1: e(f'v_mfma_f32_16x16x32_bf16 v[{a}:{a+3}], {o}, {w}, v[{a}:{a+3}]')
            else:      e(f'v_mfma_f32_16x16x32_bf16 v[{a}:{a+3}], {w}, {o}, v[{a}:{a+3}]')
        e.label(f'K1_SK_{tag}')

    def set_wa(s_slot):
        for ft in range(3):
            e(f'v_add_u32 v{vWa+ft}, s{s_slot}, v{vWb+ft}')

    e(f's_mov_b32 s{s_i}, 0')
    e(f's_mov_b32 s{s_slotR}, 0')
    set_wa(s_slotR)
    reads(0, 0, vXA, vXB, vWa)

    def loop(p):
        L = f'K1_LOOP{p}'
        e.label(L)
        reads(1, 1, vXA, vXB, vWa)
        e('s_waitcnt lgkmcnt(8)')
        mfmas(0, 0, p, f'{p}a')
        e('s_waitcnt lgkmcnt(0)')
        if p == 1:
            e(f's_cmp_lt_u32 s{s_i}, 5')
            e('s_cbranch_scc1 K1_W25')
            e('s_waitcnt vmcnt(12)')
            e('s_branch K1_WD')
            e.label('K1_W25')
            e('s_waitcnt vmcnt(25)')
            e.label('K1_WD')
        else:
            e('s_waitcnt vmcnt(12)')
        e('s_barrier')
        e(f's_add_u32 s{s_j}, s{s_i}, 6')
        e(f's_mul_i32 s{s_off}, s{s_j}, {64*3072}')
        e(f's_add_u32 s{s_off}, s{s_off}, s{s_z2b}')
        e(f's_cmp_lt_u32 s{s_j}, 10')
        e(f's_cbranch_scc1 K1_OFF{p}')
        e(f's_sub_u32 s{s_off}, s{s_j}, 10')
        e(f's_mul_i32 s{s_off}, s{s_off}, {64*3072}')
        e(f's_add_u32 s{s_off}, s{s_off}, s{s_z1b}')
        e(f's_cmp_lt_u32 s{s_j}, 20')
        e(f's_cselect_b32 s{s_off}, s{s_off}, 0x80000000')
        e.label(f'K1_OFF{p}')
        dma_w(s_off, s_slotR)
        if p == 2:
            e(f's_cmp_eq_u32 s{s_i}, 12')
            e('s_cbranch_scc0 K1_NOFLAG')
            e(f's_cmp_eq_u32 s{s_w}, 0')
            e('s_cbranch_scc0 K1_NOFLAG')
            e('s_waitcnt vmcnt(9)')
            e(f's_lshl_b32 s{s_t0}, s{s_rb}, 2')
            e(f'v_mov_b32 v{vT}, s{s_t0}')
            e(f'v_mov_b32 v{vT+1}, 1')
            set_exec(e, 1, 0)
            e(f'buffer_atomic_add v{vT+1}, v{vT}, s[{sD}:{sD+3}], 0 offen sc1')
            e(f's_mov_b64 exec, s[{s_ex}:{s_ex+1}]')
            e.label('K1_NOFLAG')
        e(f's_add_u32 s{s_slotR}, s{s_slotR}, {WSLOT}')
        e(f's_cmp_eq_u32 s{s_slotR}, {NSLOT*WSLOT}')
        e(f's_cselect_b32 s{s_slotR}, 0, s{s_slotR}')
        set_wa(s_slotR)
        e(f's_movk_i32 s{s_t1}, {XST}')
        e(f's_cmp_eq_u32 s{s_i}, 9')
        e(f's_cselect_b32 s{s_t0}, {(-9*XST) & 0xffffffff}, s{s_t1}')
        for r in (vXA, vXA+1, vXB, vXB+1):
            e(f'v_add_u32 v{r}, s{s_t0}, v{r}')
        reads(0, 0, vXA, vXB, vWa)
        mfmas(1, 1, p, f'{p}b')
        e(f's_add_u32 s{s_i}, s{s_i}, 1')
        e(f's_cmp_lt_u32 s{s_i}, {10*p}')
        e(f's_cbranch_scc1 {L}')

    loop(1)

    e.c('epilogue 1')
    e(f'v_add_f32 v{SS+0}, v{SS+0}, v{SS+1}')
    e(f'v_add_f32 v{SS+2}, v{SS+2}, v{SS+3}')
    for r in (SS+0, SS+2):
        e(f'v_mov_b32 v{vT}, v{r}')
        e(f'v_permlane32_swap_b32 v{r}, v{vT}')
        e(f'v_add_f32 v{r}, v{r}, v{vT}')
        e(f'v_mov_b32 v{vT}, v{r}')
        e(f'v_permlane16_swap_b32 v{r}, v{vT}')
        e(f'v_add_f32 v{r}, v{r}, v{vT}')
    ln_finalize(e, SS+0, SS+2, D, vT+2, vT+3, vT+4, vT+5)
    e(f's_lshl_b32 s{s_t0}, s{s_wr}, 5')
    e(f's_lshl_b32 s{s_t1}, s{s_wc}, 4')
    e(f's_add_u32 s{s_t0}, s{s_t0}, s{s_t1}')
    e(f'v_add_u32 v{vT+4}, s{s_t0}, v{vL15}')
    e(f'v_lshlrev_b32 v{vT+5}, 2, v{vT+4}')
    e(f'v_add_u32 v{vT+5}, {L_M1}, v{vT+5}')
    e(f'ds_write_b32 v{vT+5}, v{vT+2}')
    e(f'ds_write_b32 v{vT+5}, v{vT+3} offset:256')
    e(f's_cmp_eq_u32 s{s_cb}, 0')
    e('s_cbranch_scc0 K1_NOST1')
    e(f's_lshl_b32 s{s_t1}, s{s_rb}, 9')
    e(f's_add_u32 s{s_t1}, s{s_t1}, {ST1}')
    e(f'v_lshlrev_b32 v{vT+4}, 3, v{vT+4}')
    set_exec(e, 0xffff, 0)
    e(f'buffer_store_dwordx2 v[{vT+2}:{vT+3}], v{vT+4}, s[{sWS}:{sWS+3}], s{s_t1} offen')
    e(f's_mov_b64 exec, s[{s_ex}:{s_ex+1}]')
    e.label('K1_NOST1')
    e(f's_mul_i32 s{s_t0}, s{s_w}, 192')
    e(f's_add_u32 s{s_t0}, s{s_t0}, {L_CSX}')
    e(f'v_lshlrev_b32 v{vT+4}, 2, v{vL15}')
    e(f'v_add_u32 v{vT+4}, s{s_t0}, v{vT+4}')
    for ft in range(3):
        e(f'ds_write_b32 v{vT+4}, v{CS+ft*4} offset:{ft*64}')
    e('s_waitcnt lgkmcnt(0)')
    e('s_barrier')
    e(f's_xor_b32 s{s_t1}, s{s_w}, 2')
    e(f's_mul_i32 s{s_t1}, s{s_t1}, 192')
    e(f's_add_u32 s{s_t1}, s{s_t1}, {L_CSX}')
    e(f'v_lshlrev_b32 v{vT+4}, 2, v{vL15}')
    e(f'v_add_u32 v{vT+4}, s{s_t1}, v{vT+4}')
    NCS = E
    for ft in range(3):
        e(f'ds_read_b32 v{NCS+2*ft}, v{vT+4} offset:{ft*64}')
    M1 = E + 8
    R1 = E + 16
    e(f's_lshl_b32 s{s_t0}, s{s_wr}, 7')
    e(f's_lshl_b32 s{s_t1}, s{s_wc}, 6')
    e(f's_add_u32 s{s_t0}, s{s_t0}, s{s_t1}')
    e(f's_add_u32 s{s_t0}, s{s_t0}, {L_M1}')
    e(f'v_lshlrev_b32 v{vT+5}, 4, v{vQ}')
    e(f'v_add_u32 v{vT+5}, s{s_t0}, v{vT+5}')
    e(f'v_xor_b32 v{vT+6}, 64, v{vT+5}')
    e(f'ds_read_b128 v[{M1}:{M1+3}], v{vT+5}')
    e(f'ds_read_b128 v[{M1+4}:{M1+7}], v{vT+6}')
    e(f'ds_read_b128 v[{R1}:{R1+3}], v{vT+5} offset:256')
    e(f'ds_read_b128 v[{R1+4}:{R1+7}], v{vT+6} offset:256')
    K1V = E + 24
    e(f'v_mov_b32 v{K1V}, {hexf(K1c)}'); e(f'v_mov_b32 v{K1V+1}, {hexf(K1c)}')
    e('s_waitcnt lgkmcnt(0)')
    for ft in range(3):
        e(f'v_add_f32 v{NCS+2*ft}, v{NCS+2*ft}, v{CS+ft*4}')
        e(f'v_sub_f32 v{NCS+2*ft}, 0, v{NCS+2*ft}')
    SA = E + 26
    for i in range(16): e(f'v_mov_b32 v{SA+i}, 0')
    G = E + 44
    def gelu_pair(src_pair, dst_pair_tmp):
        t = src_pair; u = dst_pair_tmp
        e(f'v_pk_mul_f32 v[{u}:{u+1}], v[{t}:{t+1}], v[{t}:{t+1}]')
        e(f'v_pk_fma_f32 v[{u}:{u+1}], v[{u}:{u+1}], s[{s_k2}:{s_k2+1}], v[{K1V}:{K1V+1}]')
        e(f'v_pk_mul_f32 v[{u}:{u+1}], v[{u}:{u+1}], v[{t}:{t+1}]')
        e(f'v_exp_f32 v{u}, v{u}')
        e(f'v_exp_f32 v{u+1}, v{u+1}')
        e(f'v_pk_add_f32 v[{u}:{u+1}], v[{u}:{u+1}], s[{s_one}:{s_one+1}]')
        e(f'v_rcp_f32 v{u}, v{u}')
        e(f'v_rcp_f32 v{u+1}, v{u+1}')
        e(f'v_pk_mul_f32 v[{u}:{u+1}], v[{u}:{u+1}], v[{t}:{t+1}]')
    for ft in range(3):
        for T in range(2):
            for p in range(2):
                a = ACC + (T*3+ft)*4 + 2*p
                n = NCS + 2*ft
                g = G + 4*((T*2+p) % 2)
                e(f'v_pk_fma_f32 v[{a}:{a+1}], v[{M1+T*4+2*p}:{M1+T*4+2*p+1}], v[{n}:{n+1}], v[{a}:{a+1}] op_sel_hi:[1,0,1]')
                e(f'v_pk_mul_f32 v[{a}:{a+1}], v[{a}:{a+1}], v[{R1+T*4+2*p}:{R1+T*4+2*p+1}]')
                gelu_pair(a, g)
                e(f'v_cvt_pk_bf16_f32 v{AP+ft*4+T*2+p}, v{g}, v{g+1}')
                s = SA + T*4 + 2*p
                e(f'v_pk_add_f32 v[{s}:{s+1}], v[{s}:{s+1}], v[{g}:{g+1}]')
                e(f'v_pk_fma_f32 v[{s+8}:{s+9}], v[{g}:{g+1}], v[{g}:{g+1}], v[{s+8}:{s+9}]')
    for sh in (8, 4, 2, 1):
        for i in range(16):
            e(f'v_add_f32_dpp v{SA+i}, v{SA+i}, v{SA+i} row_ror:{sh} row_mask:0xf bank_mask:0xf')
    e(f's_lshl_b32 s{s_t0}, s{s_wc}, 8')
    e(f's_add_u32 s{s_t0}, s{s_t0}, {L_PS - L_M1}')
    e(f'v_add_u32 v{vT+5}, s{s_t0}, v{vT+5}')
    e(f'v_add_u32 v{vT+6}, s{s_t0}, v{vT+6}')
    set_exec(e, 0x00010001, 0x00010001)
    e(f'ds_write_b128 v{vT+5}, v[{SA}:{SA+3}]')
    e(f'ds_write_b128 v{vT+6}, v[{SA+4}:{SA+7}]')
    e(f'ds_write_b128 v{vT+5}, v[{SA+8}:{SA+11}] offset:{L_PQ-L_PS}')
    e(f'ds_write_b128 v{vT+6}, v[{SA+12}:{SA+15}] offset:{L_PQ-L_PS}')
    e(f's_mov_b64 exec, s[{s_ex}:{s_ex+1}]')
    for i in range(24): e(f'v_mov_b32 v{ACC+i}, 0')
    for i in range(12): e(f'v_mov_b32 v{CS+i}, 0')
    e('s_waitcnt lgkmcnt(0)')
    e('s_barrier')
    e(f's_cmp_eq_u32 s{s_w}, 0')
    e('s_cbranch_scc0 K1_NOPUB')
    e(f'v_lshlrev_b32 v{vT}, 2, v{vLane}')
    e(f'v_add_u32 v{vT}, {L_PS}, v{vT}')
    e(f'ds_read_b32 v{vT+2}, v{vT}')
    e(f'ds_read_b32 v{vT+4}, v{vT} offset:256')
    e(f'ds_read_b32 v{vT+3}, v{vT} offset:{L_PQ-L_PS}')
    e(f'ds_read_b32 v{vT+5}, v{vT} offset:{L_PQ-L_PS+256}')
    e(f's_lshl_b32 s{s_t0}, s{s_rb}, 3')
    e(f's_add_u32 s{s_t0}, s{s_t0}, s{s_cb}')
    e(f's_lshl_b32 s{s_t0}, s{s_t0}, 9')
    e(f's_add_u32 s{s_t0}, s{s_t0}, {XCH}')
    e(f'v_lshlrev_b32 v{vT+1}, 3, v{vLane}')
    e('s_waitcnt lgkmcnt(0)')
    e(f'v_add_f32 v{vT+2}, v{vT+2}, v{vT+4}')
    e(f'v_add_f32 v{vT+3}, v{vT+3}, v{vT+5}')
    e(f'buffer_store_dwordx2 v[{vT+2}:{vT+3}], v{vT+1}, s[{sWS}:{sWS+3}], s{s_t0} offen sc1')
    e.label('K1_NOPUB')

    loop(2)

    e.c('epilogue 2')
    e(f's_lshl_b32 s{s_t0}, s{s_rb}, 2')
    e(f'v_mov_b32 v{vT+8}, s{s_t0}')
    PC = vT + 9
    e(f'buffer_load_dword v{PC}, v{vT+8}, s[{sD}:{sD+3}], 0 offen sc1')
    e(f's_mul_i32 s{s_t0}, s{s_w}, 192')
    e(f's_add_u32 s{s_t0}, s{s_t0}, {L_CSX}')
    e(f'v_lshlrev_b32 v{vT+4}, 4, v{vQ}')
    e(f'v_add_u32 v{vT+5}, s{s_t0}, v{vT+4}')
    set_exec(e, 0x00010001, 0x00010001)
    for ft in range(3):
        e(f'ds_write_b128 v{vT+5}, v[{CS+ft*4}:{CS+ft*4+3}] offset:{ft*64}')
    e(f's_mov_b64 exec, s[{s_ex}:{s_ex+1}]')
    e('s_waitcnt lgkmcnt(0)')
    e('s_barrier')
    e(f's_xor_b32 s{s_t1}, s{s_w}, 2')
    e(f's_mul_i32 s{s_t1}, s{s_t1}, 192')
    e(f's_add_u32 s{s_t1}, s{s_t1}, {L_CSX}')
    e(f'v_add_u32 v{vT+5}, s{s_t1}, v{vT+4}')
    NC2 = E
    for ft in range(3):
        e(f'ds_read_b128 v[{NC2+ft*4}:{NC2+ft*4+3}], v{vT+5} offset:{ft*64}')
    MR = E + 12
    e(f's_lshl_b32 s{s_t0}, s{s_wr}, 7')
    e(f's_lshl_b32 s{s_t1}, s{s_wc}, 6')
    e(f's_add_u32 s{s_t0}, s{s_t0}, s{s_t1}')
    e(f's_add_u32 s{s_t0}, s{s_t0}, {L_M1}')
    e(f'v_lshlrev_b32 v{vT+6}, 2, v{vL15}')
    e(f'v_add_u32 v{vT+6}, s{s_t0}, v{vT+6}')
    e(f'v_xor_b32 v{vT+7}, 64, v{vT+6}')
    e(f'ds_read_b32 v{MR+0}, v{vT+6}')
    e(f'ds_read_b32 v{MR+2}, v{vT+7}')
    e(f'ds_read_b32 v{MR+4}, v{vT+6} offset:256')
    e(f'ds_read_b32 v{MR+6}, v{vT+7} offset:256')
    e('s_waitcnt lgkmcnt(0)')
    for i in range(12):
        e(f'v_add_f32 v{NC2+i}, v{NC2+i}, v{CS+i}')
        e(f'v_sub_f32 v{NC2+i}, 0, v{NC2+i}')
    e(f's_lshl_b32 s{s_t0}, s{s_rb}, 2')
    e(f's_lshl_b32 s{s_t1}, s{s_wr}, 1')
    e(f's_add_u32 s{s_t0}, s{s_t0}, s{s_t1}')
    e(f's_add_u32 s{s_t1}, s{s_t0}, s{s_wc}')
    e(f's_xor_b32 s{s_t2}, s{s_t1}, 1')
    e(f's_mul_i32 s{s_off}, s{s_cb}, 6')
    e(f's_mul_i32 s{s_j}, s{s_wc}, 3')
    e(f's_add_u32 s{s_off}, s{s_off}, s{s_j}')
    e(f's_mul_i32 s{s_t1}, s{s_t1}, 48')
    e(f's_add_u32 s{s_t1}, s{s_t1}, s{s_off}')
    e(f's_lshl_b32 s{s_t1}, s{s_t1}, 9')
    e(f's_add_u32 s{s_t1}, s{s_t1}, {Z1F}')
    e(f's_mul_i32 s{s_t2}, s{s_t2}, 48')
    e(f's_add_u32 s{s_t2}, s{s_t2}, s{s_off}')
    e(f's_lshl_b32 s{s_t2}, s{s_t2}, 9')
    e(f's_add_u32 s{s_t2}, s{s_t2}, {Z1F}')
    e(f'v_lshlrev_b32 v{vT+6}, 3, v{vLane}')
    ZO = E + 52
    for T in range(2):
        for ft in range(3):
            for p in range(2):
                a = ACC + (T*3+ft)*4 + 2*p
                n = NC2 + ft*4 + 2*p
                m = MR + 2*T; r = MR + 4 + 2*T
                g = G + 4*p
                e(f'v_pk_fma_f32 v[{a}:{a+1}], v[{n}:{n+1}], v[{m}:{m+1}], v[{a}:{a+1}] op_sel_hi:[1,0,1]')
                e(f'v_pk_mul_f32 v[{a}:{a+1}], v[{a}:{a+1}], v[{r}:{r+1}] op_sel_hi:[1,0]')
                gelu_pair(a, g)
                e(f'v_cvt_pk_bf16_f32 v{ZO+(T*3+ft)*2+p}, v{g}, v{g+1}')
            so = s_t1 if T == 0 else s_t2
            z = ZO + (T*3+ft)*2
            e(f'buffer_store_dwordx2 v[{z}:{z+1}], v{vT+6}, s[{sWS}:{sWS+3}], s{so} offen offset:{ft*512}')
        if T == 0:
            e('s_waitcnt vmcnt(3)')
            e.label('K1_POLL')
            e(f'v_readfirstlane_b32 s{s_j}, v{PC}')
            e(f's_cmp_ge_u32 s{s_j}, 8')
            e('s_cbranch_scc1 K1_POLLED')
            e('s_sleep 2')
            e(f'buffer_load_dword v{PC}, v{vT+8}, s[{sD}:{sD+3}], 0 offen sc1')
            e('s_waitcnt vmcnt(0)')
            e('s_branch K1_POLL')
            e.label('K1_POLLED')
            XP = E + 64
            e(f'v_and_b32 v{vT+9}, 31, v{vLane}')
            e(f's_lshl_b32 s{s_j}, s{s_wr}, 5')
            e(f'v_add_u32 v{vT+9}, s{s_j}, v{vT+9}')
            e(f'v_lshlrev_b32 v{vT+9}, 3, v{vT+9}')
            e(f's_lshl_b32 s{s_j}, s{s_rb}, 12')
            e(f's_add_u32 s{s_j}, s{s_j}, {XCH}')
            for c in range(8):
                e(f'buffer_load_dwordx2 v[{XP+2*c}:{XP+2*c+1}], v{vT+9}, s[{sWS}:{sWS+3}], s{s_j} offen offset:{c*512} sc1')
    e.c('normalize z2')
    XP = E + 64
    e('s_waitcnt vmcnt(3)')
    for c in range(1, 8):
        e(f'v_pk_add_f32 v[{XP}:{XP+1}], v[{XP}:{XP+1}], v[{XP+2*c}:{XP+2*c+1}]')
    ln_finalize(e, XP, XP+1, FH, vT+2, vT+3, vT+4, vT+5)
    e(f'v_mul_f32 v{vT+2}, v{vT+2}, v{vT+3}')
    e(f'v_sub_f32 v{vT+2}, 0, v{vT+2}')
    e(f's_lshl_b32 s{s_t0}, s{s_w}, 8')
    e(f's_add_u32 s{s_t0}, s{s_t0}, {L_W2}')
    e(f'v_and_b32 v{vT+4}, 31, v{vLane}')
    e(f'v_lshlrev_b32 v{vT+4}, 2, v{vT+4}')
    e(f'v_add_u32 v{vT+4}, s{s_t0}, v{vT+4}')
    e(f'ds_write_b32 v{vT+4}, v{vT+2}')
    e(f'ds_write_b32 v{vT+4}, v{vT+3} offset:128')
    e(f's_lshl_b32 s{s_t1}, s{s_wc}, 6')
    e(f's_add_u32 s{s_t0}, s{s_t0}, s{s_t1}')
    e(f'v_lshlrev_b32 v{vT+5}, 4, v{vQ}')
    e(f'v_add_u32 v{vT+5}, s{s_t0}, v{vT+5}')
    e(f'v_xor_b32 v{vT+6}, 64, v{vT+5}')
    e('s_waitcnt lgkmcnt(0)')
    e(f'ds_read_b128 v[{M1}:{M1+3}], v{vT+5}')
    e(f'ds_read_b128 v[{M1+4}:{M1+7}], v{vT+6}')
    e(f'ds_read_b128 v[{R1}:{R1+3}], v{vT+5} offset:128')
    e(f'ds_read_b128 v[{R1+4}:{R1+7}], v{vT+6} offset:128')
    e(f's_mul_i32 s{s_t0}, s{s_cb}, 6')
    e(f's_mul_i32 s{s_t1}, s{s_wc}, 3')
    e(f's_add_u32 s{s_t0}, s{s_t0}, s{s_t1}')
    e(f's_lshl_b32 s{s_t0}, s{s_t0}, 6')
    e(f's_lshl_b32 s{s_t1}, s{s_rb}, 1')
    e(f's_add_u32 s{s_t0}, s{s_t0}, s{s_t1}')
    e(f's_add_u32 s{s_t0}, s{s_t0}, s{s_wr}')
    e(f's_lshl_b32 s{s_t0}, s{s_t0}, 10')
    e(f's_add_u32 s{s_t0}, s{s_t0}, {Z2F}')
    e(f'v_and_b32 v{vT+7}, 1, v{vQ}')
    e(f'v_lshlrev_b32 v{vT+7}, 1, v{vT+7}')
    e(f'v_lshrrev_b32 v{vT+8}, 1, v{vQ}')
    e(f'v_or_b32 v{vT+7}, v{vT+7}, v{vT+8}')
    e(f's_lshl_b32 s{s_t1}, s{s_wc}, 1')
    e(f'v_xor_b32 v{vT+7}, s{s_t1}, v{vT+7}')
    e(f'v_lshlrev_b32 v{vT+7}, 4, v{vT+7}')
    e(f'v_add_u32 v{vT+7}, v{vT+7}, v{vL15}')
    e(f'v_lshlrev_b32 v{vT+7}, 4, v{vT+7}')
    e('s_waitcnt lgkmcnt(0)')
    for ft in range(3):
        for T in range(2):
            for p in range(2):
                a = AP + ft*4 + T*2 + p
                g = G + 4*p
                e(f'v_lshlrev_b32 v{g}, 16, v{a}')
                e(f'v_and_b32 v{g+1}, s{s_mask}, v{a}')
                e(f'v_pk_fma_f32 v[{g}:{g+1}], v[{g}:{g+1}], v[{R1+T*4+2*p}:{R1+T*4+2*p+1}], v[{M1+T*4+2*p}:{M1+T*4+2*p+1}]')
                e(f'v_cvt_pk_bf16_f32 v{a}, v{g}, v{g+1}')
        b = AP + ft*4
        e(f'v_permlane16_swap_b32 v{b}, v{b+2}')
        e(f'v_permlane16_swap_b32 v{b+1}, v{b+3}')
        e(f's_add_u32 s{s_t1}, s{s_t0}, {ft*65536}')
        e(f'buffer_store_dwordx4 v[{b}:{b+3}], v{vT+7}, s[{sWS}:{sWS+3}], s{s_t1} offen')
    e.label('K1_END')
    e('s_endpgm')
    nn = e.finalize()
    return kernel_wrap('k1_kernel', e.text(), vgpr=256, sgpr=96), nn

if __name__ == '__main__':
    t, nn = gen_k1()
    print(t[:3000]); print('nops', nn)
```

```python
from common import *
NCONV = 214
GRID2 = 256 + NCONV
LDS2 = 65536
HCP = 4160
CW_U = 4 * HCP
CW_SZ = CW_U + 512 + 4096

def gen_gemm2(e):
    sSP, sWS, sB = 8, 12, 16
    s_tb, s_fb, s_w, s_fh, s_kh = 20, 21, 22, 23, 24
    s_it, s_bw, s_bz, s_t0, s_t1, s_t2, s_m = 25, 26, 27, 28, 29, 30, 31
    s_mask = 32
    P = 36
    vLane, vQ, vL15 = 1, 2, 3
    vD = 4
    vB0, vB1 = 8, 9
    vA = 10
    vT = 14
    Z1 = 24
    BS = 36
    BF = 40
    ACC = 72
    ZA = 120
    e.c('---- gemm2')
    e(f's_load_dwordx4 s[{P}:{P+3}], s[0:1], 64')
    e(f's_load_dwordx2 s[{P+4}:{P+5}], s[0:1], 104')
    e(f'v_and_b32 v{vLane}, 63, v0')
    e(f'v_lshrrev_b32 v{vT}, 6, v0')
    e(f'v_lshrrev_b32 v{vQ}, 4, v{vLane}')
    e(f'v_readfirstlane_b32 s{s_w}, v{vT}')
    e(f'v_and_b32 v{vL15}, 15, v{vLane}')
    e(f's_and_b32 s{s_t0}, s2, 7')
    e(f's_lshr_b32 s{s_t1}, s2, 3')
    e(f's_lshr_b32 s{s_tb}, s{s_t0}, 1')
    e(f's_lshl_b32 s{s_tb}, s{s_tb}, 3')
    e(f's_and_b32 s{s_t2}, s{s_t1}, 7')
    e(f's_add_u32 s{s_tb}, s{s_tb}, s{s_t2}')
    e(f's_and_b32 s{s_fb}, s{s_t0}, 1')
    e(f's_lshl_b32 s{s_fb}, s{s_fb}, 2')
    e(f's_lshr_b32 s{s_t2}, s{s_t1}, 3')
    e(f's_add_u32 s{s_fb}, s{s_fb}, s{s_t2}')
    e(f's_and_b32 s{s_fh}, s{s_w}, 1')
    e(f's_lshr_b32 s{s_kh}, s{s_w}, 1')
    e(f's_mov_b32 s{s_mask}, 0xffff0000')
    e(f's_lshl_b32 s{s_t0}, s{s_tb}, 6')
    e(f's_lshl_b32 s{s_t1}, s{s_w}, 4')
    e(f's_add_u32 s{s_t0}, s{s_t0}, s{s_t1}')
    for t in range(4):
        e(f'v_add_u32 v{vT}, {4*t}, v{vQ}')
        e(f'v_xor_b32 v{vT+1}, v{vT}, v{vL15}')
        e(f'v_lshlrev_b32 v{vT+1}, 4, v{vT+1}')
        e(f'v_add_u32 v{vT}, s{s_t0}, v{vT}')
        e(f'v_lshlrev_b32 v{vT}, 12, v{vT}')
        e(f'v_add_u32 v{vD+t}, v{vT}, v{vT+1}')
    e(f'v_xor_b32 v{vT}, v{vQ}, v{vL15}')
    e(f'v_lshlrev_b32 v{vT}, 4, v{vT}')
    e(f's_lshl_b32 s{s_t0}, s{s_kh}, 6')
    e(f'v_xor_b32 v{vT}, s{s_t0}, v{vT}')
    e(f'v_lshlrev_b32 v{vT+1}, 8, v{vL15}')
    e(f'v_add_u32 v{vB0}, v{vT}, v{vT+1}')
    e(f'v_xor_b32 v{vB1}, 128, v{vB0}')
    e(f's_mul_i32 s{s_t0}, s{s_fb}, 6')
    e(f's_mul_i32 s{s_t1}, s{s_fh}, 3')
    e(f's_add_u32 s{s_t0}, s{s_t0}, s{s_t1}')
    e(f's_mov_b32 s{s_m}, s{s_t0}')
    e(f's_mov_b32 s33, s{s_t0}')
    e(f's_lshl_b32 s{s_t0}, s{s_t0}, 16')
    e(f's_add_u32 s{s_t0}, s{s_t0}, {Z2F}')
    e(f'v_lshlrev_b32 v{vT}, 4, v{vLane}')
    for ft in range(3):
        e(f's_add_u32 s{s_t1}, s{s_t0}, {ft*65536}')
        e(f'v_add_u32 v{vA+ft}, s{s_t1}, v{vT}')
    e('s_waitcnt lgkmcnt(0)')
    srd(e, sSP, P, S*S*2)
    srd(e, sB, P+2, S*2)
    srd(e, sWS, P+4, WS_SIZE)
    e(f's_lshl_b32 s{s_t0}, s{s_tb}, 2')
    e(f's_lshl_b32 s{s_t1}, s{s_kh}, 1')
    e(f's_add_u32 s{s_t0}, s{s_t0}, s{s_t1}')
    e(f's_mov_b32 s34, s{s_t0}')
    e(f's_mul_i32 s{s_t1}, s{s_t0}, 48')
    e(f's_add_u32 s{s_t1}, s{s_t1}, s33')
    e(f's_lshl_b32 s{s_t1}, s{s_t1}, 9')
    e(f's_add_u32 s{s_t1}, s{s_t1}, {Z1F}')
    e(f's_add_u32 s{s_t2}, s{s_t1}, {48*512}')
    e(f'v_lshlrev_b32 v{vT}, 3, v{vLane}')
    for u in range(2):
        for ft in range(3):
            z = Z1 + (u*3+ft)*2
            e(f'buffer_load_dwordx2 v[{z}:{z+1}], v{vT}, s[{sWS}:{sWS+3}], s{s_t1 if u==0 else s_t2} offen offset:{ft*512}')
    e(f'v_lshlrev_b32 v{vT+1}, 1, v{vL15}')
    e(f's_lshl_b32 s{s_t0}, s{s_t0}, 5')
    e(f'buffer_load_ushort v{BS}, v{vT+1}, s[{sB}:{sB+3}], s{s_t0} offen')
    e(f'buffer_load_ushort v{BS+1}, v{vT+1}, s[{sB}:{sB+3}], s{s_t0} offen offset:32')

    def zload(sig, ee, s_base, extra):
        e(f's_add_u32 s{s_t0}, s{s_base}, {extra}')
        for ft in range(3):
            z = ZA + ((sig*2+ee)*3+ft)*4
            e(f'buffer_load_dwordx4 v[{z}:{z+3}], v{vA+ft}, s[{sWS}:{sWS+3}], s{s_t0} offen')
    def dma(sig, s_base, extra):
        e(f's_add_u32 s{s_t0}, s{s_base}, {extra}')
        for t in range(4):
            e(f's_add_u32 m0, s{s_m}, {sig*16384 + t*1024}')
            e('s_nop 0')
            e(f'buffer_load_dwordx4 v{vD+t}, s[{sSP}:{sSP+3}], s{s_t0} offen lds')
    def breads(buf, vb, sig):
        for tt in range(4):
            b = BF + buf*16 + tt*4
            e(f'ds_read_b128 v[{b}:{b+3}], v{vb} offset:{sig*16384 + tt*4096}')
    def mfmas(buf, sig, ee):
        for ft in range(3):
            for tt in range(4):
                a = ACC + (ft*4+tt)*4
                z = ZA + ((sig*2+ee)*3+ft)*4
                b = BF + buf*16 + tt*4
                e(f'v_mfma_f32_16x16x32_bf16 v[{a}:{a+3}], v[{z}:{z+3}], v[{b}:{b+3}], v[{a}:{a+3}]')
    e(f's_lshl_b32 s{s_m}, s{s_w}, 12')
    e(f's_mov_b32 s{s_bw}, 0')
    e(f's_lshl_b32 s{s_bz}, s{s_kh}, 10')
    for j in range(4):
        zload(j, 0, s_bz, (4*j)*1024)
        dma(j, s_bw, j*256)
        zload(j, 1, s_bz, (4*j+2)*1024)
    for i in range(48): e(f'v_mov_b32 v{ACC+i}, 0')
    e('s_waitcnt vmcnt(30)')
    e('s_barrier')
    breads(0, vB0, 0)
    e(f's_mov_b32 s{s_it}, 0')
    e.label('K2_LOOP')
    e(f's_add_u32 s{s_t0}, s{s_it}, 1')
    e(f's_lshl_b32 s{s_bw}, s{s_t0}, 10')
    e(f's_lshl_b32 s{s_bz}, s{s_t0}, 14')
    e(f's_lshl_b32 s{s_t1}, s{s_kh}, 10')
    e(f's_add_u32 s{s_bz}, s{s_bz}, s{s_t1}')
    e(f's_cmp_lt_u32 s{s_it}, 3')
    e(f's_cselect_b32 s{s_bw}, s{s_bw}, 0x80000000')
    e(f's_cselect_b32 s{s_bz}, s{s_bz}, 0x80000000')
    for sig in range(4):
        breads(1, vB1, sig)
        e('s_waitcnt lgkmcnt(4)')
        mfmas(0, sig, 0)
        zload(sig, 0, s_bz, (4*sig)*1024)
        e('s_waitcnt vmcnt(23) lgkmcnt(0)')
        e('s_barrier')
        dma(sig, s_bw, sig*256)
        breads(0, vB0, (sig+1) % 4)
        mfmas(1, sig, 1)
        zload(sig, 1, s_bz, (4*sig+2)*1024)
    e(f's_add_u32 s{s_it}, s{s_it}, 1')
    e(f's_cmp_lt_u32 s{s_it}, 4')
    e('s_cbranch_scc1 K2_LOOP')
    e.c('gemm2 epilogue')
    e('s_waitcnt vmcnt(0) lgkmcnt(0)')
    e('s_barrier')
    e(f's_mul_i32 s{s_t0}, s{s_w}, 6144')
    e(f'v_lshlrev_b32 v{vT}, 4, v{vLane}')
    e(f'v_add_u32 v{vT+1}, s{s_t0}, v{vT}')
    e(f's_xor_b32 s{s_t1}, s{s_w}, 2')
    e(f's_mul_i32 s{s_t1}, s{s_t1}, 6144')
    e(f'v_add_u32 v{vT+2}, s{s_t1}, v{vT}')
    e(f's_cmp_eq_u32 s{s_kh}, 0')
    e('s_cbranch_scc0 K2_KH1')
    RX = BF
    OWN = ZA
    for kh in range(2):
        if kh == 1: e.label('K2_KH1')
        for ft in range(3):
            for u in range(2):
                a = ACC + (ft*4 + 2*(1-kh) + u)*4
                e(f'ds_write_b128 v{vT+1}, v[{a}:{a+3}] offset:{(ft*2+u)*1024}')
        for ft in range(3):
            for u in range(2):
                a = ACC + (ft*4 + 2*kh + u)*4
                for r in range(4):
                    e(f'v_mov_b32 v{OWN+(ft*2+u)*4+r}, v{a+r}')
        if kh == 0: e('s_branch K2_KHD')
    e.label('K2_KHD')
    e('s_waitcnt lgkmcnt(0)')
    e('s_barrier')
    for i in range(6):
        e(f'ds_read_b128 v[{RX+i*4}:{RX+i*4+3}], v{vT+2} offset:{i*1024}')
    e(f'v_lshlrev_b32 v{vT+4}, 16, v{BS}')
    e(f'v_lshlrev_b32 v{vT+6}, 16, v{BS+1}')
    e(f'v_lshlrev_b32 v{vT+8}, 4, v{vLane}')
    e('s_waitcnt lgkmcnt(0)')
    for ft in range(3):
        e(f's_add_u32 s{s_t0}, s33, {ft}')
        e(f's_lshr_b32 s{s_t1}, s{s_t0}, 1')
        e(f's_and_b32 s{s_t0}, s{s_t0}, 1')
        e(f's_lshl_b32 s{s_t0}, s{s_t0}, 3')
        e(f's_lshl_b32 s{s_t1}, s{s_t1}, 10')
        e(f's_add_u32 s{s_t0}, s{s_t0}, s{s_t1}')
        e(f's_mul_i32 s{s_t1}, s34, {24*1024}')
        e(f's_add_u32 s{s_t0}, s{s_t0}, s{s_t1}')
        e(f's_add_u32 s{s_t0}, s{s_t0}, {PF}')
        e(f's_add_u32 s{s_t1}, s{s_t0}, {24*1024}')
        for u in range(2):
            o = OWN + (ft*2+u)*4; rx = RX + (ft*2+u)*4; z = Z1 + (u*3+ft)*2
            bb = vT + 4 + 2*u
            for p in range(2):
                g = vT + 10 + 0
                e(f'v_pk_add_f32 v[{o+2*p}:{o+2*p+1}], v[{o+2*p}:{o+2*p+1}], v[{rx+2*p}:{rx+2*p+1}]')
                e(f'v_pk_add_f32 v[{o+2*p}:{o+2*p+1}], v[{o+2*p}:{o+2*p+1}], v[{bb}:{bb+1}] op_sel_hi:[1,0]')
                e(f'v_lshlrev_b32 v{rx+2*p}, 16, v{z+p}')
                e(f'v_and_b32 v{rx+2*p+1}, s{s_mask}, v{z+p}')
                e(f'v_pk_mul_f32 v[{o+2*p}:{o+2*p+1}], v[{o+2*p}:{o+2*p+1}], v[{rx+2*p}:{rx+2*p+1}]')
                e(f'v_cvt_pk_bf16_f32 v{z+p}, v{o+2*p}, v{o+2*p+1}')
            e(f'buffer_store_dwordx2 v[{z}:{z+1}], v{vT+8}, s[{sWS}:{sWS+3}], s{s_t0 if u==0 else s_t1} offen')
    e('s_endpgm')

def gen_conv(e):
    sH, sWS, sDd = 8, 12, 16
    s_w, s_d, s_base, s_t0, s_t1, s_p = 20, 21, 22, 23, 24, 25
    s_mask = 26; s_ex = 28
    P = 36
    vLane, vQ, vL15 = 1, 2, 3
    vA, vB = 4, 5
    vT = 6
    HC = 16
    DV = 46
    ACC = 48
    AF = 80
    BFr = 144
    e.c('---- conv')
    e.label('K2_CONV')
    e(f'v_lshrrev_b32 v{vT}, 6, v0')
    e(f'v_and_b32 v{vLane}, 63, v0')
    e(f'v_readfirstlane_b32 s{s_w}, v{vT}')
    e(f's_sub_u32 s{s_t0}, s2, 256')
    e(f's_mul_i32 s{s_d}, s{s_t0}, 3')
    e(f's_add_u32 s{s_d}, s{s_d}, s{s_w}')
    e(f's_cmp_ge_u32 s{s_w}, 3')
    e('s_cbranch_scc1 K2_END')
    e(f's_cmp_ge_u32 s{s_d}, 640')
    e('s_cbranch_scc1 K2_END')
    e(f's_load_dwordx4 s[{P}:{P+3}], s[0:1], 32')
    e(f's_load_dwordx2 s[{P+4}:{P+5}], s[0:1], 104')
    e(f'v_lshrrev_b32 v{vQ}, 4, v{vLane}')
    e(f'v_and_b32 v{vL15}, 15, v{vLane}')
    e(f's_mul_i32 s{s_base}, s{s_w}, {CW_SZ}')
    e(f's_mov_b32 s{s_mask}, 0xffff0000')
    e(f's_mov_b64 s[{s_ex}:{s_ex+1}], exec')
    e('s_waitcnt lgkmcnt(0)')
    e(f's_lshl_b32 s{s_t0}, s{s_d}, 12')
    e(f's_add_u32 s{sH}, s{P}, s{s_t0}')
    e(f's_addc_u32 s{sH+1}, s{P+1}, 0')
    e(f's_and_b32 s{sH+1}, s{sH+1}, 0xffff')
    e(f's_mov_b32 s{sH+2}, 4096')
    e(f's_mov_b32 s{sH+3}, 0x20000')
    srd(e, sWS, P+4, WS_SIZE)
    srd(e, sDd, P+2, D*2)
    e(f'v_lshlrev_b32 v{vT}, 4, v{vLane}')
    e(f's_lshl_b32 s{s_t0}, s{s_d}, 12')
    e(f's_add_u32 s{s_t0}, s{s_t0}, {KVT}')
    for n in range(4):
        e(f's_add_u32 m0, s{s_base}, {CW_U + 512 + n*1024}')
        e(f's_add_u32 s{s_t1}, s{s_t0}, {n*1024}')
        e(f'buffer_load_dwordx4 v{vT}, s[{sWS}:{sWS+3}], s{s_t1} offen lds')
    for n in range(4):
        c = HC + n*6
        e(f'buffer_load_dwordx4 v[{c}:{c+3}], v{vT}, s[{sH}:{sH+3}], 0 offen offset:{n*1024}')
        e(f'buffer_load_dwordx2 v[{c+4}:{c+5}], v{vT}, s[{sH}:{sH+3}], 0 offen offset:{n*1024+16}')
    X = 40
    e(f'v_mov_b32 v{vT+1}, 0')
    e(f'buffer_load_dwordx2 v[{X+4}:{X+5}], v{vT+1}, s[{sH}:{sH+3}], 0 offen')
    e(f's_lshl_b32 s{s_t0}, s{s_d}, 1')
    e(f'buffer_load_ushort v{DV}, v{vT+1}, s[{sDd}:{sDd+3}], s{s_t0} offen')
    e(f'v_mov_b32 v{vT+2}, 0'); e(f'v_mov_b32 v{vT+3}, 0')
    e(f'v_lshlrev_b32 v{vT+4}, 3, v{vLane}')
    e(f'v_add_u32 v{vT+4}, s{s_base}, v{vT+4}')
    e(f'ds_write_b64 v{vT+4}, v[{vT+2}:{vT+3}] offset:{CW_U}')
    e(f'v_add_u32 v{vT+4}, 1, v{vL15}')
    e(f'v_and_b32 v{vT+4}, 3, v{vT+4}')
    e(f'v_lshrrev_b32 v{vT+5}, 1, v{vQ}')
    e(f'v_and_b32 v{vT+6}, 1, v{vQ}')
    e(f'v_lshlrev_b32 v{vT+7}, 4, v{vT+5}')
    e(f'v_add_u32 v{vT+7}, v{vT+7}, v{vL15}')
    e(f'v_lshlrev_b32 v{vT+8}, 3, v{vT+6}')
    e(f'v_sub_u32 v{vT+7}, v{vT+7}, v{vT+8}')
    e(f'v_add_u32 v{vT+7}, 9, v{vT+7}')
    e(f'v_sub_u32 v{vT+7}, v{vT+7}, v{vT+4}')
    e(f'v_lshlrev_b32 v{vT+7}, 1, v{vT+7}')
    e(f'v_mul_u32_u24 v{vT+4}, {HCP}, v{vT+4}')
    e(f'v_add_u32 v{vT+7}, v{vT+7}, v{vT+4}')
    e(f'v_add_u32 v{vA}, s{s_base}, v{vT+7}')
    e(f'v_sub_u32 v{vT+7}, v{vL15}, v{vT+5}')
    e(f'v_lshlrev_b32 v{vT+7}, 1, v{vT+7}')
    e(f'v_add_u32 v{vT+7}, v{vT+7}, v{vT+6}')
    e(f'v_lshlrev_b32 v{vT+7}, 4, v{vT+7}')
    e(f's_add_u32 s{s_t0}, s{s_base}, {CW_U + 512}')
    e(f'v_add_u32 v{vB}, s{s_t0}, v{vT+7}')
    e(f'v_lshlrev_b32 v{vT+4}, 4, v{vLane}')
    e(f'v_add_u32 v{vT+4}, s{s_base}, v{vT+4}')
    TM = AF
    def copies(c, off, k):
        t = TM + k*12
        e(f'v_alignbit_b32 v{t+0}, v{c+1}, v{c+0}, 16')
        e(f'v_alignbit_b32 v{t+1}, v{c+2}, v{c+1}, 16')
        e(f'v_alignbit_b32 v{t+2}, v{c+3}, v{c+2}, 16')
        e(f'v_alignbit_b32 v{t+3}, v{c+4}, v{c+3}, 16')
        e(f'v_mov_b32 v{t+4}, v{c+1}'); e(f'v_mov_b32 v{t+5}, v{c+2}')
        e(f'v_mov_b32 v{t+6}, v{c+3}'); e(f'v_mov_b32 v{t+7}, v{c+4}')
        e(f'v_mov_b32 v{t+8}, v{t+1}'); e(f'v_mov_b32 v{t+9}, v{t+2}'); e(f'v_mov_b32 v{t+10}, v{t+3}')
        e(f'v_alignbit_b32 v{t+11}, v{c+5}, v{c+4}, 16')
        e(f'ds_write_b128 v{vT+4}, v[{c}:{c+3}] offset:{off}')
        e(f'ds_write_b128 v{vT+4}, v[{t}:{t+3}] offset:{off + HCP}')
        e(f'ds_write_b128 v{vT+4}, v[{t+4}:{t+7}] offset:{off + 2*HCP}')
        e(f'ds_write_b128 v{vT+4}, v[{t+8}:{t+11}] offset:{off + 3*HCP}')
    e('s_waitcnt vmcnt(0)')
    for n in range(4):
        copies(HC + n*6, 32 + n*1024, n)
        e('s_waitcnt lgkmcnt(4)')
    for i in range(4): e(f'v_mov_b32 v{X+i}, 0')
    e(f'v_cmp_eq_u32 vcc, 1, v{vLane}')
    e(f'v_cndmask_b32 v{X+4}, 0, v{X+4}, vcc')
    e(f'v_cndmask_b32 v{X+5}, 0, v{X+5}, vcc')
    set_exec(e, 3, 0)
    copies(X, 0, 4)
    e(f's_mov_b64 exec, s[{s_ex}:{s_ex+1}]')
    e(f'v_lshlrev_b32 v{DV}, 16, v{DV}')
    for i in range(32): e(f'v_mov_b32 v{ACC+i}, 0')
    e('s_waitcnt lgkmcnt(0)')

    def rd_list(buf):
        L = []
        for m in range(8):
            a = AF + buf*32 + m*4
            L.append(f'ds_read_b64 v[{a}:{a+1}], v{vA} offset:{m*512}')
            L.append(f'ds_read_b64 v[{a+2}:{a+3}], v{vA} offset:{m*512+8}')
            b = BFr + buf*32 + m*4
            L.append(f'ds_read_b128 v[{b}:{b+3}], v{vB} offset:{m*512}')
        return L
    def mf_list(buf):
        L = []
        for m in range(8):
            for c in range(m, 8):
                a = AF + buf*32 + m*4; b = BFr + buf*32 + (c-m)*4; d = ACC + c*4
                L.append(f'v_mfma_f32_16x16x32_bf16 v[{d}:{d+3}], v[{a}:{a+3}], v[{b}:{b+3}], v[{d}:{d+3}]')
        return L
    R = rd_list(0)
    for g in range(3):
        for x in R[g*8:(g+1)*8]: e(x)
        e('s_waitcnt lgkmcnt(7)')
    e(f's_mov_b32 s{s_p}, 0')
    e.label('K2_CLOOP')
    for half in range(2):
        e(f'v_add_u32 v{vA}, 64, v{vA}')
        e(f'v_subrev_u32 v{vB}, 64, v{vB}')
        e('s_waitcnt lgkmcnt(0)')
        R = rd_list(1 - half); M = mf_list(half)
        for g in range(3):
            for x in R[g*8:(g+1)*8]: e(x)
            for x in M[g*12:(g+1)*12]: e(x)
            if g < 2: e('s_waitcnt lgkmcnt(7)')
    e(f's_add_u32 s{s_p}, s{s_p}, 2')
    e(f's_cmp_lt_u32 s{s_p}, 8')
    e('s_cbranch_scc1 K2_CLOOP')
    e('s_waitcnt lgkmcnt(0)')
    e(f'v_lshlrev_b32 v{vT}, 5, v{vL15}')
    e(f'v_lshrrev_b32 v{vT+1}, 1, v{vQ}')
    e(f'v_lshlrev_b32 v{vT+1}, 4, v{vT+1}')
    e(f'v_add_u32 v{vT}, v{vT}, v{vT+1}')
    e(f'v_and_b32 v{vT+1}, 1, v{vQ}')
    e(f'v_xor_b32 v{vT+1}, 1, v{vT+1}')
    e(f'v_lshlrev_b32 v{vT+1}, 3, v{vT+1}')
    e(f'v_add_u32 v{vT}, v{vT}, v{vT+1}')
    e(f's_add_u32 s{s_t0}, s{s_base}, {CW_U + 512}')
    e(f'v_add_u32 v{vT}, s{s_t0}, v{vT}')
    KV = AF
    for c in range(8):
        e(f'ds_read_b64 v[{KV+2*c}:{KV+2*c+1}], v{vT} offset:{c*512}')
    e(f'v_lshlrev_b32 v{vT+2}, 5, v{vL15}')
    e(f'v_lshlrev_b32 v{vT+3}, 3, v{vQ}')
    e(f'v_add_u32 v{vT+2}, v{vT+2}, v{vT+3}')
    e(f's_lshl_b32 s{s_t0}, s{s_d}, 12')
    e(f's_add_u32 s{s_t0}, s{s_t0}, {YYT}')
    e('s_waitcnt lgkmcnt(0)')
    U = BFr
    for c in range(8):
        a = ACC + c*4; k0 = KV + 2*c; u = U + c*8
        e(f'v_and_b32 v{u+0}, s{s_mask}, v{k0+1}')
        e(f'v_lshlrev_b32 v{u+1}, 16, v{k0+1}')
        e(f'v_and_b32 v{u+2}, s{s_mask}, v{k0}')
        e(f'v_lshlrev_b32 v{u+3}, 16, v{k0}')
        e(f'v_pk_fma_f32 v[{a}:{a+1}], v[{u}:{u+1}], v[{DV}:{DV+1}], v[{a}:{a+1}] op_sel_hi:[1,0,1]')
        e(f'v_pk_fma_f32 v[{a+2}:{a+3}], v[{u+2}:{u+3}], v[{DV}:{DV+1}], v[{a+2}:{a+3}] op_sel_hi:[1,0,1]')
        e(f'v_cvt_pk_bf16_f32 v{u+4}, v{a}, v{a+1}')
        e(f'v_cvt_pk_bf16_f32 v{u+5}, v{a+2}, v{a+3}')
        e(f'buffer_store_dwordx2 v[{u+4}:{u+5}], v{vT+2}, s[{sWS}:{sWS+3}], s{s_t0} offen offset:{c*512}')
    e.label('K2_END')
    e('s_endpgm')

def gen_k2():
    e = Emitter()
    e(f's_cmp_ge_u32 s2, {GRID2}')
    e('s_cbranch_scc1 K2_END')
    e('s_cmp_ge_u32 s2, 256')
    e('s_cbranch_scc1 K2_CONV')
    gen_gemm2(e)
    gen_conv(e)
    nn = e.finalize()
    return kernel_wrap('k2_kernel', e.text(), vgpr=256, sgpr=96), nn
```

```python
from common import *
WO_SZ = 122880
XT = WO_SZ
YT = XT + 10240
LDS3 = YT + 10240

def gen_k3():
    e = Emitter()
    sX, sWS, sO = 8, 12, 16
    s_tb, s_db, s_w, s_t0, s_t1, s_t2 = 20, 21, 22, 23, 24, 25
    s_mask = 26; s_ex = 28; s_one = 30; s_nl = 32
    P = 36
    vLane, vQ, vL15 = 1, 2, 3
    vL16 = 4
    vXO = 5
    vYO = 8
    vT = 12
    ST = 24
    AFr = 28
    ACC = 68
    PFR = 88
    E = 184
    e('s_cmp_ge_u32 s2, 256')
    e('s_cbranch_scc1 K3_END')
    e(f's_load_dwordx2 s[{P}:{P+1}], s[0:1], 0')
    e(f's_load_dwordx2 s[{P+2}:{P+3}], s[0:1], 88')
    e(f's_load_dwordx2 s[{P+4}:{P+5}], s[0:1], 104')
    e(f'v_and_b32 v{vLane}, 63, v0')
    e(f'v_lshrrev_b32 v{vT}, 6, v0')
    e(f'v_lshrrev_b32 v{vQ}, 4, v{vLane}')
    e(f'v_readfirstlane_b32 s{s_w}, v{vT}')
    e(f'v_and_b32 v{vL15}, 15, v{vLane}')
    e(f'v_lshlrev_b32 v{vL16}, 4, v{vLane}')
    e(f's_and_b32 s{s_t0}, s2, 7')
    e(f's_lshr_b32 s{s_t1}, s2, 3')
    e(f's_lshr_b32 s{s_tb}, s{s_t0}, 1')
    e(f's_lshl_b32 s{s_tb}, s{s_tb}, 3')
    e(f's_and_b32 s{s_t2}, s{s_t1}, 7')
    e(f's_add_u32 s{s_tb}, s{s_tb}, s{s_t2}')
    e(f's_and_b32 s{s_db}, s{s_t0}, 1')
    e(f's_lshl_b32 s{s_db}, s{s_db}, 2')
    e(f's_lshr_b32 s{s_t2}, s{s_t1}, 3')
    e(f's_add_u32 s{s_db}, s{s_db}, s{s_t2}')
    e(f's_mov_b32 s{s_mask}, 0xffff0000')
    e(f's_mov_b64 s[{s_ex}:{s_ex+1}], exec')
    e('s_waitcnt lgkmcnt(0)')
    srd(e, sX, P, S*D*2)
    srd(e, sO, P+2, S*D*2)
    srd(e, sWS, P+4, WS_SIZE)
    s_tt = 34
    e(f's_lshl_b32 s{s_tt}, s{s_tb}, 2')
    e(f's_add_u32 s{s_tt}, s{s_tt}, s{s_w}')
    s_pb, s_wb = 35, 33
    e(f's_mul_i32 s{s_pb}, s{s_tt}, {24*1024}')
    e(f's_add_u32 s{s_pb}, s{s_pb}, {PF}')
    e(f's_mul_i32 s{s_wb}, s{s_db}, {5*24*1024}')
    e(f's_lshl_b32 s{s_t0}, s{s_w}, 10')
    e(f's_add_u32 s{s_wb}, s{s_wb}, s{s_t0}')
    e(f's_add_u32 s{s_wb}, s{s_wb}, {WOF}')
    e(f's_mul_i32 s{s_t2}, s{s_w}, 5120')
    for g in range(6):
        for u in range(5):
            e(f's_add_u32 m0, s{s_t2}, {(4*g*5 + u)*1024}')
            e(f's_add_u32 s{s_t0}, s{s_wb}, {(u*24 + 4*g)*1024}')
            e(f'buffer_load_dwordx4 v{vL16}, s[{sWS}:{sWS+3}], s{s_t0} offen lds')
        e(f's_add_u32 s{s_t0}, s{s_pb}, {4*g*1024}')
        for k in range(4):
            r = PFR + (4*g+k)*4
            e(f'buffer_load_dwordx4 v[{r}:{r+3}], v{vL16}, s[{sWS}:{sWS+3}], s{s_t0} offen offset:{k*1024}')
    e(f's_lshl_b32 s{s_t0}, s{s_tt}, 4')
    e(f's_mul_i32 s{s_t0}, s{s_t0}, 1280')
    e(f's_mul_i32 s{s_t1}, s{s_db}, 160')
    e(f's_add_u32 s{s_t0}, s{s_t0}, s{s_t1}')
    for n in range(3):
        e(f'v_add_u32 v{vT}, {64*n}, v{vLane}')
        e(f'v_mul_u32_u24 v{vT+1}, 6554, v{vT}')
        e(f'v_lshrrev_b32 v{vT+1}, 16, v{vT+1}')
        e(f'v_mul_u32_u24 v{vT+2}, 10, v{vT+1}')
        e(f'v_sub_u32 v{vT+2}, v{vT}, v{vT+2}')
        e(f'v_lshlrev_b32 v{vT+2}, 4, v{vT+2}')
        e(f'v_mul_u32_u24 v{vT+1}, 1280, v{vT+1}')
        e(f'v_add_u32 v{vT+1}, v{vT+1}, v{vT+2}')
        e(f'v_add_u32 v{vXO+n}, s{s_t0}, v{vT+1}')
        e(f'v_lshrrev_b32 v{vT+1}, 1, v{vT}')
        e(f'v_lshlrev_b32 v{vT+1}, 12, v{vT+1}')
        e(f'v_and_b32 v{vT+2}, 1, v{vT}')
        e(f'v_lshlrev_b32 v{vT+2}, 4, v{vT+2}')
        e(f'v_add_u32 v{vYO+n}, v{vT+1}, v{vT+2}')
    s_xl = 36 + 8; s_yo = 36 + 9
    e(f's_mul_i32 s{s_xl}, s{s_w}, 2560')
    e(f's_mul_i32 s{s_yo}, s{s_db}, {80*4096}')
    e(f's_lshl_b32 s{s_t1}, s{s_tt}, 5')
    e(f's_add_u32 s{s_yo}, s{s_yo}, s{s_t1}')
    e(f's_add_u32 s{s_yo}, s{s_yo}, {YYT}')
    for n in range(3):
        if n == 2: set_exec(e, 0xffffffff, 0)
        e(f's_add_u32 m0, s{s_xl}, {XT + n*1024}')
        e('s_nop 0')
        e(f'buffer_load_dwordx4 v{vXO+n}, s[{sX}:{sX+3}], 0 offen lds')
        e(f's_add_u32 m0, s{s_xl}, {YT + n*1024}')
        e('s_nop 0')
        e(f'buffer_load_dwordx4 v{vYO+n}, s[{sWS}:{sWS+3}], s{s_yo} offen lds')
    e(f's_mov_b64 exec, s[{s_ex}:{s_ex+1}]')
    e(f'v_lshlrev_b32 v{vT}, 3, v{vL15}')
    e(f's_lshl_b32 s{s_t0}, s{s_tt}, 7')
    e(f's_add_u32 s{s_t0}, s{s_t0}, {ST1}')
    e(f'buffer_load_dwordx2 v[{ST}:{ST+1}], v{vT}, s[{sWS}:{sWS+3}], s{s_t0} offen')
    for i in range(20): e(f'v_mov_b32 v{ACC+i}, 0')
    def reads(buf, ks):
        for dt in range(5):
            a = AFr + buf*20 + dt*4
            e(f'ds_read_b128 v[{a}:{a+3}], v{vL16 if (ks*5+dt)*1024 < 65536 else vT+8} offset:{((ks*5+dt)*1024) % 65536}')
    e(f'v_add_u32 v{vT+8}, 65536, v{vL16}')
    e('s_waitcnt vmcnt(52)')
    e('s_barrier')
    reads(0, 0)
    for ks in range(24):
        buf = ks % 2
        last_in_group = (ks % 4 == 3)
        if ks + 1 < 24:
            if last_in_group:
                g = ks // 4 + 1
                e(f's_waitcnt vmcnt({(5-g)*9+7})')
                e('s_barrier')
            reads(1 - buf, ks + 1)
            e('s_waitcnt lgkmcnt(5)')
        else:
            e('s_waitcnt lgkmcnt(0)')
        for dt in range(5):
            a = AFr + buf*20 + dt*4; d = ACC + dt*4; p = PFR + ks*4
            e(f'v_mfma_f32_16x16x32_bf16 v[{d}:{d+3}], v[{a}:{a+3}], v[{p}:{p+3}], v[{d}:{d+3}]')
    e.c('k3 epilogue')
    e('s_waitcnt vmcnt(0)')
    e(f'v_mul_u32_u24 v{vT}, 160, v{vL15}')
    e(f'v_lshlrev_b32 v{vT+1}, 3, v{vQ}')
    e(f'v_add_u32 v{vT}, v{vT}, v{vT+1}')
    e(f's_add_u32 s{s_t0}, s{s_xl}, {XT}')
    e(f'v_add_u32 v{vT}, s{s_t0}, v{vT}')
    e(f'v_lshlrev_b32 v{vT+1}, 7, v{vQ}')
    e(f'v_lshlrev_b32 v{vT+2}, 3, v{vL15}')
    e(f'v_add_u32 v{vT+1}, v{vT+1}, v{vT+2}')
    e(f's_add_u32 s{s_t0}, s{s_xl}, {YT}')
    e(f'v_add_u32 v{vT+1}, s{s_t0}, v{vT+1}')
    XR = E; YR = E + 10
    for dt in range(5):
        e(f'ds_read_b64 v[{XR+2*dt}:{XR+2*dt+1}], v{vT} offset:{dt*32}')
        e(f'ds_read_b64_tr_b16 v[{YR+2*dt}:{YR+2*dt+1}], v{vT+1} offset:{dt*512}')
    NM = vT + 2
    e(f'v_sub_f32 v{NM}, 0, v{ST}')
    e(f'v_mov_b32 v{vT+4}, v{ST+1}')
    e(f's_mov_b32 s{s_one}, 1.0'); e(f's_mov_b32 s{s_one+1}, 1.0')
    e(f's_mov_b32 s{s_nl}, {hexf(-1.4426950408889634)}');
    e(f'v_mov_b32 v{vT+6}, s{s_nl}'); e(f'v_mov_b32 v{vT+7}, s{s_nl}')
    e('s_waitcnt lgkmcnt(0)')
    W = E + 20
    for dt in range(5):
        for p in range(2):
            a = ACC + dt*4 + 2*p
            x = W + (p*8); y = x + 2; g = x + 4; s = x + 6
            e(f'v_lshlrev_b32 v{x}, 16, v{XR+2*dt+p}')
            e(f'v_and_b32 v{x+1}, s{s_mask}, v{XR+2*dt+p}')
            e(f'v_lshlrev_b32 v{y}, 16, v{YR+2*dt+p}')
            e(f'v_and_b32 v{y+1}, s{s_mask}, v{YR+2*dt+p}')
            e(f'v_pk_mul_f32 v[{g}:{g+1}], v[{a}:{a+1}], v[{vT+6}:{vT+7}]')
            e(f'v_exp_f32 v{g}, v{g}')
            e(f'v_exp_f32 v{g+1}, v{g+1}')
            e(f'v_pk_add_f32 v[{s}:{s+1}], v[{x}:{x+1}], v[{NM}:{NM+1}] op_sel_hi:[1,0]')
            e(f'v_pk_add_f32 v[{g}:{g+1}], v[{g}:{g+1}], s[{s_one}:{s_one+1}]')
            e(f'v_pk_mul_f32 v[{s}:{s+1}], v[{s}:{s+1}], v[{vT+4}:{vT+5}] op_sel_hi:[1,0]')
            e(f'v_rcp_f32 v{g}, v{g}')
            e(f'v_rcp_f32 v{g+1}, v{g+1}')
            e(f'v_pk_mul_f32 v[{s}:{s+1}], v[{s}:{s+1}], v[{y}:{y+1}]')
            e(f'v_pk_mul_f32 v[{g}:{g+1}], v[{g}:{g+1}], v[{a}:{a+1}]')
            e(f'v_pk_fma_f32 v[{s}:{s+1}], v[{s}:{s+1}], v[{g}:{g+1}], v[{x}:{x+1}]')
            e(f'v_cvt_pk_bf16_f32 v{XR+2*dt+p}, v{s}, v{s+1}')
        e(f'ds_write_b64 v{vT}, v[{XR+2*dt}:{XR+2*dt+1}] offset:{dt*32}')
    e('s_waitcnt lgkmcnt(0)')
    e(f's_add_u32 s{s_t0}, s{s_xl}, {XT}')
    e(f'v_add_u32 v{vT+1}, s{s_t0}, v{vL16}')
    OR = W + 16
    for n in range(3):
        e(f'ds_read_b128 v[{OR+4*n}:{OR+4*n+3}], v{vT+1} offset:{n*1024}')
    e('s_waitcnt lgkmcnt(0)')
    for n in range(3):
        if n == 2: set_exec(e, 0xffffffff, 0)
        e(f'buffer_store_dwordx4 v[{OR+4*n}:{OR+4*n+3}], v{vXO+n}, s[{sO}:{sO+3}], 0 offen')
    e.label('K3_END')
    e('s_endpgm')
    nn = e.finalize()
    return kernel_wrap('k3_kernel', e.text(), vgpr=256, sgpr=96), nn
```

```python
from emit import Emitter
S = 2048; D = 640; F = 1536; FH = 768
KA = dict(q=0, k=8, v=16, shift_k=24, ssm_k=32, ssm_D=40, B_x=48, w_in=56, w_sp=64, b_sp=72, w_out=80, out=88, dbg=96, ws=104)
Z1F = 0x0000000
Z2F = 0x0300000
KVT = 0x0600000
YYT = 0x0900000
PF  = 0x0C00000
WOF = 0x0F00000
ST1 = 0x1000000
XCH = 0x1010000
WS_SIZE = 0x1200000
SRD3 = 0x00020000

import struct
def f32bits(x): return struct.unpack('<I', struct.pack('<f', x))[0]
def hexf(x): return '0x%08x' % f32bits(x)

def vr(a, n=1):
    return f'v{a}' if n == 1 else f'v[{a}:{a+n-1}]'
def sr(a, n=1):
    return f's{a}' if n == 1 else f's[{a}:{a+n-1}]'

def srd(e, dst, lo, size):
    e(f's_mov_b32 s{dst}, s{lo}')
    e(f's_and_b32 s{dst+1}, s{lo+1}, 0xffff')
    e(f's_mov_b32 s{dst+2}, {size}')
    e(f's_mov_b32 s{dst+3}, 0x20000')

def kernel_wrap(name, body, vgpr, sgpr=96):
    accum = (vgpr + 3) // 4 * 4
    return f""".globl {name}
.p2align 8
.type {name},@function
{name}:
{body}
.section .rodata,"a"
.p2align 6
.amdhsa_kernel {name}
  .amdhsa_next_free_vgpr {vgpr}
  .amdhsa_next_free_sgpr {sgpr}
  .amdhsa_accum_offset {accum}
  .amdhsa_group_segment_fixed_size 0
  .amdhsa_kernarg_size 112
  .amdhsa_user_sgpr_count 2
  .amdhsa_user_sgpr_kernarg_segment_ptr 1
  .amdhsa_system_sgpr_workgroup_id_x 1
  .amdhsa_float_denorm_mode_32 3
.end_amdhsa_kernel
.text
"""

def round_bf16(e, v, tmp=None):
    e(f'v_cvt_pk_bf16_f32 v{v}, v{v}, v{v}')
    e(f'v_lshlrev_b32 v{v}, 16, v{v}')

def ln_finalize(e, vsum, vsq, n, vm, vr_, t0, t1):
    inv = 1.0 / n
    e(f'v_mul_f32 v{vm}, {hexf(inv)}, v{vsum}')
    e(f'v_mul_f32 v{t0}, {hexf(inv)}, v{vsq}')
    e(f'v_fma_f32 v{t0}, -v{vm}, v{vm}, v{t0}')
    e(f'v_max_f32 v{t0}, 0, v{t0}')
    round_bf16(e, vm)
    round_bf16(e, t0)
    e(f'v_add_f32 v{t0}, {hexf(1e-5)}, v{t0}')
    round_bf16(e, t0)
    e(f'v_sqrt_f32 v{t0}, v{t0}')
    round_bf16(e, t0)
    e(f'v_rcp_f32 v{vr_}, v{t0}')

def set_exec(e, lo, hi):
    e(f's_mov_b32 exec_lo, {hex(lo)}')
    e(f's_mov_b32 exec_hi, {hex(hi)}')

import os
STAMPS = os.environ.get('STAMPS', '0') == '1'
TSB = 0x1080000
class Stamper:
    def __init__(self): self.n = 0
    def start(self, e):
        if not STAMPS: return
        e('s_memrealtime s[92:93]')
        self.stamp(e)
    def stamp(self, e):
        if not STAMPS: return
        assert self.n < 6
        e(f's_memtime s[{80+2*self.n}:{81+2*self.n}]')
        self.n += 1
    def flush(self, e, launch, srd_ws, vt, wave_sgpr):
        if not STAMPS: return
        self.stamp(e)
        e('s_memrealtime s[94:95]')
        e('s_waitcnt lgkmcnt(0)')
        e(f's_lshl_b32 s79, s2, 3')
        e(f's_add_u32 s79, s79, s{wave_sgpr}')
        e(f's_lshl_b32 s79, s79, 6')
        e(f's_add_u32 s79, s79, {TSB + launch*0x40000}')
        e(f'v_mov_b32 v{vt}, 0')
        e('s_mov_b32 exec_lo, 1'); e('s_mov_b32 exec_hi, 0')
        vals = [80+2*i for i in range(self.n)] + [92, 94]
        for i, s in enumerate(vals):
            slot = i if i < self.n else (14 + i - self.n)
            e(f'v_mov_b32 v{vt+1}, s{s}')
            e(f'buffer_store_dword v{vt+1}, v{vt}, s[{srd_ws}:{srd_ws+3}], s79 offen offset:{4*slot}')

def weave(e, mf, fills):
    for i, m in enumerate(mf):
        e(m)
        if i < len(fills):
            for x in fills[i]: e(x)
    for f in fills[len(mf):]:
        for x in f: e(x)
def spread(items, nslots, front=None):
    out = [[] for _ in range(nslots)]
    n = len(items)
    k = 0
    for i in range(nslots):
        take = -(-(n - k) // (nslots - i))
        out[i] = items[k:k+take]; k += take
    return out

STF = os.environ.get('STF', '')
STF_EARLY = os.environ.get('STF_EARLY', '')
```

```python
from common import *

WSLOT = 12288; NSLOT = 5
XB0 = NSLOT * WSLOT
XST = 8192
PREP = XB0 + 8 * XST
PREPV = 11520
MISC = XB0 + 10 * XST
L_M1 = MISC; L_R1 = MISC + 256
L_CSA = MISC + 512
L_CSB = MISC + 1280
L_PS = MISC + 2048
L_PQ = MISC + 2560
L_W2 = MISC + 3072
LDS1 = 150528
import os
PREFETCH = os.environ.get('PREFETCH', '1') == '1'
XP_NOPREP = os.environ.get('XP_NOPREP', '0') == '1'
XP_NODOT = os.environ.get('XP_NODOT', '0') == '1'
XP_NOCOMP = os.environ.get('XP_NOCOMP', '0')
BLOCK1 = 768
SENT = 0xbf800000

K1c = -2.0 * 1.4426950408889634 * 0.7978845608028654
K2c = K1c * 0.044715

def gen_k1():
    e = Emitter()
    sX, sW, sWS, sK, sV, sT = 8, 12, 16, 20, 24, 28
    s_rb, s_cb, s_w, s_wr, s_wc, s_wl = 32, 33, 34, 35, 36, 55
    s_i, s_j, s_off, s_t0, s_t1, s_t2 = 37, 38, 39, 40, 41, 42
    s_z2b, s_z1b, s_slot, s_mask = 43, 44, 45, 47
    s_k2 = 48; s_one = 50; s_ex = 52; s_xo = 54
    sD = 56
    P = 60
    vLane, vQ, vL15 = 1, 2, 3
    vXA, vXB, vW = 4, 6, 8
    vT = 14
    XF = 26; WF = 42; ACC = 66; CS = 90; ONE = 102; SUM = 106; GR = 110; AP = 114; E = 126
    nbar = {'A': 0, 'B': 0, 'L': 0}
    def bar(role, name=''):
        e('s_barrier'); nbar[role] += 1

    e.c('---- k1: GEMM1 (LN1 folded) + gelu + LN2 + kv prep + w_out retile ; roles A(0-3) B(4-7) L(8)')
    e('s_cmp_ge_u32 s2, 256')
    e('s_cbranch_scc1 K1_END')
    stp = Stamper(); stp.start(e)
    e(f's_load_dwordx4 s[{P}:{P+3}], s[0:1], 0')
    e(f's_load_dwordx4 s[{P+4}:{P+7}], s[0:1], 16')
    e(f's_load_dwordx2 s[{P+8}:{P+9}], s[0:1], 56')
    e(f's_load_dwordx2 s[{P+10}:{P+11}], s[0:1], 80')
    e(f's_load_dwordx4 s[{P+12}:{P+15}], s[0:1], 96')
    e(f's_load_dwordx2 s[{P+18}:{P+19}], s[0:1], 64')
    e(f'v_and_b32 v{vLane}, 63, v0')
    e(f'v_lshrrev_b32 v{vT}, 6, v0')
    e(f'v_lshrrev_b32 v{vQ}, 4, v{vLane}')
    e(f'v_readfirstlane_b32 s{s_w}, v{vT}')
    e(f'v_and_b32 v{vL15}, 15, v{vLane}')
    e(f's_and_b32 s{s_t0}, s2, 7')
    e(f's_lshr_b32 s{s_t1}, s2, 3')
    e(f's_lshr_b32 s{s_rb}, s{s_t0}, 1')
    e(f's_lshl_b32 s{s_rb}, s{s_rb}, 3')
    e(f's_lshr_b32 s{s_t2}, s{s_t1}, 2')
    e(f's_add_u32 s{s_rb}, s{s_rb}, s{s_t2}')
    e(f's_and_b32 s{s_cb}, s{s_t0}, 1')
    e(f's_lshl_b32 s{s_cb}, s{s_cb}, 2')
    e(f's_and_b32 s{s_t2}, s{s_t1}, 3')
    e(f's_add_u32 s{s_cb}, s{s_cb}, s{s_t2}')
    e(f's_and_b32 s{s_wl}, s{s_w}, 3')
    e(f's_lshr_b32 s{s_wr}, s{s_wl}, 1')
    e(f's_and_b32 s{s_wc}, s{s_wl}, 1')
    e(f's_mov_b32 s{s_mask}, 0xffff0000')
    e(f's_mov_b64 s[{s_ex}:{s_ex+1}], exec')
    e(f's_mul_i32 s{s_z1b}, s{s_cb}, 192')
    e(f's_add_u32 s{s_z2b}, s{s_z1b}, {768*2}')
    e(f's_cmp_ge_u32 s{s_w}, 8')
    e('s_cbranch_scc0 K1_AB')

    e.c('loader (4 waves; L = w&3 handles instr n = 4h + L of each stage)')
    vP, vPr = 4, 5
    VX = 8
    VW = 12
    t = 30
    s_L = s_wl
    s_xs, s_ws_, s_lb = s_j, s_off, s_slot
    e(f's_lshl_b32 s{s_t0}, s{s_rb}, 6')
    e(f's_lshl_b32 s{s_t1}, s{s_L}, 3')
    e(f's_add_u32 s{s_t0}, s{s_t0}, s{s_t1}')
    e(f's_lshl_b32 s{s_lb}, s{s_L}, 10')
    e(f'v_lshrrev_b32 v{t}, 3, v{vLane}')
    e(f'v_add_u32 v{t+2}, s{s_t1}, v{t}')
    e(f'v_lshrrev_b32 v{t+1}, 1, v{t+2}')
    e(f'v_xor_b32 v{t+1}, v{t+1}, v{vLane}')
    e(f'v_and_b32 v{t+1}, 7, v{t+1}')
    e(f'v_lshlrev_b32 v{t+1}, 4, v{t+1}')
    e(f'v_add_u32 v{t}, s{s_t0}, v{t}')
    e(f'v_mul_u32_u24 v{t}, 1280, v{t}')
    e(f'v_add_u32 v{VX}, v{t}, v{t+1}')
    e(f'v_add_u32 v{VX+1}, {32*1280}, v{VX}')
    e('s_waitcnt lgkmcnt(0)')
    srd(e, sX, P, S*D*2)
    cnt = [0]; done_at = {}
    def issue_x(j):
        e(f's_movk_i32 s{s_xs}, {j*128}')
        for h in range(2):
            e(f's_add_u32 m0, s{s_lb}, {XB0 + j*XST + 4096*h}')
            e('s_nop 0')
            e(f'buffer_load_dwordx4 v{VX+h}, s[{sX}:{sX+3}], s{s_xs} offen lds')
        cnt[0] += 2
    def issue_w(j):
        base = s_z2b if j < 10 else s_z1b
        e(f's_add_u32 s{s_ws_}, s{base}, {(j % 10)*64*3072}')
        for h in range(3):
            e(f's_add_u32 m0, s{s_lb}, {(j % NSLOT)*WSLOT + 4096*h}')
            e('s_nop 0')
            e(f'buffer_load_dwordx4 v{VW+h}, s[{sW}:{sW+3}], s{s_ws_} offen lds')
        cnt[0] += 3
    issue_x(0)
    for h in range(3):
        e(f's_lshl_b32 s{s_t0}, s{s_L}, 6')
        e(f's_add_u32 s{s_t0}, s{s_t0}, {64*4*h}')
        e(f'v_add_u32 v{t}, s{s_t0}, v{vLane}')
        e(f'v_mul_u32_u24 v{t+1}, 5462, v{t}')
        e(f'v_lshrrev_b32 v{t+1}, 16, v{t+1}')
        e(f'v_mul_u32_u24 v{t+2}, 12, v{t+1}')
        e(f'v_sub_u32 v{t+2}, v{t}, v{t+2}')
        e(f'v_lshrrev_b32 v{t+3}, 2, v{t+1}')
        e(f'v_and_b32 v{t+3}, 2, v{t+3}')
        e(f'v_xor_b32 v{t+2}, v{t+2}, v{t+3}')
        e(f'v_lshlrev_b32 v{t+2}, 4, v{t+2}')
        e(f'v_mul_u32_u24 v{t+1}, 3072, v{t+1}')
        e(f'v_add_u32 v{VW+h}, v{t+1}, v{t+2}')
    srd(e, sW, P+8, D*F*2)
    issue_w(0); done_at[0] = cnt[0]
    def issue(j):
        if j < 10: issue_x(j)
        issue_w(j)
        done_at[j] = cnt[0]
    def lbar(k):
        n = cnt[0] - done_at[k]
        e(f's_waitcnt vmcnt({min(n, 63)})'); bar('L')
    e(f'v_mul_u32_u24 v{vPr}, 6554, v{vLane}')
    e(f'v_lshrrev_b32 v{vPr}, 16, v{vPr}')
    e(f'v_mul_u32_u24 v{vP}, 10, v{vPr}')
    e(f'v_sub_u32 v{vP}, v{vLane}, v{vP}')
    e(f'v_lshlrev_b32 v{vP}, 4, v{vP}')
    e(f'v_mul_u32_u24 v{t}, 1280, v{vPr}')
    e(f'v_add_u32 v{vP}, v{vP}, v{t}')
    srd(e, sK, P+2, S*D*2)
    srd(e, sV, P+4, S*D*2)
    set_exec(e, 0xffffffff, 0x0fffffff)
    sa, sb, sc = 70, 71, 72
    e(f's_lshl_b32 s{s_t0}, s{s_rb}, 6')
    e(f's_mul_i32 s{s_t1}, s{s_L}, 6')
    e(f's_add_u32 s{s_t0}, s{s_t0}, s{s_t1}')
    e(f's_mul_i32 s{sa}, s{s_t0}, 1280')
    e(f's_mul_i32 s{s_t1}, s{s_cb}, 160')
    e(f's_add_u32 s{sa}, s{sa}, s{s_t1}')
    e(f's_mul_i32 s{sb}, s{s_L}, 960')
    e(f's_add_u32 s{sb}, s{sb}, {PREP}')
    e(f'v_mov_b32 v{t}, v{vP}')
    e(f's_sub_u32 s{sc}, s{sa}, {3*1280}')
    e(f's_cmp_eq_u32 s{s_t0}, 0')
    e('s_cbranch_scc0 K1_NONNEG')
    e(f'v_subrev_u32 v{t}, {3*1280}, v{vP}')
    e(f'v_cmp_gt_u32 vcc, 3, v{vPr}')
    e(f'v_mov_b32 v{t+1}, 0x80000000')
    e(f'v_cndmask_b32 v{t}, v{t}, v{t+1}, vcc')
    e(f's_mov_b32 s{sc}, s{sa}')
    e.label('K1_NONNEG')
    for n in range(3):
        e(f's_add_u32 m0, s{sb}, {n*3840}')
        e('s_nop 0')
        e(f'buffer_load_dwordx4 v{t if n == 0 else vP}, s[{sK}:{sK+3}], s{sc} offen lds')
        e(f's_add_u32 m0, s{sb}, {n*3840 + PREPV}')
        e('s_nop 0')
        e(f'buffer_load_dwordx4 v{vP}, s[{sV}:{sV+3}], s{sa} offen lds')
        e(f's_add_u32 s{sa}, s{sa}, {24*1280}')
        e(f's_sub_u32 s{sc}, s{sa}, {3*1280}')
    e(f's_mov_b64 exec, s[{s_ex}:{s_ex+1}]')
    cnt[0] += 6
    def prefetch_wsp():
        e(f's_and_b32 s{s_t0}, s2, 7')
        e(f's_lshr_b32 s{s_t0}, s{s_t0}, 1')
        e(f's_lshl_b32 s{s_t0}, s{s_t0}, 9')
        e(f's_lshr_b32 s{s_t1}, s2, 3')
        e(f's_lshl_b32 s{s_t1}, s{s_t1}, 4')
        e(f's_add_u32 s{s_t0}, s{s_t0}, s{s_t1}')
        e(f's_lshl_b32 s{s_t1}, s{s_L}, 2')
        e(f's_add_u32 s{s_t0}, s{s_t0}, s{s_t1}')
        e(f's_lshl_b32 s{s_t0}, s{s_t0}, 12')
        e(f'v_lshlrev_b32 v{t}, 6, v{vLane}')
        srd(e, sK, P+18, S*S*2)
        for r in range(4):
            e(f'buffer_load_dword v{t+1+r}, v{t}, s[{sK}:{sK+3}], s{s_t0} offen')
            e(f's_add_u32 s{s_t0}, s{s_t0}, 4096')
        cnt[0] += 4
    nxt = 1
    stL = Stamper(); stL.n = 0
    for k in range(20):
        lim = min(19, k + (1 if k == 0 else 2 if k == 1 else 3))
        if k == 5: stL.stamp(e)
        while nxt <= lim:
            issue(nxt); nxt += 1
            if nxt == 20 and PREFETCH: prefetch_wsp()
        if k == 5: stL.stamp(e)
        if k == 5 and STAMPS:
            n = cnt[0] - done_at[k]
            e(f's_waitcnt vmcnt({min(n, 63)})'); stL.stamp(e)
        lbar(k)
        if k == 5: stL.stamp(e)
        if k == 6: stL.stamp(e)
    bar('L'); bar('L')
    if STAMPS:
        srd(e, sWS, P+14, WS_SIZE) if False else None
        e(f's_load_dwordx2 s[{P+14}:{P+15}], s[0:1], 104')
        e('s_waitcnt lgkmcnt(0)')
        srd(e, sWS, P+14, WS_SIZE)
        e('s_mov_b32 s92, 1')
        stL.flush(e, 3, sWS, t, s_wl)
    e('s_endpgm')

    e.label('K1_AB')
    e(f'v_lshrrev_b32 v{vT+3}, 1, v{vL15}')
    e(f'v_xor_b32 v{vT+3}, v{vT+3}, v{vQ}')
    e(f'v_lshlrev_b32 v{vT+3}, 4, v{vT+3}')
    e(f'v_lshlrev_b32 v{vT+4}, 7, v{vL15}')
    e(f'v_add_u32 v{vT+3}, v{vT+3}, v{vT+4}')
    e(f'v_xor_b32 v{vT+4}, 64, v{vT+3}')
    e(f's_lshl_b32 s{s_t0}, s{s_wr}, 12')
    e(f's_lshl_b32 s{s_t1}, s{s_wc}, 11')
    e(f's_add_u32 s{s_t2}, s{s_t0}, s{s_t1}')
    e(f's_add_u32 s{s_t2}, s{s_t2}, {XB0}')
    e(f'v_add_u32 v{vXA}, s{s_t2}, v{vT+3}')
    e(f'v_add_u32 v{vXA+1}, s{s_t2}, v{vT+4}')
    e(f's_xor_b32 s{s_t1}, s{s_t1}, 2048')
    e(f's_add_u32 s{s_t2}, s{s_t0}, s{s_t1}')
    e(f's_add_u32 s{s_t2}, s{s_t2}, {XB0}')
    e(f'v_add_u32 v{vXB}, s{s_t2}, v{vT+3}')
    e(f'v_add_u32 v{vXB+1}, s{s_t2}, v{vT+4}')
    e(f'v_lshrrev_b32 v{vT+3}, 2, v{vLane}')
    e(f'v_and_b32 v{vT+3}, 3, v{vT+3}')
    e(f'v_lshlrev_b32 v{vT+4}, 3, v{vQ}')
    e(f'v_add_u32 v{vT+3}, v{vT+3}, v{vT+4}')
    e(f'v_mul_u32_u24 v{vT+3}, 192, v{vT+3}')
    e(f'v_and_b32 v{vT+4}, 3, v{vLane}')
    e(f'v_lshlrev_b32 v{vT+4}, 3, v{vT+4}')
    e(f'v_add_u32 v{vT+3}, v{vT+3}, v{vT+4}')
    e(f'v_and_b32 v{vT+5}, 1, v{vQ}')
    e(f's_mul_i32 s{s_t0}, s{s_wc}, 3')
    for ft in range(3):
        e(f's_add_u32 s{s_t1}, s{s_t0}, {ft}')
        e(f'v_xor_b32 v{vT+4}, s{s_t1}, v{vT+5}')
        e(f'v_lshlrev_b32 v{vT+4}, 5, v{vT+4}')
        e(f'v_add_u32 v{vW+ft}, v{vT+3}, v{vT+4}')
    e(f's_mov_b32 s{s_k2}, {hexf(K2c)}'); e(f's_mov_b32 s{s_k2+1}, {hexf(K2c)}')
    e(f's_mov_b32 s{s_one}, 1.0'); e(f's_mov_b32 s{s_one+1}, 1.0')
    e('s_waitcnt lgkmcnt(0)')
    srd(e, sWS, P+14, WS_SIZE)
    srd(e, sD, P+12, 256)
    e(f's_cmp_ge_u32 s{s_w}, 4')
    e('s_cbranch_scc1 K1_B')

    def rd_list(buf, ksl, xoff, woff):
        L = []
        L.append(f'ds_read_b128 v[{XF+buf*8}:{XF+buf*8+3}], v{vXA+ksl} offset:{xoff}')
        for ft in range(3):
            b = WF + buf*12 + ft*4
            L.append(f'ds_read_b64_tr_b16 v[{b}:{b+1}], v{vW+ft} offset:{woff+ksl*6144}')
            L.append(f'ds_read_b64_tr_b16 v[{b+2}:{b+3}], v{vW+ft} offset:{woff+ksl*6144+768}')
            if ft == 0:
                L.append(f'ds_read_b128 v[{XF+buf*8+4}:{XF+buf*8+7}], v{vXB+ksl} offset:{xoff}')
        return L
    def phase(buf, ksl, p, tag, nxt_reads):
        mf = []
        for ft in range(3):
            for T in range(2):
                a = ACC + (T*3+ft)*4
                x = f'v[{XF+buf*8+T*4}:{XF+buf*8+T*4+3}]'
                w = f'v[{WF+buf*12+ft*4}:{WF+buf*12+ft*4+3}]'
                if p == 1: mf.append(f'v_mfma_f32_16x16x32_bf16 v[{a}:{a+3}], {x}, {w}, v[{a}:{a+3}]')
                else:      mf.append(f'v_mfma_f32_16x16x32_bf16 v[{a}:{a+3}], {w}, {x}, v[{a}:{a+3}]')
        fills = [nxt_reads[0:2], nxt_reads[2:4], nxt_reads[4:6], nxt_reads[6:8], [], []]
        if p == 1 and not XP_NODOT:
            x = f'v[{XF+buf*8}:{XF+buf*8+3}]'
            mf.append(f'v_mfma_f32_16x16x32_bf16 v[{SUM}:{SUM+3}], v[{ONE}:{ONE+3}], {x}, v[{SUM}:{SUM+3}]')
            mf.append(f'v_mfma_f32_16x16x32_bf16 v[{GR}:{GR+3}], {x}, {x}, v[{GR}:{GR+3}]')
        if XP_NOCOMP == '2': fills = [[] for _ in fills]
        if XP_NOCOMP == '3': mf = ['s_nop 0'] * len(mf)
        weave(e, mf, fills)
        e(f's_cmp_eq_u32 s{s_wr}, {ksl}')
        e(f's_cbranch_scc0 K1_SK_{tag}')
        for ft in range(3):
            a = CS + ft*4
            w = f'v[{WF+buf*12+ft*4}:{WF+buf*12+ft*4+3}]'
            o = f'v[{ONE}:{ONE+3}]'
            if p == 1: e(f'v_mfma_f32_16x16x32_bf16 v[{a}:{a+3}], {o}, {w}, v[{a}:{a+3}]')
            else:      e(f'v_mfma_f32_16x16x32_bf16 v[{a}:{a+3}], {w}, {o}, v[{a}:{a+3}]')
        e.label(f'K1_SK_{tag}')
    def init_acc():
        for i in range(4): e(f'v_mov_b32 v{ONE+i}, 0x3f803f80')
        for i in range(24): e(f'v_mov_b32 v{ACC+i}, 0')
        for i in range(12): e(f'v_mov_b32 v{CS+i}, 0')
        for i in range(8): e(f'v_mov_b32 v{SUM+i}, 0')
    def loop(p, role):
        L = f'K1_LOOP{p}'
        if XP_NOCOMP == '1':
            for _ in range(10): bar(role)
            return
        e(f's_mov_b32 s{s_i}, 0')
        for x in rd_list(0, 0, 0, 0): e(x)
        e.label(L)
        for u in range(5):
            e('s_waitcnt lgkmcnt(0)')
            phase(0, 0, p, f'{p}a{u}', rd_list(1, 1, u*XST, u*WSLOT))
            e('s_waitcnt lgkmcnt(0)')
            e('s_barrier')
            if u == 4:
                for r in (vXA, vXA+1, vXB, vXB+1):
                    e(f'v_add_u32 v{r}, {5*XST}, v{r}')
                nx = rd_list(0, 0, 0, 0)
            else:
                nx = rd_list(0, 0, (u+1)*XST, (u+1)*WSLOT)
            phase(1, 1, p, f'{p}b{u}', nx)
        e(f's_add_u32 s{s_i}, s{s_i}, 1')
        e(f's_cmp_lt_u32 s{s_i}, 2')
        e(f's_cbranch_scc1 {L}')
        nbar[role] += 10
    K1V = E + 0
    G = E + 2
    def gelu_pair_sc(t, u):
        for h in range(2):
            e(f'v_mul_f32 v{u+h}, v{t+h}, v{t+h}')
        for h in range(2):
            e(f'v_fma_f32 v{u+h}, v{u+h}, s{s_k2}, v{K1V}')
        for h in range(2):
            e(f'v_mul_f32 v{u+h}, v{u+h}, v{t+h}')
        for h in range(2):
            e(f'v_exp_f32 v{u+h}, v{u+h}')
        for h in range(2):
            e(f'v_add_f32 v{u+h}, 1.0, v{u+h}')
        for h in range(2):
            e(f'v_rcp_f32 v{u+h}, v{u+h}')
        for h in range(2):
            e(f'v_mul_f32 v{u+h}, v{u+h}, v{t+h}')
    def gelu_pair(t, u):
        e(f'v_pk_mul_f32 v[{u}:{u+1}], v[{t}:{t+1}], v[{t}:{t+1}]')
        e(f'v_pk_fma_f32 v[{u}:{u+1}], v[{u}:{u+1}], s[{s_k2}:{s_k2+1}], v[{K1V}:{K1V+1}]')
        e(f'v_pk_mul_f32 v[{u}:{u+1}], v[{u}:{u+1}], v[{t}:{t+1}]')
        e(f'v_exp_f32 v{u}, v{u}')
        e(f'v_exp_f32 v{u+1}, v{u+1}')
        e(f'v_pk_add_f32 v[{u}:{u+1}], v[{u}:{u+1}], s[{s_one}:{s_one+1}]')
        e(f'v_rcp_f32 v{u}, v{u}')
        e(f'v_rcp_f32 v{u+1}, v{u+1}')
        e(f'v_pk_mul_f32 v[{u}:{u+1}], v[{u}:{u+1}], v[{t}:{t+1}]')

    e.c('role A')
    init_acc()
    bar('A')
    stp.stamp(e)
    loop(1, 'A')
    stp.stamp(e)
    e.c('A epilogue')
    e('s_setprio 2')
    e(f's_lshl_b32 s{s_t0}, s{s_rb}, 2')
    e(f'v_mov_b32 v{vT+8}, s{s_t0}')
    PC = vT + 9
    e(f'buffer_load_dword v{PC}, v{vT+8}, s[{sD}:{sD+3}], 0 offen sc1')
    e(f'v_and_b32 v{vT}, 3, v{vL15}')
    e(f'v_cmp_eq_u32 vcc, 1, v{vT}')
    e(f'v_cndmask_b32 v{GR}, v{GR}, v{GR+1}, vcc')
    e(f'v_cmp_eq_u32 vcc, 2, v{vT}')
    e(f'v_cndmask_b32 v{GR}, v{GR}, v{GR+2}, vcc')
    e(f'v_cmp_eq_u32 vcc, 3, v{vT}')
    e(f'v_cndmask_b32 v{GR}, v{GR}, v{GR+3}, vcc')
    ln_finalize(e, SUM, GR, D, vT+2, vT+3, vT+4, vT+5)
    e(f's_lshl_b32 s{s_t0}, s{s_wr}, 5')
    e(f's_lshl_b32 s{s_t1}, s{s_wc}, 4')
    e(f's_add_u32 s{s_t0}, s{s_t0}, s{s_t1}')
    e(f'v_add_u32 v{vT+4}, s{s_t0}, v{vL15}')
    e(f'v_lshlrev_b32 v{vT+5}, 2, v{vT+4}')
    e(f'v_add_u32 v{vT+5}, {L_M1}, v{vT+5}')
    set_exec(e, 0x00f0000f, 0xf0000f00)
    e(f'ds_write_b32 v{vT+5}, v{vT+2}')
    e(f'ds_write_b32 v{vT+5}, v{vT+3} offset:256')
    e(f's_cmp_eq_u32 s{s_cb}, 0')
    e('s_cbranch_scc0 K1_NOST1X')
    e(f's_lshl_b32 s{s_t1}, s{s_rb}, 9')
    e(f's_add_u32 s{s_t1}, s{s_t1}, {ST1}')
    e(f'v_lshlrev_b32 v{vT+4}, 3, v{vT+4}')
    e(f'buffer_store_dwordx2 v[{vT+2}:{vT+3}], v{vT+4}, s[{sWS}:{sWS+3}], s{s_t1} offen')
    e.label('K1_NOST1X')
    e(f's_mov_b64 exec, s[{s_ex}:{s_ex+1}]')
    e(f's_mul_i32 s{s_t0}, s{s_wl}, 192')
    e(f's_add_u32 s{s_t0}, s{s_t0}, {L_CSA}')
    e(f'v_lshlrev_b32 v{vT+6}, 2, v{vL15}')
    e(f'v_add_u32 v{vT+6}, s{s_t0}, v{vT+6}')
    for ft in range(3):
        e(f'ds_write_b32 v{vT+6}, v{CS+ft*4} offset:{ft*64}')
    e('s_waitcnt lgkmcnt(0)')
    bar('A')
    e(f's_xor_b32 s{s_t1}, s{s_wl}, 2')
    e(f's_mul_i32 s{s_t1}, s{s_t1}, 192')
    e(f's_add_u32 s{s_t1}, s{s_t1}, {L_CSA}')
    e(f'v_lshlrev_b32 v{vT+4}, 2, v{vL15}')
    e(f'v_add_u32 v{vT+4}, s{s_t1}, v{vT+4}')
    NCS = E + 10
    for ft in range(3):
        e(f'ds_read_b32 v{NCS+2*ft}, v{vT+4} offset:{ft*64}')
    M1 = XF
    R1 = XF + 8
    e(f's_lshl_b32 s{s_t0}, s{s_wr}, 7')
    e(f's_lshl_b32 s{s_t1}, s{s_wc}, 6')
    e(f's_add_u32 s{s_t0}, s{s_t0}, s{s_t1}')
    e(f's_add_u32 s{s_t0}, s{s_t0}, {L_M1}')
    e(f'v_lshlrev_b32 v{vT+5}, 4, v{vQ}')
    e(f'v_add_u32 v{vT+5}, s{s_t0}, v{vT+5}')
    e(f'v_xor_b32 v{vT+6}, 64, v{vT+5}')
    e(f'ds_read_b128 v[{M1}:{M1+3}], v{vT+5}')
    e(f'ds_read_b128 v[{M1+4}:{M1+7}], v{vT+6}')
    e(f'ds_read_b128 v[{R1}:{R1+3}], v{vT+5} offset:256')
    e(f'ds_read_b128 v[{R1+4}:{R1+7}], v{vT+6} offset:256')
    e(f'v_mov_b32 v{K1V}, {hexf(K1c)}'); e(f'v_mov_b32 v{K1V+1}, {hexf(K1c)}')
    SA = WF
    for i in range(16): e(f'v_mov_b32 v{SA+i}, 0')
    e('s_waitcnt lgkmcnt(0)')
    for ft in range(3):
        e(f'v_add_f32 v{NCS+2*ft}, v{NCS+2*ft}, v{CS+ft*4}')
        e(f'v_sub_f32 v{NCS+2*ft}, 0, v{NCS+2*ft}')
    npair = 0
    for ft in range(3):
        for T in range(2):
            for p in range(2):
                a = ACC + (T*3+ft)*4 + 2*p
                n = NCS + 2*ft
                g = G + 4*p
                for h in range(2):
                    e(f'v_fma_f32 v{a+h}, v{M1+T*4+2*p+h}, v{n}, v{a+h}')
                for h in range(2):
                    e(f'v_mul_f32 v{a+h}, v{a+h}, v{R1+T*4+2*p+h}')
                gelu_pair_sc(a, g)
                e(f'v_cvt_pk_bf16_f32 v{AP+ft*4+T*2+p}, v{g}, v{g+1}')
                s_ = SA + T*4 + 2*p
                for h in range(2):
                    e(f'v_add_f32 v{s_+h}, v{s_+h}, v{g+h}')
                for h in range(2):
                    e(f'v_fma_f32 v{s_+8+h}, v{g+h}, v{g+h}, v{s_+8+h}')
                npair += 1
                if npair in (2, 5, 8, 11): bar('A')
    for k, sh in enumerate((8, 4, 2, 1)):
        for i in range(16):
            e(f'v_add_f32_dpp v{SA+i}, v{SA+i}, v{SA+i} row_ror:{sh} row_mask:0xf bank_mask:0xf')
        if k == 1: bar('A')
    e(f's_lshl_b32 s{s_t0}, s{s_wc}, 8')
    e(f's_add_u32 s{s_t0}, s{s_t0}, {L_PS - L_M1}')
    e(f'v_add_u32 v{vT+5}, s{s_t0}, v{vT+5}')
    e(f'v_add_u32 v{vT+6}, s{s_t0}, v{vT+6}')
    set_exec(e, 0x00010001, 0x00010001)
    e(f'ds_write_b128 v{vT+5}, v[{SA}:{SA+3}]')
    e(f'ds_write_b128 v{vT+6}, v[{SA+4}:{SA+7}]')
    e(f'ds_write_b128 v{vT+5}, v[{SA+8}:{SA+11}] offset:{L_PQ-L_PS}')
    e(f'ds_write_b128 v{vT+6}, v[{SA+12}:{SA+15}] offset:{L_PQ-L_PS}')
    e(f's_mov_b64 exec, s[{s_ex}:{s_ex+1}]')
    e('s_waitcnt lgkmcnt(0)')
    bar('A')
    e(f's_cmp_eq_u32 s{s_w}, 0')
    e('s_cbranch_scc0 K1_NOPUB')
    e(f'v_lshlrev_b32 v{vT}, 2, v{vLane}')
    e(f'v_add_u32 v{vT}, {L_PS}, v{vT}')
    e(f'ds_read_b32 v{vT+2}, v{vT}')
    e(f'ds_read_b32 v{vT+4}, v{vT} offset:256')
    e(f'ds_read_b32 v{vT+3}, v{vT} offset:{L_PQ-L_PS}')
    e(f'ds_read_b32 v{vT+5}, v{vT} offset:{L_PQ-L_PS+256}')
    e(f's_lshl_b32 s{s_t0}, s{s_rb}, 3')
    e(f's_add_u32 s{s_t0}, s{s_t0}, s{s_cb}')
    e(f's_lshl_b32 s{s_t0}, s{s_t0}, 9')
    e(f's_add_u32 s{s_t0}, s{s_t0}, {XCH}')
    e(f'v_lshlrev_b32 v{vT+1}, 3, v{vLane}')
    e('s_waitcnt lgkmcnt(0)')
    e(f'v_add_f32 v{vT+2}, v{vT+2}, v{vT+4}')
    e(f'v_add_f32 v{vT+3}, v{vT+3}, v{vT+5}')
    e(f'v_max_f32 v{vT+3}, 0, v{vT+3}')
    e(f'buffer_store_dwordx2 v[{vT+2}:{vT+3}], v{vT+1}, s[{sWS}:{sWS+3}], s{s_t0} offen sc1')
    e.label('K1_NOPUB')
    stp.stamp(e)
    e(f's_mul_i32 s{s_t0}, s{s_cb}, 6')
    e(f's_mul_i32 s{s_t1}, s{s_wc}, 3')
    e(f's_add_u32 s{s_t0}, s{s_t0}, s{s_t1}')
    e(f's_lshl_b32 s{s_t0}, s{s_t0}, 6')
    e(f's_lshl_b32 s{s_t1}, s{s_rb}, 1')
    e(f's_add_u32 s{s_t0}, s{s_t0}, s{s_t1}')
    e(f's_add_u32 s{s_t0}, s{s_t0}, s{s_wr}')
    e(f's_lshl_b32 s{s_t0}, s{s_t0}, 10')
    e(f's_add_u32 s{s_off}, s{s_t0}, {Z2F}')
    e(f'v_and_b32 v{vT+7}, 1, v{vQ}')
    e(f'v_lshlrev_b32 v{vT+7}, 1, v{vT+7}')
    e(f'v_lshrrev_b32 v{vT+10}, 1, v{vQ}')
    e(f'v_or_b32 v{vT+7}, v{vT+7}, v{vT+10}')
    e(f's_lshl_b32 s{s_t1}, s{s_wc}, 1')
    e(f'v_xor_b32 v{vT+7}, s{s_t1}, v{vT+7}')
    e(f'v_lshlrev_b32 v{vT+7}, 4, v{vT+7}')
    e(f'v_add_u32 v{vT+7}, v{vT+7}, v{vL15}')
    e(f'v_lshlrev_b32 v{vT+7}, 4, v{vT+7}')
    e(f'v_and_b32 v{vT+10}, 31, v{vLane}')
    e(f's_lshl_b32 s{s_j}, s{s_wr}, 5')
    e(f'v_add_u32 v{vT+10}, s{s_j}, v{vT+10}')
    e(f'v_lshlrev_b32 v{vT+10}, 3, v{vT+10}')
    e(f's_lshl_b32 s{s_j}, s{s_rb}, 12')
    e(f's_add_u32 s{s_j}, s{s_j}, {XCH}')
    for _ in range(4): bar('A')
    if XP_NOPREP: e('s_branch K1_POLLED')
    e.label('K1_CPOLL')
    e('s_waitcnt vmcnt(0)')
    e(f'v_readfirstlane_b32 s{s_t0}, v{PC}')
    e(f's_cmp_ge_u32 s{s_t0}, 8')
    e('s_cbranch_scc1 K1_CPOLLED')
    e('s_sleep 4')
    e(f'buffer_load_dword v{PC}, v{vT+8}, s[{sD}:{sD+3}], 0 offen sc1')
    e('s_branch K1_CPOLL')
    e.label('K1_CPOLLED')
    XP = WF
    e.label('K1_POLL')
    for c in range(8):
        e(f'buffer_load_dwordx2 v[{XP+2*c}:{XP+2*c+1}], v{vT+10}, s[{sWS}:{sWS+3}], s{s_j} offen offset:{c*512} sc1')
    e(f's_mov_b32 s{s_t0}, {hex(SENT)}')
    e('s_waitcnt vmcnt(0)')
    e(f'v_cmp_eq_u32 vcc, s{s_t0}, v{XP+1}')
    for c in range(1, 8):
        e(f'v_cmp_eq_u32 s[{P}:{P+1}], s{s_t0}, v{XP+2*c+1}')
        e(f's_or_b64 vcc, vcc, s[{P}:{P+1}]')
    e('s_cmp_eq_u64 vcc, 0')
    e('s_cbranch_scc1 K1_POLLED')
    e('s_sleep 2')
    e('s_branch K1_POLL')
    e.label('K1_POLLED')
    stp.stamp(e)
    for c in range(1, 8):
        e(f'v_pk_add_f32 v[{XP}:{XP+1}], v[{XP}:{XP+1}], v[{XP+2*c}:{XP+2*c+1}]')
    ln_finalize(e, XP, XP+1, FH, vT+2, vT+3, vT+4, vT+5)
    e(f'v_mul_f32 v{vT+2}, v{vT+2}, v{vT+3}')
    e(f'v_sub_f32 v{vT+2}, 0, v{vT+2}')
    e(f's_lshl_b32 s{s_t0}, s{s_wl}, 8')
    e(f's_add_u32 s{s_t0}, s{s_t0}, {L_W2}')
    e(f'v_and_b32 v{vT+4}, 31, v{vLane}')
    e(f'v_lshlrev_b32 v{vT+4}, 2, v{vT+4}')
    e(f'v_add_u32 v{vT+4}, s{s_t0}, v{vT+4}')
    e(f'ds_write_b32 v{vT+4}, v{vT+2}')
    e(f'ds_write_b32 v{vT+4}, v{vT+3} offset:128')
    e(f's_lshl_b32 s{s_t1}, s{s_wc}, 6')
    e(f's_add_u32 s{s_t0}, s{s_t0}, s{s_t1}')
    e(f'v_lshlrev_b32 v{vT+5}, 4, v{vQ}')
    e(f'v_add_u32 v{vT+5}, s{s_t0}, v{vT+5}')
    e(f'v_xor_b32 v{vT+6}, 64, v{vT+5}')
    e('s_waitcnt lgkmcnt(0)')
    e(f'ds_read_b128 v[{M1}:{M1+3}], v{vT+5}')
    e(f'ds_read_b128 v[{M1+4}:{M1+7}], v{vT+6}')
    e(f'ds_read_b128 v[{R1}:{R1+3}], v{vT+5} offset:128')
    e(f'ds_read_b128 v[{R1+4}:{R1+7}], v{vT+6} offset:128')
    e('s_waitcnt lgkmcnt(0)')
    for ft in range(3):
        for T in range(2):
            for p in range(2):
                a = AP + ft*4 + T*2 + p
                g = G + 4*p
                e(f'v_lshlrev_b32 v{g}, 16, v{a}')
                e(f'v_and_b32 v{g+1}, s{s_mask}, v{a}')
                e(f'v_pk_fma_f32 v[{g}:{g+1}], v[{g}:{g+1}], v[{R1+T*4+2*p}:{R1+T*4+2*p+1}], v[{M1+T*4+2*p}:{M1+T*4+2*p+1}]')
                e(f'v_cvt_pk_bf16_f32 v{a}, v{g}, v{g+1}')
        b = AP + ft*4
        e(f'v_permlane16_swap_b32 v{b}, v{b+2}')
        e(f'v_permlane16_swap_b32 v{b+1}, v{b+3}')
        e(f's_add_u32 s{s_t1}, s{s_off}, {ft*65536}')
        e(f'buffer_store_dwordx4 v[{b}:{b+3}], v{vT+7}, s[{sWS}:{sWS+3}], s{s_t1} offen')
    stp.flush(e, 0, sWS, vT, s_w)
    e('s_endpgm')

    e.label('K1_B')
    e.c('role B')
    stB = Stamper(); stB.n = 1
    SK = 160; WR = 152; WO = 164
    e(f's_cmp_eq_u32 s{s_w}, 4')
    e('s_cbranch_scc0 K1_NORST')
    e(f's_lshl_b32 s{s_t0}, s{s_rb}, 3')
    e(f's_add_u32 s{s_t0}, s{s_t0}, s{s_cb}')
    e(f's_lshl_b32 s{s_t0}, s{s_t0}, 9')
    e(f's_add_u32 s{s_t0}, s{s_t0}, {XCH}')
    e(f'v_lshlrev_b32 v{vT+1}, 3, v{vLane}')
    e(f'v_mov_b32 v{vT+6}, 0')
    e(f'v_mov_b32 v{vT+7}, {hex(SENT)}')
    e(f'buffer_store_dwordx2 v[{vT+6}:{vT+7}], v{vT+1}, s[{sWS}:{sWS+3}], s{s_t0} offen sc1')
    e.label('K1_NORST')
    srd(e, sT, P+6, D*4*2)
    e(f'v_lshlrev_b32 v{vT+3}, 4, v{vLane}')
    e(f's_mul_i32 s{s_t1}, s{s_cb}, 640')
    e(f'buffer_load_dwordx4 v[{SK}:{SK+3}], v{vT+3}, s[{sT}:{sT+3}], s{s_t1} offen')
    e(f's_lshl_b32 s{s_t0}, s2, 2')
    e(f's_add_u32 s{s_t0}, s{s_t0}, s{s_wl}')
    e(f's_mul_i32 s{s_t1}, s{s_t0}, 2731')
    e(f's_lshr_b32 s{s_t1}, s{s_t1}, 16')
    e(f's_mul_i32 s{s_t2}, s{s_t1}, 24')
    e(f's_sub_u32 s{s_t2}, s{s_t0}, s{s_t2}')
    e(f's_mov_b32 s{P+16}, s{s_t0}')
    srd(e, sT, P+10, FH*D*2)
    e(f'v_mul_u32_u24 v{vT+3}, {4*1280}, v{vQ}')
    e(f'v_lshlrev_b32 v{vT+4}, 1, v{vL15}')
    e(f'v_add_u32 v{vT+3}, v{vT+3}, v{vT+4}')
    e(f's_lshl_b32 s{s_t1}, s{s_t1}, 5')
    e(f's_mul_i32 s{s_t2}, s{s_t2}, {32*1280}')
    e(f's_add_u32 s{s_t1}, s{s_t1}, s{s_t2}')
    e(f's_add_u32 s{s_t2}, s{s_t1}, {16*1280}')
    for j in range(8):
        so = s_t1 if j < 4 else s_t2
        e(f'buffer_load_ushort v{WR + j}, v{vT+3}, s[{sT}:{sT+3}], s{so} offen offset:{(j%4)*1280}')
    KR = 26; VRr = 45; KP = 62; CP = 100; KVP = 108
    e(f's_mul_i32 s{s_t0}, s{s_wl}, {16*160}')
    e(f's_add_u32 s{s_t0}, s{s_t0}, {PREP}')
    e(f'v_lshlrev_b32 v{vT+3}, 2, v{vLane}')
    e(f'v_min_u32 v{vT+3}, 156, v{vT+3}')
    e(f'v_add_u32 v{vT+3}, s{s_t0}, v{vT+3}')
    bar('B')
    bar('B')
    stB.stamp(e)
    if XP_NOPREP:
        for _ in range(8): bar('B')
    else:
        for r in range(19):
            e(f'ds_read_b32 v{KR+r}, v{vT+3} offset:{r*160}')
            if r == 11: e('s_waitcnt lgkmcnt(8)')
        e('s_waitcnt lgkmcnt(4)')
        for r in range(16):
            e(f'ds_read_b32 v{VRr+r}, v{vT+3} offset:{PREPV + r*160}')
            if r == 9: e('s_waitcnt lgkmcnt(8)')
        e('s_waitcnt lgkmcnt(0)')
        bar('B')
        for r in range(19):
            e(f'v_lshlrev_b32 v{KP+2*r}, 16, v{KR+r}')
            e(f'v_and_b32 v{KP+2*r+1}, s{s_mask}, v{KR+r}')
        e('s_waitcnt vmcnt(8)')
        e(f'v_lshlrev_b32 v{CP+0}, 16, v{SK+0}'); e(f'v_lshlrev_b32 v{CP+1}, 16, v{SK+2}')
        e(f'v_and_b32 v{CP+2}, s{s_mask}, v{SK+0}'); e(f'v_and_b32 v{CP+3}, s{s_mask}, v{SK+2}')
        e(f'v_lshlrev_b32 v{CP+4}, 16, v{SK+1}'); e(f'v_lshlrev_b32 v{CP+5}, 16, v{SK+3}')
        e(f'v_and_b32 v{CP+6}, s{s_mask}, v{SK+1}'); e(f'v_and_b32 v{CP+7}, s{s_mask}, v{SK+3}')
        e(f's_cmp_eq_u32 s{s_w}, 4')
        e('s_cbranch_scc0 K1_NOCNT')
        e(f's_lshl_b32 s{s_t0}, s{s_rb}, 2')
        e(f'v_mov_b32 v{vT+6}, s{s_t0}')
        e(f'v_mov_b32 v{vT+7}, 1')
        set_exec(e, 1, 0)
        e(f'buffer_atomic_add v{vT+7}, v{vT+6}, s[{sD}:{sD+3}], 0 offen sc1')
        e(f's_mov_b64 exec, s[{s_ex}:{s_ex+1}]')
        e.label('K1_NOCNT')
        bar('B')
        for i in range(16):
            t = KVP + 2*i
            for h in range(2): e(f'v_mul_f32 v{t+h}, v{CP+6+h}, v{KP+2*i+h}')
            for h in range(2): e(f'v_fmac_f32 v{t+h}, v{CP+4+h}, v{KP+2*i+2+h}')
            for h in range(2): e(f'v_fmac_f32 v{t+h}, v{CP+2+h}, v{KP+2*i+4+h}')
            for h in range(2): e(f'v_fmac_f32 v{t+h}, v{CP+0+h}, v{KP+2*i+6+h}')
            e(f'v_lshlrev_b32 v{vT+4}, 16, v{VRr+i}')
            e(f'v_and_b32 v{vT+5}, s{s_mask}, v{VRr+i}')
            for h in range(2): e(f'v_mul_f32 v{t+h}, v{t+h}, v{vT+4+h}')
            if i in (2, 6, 10, 14): bar('B')
        OUT = 26
        for dd in range(2):
            for g in range(2):
                for n in range(4):
                    lo = KVP + 2*(8*g + 7 - 2*n) + dd
                    hi = KVP + 2*(8*g + 6 - 2*n) + dd
                    e(f'v_cvt_pk_bf16_f32 v{OUT + dd*8 + g*4 + n}, v{lo}, v{hi}')
        e(f'v_lshlrev_b32 v{vT+3}, 13, v{vLane}')
        e(f's_mul_i32 s{s_t0}, s{s_cb}, {80*4096}')
        e(f's_lshl_b32 s{s_t1}, s{s_rb}, 7')
        e(f's_add_u32 s{s_t0}, s{s_t0}, s{s_t1}')
        e(f's_lshl_b32 s{s_t1}, s{s_wl}, 5')
        e(f's_add_u32 s{s_t0}, s{s_t0}, s{s_t1}')
        e(f's_add_u32 s{s_t0}, s{s_t0}, {KVT}')
        e(f's_add_u32 s{s_t1}, s{s_t0}, 4096')
        set_exec(e, 0xffffffff, 0xff)
        e(f'buffer_store_dwordx4 v[{OUT}:{OUT+3}], v{vT+3}, s[{sWS}:{sWS+3}], s{s_t0} offen')
        e(f'buffer_store_dwordx4 v[{OUT+4}:{OUT+7}], v{vT+3}, s[{sWS}:{sWS+3}], s{s_t0} offen offset:16')
        e(f'buffer_store_dwordx4 v[{OUT+8}:{OUT+11}], v{vT+3}, s[{sWS}:{sWS+3}], s{s_t1} offen')
        e(f'buffer_store_dwordx4 v[{OUT+12}:{OUT+15}], v{vT+3}, s[{sWS}:{sWS+3}], s{s_t1} offen offset:16')
        e(f's_mov_b64 exec, s[{s_ex}:{s_ex+1}]')
        bar('B')
        e(f's_cmp_ge_u32 s{P+16}, 960')
        e('s_cbranch_scc1 K1_NOWOF')
        e('s_waitcnt vmcnt(4)')
        for j in range(4):
            e(f'v_lshl_or_b32 v{WO+j}, v{WR+2*j+1}, 16, v{WR+2*j}')
        e(f'v_lshlrev_b32 v{vT+3}, 4, v{vLane}')
        e(f's_lshl_b32 s{s_t0}, s{P+16}, 10')
        e(f's_add_u32 s{s_t0}, s{s_t0}, {WOF}')
        e(f'buffer_store_dwordx4 v[{WO}:{WO+3}], v{vT+3}, s[{sWS}:{sWS+3}], s{s_t0} offen')
        e.label('K1_NOWOF')
        bar('B')
    init_acc()
    bar('B')
    stB.stamp(e)
    loop(2, 'B')
    stB.stamp(e)
    e.c('B epilogue')
    e(f's_mul_i32 s{s_t0}, s{s_wl}, 192')
    e(f's_add_u32 s{s_t0}, s{s_t0}, {L_CSB}')
    e(f'v_lshlrev_b32 v{vT+4}, 4, v{vQ}')
    e(f'v_add_u32 v{vT+5}, s{s_t0}, v{vT+4}')
    set_exec(e, 0x00010001, 0x00010001)
    for ft in range(3):
        e(f'ds_write_b128 v{vT+5}, v[{CS+ft*4}:{CS+ft*4+3}] offset:{ft*64}')
    e(f's_mov_b64 exec, s[{s_ex}:{s_ex+1}]')
    e(f'v_mov_b32 v{K1V}, {hexf(K1c)}'); e(f'v_mov_b32 v{K1V+1}, {hexf(K1c)}')
    e('s_waitcnt lgkmcnt(0)')
    bar('B')
    e(f's_xor_b32 s{s_t1}, s{s_wl}, 2')
    e(f's_mul_i32 s{s_t1}, s{s_t1}, 192')
    e(f's_add_u32 s{s_t1}, s{s_t1}, {L_CSB}')
    e(f'v_add_u32 v{vT+5}, s{s_t1}, v{vT+4}')
    NC2 = XF
    for ft in range(3):
        e(f'ds_read_b128 v[{NC2+ft*4}:{NC2+ft*4+3}], v{vT+5} offset:{ft*64}')
    MR = WF
    e(f's_lshl_b32 s{s_t0}, s{s_wr}, 7')
    e(f's_lshl_b32 s{s_t1}, s{s_wc}, 6')
    e(f's_add_u32 s{s_t0}, s{s_t0}, s{s_t1}')
    e(f's_add_u32 s{s_t0}, s{s_t0}, {L_M1}')
    e(f'v_lshlrev_b32 v{vT+6}, 2, v{vL15}')
    e(f'v_add_u32 v{vT+6}, s{s_t0}, v{vT+6}')
    e(f'v_xor_b32 v{vT+7}, 64, v{vT+6}')
    e(f'ds_read_b32 v{MR+0}, v{vT+6}')
    e(f'ds_read_b32 v{MR+2}, v{vT+7}')
    e(f'ds_read_b32 v{MR+4}, v{vT+6} offset:256')
    e(f'ds_read_b32 v{MR+6}, v{vT+7} offset:256')
    e(f's_lshl_b32 s{s_t0}, s{s_rb}, 2')
    e(f's_lshl_b32 s{s_t1}, s{s_wr}, 1')
    e(f's_add_u32 s{s_t0}, s{s_t0}, s{s_t1}')
    e(f's_add_u32 s{s_t1}, s{s_t0}, s{s_wc}')
    e(f's_xor_b32 s{s_t2}, s{s_t1}, 1')
    e(f's_mul_i32 s{s_off}, s{s_cb}, 6')
    e(f's_mul_i32 s{s_j}, s{s_wc}, 3')
    e(f's_add_u32 s{s_off}, s{s_off}, s{s_j}')
    e(f's_mul_i32 s{s_t1}, s{s_t1}, 48')
    e(f's_add_u32 s{s_t1}, s{s_t1}, s{s_off}')
    e(f's_lshl_b32 s{s_t1}, s{s_t1}, 9')
    e(f's_add_u32 s{s_t1}, s{s_t1}, {Z1F}')
    e(f's_mul_i32 s{s_t2}, s{s_t2}, 48')
    e(f's_add_u32 s{s_t2}, s{s_t2}, s{s_off}')
    e(f's_lshl_b32 s{s_t2}, s{s_t2}, 9')
    e(f's_add_u32 s{s_t2}, s{s_t2}, {Z1F}')
    e(f'v_lshlrev_b32 v{vT+6}, 3, v{vLane}')
    e('s_waitcnt lgkmcnt(0)')
    for i in range(12):
        e(f'v_add_f32 v{NC2+i}, v{NC2+i}, v{CS+i}')
        e(f'v_sub_f32 v{NC2+i}, 0, v{NC2+i}')
    ZO = AP
    for T in range(2):
        for ft in range(3):
            for p in range(2):
                a = ACC + (T*3+ft)*4 + 2*p
                n = NC2 + ft*4 + 2*p
                m = MR + 2*T; r = MR + 4 + 2*T
                g = G + 4*p
                e(f'v_pk_fma_f32 v[{a}:{a+1}], v[{n}:{n+1}], v[{m}:{m+1}], v[{a}:{a+1}] op_sel_hi:[1,0,1]')
                e(f'v_pk_mul_f32 v[{a}:{a+1}], v[{a}:{a+1}], v[{r}:{r+1}] op_sel_hi:[1,0]')
                gelu_pair(a, g)
                e(f'v_cvt_pk_bf16_f32 v{ZO+(T*3+ft)*2+p}, v{g}, v{g+1}')
            so = s_t1 if T == 0 else s_t2
            z = ZO + (T*3+ft)*2
            e(f'buffer_store_dwordx2 v[{z}:{z+1}], v{vT+6}, s[{sWS}:{sWS+3}], s{so} offen offset:{ft*512}')
    stB.flush(e, 0, sWS, vT, s_w)
    e.label('K1_END')
    e('s_endpgm')
    print('k1 barriers', nbar)
    assert nbar['A'] == nbar['B'] == nbar['L'], nbar
    nn = e.finalize()
    return kernel_wrap('k1_kernel', e.text(), vgpr=168, sgpr=96), nn
```

```python
from common import *
NCONV = 214
GRID2 = 256 + NCONV
LDS2 = 65536
HCP = 4160
CW_U = 4 * HCP
CW_SZ = CW_U + 512 + 4096

def gen_gemm2(e):
    sSP, sWS, sB = 8, 12, 16
    s_tb, s_fb, s_w, s_fh, s_kh = 20, 21, 22, 23, 24
    s_it, s_bw, s_bz, s_t0, s_t1, s_t2, s_m = 25, 26, 27, 28, 29, 30, 31
    s_mask = 32
    P = 36
    vLane, vQ, vL15 = 1, 2, 3
    vD = 4
    vB0, vB1 = 8, 9
    vA = 10
    vT = 14
    Z1 = 24
    BS = 36
    BF = 40
    ACC = 72
    ZA = 120
    e.c('---- gemm2')
    stp = Stamper(); stp.start(e)
    e(f's_load_dwordx4 s[{P}:{P+3}], s[0:1], 64')
    e(f's_load_dwordx2 s[{P+4}:{P+5}], s[0:1], 104')
    e(f'v_and_b32 v{vLane}, 63, v0')
    e(f'v_lshrrev_b32 v{vT}, 6, v0')
    e(f'v_lshrrev_b32 v{vQ}, 4, v{vLane}')
    e(f'v_readfirstlane_b32 s{s_w}, v{vT}')
    e(f'v_and_b32 v{vL15}, 15, v{vLane}')
    e(f's_and_b32 s{s_t0}, s2, 7')
    e(f's_lshr_b32 s{s_t1}, s2, 3')
    e(f's_lshr_b32 s{s_tb}, s{s_t0}, 1')
    e(f's_lshl_b32 s{s_tb}, s{s_tb}, 3')
    e(f's_lshr_b32 s{s_t2}, s{s_t1}, 2')
    e(f's_add_u32 s{s_tb}, s{s_tb}, s{s_t2}')
    e(f's_and_b32 s{s_fb}, s{s_t0}, 1')
    e(f's_lshl_b32 s{s_fb}, s{s_fb}, 2')
    e(f's_and_b32 s{s_t2}, s{s_t1}, 3')
    e(f's_add_u32 s{s_fb}, s{s_fb}, s{s_t2}')
    e(f's_and_b32 s{s_fh}, s{s_w}, 1')
    e(f's_lshr_b32 s{s_kh}, s{s_w}, 1')
    e(f's_mov_b32 s{s_mask}, 0xffff0000')
    e(f's_lshl_b32 s{s_t0}, s{s_tb}, 6')
    e(f's_lshl_b32 s{s_t1}, s{s_w}, 4')
    e(f's_add_u32 s{s_t0}, s{s_t0}, s{s_t1}')
    for t in range(4):
        e(f'v_add_u32 v{vT}, {4*t}, v{vQ}')
        e(f'v_xor_b32 v{vT+1}, v{vT}, v{vL15}')
        e(f'v_lshlrev_b32 v{vT+1}, 4, v{vT+1}')
        e(f'v_add_u32 v{vT}, s{s_t0}, v{vT}')
        e(f'v_lshlrev_b32 v{vT}, 12, v{vT}')
        e(f'v_add_u32 v{vD+t}, v{vT}, v{vT+1}')
    e(f'v_xor_b32 v{vT}, v{vQ}, v{vL15}')
    e(f'v_lshlrev_b32 v{vT}, 4, v{vT}')
    e(f's_lshl_b32 s{s_t0}, s{s_kh}, 6')
    e(f'v_xor_b32 v{vT}, s{s_t0}, v{vT}')
    e(f'v_lshlrev_b32 v{vT+1}, 8, v{vL15}')
    e(f'v_add_u32 v{vB0}, v{vT}, v{vT+1}')
    e(f'v_xor_b32 v{vB1}, 128, v{vB0}')
    e(f's_mul_i32 s{s_t0}, s{s_fb}, 6')
    e(f's_mul_i32 s{s_t1}, s{s_fh}, 3')
    e(f's_add_u32 s{s_t0}, s{s_t0}, s{s_t1}')
    e(f's_mov_b32 s{s_m}, s{s_t0}')
    e(f's_mov_b32 s33, s{s_t0}')
    e(f's_lshl_b32 s{s_t0}, s{s_t0}, 16')
    e(f's_add_u32 s{s_t0}, s{s_t0}, {Z2F}')
    e(f'v_lshlrev_b32 v{vT}, 4, v{vLane}')
    for ft in range(3):
        e(f's_add_u32 s{s_t1}, s{s_t0}, {ft*65536}')
        e(f'v_add_u32 v{vA+ft}, s{s_t1}, v{vT}')
    e('s_waitcnt lgkmcnt(0)')
    srd(e, sSP, P, S*S*2)
    srd(e, sB, P+2, S*2)
    srd(e, sWS, P+4, WS_SIZE)
    def zl(sig, ee):
        L = []
        for ft in range(3):
            z = ZA + ((sig*2+ee)*3+ft)*4
            L.append([f'buffer_load_dwordx4 v[{z}:{z+3}], v{vA+ft}, s[{sWS}:{sWS+3}], s{s_bz if ee == 0 else s_bz2} offen'])
        return L
    def dm(sig, t):
        return [f's_add_u32 m0, s{s_m}, {sig*16384 + t*1024}', 's_nop 0',
                f'buffer_load_dwordx4 v{vD+t}, s[{sSP}:{sSP+3}], s{s_bw} offen lds']
    def brd(buf, vb, sig):
        L = []
        for tt in range(4):
            b = BF + buf*16 + tt*4
            L.append(f'ds_read_b128 v[{b}:{b+3}], v{vb} offset:{sig*16384 + tt*4096}')
        return L
    def mfl(buf, sig, ee):
        L = []
        for tt in range(4):
            for ft in range(3):
                a = ACC + (ft*4+tt)*4
                z = ZA + ((sig*2+ee)*3+ft)*4
                b = BF + buf*16 + tt*4
                L.append(f'v_mfma_f32_16x16x32_bf16 v[{a}:{a+3}], v[{z}:{z+3}], v[{b}:{b+3}], v[{a}:{a+3}]')
        return L
    def set_offsets(s_stage, add):
        e(f's_add_u32 s{s_t1}, s{s_stage}, {add}')
        e(f's_lshl_b32 s{s_bw}, s{s_t1}, 8')
        e(f's_lshl_b32 s{s_bz}, s{s_t1}, 12')
        e(f's_add_u32 s{s_bz}, s{s_bz}, s{s_kz}')
        e(f's_cmp_lt_u32 s{s_t1}, 16')
        e(f's_cselect_b32 s{s_bw}, s{s_bw}, 0x80000000')
        e(f's_cselect_b32 s{s_bz}, s{s_bz}, 0x80000000')
        e(f's_add_u32 s{s_bz2}, s{s_bz}, 2048')
    s_bz2, s_kz = 35, 40
    e(f's_lshl_b32 s{s_m}, s{s_w}, 12')
    e(f's_lshl_b32 s{s_kz}, s{s_kh}, 10')
    e(f's_mov_b32 s{s_it}, 0')
    for j in range(3):
        set_offsets(s_it, j)
        for grp in (zl(j, 0) + [dm(j, 0), dm(j, 1)] + zl(j, 1) + [dm(j, 2), dm(j, 3)]):
            for x in grp: e(x)
    e(f's_lshl_b32 s{s_t0}, s{s_tb}, 2')
    e(f's_lshl_b32 s{s_t1}, s{s_kh}, 1')
    e(f's_add_u32 s{s_t0}, s{s_t0}, s{s_t1}')
    e(f's_mov_b32 s34, s{s_t0}')
    e(f's_mul_i32 s{s_t1}, s{s_t0}, 48')
    e(f's_add_u32 s{s_t1}, s{s_t1}, s33')
    e(f's_lshl_b32 s{s_t1}, s{s_t1}, 9')
    e(f's_add_u32 s{s_t1}, s{s_t1}, {Z1F}')
    e(f's_add_u32 s{s_t2}, s{s_t1}, {48*512}')
    e(f'v_lshlrev_b32 v{vT}, 3, v{vLane}')
    for u in range(2):
        for ft in range(3):
            z = Z1 + (u*3+ft)*2
            e(f'buffer_load_dwordx2 v[{z}:{z+1}], v{vT}, s[{sWS}:{sWS+3}], s{s_t1 if u==0 else s_t2} offen offset:{ft*512}')
    e(f'v_lshlrev_b32 v{vT+1}, 1, v{vL15}')
    e(f's_lshl_b32 s{s_t0}, s{s_t0}, 5')
    e(f'buffer_load_ushort v{BS}, v{vT+1}, s[{sB}:{sB+3}], s{s_t0} offen')
    e(f'buffer_load_ushort v{BS+1}, v{vT+1}, s[{sB}:{sB+3}], s{s_t0} offen offset:32')

    for i in range(48): e(f'v_mov_b32 v{ACC+i}, 0')
    e('s_waitcnt vmcnt(28)')
    e('s_barrier')
    stp.stamp(e)
    for x in brd(0, vB0, 0): e(x)
    e.label('K2_LOOP')
    for sig in range(4):
        tg = (sig + 3) % 4
        set_offsets(s_it, sig + 3)
        e('s_waitcnt lgkmcnt(0)')
        R = brd(1, vB1, sig)
        V = zl(tg, 0) + [dm(tg, 0), dm(tg, 1)]
        fills = [[] for _ in range(12)]
        for n, r in enumerate(R): fills[n].append(r)
        for n, v in enumerate(V): fills[2 + 2*n] += v
        weave(e, mfl(0, sig, 0), fills)
        e('s_waitcnt vmcnt(15) lgkmcnt(0)')
        e('s_barrier')
        R = brd(0, vB0, (sig+1) % 4)
        V = zl(tg, 1) + [dm(tg, 2), dm(tg, 3)]
        fills = [[] for _ in range(12)]
        for n, r in enumerate(R): fills[n].append(r)
        for n, v in enumerate(V): fills[2 + 2*n] += v
        weave(e, mfl(1, sig, 1), fills)
    e(f's_add_u32 s{s_it}, s{s_it}, 4')
    e(f's_cmp_lt_u32 s{s_it}, 16')
    e('s_cbranch_scc1 K2_LOOP')
    e.c('gemm2 epilogue')
    stp.stamp(e)
    e('s_waitcnt vmcnt(0) lgkmcnt(0)')
    e('s_barrier')
    e(f's_mul_i32 s{s_t0}, s{s_w}, 6144')
    e(f'v_lshlrev_b32 v{vT}, 4, v{vLane}')
    e(f'v_add_u32 v{vT+1}, s{s_t0}, v{vT}')
    e(f's_xor_b32 s{s_t1}, s{s_w}, 2')
    e(f's_mul_i32 s{s_t1}, s{s_t1}, 6144')
    e(f'v_add_u32 v{vT+2}, s{s_t1}, v{vT}')
    e(f's_cmp_eq_u32 s{s_kh}, 0')
    e('s_cbranch_scc0 K2_KH1')
    RX = BF
    OWN = ZA
    for kh in range(2):
        if kh == 1: e.label('K2_KH1')
        for ft in range(3):
            for u in range(2):
                a = ACC + (ft*4 + 2*(1-kh) + u)*4
                e(f'ds_write_b128 v{vT+1}, v[{a}:{a+3}] offset:{(ft*2+u)*1024}')
        for ft in range(3):
            for u in range(2):
                a = ACC + (ft*4 + 2*kh + u)*4
                for r in range(4):
                    e(f'v_mov_b32 v{OWN+(ft*2+u)*4+r}, v{a+r}')
        if kh == 0: e('s_branch K2_KHD')
    e.label('K2_KHD')
    e('s_waitcnt lgkmcnt(0)')
    e('s_barrier')
    for i in range(6):
        e(f'ds_read_b128 v[{RX+i*4}:{RX+i*4+3}], v{vT+2} offset:{i*1024}')
    e(f'v_lshlrev_b32 v{vT+4}, 16, v{BS}')
    e(f'v_lshlrev_b32 v{vT+6}, 16, v{BS+1}')
    e(f'v_lshlrev_b32 v{vT+8}, 4, v{vLane}')
    e('s_waitcnt lgkmcnt(0)')
    for ft in range(3):
        e(f's_add_u32 s{s_t0}, s33, {ft}')
        e(f's_lshr_b32 s{s_t1}, s{s_t0}, 1')
        e(f's_and_b32 s{s_t0}, s{s_t0}, 1')
        e(f's_lshl_b32 s{s_t0}, s{s_t0}, 3')
        e(f's_lshl_b32 s{s_t1}, s{s_t1}, 10')
        e(f's_add_u32 s{s_t0}, s{s_t0}, s{s_t1}')
        e(f's_mul_i32 s{s_t1}, s34, {24*1024}')
        e(f's_add_u32 s{s_t0}, s{s_t0}, s{s_t1}')
        e(f's_add_u32 s{s_t0}, s{s_t0}, {PF}')
        e(f's_add_u32 s{s_t1}, s{s_t0}, {24*1024}')
        for u in range(2):
            o = OWN + (ft*2+u)*4; rx = RX + (ft*2+u)*4; z = Z1 + (u*3+ft)*2
            bb = vT + 4 + 2*u
            for p in range(2):
                g = vT + 10 + 0
                for h in range(2): e(f'v_add_f32 v{o+2*p+h}, v{o+2*p+h}, v{rx+2*p+h}')
                for h in range(2): e(f'v_add_f32 v{o+2*p+h}, v{o+2*p+h}, v{bb}')
                e(f'v_lshlrev_b32 v{rx+2*p}, 16, v{z+p}')
                e(f'v_and_b32 v{rx+2*p+1}, s{s_mask}, v{z+p}')
                for h in range(2): e(f'v_mul_f32 v{o+2*p+h}, v{o+2*p+h}, v{rx+2*p+h}')
                e(f'v_cvt_pk_bf16_f32 v{z+p}, v{o+2*p}, v{o+2*p+1}')
            e(f'buffer_store_dwordx2 v[{z}:{z+1}], v{vT+8}, s[{sWS}:{sWS+3}], s{s_t0 if u==0 else s_t1} offen')
    stp.flush(e, 1, sWS, vT, s_w)
    e('s_endpgm')

def gen_conv(e):
    sH, sWS, sDd = 8, 12, 16
    s_w, s_d, s_base, s_t0, s_t1, s_p = 20, 21, 22, 23, 24, 25
    s_mask = 26; s_ex = 28
    P = 36
    vLane, vQ, vL15 = 1, 2, 3
    vA, vB = 4, 5
    vT = 6
    HC = 16
    DV = 46
    ACC = 48
    AF = 80
    BFr = 144
    e.c('---- conv')
    e.label('K2_CONV')
    e(f'v_lshrrev_b32 v{vT}, 6, v0')
    e(f'v_and_b32 v{vLane}, 63, v0')
    e(f'v_readfirstlane_b32 s{s_w}, v{vT}')
    e(f's_sub_u32 s{s_t0}, s2, 256')
    e(f's_mul_i32 s{s_d}, s{s_t0}, 3')
    e(f's_add_u32 s{s_d}, s{s_d}, s{s_w}')
    e(f's_cmp_ge_u32 s{s_w}, 3')
    e('s_cbranch_scc1 K2_END')
    e(f's_cmp_ge_u32 s{s_d}, 640')
    e('s_cbranch_scc1 K2_END')
    stp = Stamper(); stp.start(e)
    e(f's_load_dwordx4 s[{P}:{P+3}], s[0:1], 32')
    e(f's_load_dwordx2 s[{P+4}:{P+5}], s[0:1], 104')
    e(f'v_lshrrev_b32 v{vQ}, 4, v{vLane}')
    e(f'v_and_b32 v{vL15}, 15, v{vLane}')
    e(f's_mul_i32 s{s_base}, s{s_w}, {CW_SZ}')
    e(f's_mov_b32 s{s_mask}, 0xffff0000')
    e(f's_mov_b64 s[{s_ex}:{s_ex+1}], exec')
    e('s_waitcnt lgkmcnt(0)')
    e(f's_lshl_b32 s{s_t0}, s{s_d}, 12')
    e(f's_add_u32 s{sH}, s{P}, s{s_t0}')
    e(f's_addc_u32 s{sH+1}, s{P+1}, 0')
    e(f's_and_b32 s{sH+1}, s{sH+1}, 0xffff')
    e(f's_mov_b32 s{sH+2}, 4096')
    e(f's_mov_b32 s{sH+3}, 0x20000')
    srd(e, sWS, P+4, WS_SIZE)
    srd(e, sDd, P+2, D*2)
    e(f'v_lshlrev_b32 v{vT}, 4, v{vLane}')
    e(f's_lshl_b32 s{s_t0}, s{s_d}, 12')
    e(f's_add_u32 s{s_t0}, s{s_t0}, {KVT}')
    for n in range(4):
        e(f's_add_u32 m0, s{s_base}, {CW_U + 512 + n*1024}')
        e(f's_add_u32 s{s_t1}, s{s_t0}, {n*1024}')
        e(f'buffer_load_dwordx4 v{vT}, s[{sWS}:{sWS+3}], s{s_t1} offen lds')
    for n in range(4):
        c = HC + n*6
        e(f'buffer_load_dwordx4 v[{c}:{c+3}], v{vT}, s[{sH}:{sH+3}], 0 offen offset:{n*1024}')
        e(f'buffer_load_dwordx2 v[{c+4}:{c+5}], v{vT}, s[{sH}:{sH+3}], 0 offen offset:{n*1024+16}')
    X = 40
    e(f'v_mov_b32 v{vT+1}, 0')
    e(f'buffer_load_dwordx2 v[{X+4}:{X+5}], v{vT+1}, s[{sH}:{sH+3}], 0 offen')
    e(f's_lshl_b32 s{s_t0}, s{s_d}, 1')
    e(f'buffer_load_ushort v{DV}, v{vT+1}, s[{sDd}:{sDd+3}], s{s_t0} offen')
    e(f'v_mov_b32 v{vT+2}, 0'); e(f'v_mov_b32 v{vT+3}, 0')
    e(f'v_lshlrev_b32 v{vT+4}, 3, v{vLane}')
    e(f'v_add_u32 v{vT+4}, s{s_base}, v{vT+4}')
    e(f'ds_write_b64 v{vT+4}, v[{vT+2}:{vT+3}] offset:{CW_U}')
    e(f'v_add_u32 v{vT+4}, 1, v{vL15}')
    e(f'v_and_b32 v{vT+4}, 3, v{vT+4}')
    e(f'v_lshrrev_b32 v{vT+5}, 1, v{vQ}')
    e(f'v_and_b32 v{vT+6}, 1, v{vQ}')
    e(f'v_lshlrev_b32 v{vT+7}, 4, v{vT+5}')
    e(f'v_add_u32 v{vT+7}, v{vT+7}, v{vL15}')
    e(f'v_lshlrev_b32 v{vT+8}, 3, v{vT+6}')
    e(f'v_sub_u32 v{vT+7}, v{vT+7}, v{vT+8}')
    e(f'v_add_u32 v{vT+7}, 9, v{vT+7}')
    e(f'v_sub_u32 v{vT+7}, v{vT+7}, v{vT+4}')
    e(f'v_lshlrev_b32 v{vT+7}, 1, v{vT+7}')
    e(f'v_mul_u32_u24 v{vT+4}, {HCP}, v{vT+4}')
    e(f'v_add_u32 v{vT+7}, v{vT+7}, v{vT+4}')
    e(f'v_add_u32 v{vA}, s{s_base}, v{vT+7}')
    e(f'v_sub_u32 v{vT+7}, v{vL15}, v{vT+5}')
    e(f'v_lshlrev_b32 v{vT+7}, 1, v{vT+7}')
    e(f'v_add_u32 v{vT+7}, v{vT+7}, v{vT+6}')
    e(f'v_lshlrev_b32 v{vT+7}, 4, v{vT+7}')
    e(f's_add_u32 s{s_t0}, s{s_base}, {CW_U + 512}')
    e(f'v_add_u32 v{vB}, s{s_t0}, v{vT+7}')
    e(f'v_lshlrev_b32 v{vT+4}, 4, v{vLane}')
    e(f'v_add_u32 v{vT+4}, s{s_base}, v{vT+4}')
    TM = AF
    def copies(c, off, k):
        t = TM + k*12
        e(f'v_alignbit_b32 v{t+0}, v{c+1}, v{c+0}, 16')
        e(f'v_alignbit_b32 v{t+1}, v{c+2}, v{c+1}, 16')
        e(f'v_alignbit_b32 v{t+2}, v{c+3}, v{c+2}, 16')
        e(f'v_alignbit_b32 v{t+3}, v{c+4}, v{c+3}, 16')
        e(f'v_mov_b32 v{t+4}, v{c+1}'); e(f'v_mov_b32 v{t+5}, v{c+2}')
        e(f'v_mov_b32 v{t+6}, v{c+3}'); e(f'v_mov_b32 v{t+7}, v{c+4}')
        e(f'v_mov_b32 v{t+8}, v{t+1}'); e(f'v_mov_b32 v{t+9}, v{t+2}'); e(f'v_mov_b32 v{t+10}, v{t+3}')
        e(f'v_alignbit_b32 v{t+11}, v{c+5}, v{c+4}, 16')
        e(f'ds_write_b128 v{vT+4}, v[{c}:{c+3}] offset:{off}')
        e(f'ds_write_b128 v{vT+4}, v[{t}:{t+3}] offset:{off + HCP}')
        e(f'ds_write_b128 v{vT+4}, v[{t+4}:{t+7}] offset:{off + 2*HCP}')
        e(f'ds_write_b128 v{vT+4}, v[{t+8}:{t+11}] offset:{off + 3*HCP}')
    e('s_waitcnt vmcnt(0)')
    stp.stamp(e)
    for n in range(4):
        copies(HC + n*6, 32 + n*1024, n)
        e('s_waitcnt lgkmcnt(4)')
    for i in range(4): e(f'v_mov_b32 v{X+i}, 0')
    e(f'v_cmp_eq_u32 vcc, 1, v{vLane}')
    e(f'v_cndmask_b32 v{X+4}, 0, v{X+4}, vcc')
    e(f'v_cndmask_b32 v{X+5}, 0, v{X+5}, vcc')
    set_exec(e, 3, 0)
    copies(X, 0, 4)
    e(f's_mov_b64 exec, s[{s_ex}:{s_ex+1}]')
    e(f'v_lshlrev_b32 v{DV}, 16, v{DV}')
    for i in range(32): e(f'v_mov_b32 v{ACC+i}, 0')
    e('s_waitcnt lgkmcnt(0)')

    def rd_list(buf):
        L = []
        for m in range(8):
            a = AF + buf*32 + m*4
            L.append(f'ds_read_b64 v[{a}:{a+1}], v{vA} offset:{m*512}')
            L.append(f'ds_read_b64 v[{a+2}:{a+3}], v{vA} offset:{m*512+8}')
            b = BFr + buf*32 + m*4
            L.append(f'ds_read_b128 v[{b}:{b+3}], v{vB} offset:{m*512}')
        return L
    def mf_list(buf):
        L = []
        for m in range(8):
            for c in range(m, 8):
                a = AF + buf*32 + m*4; b = BFr + buf*32 + (c-m)*4; d = ACC + c*4
                L.append(f'v_mfma_f32_16x16x32_bf16 v[{d}:{d+3}], v[{a}:{a+3}], v[{b}:{b+3}], v[{d}:{d+3}]')
        return L
    stp.stamp(e)
    R = rd_list(0)
    for g in range(3):
        for x in R[g*8:(g+1)*8]: e(x)
        e('s_waitcnt lgkmcnt(7)')
    e(f's_mov_b32 s{s_p}, 0')
    e.label('K2_CLOOP')
    for half in range(2):
        e(f'v_add_u32 v{vA}, 64, v{vA}')
        e(f'v_subrev_u32 v{vB}, 64, v{vB}')
        e('s_waitcnt lgkmcnt(0)')
        R = rd_list(1 - half); M = mf_list(half)
        fills = [[] for _ in range(36)]
        for n, r in enumerate(R):
            fills[n].append(r)
            if n % 6 == 5: fills[n].append('s_waitcnt lgkmcnt(9)')
        weave(e, M, fills)
    e(f's_add_u32 s{s_p}, s{s_p}, 2')
    e(f's_cmp_lt_u32 s{s_p}, 8')
    e('s_cbranch_scc1 K2_CLOOP')
    e('s_waitcnt lgkmcnt(0)')
    stp.stamp(e)
    e(f'v_lshlrev_b32 v{vT}, 5, v{vL15}')
    e(f'v_lshrrev_b32 v{vT+1}, 1, v{vQ}')
    e(f'v_lshlrev_b32 v{vT+1}, 4, v{vT+1}')
    e(f'v_add_u32 v{vT}, v{vT}, v{vT+1}')
    e(f'v_and_b32 v{vT+1}, 1, v{vQ}')
    e(f'v_xor_b32 v{vT+1}, 1, v{vT+1}')
    e(f'v_lshlrev_b32 v{vT+1}, 3, v{vT+1}')
    e(f'v_add_u32 v{vT}, v{vT}, v{vT+1}')
    e(f's_add_u32 s{s_t0}, s{s_base}, {CW_U + 512}')
    e(f'v_add_u32 v{vT}, s{s_t0}, v{vT}')
    KV = AF
    for c in range(8):
        e(f'ds_read_b64 v[{KV+2*c}:{KV+2*c+1}], v{vT} offset:{c*512}')
    e(f'v_lshlrev_b32 v{vT+2}, 5, v{vL15}')
    e(f'v_lshlrev_b32 v{vT+3}, 3, v{vQ}')
    e(f'v_add_u32 v{vT+2}, v{vT+2}, v{vT+3}')
    e(f's_lshl_b32 s{s_t0}, s{s_d}, 12')
    e(f's_add_u32 s{s_t0}, s{s_t0}, {YYT}')
    e('s_waitcnt lgkmcnt(0)')
    U = BFr
    for c in range(8):
        a = ACC + c*4; k0 = KV + 2*c; u = U + c*8
        e(f'v_and_b32 v{u+0}, s{s_mask}, v{k0+1}')
        e(f'v_lshlrev_b32 v{u+1}, 16, v{k0+1}')
        e(f'v_and_b32 v{u+2}, s{s_mask}, v{k0}')
        e(f'v_lshlrev_b32 v{u+3}, 16, v{k0}')
        for r in range(4): e(f'v_fmac_f32 v{a+r}, v{u+r}, v{DV}')
        e(f'v_cvt_pk_bf16_f32 v{u+4}, v{a}, v{a+1}')
        e(f'v_cvt_pk_bf16_f32 v{u+5}, v{a+2}, v{a+3}')
        e(f'buffer_store_dwordx2 v[{u+4}:{u+5}], v{vT+2}, s[{sWS}:{sWS+3}], s{s_t0} offen offset:{c*512}')
    stp.flush(e, 1, sWS, vT, s_w)
    e.label('K2_END')
    e('s_endpgm')

def gen_k2():
    e = Emitter()
    e(f's_cmp_ge_u32 s2, {GRID2}')
    e('s_cbranch_scc1 K2_END')
    e('s_cmp_ge_u32 s2, 256')
    e('s_cbranch_scc1 K2_CONV')
    gen_gemm2(e)
    gen_conv(e)
    nn = e.finalize()
    return kernel_wrap('k2_kernel', e.text(), vgpr=256, sgpr=96), nn
```

```python
from common import *
WO_SZ = 122880
XT = WO_SZ
YT = XT + 10240
LDS3 = YT + 10240

def gen_k3():
    e = Emitter()
    sX, sWS, sO = 8, 12, 16
    s_tb, s_db, s_w, s_t0, s_t1, s_t2 = 20, 21, 22, 23, 24, 25
    s_mask = 26; s_ex = 28; s_one = 30; s_nl = 32
    P = 36
    vLane, vQ, vL15 = 1, 2, 3
    vL16 = 4
    vXO = 5
    vYO = 8
    vT = 12
    ST = 24
    AFr = 28
    ACC = 68
    PFR = 88
    E = 184
    e('s_cmp_ge_u32 s2, 256')
    e('s_cbranch_scc1 K3_END')
    stp = Stamper(); stp.start(e)
    e(f's_load_dwordx2 s[{P}:{P+1}], s[0:1], 0')
    e(f's_load_dwordx2 s[{P+2}:{P+3}], s[0:1], 88')
    e(f's_load_dwordx2 s[{P+4}:{P+5}], s[0:1], 104')
    e(f'v_and_b32 v{vLane}, 63, v0')
    e(f'v_lshrrev_b32 v{vT}, 6, v0')
    e(f'v_lshrrev_b32 v{vQ}, 4, v{vLane}')
    e(f'v_readfirstlane_b32 s{s_w}, v{vT}')
    e(f'v_and_b32 v{vL15}, 15, v{vLane}')
    e(f'v_lshlrev_b32 v{vL16}, 4, v{vLane}')
    e(f's_and_b32 s{s_t0}, s2, 7')
    e(f's_lshr_b32 s{s_t1}, s2, 3')
    e(f's_lshr_b32 s{s_tb}, s{s_t0}, 1')
    e(f's_lshl_b32 s{s_tb}, s{s_tb}, 3')
    e(f's_lshr_b32 s{s_t2}, s{s_t1}, 2')
    e(f's_add_u32 s{s_tb}, s{s_tb}, s{s_t2}')
    e(f's_and_b32 s{s_db}, s{s_t0}, 1')
    e(f's_lshl_b32 s{s_db}, s{s_db}, 2')
    e(f's_and_b32 s{s_t2}, s{s_t1}, 3')
    e(f's_add_u32 s{s_db}, s{s_db}, s{s_t2}')
    e(f's_mov_b32 s{s_mask}, 0xffff0000')
    e(f's_mov_b64 s[{s_ex}:{s_ex+1}], exec')
    e('s_waitcnt lgkmcnt(0)')
    srd(e, sX, P, S*D*2)
    srd(e, sO, P+2, S*D*2)
    srd(e, sWS, P+4, WS_SIZE)
    s_tt = 34
    e(f's_lshl_b32 s{s_tt}, s{s_tb}, 2')
    e(f's_add_u32 s{s_tt}, s{s_tt}, s{s_w}')
    s_pb, s_wb = 35, 33
    e(f's_mul_i32 s{s_pb}, s{s_tt}, {24*1024}')
    e(f's_add_u32 s{s_pb}, s{s_pb}, {PF}')
    e(f's_mul_i32 s{s_wb}, s{s_db}, {5*24*1024}')
    e(f's_lshl_b32 s{s_t0}, s{s_w}, 10')
    e(f's_add_u32 s{s_wb}, s{s_wb}, s{s_t0}')
    e(f's_add_u32 s{s_wb}, s{s_wb}, {WOF}')
    s_wl5 = 37
    e(f's_mul_i32 s{s_wl5}, s{s_w}, 5120')
    def grp_loads(g):
        L = []
        for u in range(5):
            L.append([f's_add_u32 m0, s{s_wl5}, {(4*g*5 + u)*1024}',
                      f's_add_u32 s{s_t0}, s{s_wb}, {(u*24 + 4*g)*1024}',
                      f'buffer_load_dwordx4 v{vL16}, s[{sWS}:{sWS+3}], s{s_t0} offen lds'])
        for k in range(4):
            r = PFR + (4*g+k)*4
            L.append([f's_add_u32 s{s_t0}, s{s_pb}, {4*g*1024}',
                      f'buffer_load_dwordx4 v[{r}:{r+3}], v{vL16}, s[{sWS}:{sWS+3}], s{s_t0} offen offset:{k*1024}'])
        return L
    for g in range(2):
        for it in grp_loads(g):
            for x in it: e(x)
    e(f's_lshl_b32 s{s_t0}, s{s_tt}, 4')
    e(f's_mul_i32 s{s_t0}, s{s_t0}, 1280')
    e(f's_mul_i32 s{s_t1}, s{s_db}, 160')
    e(f's_add_u32 s{s_t0}, s{s_t0}, s{s_t1}')
    for n in range(3):
        e(f'v_add_u32 v{vT}, {64*n}, v{vLane}')
        e(f'v_mul_u32_u24 v{vT+1}, 6554, v{vT}')
        e(f'v_lshrrev_b32 v{vT+1}, 16, v{vT+1}')
        e(f'v_mul_u32_u24 v{vT+2}, 10, v{vT+1}')
        e(f'v_sub_u32 v{vT+2}, v{vT}, v{vT+2}')
        e(f'v_lshlrev_b32 v{vT+2}, 4, v{vT+2}')
        e(f'v_mul_u32_u24 v{vT+1}, 1280, v{vT+1}')
        e(f'v_add_u32 v{vT+1}, v{vT+1}, v{vT+2}')
        e(f'v_add_u32 v{vXO+n}, s{s_t0}, v{vT+1}')
        e(f'v_lshrrev_b32 v{vT+1}, 1, v{vT}')
        e(f'v_lshlrev_b32 v{vT+1}, 12, v{vT+1}')
        e(f'v_and_b32 v{vT+2}, 1, v{vT}')
        e(f'v_lshlrev_b32 v{vT+2}, 4, v{vT+2}')
        e(f'v_add_u32 v{vYO+n}, v{vT+1}, v{vT+2}')
    s_xl = 36 + 8; s_yo = 36 + 9; s_st = 36 + 10
    e(f's_mul_i32 s{s_xl}, s{s_w}, 2560')
    e(f's_mul_i32 s{s_yo}, s{s_db}, {80*4096}')
    e(f's_lshl_b32 s{s_t1}, s{s_tt}, 5')
    e(f's_add_u32 s{s_yo}, s{s_yo}, s{s_t1}')
    e(f's_add_u32 s{s_yo}, s{s_yo}, {YYT}')
    tail = []
    for n in range(3):
        pre = ['s_mov_b32 exec_hi, 0'] if n == 2 else []
        post = ['s_mov_b32 exec_hi, -1'] if n == 2 else []
        tail.append(pre + [f's_add_u32 m0, s{s_xl}, {XT + n*1024}', 's_nop 0',
                     f'buffer_load_dwordx4 v{vXO+n}, s[{sX}:{sX+3}], 0 offen lds'] + post)
        tail.append(pre + [f's_add_u32 m0, s{s_xl}, {YT + n*1024}', 's_nop 0',
                     f'buffer_load_dwordx4 v{vYO+n}, s[{sWS}:{sWS+3}], s{s_yo} offen lds'] + post)
    e(f'v_lshlrev_b32 v{vT+9}, 3, v{vL15}')
    e(f's_lshl_b32 s{s_st}, s{s_tt}, 7')
    e(f's_add_u32 s{s_st}, s{s_st}, {ST1}')
    tail.append([f'buffer_load_dwordx2 v[{ST}:{ST+1}], v{vT+9}, s[{sWS}:{sWS+3}], s{s_st} offen'])
    for i in range(20): e(f'v_mov_b32 v{ACC+i}, 0')
    def rds(buf, ks):
        L = []
        for dt in range(5):
            a = AFr + buf*20 + dt*4
            L.append(f'ds_read_b128 v[{a}:{a+3}], v{vL16 if (ks*5+dt)*1024 < 65536 else vT+8} offset:{((ks*5+dt)*1024) % 65536}')
        return L
    e(f'v_add_u32 v{vT+8}, 65536, v{vL16}')
    e('s_waitcnt vmcnt(9)')
    e('s_barrier')
    stp.stamp(e)
    for x in rds(0, 0): e(x)
    for ks in range(24):
        buf = ks % 2; g = ks // 4; kk = ks % 4
        pend = grp_loads(g + 2) if g < 4 else (tail if g == 4 else [])
        mine = pend[kk*len(pend)//4:(kk+1)*len(pend)//4]
        nxt = []
        if ks + 1 < 24:
            if kk == 3:
                issued_in_g = (3*len(pend)//4)
                e(f's_waitcnt vmcnt({issued_in_g}) lgkmcnt(0)')
                e('s_barrier')
            else:
                e('s_waitcnt lgkmcnt(0)')
            nxt = rds(1 - buf, ks + 1)
        else:
            e('s_waitcnt lgkmcnt(0)')
        mf = []
        for dt in range(5):
            a = AFr + buf*20 + dt*4; d = ACC + dt*4; p = PFR + ks*4
            mf.append(f'v_mfma_f32_16x16x32_bf16 v[{d}:{d+3}], v[{a}:{a+3}], v[{p}:{p+3}], v[{d}:{d+3}]')
        fills = [[] for _ in range(5)]
        for n, r in enumerate(nxt): fills[n].append(r)
        for n, it in enumerate(mine): fills[min(4, n+1)] += it
        weave(e, mf, fills)
    e.c('k3 epilogue')
    stp.stamp(e)
    e('s_waitcnt vmcnt(0)')
    e(f'v_mul_u32_u24 v{vT}, 160, v{vL15}')
    e(f'v_lshlrev_b32 v{vT+1}, 3, v{vQ}')
    e(f'v_add_u32 v{vT}, v{vT}, v{vT+1}')
    e(f's_add_u32 s{s_t0}, s{s_xl}, {XT}')
    e(f'v_add_u32 v{vT}, s{s_t0}, v{vT}')
    e(f'v_lshlrev_b32 v{vT+1}, 7, v{vQ}')
    e(f'v_lshlrev_b32 v{vT+2}, 3, v{vL15}')
    e(f'v_add_u32 v{vT+1}, v{vT+1}, v{vT+2}')
    e(f's_add_u32 s{s_t0}, s{s_xl}, {YT}')
    e(f'v_add_u32 v{vT+1}, s{s_t0}, v{vT+1}')
    XR = E; YR = E + 10
    for dt in range(5):
        e(f'ds_read_b64 v[{XR+2*dt}:{XR+2*dt+1}], v{vT} offset:{dt*32}')
        e(f'ds_read_b64_tr_b16 v[{YR+2*dt}:{YR+2*dt+1}], v{vT+1} offset:{dt*512}')
    NM = vT + 2
    e(f'v_sub_f32 v{NM}, 0, v{ST}')
    e(f'v_mov_b32 v{vT+4}, v{ST+1}')
    e(f's_mov_b32 s{s_one}, 1.0'); e(f's_mov_b32 s{s_one+1}, 1.0')
    e(f's_mov_b32 s{s_nl}, {hexf(-1.4426950408889634)}');
    e(f'v_mov_b32 v{vT+6}, s{s_nl}'); e(f'v_mov_b32 v{vT+7}, s{s_nl}')
    e('s_waitcnt lgkmcnt(0)')
    W = E + 20
    for dt in range(5):
        for p in range(2):
            a = ACC + dt*4 + 2*p
            x = W + (p*8); y = x + 2; g = x + 4; s = x + 6
            e(f'v_lshlrev_b32 v{x}, 16, v{XR+2*dt+p}')
            e(f'v_and_b32 v{x+1}, s{s_mask}, v{XR+2*dt+p}')
            e(f'v_lshlrev_b32 v{y}, 16, v{YR+2*dt+p}')
            e(f'v_and_b32 v{y+1}, s{s_mask}, v{YR+2*dt+p}')
            e(f'v_pk_mul_f32 v[{g}:{g+1}], v[{a}:{a+1}], v[{vT+6}:{vT+7}]')
            e(f'v_exp_f32 v{g}, v{g}')
            e(f'v_exp_f32 v{g+1}, v{g+1}')
            e(f'v_pk_add_f32 v[{s}:{s+1}], v[{x}:{x+1}], v[{NM}:{NM+1}] op_sel_hi:[1,0]')
            e(f'v_pk_add_f32 v[{g}:{g+1}], v[{g}:{g+1}], s[{s_one}:{s_one+1}]')
            e(f'v_pk_mul_f32 v[{s}:{s+1}], v[{s}:{s+1}], v[{vT+4}:{vT+5}] op_sel_hi:[1,0]')
            e(f'v_rcp_f32 v{g}, v{g}')
            e(f'v_rcp_f32 v{g+1}, v{g+1}')
            e(f'v_pk_mul_f32 v[{s}:{s+1}], v[{s}:{s+1}], v[{y}:{y+1}]')
            e(f'v_pk_mul_f32 v[{g}:{g+1}], v[{g}:{g+1}], v[{a}:{a+1}]')
            e(f'v_pk_fma_f32 v[{s}:{s+1}], v[{s}:{s+1}], v[{g}:{g+1}], v[{x}:{x+1}]')
            e(f'v_cvt_pk_bf16_f32 v{XR+2*dt+p}, v{s}, v{s+1}')
        e(f'ds_write_b64 v{vT}, v[{XR+2*dt}:{XR+2*dt+1}] offset:{dt*32}')
    e('s_waitcnt lgkmcnt(0)')
    e(f's_add_u32 s{s_t0}, s{s_xl}, {XT}')
    e(f'v_add_u32 v{vT+1}, s{s_t0}, v{vL16}')
    OR = W + 16
    for n in range(3):
        e(f'ds_read_b128 v[{OR+4*n}:{OR+4*n+3}], v{vT+1} offset:{n*1024}')
    e('s_waitcnt lgkmcnt(0)')
    for n in range(3):
        if n == 2: set_exec(e, 0xffffffff, 0)
        e(f'buffer_store_dwordx4 v[{OR+4*n}:{OR+4*n+3}], v{vXO+n}, s[{sO}:{sO+3}], 0 offen')
    e(f's_mov_b64 exec, s[{s_ex}:{s_ex+1}]')
    stp.flush(e, 2, sWS, vT, s_w)
    e.label('K3_END')
    e('s_endpgm')
    nn = e.finalize()
    return kernel_wrap('k3_kernel', e.text(), vgpr=256, sgpr=96), nn
```

```python
from common import *

WSLOT = 12288; NSLOT = 5
XB0 = NSLOT * WSLOT
XST = 8192
PREP = XB0
PREPV = 11520
MISC = XB0 + 10 * XST
L_M1 = MISC; L_R1 = MISC + 256
L_CSA = MISC + 512
L_CSB = MISC + 1280
L_PS = MISC + 2048
L_PQ = MISC + 2560
L_W2 = MISC + 3072
LDS1 = 147456
import os
PREFETCH = os.environ.get('PREFETCH', '1') == '1'
XP_NOPREP = os.environ.get('XP_NOPREP', '0') == '1'
XP_NODOT = os.environ.get('XP_NODOT', '0') == '1'
XP_NOCOMP = os.environ.get('XP_NOCOMP', '0')
BLOCK1 = 768
SENT = 0xbf800000

K1c = -2.0 * 1.4426950408889634 * 0.7978845608028654
K2c = K1c * 0.044715

def gen_k1():
    e = Emitter()
    sX, sW, sWS, sK, sV, sT = 8, 12, 16, 20, 24, 28
    s_rb, s_cb, s_w, s_wr, s_wc, s_wl = 32, 33, 34, 35, 36, 55
    s_i, s_j, s_off, s_t0, s_t1, s_t2 = 37, 38, 39, 40, 41, 42
    s_z2b, s_z1b, s_slot, s_mask = 43, 44, 45, 47
    s_k2 = 48; s_one = 50; s_ex = 52; s_xo = 54
    sD = 4
    P = 56
    vLane, vQ, vL15 = 1, 2, 3
    vXA, vXB, vW = 4, 6, 8
    vT = 14
    XF = 26; WF = 42; ACC = 66; CS = 90; ONE = 102; SUM = 106; GR = 110; AP = 114; E = 126
    nbar = {'A': 0, 'B': 0, 'L': 0}
    def bar(role, name=''):
        e('s_barrier'); nbar[role] += 1

    e.c('---- k1: GEMM1 (LN1 folded) + gelu + LN2 + kv prep + w_out retile ; roles A(0-3) B(4-7) L(8)')
    e('s_cmp_ge_u32 s2, 256')
    e('s_cbranch_scc1 K1_END')
    stp = Stamper(); stp.start(e)
    e(f's_load_dwordx4 s[{P}:{P+3}], s[0:1], 0')
    e(f's_load_dwordx4 s[{P+4}:{P+7}], s[0:1], 16')
    e(f's_load_dwordx2 s[{P+8}:{P+9}], s[0:1], 56')
    e(f's_load_dwordx2 s[{P+10}:{P+11}], s[0:1], 80')
    e(f's_load_dwordx4 s[{P+12}:{P+15}], s[0:1], 96')
    e(f's_load_dwordx2 s[{P+18}:{P+19}], s[0:1], 64')
    e(f's_load_dwordx2 s[{P+20}:{P+21}], s[0:1], 32')
    e(f'v_and_b32 v{vLane}, 63, v0')
    e(f'v_lshrrev_b32 v{vT}, 6, v0')
    e(f'v_lshrrev_b32 v{vQ}, 4, v{vLane}')
    e(f'v_readfirstlane_b32 s{s_w}, v{vT}')
    e(f'v_and_b32 v{vL15}, 15, v{vLane}')
    e(f's_and_b32 s{s_t0}, s2, 7')
    e(f's_lshr_b32 s{s_t1}, s2, 3')
    e(f's_lshr_b32 s{s_rb}, s{s_t0}, 1')
    e(f's_lshl_b32 s{s_rb}, s{s_rb}, 3')
    e(f's_lshr_b32 s{s_t2}, s{s_t1}, 2')
    e(f's_add_u32 s{s_rb}, s{s_rb}, s{s_t2}')
    e(f's_and_b32 s{s_cb}, s{s_t0}, 1')
    e(f's_lshl_b32 s{s_cb}, s{s_cb}, 2')
    e(f's_and_b32 s{s_t2}, s{s_t1}, 3')
    e(f's_add_u32 s{s_cb}, s{s_cb}, s{s_t2}')
    e(f's_and_b32 s{s_wl}, s{s_w}, 3')
    e(f's_lshr_b32 s{s_wr}, s{s_wl}, 1')
    e(f's_and_b32 s{s_wc}, s{s_wl}, 1')
    e(f's_mov_b32 s{s_mask}, 0xffff0000')
    e(f's_mov_b64 s[{s_ex}:{s_ex+1}], exec')
    e(f's_mul_i32 s{s_z1b}, s{s_cb}, 192')
    e(f's_add_u32 s{s_z2b}, s{s_z1b}, {768*2}')
    e(f's_cmp_ge_u32 s{s_w}, 8')
    e('s_cbranch_scc0 K1_AB')

    e.c('loader (4 waves; L = w&3 handles instr n = 4h + L of each stage)')
    stL = Stamper(); stL.n = 1
    vP, vPr = 4, 5
    VX = 8
    VW = 12
    t = 30
    s_L = s_wl
    s_xs, s_ws_, s_lb = s_j, s_off, s_slot
    e(f's_lshl_b32 s{s_t0}, s{s_rb}, 6')
    e(f's_lshl_b32 s{s_t1}, s{s_L}, 3')
    e(f's_add_u32 s{s_t0}, s{s_t0}, s{s_t1}')
    e(f's_lshl_b32 s{s_lb}, s{s_L}, 10')
    e(f'v_lshrrev_b32 v{t}, 3, v{vLane}')
    e(f'v_add_u32 v{t+2}, s{s_t1}, v{t}')
    e(f'v_lshrrev_b32 v{t+1}, 1, v{t+2}')
    e(f'v_xor_b32 v{t+1}, v{t+1}, v{vLane}')
    e(f'v_and_b32 v{t+1}, 7, v{t+1}')
    e(f'v_lshlrev_b32 v{t+1}, 4, v{t+1}')
    e(f'v_add_u32 v{t}, s{s_t0}, v{t}')
    e(f'v_mul_u32_u24 v{t}, 1280, v{t}')
    e(f'v_add_u32 v{VX}, v{t}, v{t+1}')
    e(f'v_add_u32 v{VX+1}, {32*1280}, v{VX}')
    e('s_waitcnt lgkmcnt(0)')
    stL.stamp(e)
    srd(e, sX, P, S*D*2)
    srd(e, sW, P+8, D*F*2)
    cnt = [0]; done_at = {}
    s_rot = s_i
    e(f's_and_b32 s{s_t0}, s{s_rb}, 7')
    e(f's_and_b32 s{s_t1}, s{s_cb}, 3')
    e(f's_mul_i32 s{s_t1}, s{s_t1}, 3')
    e(f's_add_u32 s{s_rot}, s{s_t0}, s{s_t1}')
    e(f's_sub_u32 s{s_t0}, s{s_rot}, 10')
    e(f's_cmp_ge_u32 s{s_rot}, 10')
    e(f's_cselect_b32 s{s_rot}, s{s_t0}, s{s_rot}')
    def kslice(j, dst):
        e(f's_add_u32 s{dst}, s{s_rot}, {j % 10}')
        e(f's_sub_u32 s{s_t0}, s{dst}, 10')
        e(f's_cmp_ge_u32 s{dst}, 10')
        e(f's_cselect_b32 s{dst}, s{s_t0}, s{dst}')
    def issue_x(j):
        kslice(j, s_xs)
        e(f's_lshl_b32 s{s_xs}, s{s_xs}, 7')
        for h in range(2):
            e(f's_add_u32 m0, s{s_lb}, {XB0 + j*XST + 4096*h}')
            e('s_nop 0')
            e(f'buffer_load_dwordx4 v{VX+h}, s[{sX}:{sX+3}], s{s_xs} offen lds')
        cnt[0] += 2
    def issue_w(j):
        base = s_z2b if j < 10 else s_z1b
        kslice(j, s_ws_)
        e(f's_mul_i32 s{s_ws_}, s{s_ws_}, {64*3072}')
        e(f's_add_u32 s{s_ws_}, s{s_ws_}, s{base}')
        for h in range(3):
            e(f's_add_u32 m0, s{s_lb}, {(j % NSLOT)*WSLOT + 4096*h}')
            e('s_nop 0')
            e(f'buffer_load_dwordx4 v{VW+h}, s[{sW}:{sW+3}], s{s_ws_} offen lds')
        cnt[0] += 3
    for h in range(3):
        e(f's_lshl_b32 s{s_t0}, s{s_L}, 6')
        e(f's_add_u32 s{s_t0}, s{s_t0}, {64*4*h}')
        e(f'v_add_u32 v{t}, s{s_t0}, v{vLane}')
        e(f'v_mul_u32_u24 v{t+1}, 5462, v{t}')
        e(f'v_lshrrev_b32 v{t+1}, 16, v{t+1}')
        e(f'v_mul_u32_u24 v{t+2}, 12, v{t+1}')
        e(f'v_sub_u32 v{t+2}, v{t}, v{t+2}')
        e(f'v_lshrrev_b32 v{t+3}, 2, v{t+1}')
        e(f'v_and_b32 v{t+3}, 2, v{t+3}')
        e(f'v_xor_b32 v{t+2}, v{t+2}, v{t+3}')
        e(f'v_lshlrev_b32 v{t+2}, 4, v{t+2}')
        e(f'v_mul_u32_u24 v{t+1}, 3072, v{t+1}')
        e(f'v_add_u32 v{VW+h}, v{t+1}, v{t+2}')
    stL.stamp(e)
    issue_x(0)
    issue_w(0); done_at[0] = cnt[0]
    def issue(j):
        if j < 10: issue_x(j)
        issue_w(j)
        done_at[j] = cnt[0]
    def lbar(k):
        n = cnt[0] - done_at[k]
        e(f's_waitcnt vmcnt({min(n, 63)})'); bar('L')
    def issue_prep():
        e(f'v_mul_u32_u24 v{vPr}, 6554, v{vLane}')
        e(f'v_lshrrev_b32 v{vPr}, 16, v{vPr}')
        e(f'v_mul_u32_u24 v{vP}, 10, v{vPr}')
        e(f'v_sub_u32 v{vP}, v{vLane}, v{vP}')
        e(f'v_lshlrev_b32 v{vP}, 4, v{vP}')
        e(f'v_mul_u32_u24 v{t}, 1280, v{vPr}')
        e(f'v_add_u32 v{vP}, v{vP}, v{t}')
        srd(e, sK, P+2, S*D*2)
        srd(e, sV, P+4, S*D*2)
        set_exec(e, 0xffffffff, 0x0fffffff)
        sa, sb, sc = 46, 78, 79
        e(f's_lshl_b32 s{s_t0}, s{s_rb}, 6')
        e(f's_mul_i32 s{s_t1}, s{s_L}, 6')
        e(f's_add_u32 s{s_t0}, s{s_t0}, s{s_t1}')
        e(f's_mul_i32 s{sa}, s{s_t0}, 1280')
        e(f's_mul_i32 s{s_t1}, s{s_cb}, 160')
        e(f's_add_u32 s{sa}, s{sa}, s{s_t1}')
        e(f's_mul_i32 s{sb}, s{s_L}, 960')
        e(f's_add_u32 s{sb}, s{sb}, {PREP}')
        e(f'v_mov_b32 v{t}, v{vP}')
        e(f's_sub_u32 s{sc}, s{sa}, {3*1280}')
        e(f's_cmp_eq_u32 s{s_t0}, 0')
        e('s_cbranch_scc0 K1_NONNEG')
        e(f'v_subrev_u32 v{t}, {3*1280}, v{vP}')
        e(f'v_cmp_gt_u32 vcc, 3, v{vPr}')
        e(f'v_mov_b32 v{t+1}, 0x80000000')
        e(f'v_cndmask_b32 v{t}, v{t}, v{t+1}, vcc')
        e(f's_mov_b32 s{sc}, s{sa}')
        e.label('K1_NONNEG')
        for n in range(3):
            e(f's_add_u32 m0, s{sb}, {n*3840}')
            e('s_nop 0')
            e(f'buffer_load_dwordx4 v{t if n == 0 else vP}, s[{sK}:{sK+3}], s{sc} offen lds')
            e(f's_add_u32 m0, s{sb}, {n*3840 + PREPV}')
            e('s_nop 0')
            e(f'buffer_load_dwordx4 v{vP}, s[{sV}:{sV+3}], s{sa} offen lds')
            e(f's_add_u32 s{sa}, s{sa}, {24*1280}')
            e(f's_sub_u32 s{sc}, s{sa}, {3*1280}')
        e(f's_mov_b64 exec, s[{s_ex}:{s_ex+1}]')
        cnt[0] += 6
    def prefetch_tail():
        e(f'v_lshlrev_b32 v{t}, 6, v{vLane}')
        e(f's_and_b32 s{s_t0}, s2, 7')
        e(f's_lshl_b32 s{s_t0}, s{s_t0}, 8')
        e(f's_lshr_b32 s{s_t1}, s2, 3')
        e(f's_lshl_b32 s{s_t1}, s{s_t1}, 3')
        e(f's_add_u32 s{s_t0}, s{s_t0}, s{s_t1}')
        e(f's_lshl_b32 s{s_t1}, s{s_L}, 1')
        e(f's_add_u32 s{s_t0}, s{s_t0}, s{s_t1}')
        e(f's_lshl_b32 s{s_t0}, s{s_t0}, 12')
        srd(e, sK, P+18, S*S*2)
        for r in range(2):
            e(f'buffer_load_dword v{t+1+r}, v{t}, s[{sK}:{sK+3}], s{s_t0} offen')
            e(f's_add_u32 s{s_t0}, s{s_t0}, 4096')
        srd(e, sV, P+20, D*S*2)
        e(f's_mul_i32 s{s_t0}, s2, 3')
        e(f's_add_u32 s{s_t0}, s{s_t0}, s{s_L}')
        e(f's_lshl_b32 s{s_t0}, s{s_t0}, 12')
        e(f's_cmp_eq_u32 s{s_L}, 3')
        e(f's_cselect_b32 s{s_t0}, 0x80000000, s{s_t0}')
        e(f'buffer_load_dword v{t+5}, v{t}, s[{sV}:{sV+3}], s{s_t0} offen')
        cnt[0] += 3
    xs = {1: [1, 2], 2: [3, 4], 3: [5, 6], 4: [7, 8], 5: [9]}
    wn = 1
    for k in range(20):
        if k >= 1:
            lim = {1: 2, 2: 4}.get(k, min(19, k + 2 if k <= 5 else k + 3))
            todo_x = list(xs.get(k, []))
            while wn <= lim or todo_x:
                if todo_x: issue_x(todo_x.pop(0))
                if wn <= lim:
                    if wn == 17: issue_prep()
                    issue_w(wn); done_at[wn] = cnt[0]; wn += 1
                    if wn == 20 and PREFETCH: prefetch_tail()
        lbar(k)
        if k in (0, 1): stL.stamp(e)
    assert wn == 20
    bar('L'); bar('L')
    if STAMPS:
        srd(e, sWS, P+14, WS_SIZE) if False else None
        e(f's_load_dwordx2 s[{P+14}:{P+15}], s[0:1], 104')
        e('s_waitcnt lgkmcnt(0)')
        srd(e, sWS, P+14, WS_SIZE)
        stL.flush(e, 3, sWS, t, s_wl)
    e('s_endpgm')

    e.label('K1_AB')
    e(f'v_lshrrev_b32 v{vT+3}, 1, v{vL15}')
    e(f'v_xor_b32 v{vT+3}, v{vT+3}, v{vQ}')
    e(f'v_lshlrev_b32 v{vT+3}, 4, v{vT+3}')
    e(f'v_lshlrev_b32 v{vT+4}, 7, v{vL15}')
    e(f'v_add_u32 v{vT+3}, v{vT+3}, v{vT+4}')
    e(f'v_xor_b32 v{vT+4}, 64, v{vT+3}')
    e(f's_lshl_b32 s{s_t0}, s{s_wr}, 12')
    e(f's_lshl_b32 s{s_t1}, s{s_wc}, 11')
    e(f's_add_u32 s{s_t2}, s{s_t0}, s{s_t1}')
    e(f's_add_u32 s{s_t2}, s{s_t2}, {XB0}')
    e(f'v_add_u32 v{vXA}, s{s_t2}, v{vT+3}')
    e(f'v_add_u32 v{vXA+1}, s{s_t2}, v{vT+4}')
    e(f's_xor_b32 s{s_t1}, s{s_t1}, 2048')
    e(f's_add_u32 s{s_t2}, s{s_t0}, s{s_t1}')
    e(f's_add_u32 s{s_t2}, s{s_t2}, {XB0}')
    e(f'v_add_u32 v{vXB}, s{s_t2}, v{vT+3}')
    e(f'v_add_u32 v{vXB+1}, s{s_t2}, v{vT+4}')
    e(f'v_lshrrev_b32 v{vT+3}, 2, v{vLane}')
    e(f'v_and_b32 v{vT+3}, 3, v{vT+3}')
    e(f'v_lshlrev_b32 v{vT+4}, 3, v{vQ}')
    e(f'v_add_u32 v{vT+3}, v{vT+3}, v{vT+4}')
    e(f'v_mul_u32_u24 v{vT+3}, 192, v{vT+3}')
    e(f'v_and_b32 v{vT+4}, 3, v{vLane}')
    e(f'v_lshlrev_b32 v{vT+4}, 3, v{vT+4}')
    e(f'v_add_u32 v{vT+3}, v{vT+3}, v{vT+4}')
    e(f'v_and_b32 v{vT+5}, 1, v{vQ}')
    e(f's_mul_i32 s{s_t0}, s{s_wc}, 3')
    for ft in range(3):
        e(f's_add_u32 s{s_t1}, s{s_t0}, {ft}')
        e(f'v_xor_b32 v{vT+4}, s{s_t1}, v{vT+5}')
        e(f'v_lshlrev_b32 v{vT+4}, 5, v{vT+4}')
        e(f'v_add_u32 v{vW+ft}, v{vT+3}, v{vT+4}')
    e(f's_mov_b32 s{s_k2}, {hexf(K2c)}'); e(f's_mov_b32 s{s_k2+1}, {hexf(K2c)}')
    e(f's_mov_b32 s{s_one}, 1.0'); e(f's_mov_b32 s{s_one+1}, 1.0')
    e('s_waitcnt lgkmcnt(0)')
    srd(e, sWS, P+14, WS_SIZE)
    srd(e, sD, P+12, 256)
    e(f's_cmp_ge_u32 s{s_w}, 4')
    e('s_cbranch_scc1 K1_B')

    def rd_list(buf, ksl, xoff, woff):
        L = []
        L.append(f'ds_read_b128 v[{XF+buf*8}:{XF+buf*8+3}], v{vXA+ksl} offset:{xoff}')
        for ft in range(3):
            b = WF + buf*12 + ft*4
            L.append(f'ds_read_b64_tr_b16 v[{b}:{b+1}], v{vW+ft} offset:{woff+ksl*6144}')
            L.append(f'ds_read_b64_tr_b16 v[{b+2}:{b+3}], v{vW+ft} offset:{woff+ksl*6144+768}')
            if ft == 0:
                L.append(f'ds_read_b128 v[{XF+buf*8+4}:{XF+buf*8+7}], v{vXB+ksl} offset:{xoff}')
        return L
    def phase(buf, ksl, p, tag, nxt_reads):
        mf = []
        for ft in range(3):
            for T in range(2):
                a = ACC + (T*3+ft)*4
                x = f'v[{XF+buf*8+T*4}:{XF+buf*8+T*4+3}]'
                w = f'v[{WF+buf*12+ft*4}:{WF+buf*12+ft*4+3}]'
                if p == 1: mf.append(f'v_mfma_f32_16x16x32_bf16 v[{a}:{a+3}], {x}, {w}, v[{a}:{a+3}]')
                else:      mf.append(f'v_mfma_f32_16x16x32_bf16 v[{a}:{a+3}], {w}, {x}, v[{a}:{a+3}]')
        fills = [nxt_reads[0:2], nxt_reads[2:4], nxt_reads[4:6], nxt_reads[6:8], [], []]
        if p == 1 and not XP_NODOT:
            x = f'v[{XF+buf*8}:{XF+buf*8+3}]'
            mf.append(f'v_mfma_f32_16x16x32_bf16 v[{SUM}:{SUM+3}], v[{ONE}:{ONE+3}], {x}, v[{SUM}:{SUM+3}]')
            mf.append(f'v_mfma_f32_16x16x32_bf16 v[{GR}:{GR+3}], {x}, {x}, v[{GR}:{GR+3}]')
        if XP_NOCOMP == '2': fills = [[] for _ in fills]
        if XP_NOCOMP == '3': mf = ['s_nop 0'] * len(mf)
        weave(e, mf, fills)
        e(f's_cmp_eq_u32 s{s_wr}, {ksl}')
        e(f's_cbranch_scc0 K1_SK_{tag}')
        for ft in range(3):
            a = CS + ft*4
            w = f'v[{WF+buf*12+ft*4}:{WF+buf*12+ft*4+3}]'
            o = f'v[{ONE}:{ONE+3}]'
            if p == 1: e(f'v_mfma_f32_16x16x32_bf16 v[{a}:{a+3}], {o}, {w}, v[{a}:{a+3}]')
            else:      e(f'v_mfma_f32_16x16x32_bf16 v[{a}:{a+3}], {w}, {o}, v[{a}:{a+3}]')
        e.label(f'K1_SK_{tag}')
    def init_acc():
        for i in range(4): e(f'v_mov_b32 v{ONE+i}, 0x3f803f80')
        for i in range(24): e(f'v_mov_b32 v{ACC+i}, 0')
        for i in range(12): e(f'v_mov_b32 v{CS+i}, 0')
        for i in range(8): e(f'v_mov_b32 v{SUM+i}, 0')
    def loop(p, role):
        L = f'K1_LOOP{p}'
        if XP_NOCOMP == '1':
            for _ in range(10): bar(role)
            return
        e(f's_mov_b32 s{s_i}, 0')
        for x in rd_list(0, 0, 0, 0): e(x)
        e.label(L)
        for u in range(5):
            e('s_waitcnt lgkmcnt(0)')
            phase(0, 0, p, f'{p}a{u}', rd_list(1, 1, u*XST, u*WSLOT))
            e('s_waitcnt lgkmcnt(0)')
            e('s_barrier')
            if u == 4:
                for r in (vXA, vXA+1, vXB, vXB+1):
                    e(f'v_add_u32 v{r}, {5*XST}, v{r}')
                nx = rd_list(0, 0, 0, 0)
            else:
                nx = rd_list(0, 0, (u+1)*XST, (u+1)*WSLOT)
            phase(1, 1, p, f'{p}b{u}', nx)
        e(f's_add_u32 s{s_i}, s{s_i}, 1')
        e(f's_cmp_lt_u32 s{s_i}, 2')
        e(f's_cbranch_scc1 {L}')
        nbar[role] += 10
    K1V = E + 0
    G = E + 2
    def gelu_pair_sc(t, u):
        for h in range(2):
            e(f'v_mul_f32 v{u+h}, v{t+h}, v{t+h}')
        for h in range(2):
            e(f'v_fma_f32 v{u+h}, v{u+h}, s{s_k2}, v{K1V}')
        for h in range(2):
            e(f'v_mul_f32 v{u+h}, v{u+h}, v{t+h}')
        for h in range(2):
            e(f'v_exp_f32 v{u+h}, v{u+h}')
        for h in range(2):
            e(f'v_add_f32 v{u+h}, 1.0, v{u+h}')
        for h in range(2):
            e(f'v_rcp_f32 v{u+h}, v{u+h}')
        for h in range(2):
            e(f'v_mul_f32 v{u+h}, v{u+h}, v{t+h}')
    def gelu_pair(t, u):
        e(f'v_pk_mul_f32 v[{u}:{u+1}], v[{t}:{t+1}], v[{t}:{t+1}]')
        e(f'v_pk_fma_f32 v[{u}:{u+1}], v[{u}:{u+1}], s[{s_k2}:{s_k2+1}], v[{K1V}:{K1V+1}]')
        e(f'v_pk_mul_f32 v[{u}:{u+1}], v[{u}:{u+1}], v[{t}:{t+1}]')
        e(f'v_exp_f32 v{u}, v{u}')
        e(f'v_exp_f32 v{u+1}, v{u+1}')
        e(f'v_pk_add_f32 v[{u}:{u+1}], v[{u}:{u+1}], s[{s_one}:{s_one+1}]')
        e(f'v_rcp_f32 v{u}, v{u}')
        e(f'v_rcp_f32 v{u+1}, v{u+1}')
        e(f'v_pk_mul_f32 v[{u}:{u+1}], v[{u}:{u+1}], v[{t}:{t+1}]')

    e.c('role A')
    init_acc()
    bar('A')
    stp.stamp(e)
    loop(1, 'A')
    stp.stamp(e)
    e.c('A epilogue')
    e('s_setprio 2')
    e(f's_lshl_b32 s{s_t0}, s{s_rb}, 2')
    e(f'v_mov_b32 v{vT+8}, s{s_t0}')
    PC = vT + 9
    e(f'buffer_load_dword v{PC}, v{vT+8}, s[{sD}:{sD+3}], 0 offen sc1')
    SK = 160
    srd(e, sT, P+6, D*4*2)
    e(f'v_lshlrev_b32 v{vT+3}, 4, v{vLane}')
    e(f's_mul_i32 s{s_t1}, s{s_cb}, 640')
    e(f'buffer_load_dwordx4 v[{SK}:{SK+3}], v{vT+3}, s[{sT}:{sT+3}], s{s_t1} offen')
    e(f'v_and_b32 v{vT}, 3, v{vL15}')
    e(f'v_cmp_eq_u32 vcc, 1, v{vT}')
    e(f'v_cndmask_b32 v{GR}, v{GR}, v{GR+1}, vcc')
    e(f'v_cmp_eq_u32 vcc, 2, v{vT}')
    e(f'v_cndmask_b32 v{GR}, v{GR}, v{GR+2}, vcc')
    e(f'v_cmp_eq_u32 vcc, 3, v{vT}')
    e(f'v_cndmask_b32 v{GR}, v{GR}, v{GR+3}, vcc')
    ln_finalize(e, SUM, GR, D, vT+2, vT+3, vT+4, vT+5)
    e(f's_lshl_b32 s{s_t0}, s{s_wr}, 5')
    e(f's_lshl_b32 s{s_t1}, s{s_wc}, 4')
    e(f's_add_u32 s{s_t0}, s{s_t0}, s{s_t1}')
    e(f'v_add_u32 v{vT+4}, s{s_t0}, v{vL15}')
    e(f'v_lshlrev_b32 v{vT+5}, 2, v{vT+4}')
    e(f'v_add_u32 v{vT+5}, {L_M1}, v{vT+5}')
    set_exec(e, 0x00f0000f, 0xf0000f00)
    e(f'ds_write_b32 v{vT+5}, v{vT+2}')
    e(f'ds_write_b32 v{vT+5}, v{vT+3} offset:256')
    e(f's_cmp_eq_u32 s{s_cb}, 0')
    e('s_cbranch_scc0 K1_NOST1X')
    e(f's_lshl_b32 s{s_t1}, s{s_rb}, 9')
    e(f's_add_u32 s{s_t1}, s{s_t1}, {ST1}')
    e(f'v_lshlrev_b32 v{vT+4}, 3, v{vT+4}')
    e(f'buffer_store_dwordx2 v[{vT+2}:{vT+3}], v{vT+4}, s[{sWS}:{sWS+3}], s{s_t1} offen')
    e.label('K1_NOST1X')
    e(f's_mov_b64 exec, s[{s_ex}:{s_ex+1}]')
    e(f's_mul_i32 s{s_t0}, s{s_wl}, 192')
    e(f's_add_u32 s{s_t0}, s{s_t0}, {L_CSA}')
    e(f'v_lshlrev_b32 v{vT+6}, 2, v{vL15}')
    e(f'v_add_u32 v{vT+6}, s{s_t0}, v{vT+6}')
    for ft in range(3):
        e(f'ds_write_b32 v{vT+6}, v{CS+ft*4} offset:{ft*64}')
    e('s_waitcnt lgkmcnt(0)')
    bar('A')
    e(f's_xor_b32 s{s_t1}, s{s_wl}, 2')
    e(f's_mul_i32 s{s_t1}, s{s_t1}, 192')
    e(f's_add_u32 s{s_t1}, s{s_t1}, {L_CSA}')
    e(f'v_lshlrev_b32 v{vT+4}, 2, v{vL15}')
    e(f'v_add_u32 v{vT+4}, s{s_t1}, v{vT+4}')
    NCS = E + 10
    for ft in range(3):
        e(f'ds_read_b32 v{NCS+2*ft}, v{vT+4} offset:{ft*64}')
    M1 = XF
    R1 = XF + 8
    e(f's_lshl_b32 s{s_t0}, s{s_wr}, 7')
    e(f's_lshl_b32 s{s_t1}, s{s_wc}, 6')
    e(f's_add_u32 s{s_t0}, s{s_t0}, s{s_t1}')
    e(f's_add_u32 s{s_t0}, s{s_t0}, {L_M1}')
    e(f'v_lshlrev_b32 v{vT+5}, 4, v{vQ}')
    e(f'v_add_u32 v{vT+5}, s{s_t0}, v{vT+5}')
    e(f'v_xor_b32 v{vT+6}, 64, v{vT+5}')
    e(f'ds_read_b128 v[{M1}:{M1+3}], v{vT+5}')
    e(f'ds_read_b128 v[{M1+4}:{M1+7}], v{vT+6}')
    e(f'ds_read_b128 v[{R1}:{R1+3}], v{vT+5} offset:256')
    e(f'ds_read_b128 v[{R1+4}:{R1+7}], v{vT+6} offset:256')
    e(f'v_mov_b32 v{K1V}, {hexf(K1c)}'); e(f'v_mov_b32 v{K1V+1}, {hexf(K1c)}')
    SA = WF
    for i in range(16): e(f'v_mov_b32 v{SA+i}, 0')
    e('s_waitcnt lgkmcnt(0)')
    for ft in range(3):
        e(f'v_add_f32 v{NCS+2*ft}, v{NCS+2*ft}, v{CS+ft*4}')
        e(f'v_sub_f32 v{NCS+2*ft}, 0, v{NCS+2*ft}')
    npair = 0
    for ft in range(3):
        for T in range(2):
            for p in range(2):
                a = ACC + (T*3+ft)*4 + 2*p
                n = NCS + 2*ft
                g = G + 4*p
                for h in range(2):
                    e(f'v_fma_f32 v{a+h}, v{M1+T*4+2*p+h}, v{n}, v{a+h}')
                for h in range(2):
                    e(f'v_mul_f32 v{a+h}, v{a+h}, v{R1+T*4+2*p+h}')
                gelu_pair_sc(a, g)
                e(f'v_cvt_pk_bf16_f32 v{AP+ft*4+T*2+p}, v{g}, v{g+1}')
                s_ = SA + T*4 + 2*p
                for h in range(2):
                    e(f'v_add_f32 v{s_+h}, v{s_+h}, v{g+h}')
                for h in range(2):
                    e(f'v_fma_f32 v{s_+8+h}, v{g+h}, v{g+h}, v{s_+8+h}')
                npair += 1
                if npair in (2, 5, 8, 11): bar('A')
    for k, sh in enumerate((8, 4, 2, 1)):
        for i in range(16):
            e(f'v_add_f32_dpp v{SA+i}, v{SA+i}, v{SA+i} row_ror:{sh} row_mask:0xf bank_mask:0xf')
        if k == 1: bar('A')
    e(f's_lshl_b32 s{s_t0}, s{s_wc}, 8')
    e(f's_add_u32 s{s_t0}, s{s_t0}, {L_PS - L_M1}')
    e(f'v_add_u32 v{vT+5}, s{s_t0}, v{vT+5}')
    e(f'v_add_u32 v{vT+6}, s{s_t0}, v{vT+6}')
    set_exec(e, 0x00010001, 0x00010001)
    e(f'ds_write_b128 v{vT+5}, v[{SA}:{SA+3}]')
    e(f'ds_write_b128 v{vT+6}, v[{SA+4}:{SA+7}]')
    e(f'ds_write_b128 v{vT+5}, v[{SA+8}:{SA+11}] offset:{L_PQ-L_PS}')
    e(f'ds_write_b128 v{vT+6}, v[{SA+12}:{SA+15}] offset:{L_PQ-L_PS}')
    e(f's_mov_b64 exec, s[{s_ex}:{s_ex+1}]')
    e('s_waitcnt lgkmcnt(0)')
    bar('A')
    e(f's_cmp_eq_u32 s{s_w}, 0')
    e('s_cbranch_scc0 K1_NOPUB')
    e(f'v_lshlrev_b32 v{vT}, 2, v{vLane}')
    e(f'v_add_u32 v{vT}, {L_PS}, v{vT}')
    e(f'ds_read_b32 v{vT+2}, v{vT}')
    e(f'ds_read_b32 v{vT+4}, v{vT} offset:256')
    e(f'ds_read_b32 v{vT+3}, v{vT} offset:{L_PQ-L_PS}')
    e(f'ds_read_b32 v{vT+5}, v{vT} offset:{L_PQ-L_PS+256}')
    e(f's_lshl_b32 s{s_t0}, s{s_rb}, 3')
    e(f's_add_u32 s{s_t0}, s{s_t0}, s{s_cb}')
    e(f's_lshl_b32 s{s_t0}, s{s_t0}, 9')
    e(f's_add_u32 s{s_t0}, s{s_t0}, {XCH}')
    e(f'v_lshlrev_b32 v{vT+1}, 3, v{vLane}')
    e('s_waitcnt lgkmcnt(0)')
    e(f'v_add_f32 v{vT+2}, v{vT+2}, v{vT+4}')
    e(f'v_add_f32 v{vT+3}, v{vT+3}, v{vT+5}')
    e(f'v_max_f32 v{vT+3}, 0, v{vT+3}')
    e(f'buffer_store_dwordx2 v[{vT+2}:{vT+3}], v{vT+1}, s[{sWS}:{sWS+3}], s{s_t0} offen sc1')
    e.label('K1_NOPUB')
    stp.stamp(e)
    e(f's_mul_i32 s{s_t0}, s{s_cb}, 6')
    e(f's_mul_i32 s{s_t1}, s{s_wc}, 3')
    e(f's_add_u32 s{s_t0}, s{s_t0}, s{s_t1}')
    e(f's_lshl_b32 s{s_t0}, s{s_t0}, 6')
    e(f's_lshl_b32 s{s_t1}, s{s_rb}, 1')
    e(f's_add_u32 s{s_t0}, s{s_t0}, s{s_t1}')
    e(f's_add_u32 s{s_t0}, s{s_t0}, s{s_wr}')
    e(f's_lshl_b32 s{s_t0}, s{s_t0}, 10')
    e(f's_add_u32 s{s_off}, s{s_t0}, {Z2F}')
    e(f'v_and_b32 v{vT+7}, 1, v{vQ}')
    e(f'v_lshlrev_b32 v{vT+7}, 1, v{vT+7}')
    e(f'v_lshrrev_b32 v{vT+10}, 1, v{vQ}')
    e(f'v_or_b32 v{vT+7}, v{vT+7}, v{vT+10}')
    e(f's_lshl_b32 s{s_t1}, s{s_wc}, 1')
    e(f'v_xor_b32 v{vT+7}, s{s_t1}, v{vT+7}')
    e(f'v_lshlrev_b32 v{vT+7}, 4, v{vT+7}')
    e(f'v_add_u32 v{vT+7}, v{vT+7}, v{vL15}')
    e(f'v_lshlrev_b32 v{vT+7}, 4, v{vT+7}')
    e(f'v_and_b32 v{vT+10}, 31, v{vLane}')
    e(f's_lshl_b32 s{s_j}, s{s_wr}, 5')
    e(f'v_add_u32 v{vT+10}, s{s_j}, v{vT+10}')
    e(f'v_lshlrev_b32 v{vT+10}, 3, v{vT+10}')
    e(f's_lshl_b32 s{s_j}, s{s_rb}, 12')
    e(f's_add_u32 s{s_j}, s{s_j}, {XCH}')
    for _ in range(4): bar('A')
    e('s_setprio 0')
    KR = 26; VRr = 45; KP = 62; CP = 100; KVP = 126
    e(f's_mul_i32 s{s_t0}, s{s_wl}, {16*160}')
    e(f's_add_u32 s{s_t0}, s{s_t0}, {PREP}')
    e(f'v_lshlrev_b32 v{vT+3}, 2, v{vLane}')
    e(f'v_min_u32 v{vT+3}, 156, v{vT+3}')
    e(f'v_add_u32 v{vT+3}, s{s_t0}, v{vT+3}')
    for r in range(19):
        e(f'ds_read_b32 v{KR+r}, v{vT+3} offset:{r*160}')
        if r == 13: e('s_waitcnt lgkmcnt(6)')
    for r in range(16):
        if r in (2, 10): e('s_waitcnt lgkmcnt(6)')
        e(f'ds_read_b32 v{VRr+r}, v{vT+3} offset:{PREPV + r*160}')
    e('s_waitcnt vmcnt(0)')
    e(f'v_lshlrev_b32 v{CP+0}, 16, v{SK+0}'); e(f'v_lshlrev_b32 v{CP+1}, 16, v{SK+2}')
    e(f'v_and_b32 v{CP+2}, s{s_mask}, v{SK+0}'); e(f'v_and_b32 v{CP+3}, s{s_mask}, v{SK+2}')
    e(f'v_lshlrev_b32 v{CP+4}, 16, v{SK+1}'); e(f'v_lshlrev_b32 v{CP+5}, 16, v{SK+3}')
    e(f'v_and_b32 v{CP+6}, s{s_mask}, v{SK+1}'); e(f'v_and_b32 v{CP+7}, s{s_mask}, v{SK+3}')
    e('s_waitcnt lgkmcnt(12)')
    for r in range(19):
        if r == 12: e('s_waitcnt lgkmcnt(0)')
        e(f'v_lshlrev_b32 v{KP+2*r}, 16, v{KR+r}')
        e(f'v_and_b32 v{KP+2*r+1}, s{s_mask}, v{KR+r}')
    for i in range(16):
        t_ = KVP + 2*i
        e(f'v_pk_mul_f32 v[{t_}:{t_+1}], v[{CP+6}:{CP+7}], v[{KP+2*i}:{KP+2*i+1}]')
        e(f'v_lshlrev_b32 v{vT+4}, 16, v{VRr+i}')
        e(f'v_pk_fma_f32 v[{t_}:{t_+1}], v[{CP+4}:{CP+5}], v[{KP+2*i+2}:{KP+2*i+3}], v[{t_}:{t_+1}]')
        e(f'v_and_b32 v{vT+5}, s{s_mask}, v{VRr+i}')
        e(f'v_pk_fma_f32 v[{t_}:{t_+1}], v[{CP+2}:{CP+3}], v[{KP+2*i+4}:{KP+2*i+5}], v[{t_}:{t_+1}]')
        e(f'v_pk_fma_f32 v[{t_}:{t_+1}], v[{CP+0}:{CP+1}], v[{KP+2*i+6}:{KP+2*i+7}], v[{t_}:{t_+1}]')
        e(f'v_pk_mul_f32 v[{t_}:{t_+1}], v[{t_}:{t_+1}], v[{vT+4}:{vT+5}]')
    OUT = 26
    for dd in range(2):
        for g in range(2):
            for n in range(4):
                lo = KVP + 2*(8*g + 7 - 2*n) + dd
                hi = KVP + 2*(8*g + 6 - 2*n) + dd
                e(f'v_cvt_pk_bf16_f32 v{OUT + dd*8 + g*4 + n}, v{lo}, v{hi}')
    XP = WF + 2
    for c in range(8):
        e(f'buffer_load_dwordx2 v[{XP+2*c}:{XP+2*c+1}], v{vT+10}, s[{sWS}:{sWS+3}], s{s_j} offen offset:{c*512} sc1')
    e(f'v_lshlrev_b32 v{vT+3}, 13, v{vLane}')
    e(f's_mul_i32 s{s_t0}, s{s_cb}, {80*4096}')
    e(f's_lshl_b32 s{s_t1}, s{s_rb}, 7')
    e(f's_add_u32 s{s_t0}, s{s_t0}, s{s_t1}')
    e(f's_lshl_b32 s{s_t1}, s{s_wl}, 5')
    e(f's_add_u32 s{s_t0}, s{s_t0}, s{s_t1}')
    e(f's_add_u32 s{s_t0}, s{s_t0}, {KVT}')
    e(f's_add_u32 s{s_t1}, s{s_t0}, 4096')
    set_exec(e, 0xffffffff, 0xff)
    e(f'buffer_store_dwordx4 v[{OUT}:{OUT+3}], v{vT+3}, s[{sWS}:{sWS+3}], s{s_t0} offen {STF_EARLY}')
    e(f'buffer_store_dwordx4 v[{OUT+4}:{OUT+7}], v{vT+3}, s[{sWS}:{sWS+3}], s{s_t0} offen offset:16 {STF_EARLY}')
    e(f'buffer_store_dwordx4 v[{OUT+8}:{OUT+11}], v{vT+3}, s[{sWS}:{sWS+3}], s{s_t1} offen {STF_EARLY}')
    e(f'buffer_store_dwordx4 v[{OUT+12}:{OUT+15}], v{vT+3}, s[{sWS}:{sWS+3}], s{s_t1} offen offset:16 {STF_EARLY}')
    e(f's_mov_b64 exec, s[{s_ex}:{s_ex+1}]')
    stp.stamp(e)
    e(f'v_readfirstlane_b32 s{s_t0}, v{PC}')
    e(f's_cmp_ge_u32 s{s_t0}, 8')
    e('s_cbranch_scc1 K1_CPOLLED')
    e.label('K1_CPOLL')
    e('s_sleep 4')
    e(f'buffer_load_dword v{PC}, v{vT+8}, s[{sD}:{sD+3}], 0 offen sc1')
    e('s_waitcnt vmcnt(0)')
    e(f'v_readfirstlane_b32 s{s_t0}, v{PC}')
    e(f's_cmp_ge_u32 s{s_t0}, 8')
    e('s_cbranch_scc0 K1_CPOLL')
    e('s_branch K1_POLL')
    e.label('K1_CPOLLED')
    e('s_waitcnt vmcnt(4)')
    e('s_branch K1_CHECK')
    e.label('K1_POLL')
    for c in range(8):
        e(f'buffer_load_dwordx2 v[{XP+2*c}:{XP+2*c+1}], v{vT+10}, s[{sWS}:{sWS+3}], s{s_j} offen offset:{c*512} sc1')
    e('s_waitcnt vmcnt(0)')
    e.label('K1_CHECK')
    e(f's_mov_b32 s{s_t0}, {hex(SENT)}')
    e(f'v_cmp_eq_u32 vcc, s{s_t0}, v{XP+1}')
    for c in range(1, 8):
        e(f'v_cmp_eq_u32 s[{P}:{P+1}], s{s_t0}, v{XP+2*c+1}')
        e(f's_or_b64 vcc, vcc, s[{P}:{P+1}]')
    e('s_cmp_eq_u64 vcc, 0')
    e('s_cbranch_scc1 K1_POLLED')
    e('s_sleep 2')
    e('s_branch K1_POLL')
    e.label('K1_POLLED')
    for c in range(1, 8):
        e(f'v_pk_add_f32 v[{XP}:{XP+1}], v[{XP}:{XP+1}], v[{XP+2*c}:{XP+2*c+1}]')
    ln_finalize(e, XP, XP+1, FH, vT+2, vT+3, vT+4, vT+5)
    e(f'v_mul_f32 v{vT+2}, v{vT+2}, v{vT+3}')
    e(f'v_sub_f32 v{vT+2}, 0, v{vT+2}')
    e(f's_lshl_b32 s{s_t0}, s{s_wl}, 8')
    e(f's_add_u32 s{s_t0}, s{s_t0}, {L_W2}')
    e(f'v_and_b32 v{vT+4}, 31, v{vLane}')
    e(f'v_lshlrev_b32 v{vT+4}, 2, v{vT+4}')
    e(f'v_add_u32 v{vT+4}, s{s_t0}, v{vT+4}')
    e(f'ds_write_b32 v{vT+4}, v{vT+2}')
    e(f'ds_write_b32 v{vT+4}, v{vT+3} offset:128')
    e(f's_lshl_b32 s{s_t1}, s{s_wc}, 6')
    e(f's_add_u32 s{s_t0}, s{s_t0}, s{s_t1}')
    e(f'v_lshlrev_b32 v{vT+5}, 4, v{vQ}')
    e(f'v_add_u32 v{vT+5}, s{s_t0}, v{vT+5}')
    e(f'v_xor_b32 v{vT+6}, 64, v{vT+5}')
    e('s_waitcnt lgkmcnt(0)')
    e(f'ds_read_b128 v[{M1}:{M1+3}], v{vT+5}')
    e(f'ds_read_b128 v[{M1+4}:{M1+7}], v{vT+6}')
    e(f'ds_read_b128 v[{R1}:{R1+3}], v{vT+5} offset:128')
    e(f'ds_read_b128 v[{R1+4}:{R1+7}], v{vT+6} offset:128')
    e('s_waitcnt lgkmcnt(0)')
    for ft in range(3):
        for T in range(2):
            for p in range(2):
                a = AP + ft*4 + T*2 + p
                g = G + 4*p
                e(f'v_lshlrev_b32 v{g}, 16, v{a}')
                e(f'v_and_b32 v{g+1}, s{s_mask}, v{a}')
                e(f'v_pk_fma_f32 v[{g}:{g+1}], v[{g}:{g+1}], v[{R1+T*4+2*p}:{R1+T*4+2*p+1}], v[{M1+T*4+2*p}:{M1+T*4+2*p+1}]')
                e(f'v_cvt_pk_bf16_f32 v{a}, v{g}, v{g+1}')
        b = AP + ft*4
        e(f'v_permlane16_swap_b32 v{b}, v{b+2}')
        e(f'v_permlane16_swap_b32 v{b+1}, v{b+3}')
        e(f's_add_u32 s{s_t1}, s{s_off}, {ft*65536}')
        e(f'buffer_store_dwordx4 v[{b}:{b+3}], v{vT+7}, s[{sWS}:{sWS+3}], s{s_t1} offen {STF}')
    stp.flush(e, 0, sWS, vT, s_w)
    e('s_endpgm')

    e.label('K1_B')
    e.c('role B')
    stB = Stamper(); stB.n = 1
    SK = 160; WR = 152; WO = 164
    e(f's_cmp_eq_u32 s{s_w}, 4')
    e('s_cbranch_scc0 K1_NORST')
    e(f's_lshl_b32 s{s_t0}, s{s_rb}, 3')
    e(f's_add_u32 s{s_t0}, s{s_t0}, s{s_cb}')
    e(f's_lshl_b32 s{s_t0}, s{s_t0}, 9')
    e(f's_add_u32 s{s_t0}, s{s_t0}, {XCH}')
    e(f'v_lshlrev_b32 v{vT+1}, 3, v{vLane}')
    e(f'v_mov_b32 v{vT+6}, 0')
    e(f'v_mov_b32 v{vT+7}, {hex(SENT)}')
    e(f'buffer_store_dwordx2 v[{vT+6}:{vT+7}], v{vT+1}, s[{sWS}:{sWS+3}], s{s_t0} offen sc1')
    e.label('K1_NORST')
    DUM = 140
    e(f's_lshl_b32 s{s_t0}, s2, 2')
    e(f's_add_u32 s{s_t0}, s{s_t0}, s{s_wl}')
    e(f's_mul_i32 s{s_t1}, s{s_t0}, 2731')
    e(f's_lshr_b32 s{s_t1}, s{s_t1}, 16')
    e(f's_mul_i32 s{s_t2}, s{s_t1}, 24')
    e(f's_sub_u32 s{s_t2}, s{s_t0}, s{s_t2}')
    e(f's_mov_b32 s{P+16}, s{s_t0}')
    e(f'v_mul_u32_u24 v{vT+3}, {4*1280}, v{vQ}')
    e(f'v_lshlrev_b32 v{vT+4}, 1, v{vL15}')
    e(f'v_add_u32 v{vT+3}, v{vT+3}, v{vT+4}')
    e(f's_lshl_b32 s{s_t1}, s{s_t1}, 5')
    e(f's_mul_i32 s{s_t2}, s{s_t2}, {32*1280}')
    e(f's_add_u32 s{s_t1}, s{s_t1}, s{s_t2}')
    e(f's_add_u32 s{s_t2}, s{s_t1}, {16*1280}')
    bar('B')
    stB.stamp(e)
    srd(e, sT, P+10, FH*D*2)
    for j in range(8):
        so = s_t1 if j < 4 else s_t2
        e(f'buffer_load_ushort v{WR + j}, v{vT+3}, s[{sT}:{sT+3}], s{so} offen offset:{(j%4)*1280}')
    def b_touch(wave, srd_, voff, soff, tag, nrep=1, step=0):
        e(f's_cmp_eq_u32 s{s_wl}, {wave}')
        e(f's_cbranch_scc0 K1_BT{tag}')
        for rep in range(nrep):
            e(f'buffer_load_dword v{DUM+1+rep}, v{voff}, s[{srd_}:{srd_+3}], s{soff} offen')
            if rep + 1 < nrep: e(f's_add_u32 s{soff}, s{soff}, {step}')
        e.label(f'K1_BT{tag}')
    for k in range(1, 10):
        if k == 4:
            e(f's_cmp_eq_u32 s{s_w}, 4')
            e('s_cbranch_scc0 K1_NOCNT')
            e('s_waitcnt vmcnt(0)')
            e(f's_lshl_b32 s{s_off}, s{s_rb}, 2')
            e(f'v_mov_b32 v{vT+6}, s{s_off}')
            e(f'v_mov_b32 v{vT+7}, 1')
            set_exec(e, 1, 0)
            e(f'buffer_atomic_add v{vT+7}, v{vT+6}, s[{sD}:{sD+3}], 0 offen sc1')
            e(f's_mov_b64 exec, s[{s_ex}:{s_ex+1}]')
            e.label('K1_NOCNT')
        if k == 5:
            e(f's_cmp_ge_u32 s{P+16}, 960')
            e('s_cbranch_scc1 K1_NOWOF')
            e('s_waitcnt vmcnt(0)')
            for j in range(4):
                e(f'v_lshl_or_b32 v{WO+j}, v{WR+2*j+1}, 16, v{WR+2*j}')
            e(f'v_lshlrev_b32 v{vT+3}, 4, v{vLane}')
            e(f's_lshl_b32 s{s_t0}, s{P+16}, 10')
            e(f's_add_u32 s{s_t0}, s{s_t0}, {WOF}')
            e(f'buffer_store_dwordx4 v[{WO}:{WO+3}], v{vT+3}, s[{sWS}:{sWS+3}], s{s_t0} offen {STF_EARLY}')
            e.label('K1_NOWOF')
        bar('B')
    init_acc()
    bar('B')
    stB.stamp(e)
    loop(2, 'B')
    stB.stamp(e)
    e.c('B epilogue')
    e(f's_mul_i32 s{s_t0}, s{s_wl}, 192')
    e(f's_add_u32 s{s_t0}, s{s_t0}, {L_CSB}')
    e(f'v_lshlrev_b32 v{vT+4}, 4, v{vQ}')
    e(f'v_add_u32 v{vT+5}, s{s_t0}, v{vT+4}')
    set_exec(e, 0x00010001, 0x00010001)
    for ft in range(3):
        e(f'ds_write_b128 v{vT+5}, v[{CS+ft*4}:{CS+ft*4+3}] offset:{ft*64}')
    e(f's_mov_b64 exec, s[{s_ex}:{s_ex+1}]')
    e(f'v_mov_b32 v{K1V}, {hexf(K1c)}'); e(f'v_mov_b32 v{K1V+1}, {hexf(K1c)}')
    e('s_waitcnt lgkmcnt(0)')
    bar('B')
    e(f's_xor_b32 s{s_t1}, s{s_wl}, 2')
    e(f's_mul_i32 s{s_t1}, s{s_t1}, 192')
    e(f's_add_u32 s{s_t1}, s{s_t1}, {L_CSB}')
    e(f'v_add_u32 v{vT+5}, s{s_t1}, v{vT+4}')
    NC2 = XF
    for ft in range(3):
        e(f'ds_read_b128 v[{NC2+ft*4}:{NC2+ft*4+3}], v{vT+5} offset:{ft*64}')
    MR = WF
    e(f's_lshl_b32 s{s_t0}, s{s_wr}, 7')
    e(f's_lshl_b32 s{s_t1}, s{s_wc}, 6')
    e(f's_add_u32 s{s_t0}, s{s_t0}, s{s_t1}')
    e(f's_add_u32 s{s_t0}, s{s_t0}, {L_M1}')
    e(f'v_lshlrev_b32 v{vT+6}, 2, v{vL15}')
    e(f'v_add_u32 v{vT+6}, s{s_t0}, v{vT+6}')
    e(f'v_xor_b32 v{vT+7}, 64, v{vT+6}')
    e(f'ds_read_b32 v{MR+0}, v{vT+6}')
    e(f'ds_read_b32 v{MR+2}, v{vT+7}')
    e(f'ds_read_b32 v{MR+4}, v{vT+6} offset:256')
    e(f'ds_read_b32 v{MR+6}, v{vT+7} offset:256')
    e(f's_lshl_b32 s{s_t0}, s{s_rb}, 2')
    e(f's_lshl_b32 s{s_t1}, s{s_wr}, 1')
    e(f's_add_u32 s{s_t0}, s{s_t0}, s{s_t1}')
    e(f's_add_u32 s{s_t1}, s{s_t0}, s{s_wc}')
    e(f's_xor_b32 s{s_t2}, s{s_t1}, 1')
    e(f's_mul_i32 s{s_off}, s{s_cb}, 6')
    e(f's_mul_i32 s{s_j}, s{s_wc}, 3')
    e(f's_add_u32 s{s_off}, s{s_off}, s{s_j}')
    e(f's_mul_i32 s{s_t1}, s{s_t1}, 48')
    e(f's_add_u32 s{s_t1}, s{s_t1}, s{s_off}')
    e(f's_lshl_b32 s{s_t1}, s{s_t1}, 9')
    e(f's_add_u32 s{s_t1}, s{s_t1}, {Z1F}')
    e(f's_mul_i32 s{s_t2}, s{s_t2}, 48')
    e(f's_add_u32 s{s_t2}, s{s_t2}, s{s_off}')
    e(f's_lshl_b32 s{s_t2}, s{s_t2}, 9')
    e(f's_add_u32 s{s_t2}, s{s_t2}, {Z1F}')
    e(f'v_lshlrev_b32 v{vT+6}, 3, v{vLane}')
    e('s_waitcnt lgkmcnt(0)')
    for i in range(12):
        e(f'v_add_f32 v{NC2+i}, v{NC2+i}, v{CS+i}')
        e(f'v_sub_f32 v{NC2+i}, 0, v{NC2+i}')
    ZO = AP
    for T in range(2):
        for ft in range(3):
            for p in range(2):
                a = ACC + (T*3+ft)*4 + 2*p
                n = NC2 + ft*4 + 2*p
                m = MR + 2*T; r = MR + 4 + 2*T
                g = G + 4*p
                e(f'v_pk_fma_f32 v[{a}:{a+1}], v[{n}:{n+1}], v[{m}:{m+1}], v[{a}:{a+1}] op_sel_hi:[1,0,1]')
                e(f'v_pk_mul_f32 v[{a}:{a+1}], v[{a}:{a+1}], v[{r}:{r+1}] op_sel_hi:[1,0]')
                gelu_pair(a, g)
                e(f'v_cvt_pk_bf16_f32 v{ZO+(T*3+ft)*2+p}, v{g}, v{g+1}')
            so = s_t1 if T == 0 else s_t2
            z = ZO + (T*3+ft)*2
            e(f'buffer_store_dwordx2 v[{z}:{z+1}], v{vT+6}, s[{sWS}:{sWS+3}], s{so} offen offset:{ft*512} {STF_EARLY}')
    stB.flush(e, 0, sWS, vT, s_w)
    e.label('K1_END')
    e('s_endpgm')
    print('k1 barriers', nbar)
    assert nbar['A'] == nbar['B'] == nbar['L'], nbar
    nn = e.finalize()
    return kernel_wrap('k1_kernel', e.text(), vgpr=168, sgpr=96), nn
```

```python
from common import *
import os
NCONV = 214
GRID2 = 256 + NCONV
LDS2 = 65536
HCP = 4160
CW_U = 4 * HCP
CW_SZ = CW_U + 512 + 4096

def gen_gemm2(e):
    sSP, sWS, sB = 8, 12, 16
    s_tb, s_fb, s_w, s_fh, s_kh = 20, 21, 22, 23, 24
    s_it, s_bw, s_bz, s_t0, s_t1, s_t2, s_m = 25, 26, 27, 28, 29, 30, 31
    s_mask = 32
    P = 36
    vLane, vQ, vL15 = 1, 2, 3
    vD = 4
    vB0, vB1 = 8, 9
    vA = 10
    vT = 14
    Z1 = 24
    BS = 36
    BF = 40
    ACC = 72
    ZA = 120
    e.c('---- gemm2')
    stp = Stamper(); stp.start(e)
    e(f's_load_dwordx4 s[{P}:{P+3}], s[0:1], 64')
    e(f's_load_dwordx2 s[{P+4}:{P+5}], s[0:1], 104')
    e(f'v_and_b32 v{vLane}, 63, v0')
    e(f'v_lshrrev_b32 v{vT}, 6, v0')
    e(f'v_lshrrev_b32 v{vQ}, 4, v{vLane}')
    e(f'v_readfirstlane_b32 s{s_w}, v{vT}')
    e(f'v_and_b32 v{vL15}, 15, v{vLane}')
    e(f's_and_b32 s{s_t0}, s2, 7')
    e(f's_lshr_b32 s{s_t1}, s2, 3')
    e(f's_lshr_b32 s{s_tb}, s{s_t0}, 1')
    e(f's_lshl_b32 s{s_tb}, s{s_tb}, 3')
    e(f's_lshr_b32 s{s_t2}, s{s_t1}, 2')
    e(f's_add_u32 s{s_tb}, s{s_tb}, s{s_t2}')
    e(f's_and_b32 s{s_fb}, s{s_t0}, 1')
    e(f's_lshl_b32 s{s_fb}, s{s_fb}, 2')
    e(f's_and_b32 s{s_t2}, s{s_t1}, 3')
    e(f's_add_u32 s{s_fb}, s{s_fb}, s{s_t2}')
    e(f's_and_b32 s{s_fh}, s{s_w}, 1')
    e(f's_lshr_b32 s{s_kh}, s{s_w}, 1')
    e(f's_mov_b32 s{s_mask}, 0xffff0000')
    e(f's_lshl_b32 s{s_t0}, s{s_tb}, 6')
    e(f's_lshl_b32 s{s_t1}, s{s_w}, 4')
    e(f's_add_u32 s{s_t0}, s{s_t0}, s{s_t1}')
    for t in range(4):
        e(f'v_add_u32 v{vT}, {4*t}, v{vQ}')
        e(f'v_xor_b32 v{vT+1}, v{vT}, v{vL15}')
        e(f'v_lshlrev_b32 v{vT+1}, 4, v{vT+1}')
        e(f'v_add_u32 v{vT}, s{s_t0}, v{vT}')
        e(f'v_lshlrev_b32 v{vT}, 12, v{vT}')
        e(f'v_add_u32 v{vD+t}, v{vT}, v{vT+1}')
    e(f'v_xor_b32 v{vT}, v{vQ}, v{vL15}')
    e(f'v_lshlrev_b32 v{vT}, 4, v{vT}')
    e(f's_lshl_b32 s{s_t0}, s{s_kh}, 6')
    e(f'v_xor_b32 v{vT}, s{s_t0}, v{vT}')
    e(f'v_lshlrev_b32 v{vT+1}, 8, v{vL15}')
    e(f'v_add_u32 v{vB0}, v{vT}, v{vT+1}')
    e(f'v_xor_b32 v{vB1}, 128, v{vB0}')
    e(f's_mul_i32 s{s_t0}, s{s_fb}, 6')
    e(f's_mul_i32 s{s_t1}, s{s_fh}, 3')
    e(f's_add_u32 s{s_t0}, s{s_t0}, s{s_t1}')
    e(f's_mov_b32 s{s_m}, s{s_t0}')
    e(f's_mov_b32 s33, s{s_t0}')
    e(f's_lshl_b32 s{s_t0}, s{s_t0}, 16')
    e(f's_add_u32 s{s_t0}, s{s_t0}, {Z2F}')
    e(f'v_lshlrev_b32 v{vT}, 4, v{vLane}')
    for ft in range(3):
        e(f's_add_u32 s{s_t1}, s{s_t0}, {ft*65536}')
        e(f'v_add_u32 v{vA+ft}, s{s_t1}, v{vT}')
    e('s_waitcnt lgkmcnt(0)')
    srd(e, sSP, P, S*S*2)
    srd(e, sB, P+2, S*2)
    srd(e, sWS, P+4, WS_SIZE)
    def zl(sig, ee):
        L = []
        for ft in range(3):
            z = ZA + ((sig*2+ee)*3+ft)*4
            L.append([f'buffer_load_dwordx4 v[{z}:{z+3}], v{vA+ft}, s[{sWS}:{sWS+3}], s{s_bz if ee == 0 else s_bz2} offen'])
        return L
    def dm(sig, t):
        return [f's_add_u32 m0, s{s_m}, {sig*16384 + t*1024}', 's_nop 0',
                f'buffer_load_dwordx4 v{vD+t}, s[{sSP}:{sSP+3}], s{s_bw} offen lds']
    def brd(buf, vb, sig):
        L = []
        for tt in range(4):
            b = BF + buf*16 + tt*4
            L.append(f'ds_read_b128 v[{b}:{b+3}], v{vb} offset:{sig*16384 + tt*4096}')
        return L
    def mfl(buf, sig, ee):
        L = []
        for tt in range(4):
            for ft in range(3):
                a = ACC + (ft*4+tt)*4
                z = ZA + ((sig*2+ee)*3+ft)*4
                b = BF + buf*16 + tt*4
                L.append(f'v_mfma_f32_16x16x32_bf16 v[{a}:{a+3}], v[{z}:{z+3}], v[{b}:{b+3}], v[{a}:{a+3}]')
        return L
    def set_offsets(s_stage, add):
        e(f's_add_u32 s{s_t1}, s{s_stage}, {add}')
        e(f's_add_u32 s{s_t2}, s{s_t1}, s{s_rot}')
        e(f's_and_b32 s{s_t2}, s{s_t2}, 15')
        e(f's_lshl_b32 s{s_bw}, s{s_t2}, 8')
        e(f's_lshl_b32 s{s_bz}, s{s_t2}, 12')
        e(f's_add_u32 s{s_bz}, s{s_bz}, s{s_kz}')
        e(f's_cmp_lt_u32 s{s_t1}, 16')
        e(f's_cselect_b32 s{s_bw}, s{s_bw}, 0x80000000')
        e(f's_cselect_b32 s{s_bz}, s{s_bz}, 0x80000000')
        e(f's_add_u32 s{s_bz2}, s{s_bz}, 2048')
    s_rot = 41
    e(f's_and_b32 s{s_t0}, s{s_tb}, 7')
    e(f's_lshl_b32 s{s_t0}, s{s_t0}, 1')
    e(f's_and_b32 s{s_t1}, s{s_fb}, 3')
    e(f's_mul_i32 s{s_t1}, s{s_t1}, 5')
    e(f's_add_u32 s{s_rot}, s{s_t0}, s{s_t1}')
    if os.environ.get('ROT2') != '1': e(f's_mov_b32 s{s_rot}, 0')
    s_bz2, s_kz = 35, 40
    e(f's_lshl_b32 s{s_m}, s{s_w}, 12')
    e(f's_lshl_b32 s{s_kz}, s{s_kh}, 10')
    e(f's_mov_b32 s{s_it}, 0')
    for j in range(3):
        set_offsets(s_it, j)
        for grp in (zl(j, 0) + [dm(j, 0), dm(j, 1)] + zl(j, 1) + [dm(j, 2), dm(j, 3)]):
            for x in grp: e(x)
    e(f's_lshl_b32 s{s_t0}, s{s_tb}, 2')
    e(f's_lshl_b32 s{s_t1}, s{s_kh}, 1')
    e(f's_add_u32 s{s_t0}, s{s_t0}, s{s_t1}')
    e(f's_mov_b32 s34, s{s_t0}')
    e(f's_mul_i32 s{s_t1}, s{s_t0}, 48')
    e(f's_add_u32 s{s_t1}, s{s_t1}, s33')
    e(f's_lshl_b32 s{s_t1}, s{s_t1}, 9')
    e(f's_add_u32 s{s_t1}, s{s_t1}, {Z1F}')
    e(f's_add_u32 s{s_t2}, s{s_t1}, {48*512}')
    e(f'v_lshlrev_b32 v{vT}, 3, v{vLane}')
    for u in range(2):
        for ft in range(3):
            z = Z1 + (u*3+ft)*2
            e(f'buffer_load_dwordx2 v[{z}:{z+1}], v{vT}, s[{sWS}:{sWS+3}], s{s_t1 if u==0 else s_t2} offen offset:{ft*512}')
    e(f'v_lshlrev_b32 v{vT+1}, 1, v{vL15}')
    e(f's_lshl_b32 s{s_t0}, s{s_t0}, 5')
    e(f'buffer_load_ushort v{BS}, v{vT+1}, s[{sB}:{sB+3}], s{s_t0} offen')
    e(f'buffer_load_ushort v{BS+1}, v{vT+1}, s[{sB}:{sB+3}], s{s_t0} offen offset:32')

    for i in range(48): e(f'v_mov_b32 v{ACC+i}, 0')
    e('s_waitcnt vmcnt(28)')
    e('s_barrier')
    stp.stamp(e)
    for x in brd(0, vB0, 0): e(x)
    e.label('K2_LOOP')
    for sig in range(4):
        tg = (sig + 3) % 4
        set_offsets(s_it, sig + 3)
        e('s_waitcnt lgkmcnt(0)')
        R = brd(1, vB1, sig)
        V = zl(tg, 0) + [dm(tg, 0), dm(tg, 1)]
        fills = [[] for _ in range(12)]
        for n, r in enumerate(R): fills[n].append(r)
        for n, v in enumerate(V): fills[2 + 2*n] += v
        weave(e, mfl(0, sig, 0), fills)
        e('s_waitcnt vmcnt(15) lgkmcnt(0)')
        e('s_barrier')
        R = brd(0, vB0, (sig+1) % 4)
        V = zl(tg, 1) + [dm(tg, 2), dm(tg, 3)]
        fills = [[] for _ in range(12)]
        for n, r in enumerate(R): fills[n].append(r)
        for n, v in enumerate(V): fills[2 + 2*n] += v
        weave(e, mfl(1, sig, 1), fills)
    e(f's_add_u32 s{s_it}, s{s_it}, 4')
    e(f's_cmp_lt_u32 s{s_it}, 16')
    e('s_cbranch_scc1 K2_LOOP')
    e.c('gemm2 epilogue')
    stp.stamp(e)
    e('s_waitcnt vmcnt(0) lgkmcnt(0)')
    e('s_barrier')
    e(f's_mul_i32 s{s_t0}, s{s_w}, 6144')
    e(f'v_lshlrev_b32 v{vT}, 4, v{vLane}')
    e(f'v_add_u32 v{vT+1}, s{s_t0}, v{vT}')
    e(f's_xor_b32 s{s_t1}, s{s_w}, 2')
    e(f's_mul_i32 s{s_t1}, s{s_t1}, 6144')
    e(f'v_add_u32 v{vT+2}, s{s_t1}, v{vT}')
    e(f's_cmp_eq_u32 s{s_kh}, 0')
    e('s_cbranch_scc0 K2_KH1')
    RX = BF
    OWN = ZA
    for kh in range(2):
        if kh == 1: e.label('K2_KH1')
        for ft in range(3):
            for u in range(2):
                a = ACC + (ft*4 + 2*(1-kh) + u)*4
                e(f'ds_write_b128 v{vT+1}, v[{a}:{a+3}] offset:{(ft*2+u)*1024}')
        for ft in range(3):
            for u in range(2):
                a = ACC + (ft*4 + 2*kh + u)*4
                for r in range(4):
                    e(f'v_mov_b32 v{OWN+(ft*2+u)*4+r}, v{a+r}')
        if kh == 0: e('s_branch K2_KHD')
    e.label('K2_KHD')
    e('s_waitcnt lgkmcnt(0)')
    e('s_barrier')
    for i in range(6):
        e(f'ds_read_b128 v[{RX+i*4}:{RX+i*4+3}], v{vT+2} offset:{i*1024}')
    e(f'v_lshlrev_b32 v{vT+4}, 16, v{BS}')
    e(f'v_lshlrev_b32 v{vT+6}, 16, v{BS+1}')
    e(f'v_lshlrev_b32 v{vT+8}, 4, v{vLane}')
    e('s_waitcnt lgkmcnt(0)')
    for ft in range(3):
        e(f's_add_u32 s{s_t0}, s33, {ft}')
        e(f's_lshr_b32 s{s_t1}, s{s_t0}, 1')
        e(f's_and_b32 s{s_t0}, s{s_t0}, 1')
        e(f's_lshl_b32 s{s_t0}, s{s_t0}, 3')
        e(f's_lshl_b32 s{s_t1}, s{s_t1}, 10')
        e(f's_add_u32 s{s_t0}, s{s_t0}, s{s_t1}')
        e(f's_mul_i32 s{s_t1}, s34, {24*1024}')
        e(f's_add_u32 s{s_t0}, s{s_t0}, s{s_t1}')
        e(f's_add_u32 s{s_t0}, s{s_t0}, {PF}')
        e(f's_add_u32 s{s_t1}, s{s_t0}, {24*1024}')
        for u in range(2):
            o = OWN + (ft*2+u)*4; rx = RX + (ft*2+u)*4; z = Z1 + (u*3+ft)*2
            bb = vT + 4 + 2*u
            for p in range(2):
                g = vT + 10 + 0
                for h in range(2): e(f'v_add_f32 v{o+2*p+h}, v{o+2*p+h}, v{rx+2*p+h}')
                for h in range(2): e(f'v_add_f32 v{o+2*p+h}, v{o+2*p+h}, v{bb}')
                e(f'v_lshlrev_b32 v{rx+2*p}, 16, v{z+p}')
                e(f'v_and_b32 v{rx+2*p+1}, s{s_mask}, v{z+p}')
                for h in range(2): e(f'v_mul_f32 v{o+2*p+h}, v{o+2*p+h}, v{rx+2*p+h}')
                e(f'v_cvt_pk_bf16_f32 v{z+p}, v{o+2*p}, v{o+2*p+1}')
            e(f'buffer_store_dwordx2 v[{z}:{z+1}], v{vT+8}, s[{sWS}:{sWS+3}], s{s_t0 if u==0 else s_t1} offen {STF}')
    stp.flush(e, 1, sWS, vT, s_w)
    e('s_endpgm')

def gen_conv(e):
    sH, sWS, sDd = 8, 12, 16
    s_w, s_d, s_base, s_t0, s_t1, s_p = 20, 21, 22, 23, 24, 25
    s_mask = 26; s_ex = 28
    P = 36
    vLane, vQ, vL15 = 1, 2, 3
    vA, vB = 4, 5
    vT = 6
    HC = 16
    DV = 46
    ACC = 48
    AF = 80
    BFr = 144
    e.c('---- conv')
    e.label('K2_CONV')
    e(f'v_lshrrev_b32 v{vT}, 6, v0')
    e(f'v_and_b32 v{vLane}, 63, v0')
    e(f'v_readfirstlane_b32 s{s_w}, v{vT}')
    e(f's_sub_u32 s{s_t0}, s2, 256')
    e(f's_mul_i32 s{s_d}, s{s_t0}, 3')
    e(f's_add_u32 s{s_d}, s{s_d}, s{s_w}')
    e(f's_cmp_ge_u32 s{s_w}, 3')
    e('s_cbranch_scc1 K2_END')
    e(f's_cmp_ge_u32 s{s_d}, 640')
    e('s_cbranch_scc1 K2_END')
    stp = Stamper(); stp.start(e)
    e(f's_load_dwordx4 s[{P}:{P+3}], s[0:1], 32')
    e(f's_load_dwordx2 s[{P+4}:{P+5}], s[0:1], 104')
    e(f'v_lshrrev_b32 v{vQ}, 4, v{vLane}')
    e(f'v_and_b32 v{vL15}, 15, v{vLane}')
    e(f's_mul_i32 s{s_base}, s{s_w}, {CW_SZ}')
    e(f's_mov_b32 s{s_mask}, 0xffff0000')
    e(f's_mov_b64 s[{s_ex}:{s_ex+1}], exec')
    e('s_waitcnt lgkmcnt(0)')
    e(f's_lshl_b32 s{s_t0}, s{s_d}, 12')
    e(f's_add_u32 s{sH}, s{P}, s{s_t0}')
    e(f's_addc_u32 s{sH+1}, s{P+1}, 0')
    e(f's_and_b32 s{sH+1}, s{sH+1}, 0xffff')
    e(f's_mov_b32 s{sH+2}, 4096')
    e(f's_mov_b32 s{sH+3}, 0x20000')
    srd(e, sWS, P+4, WS_SIZE)
    srd(e, sDd, P+2, D*2)
    e(f'v_lshlrev_b32 v{vT}, 4, v{vLane}')
    e(f's_lshl_b32 s{s_t0}, s{s_d}, 12')
    e(f's_add_u32 s{s_t0}, s{s_t0}, {KVT}')
    for n in range(4):
        e(f's_add_u32 m0, s{s_base}, {CW_U + 512 + n*1024}')
        e(f's_add_u32 s{s_t1}, s{s_t0}, {n*1024}')
        e(f'buffer_load_dwordx4 v{vT}, s[{sWS}:{sWS+3}], s{s_t1} offen lds')
    for n in range(4):
        c = HC + n*6
        e(f'buffer_load_dwordx4 v[{c}:{c+3}], v{vT}, s[{sH}:{sH+3}], 0 offen offset:{n*1024}')
        e(f'buffer_load_dwordx2 v[{c+4}:{c+5}], v{vT}, s[{sH}:{sH+3}], 0 offen offset:{n*1024+16}')
    X = 40
    e(f'v_mov_b32 v{vT+1}, 0')
    e(f'buffer_load_dwordx2 v[{X+4}:{X+5}], v{vT+1}, s[{sH}:{sH+3}], 0 offen')
    e(f's_lshl_b32 s{s_t0}, s{s_d}, 1')
    e(f'buffer_load_ushort v{DV}, v{vT+1}, s[{sDd}:{sDd+3}], s{s_t0} offen')
    e(f'v_mov_b32 v{vT+2}, 0'); e(f'v_mov_b32 v{vT+3}, 0')
    e(f'v_lshlrev_b32 v{vT+4}, 3, v{vLane}')
    e(f'v_add_u32 v{vT+4}, s{s_base}, v{vT+4}')
    e(f'ds_write_b64 v{vT+4}, v[{vT+2}:{vT+3}] offset:{CW_U}')
    e(f'v_add_u32 v{vT+4}, 1, v{vL15}')
    e(f'v_and_b32 v{vT+4}, 3, v{vT+4}')
    e(f'v_lshrrev_b32 v{vT+5}, 1, v{vQ}')
    e(f'v_and_b32 v{vT+6}, 1, v{vQ}')
    e(f'v_lshlrev_b32 v{vT+7}, 4, v{vT+5}')
    e(f'v_add_u32 v{vT+7}, v{vT+7}, v{vL15}')
    e(f'v_lshlrev_b32 v{vT+8}, 3, v{vT+6}')
    e(f'v_sub_u32 v{vT+7}, v{vT+7}, v{vT+8}')
    e(f'v_add_u32 v{vT+7}, 9, v{vT+7}')
    e(f'v_sub_u32 v{vT+7}, v{vT+7}, v{vT+4}')
    e(f'v_lshlrev_b32 v{vT+7}, 1, v{vT+7}')
    e(f'v_mul_u32_u24 v{vT+4}, {HCP}, v{vT+4}')
    e(f'v_add_u32 v{vT+7}, v{vT+7}, v{vT+4}')
    e(f'v_add_u32 v{vA}, s{s_base}, v{vT+7}')
    e(f'v_sub_u32 v{vT+7}, v{vL15}, v{vT+5}')
    e(f'v_lshlrev_b32 v{vT+7}, 1, v{vT+7}')
    e(f'v_add_u32 v{vT+7}, v{vT+7}, v{vT+6}')
    e(f'v_lshlrev_b32 v{vT+7}, 4, v{vT+7}')
    e(f's_add_u32 s{s_t0}, s{s_base}, {CW_U + 512}')
    e(f'v_add_u32 v{vB}, s{s_t0}, v{vT+7}')
    e(f'v_lshlrev_b32 v{vT+4}, 4, v{vLane}')
    e(f'v_add_u32 v{vT+4}, s{s_base}, v{vT+4}')
    TM = AF
    def copies(c, off, k):
        t = TM + k*12
        e(f'v_alignbit_b32 v{t+0}, v{c+1}, v{c+0}, 16')
        e(f'v_alignbit_b32 v{t+1}, v{c+2}, v{c+1}, 16')
        e(f'v_alignbit_b32 v{t+2}, v{c+3}, v{c+2}, 16')
        e(f'v_alignbit_b32 v{t+3}, v{c+4}, v{c+3}, 16')
        e(f'v_mov_b32 v{t+4}, v{c+1}'); e(f'v_mov_b32 v{t+5}, v{c+2}')
        e(f'v_mov_b32 v{t+6}, v{c+3}'); e(f'v_mov_b32 v{t+7}, v{c+4}')
        e(f'v_mov_b32 v{t+8}, v{t+1}'); e(f'v_mov_b32 v{t+9}, v{t+2}'); e(f'v_mov_b32 v{t+10}, v{t+3}')
        e(f'v_alignbit_b32 v{t+11}, v{c+5}, v{c+4}, 16')
        e(f'ds_write_b128 v{vT+4}, v[{c}:{c+3}] offset:{off}')
        e(f'ds_write_b128 v{vT+4}, v[{t}:{t+3}] offset:{off + HCP}')
        e(f'ds_write_b128 v{vT+4}, v[{t+4}:{t+7}] offset:{off + 2*HCP}')
        e(f'ds_write_b128 v{vT+4}, v[{t+8}:{t+11}] offset:{off + 3*HCP}')
    e('s_waitcnt vmcnt(0)')
    stp.stamp(e)
    for n in range(4):
        copies(HC + n*6, 32 + n*1024, n)
        e('s_waitcnt lgkmcnt(4)')
    for i in range(4): e(f'v_mov_b32 v{X+i}, 0')
    e(f'v_cmp_eq_u32 vcc, 1, v{vLane}')
    e(f'v_cndmask_b32 v{X+4}, 0, v{X+4}, vcc')
    e(f'v_cndmask_b32 v{X+5}, 0, v{X+5}, vcc')
    set_exec(e, 3, 0)
    copies(X, 0, 4)
    e(f's_mov_b64 exec, s[{s_ex}:{s_ex+1}]')
    e(f'v_lshlrev_b32 v{DV}, 16, v{DV}')
    for i in range(32): e(f'v_mov_b32 v{ACC+i}, 0')
    e('s_waitcnt lgkmcnt(0)')

    def rd_list(buf):
        L = []
        for m in range(8):
            a = AF + buf*32 + m*4
            L.append(f'ds_read_b64 v[{a}:{a+1}], v{vA} offset:{m*512}')
            L.append(f'ds_read_b64 v[{a+2}:{a+3}], v{vA} offset:{m*512+8}')
            b = BFr + buf*32 + m*4
            L.append(f'ds_read_b128 v[{b}:{b+3}], v{vB} offset:{m*512}')
        return L
    def mf_list(buf):
        L = []
        for m in range(8):
            for c in range(m, 8):
                a = AF + buf*32 + m*4; b = BFr + buf*32 + (c-m)*4; d = ACC + c*4
                L.append(f'v_mfma_f32_16x16x32_bf16 v[{d}:{d+3}], v[{a}:{a+3}], v[{b}:{b+3}], v[{d}:{d+3}]')
        return L
    stp.stamp(e)
    R = rd_list(0)
    for g in range(3):
        for x in R[g*8:(g+1)*8]: e(x)
        e('s_waitcnt lgkmcnt(7)')
    e(f's_mov_b32 s{s_p}, 0')
    e.label('K2_CLOOP')
    for half in range(2):
        e(f'v_add_u32 v{vA}, 64, v{vA}')
        e(f'v_subrev_u32 v{vB}, 64, v{vB}')
        e('s_waitcnt lgkmcnt(0)')
        R = rd_list(1 - half); M = mf_list(half)
        fills = [[] for _ in range(36)]
        for n, r in enumerate(R):
            fills[n].append(r)
            if n % 6 == 5: fills[n].append('s_waitcnt lgkmcnt(9)')
        weave(e, M, fills)
    e(f's_add_u32 s{s_p}, s{s_p}, 2')
    e(f's_cmp_lt_u32 s{s_p}, 8')
    e('s_cbranch_scc1 K2_CLOOP')
    e('s_waitcnt lgkmcnt(0)')
    stp.stamp(e)
    e(f'v_lshlrev_b32 v{vT}, 5, v{vL15}')
    e(f'v_lshrrev_b32 v{vT+1}, 1, v{vQ}')
    e(f'v_lshlrev_b32 v{vT+1}, 4, v{vT+1}')
    e(f'v_add_u32 v{vT}, v{vT}, v{vT+1}')
    e(f'v_and_b32 v{vT+1}, 1, v{vQ}')
    e(f'v_xor_b32 v{vT+1}, 1, v{vT+1}')
    e(f'v_lshlrev_b32 v{vT+1}, 3, v{vT+1}')
    e(f'v_add_u32 v{vT}, v{vT}, v{vT+1}')
    e(f's_add_u32 s{s_t0}, s{s_base}, {CW_U + 512}')
    e(f'v_add_u32 v{vT}, s{s_t0}, v{vT}')
    KV = AF
    for c in range(8):
        e(f'ds_read_b64 v[{KV+2*c}:{KV+2*c+1}], v{vT} offset:{c*512}')
    e(f'v_lshlrev_b32 v{vT+2}, 5, v{vL15}')
    e(f'v_lshlrev_b32 v{vT+3}, 3, v{vQ}')
    e(f'v_add_u32 v{vT+2}, v{vT+2}, v{vT+3}')
    e(f's_lshl_b32 s{s_t0}, s{s_d}, 12')
    e(f's_add_u32 s{s_t0}, s{s_t0}, {YYT}')
    e('s_waitcnt lgkmcnt(0)')
    U = BFr
    for c in range(8):
        a = ACC + c*4; k0 = KV + 2*c; u = U + c*8
        e(f'v_and_b32 v{u+0}, s{s_mask}, v{k0+1}')
        e(f'v_lshlrev_b32 v{u+1}, 16, v{k0+1}')
        e(f'v_and_b32 v{u+2}, s{s_mask}, v{k0}')
        e(f'v_lshlrev_b32 v{u+3}, 16, v{k0}')
        for r in range(4): e(f'v_fmac_f32 v{a+r}, v{u+r}, v{DV}')
        e(f'v_cvt_pk_bf16_f32 v{u+4}, v{a}, v{a+1}')
        e(f'v_cvt_pk_bf16_f32 v{u+5}, v{a+2}, v{a+3}')
        e(f'buffer_store_dwordx2 v[{u+4}:{u+5}], v{vT+2}, s[{sWS}:{sWS+3}], s{s_t0} offen offset:{c*512} {STF_EARLY}')
    stp.flush(e, 1, sWS, vT, s_w)
    e.label('K2_END')
    e('s_endpgm')

def gen_k2():
    e = Emitter()
    e(f's_cmp_ge_u32 s2, {GRID2}')
    e('s_cbranch_scc1 K2_END')
    e('s_cmp_ge_u32 s2, 256')
    e('s_cbranch_scc1 K2_CONV')
    gen_gemm2(e)
    gen_conv(e)
    nn = e.finalize()
    return kernel_wrap('k2_kernel', e.text(), vgpr=256, sgpr=96), nn
```

```python
from common import *
import os
WO_SZ = 122880
XT = WO_SZ
YT = XT + 10240
LDS3 = YT + 10240

def gen_k3():
    e = Emitter()
    sX, sWS, sO = 8, 12, 16
    s_tb, s_db, s_w, s_t0, s_t1, s_t2 = 20, 21, 22, 23, 24, 25
    s_mask = 26; s_ex = 28; s_one = 30; s_nl = 32
    P = 36
    vLane, vQ, vL15 = 1, 2, 3
    vL16 = 4
    vXO = 5
    vYO = 8
    vT = 12
    ST = 24
    AFr = 28
    ACC = 68
    PFR = 88
    E = 184
    e('s_cmp_ge_u32 s2, 256')
    e('s_cbranch_scc1 K3_END')
    stp = Stamper(); stp.start(e)
    e(f's_load_dwordx2 s[{P}:{P+1}], s[0:1], 0')
    e(f's_load_dwordx2 s[{P+2}:{P+3}], s[0:1], 88')
    e(f's_load_dwordx2 s[{P+4}:{P+5}], s[0:1], 104')
    e(f'v_and_b32 v{vLane}, 63, v0')
    e(f'v_lshrrev_b32 v{vT}, 6, v0')
    e(f'v_lshrrev_b32 v{vQ}, 4, v{vLane}')
    e(f'v_readfirstlane_b32 s{s_w}, v{vT}')
    e(f'v_and_b32 v{vL15}, 15, v{vLane}')
    e(f'v_lshlrev_b32 v{vL16}, 4, v{vLane}')
    e(f's_and_b32 s{s_t0}, s2, 7')
    e(f's_lshr_b32 s{s_t1}, s2, 3')
    e(f's_lshr_b32 s{s_tb}, s{s_t0}, 1')
    e(f's_lshl_b32 s{s_tb}, s{s_tb}, 3')
    e(f's_lshr_b32 s{s_t2}, s{s_t1}, 2')
    e(f's_add_u32 s{s_tb}, s{s_tb}, s{s_t2}')
    e(f's_and_b32 s{s_db}, s{s_t0}, 1')
    e(f's_lshl_b32 s{s_db}, s{s_db}, 2')
    e(f's_and_b32 s{s_t2}, s{s_t1}, 3')
    e(f's_add_u32 s{s_db}, s{s_db}, s{s_t2}')
    e(f's_mov_b32 s{s_mask}, 0xffff0000')
    e(f's_mov_b64 s[{s_ex}:{s_ex+1}], exec')
    e('s_waitcnt lgkmcnt(0)')
    srd(e, sX, P, S*D*2)
    srd(e, sO, P+2, S*D*2)
    srd(e, sWS, P+4, WS_SIZE)
    s_tt = 34
    e(f's_lshl_b32 s{s_tt}, s{s_tb}, 2')
    e(f's_add_u32 s{s_tt}, s{s_tt}, s{s_w}')
    s_pb, s_wb = 35, 33
    e(f's_mul_i32 s{s_pb}, s{s_tt}, {24*1024}')
    e(f's_add_u32 s{s_pb}, s{s_pb}, {PF}')
    e(f's_mul_i32 s{s_wb}, s{s_db}, {5*24*1024}')
    e(f's_lshl_b32 s{s_t0}, s{s_w}, 10')
    e(f's_add_u32 s{s_wb}, s{s_wb}, s{s_t0}')
    e(f's_add_u32 s{s_wb}, s{s_wb}, {WOF}')
    s_wl5 = 37
    e(f's_mul_i32 s{s_wl5}, s{s_w}, 5120')
    s_rot = 38; s_g = 39
    e(f's_and_b32 s{s_t0}, s{s_tb}, 7')
    e(f's_and_b32 s{s_t1}, s{s_db}, 3')
    e(f's_lshl_b32 s{s_t1}, s{s_t1}, 1')
    e(f's_add_u32 s{s_rot}, s{s_t0}, s{s_t1}')
    for _ in range(2):
        e(f's_sub_u32 s{s_t0}, s{s_rot}, 6')
        e(f's_cmp_ge_u32 s{s_rot}, 6')
        e(f's_cselect_b32 s{s_rot}, s{s_t0}, s{s_rot}')
    if os.environ.get('ROT3') != '1': e(f's_mov_b32 s{s_rot}, 0')
    def grp_loads(g):
        L = []
        pre = [f's_add_u32 s{s_g}, s{s_rot}, {g}', f's_sub_u32 s{s_t0}, s{s_g}, 6', f's_cmp_ge_u32 s{s_g}, 6',
               f's_cselect_b32 s{s_g}, s{s_t0}, s{s_g}', f's_lshl_b32 s{s_g}, s{s_g}, 12']
        for u in range(5):
            L.append((pre if u == 0 else []) +
                     [f's_add_u32 m0, s{s_wl5}, {(4*g*5 + u)*1024}',
                      f's_add_u32 s{s_t0}, s{s_wb}, {u*24*1024}',
                      f's_add_u32 s{s_t0}, s{s_t0}, s{s_g}',
                      f'buffer_load_dwordx4 v{vL16}, s[{sWS}:{sWS+3}], s{s_t0} offen lds'])
        for k in range(4):
            r = PFR + (4*g+k)*4
            L.append([f's_add_u32 s{s_t0}, s{s_pb}, s{s_g}',
                      f'buffer_load_dwordx4 v[{r}:{r+3}], v{vL16}, s[{sWS}:{sWS+3}], s{s_t0} offen offset:{k*1024}'])
        return L
    for g in range(2):
        for it in grp_loads(g):
            for x in it: e(x)
    e(f's_lshl_b32 s{s_t0}, s{s_tt}, 4')
    e(f's_mul_i32 s{s_t0}, s{s_t0}, 1280')
    e(f's_mul_i32 s{s_t1}, s{s_db}, 160')
    e(f's_add_u32 s{s_t0}, s{s_t0}, s{s_t1}')
    for n in range(3):
        e(f'v_add_u32 v{vT}, {64*n}, v{vLane}')
        e(f'v_mul_u32_u24 v{vT+1}, 6554, v{vT}')
        e(f'v_lshrrev_b32 v{vT+1}, 16, v{vT+1}')
        e(f'v_mul_u32_u24 v{vT+2}, 10, v{vT+1}')
        e(f'v_sub_u32 v{vT+2}, v{vT}, v{vT+2}')
        e(f'v_lshlrev_b32 v{vT+2}, 4, v{vT+2}')
        e(f'v_mul_u32_u24 v{vT+1}, 1280, v{vT+1}')
        e(f'v_add_u32 v{vT+1}, v{vT+1}, v{vT+2}')
        e(f'v_add_u32 v{vXO+n}, s{s_t0}, v{vT+1}')
        e(f'v_lshrrev_b32 v{vT+1}, 1, v{vT}')
        e(f'v_lshlrev_b32 v{vT+1}, 12, v{vT+1}')
        e(f'v_and_b32 v{vT+2}, 1, v{vT}')
        e(f'v_lshlrev_b32 v{vT+2}, 4, v{vT+2}')
        e(f'v_add_u32 v{vYO+n}, v{vT+1}, v{vT+2}')
    s_xl = 36 + 8; s_yo = 36 + 9; s_st = 36 + 10
    e(f's_mul_i32 s{s_xl}, s{s_w}, 2560')
    e(f's_mul_i32 s{s_yo}, s{s_db}, {80*4096}')
    e(f's_lshl_b32 s{s_t1}, s{s_tt}, 5')
    e(f's_add_u32 s{s_yo}, s{s_yo}, s{s_t1}')
    e(f's_add_u32 s{s_yo}, s{s_yo}, {YYT}')
    tail = []
    for n in range(3):
        pre = ['s_mov_b32 exec_hi, 0'] if n == 2 else []
        post = ['s_mov_b32 exec_hi, -1'] if n == 2 else []
        tail.append(pre + [f's_add_u32 m0, s{s_xl}, {XT + n*1024}', 's_nop 0',
                     f'buffer_load_dwordx4 v{vXO+n}, s[{sX}:{sX+3}], 0 offen lds'] + post)
        tail.append(pre + [f's_add_u32 m0, s{s_xl}, {YT + n*1024}', 's_nop 0',
                     f'buffer_load_dwordx4 v{vYO+n}, s[{sWS}:{sWS+3}], s{s_yo} offen lds'] + post)
    e(f'v_lshlrev_b32 v{vT+9}, 3, v{vL15}')
    e(f's_lshl_b32 s{s_st}, s{s_tt}, 7')
    e(f's_add_u32 s{s_st}, s{s_st}, {ST1}')
    tail.append([f'buffer_load_dwordx2 v[{ST}:{ST+1}], v{vT+9}, s[{sWS}:{sWS+3}], s{s_st} offen'])
    for i in range(20): e(f'v_mov_b32 v{ACC+i}, 0')
    def rds(buf, ks):
        L = []
        for dt in range(5):
            a = AFr + buf*20 + dt*4
            L.append(f'ds_read_b128 v[{a}:{a+3}], v{vL16 if (ks*5+dt)*1024 < 65536 else vT+8} offset:{((ks*5+dt)*1024) % 65536}')
        return L
    e(f'v_add_u32 v{vT+8}, 65536, v{vL16}')
    e('s_waitcnt vmcnt(9)')
    e('s_barrier')
    stp.stamp(e)
    for x in rds(0, 0): e(x)
    for ks in range(24):
        buf = ks % 2; g = ks // 4; kk = ks % 4
        pend = grp_loads(g + 2) if g < 4 else (tail if g == 4 else [])
        mine = pend[kk*len(pend)//4:(kk+1)*len(pend)//4]
        nxt = []
        if ks + 1 < 24:
            if kk == 3:
                issued_in_g = (3*len(pend)//4)
                e(f's_waitcnt vmcnt({issued_in_g}) lgkmcnt(0)')
                e('s_barrier')
            else:
                e('s_waitcnt lgkmcnt(0)')
            nxt = rds(1 - buf, ks + 1)
        else:
            e('s_waitcnt lgkmcnt(0)')
        mf = []
        for dt in range(5):
            a = AFr + buf*20 + dt*4; d = ACC + dt*4; p = PFR + ks*4
            mf.append(f'v_mfma_f32_16x16x32_bf16 v[{d}:{d+3}], v[{a}:{a+3}], v[{p}:{p+3}], v[{d}:{d+3}]')
        fills = [[] for _ in range(5)]
        for n, r in enumerate(nxt): fills[n].append(r)
        for n, it in enumerate(mine): fills[min(4, n+1)] += it
        weave(e, mf, fills)
    e.c('k3 epilogue')
    stp.stamp(e)
    e('s_waitcnt vmcnt(0)')
    e(f'v_mul_u32_u24 v{vT}, 160, v{vL15}')
    e(f'v_lshlrev_b32 v{vT+1}, 3, v{vQ}')
    e(f'v_add_u32 v{vT}, v{vT}, v{vT+1}')
    e(f's_add_u32 s{s_t0}, s{s_xl}, {XT}')
    e(f'v_add_u32 v{vT}, s{s_t0}, v{vT}')
    e(f'v_lshlrev_b32 v{vT+1}, 7, v{vQ}')
    e(f'v_lshlrev_b32 v{vT+2}, 3, v{vL15}')
    e(f'v_add_u32 v{vT+1}, v{vT+1}, v{vT+2}')
    e(f's_add_u32 s{s_t0}, s{s_xl}, {YT}')
    e(f'v_add_u32 v{vT+1}, s{s_t0}, v{vT+1}')
    XR = E; YR = E + 10
    for dt in range(5):
        e(f'ds_read_b64 v[{XR+2*dt}:{XR+2*dt+1}], v{vT} offset:{dt*32}')
        e(f'ds_read_b64_tr_b16 v[{YR+2*dt}:{YR+2*dt+1}], v{vT+1} offset:{dt*512}')
    NM = vT + 2
    e(f'v_sub_f32 v{NM}, 0, v{ST}')
    e(f'v_mov_b32 v{vT+4}, v{ST+1}')
    e(f's_mov_b32 s{s_one}, 1.0'); e(f's_mov_b32 s{s_one+1}, 1.0')
    e(f's_mov_b32 s{s_nl}, {hexf(-1.4426950408889634)}');
    e(f'v_mov_b32 v{vT+6}, s{s_nl}'); e(f'v_mov_b32 v{vT+7}, s{s_nl}')
    e('s_waitcnt lgkmcnt(0)')
    W = E + 20
    for dt in range(5):
        for p in range(2):
            a = ACC + dt*4 + 2*p
            x = W + (p*8); y = x + 2; g = x + 4; s = x + 6
            e(f'v_lshlrev_b32 v{x}, 16, v{XR+2*dt+p}')
            e(f'v_and_b32 v{x+1}, s{s_mask}, v{XR+2*dt+p}')
            e(f'v_lshlrev_b32 v{y}, 16, v{YR+2*dt+p}')
            e(f'v_and_b32 v{y+1}, s{s_mask}, v{YR+2*dt+p}')
            e(f'v_pk_mul_f32 v[{g}:{g+1}], v[{a}:{a+1}], v[{vT+6}:{vT+7}]')
            e(f'v_exp_f32 v{g}, v{g}')
            e(f'v_exp_f32 v{g+1}, v{g+1}')
            e(f'v_pk_add_f32 v[{s}:{s+1}], v[{x}:{x+1}], v[{NM}:{NM+1}] op_sel_hi:[1,0]')
            e(f'v_pk_add_f32 v[{g}:{g+1}], v[{g}:{g+1}], s[{s_one}:{s_one+1}]')
            e(f'v_pk_mul_f32 v[{s}:{s+1}], v[{s}:{s+1}], v[{vT+4}:{vT+5}] op_sel_hi:[1,0]')
            e(f'v_rcp_f32 v{g}, v{g}')
            e(f'v_rcp_f32 v{g+1}, v{g+1}')
            e(f'v_pk_mul_f32 v[{s}:{s+1}], v[{s}:{s+1}], v[{y}:{y+1}]')
            e(f'v_pk_mul_f32 v[{g}:{g+1}], v[{g}:{g+1}], v[{a}:{a+1}]')
            e(f'v_pk_fma_f32 v[{s}:{s+1}], v[{s}:{s+1}], v[{g}:{g+1}], v[{x}:{x+1}]')
            e(f'v_cvt_pk_bf16_f32 v{XR+2*dt+p}, v{s}, v{s+1}')
        e(f'ds_write_b64 v{vT}, v[{XR+2*dt}:{XR+2*dt+1}] offset:{dt*32}')
    e('s_waitcnt lgkmcnt(0)')
    e(f's_add_u32 s{s_t0}, s{s_xl}, {XT}')
    e(f'v_add_u32 v{vT+1}, s{s_t0}, v{vL16}')
    OR = W + 16
    for n in range(3):
        e(f'ds_read_b128 v[{OR+4*n}:{OR+4*n+3}], v{vT+1} offset:{n*1024}')
    e('s_waitcnt lgkmcnt(0)')
    for n in range(3):
        if n == 2: set_exec(e, 0xffffffff, 0)
        e(f'buffer_store_dwordx4 v[{OR+4*n}:{OR+4*n+3}], v{vXO+n}, s[{sO}:{sO+3}], 0 offen {STF}')
    e(f's_mov_b64 exec, s[{s_ex}:{s_ex+1}]')
    stp.flush(e, 2, sWS, vT, s_w)
    e.label('K3_END')
    e('s_endpgm')
    nn = e.finalize()
    return kernel_wrap('k3_kernel', e.text(), vgpr=256, sgpr=96), nn
```

```python
from common import *

WSLOT = 12288; NSLOT = 5
XB0 = NSLOT * WSLOT
XST = 8192
PREP = XB0
PREPV = 11520
MISC = XB0 + 10 * XST
L_M1 = MISC; L_R1 = MISC + 256
L_CSA = MISC + 512
L_CSB = MISC + 1280
L_PS = MISC + 2048
L_PQ = MISC + 2560
L_W2 = MISC + 3072
LDS1 = 147456
import os
PREFETCH = os.environ.get('PREFETCH', '1') == '1'
XP_NOPREP = os.environ.get('XP_NOPREP', '0') == '1'
XP_NODOT = os.environ.get('XP_NODOT', '0') == '1'
XP_NOCOMP = os.environ.get('XP_NOCOMP', '0')
BLOCK1 = 768
SENT = 0xbf800000

K1c = -2.0 * 1.4426950408889634 * 0.7978845608028654
K2c = K1c * 0.044715

def gen_k1():
    e = Emitter()
    sX, sW, sWS, sK, sV, sT = 8, 12, 16, 20, 24, 28
    s_rb, s_cb, s_w, s_wr, s_wc, s_wl = 32, 33, 34, 35, 36, 55
    s_i, s_j, s_off, s_t0, s_t1, s_t2 = 37, 38, 39, 40, 41, 42
    s_z2b, s_z1b, s_slot, s_mask = 43, 44, 45, 47
    s_k2 = 48; s_one = 50; s_ex = 52; s_xo = 54
    sD = 4
    P = 56
    vLane, vQ, vL15 = 1, 2, 3
    vXA, vXB, vW = 4, 6, 8
    vT = 14
    XF = 26; WF = 42; ACC = 66; CS = 90; ONE = 102; SUM = 106; GR = 110; AP = 114; E = 126
    nbar = {'A': 0, 'B': 0, 'L': 0}
    def bar(role, name=''):
        e('s_barrier'); nbar[role] += 1

    e.c('---- k1: GEMM1 (LN1 folded) + gelu + LN2 + kv prep + w_out retile ; roles A(0-3) B(4-7) L(8)')
    e('s_cmp_ge_u32 s2, 256')
    e('s_cbranch_scc1 K1_END')
    stp = Stamper(); stp.start(e)
    e(f's_load_dwordx4 s[{P}:{P+3}], s[0:1], 0')
    e(f's_load_dwordx4 s[{P+4}:{P+7}], s[0:1], 16')
    e(f's_load_dwordx2 s[{P+8}:{P+9}], s[0:1], 56')
    e(f's_load_dwordx2 s[{P+10}:{P+11}], s[0:1], 80')
    e(f's_load_dwordx4 s[{P+12}:{P+15}], s[0:1], 96')
    e(f's_load_dwordx2 s[{P+18}:{P+19}], s[0:1], 64')
    e(f's_load_dwordx2 s[{P+20}:{P+21}], s[0:1], 32')
    e(f'v_and_b32 v{vLane}, 63, v0')
    e(f'v_lshrrev_b32 v{vT}, 6, v0')
    e(f'v_lshrrev_b32 v{vQ}, 4, v{vLane}')
    e(f'v_readfirstlane_b32 s{s_w}, v{vT}')
    e(f'v_and_b32 v{vL15}, 15, v{vLane}')
    e(f's_and_b32 s{s_t0}, s2, 7')
    e(f's_lshr_b32 s{s_t1}, s2, 3')
    e(f's_lshr_b32 s{s_rb}, s{s_t0}, 1')
    e(f's_lshl_b32 s{s_rb}, s{s_rb}, 3')
    e(f's_lshr_b32 s{s_t2}, s{s_t1}, 2')
    e(f's_add_u32 s{s_rb}, s{s_rb}, s{s_t2}')
    e(f's_and_b32 s{s_cb}, s{s_t0}, 1')
    e(f's_lshl_b32 s{s_cb}, s{s_cb}, 2')
    e(f's_and_b32 s{s_t2}, s{s_t1}, 3')
    e(f's_add_u32 s{s_cb}, s{s_cb}, s{s_t2}')
    e(f's_and_b32 s{s_wl}, s{s_w}, 3')
    e(f's_lshr_b32 s{s_wr}, s{s_wl}, 1')
    e(f's_and_b32 s{s_wc}, s{s_wl}, 1')
    e(f's_mov_b32 s{s_mask}, 0xffff0000')
    e(f's_mov_b64 s[{s_ex}:{s_ex+1}], exec')
    e(f's_mul_i32 s{s_z1b}, s{s_cb}, 192')
    e(f's_add_u32 s{s_z2b}, s{s_z1b}, {768*2}')
    e(f's_cmp_ge_u32 s{s_w}, 8')
    e('s_cbranch_scc0 K1_AB')

    e.c('loader (4 waves; L = w&3 handles instr n = 4h + L of each stage)')
    stL = Stamper(); stL.n = 1
    vP, vPr = 4, 5
    VX = 8
    VW = 12
    t = 30
    s_L = s_wl
    s_xs, s_ws_, s_lb = s_j, s_off, s_slot
    e(f's_lshl_b32 s{s_t0}, s{s_rb}, 6')
    e(f's_lshl_b32 s{s_t1}, s{s_L}, 3')
    e(f's_add_u32 s{s_t0}, s{s_t0}, s{s_t1}')
    e(f's_lshl_b32 s{s_lb}, s{s_L}, 10')
    e(f'v_lshrrev_b32 v{t}, 3, v{vLane}')
    e(f'v_add_u32 v{t+2}, s{s_t1}, v{t}')
    e(f'v_lshrrev_b32 v{t+1}, 1, v{t+2}')
    e(f'v_xor_b32 v{t+1}, v{t+1}, v{vLane}')
    e(f'v_and_b32 v{t+1}, 7, v{t+1}')
    e(f'v_lshlrev_b32 v{t+1}, 4, v{t+1}')
    e(f'v_add_u32 v{t}, s{s_t0}, v{t}')
    e(f'v_mul_u32_u24 v{t}, 1280, v{t}')
    e(f'v_add_u32 v{VX}, v{t}, v{t+1}')
    e(f'v_add_u32 v{VX+1}, {32*1280}, v{VX}')
    e('s_waitcnt lgkmcnt(0)')
    stL.stamp(e)
    srd(e, sX, P, S*D*2)
    srd(e, sW, P+8, D*F*2)
    cnt = [0]; done_at = {}
    s_rot = s_i
    e(f's_and_b32 s{s_t0}, s{s_rb}, 7')
    e(f's_and_b32 s{s_t1}, s{s_cb}, 3')
    e(f's_mul_i32 s{s_t1}, s{s_t1}, 3')
    e(f's_add_u32 s{s_rot}, s{s_t0}, s{s_t1}')
    e(f's_sub_u32 s{s_t0}, s{s_rot}, 10')
    e(f's_cmp_ge_u32 s{s_rot}, 10')
    e(f's_cselect_b32 s{s_rot}, s{s_t0}, s{s_rot}')
    def kslice(j, dst):
        e(f's_add_u32 s{dst}, s{s_rot}, {j % 10}')
        e(f's_sub_u32 s{s_t0}, s{dst}, 10')
        e(f's_cmp_ge_u32 s{dst}, 10')
        e(f's_cselect_b32 s{dst}, s{s_t0}, s{dst}')
    def issue_x(j):
        kslice(j, s_xs)
        e(f's_lshl_b32 s{s_xs}, s{s_xs}, 7')
        for h in range(2):
            e(f's_add_u32 m0, s{s_lb}, {XB0 + j*XST + 4096*h}')
            e('s_nop 0')
            e(f'buffer_load_dwordx4 v{VX+h}, s[{sX}:{sX+3}], s{s_xs} offen lds')
        cnt[0] += 2
    def issue_w(j):
        base = s_z2b if j < 10 else s_z1b
        kslice(j, s_ws_)
        e(f's_mul_i32 s{s_ws_}, s{s_ws_}, {64*3072}')
        e(f's_add_u32 s{s_ws_}, s{s_ws_}, s{base}')
        for h in range(3):
            e(f's_add_u32 m0, s{s_lb}, {(j % NSLOT)*WSLOT + 4096*h}')
            e('s_nop 0')
            e(f'buffer_load_dwordx4 v{VW+h}, s[{sW}:{sW+3}], s{s_ws_} offen lds')
        cnt[0] += 3
    for h in range(3):
        e(f's_lshl_b32 s{s_t0}, s{s_L}, 6')
        e(f's_add_u32 s{s_t0}, s{s_t0}, {64*4*h}')
        e(f'v_add_u32 v{t}, s{s_t0}, v{vLane}')
        e(f'v_mul_u32_u24 v{t+1}, 5462, v{t}')
        e(f'v_lshrrev_b32 v{t+1}, 16, v{t+1}')
        e(f'v_mul_u32_u24 v{t+2}, 12, v{t+1}')
        e(f'v_sub_u32 v{t+2}, v{t}, v{t+2}')
        e(f'v_lshrrev_b32 v{t+3}, 2, v{t+1}')
        e(f'v_and_b32 v{t+3}, 2, v{t+3}')
        e(f'v_xor_b32 v{t+2}, v{t+2}, v{t+3}')
        e(f'v_lshlrev_b32 v{t+2}, 4, v{t+2}')
        e(f'v_mul_u32_u24 v{t+1}, 3072, v{t+1}')
        e(f'v_add_u32 v{VW+h}, v{t+1}, v{t+2}')
    stL.stamp(e)
    issue_x(0)
    issue_w(0); done_at[0] = cnt[0]
    def issue(j):
        if j < 10: issue_x(j)
        issue_w(j)
        done_at[j] = cnt[0]
    def lbar(k):
        n = cnt[0] - done_at[k]
        e(f's_waitcnt vmcnt({min(n, 63)})'); bar('L')
    def issue_prep():
        e(f'v_mul_u32_u24 v{vPr}, 6554, v{vLane}')
        e(f'v_lshrrev_b32 v{vPr}, 16, v{vPr}')
        e(f'v_mul_u32_u24 v{vP}, 10, v{vPr}')
        e(f'v_sub_u32 v{vP}, v{vLane}, v{vP}')
        e(f'v_lshlrev_b32 v{vP}, 4, v{vP}')
        e(f'v_mul_u32_u24 v{t}, 1280, v{vPr}')
        e(f'v_add_u32 v{vP}, v{vP}, v{t}')
        srd(e, sK, P+2, S*D*2)
        srd(e, sV, P+4, S*D*2)
        set_exec(e, 0xffffffff, 0x0fffffff)
        sa, sb, sc = 46, 78, 79
        e(f's_lshl_b32 s{s_t0}, s{s_rb}, 6')
        e(f's_mul_i32 s{s_t1}, s{s_L}, 6')
        e(f's_add_u32 s{s_t0}, s{s_t0}, s{s_t1}')
        e(f's_mul_i32 s{sa}, s{s_t0}, 1280')
        e(f's_mul_i32 s{s_t1}, s{s_cb}, 160')
        e(f's_add_u32 s{sa}, s{sa}, s{s_t1}')
        e(f's_mul_i32 s{sb}, s{s_L}, 960')
        e(f's_add_u32 s{sb}, s{sb}, {PREP}')
        e(f'v_mov_b32 v{t}, v{vP}')
        e(f's_sub_u32 s{sc}, s{sa}, {3*1280}')
        e(f's_cmp_eq_u32 s{s_t0}, 0')
        e('s_cbranch_scc0 K1_NONNEG')
        e(f'v_subrev_u32 v{t}, {3*1280}, v{vP}')
        e(f'v_cmp_gt_u32 vcc, 3, v{vPr}')
        e(f'v_mov_b32 v{t+1}, 0x80000000')
        e(f'v_cndmask_b32 v{t}, v{t}, v{t+1}, vcc')
        e(f's_mov_b32 s{sc}, s{sa}')
        e.label('K1_NONNEG')
        for n in range(3):
            e(f's_add_u32 m0, s{sb}, {n*3840}')
            e('s_nop 0')
            e(f'buffer_load_dwordx4 v{t if n == 0 else vP}, s[{sK}:{sK+3}], s{sc} offen lds')
            e(f's_add_u32 m0, s{sb}, {n*3840 + PREPV}')
            e('s_nop 0')
            e(f'buffer_load_dwordx4 v{vP}, s[{sV}:{sV+3}], s{sa} offen lds')
            e(f's_add_u32 s{sa}, s{sa}, {24*1280}')
            e(f's_sub_u32 s{sc}, s{sa}, {3*1280}')
        e(f's_mov_b64 exec, s[{s_ex}:{s_ex+1}]')
        cnt[0] += 6
    def prefetch_tail():
        e(f'v_lshlrev_b32 v{t}, 6, v{vLane}')
        e(f's_and_b32 s{s_t0}, s2, 7')
        e(f's_lshl_b32 s{s_t0}, s{s_t0}, 8')
        e(f's_lshr_b32 s{s_t1}, s2, 3')
        e(f's_lshl_b32 s{s_t1}, s{s_t1}, 3')
        e(f's_add_u32 s{s_t0}, s{s_t0}, s{s_t1}')
        e(f's_lshl_b32 s{s_t1}, s{s_L}, 1')
        e(f's_add_u32 s{s_t0}, s{s_t0}, s{s_t1}')
        e(f's_lshl_b32 s{s_t0}, s{s_t0}, 12')
        srd(e, sK, P+18, S*S*2)
        for r in range(2):
            e(f'buffer_load_dword v{t+1+r}, v{t}, s[{sK}:{sK+3}], s{s_t0} offen')
            e(f's_add_u32 s{s_t0}, s{s_t0}, 4096')
        srd(e, sV, P+20, D*S*2)
        e(f's_mul_i32 s{s_t0}, s2, 3')
        e(f's_add_u32 s{s_t0}, s{s_t0}, s{s_L}')
        e(f's_lshl_b32 s{s_t0}, s{s_t0}, 12')
        e(f's_cmp_eq_u32 s{s_L}, 3')
        e(f's_cselect_b32 s{s_t0}, 0x80000000, s{s_t0}')
        e(f'buffer_load_dword v{t+5}, v{t}, s[{sV}:{sV+3}], s{s_t0} offen')
        cnt[0] += 3
    xs = {1: [1, 2], 2: [3, 4], 3: [5, 6], 4: [7, 8], 5: [9]}
    wn = 1
    for k in range(20):
        if k >= 1:
            lim = {1: 2, 2: 4}.get(k, min(19, k + 2 if k <= 5 else k + 3))
            todo_x = list(xs.get(k, []))
            while wn <= lim or todo_x:
                if todo_x: issue_x(todo_x.pop(0))
                if wn <= lim:
                    if wn == 17: issue_prep()
                    issue_w(wn); done_at[wn] = cnt[0]; wn += 1
        lbar(k)
        if k in (0, 1): stL.stamp(e)
    assert wn == 20
    bar('L'); bar('L')
    if STAMPS:
        srd(e, sWS, P+14, WS_SIZE) if False else None
        e(f's_load_dwordx2 s[{P+14}:{P+15}], s[0:1], 104')
        e('s_waitcnt lgkmcnt(0)')
        srd(e, sWS, P+14, WS_SIZE)
        stL.flush(e, 3, sWS, t, s_wl)
    e('s_endpgm')

    e.label('K1_AB')
    e(f'v_lshrrev_b32 v{vT+3}, 1, v{vL15}')
    e(f'v_xor_b32 v{vT+3}, v{vT+3}, v{vQ}')
    e(f'v_lshlrev_b32 v{vT+3}, 4, v{vT+3}')
    e(f'v_lshlrev_b32 v{vT+4}, 7, v{vL15}')
    e(f'v_add_u32 v{vT+3}, v{vT+3}, v{vT+4}')
    e(f'v_xor_b32 v{vT+4}, 64, v{vT+3}')
    e(f's_lshl_b32 s{s_t0}, s{s_wr}, 12')
    e(f's_lshl_b32 s{s_t1}, s{s_wc}, 11')
    e(f's_add_u32 s{s_t2}, s{s_t0}, s{s_t1}')
    e(f's_add_u32 s{s_t2}, s{s_t2}, {XB0}')
    e(f'v_add_u32 v{vXA}, s{s_t2}, v{vT+3}')
    e(f'v_add_u32 v{vXA+1}, s{s_t2}, v{vT+4}')
    e(f's_xor_b32 s{s_t1}, s{s_t1}, 2048')
    e(f's_add_u32 s{s_t2}, s{s_t0}, s{s_t1}')
    e(f's_add_u32 s{s_t2}, s{s_t2}, {XB0}')
    e(f'v_add_u32 v{vXB}, s{s_t2}, v{vT+3}')
    e(f'v_add_u32 v{vXB+1}, s{s_t2}, v{vT+4}')
    e(f'v_lshrrev_b32 v{vT+3}, 2, v{vLane}')
    e(f'v_and_b32 v{vT+3}, 3, v{vT+3}')
    e(f'v_lshlrev_b32 v{vT+4}, 3, v{vQ}')
    e(f'v_add_u32 v{vT+3}, v{vT+3}, v{vT+4}')
    e(f'v_mul_u32_u24 v{vT+3}, 192, v{vT+3}')
    e(f'v_and_b32 v{vT+4}, 3, v{vLane}')
    e(f'v_lshlrev_b32 v{vT+4}, 3, v{vT+4}')
    e(f'v_add_u32 v{vT+3}, v{vT+3}, v{vT+4}')
    e(f'v_and_b32 v{vT+5}, 1, v{vQ}')
    e(f's_mul_i32 s{s_t0}, s{s_wc}, 3')
    for ft in range(3):
        e(f's_add_u32 s{s_t1}, s{s_t0}, {ft}')
        e(f'v_xor_b32 v{vT+4}, s{s_t1}, v{vT+5}')
        e(f'v_lshlrev_b32 v{vT+4}, 5, v{vT+4}')
        e(f'v_add_u32 v{vW+ft}, v{vT+3}, v{vT+4}')
    e(f's_mov_b32 s{s_k2}, {hexf(K2c)}'); e(f's_mov_b32 s{s_k2+1}, {hexf(K2c)}')
    e(f's_mov_b32 s{s_one}, 1.0'); e(f's_mov_b32 s{s_one+1}, 1.0')
    e('s_waitcnt lgkmcnt(0)')
    srd(e, sWS, P+14, WS_SIZE)
    srd(e, sD, P+12, 256)
    e(f's_cmp_ge_u32 s{s_w}, 4')
    e('s_cbranch_scc1 K1_B')

    def rd_list(buf, ksl, xoff, woff):
        L = []
        L.append(f'ds_read_b128 v[{XF+buf*8}:{XF+buf*8+3}], v{vXA+ksl} offset:{xoff}')
        for ft in range(3):
            b = WF + buf*12 + ft*4
            L.append(f'ds_read_b64_tr_b16 v[{b}:{b+1}], v{vW+ft} offset:{woff+ksl*6144}')
            L.append(f'ds_read_b64_tr_b16 v[{b+2}:{b+3}], v{vW+ft} offset:{woff+ksl*6144+768}')
            if ft == 0:
                L.append(f'ds_read_b128 v[{XF+buf*8+4}:{XF+buf*8+7}], v{vXB+ksl} offset:{xoff}')
        return L
    def phase(buf, ksl, p, tag, nxt_reads):
        mf = []
        for ft in range(3):
            for T in range(2):
                a = ACC + (T*3+ft)*4
                x = f'v[{XF+buf*8+T*4}:{XF+buf*8+T*4+3}]'
                w = f'v[{WF+buf*12+ft*4}:{WF+buf*12+ft*4+3}]'
                if p == 1: mf.append(f'v_mfma_f32_16x16x32_bf16 v[{a}:{a+3}], {x}, {w}, v[{a}:{a+3}]')
                else:      mf.append(f'v_mfma_f32_16x16x32_bf16 v[{a}:{a+3}], {w}, {x}, v[{a}:{a+3}]')
        fills = [nxt_reads[0:2], nxt_reads[2:4], nxt_reads[4:6], nxt_reads[6:8], [], []]
        if p == 1 and not XP_NODOT:
            x = f'v[{XF+buf*8}:{XF+buf*8+3}]'
            mf.append(f'v_mfma_f32_16x16x32_bf16 v[{SUM}:{SUM+3}], v[{ONE}:{ONE+3}], {x}, v[{SUM}:{SUM+3}]')
            mf.append(f'v_mfma_f32_16x16x32_bf16 v[{GR}:{GR+3}], {x}, {x}, v[{GR}:{GR+3}]')
        if XP_NOCOMP == '2': fills = [[] for _ in fills]
        if XP_NOCOMP == '3': mf = ['s_nop 0'] * len(mf)
        weave(e, mf, fills)
        e(f's_cmp_eq_u32 s{s_wr}, {ksl}')
        e(f's_cbranch_scc0 K1_SK_{tag}')
        for ft in range(3):
            a = CS + ft*4
            w = f'v[{WF+buf*12+ft*4}:{WF+buf*12+ft*4+3}]'
            o = f'v[{ONE}:{ONE+3}]'
            if p == 1: e(f'v_mfma_f32_16x16x32_bf16 v[{a}:{a+3}], {o}, {w}, v[{a}:{a+3}]')
            else:      e(f'v_mfma_f32_16x16x32_bf16 v[{a}:{a+3}], {w}, {o}, v[{a}:{a+3}]')
        e.label(f'K1_SK_{tag}')
    def init_acc():
        for i in range(4): e(f'v_mov_b32 v{ONE+i}, 0x3f803f80')
        for i in range(24): e(f'v_mov_b32 v{ACC+i}, 0')
        for i in range(12): e(f'v_mov_b32 v{CS+i}, 0')
        for i in range(8): e(f'v_mov_b32 v{SUM+i}, 0')
    def loop(p, role):
        L = f'K1_LOOP{p}'
        if XP_NOCOMP == '1':
            for _ in range(10): bar(role)
            return
        e(f's_mov_b32 s{s_i}, 0')
        for x in rd_list(0, 0, 0, 0): e(x)
        e.label(L)
        for u in range(5):
            e('s_waitcnt lgkmcnt(0)')
            phase(0, 0, p, f'{p}a{u}', rd_list(1, 1, u*XST, u*WSLOT))
            e('s_waitcnt lgkmcnt(0)')
            e('s_barrier')
            if u == 4:
                for r in (vXA, vXA+1, vXB, vXB+1):
                    e(f'v_add_u32 v{r}, {5*XST}, v{r}')
                nx = rd_list(0, 0, 0, 0)
            else:
                nx = rd_list(0, 0, (u+1)*XST, (u+1)*WSLOT)
            phase(1, 1, p, f'{p}b{u}', nx)
            if p == 2 and PREFETCH:
                if u == 0:
                    e(f'buffer_load_dword v146, v145, s[{sT}:{sT+3}], s78 offen')
                    e(f's_add_u32 s78, s78, {16*1280}')
                if u == 1:
                    e(f'buffer_load_dword v147, v145, s[{sT}:{sT+3}], s78 offen')
                    e('s_mov_b32 s78, 0x80000000')
                if u == 2:
                    e(f'buffer_load_dword v148, v144, s[{sK}:{sK+3}], s54 offen')
                    e('s_add_u32 s54, s54, 4096')
                if u == 3:
                    e(f'buffer_load_dword v149, v144, s[{sV}:{sV+3}], s46 offen')
                    e('s_mov_b32 s46, 0x80000000')
        e(f's_add_u32 s{s_i}, s{s_i}, 1')
        e(f's_cmp_lt_u32 s{s_i}, 2')
        e(f's_cbranch_scc1 {L}')
        nbar[role] += 10
    K1V = E + 0
    G = E + 2
    def gelu_pair_sc(t, u):
        for h in range(2):
            e(f'v_mul_f32 v{u+h}, v{t+h}, v{t+h}')
        for h in range(2):
            e(f'v_fma_f32 v{u+h}, v{u+h}, s{s_k2}, v{K1V}')
        for h in range(2):
            e(f'v_mul_f32 v{u+h}, v{u+h}, v{t+h}')
        for h in range(2):
            e(f'v_exp_f32 v{u+h}, v{u+h}')
        for h in range(2):
            e(f'v_add_f32 v{u+h}, 1.0, v{u+h}')
        for h in range(2):
            e(f'v_rcp_f32 v{u+h}, v{u+h}')
        for h in range(2):
            e(f'v_mul_f32 v{u+h}, v{u+h}, v{t+h}')
    def gelu_pair(t, u):
        e(f'v_pk_mul_f32 v[{u}:{u+1}], v[{t}:{t+1}], v[{t}:{t+1}]')
        e(f'v_pk_fma_f32 v[{u}:{u+1}], v[{u}:{u+1}], s[{s_k2}:{s_k2+1}], v[{K1V}:{K1V+1}]')
        e(f'v_pk_mul_f32 v[{u}:{u+1}], v[{u}:{u+1}], v[{t}:{t+1}]')
        e(f'v_exp_f32 v{u}, v{u}')
        e(f'v_exp_f32 v{u+1}, v{u+1}')
        e(f'v_pk_add_f32 v[{u}:{u+1}], v[{u}:{u+1}], s[{s_one}:{s_one+1}]')
        e(f'v_rcp_f32 v{u}, v{u}')
        e(f'v_rcp_f32 v{u+1}, v{u+1}')
        e(f'v_pk_mul_f32 v[{u}:{u+1}], v[{u}:{u+1}], v[{t}:{t+1}]')

    e.c('role A')
    init_acc()
    bar('A')
    stp.stamp(e)
    loop(1, 'A')
    stp.stamp(e)
    e.c('A epilogue')
    e('s_setprio 2')
    e(f's_lshl_b32 s{s_t0}, s{s_rb}, 2')
    e(f'v_mov_b32 v{vT+8}, s{s_t0}')
    PC = vT + 9
    e(f'buffer_load_dword v{PC}, v{vT+8}, s[{sD}:{sD+3}], 0 offen sc1')
    SK = 160
    srd(e, sT, P+6, D*4*2)
    e(f'v_lshlrev_b32 v{vT+3}, 4, v{vLane}')
    e(f's_mul_i32 s{s_t1}, s{s_cb}, 640')
    e(f'buffer_load_dwordx4 v[{SK}:{SK+3}], v{vT+3}, s[{sT}:{sT+3}], s{s_t1} offen')
    e(f'v_and_b32 v{vT}, 3, v{vL15}')
    e(f'v_cmp_eq_u32 vcc, 1, v{vT}')
    e(f'v_cndmask_b32 v{GR}, v{GR}, v{GR+1}, vcc')
    e(f'v_cmp_eq_u32 vcc, 2, v{vT}')
    e(f'v_cndmask_b32 v{GR}, v{GR}, v{GR+2}, vcc')
    e(f'v_cmp_eq_u32 vcc, 3, v{vT}')
    e(f'v_cndmask_b32 v{GR}, v{GR}, v{GR+3}, vcc')
    ln_finalize(e, SUM, GR, D, vT+2, vT+3, vT+4, vT+5)
    e(f's_lshl_b32 s{s_t0}, s{s_wr}, 5')
    e(f's_lshl_b32 s{s_t1}, s{s_wc}, 4')
    e(f's_add_u32 s{s_t0}, s{s_t0}, s{s_t1}')
    e(f'v_add_u32 v{vT+4}, s{s_t0}, v{vL15}')
    e(f'v_lshlrev_b32 v{vT+5}, 2, v{vT+4}')
    e(f'v_add_u32 v{vT+5}, {L_M1}, v{vT+5}')
    set_exec(e, 0x00f0000f, 0xf0000f00)
    e(f'ds_write_b32 v{vT+5}, v{vT+2}')
    e(f'ds_write_b32 v{vT+5}, v{vT+3} offset:256')
    e(f's_cmp_eq_u32 s{s_cb}, 0')
    e('s_cbranch_scc0 K1_NOST1X')
    e(f's_lshl_b32 s{s_t1}, s{s_rb}, 9')
    e(f's_add_u32 s{s_t1}, s{s_t1}, {ST1}')
    e(f'v_lshlrev_b32 v{vT+4}, 3, v{vT+4}')
    e(f'buffer_store_dwordx2 v[{vT+2}:{vT+3}], v{vT+4}, s[{sWS}:{sWS+3}], s{s_t1} offen')
    e.label('K1_NOST1X')
    e(f's_mov_b64 exec, s[{s_ex}:{s_ex+1}]')
    e(f's_mul_i32 s{s_t0}, s{s_wl}, 192')
    e(f's_add_u32 s{s_t0}, s{s_t0}, {L_CSA}')
    e(f'v_lshlrev_b32 v{vT+6}, 2, v{vL15}')
    e(f'v_add_u32 v{vT+6}, s{s_t0}, v{vT+6}')
    for ft in range(3):
        e(f'ds_write_b32 v{vT+6}, v{CS+ft*4} offset:{ft*64}')
    e('s_waitcnt lgkmcnt(0)')
    bar('A')
    e(f's_xor_b32 s{s_t1}, s{s_wl}, 2')
    e(f's_mul_i32 s{s_t1}, s{s_t1}, 192')
    e(f's_add_u32 s{s_t1}, s{s_t1}, {L_CSA}')
    e(f'v_lshlrev_b32 v{vT+4}, 2, v{vL15}')
    e(f'v_add_u32 v{vT+4}, s{s_t1}, v{vT+4}')
    NCS = E + 10
    for ft in range(3):
        e(f'ds_read_b32 v{NCS+2*ft}, v{vT+4} offset:{ft*64}')
    M1 = XF
    R1 = XF + 8
    e(f's_lshl_b32 s{s_t0}, s{s_wr}, 7')
    e(f's_lshl_b32 s{s_t1}, s{s_wc}, 6')
    e(f's_add_u32 s{s_t0}, s{s_t0}, s{s_t1}')
    e(f's_add_u32 s{s_t0}, s{s_t0}, {L_M1}')
    e(f'v_lshlrev_b32 v{vT+5}, 4, v{vQ}')
    e(f'v_add_u32 v{vT+5}, s{s_t0}, v{vT+5}')
    e(f'v_xor_b32 v{vT+6}, 64, v{vT+5}')
    e(f'ds_read_b128 v[{M1}:{M1+3}], v{vT+5}')
    e(f'ds_read_b128 v[{M1+4}:{M1+7}], v{vT+6}')
    e(f'ds_read_b128 v[{R1}:{R1+3}], v{vT+5} offset:256')
    e(f'ds_read_b128 v[{R1+4}:{R1+7}], v{vT+6} offset:256')
    e(f'v_mov_b32 v{K1V}, {hexf(K1c)}'); e(f'v_mov_b32 v{K1V+1}, {hexf(K1c)}')
    SA = WF
    for i in range(16): e(f'v_mov_b32 v{SA+i}, 0')
    e('s_waitcnt lgkmcnt(0)')
    for ft in range(3):
        e(f'v_add_f32 v{NCS+2*ft}, v{NCS+2*ft}, v{CS+ft*4}')
        e(f'v_sub_f32 v{NCS+2*ft}, 0, v{NCS+2*ft}')
    npair = 0
    for ft in range(3):
        for T in range(2):
            for p in range(2):
                a = ACC + (T*3+ft)*4 + 2*p
                n = NCS + 2*ft
                g = G + 4*p
                for h in range(2):
                    e(f'v_fma_f32 v{a+h}, v{M1+T*4+2*p+h}, v{n}, v{a+h}')
                for h in range(2):
                    e(f'v_mul_f32 v{a+h}, v{a+h}, v{R1+T*4+2*p+h}')
                gelu_pair_sc(a, g)
                e(f'v_cvt_pk_bf16_f32 v{AP+ft*4+T*2+p}, v{g}, v{g+1}')
                s_ = SA + T*4 + 2*p
                for h in range(2):
                    e(f'v_add_f32 v{s_+h}, v{s_+h}, v{g+h}')
                for h in range(2):
                    e(f'v_fma_f32 v{s_+8+h}, v{g+h}, v{g+h}, v{s_+8+h}')
                npair += 1
                if npair in (4, 9): bar('A')
    for k, sh in enumerate((8, 4, 2, 1)):
        for i in range(16):
            e(f'v_add_f32_dpp v{SA+i}, v{SA+i}, v{SA+i} row_ror:{sh} row_mask:0xf bank_mask:0xf')
    e(f's_lshl_b32 s{s_t0}, s{s_wc}, 8')
    e(f's_add_u32 s{s_t0}, s{s_t0}, {L_PS - L_M1}')
    e(f'v_add_u32 v{vT+5}, s{s_t0}, v{vT+5}')
    e(f'v_add_u32 v{vT+6}, s{s_t0}, v{vT+6}')
    set_exec(e, 0x00010001, 0x00010001)
    e(f'ds_write_b128 v{vT+5}, v[{SA}:{SA+3}]')
    e(f'ds_write_b128 v{vT+6}, v[{SA+4}:{SA+7}]')
    e(f'ds_write_b128 v{vT+5}, v[{SA+8}:{SA+11}] offset:{L_PQ-L_PS}')
    e(f'ds_write_b128 v{vT+6}, v[{SA+12}:{SA+15}] offset:{L_PQ-L_PS}')
    e(f's_mov_b64 exec, s[{s_ex}:{s_ex+1}]')
    e('s_waitcnt lgkmcnt(0)')
    bar('A')
    e(f's_cmp_eq_u32 s{s_w}, 0')
    e('s_cbranch_scc0 K1_NOPUB')
    e(f'v_lshlrev_b32 v{vT}, 2, v{vLane}')
    e(f'v_add_u32 v{vT}, {L_PS}, v{vT}')
    e(f'ds_read_b32 v{vT+2}, v{vT}')
    e(f'ds_read_b32 v{vT+4}, v{vT} offset:256')
    e(f'ds_read_b32 v{vT+3}, v{vT} offset:{L_PQ-L_PS}')
    e(f'ds_read_b32 v{vT+5}, v{vT} offset:{L_PQ-L_PS+256}')
    e(f's_lshl_b32 s{s_t0}, s{s_rb}, 3')
    e(f's_add_u32 s{s_t0}, s{s_t0}, s{s_cb}')
    e(f's_lshl_b32 s{s_t0}, s{s_t0}, 9')
    e(f's_add_u32 s{s_t0}, s{s_t0}, {XCH}')
    e(f'v_lshlrev_b32 v{vT+1}, 3, v{vLane}')
    e('s_waitcnt lgkmcnt(0)')
    e(f'v_add_f32 v{vT+2}, v{vT+2}, v{vT+4}')
    e(f'v_add_f32 v{vT+3}, v{vT+3}, v{vT+5}')
    e(f'v_max_f32 v{vT+3}, 0, v{vT+3}')
    e(f'buffer_store_dwordx2 v[{vT+2}:{vT+3}], v{vT+1}, s[{sWS}:{sWS+3}], s{s_t0} offen sc1')
    e.label('K1_NOPUB')
    stp.stamp(e)
    e(f's_mul_i32 s{s_t0}, s{s_cb}, 6')
    e(f's_mul_i32 s{s_t1}, s{s_wc}, 3')
    e(f's_add_u32 s{s_t0}, s{s_t0}, s{s_t1}')
    e(f's_lshl_b32 s{s_t0}, s{s_t0}, 6')
    e(f's_lshl_b32 s{s_t1}, s{s_rb}, 1')
    e(f's_add_u32 s{s_t0}, s{s_t0}, s{s_t1}')
    e(f's_add_u32 s{s_t0}, s{s_t0}, s{s_wr}')
    e(f's_lshl_b32 s{s_t0}, s{s_t0}, 10')
    e(f's_add_u32 s{s_off}, s{s_t0}, {Z2F}')
    e(f'v_and_b32 v{vT+7}, 1, v{vQ}')
    e(f'v_lshlrev_b32 v{vT+7}, 1, v{vT+7}')
    e(f'v_lshrrev_b32 v{vT+10}, 1, v{vQ}')
    e(f'v_or_b32 v{vT+7}, v{vT+7}, v{vT+10}')
    e(f's_lshl_b32 s{s_t1}, s{s_wc}, 1')
    e(f'v_xor_b32 v{vT+7}, s{s_t1}, v{vT+7}')
    e(f'v_lshlrev_b32 v{vT+7}, 4, v{vT+7}')
    e(f'v_add_u32 v{vT+7}, v{vT+7}, v{vL15}')
    e(f'v_lshlrev_b32 v{vT+7}, 4, v{vT+7}')
    e(f'v_and_b32 v{vT+10}, 31, v{vLane}')
    e(f's_lshl_b32 s{s_j}, s{s_wr}, 5')
    e(f'v_add_u32 v{vT+10}, s{s_j}, v{vT+10}')
    e(f'v_lshlrev_b32 v{vT+10}, 3, v{vT+10}')
    e(f's_lshl_b32 s{s_j}, s{s_rb}, 12')
    e(f's_add_u32 s{s_j}, s{s_j}, {XCH}')
    bar('A')
    bar('A')
    bar('A')
    KR = 26; VRr = 45; KP = 62; CP = 100; KVP = 126
    e(f's_mul_i32 s{s_t0}, s{s_wl}, {16*160}')
    e(f's_add_u32 s{s_t0}, s{s_t0}, {PREP}')
    e(f'v_lshlrev_b32 v{vT+3}, 2, v{vLane}')
    e(f'v_min_u32 v{vT+3}, 156, v{vT+3}')
    e(f'v_add_u32 v{vT+3}, s{s_t0}, v{vT+3}')
    for r in range(19):
        e(f'ds_read_b32 v{KR+r}, v{vT+3} offset:{r*160}')
        if r == 13: e('s_waitcnt lgkmcnt(6)')
    for r in range(16):
        if r in (2, 10): e('s_waitcnt lgkmcnt(6)')
        e(f'ds_read_b32 v{VRr+r}, v{vT+3} offset:{PREPV + r*160}')
    e('s_waitcnt vmcnt(0)')
    e(f'v_lshlrev_b32 v{CP+0}, 16, v{SK+0}'); e(f'v_lshlrev_b32 v{CP+1}, 16, v{SK+2}')
    e(f'v_and_b32 v{CP+2}, s{s_mask}, v{SK+0}'); e(f'v_and_b32 v{CP+3}, s{s_mask}, v{SK+2}')
    e(f'v_lshlrev_b32 v{CP+4}, 16, v{SK+1}'); e(f'v_lshlrev_b32 v{CP+5}, 16, v{SK+3}')
    e(f'v_and_b32 v{CP+6}, s{s_mask}, v{SK+1}'); e(f'v_and_b32 v{CP+7}, s{s_mask}, v{SK+3}')
    e('s_waitcnt lgkmcnt(12)')
    for r in range(19):
        if r == 12: e('s_waitcnt lgkmcnt(0)')
        e(f'v_lshlrev_b32 v{KP+2*r}, 16, v{KR+r}')
        e(f'v_and_b32 v{KP+2*r+1}, s{s_mask}, v{KR+r}')
    bar('A')
    for i in range(16):
        t_ = KVP + 2*i
        for h in range(2): e(f'v_mul_f32 v{t_+h}, v{CP+6+h}, v{KP+2*i+h}')
        for h in range(2): e(f'v_fmac_f32 v{t_+h}, v{CP+4+h}, v{KP+2*i+2+h}')
        for h in range(2): e(f'v_fmac_f32 v{t_+h}, v{CP+2+h}, v{KP+2*i+4+h}')
        for h in range(2): e(f'v_fmac_f32 v{t_+h}, v{CP+0+h}, v{KP+2*i+6+h}')
        e(f'v_lshlrev_b32 v{vT+4}, 16, v{VRr+i}')
        e(f'v_and_b32 v{vT+5}, s{s_mask}, v{VRr+i}')
        for h in range(2): e(f'v_mul_f32 v{t_+h}, v{t_+h}, v{vT+4+h}')
        if i in (4, 9, 15): bar('A')
    e('s_setprio 0')
    OUT = 26
    for dd in range(2):
        for g in range(2):
            for n in range(4):
                lo = KVP + 2*(8*g + 7 - 2*n) + dd
                hi = KVP + 2*(8*g + 6 - 2*n) + dd
                e(f'v_cvt_pk_bf16_f32 v{OUT + dd*8 + g*4 + n}, v{lo}, v{hi}')
    XP = WF + 2
    for c in range(8):
        e(f'buffer_load_dwordx2 v[{XP+2*c}:{XP+2*c+1}], v{vT+10}, s[{sWS}:{sWS+3}], s{s_j} offen offset:{c*512} sc1')
    e(f'v_lshlrev_b32 v{vT+3}, 13, v{vLane}')
    e(f's_mul_i32 s{s_t0}, s{s_cb}, {80*4096}')
    e(f's_lshl_b32 s{s_t1}, s{s_rb}, 7')
    e(f's_add_u32 s{s_t0}, s{s_t0}, s{s_t1}')
    e(f's_lshl_b32 s{s_t1}, s{s_wl}, 5')
    e(f's_add_u32 s{s_t0}, s{s_t0}, s{s_t1}')
    e(f's_add_u32 s{s_t0}, s{s_t0}, {KVT}')
    e(f's_add_u32 s{s_t1}, s{s_t0}, 4096')
    set_exec(e, 0xffffffff, 0xff)
    e(f'buffer_store_dwordx4 v[{OUT}:{OUT+3}], v{vT+3}, s[{sWS}:{sWS+3}], s{s_t0} offen {STF_EARLY}')
    e(f'buffer_store_dwordx4 v[{OUT+4}:{OUT+7}], v{vT+3}, s[{sWS}:{sWS+3}], s{s_t0} offen offset:16 {STF_EARLY}')
    e(f'buffer_store_dwordx4 v[{OUT+8}:{OUT+11}], v{vT+3}, s[{sWS}:{sWS+3}], s{s_t1} offen {STF_EARLY}')
    e(f'buffer_store_dwordx4 v[{OUT+12}:{OUT+15}], v{vT+3}, s[{sWS}:{sWS+3}], s{s_t1} offen offset:16 {STF_EARLY}')
    e(f's_mov_b64 exec, s[{s_ex}:{s_ex+1}]')
    stp.stamp(e)
    e(f'v_readfirstlane_b32 s{s_t0}, v{PC}')
    e(f's_cmp_ge_u32 s{s_t0}, 8')
    e('s_cbranch_scc1 K1_CPOLLED')
    e.label('K1_CPOLL')
    e('s_sleep 4')
    e(f'buffer_load_dword v{PC}, v{vT+8}, s[{sD}:{sD+3}], 0 offen sc1')
    e('s_waitcnt vmcnt(0)')
    e(f'v_readfirstlane_b32 s{s_t0}, v{PC}')
    e(f's_cmp_ge_u32 s{s_t0}, 8')
    e('s_cbranch_scc0 K1_CPOLL')
    e('s_branch K1_POLL')
    e.label('K1_CPOLLED')
    e('s_waitcnt vmcnt(4)')
    e('s_branch K1_CHECK')
    e.label('K1_POLL')
    for c in range(8):
        e(f'buffer_load_dwordx2 v[{XP+2*c}:{XP+2*c+1}], v{vT+10}, s[{sWS}:{sWS+3}], s{s_j} offen offset:{c*512} sc1')
    e('s_waitcnt vmcnt(0)')
    e.label('K1_CHECK')
    e(f's_mov_b32 s{s_t0}, {hex(SENT)}')
    e(f'v_cmp_eq_u32 vcc, s{s_t0}, v{XP+1}')
    for c in range(1, 8):
        e(f'v_cmp_eq_u32 s[{P}:{P+1}], s{s_t0}, v{XP+2*c+1}')
        e(f's_or_b64 vcc, vcc, s[{P}:{P+1}]')
    e('s_cmp_eq_u64 vcc, 0')
    e('s_cbranch_scc1 K1_POLLED')
    e('s_sleep 2')
    e('s_branch K1_POLL')
    e.label('K1_POLLED')
    for c in range(1, 8):
        e(f'v_pk_add_f32 v[{XP}:{XP+1}], v[{XP}:{XP+1}], v[{XP+2*c}:{XP+2*c+1}]')
    ln_finalize(e, XP, XP+1, FH, vT+2, vT+3, vT+4, vT+5)
    e(f'v_mul_f32 v{vT+2}, v{vT+2}, v{vT+3}')
    e(f'v_sub_f32 v{vT+2}, 0, v{vT+2}')
    e(f's_lshl_b32 s{s_t0}, s{s_wl}, 8')
    e(f's_add_u32 s{s_t0}, s{s_t0}, {L_W2}')
    e(f'v_and_b32 v{vT+4}, 31, v{vLane}')
    e(f'v_lshlrev_b32 v{vT+4}, 2, v{vT+4}')
    e(f'v_add_u32 v{vT+4}, s{s_t0}, v{vT+4}')
    e(f'ds_write_b32 v{vT+4}, v{vT+2}')
    e(f'ds_write_b32 v{vT+4}, v{vT+3} offset:128')
    e(f's_lshl_b32 s{s_t1}, s{s_wc}, 6')
    e(f's_add_u32 s{s_t0}, s{s_t0}, s{s_t1}')
    e(f'v_lshlrev_b32 v{vT+5}, 4, v{vQ}')
    e(f'v_add_u32 v{vT+5}, s{s_t0}, v{vT+5}')
    e(f'v_xor_b32 v{vT+6}, 64, v{vT+5}')
    e('s_waitcnt lgkmcnt(0)')
    e(f'ds_read_b128 v[{M1}:{M1+3}], v{vT+5}')
    e(f'ds_read_b128 v[{M1+4}:{M1+7}], v{vT+6}')
    e(f'ds_read_b128 v[{R1}:{R1+3}], v{vT+5} offset:128')
    e(f'ds_read_b128 v[{R1+4}:{R1+7}], v{vT+6} offset:128')
    e('s_waitcnt lgkmcnt(0)')
    for ft in range(3):
        for T in range(2):
            for p in range(2):
                a = AP + ft*4 + T*2 + p
                g = G + 4*p
                e(f'v_lshlrev_b32 v{g}, 16, v{a}')
                e(f'v_and_b32 v{g+1}, s{s_mask}, v{a}')
                e(f'v_pk_fma_f32 v[{g}:{g+1}], v[{g}:{g+1}], v[{R1+T*4+2*p}:{R1+T*4+2*p+1}], v[{M1+T*4+2*p}:{M1+T*4+2*p+1}]')
                e(f'v_cvt_pk_bf16_f32 v{a}, v{g}, v{g+1}')
        b = AP + ft*4
        e(f'v_permlane16_swap_b32 v{b}, v{b+2}')
        e(f'v_permlane16_swap_b32 v{b+1}, v{b+3}')
        e(f's_add_u32 s{s_t1}, s{s_off}, {ft*65536}')
        e(f'buffer_store_dwordx4 v[{b}:{b+3}], v{vT+7}, s[{sWS}:{sWS+3}], s{s_t1} offen {STF}')
    stp.flush(e, 0, sWS, vT, s_w)
    e('s_endpgm')

    e.label('K1_B')
    e.c('role B')
    stB = Stamper(); stB.n = 1
    SK = 160; WR = 152; WO = 164
    e(f's_cmp_eq_u32 s{s_w}, 4')
    e('s_cbranch_scc0 K1_NORST')
    e(f's_lshl_b32 s{s_t0}, s{s_rb}, 3')
    e(f's_add_u32 s{s_t0}, s{s_t0}, s{s_cb}')
    e(f's_lshl_b32 s{s_t0}, s{s_t0}, 9')
    e(f's_add_u32 s{s_t0}, s{s_t0}, {XCH}')
    e(f'v_lshlrev_b32 v{vT+1}, 3, v{vLane}')
    e(f'v_mov_b32 v{vT+6}, 0')
    e(f'v_mov_b32 v{vT+7}, {hex(SENT)}')
    e(f'buffer_store_dwordx2 v[{vT+6}:{vT+7}], v{vT+1}, s[{sWS}:{sWS+3}], s{s_t0} offen sc1')
    e.label('K1_NORST')
    DUM = 140
    vTP = 144; vKV = 145; s_tpw = 54; s_tps = 46; s_kv = 78
    e(f's_lshl_b32 s{s_t0}, s2, 2')
    e(f's_add_u32 s{s_t0}, s{s_t0}, s{s_wl}')
    e(f's_mul_i32 s{s_t1}, s{s_t0}, 2731')
    e(f's_lshr_b32 s{s_t1}, s{s_t1}, 16')
    e(f's_mul_i32 s{s_t2}, s{s_t1}, 24')
    e(f's_sub_u32 s{s_t2}, s{s_t0}, s{s_t2}')
    e(f's_mov_b32 s{P+16}, s{s_t0}')
    e(f'v_mul_u32_u24 v{vT+3}, {4*1280}, v{vQ}')
    e(f'v_lshlrev_b32 v{vT+4}, 1, v{vL15}')
    e(f'v_add_u32 v{vT+3}, v{vT+3}, v{vT+4}')
    e(f's_lshl_b32 s{s_t1}, s{s_t1}, 5')
    e(f's_mul_i32 s{s_t2}, s{s_t2}, {32*1280}')
    e(f's_add_u32 s{s_t1}, s{s_t1}, s{s_t2}')
    e(f's_add_u32 s{s_t2}, s{s_t1}, {16*1280}')
    bar('B')
    stB.stamp(e)
    srd(e, sT, P+10, FH*D*2)
    for j in range(8):
        so = s_t1 if j < 4 else s_t2
        e(f'buffer_load_ushort v{WR + j}, v{vT+3}, s[{sT}:{sT+3}], s{so} offen offset:{(j%4)*1280}')
    for k in range(1, 10):
        if PREFETCH and k == 8:
            e(f'v_lshrrev_b32 v{vKV}, 2, v{vLane}')
            e(f'v_mul_u32_u24 v{vKV}, 1280, v{vKV}')
            e(f'v_and_b32 v{vT+9}, 3, v{vLane}')
            e(f'v_lshlrev_b32 v{vT+9}, 6, v{vT+9}')
            e(f'v_add_u32 v{vKV}, v{vKV}, v{vT+9}')
            e(f's_lshl_b32 s{s_kv}, s{s_rb}, 6')
            e(f's_lshl_b32 s{s_off}, s{s_wc}, 5')
            e(f's_add_u32 s{s_kv}, s{s_kv}, s{s_off}')
            e(f's_mul_i32 s{s_kv}, s{s_kv}, 1280')
            e(f's_mul_i32 s{s_off}, s{s_cb}, 160')
            e(f's_andn2_b32 s{s_off}, s{s_off}, 63')
            e(f's_add_u32 s{s_kv}, s{s_kv}, s{s_off}')
            e(f's_cmp_eq_u32 s{s_wr}, 0')
            e(f's_cselect_b32 s{P+0}, s{P+2}, s{P+4}')
            e(f's_cselect_b32 s{P+1}, s{P+3}, s{P+5}')
            srd(e, sT, P, S*D*2)
        if PREFETCH and k == 9:
            e(f'v_lshlrev_b32 v{vTP}, 6, v{vLane}')
            e(f's_and_b32 s{s_tpw}, s2, 7')
            e(f's_lshl_b32 s{s_tpw}, s{s_tpw}, 8')
            e(f's_lshr_b32 s{s_off}, s2, 3')
            e(f's_lshl_b32 s{s_off}, s{s_off}, 3')
            e(f's_add_u32 s{s_tpw}, s{s_tpw}, s{s_off}')
            e(f's_lshl_b32 s{s_off}, s{s_wl}, 1')
            e(f's_add_u32 s{s_tpw}, s{s_tpw}, s{s_off}')
            e(f's_lshl_b32 s{s_tpw}, s{s_tpw}, 12')
            srd(e, sK, P+18, S*S*2)
            srd(e, sV, P+20, D*S*2)
            e(f's_mul_i32 s{s_tps}, s2, 3')
            e(f's_add_u32 s{s_tps}, s{s_tps}, s{s_wl}')
            e(f's_lshl_b32 s{s_tps}, s{s_tps}, 12')
            e(f's_cmp_eq_u32 s{s_wl}, 3')
            e(f's_cselect_b32 s{s_tps}, 0x80000000, s{s_tps}')
        if k == 4:
            e(f's_cmp_eq_u32 s{s_w}, 4')
            e('s_cbranch_scc0 K1_NOCNT')
            e('s_waitcnt vmcnt(0)')
            e(f's_lshl_b32 s{s_off}, s{s_rb}, 2')
            e(f'v_mov_b32 v{vT+6}, s{s_off}')
            e(f'v_mov_b32 v{vT+7}, 1')
            set_exec(e, 1, 0)
            e(f'buffer_atomic_add v{vT+7}, v{vT+6}, s[{sD}:{sD+3}], 0 offen sc1')
            e(f's_mov_b64 exec, s[{s_ex}:{s_ex+1}]')
            e.label('K1_NOCNT')
        if k == 5:
            e(f's_cmp_ge_u32 s{P+16}, 960')
            e('s_cbranch_scc1 K1_NOWOF')
            e('s_waitcnt vmcnt(0)')
            for j in range(4):
                e(f'v_lshl_or_b32 v{WO+j}, v{WR+2*j+1}, 16, v{WR+2*j}')
            e(f'v_lshlrev_b32 v{vT+3}, 4, v{vLane}')
            e(f's_lshl_b32 s{s_t0}, s{P+16}, 10')
            e(f's_add_u32 s{s_t0}, s{s_t0}, {WOF}')
            e(f'buffer_store_dwordx4 v[{WO}:{WO+3}], v{vT+3}, s[{sWS}:{sWS+3}], s{s_t0} offen {STF_EARLY}')
            e.label('K1_NOWOF')
        bar('B')
    init_acc()
    bar('B')
    stB.stamp(e)
    loop(2, 'B')
    stB.stamp(e)
    e.c('B epilogue')
    e(f's_mul_i32 s{s_t0}, s{s_wl}, 192')
    e(f's_add_u32 s{s_t0}, s{s_t0}, {L_CSB}')
    e(f'v_lshlrev_b32 v{vT+4}, 4, v{vQ}')
    e(f'v_add_u32 v{vT+5}, s{s_t0}, v{vT+4}')
    set_exec(e, 0x00010001, 0x00010001)
    for ft in range(3):
        e(f'ds_write_b128 v{vT+5}, v[{CS+ft*4}:{CS+ft*4+3}] offset:{ft*64}')
    e(f's_mov_b64 exec, s[{s_ex}:{s_ex+1}]')
    e(f'v_mov_b32 v{K1V}, {hexf(K1c)}'); e(f'v_mov_b32 v{K1V+1}, {hexf(K1c)}')
    e('s_waitcnt lgkmcnt(0)')
    bar('B')
    e(f's_xor_b32 s{s_t1}, s{s_wl}, 2')
    e(f's_mul_i32 s{s_t1}, s{s_t1}, 192')
    e(f's_add_u32 s{s_t1}, s{s_t1}, {L_CSB}')
    e(f'v_add_u32 v{vT+5}, s{s_t1}, v{vT+4}')
    NC2 = XF
    for ft in range(3):
        e(f'ds_read_b128 v[{NC2+ft*4}:{NC2+ft*4+3}], v{vT+5} offset:{ft*64}')
    MR = WF
    e(f's_lshl_b32 s{s_t0}, s{s_wr}, 7')
    e(f's_lshl_b32 s{s_t1}, s{s_wc}, 6')
    e(f's_add_u32 s{s_t0}, s{s_t0}, s{s_t1}')
    e(f's_add_u32 s{s_t0}, s{s_t0}, {L_M1}')
    e(f'v_lshlrev_b32 v{vT+6}, 2, v{vL15}')
    e(f'v_add_u32 v{vT+6}, s{s_t0}, v{vT+6}')
    e(f'v_xor_b32 v{vT+7}, 64, v{vT+6}')
    e(f'ds_read_b32 v{MR+0}, v{vT+6}')
    e(f'ds_read_b32 v{MR+2}, v{vT+7}')
    e(f'ds_read_b32 v{MR+4}, v{vT+6} offset:256')
    e(f'ds_read_b32 v{MR+6}, v{vT+7} offset:256')
    e(f's_lshl_b32 s{s_t0}, s{s_rb}, 2')
    e(f's_lshl_b32 s{s_t1}, s{s_wr}, 1')
    e(f's_add_u32 s{s_t0}, s{s_t0}, s{s_t1}')
    e(f's_add_u32 s{s_t1}, s{s_t0}, s{s_wc}')
    e(f's_xor_b32 s{s_t2}, s{s_t1}, 1')
    e(f's_mul_i32 s{s_off}, s{s_cb}, 6')
    e(f's_mul_i32 s{s_j}, s{s_wc}, 3')
    e(f's_add_u32 s{s_off}, s{s_off}, s{s_j}')
    e(f's_mul_i32 s{s_t1}, s{s_t1}, 48')
    e(f's_add_u32 s{s_t1}, s{s_t1}, s{s_off}')
    e(f's_lshl_b32 s{s_t1}, s{s_t1}, 9')
    e(f's_add_u32 s{s_t1}, s{s_t1}, {Z1F}')
    e(f's_mul_i32 s{s_t2}, s{s_t2}, 48')
    e(f's_add_u32 s{s_t2}, s{s_t2}, s{s_off}')
    e(f's_lshl_b32 s{s_t2}, s{s_t2}, 9')
    e(f's_add_u32 s{s_t2}, s{s_t2}, {Z1F}')
    e(f'v_lshlrev_b32 v{vT+6}, 3, v{vLane}')
    e('s_waitcnt lgkmcnt(0)')
    for i in range(12):
        e(f'v_add_f32 v{NC2+i}, v{NC2+i}, v{CS+i}')
        e(f'v_sub_f32 v{NC2+i}, 0, v{NC2+i}')
    ZO = AP
    for T in range(2):
        for ft in range(3):
            for p in range(2):
                a = ACC + (T*3+ft)*4 + 2*p
                n = NC2 + ft*4 + 2*p
                m = MR + 2*T; r = MR + 4 + 2*T
                g = G + 4*p
                e(f'v_pk_fma_f32 v[{a}:{a+1}], v[{n}:{n+1}], v[{m}:{m+1}], v[{a}:{a+1}] op_sel_hi:[1,0,1]')
                e(f'v_pk_mul_f32 v[{a}:{a+1}], v[{a}:{a+1}], v[{r}:{r+1}] op_sel_hi:[1,0]')
                gelu_pair(a, g)
                e(f'v_cvt_pk_bf16_f32 v{ZO+(T*3+ft)*2+p}, v{g}, v{g+1}')
            so = s_t1 if T == 0 else s_t2
            z = ZO + (T*3+ft)*2
            e(f'buffer_store_dwordx2 v[{z}:{z+1}], v{vT+6}, s[{sWS}:{sWS+3}], s{so} offen offset:{ft*512} {STF_EARLY}')
    stB.flush(e, 0, sWS, vT, s_w)
    e.label('K1_END')
    e('s_endpgm')
    print('k1 barriers', nbar)
    assert nbar['A'] == nbar['B'] == nbar['L'], nbar
    nn = e.finalize()
    return kernel_wrap('k1_kernel', e.text(), vgpr=168, sgpr=96), nn
```

```python
from emit import Emitter
S = 2048; D = 640; F = 1536; FH = 768
KA = dict(q=0, k=8, v=16, shift_k=24, ssm_k=32, ssm_D=40, B_x=48, w_in=56, w_sp=64, b_sp=72, w_out=80, out=88, dbg=96, ws=104)
Z1F = 0x0000000
Z2F = 0x0300000
KVT = 0x0600000
YYT = 0x0900000
PF  = 0x0C00000
WOF = 0x0F00000
ST1 = 0x1000000
XCH = 0x1010000
FL1 = 0x1040000
FL2A = 0x1040400
FL2B = 0x1040800
FLKV = 0x1040c00
WS_SIZE = 0x1200000
SRD3 = 0x00020000

import struct
def f32bits(x): return struct.unpack('<I', struct.pack('<f', x))[0]
def hexf(x): return '0x%08x' % f32bits(x)

def vr(a, n=1):
    return f'v{a}' if n == 1 else f'v[{a}:{a+n-1}]'
def sr(a, n=1):
    return f's{a}' if n == 1 else f's[{a}:{a+n-1}]'

def srd(e, dst, lo, size):
    e(f's_mov_b32 s{dst}, s{lo}')
    e(f's_and_b32 s{dst+1}, s{lo+1}, 0xffff')
    e(f's_mov_b32 s{dst+2}, {size}')
    e(f's_mov_b32 s{dst+3}, 0x20000')

def kernel_wrap(name, body, vgpr, sgpr=96):
    accum = (vgpr + 3) // 4 * 4
    return f""".globl {name}
.p2align 8
.type {name},@function
{name}:
{body}
.section .rodata,"a"
.p2align 6
.amdhsa_kernel {name}
  .amdhsa_next_free_vgpr {vgpr}
  .amdhsa_next_free_sgpr {sgpr}
  .amdhsa_accum_offset {accum}
  .amdhsa_group_segment_fixed_size 0
  .amdhsa_kernarg_size 112
  .amdhsa_user_sgpr_count 2
  .amdhsa_user_sgpr_kernarg_segment_ptr 1
  .amdhsa_system_sgpr_workgroup_id_x 1
  .amdhsa_float_denorm_mode_32 3
.end_amdhsa_kernel
.text
"""

def round_bf16(e, v, tmp=None):
    e(f'v_cvt_pk_bf16_f32 v{v}, v{v}, v{v}')
    e(f'v_lshlrev_b32 v{v}, 16, v{v}')

def ln_finalize(e, vsum, vsq, n, vm, vr_, t0, t1):
    inv = 1.0 / n
    e(f'v_mul_f32 v{vm}, {hexf(inv)}, v{vsum}')
    e(f'v_mul_f32 v{t0}, {hexf(inv)}, v{vsq}')
    e(f'v_fma_f32 v{t0}, -v{vm}, v{vm}, v{t0}')
    e(f'v_max_f32 v{t0}, 0, v{t0}')
    round_bf16(e, vm)
    round_bf16(e, t0)
    e(f'v_add_f32 v{t0}, {hexf(1e-5)}, v{t0}')
    round_bf16(e, t0)
    e(f'v_sqrt_f32 v{t0}, v{t0}')
    round_bf16(e, t0)
    e(f'v_rcp_f32 v{vr_}, v{t0}')

def set_exec(e, lo, hi):
    e(f's_mov_b32 exec_lo, {hex(lo)}')
    e(f's_mov_b32 exec_hi, {hex(hi)}')

import os
STAMPS = os.environ.get('STAMPS', '0') == '1'
TSB = 0x1080000
class Stamper:
    def __init__(self): self.n = 0; self.mute = False
    def start(self, e):
        if not STAMPS: return
        e('s_memrealtime s[94:95]')
        self.stamp(e)
    def stamp(self, e):
        if not STAMPS or self.mute: return
        assert self.n < 7
        e(f's_memtime s[{80+2*self.n}:{81+2*self.n}]')
        self.n += 1
    def flush(self, e, launch, srd_ws, vt, wave_sgpr):
        if not STAMPS: return
        self.mute = False
        self.stamp(e)
        e('s_memrealtime s[76:77]')
        e('s_waitcnt lgkmcnt(0)')
        e(f's_lshl_b32 s79, s2, 3')
        e(f's_add_u32 s79, s79, s{wave_sgpr}')
        e(f's_lshl_b32 s79, s79, 6')
        e(f's_add_u32 s79, s79, {TSB + launch*0x40000}')
        e(f'v_mov_b32 v{vt}, 0')
        e('s_mov_b32 exec_lo, 1'); e('s_mov_b32 exec_hi, 0')
        vals = [80+2*i for i in range(self.n)] + [94, 76]
        for i, s in enumerate(vals):
            slot = i if i < self.n else (14 + i - self.n)
            e(f'v_mov_b32 v{vt+1}, s{s}')
            e(f'buffer_store_dword v{vt+1}, v{vt}, s[{srd_ws}:{srd_ws+3}], s79 offen offset:{4*slot}')

def weave(e, mf, fills):
    for i, m in enumerate(mf):
        e(m)
        if i < len(fills):
            for x in fills[i]: e(x)
    for f in fills[len(mf):]:
        for x in f: e(x)
def spread(items, nslots, front=None):
    out = [[] for _ in range(nslots)]
    n = len(items)
    k = 0
    for i in range(nslots):
        take = -(-(n - k) // (nslots - i))
        out[i] = items[k:k+take]; k += take
    return out

STF = os.environ.get('STF', '')
STF_EARLY = os.environ.get('STF_EARLY', '')
NT1 = 'nt' if os.environ.get('NT', '0') == '1' else ''
NT2 = 'nt' if os.environ.get('NT2', '0') == '1' else ''
NT3 = 'nt' if os.environ.get('NT3', '0') == '1' else ''
```

```python
from common import *

WSLOT = 12288; NSLOT = 5
XB0 = NSLOT * WSLOT
XST = 8192
PREP = XB0
PREPV = 11520
MISC = XB0 + 10 * XST
L_M1 = MISC; L_R1 = MISC + 256
L_CSA = MISC + 512
L_CSB = MISC + 1280
L_PS = MISC + 2048
L_PQ = MISC + 2560
L_W2 = MISC + 3072
LDS1 = 147456
import os
PREFETCH = os.environ.get('PREFETCH', '1') == '1'
XP_NOPREP = os.environ.get('XP_NOPREP', '0') == '1'
XP_NODOT = os.environ.get('XP_NODOT', '0') == '1'
XP_NOCOMP = os.environ.get('XP_NOCOMP', '0')
BLOCK1 = 768
SENT = 0xbf800000

K1c = -2.0 * 1.4426950408889634 * 0.7978845608028654
K2c = K1c * 0.044715

KVS = 86016; KVP_ = 144; Z1L = 147456
def gen_k1(e=None, fused=False, H=None):
    if e is None: e = Emitter()
    SC = 'sc1' if fused else ''
    sX, sW, sWS, sK, sV, sT = 8, 12, 16, 20, 24, 28
    s_rb, s_cb, s_w, s_wr, s_wc, s_wl = 32, 33, 34, 35, 36, 55
    s_i, s_j, s_off, s_t0, s_t1, s_t2 = 37, 38, 39, 40, 41, 42
    s_z2b, s_z1b, s_slot, s_mask = 43, 44, 45, 47
    s_k2 = 48; s_one = 50; s_ex = 52; s_xo = 54
    sD = 4
    P = 56
    vLane, vQ, vL15 = 1, 2, 3
    vXA, vXB, vW = 4, 6, 8
    vT = 14
    XF = 26; WF = 42; ACC = 66; CS = 90; ONE = 102; SUM = 106; GR = 110; AP = 114; E = 126
    nbar = {'A': 0, 'B': 0, 'L': 0}
    def bar(role, name=''):
        e('s_barrier'); nbar[role] = nbar.get(role, 0) + 1

    e.c('---- k1: GEMM1 (LN1 folded) + gelu + LN2 + kv prep + w_out retile ; roles A(0-3) B(4-7) L(8)')
    e('s_cmp_ge_u32 s2, 256')
    e('s_cbranch_scc1 K1_END')
    stp = Stamper(); stp.start(e)
    stp.mute = fused
    e(f's_load_dwordx4 s[{P}:{P+3}], s[0:1], 0')
    e(f's_load_dwordx4 s[{P+4}:{P+7}], s[0:1], 16')
    e(f's_load_dwordx2 s[{P+8}:{P+9}], s[0:1], 56')
    e(f's_load_dwordx2 s[{P+10}:{P+11}], s[0:1], 80')
    e(f's_load_dwordx4 s[{P+12}:{P+15}], s[0:1], 96')
    e(f's_load_dwordx2 s[{P+18}:{P+19}], s[0:1], 64')
    e(f's_load_dwordx2 s[{P+20}:{P+21}], s[0:1], 32')
    e(f'v_and_b32 v{vLane}, 63, v0')
    e(f'v_lshrrev_b32 v{vT}, 6, v0')
    e(f'v_lshrrev_b32 v{vQ}, 4, v{vLane}')
    e(f'v_readfirstlane_b32 s{s_w}, v{vT}')
    e(f'v_and_b32 v{vL15}, 15, v{vLane}')
    e(f's_and_b32 s{s_t0}, s2, 7')
    e(f's_lshr_b32 s{s_t1}, s2, 3')
    e(f's_lshr_b32 s{s_rb}, s{s_t0}, 1')
    e(f's_lshl_b32 s{s_rb}, s{s_rb}, 3')
    e(f's_lshr_b32 s{s_t2}, s{s_t1}, 2')
    e(f's_add_u32 s{s_rb}, s{s_rb}, s{s_t2}')
    e(f's_and_b32 s{s_cb}, s{s_t0}, 1')
    e(f's_lshl_b32 s{s_cb}, s{s_cb}, 2')
    e(f's_and_b32 s{s_t2}, s{s_t1}, 3')
    e(f's_add_u32 s{s_cb}, s{s_cb}, s{s_t2}')
    e(f's_and_b32 s{s_wl}, s{s_w}, 3')
    e(f's_lshr_b32 s{s_wr}, s{s_wl}, 1')
    e(f's_and_b32 s{s_wc}, s{s_wl}, 1')
    e(f's_mov_b32 s{s_mask}, 0xffff0000')
    e(f's_mov_b64 s[{s_ex}:{s_ex+1}], exec')
    e(f's_mul_i32 s{s_z1b}, s{s_cb}, 192')
    e(f's_add_u32 s{s_z2b}, s{s_z1b}, {768*2}')
    e(f's_cmp_ge_u32 s{s_w}, 8')
    e('s_cbranch_scc0 K1_AB')

    e.c('loader (4 waves; L = w&3 handles instr n = 4h + L of each stage)')
    stL = Stamper(); stL.n = 1; stL.mute = fused
    vP, vPr = 4, 5
    VX = 8
    VW = 12
    t = 30
    s_L = s_wl
    s_xs, s_ws_, s_lb = s_j, s_off, s_slot
    e(f's_lshl_b32 s{s_t0}, s{s_rb}, 6')
    e(f's_lshl_b32 s{s_t1}, s{s_L}, 3')
    e(f's_add_u32 s{s_t0}, s{s_t0}, s{s_t1}')
    e(f's_lshl_b32 s{s_lb}, s{s_L}, 10')
    e(f'v_lshrrev_b32 v{t}, 3, v{vLane}')
    e(f'v_add_u32 v{t+2}, s{s_t1}, v{t}')
    e(f'v_lshrrev_b32 v{t+1}, 1, v{t+2}')
    e(f'v_xor_b32 v{t+1}, v{t+1}, v{vLane}')
    e(f'v_and_b32 v{t+1}, 7, v{t+1}')
    e(f'v_lshlrev_b32 v{t+1}, 4, v{t+1}')
    e(f'v_add_u32 v{t}, s{s_t0}, v{t}')
    e(f'v_mul_u32_u24 v{t}, 1280, v{t}')
    e(f'v_add_u32 v{VX}, v{t}, v{t+1}')
    e(f'v_add_u32 v{VX+1}, {32*1280}, v{VX}')
    e('s_waitcnt lgkmcnt(0)')
    stL.stamp(e)
    srd(e, sX, P, S*D*2)
    srd(e, sW, P+8, D*F*2)
    cnt = [0]; done_at = {}
    s_rot = s_i
    e(f's_and_b32 s{s_t0}, s{s_rb}, 7')
    e(f's_and_b32 s{s_t1}, s{s_cb}, 3')
    e(f's_mul_i32 s{s_t1}, s{s_t1}, 3')
    e(f's_add_u32 s{s_rot}, s{s_t0}, s{s_t1}')
    e(f's_sub_u32 s{s_t0}, s{s_rot}, 10')
    e(f's_cmp_ge_u32 s{s_rot}, 10')
    e(f's_cselect_b32 s{s_rot}, s{s_t0}, s{s_rot}')
    def kslice(j, dst):
        e(f's_add_u32 s{dst}, s{s_rot}, {j % 10}')
        e(f's_sub_u32 s{s_t0}, s{dst}, 10')
        e(f's_cmp_ge_u32 s{dst}, 10')
        e(f's_cselect_b32 s{dst}, s{s_t0}, s{dst}')
    def issue_x(j):
        kslice(j, s_xs)
        e(f's_lshl_b32 s{s_xs}, s{s_xs}, 7')
        for h in range(2):
            e(f's_add_u32 m0, s{s_lb}, {XB0 + j*XST + 4096*h}')
            e('s_nop 0')
            e(f'buffer_load_dwordx4 v{VX+h}, s[{sX}:{sX+3}], s{s_xs} offen lds')
        cnt[0] += 2
    def issue_w(j):
        base = s_z2b if j < 10 else s_z1b
        kslice(j, s_ws_)
        e(f's_mul_i32 s{s_ws_}, s{s_ws_}, {64*3072}')
        e(f's_add_u32 s{s_ws_}, s{s_ws_}, s{base}')
        for h in range(3):
            e(f's_add_u32 m0, s{s_lb}, {(j % NSLOT)*WSLOT + 4096*h}')
            e('s_nop 0')
            e(f'buffer_load_dwordx4 v{VW+h}, s[{sW}:{sW+3}], s{s_ws_} offen lds')
        cnt[0] += 3
    for h in range(3):
        e(f's_lshl_b32 s{s_t0}, s{s_L}, 6')
        e(f's_add_u32 s{s_t0}, s{s_t0}, {64*4*h}')
        e(f'v_add_u32 v{t}, s{s_t0}, v{vLane}')
        e(f'v_mul_u32_u24 v{t+1}, 5462, v{t}')
        e(f'v_lshrrev_b32 v{t+1}, 16, v{t+1}')
        e(f'v_mul_u32_u24 v{t+2}, 12, v{t+1}')
        e(f'v_sub_u32 v{t+2}, v{t}, v{t+2}')
        e(f'v_lshrrev_b32 v{t+3}, 2, v{t+1}')
        e(f'v_and_b32 v{t+3}, 2, v{t+3}')
        e(f'v_xor_b32 v{t+2}, v{t+2}, v{t+3}')
        e(f'v_lshlrev_b32 v{t+2}, 4, v{t+2}')
        e(f'v_mul_u32_u24 v{t+1}, 3072, v{t+1}')
        e(f'v_add_u32 v{VW+h}, v{t+1}, v{t+2}')
    stL.stamp(e)
    issue_x(0)
    issue_w(0); done_at[0] = cnt[0]
    def issue(j):
        if j < 10: issue_x(j)
        issue_w(j)
        done_at[j] = cnt[0]
    def lbar(k):
        n = cnt[0] - done_at[k]
        e(f's_waitcnt vmcnt({min(n, 63)})'); bar('L')
    def issue_prep():
        e(f'v_mul_u32_u24 v{vPr}, 6554, v{vLane}')
        e(f'v_lshrrev_b32 v{vPr}, 16, v{vPr}')
        e(f'v_mul_u32_u24 v{vP}, 10, v{vPr}')
        e(f'v_sub_u32 v{vP}, v{vLane}, v{vP}')
        e(f'v_lshlrev_b32 v{vP}, 4, v{vP}')
        e(f'v_mul_u32_u24 v{t}, 1280, v{vPr}')
        e(f'v_add_u32 v{vP}, v{vP}, v{t}')
        srd(e, sK, P+2, S*D*2)
        srd(e, sV, P+4, S*D*2)
        set_exec(e, 0xffffffff, 0x0fffffff)
        sa, sb, sc = 46, 78, 79
        e(f's_lshl_b32 s{s_t0}, s{s_rb}, 6')
        e(f's_mul_i32 s{s_t1}, s{s_L}, 6')
        e(f's_add_u32 s{s_t0}, s{s_t0}, s{s_t1}')
        e(f's_mul_i32 s{sa}, s{s_t0}, 1280')
        e(f's_mul_i32 s{s_t1}, s{s_cb}, 160')
        e(f's_add_u32 s{sa}, s{sa}, s{s_t1}')
        e(f's_mul_i32 s{sb}, s{s_L}, 960')
        e(f's_add_u32 s{sb}, s{sb}, {PREP}')
        e(f'v_mov_b32 v{t}, v{vP}')
        e(f's_sub_u32 s{sc}, s{sa}, {3*1280}')
        e(f's_cmp_eq_u32 s{s_t0}, 0')
        e('s_cbranch_scc0 K1_NONNEG')
        e(f'v_subrev_u32 v{t}, {3*1280}, v{vP}')
        e(f'v_cmp_gt_u32 vcc, 3, v{vPr}')
        e(f'v_mov_b32 v{t+1}, 0x80000000')
        e(f'v_cndmask_b32 v{t}, v{t}, v{t+1}, vcc')
        e(f's_mov_b32 s{sc}, s{sa}')
        e.label('K1_NONNEG')
        for n in range(3):
            e(f's_add_u32 m0, s{sb}, {n*3840}')
            e('s_nop 0')
            e(f'buffer_load_dwordx4 v{t if n == 0 else vP}, s[{sK}:{sK+3}], s{sc} offen lds')
            e(f's_add_u32 m0, s{sb}, {n*3840 + PREPV}')
            e('s_nop 0')
            e(f'buffer_load_dwordx4 v{vP}, s[{sV}:{sV+3}], s{sa} offen lds')
            e(f's_add_u32 s{sa}, s{sa}, {24*1280}')
            e(f's_sub_u32 s{sc}, s{sa}, {3*1280}')
        e(f's_mov_b64 exec, s[{s_ex}:{s_ex+1}]')
        cnt[0] += 6
    def prefetch_tail():
        e(f'v_lshlrev_b32 v{t}, 6, v{vLane}')
        e(f's_and_b32 s{s_t0}, s2, 7')
        e(f's_lshl_b32 s{s_t0}, s{s_t0}, 8')
        e(f's_lshr_b32 s{s_t1}, s2, 3')
        e(f's_lshl_b32 s{s_t1}, s{s_t1}, 3')
        e(f's_add_u32 s{s_t0}, s{s_t0}, s{s_t1}')
        e(f's_lshl_b32 s{s_t1}, s{s_L}, 1')
        e(f's_add_u32 s{s_t0}, s{s_t0}, s{s_t1}')
        e(f's_lshl_b32 s{s_t0}, s{s_t0}, 12')
        srd(e, sK, P+18, S*S*2)
        for r in range(2):
            e(f'buffer_load_dword v{t+1+r}, v{t}, s[{sK}:{sK+3}], s{s_t0} offen')
            e(f's_add_u32 s{s_t0}, s{s_t0}, 4096')
        srd(e, sV, P+20, D*S*2)
        e(f's_mul_i32 s{s_t0}, s2, 3')
        e(f's_add_u32 s{s_t0}, s{s_t0}, s{s_L}')
        e(f's_lshl_b32 s{s_t0}, s{s_t0}, 12')
        e(f's_cmp_eq_u32 s{s_L}, 3')
        e(f's_cselect_b32 s{s_t0}, 0x80000000, s{s_t0}')
        e(f'buffer_load_dword v{t+5}, v{t}, s[{sV}:{sV+3}], s{s_t0} offen')
        cnt[0] += 3
    xs = {1: [1, 2], 2: [3, 4], 3: [5, 6], 4: [7, 8], 5: [9]}
    wn = 1
    for k in range(20):
        if k >= 1:
            lim = {1: 2, 2: 4}.get(k, min(19, k + 2 if k <= 5 else k + 3))
            todo_x = list(xs.get(k, []))
            while wn <= lim or todo_x:
                if todo_x: issue_x(todo_x.pop(0))
                if wn <= lim:
                    if wn == 17: issue_prep()
                    issue_w(wn); done_at[wn] = cnt[0]; wn += 1
        lbar(k)
        if k in (0, 1): stL.stamp(e)
    assert wn == 20
    bar('L'); bar('L')
    if fused:
        H.after_L(e, bar)
    if STAMPS and not fused:
        srd(e, sWS, P+14, WS_SIZE) if False else None
        e(f's_load_dwordx2 s[{P+14}:{P+15}], s[0:1], 104')
        e('s_waitcnt lgkmcnt(0)')
        srd(e, sWS, P+14, WS_SIZE)
        stL.flush(e, 3, sWS, t, s_wl)
    if not fused: e('s_endpgm')

    e.label('K1_AB')
    e(f'v_lshrrev_b32 v{vT+3}, 1, v{vL15}')
    e(f'v_xor_b32 v{vT+3}, v{vT+3}, v{vQ}')
    e(f'v_lshlrev_b32 v{vT+3}, 4, v{vT+3}')
    e(f'v_lshlrev_b32 v{vT+4}, 7, v{vL15}')
    e(f'v_add_u32 v{vT+3}, v{vT+3}, v{vT+4}')
    e(f'v_xor_b32 v{vT+4}, 64, v{vT+3}')
    e(f's_lshl_b32 s{s_t0}, s{s_wr}, 12')
    e(f's_lshl_b32 s{s_t1}, s{s_wc}, 11')
    e(f's_add_u32 s{s_t2}, s{s_t0}, s{s_t1}')
    e(f's_add_u32 s{s_t2}, s{s_t2}, {XB0}')
    e(f'v_add_u32 v{vXA}, s{s_t2}, v{vT+3}')
    e(f'v_add_u32 v{vXA+1}, s{s_t2}, v{vT+4}')
    e(f's_xor_b32 s{s_t1}, s{s_t1}, 2048')
    e(f's_add_u32 s{s_t2}, s{s_t0}, s{s_t1}')
    e(f's_add_u32 s{s_t2}, s{s_t2}, {XB0}')
    e(f'v_add_u32 v{vXB}, s{s_t2}, v{vT+3}')
    e(f'v_add_u32 v{vXB+1}, s{s_t2}, v{vT+4}')
    e(f'v_lshrrev_b32 v{vT+3}, 2, v{vLane}')
    e(f'v_and_b32 v{vT+3}, 3, v{vT+3}')
    e(f'v_lshlrev_b32 v{vT+4}, 3, v{vQ}')
    e(f'v_add_u32 v{vT+3}, v{vT+3}, v{vT+4}')
    e(f'v_mul_u32_u24 v{vT+3}, 192, v{vT+3}')
    e(f'v_and_b32 v{vT+4}, 3, v{vLane}')
    e(f'v_lshlrev_b32 v{vT+4}, 3, v{vT+4}')
    e(f'v_add_u32 v{vT+3}, v{vT+3}, v{vT+4}')
    e(f'v_and_b32 v{vT+5}, 1, v{vQ}')
    e(f's_mul_i32 s{s_t0}, s{s_wc}, 3')
    for ft in range(3):
        e(f's_add_u32 s{s_t1}, s{s_t0}, {ft}')
        e(f'v_xor_b32 v{vT+4}, s{s_t1}, v{vT+5}')
        e(f'v_lshlrev_b32 v{vT+4}, 5, v{vT+4}')
        e(f'v_add_u32 v{vW+ft}, v{vT+3}, v{vT+4}')
    e(f's_mov_b32 s{s_k2}, {hexf(K2c)}'); e(f's_mov_b32 s{s_k2+1}, {hexf(K2c)}')
    e(f's_mov_b32 s{s_one}, 1.0'); e(f's_mov_b32 s{s_one+1}, 1.0')
    e('s_waitcnt lgkmcnt(0)')
    srd(e, sWS, P+14, WS_SIZE)
    srd(e, sD, P+12, 256)
    e(f's_cmp_ge_u32 s{s_w}, 4')
    e('s_cbranch_scc1 K1_B')

    def rd_list(buf, ksl, xoff, woff):
        L = []
        L.append(f'ds_read_b128 v[{XF+buf*8}:{XF+buf*8+3}], v{vXA+ksl} offset:{xoff}')
        for ft in range(3):
            b = WF + buf*12 + ft*4
            L.append(f'ds_read_b64_tr_b16 v[{b}:{b+1}], v{vW+ft} offset:{woff+ksl*6144}')
            L.append(f'ds_read_b64_tr_b16 v[{b+2}:{b+3}], v{vW+ft} offset:{woff+ksl*6144+768}')
            if ft == 0:
                L.append(f'ds_read_b128 v[{XF+buf*8+4}:{XF+buf*8+7}], v{vXB+ksl} offset:{xoff}')
        return L
    def phase(buf, ksl, p, tag, nxt_reads):
        mf = []
        for ft in range(3):
            for T in range(2):
                a = ACC + (T*3+ft)*4
                x = f'v[{XF+buf*8+T*4}:{XF+buf*8+T*4+3}]'
                w = f'v[{WF+buf*12+ft*4}:{WF+buf*12+ft*4+3}]'
                if p == 1: mf.append(f'v_mfma_f32_16x16x32_bf16 v[{a}:{a+3}], {x}, {w}, v[{a}:{a+3}]')
                else:      mf.append(f'v_mfma_f32_16x16x32_bf16 v[{a}:{a+3}], {w}, {x}, v[{a}:{a+3}]')
        fills = [nxt_reads[0:2], nxt_reads[2:4], nxt_reads[4:6], nxt_reads[6:8], [], []]
        if p == 1 and not XP_NODOT:
            x = f'v[{XF+buf*8}:{XF+buf*8+3}]'
            mf.append(f'v_mfma_f32_16x16x32_bf16 v[{SUM}:{SUM+3}], v[{ONE}:{ONE+3}], {x}, v[{SUM}:{SUM+3}]')
            mf.append(f'v_mfma_f32_16x16x32_bf16 v[{GR}:{GR+3}], {x}, {x}, v[{GR}:{GR+3}]')
        if XP_NOCOMP == '2': fills = [[] for _ in fills]
        if XP_NOCOMP == '3': mf = ['s_nop 0'] * len(mf)
        weave(e, mf, fills)
        e(f's_cmp_eq_u32 s{s_wr}, {ksl}')
        e(f's_cbranch_scc0 K1_SK_{tag}')
        for ft in range(3):
            a = CS + ft*4
            w = f'v[{WF+buf*12+ft*4}:{WF+buf*12+ft*4+3}]'
            o = f'v[{ONE}:{ONE+3}]'
            if p == 1: e(f'v_mfma_f32_16x16x32_bf16 v[{a}:{a+3}], {o}, {w}, v[{a}:{a+3}]')
            else:      e(f'v_mfma_f32_16x16x32_bf16 v[{a}:{a+3}], {w}, {o}, v[{a}:{a+3}]')
        e.label(f'K1_SK_{tag}')
    def init_acc():
        for i in range(4): e(f'v_mov_b32 v{ONE+i}, 0x3f803f80')
        for i in range(24): e(f'v_mov_b32 v{ACC+i}, 0')
        for i in range(12): e(f'v_mov_b32 v{CS+i}, 0')
        for i in range(8): e(f'v_mov_b32 v{SUM+i}, 0')
    def loop(p, role):
        L = f'K1_LOOP{p}'
        if XP_NOCOMP == '1':
            for _ in range(10): bar(role)
            return
        e(f's_mov_b32 s{s_i}, 0')
        for x in rd_list(0, 0, 0, 0): e(x)
        e.label(L)
        for u in range(5):
            e('s_waitcnt lgkmcnt(0)')
            phase(0, 0, p, f'{p}a{u}', rd_list(1, 1, u*XST, u*WSLOT))
            e('s_waitcnt lgkmcnt(0)')
            e('s_barrier')
            if u == 4:
                for r in (vXA, vXA+1, vXB, vXB+1):
                    e(f'v_add_u32 v{r}, {5*XST}, v{r}')
                nx = rd_list(0, 0, 0, 0)
            else:
                nx = rd_list(0, 0, (u+1)*XST, (u+1)*WSLOT)
            phase(1, 1, p, f'{p}b{u}', nx)
            if p == 2 and PREFETCH:
                if u == 0:
                    e(f'buffer_load_dword v146, v145, s[{sT}:{sT+3}], s78 offen')
                    e(f's_add_u32 s78, s78, {16*1280}')
                if u == 1:
                    e(f'buffer_load_dword v147, v145, s[{sT}:{sT+3}], s78 offen')
                    e('s_mov_b32 s78, 0x80000000')
                if u == 2:
                    e(f'buffer_load_dword v148, v144, s[{sK}:{sK+3}], s54 offen')
                    e('s_add_u32 s54, s54, 4096')
                if u == 3:
                    e(f'buffer_load_dword v149, v144, s[{sV}:{sV+3}], s46 offen')
                    e('s_mov_b32 s46, 0x80000000')
        e(f's_add_u32 s{s_i}, s{s_i}, 1')
        e(f's_cmp_lt_u32 s{s_i}, 2')
        e(f's_cbranch_scc1 {L}')
        nbar[role] += 10
    K1V = E + 0
    G = E + 2
    def gelu_pair_sc(t, u):
        for h in range(2):
            e(f'v_mul_f32 v{u+h}, v{t+h}, v{t+h}')
        for h in range(2):
            e(f'v_fma_f32 v{u+h}, v{u+h}, s{s_k2}, v{K1V}')
        for h in range(2):
            e(f'v_mul_f32 v{u+h}, v{u+h}, v{t+h}')
        for h in range(2):
            e(f'v_exp_f32 v{u+h}, v{u+h}')
        for h in range(2):
            e(f'v_add_f32 v{u+h}, 1.0, v{u+h}')
        for h in range(2):
            e(f'v_rcp_f32 v{u+h}, v{u+h}')
        for h in range(2):
            e(f'v_mul_f32 v{u+h}, v{u+h}, v{t+h}')
    def gelu_pair(t, u):
        e(f'v_pk_mul_f32 v[{u}:{u+1}], v[{t}:{t+1}], v[{t}:{t+1}]')
        e(f'v_pk_fma_f32 v[{u}:{u+1}], v[{u}:{u+1}], s[{s_k2}:{s_k2+1}], v[{K1V}:{K1V+1}]')
        e(f'v_pk_mul_f32 v[{u}:{u+1}], v[{u}:{u+1}], v[{t}:{t+1}]')
        e(f'v_exp_f32 v{u}, v{u}')
        e(f'v_exp_f32 v{u+1}, v{u+1}')
        e(f'v_pk_add_f32 v[{u}:{u+1}], v[{u}:{u+1}], s[{s_one}:{s_one+1}]')
        e(f'v_rcp_f32 v{u}, v{u}')
        e(f'v_rcp_f32 v{u+1}, v{u+1}')
        e(f'v_pk_mul_f32 v[{u}:{u+1}], v[{u}:{u+1}], v[{t}:{t+1}]')

    e.c('role A')
    init_acc()
    bar('A')
    stp.stamp(e)
    loop(1, 'A')
    stp.stamp(e)
    e.c('A epilogue')
    e('s_setprio 2')
    e(f's_lshl_b32 s{s_t0}, s{s_rb}, 2')
    e(f'v_mov_b32 v{vT+8}, s{s_t0}')
    PC = vT + 9
    e(f'buffer_load_dword v{PC}, v{vT+8}, s[{sD}:{sD+3}], 0 offen sc1')
    SK = 160
    srd(e, sT, P+6, D*4*2)
    e(f'v_lshlrev_b32 v{vT+3}, 4, v{vLane}')
    e(f's_mul_i32 s{s_t1}, s{s_cb}, 640')
    e(f'buffer_load_dwordx4 v[{SK}:{SK+3}], v{vT+3}, s[{sT}:{sT+3}], s{s_t1} offen')
    e(f'v_and_b32 v{vT}, 3, v{vL15}')
    e(f'v_cmp_eq_u32 vcc, 1, v{vT}')
    e(f'v_cndmask_b32 v{GR}, v{GR}, v{GR+1}, vcc')
    e(f'v_cmp_eq_u32 vcc, 2, v{vT}')
    e(f'v_cndmask_b32 v{GR}, v{GR}, v{GR+2}, vcc')
    e(f'v_cmp_eq_u32 vcc, 3, v{vT}')
    e(f'v_cndmask_b32 v{GR}, v{GR}, v{GR+3}, vcc')
    ln_finalize(e, SUM, GR, D, vT+2, vT+3, vT+4, vT+5)
    e(f's_lshl_b32 s{s_t0}, s{s_wr}, 5')
    e(f's_lshl_b32 s{s_t1}, s{s_wc}, 4')
    e(f's_add_u32 s{s_t0}, s{s_t0}, s{s_t1}')
    e(f'v_add_u32 v{vT+4}, s{s_t0}, v{vL15}')
    e(f'v_lshlrev_b32 v{vT+5}, 2, v{vT+4}')
    e(f'v_add_u32 v{vT+5}, {L_M1}, v{vT+5}')
    set_exec(e, 0x00f0000f, 0xf0000f00)
    e(f'ds_write_b32 v{vT+5}, v{vT+2}')
    e(f'ds_write_b32 v{vT+5}, v{vT+3} offset:256')
    e(f's_cmp_eq_u32 s{s_cb}, 0')
    e('s_cbranch_scc0 K1_NOST1X')
    e(f's_lshl_b32 s{s_t1}, s{s_rb}, 9')
    e(f's_add_u32 s{s_t1}, s{s_t1}, {ST1}')
    e(f'v_lshlrev_b32 v{vT+4}, 3, v{vT+4}')
    e(f'buffer_store_dwordx2 v[{vT+2}:{vT+3}], v{vT+4}, s[{sWS}:{sWS+3}], s{s_t1} offen {SC}')
    e.label('K1_NOST1X')
    e(f's_mov_b64 exec, s[{s_ex}:{s_ex+1}]')
    e(f's_mul_i32 s{s_t0}, s{s_wl}, 192')
    e(f's_add_u32 s{s_t0}, s{s_t0}, {L_CSA}')
    e(f'v_lshlrev_b32 v{vT+6}, 2, v{vL15}')
    e(f'v_add_u32 v{vT+6}, s{s_t0}, v{vT+6}')
    for ft in range(3):
        e(f'ds_write_b32 v{vT+6}, v{CS+ft*4} offset:{ft*64}')
    e('s_waitcnt lgkmcnt(0)')
    bar('A')
    e(f's_xor_b32 s{s_t1}, s{s_wl}, 2')
    e(f's_mul_i32 s{s_t1}, s{s_t1}, 192')
    e(f's_add_u32 s{s_t1}, s{s_t1}, {L_CSA}')
    e(f'v_lshlrev_b32 v{vT+4}, 2, v{vL15}')
    e(f'v_add_u32 v{vT+4}, s{s_t1}, v{vT+4}')
    NCS = E + 10
    for ft in range(3):
        e(f'ds_read_b32 v{NCS+2*ft}, v{vT+4} offset:{ft*64}')
    M1 = XF
    R1 = XF + 8
    e(f's_lshl_b32 s{s_t0}, s{s_wr}, 7')
    e(f's_lshl_b32 s{s_t1}, s{s_wc}, 6')
    e(f's_add_u32 s{s_t0}, s{s_t0}, s{s_t1}')
    e(f's_add_u32 s{s_t0}, s{s_t0}, {L_M1}')
    e(f'v_lshlrev_b32 v{vT+5}, 4, v{vQ}')
    e(f'v_add_u32 v{vT+5}, s{s_t0}, v{vT+5}')
    e(f'v_xor_b32 v{vT+6}, 64, v{vT+5}')
    e(f'ds_read_b128 v[{M1}:{M1+3}], v{vT+5}')
    e(f'ds_read_b128 v[{M1+4}:{M1+7}], v{vT+6}')
    e(f'ds_read_b128 v[{R1}:{R1+3}], v{vT+5} offset:256')
    e(f'ds_read_b128 v[{R1+4}:{R1+7}], v{vT+6} offset:256')
    e(f'v_mov_b32 v{K1V}, {hexf(K1c)}'); e(f'v_mov_b32 v{K1V+1}, {hexf(K1c)}')
    SA = WF
    for i in range(16): e(f'v_mov_b32 v{SA+i}, 0')
    e('s_waitcnt lgkmcnt(0)')
    for ft in range(3):
        e(f'v_add_f32 v{NCS+2*ft}, v{NCS+2*ft}, v{CS+ft*4}')
        e(f'v_sub_f32 v{NCS+2*ft}, 0, v{NCS+2*ft}')
    npair = 0
    for ft in range(3):
        for T in range(2):
            for p in range(2):
                a = ACC + (T*3+ft)*4 + 2*p
                n = NCS + 2*ft
                g = G + 4*p
                for h in range(2):
                    e(f'v_fma_f32 v{a+h}, v{M1+T*4+2*p+h}, v{n}, v{a+h}')
                for h in range(2):
                    e(f'v_mul_f32 v{a+h}, v{a+h}, v{R1+T*4+2*p+h}')
                gelu_pair_sc(a, g)
                e(f'v_cvt_pk_bf16_f32 v{AP+ft*4+T*2+p}, v{g}, v{g+1}')
                s_ = SA + T*4 + 2*p
                for h in range(2):
                    e(f'v_add_f32 v{s_+h}, v{s_+h}, v{g+h}')
                for h in range(2):
                    e(f'v_fma_f32 v{s_+8+h}, v{g+h}, v{g+h}, v{s_+8+h}')
                npair += 1
                if npair in (4, 9): bar('A')
    for k, sh in enumerate((8, 4, 2, 1)):
        for i in range(16):
            e(f'v_add_f32_dpp v{SA+i}, v{SA+i}, v{SA+i} row_ror:{sh} row_mask:0xf bank_mask:0xf')
    e(f's_lshl_b32 s{s_t0}, s{s_wc}, 8')
    e(f's_add_u32 s{s_t0}, s{s_t0}, {L_PS - L_M1}')
    e(f'v_add_u32 v{vT+5}, s{s_t0}, v{vT+5}')
    e(f'v_add_u32 v{vT+6}, s{s_t0}, v{vT+6}')
    set_exec(e, 0x00010001, 0x00010001)
    e(f'ds_write_b128 v{vT+5}, v[{SA}:{SA+3}]')
    e(f'ds_write_b128 v{vT+6}, v[{SA+4}:{SA+7}]')
    e(f'ds_write_b128 v{vT+5}, v[{SA+8}:{SA+11}] offset:{L_PQ-L_PS}')
    e(f'ds_write_b128 v{vT+6}, v[{SA+12}:{SA+15}] offset:{L_PQ-L_PS}')
    e(f's_mov_b64 exec, s[{s_ex}:{s_ex+1}]')
    e('s_waitcnt lgkmcnt(0)')
    bar('A')
    e(f's_cmp_eq_u32 s{s_w}, 0')
    e('s_cbranch_scc0 K1_NOPUB')
    e(f'v_lshlrev_b32 v{vT}, 2, v{vLane}')
    e(f'v_add_u32 v{vT}, {L_PS}, v{vT}')
    e(f'ds_read_b32 v{vT+2}, v{vT}')
    e(f'ds_read_b32 v{vT+4}, v{vT} offset:256')
    e(f'ds_read_b32 v{vT+3}, v{vT} offset:{L_PQ-L_PS}')
    e(f'ds_read_b32 v{vT+5}, v{vT} offset:{L_PQ-L_PS+256}')
    e(f's_lshl_b32 s{s_t0}, s{s_rb}, 3')
    e(f's_add_u32 s{s_t0}, s{s_t0}, s{s_cb}')
    e(f's_lshl_b32 s{s_t0}, s{s_t0}, 9')
    e(f's_add_u32 s{s_t0}, s{s_t0}, {XCH}')
    e(f'v_lshlrev_b32 v{vT+1}, 3, v{vLane}')
    e('s_waitcnt lgkmcnt(0)')
    e(f'v_add_f32 v{vT+2}, v{vT+2}, v{vT+4}')
    e(f'v_add_f32 v{vT+3}, v{vT+3}, v{vT+5}')
    e(f'v_max_f32 v{vT+3}, 0, v{vT+3}')
    e(f'buffer_store_dwordx2 v[{vT+2}:{vT+3}], v{vT+1}, s[{sWS}:{sWS+3}], s{s_t0} offen sc1')
    e.label('K1_NOPUB')
    stp.stamp(e)
    e(f's_mul_i32 s{s_t0}, s{s_cb}, 6')
    e(f's_mul_i32 s{s_t1}, s{s_wc}, 3')
    e(f's_add_u32 s{s_t0}, s{s_t0}, s{s_t1}')
    e(f's_lshl_b32 s{s_t0}, s{s_t0}, 6')
    e(f's_lshl_b32 s{s_t1}, s{s_rb}, 1')
    e(f's_add_u32 s{s_t0}, s{s_t0}, s{s_t1}')
    e(f's_add_u32 s{s_t0}, s{s_t0}, s{s_wr}')
    e(f's_lshl_b32 s{s_t0}, s{s_t0}, 10')
    e(f's_add_u32 s{s_off}, s{s_t0}, {Z2F}')
    e(f'v_and_b32 v{vT+7}, 1, v{vQ}')
    e(f'v_lshlrev_b32 v{vT+7}, 1, v{vT+7}')
    e(f'v_lshrrev_b32 v{vT+10}, 1, v{vQ}')
    e(f'v_or_b32 v{vT+7}, v{vT+7}, v{vT+10}')
    e(f's_lshl_b32 s{s_t1}, s{s_wc}, 1')
    e(f'v_xor_b32 v{vT+7}, s{s_t1}, v{vT+7}')
    e(f'v_lshlrev_b32 v{vT+7}, 4, v{vT+7}')
    e(f'v_add_u32 v{vT+7}, v{vT+7}, v{vL15}')
    e(f'v_lshlrev_b32 v{vT+7}, 4, v{vT+7}')
    e(f'v_and_b32 v{vT+10}, 31, v{vLane}')
    e(f's_lshl_b32 s{s_j}, s{s_wr}, 5')
    e(f'v_add_u32 v{vT+10}, s{s_j}, v{vT+10}')
    e(f'v_lshlrev_b32 v{vT+10}, 3, v{vT+10}')
    e(f's_lshl_b32 s{s_j}, s{s_rb}, 12')
    e(f's_add_u32 s{s_j}, s{s_j}, {XCH}')
    bar('A')
    bar('A')
    bar('A')
    KR = 26; VRr = 45; KP = 62; CP = 100; KVP = 126
    e(f's_mul_i32 s{s_t0}, s{s_wl}, {16*160}')
    e(f's_add_u32 s{s_t0}, s{s_t0}, {PREP}')
    e(f'v_lshlrev_b32 v{vT+3}, 2, v{vLane}')
    e(f'v_min_u32 v{vT+3}, 156, v{vT+3}')
    e(f'v_add_u32 v{vT+3}, s{s_t0}, v{vT+3}')
    for r in range(19):
        e(f'ds_read_b32 v{KR+r}, v{vT+3} offset:{r*160}')
        if r == 13: e('s_waitcnt lgkmcnt(6)')
    for r in range(16):
        if r in (2, 10): e('s_waitcnt lgkmcnt(6)')
        e(f'ds_read_b32 v{VRr+r}, v{vT+3} offset:{PREPV + r*160}')
    e('s_waitcnt vmcnt(0)')
    e(f'v_lshlrev_b32 v{CP+0}, 16, v{SK+0}'); e(f'v_lshlrev_b32 v{CP+1}, 16, v{SK+2}')
    e(f'v_and_b32 v{CP+2}, s{s_mask}, v{SK+0}'); e(f'v_and_b32 v{CP+3}, s{s_mask}, v{SK+2}')
    e(f'v_lshlrev_b32 v{CP+4}, 16, v{SK+1}'); e(f'v_lshlrev_b32 v{CP+5}, 16, v{SK+3}')
    e(f'v_and_b32 v{CP+6}, s{s_mask}, v{SK+1}'); e(f'v_and_b32 v{CP+7}, s{s_mask}, v{SK+3}')
    e('s_waitcnt lgkmcnt(12)')
    for r in range(19):
        if r == 12: e('s_waitcnt lgkmcnt(0)')
        e(f'v_lshlrev_b32 v{KP+2*r}, 16, v{KR+r}')
        e(f'v_and_b32 v{KP+2*r+1}, s{s_mask}, v{KR+r}')
    bar('A')
    for i in range(16):
        t_ = KVP + 2*i
        for h in range(2): e(f'v_mul_f32 v{t_+h}, v{CP+6+h}, v{KP+2*i+h}')
        for h in range(2): e(f'v_fmac_f32 v{t_+h}, v{CP+4+h}, v{KP+2*i+2+h}')
        for h in range(2): e(f'v_fmac_f32 v{t_+h}, v{CP+2+h}, v{KP+2*i+4+h}')
        for h in range(2): e(f'v_fmac_f32 v{t_+h}, v{CP+0+h}, v{KP+2*i+6+h}')
        e(f'v_lshlrev_b32 v{vT+4}, 16, v{VRr+i}')
        e(f'v_and_b32 v{vT+5}, s{s_mask}, v{VRr+i}')
        for h in range(2): e(f'v_mul_f32 v{t_+h}, v{t_+h}, v{vT+4+h}')
        if i in (4, 9, 15): bar('A')
    e('s_setprio 0')
    OUT = 26
    for dd in range(2):
        for g in range(2):
            for n in range(4):
                lo = KVP + 2*(8*g + 7 - 2*n) + dd
                hi = KVP + 2*(8*g + 6 - 2*n) + dd
                e(f'v_cvt_pk_bf16_f32 v{OUT + dd*8 + g*4 + n}, v{lo}, v{hi}')
    XP = WF + 2
    if fused:
        e(f'v_mul_u32_u24 v{vT+3}, {2*KVP_}, v{vLane}')
        e(f's_lshl_b32 s{s_t0}, s{s_wl}, 5')
        e(f's_add_u32 s{s_t0}, s{s_t0}, {KVS}')
        e(f'v_add_u32 v{vT+3}, s{s_t0}, v{vT+3}')
        set_exec(e, 0xffffffff, 0xff)
        for dd in range(2):
            for g in range(2):
                o = OUT + dd*8 + g*4
                e(f'ds_write_b128 v{vT+3}, v[{o}:{o+3}] offset:{dd*KVP_ + g*16}')
        e(f's_mov_b64 exec, s[{s_ex}:{s_ex+1}]')
        e('s_waitcnt lgkmcnt(0)')
        bar('A')
        for c in range(8):
            e(f'buffer_load_dwordx2 v[{XP+2*c}:{XP+2*c+1}], v{vT+10}, s[{sWS}:{sWS+3}], s{s_j} offen offset:{c*512} sc1')
        KO = 62
        e(f'v_lshrrev_b32 v{vT+3}, 3, v{vLane}')
        e(f's_lshl_b32 s{s_t0}, s{s_wl}, 3')
        e(f'v_add_u32 v{vT+3}, s{s_t0}, v{vT+3}')
        e(f'v_and_b32 v{vT+4}, 7, v{vLane}')
        e(f'v_lshlrev_b32 v{vT+4}, 4, v{vT+4}')
        e(f'v_mul_u32_u24 v{vT+5}, {KVP_}, v{vT+3}')
        e(f'v_add_u32 v{vT+5}, v{vT+5}, v{vT+4}')
        e(f'v_add_u32 v{vT+5}, {KVS}, v{vT+5}')
        e(f'v_lshlrev_b32 v{vT+3}, 12, v{vT+3}')
        e(f'v_add_u32 v{vT+3}, v{vT+3}, v{vT+4}')
        for n in range(3):
            e(f'ds_read_b128 v[{KO+4*n}:{KO+4*n+3}], v{vT+5} offset:{n*32*KVP_}')
        e(f's_mul_i32 s{s_t0}, s{s_cb}, {80*4096}')
        e(f's_lshl_b32 s{s_t1}, s{s_rb}, 7')
        e(f's_add_u32 s{s_t0}, s{s_t0}, s{s_t1}')
        e(f's_add_u32 s{s_t0}, s{s_t0}, {KVT}')
        e('s_waitcnt lgkmcnt(0)')
        for n in range(3):
            if n == 2:
                e(f's_cmp_lt_u32 s{s_wl}, 2')
                e(f's_cselect_b32 s{s_t0}, s{s_t0}, 0x80000000')
            e(f'buffer_store_dwordx4 v[{KO+4*n}:{KO+4*n+3}], v{vT+3}, s[{sWS}:{sWS+3}], s{s_t0} offen sc1')
            e(f's_add_u32 s{s_t0}, s{s_t0}, {32*4096}')
        NKV = 3
    else:
        for c in range(8):
            e(f'buffer_load_dwordx2 v[{XP+2*c}:{XP+2*c+1}], v{vT+10}, s[{sWS}:{sWS+3}], s{s_j} offen offset:{c*512} sc1')
        e(f'v_lshlrev_b32 v{vT+3}, 13, v{vLane}')
        e(f's_mul_i32 s{s_t0}, s{s_cb}, {80*4096}')
        e(f's_lshl_b32 s{s_t1}, s{s_rb}, 7')
        e(f's_add_u32 s{s_t0}, s{s_t0}, s{s_t1}')
        e(f's_lshl_b32 s{s_t1}, s{s_wl}, 5')
        e(f's_add_u32 s{s_t0}, s{s_t0}, s{s_t1}')
        e(f's_add_u32 s{s_t0}, s{s_t0}, {KVT}')
        e(f's_add_u32 s{s_t1}, s{s_t0}, 4096')
        set_exec(e, 0xffffffff, 0xff)
        e(f'buffer_store_dwordx4 v[{OUT}:{OUT+3}], v{vT+3}, s[{sWS}:{sWS+3}], s{s_t0} offen {STF_EARLY}')
        e(f'buffer_store_dwordx4 v[{OUT+4}:{OUT+7}], v{vT+3}, s[{sWS}:{sWS+3}], s{s_t0} offen offset:16 {STF_EARLY}')
        e(f'buffer_store_dwordx4 v[{OUT+8}:{OUT+11}], v{vT+3}, s[{sWS}:{sWS+3}], s{s_t1} offen {STF_EARLY}')
        e(f'buffer_store_dwordx4 v[{OUT+12}:{OUT+15}], v{vT+3}, s[{sWS}:{sWS+3}], s{s_t1} offen offset:16 {STF_EARLY}')
        e(f's_mov_b64 exec, s[{s_ex}:{s_ex+1}]')
        NKV = 4
    stp.stamp(e)
    e(f'v_readfirstlane_b32 s{s_t0}, v{PC}')
    e(f's_cmp_ge_u32 s{s_t0}, 8')
    e('s_cbranch_scc1 K1_CPOLLED')
    e('s_mov_b32 s54, 0')
    e.label('K1_CPOLL')
    e('s_add_u32 s54, s54, 1')
    e('s_cmp_lt_u32 s54, 0x200000')
    e('s_cbranch_scc0 K1_POLLED')
    e('s_sleep 4')
    e(f'buffer_load_dword v{PC}, v{vT+8}, s[{sD}:{sD+3}], 0 offen sc1')
    e('s_waitcnt vmcnt(0)')
    e(f'v_readfirstlane_b32 s{s_t0}, v{PC}')
    e(f's_cmp_ge_u32 s{s_t0}, 8')
    e('s_cbranch_scc0 K1_CPOLL')
    e('s_branch K1_POLL')
    e.label('K1_CPOLLED')
    e('s_mov_b32 s54, 0')
    e(f's_waitcnt vmcnt({NKV})')
    e('s_branch K1_CHECK')
    e.label('K1_POLL')
    for c in range(8):
        e(f'buffer_load_dwordx2 v[{XP+2*c}:{XP+2*c+1}], v{vT+10}, s[{sWS}:{sWS+3}], s{s_j} offen offset:{c*512} sc1')
    e('s_waitcnt vmcnt(0)')
    e.label('K1_CHECK')
    e(f's_mov_b32 s{s_t0}, {hex(SENT)}')
    e(f'v_cmp_eq_u32 vcc, s{s_t0}, v{XP+1}')
    for c in range(1, 8):
        e(f'v_cmp_eq_u32 s[{P}:{P+1}], s{s_t0}, v{XP+2*c+1}')
        e(f's_or_b64 vcc, vcc, s[{P}:{P+1}]')
    e('s_cmp_eq_u64 vcc, 0')
    e('s_cbranch_scc1 K1_POLLED')
    e('s_add_u32 s54, s54, 1')
    e('s_cmp_lt_u32 s54, 0x200000')
    e('s_cbranch_scc0 K1_POLLED')
    e('s_sleep 2')
    e('s_branch K1_POLL')
    e.label('K1_POLLED')
    for c in range(1, 8):
        e(f'v_pk_add_f32 v[{XP}:{XP+1}], v[{XP}:{XP+1}], v[{XP+2*c}:{XP+2*c+1}]')
    ln_finalize(e, XP, XP+1, FH, vT+2, vT+3, vT+4, vT+5)
    e(f'v_mul_f32 v{vT+2}, v{vT+2}, v{vT+3}')
    e(f'v_sub_f32 v{vT+2}, 0, v{vT+2}')
    e(f's_lshl_b32 s{s_t0}, s{s_wl}, 8')
    e(f's_add_u32 s{s_t0}, s{s_t0}, {L_W2}')
    e(f'v_and_b32 v{vT+4}, 31, v{vLane}')
    e(f'v_lshlrev_b32 v{vT+4}, 2, v{vT+4}')
    e(f'v_add_u32 v{vT+4}, s{s_t0}, v{vT+4}')
    e(f'ds_write_b32 v{vT+4}, v{vT+2}')
    e(f'ds_write_b32 v{vT+4}, v{vT+3} offset:128')
    e(f's_lshl_b32 s{s_t1}, s{s_wc}, 6')
    e(f's_add_u32 s{s_t0}, s{s_t0}, s{s_t1}')
    e(f'v_lshlrev_b32 v{vT+5}, 4, v{vQ}')
    e(f'v_add_u32 v{vT+5}, s{s_t0}, v{vT+5}')
    e(f'v_xor_b32 v{vT+6}, 64, v{vT+5}')
    e('s_waitcnt lgkmcnt(0)')
    e(f'ds_read_b128 v[{M1}:{M1+3}], v{vT+5}')
    e(f'ds_read_b128 v[{M1+4}:{M1+7}], v{vT+6}')
    e(f'ds_read_b128 v[{R1}:{R1+3}], v{vT+5} offset:128')
    e(f'ds_read_b128 v[{R1+4}:{R1+7}], v{vT+6} offset:128')
    e('s_waitcnt lgkmcnt(0)')
    for ft in range(3):
        for T in range(2):
            for p in range(2):
                a = AP + ft*4 + T*2 + p
                g = G + 4*p
                e(f'v_lshlrev_b32 v{g}, 16, v{a}')
                e(f'v_and_b32 v{g+1}, s{s_mask}, v{a}')
                e(f'v_pk_fma_f32 v[{g}:{g+1}], v[{g}:{g+1}], v[{R1+T*4+2*p}:{R1+T*4+2*p+1}], v[{M1+T*4+2*p}:{M1+T*4+2*p+1}]')
                e(f'v_cvt_pk_bf16_f32 v{a}, v{g}, v{g+1}')
        b = AP + ft*4
        e(f'v_permlane16_swap_b32 v{b}, v{b+2}')
        e(f'v_permlane16_swap_b32 v{b+1}, v{b+3}')
        e(f's_add_u32 s{s_t1}, s{s_off}, {ft*65536}')
        e(f'buffer_store_dwordx4 v[{b}:{b+3}], v{vT+7}, s[{sWS}:{sWS+3}], s{s_t1} offen {SC if fused else STF}')
    if fused:
        H.after_A(e, stp, bar)
    else:
        stp.flush(e, 0, sWS, vT, s_w)
        e('s_endpgm')

    e.label('K1_B')
    e.c('role B')
    stB = Stamper(); stB.n = 1; stB.mute = fused
    SK = 160; WR = 152; WO = 164
    e(f's_cmp_eq_u32 s{s_w}, 4')
    e('s_cbranch_scc0 K1_NORST')
    e(f's_lshl_b32 s{s_t0}, s{s_rb}, 3')
    e(f's_add_u32 s{s_t0}, s{s_t0}, s{s_cb}')
    e(f's_lshl_b32 s{s_t0}, s{s_t0}, 9')
    e(f's_add_u32 s{s_t0}, s{s_t0}, {XCH}')
    e(f'v_lshlrev_b32 v{vT+1}, 3, v{vLane}')
    e(f'v_mov_b32 v{vT+6}, 0')
    e(f'v_mov_b32 v{vT+7}, {hex(SENT)}')
    e(f'buffer_store_dwordx2 v[{vT+6}:{vT+7}], v{vT+1}, s[{sWS}:{sWS+3}], s{s_t0} offen sc1')
    if fused:
        H.flag_addr(e, vT+1, vT+2)
        set_exec(e, 7, 0)
        e(f'buffer_store_dword v{vT+6}, v{vT+1}, s[{sWS}:{sWS+3}], 0 offen sc1')
        e(f's_mov_b64 exec, s[{s_ex}:{s_ex+1}]')
    e.label('K1_NORST')
    DUM = 140
    vTP = 144; vKV = 145; s_tpw = 54; s_tps = 46; s_kv = 78
    e(f's_lshl_b32 s{s_t0}, s2, 2')
    e(f's_add_u32 s{s_t0}, s{s_t0}, s{s_wl}')
    e(f's_mul_i32 s{s_t1}, s{s_t0}, 2731')
    e(f's_lshr_b32 s{s_t1}, s{s_t1}, 16')
    e(f's_mul_i32 s{s_t2}, s{s_t1}, 24')
    e(f's_sub_u32 s{s_t2}, s{s_t0}, s{s_t2}')
    e(f's_mov_b32 s{P+16}, s{s_t0}')
    e(f'v_mul_u32_u24 v{vT+3}, {4*1280}, v{vQ}')
    e(f'v_lshlrev_b32 v{vT+4}, 1, v{vL15}')
    e(f'v_add_u32 v{vT+3}, v{vT+3}, v{vT+4}')
    e(f's_lshl_b32 s{s_t1}, s{s_t1}, 5')
    e(f's_mul_i32 s{s_t2}, s{s_t2}, {32*1280}')
    e(f's_add_u32 s{s_t1}, s{s_t1}, s{s_t2}')
    e(f's_add_u32 s{s_t2}, s{s_t1}, {16*1280}')
    bar('B')
    stB.stamp(e)
    srd(e, sT, P+10, FH*D*2)
    for j in range(8):
        so = s_t1 if j < 4 else s_t2
        e(f'buffer_load_ushort v{WR + j}, v{vT+3}, s[{sT}:{sT+3}], s{so} offen offset:{(j%4)*1280}')
    for k in range(1, 10):
        if PREFETCH and k == 8:
            e(f'v_lshrrev_b32 v{vKV}, 2, v{vLane}')
            e(f'v_mul_u32_u24 v{vKV}, 1280, v{vKV}')
            e(f'v_and_b32 v{vT+9}, 3, v{vLane}')
            e(f'v_lshlrev_b32 v{vT+9}, 6, v{vT+9}')
            e(f'v_add_u32 v{vKV}, v{vKV}, v{vT+9}')
            e(f's_lshl_b32 s{s_kv}, s{s_rb}, 6')
            e(f's_lshl_b32 s{s_off}, s{s_wc}, 5')
            e(f's_add_u32 s{s_kv}, s{s_kv}, s{s_off}')
            e(f's_mul_i32 s{s_kv}, s{s_kv}, 1280')
            e(f's_mul_i32 s{s_off}, s{s_cb}, 160')
            e(f's_andn2_b32 s{s_off}, s{s_off}, 63')
            e(f's_add_u32 s{s_kv}, s{s_kv}, s{s_off}')
            e(f's_cmp_eq_u32 s{s_wr}, 0')
            e(f's_cselect_b32 s{P+0}, s{P+2}, s{P+4}')
            e(f's_cselect_b32 s{P+1}, s{P+3}, s{P+5}')
            srd(e, sT, P, S*D*2)
        if PREFETCH and k == 9:
            e(f'v_lshlrev_b32 v{vTP}, 6, v{vLane}')
            e(f's_and_b32 s{s_tpw}, s2, 7')
            e(f's_lshl_b32 s{s_tpw}, s{s_tpw}, 8')
            e(f's_lshr_b32 s{s_off}, s2, 3')
            e(f's_lshl_b32 s{s_off}, s{s_off}, 3')
            e(f's_add_u32 s{s_tpw}, s{s_tpw}, s{s_off}')
            e(f's_lshl_b32 s{s_off}, s{s_wl}, 1')
            e(f's_add_u32 s{s_tpw}, s{s_tpw}, s{s_off}')
            e(f's_lshl_b32 s{s_tpw}, s{s_tpw}, 12')
            srd(e, sK, P+18, S*S*2)
            srd(e, sV, P+20, D*S*2)
            e(f's_mul_i32 s{s_tps}, s2, 3')
            e(f's_add_u32 s{s_tps}, s{s_tps}, s{s_wl}')
            e(f's_lshl_b32 s{s_tps}, s{s_tps}, 12')
            e(f's_cmp_eq_u32 s{s_wl}, 3')
            e(f's_cselect_b32 s{s_tps}, 0x80000000, s{s_tps}')
        if k == 4:
            e(f's_cmp_eq_u32 s{s_w}, 4')
            e('s_cbranch_scc0 K1_NOCNT')
            e('s_waitcnt vmcnt(0)')
            e(f's_lshl_b32 s{s_off}, s{s_rb}, 2')
            e(f'v_mov_b32 v{vT+6}, s{s_off}')
            e(f'v_mov_b32 v{vT+7}, 1')
            set_exec(e, 1, 0)
            e(f'buffer_atomic_add v{vT+7}, v{vT+6}, s[{sD}:{sD+3}], 0 offen sc1')
            e(f's_mov_b64 exec, s[{s_ex}:{s_ex+1}]')
            e.label('K1_NOCNT')
        if k == 5:
            e(f's_cmp_ge_u32 s{P+16}, 960')
            e('s_cbranch_scc1 K1_NOWOF')
            e('s_waitcnt vmcnt(0)')
            for j in range(4):
                e(f'v_lshl_or_b32 v{WO+j}, v{WR+2*j+1}, 16, v{WR+2*j}')
            e(f'v_lshlrev_b32 v{vT+3}, 4, v{vLane}')
            e(f's_lshl_b32 s{s_t0}, s{P+16}, 10')
            e(f's_add_u32 s{s_t0}, s{s_t0}, {WOF}')
            e(f'buffer_store_dwordx4 v[{WO}:{WO+3}], v{vT+3}, s[{sWS}:{sWS+3}], s{s_t0} offen {SC if fused else STF_EARLY}')
            e.label('K1_NOWOF')
        bar('B')
    init_acc()
    bar('B')
    stB.stamp(e)
    loop(2, 'B')
    stB.stamp(e)
    e.c('B epilogue')
    e(f's_mul_i32 s{s_t0}, s{s_wl}, 192')
    e(f's_add_u32 s{s_t0}, s{s_t0}, {L_CSB}')
    e(f'v_lshlrev_b32 v{vT+4}, 4, v{vQ}')
    e(f'v_add_u32 v{vT+5}, s{s_t0}, v{vT+4}')
    set_exec(e, 0x00010001, 0x00010001)
    for ft in range(3):
        e(f'ds_write_b128 v{vT+5}, v[{CS+ft*4}:{CS+ft*4+3}] offset:{ft*64}')
    e(f's_mov_b64 exec, s[{s_ex}:{s_ex+1}]')
    e(f'v_mov_b32 v{K1V}, {hexf(K1c)}'); e(f'v_mov_b32 v{K1V+1}, {hexf(K1c)}')
    e('s_waitcnt lgkmcnt(0)')
    bar('B')
    e(f's_xor_b32 s{s_t1}, s{s_wl}, 2')
    e(f's_mul_i32 s{s_t1}, s{s_t1}, 192')
    e(f's_add_u32 s{s_t1}, s{s_t1}, {L_CSB}')
    e(f'v_add_u32 v{vT+5}, s{s_t1}, v{vT+4}')
    NC2 = XF
    for ft in range(3):
        e(f'ds_read_b128 v[{NC2+ft*4}:{NC2+ft*4+3}], v{vT+5} offset:{ft*64}')
    MR = WF
    e(f's_lshl_b32 s{s_t0}, s{s_wr}, 7')
    e(f's_lshl_b32 s{s_t1}, s{s_wc}, 6')
    e(f's_add_u32 s{s_t0}, s{s_t0}, s{s_t1}')
    e(f's_add_u32 s{s_t0}, s{s_t0}, {L_M1}')
    e(f'v_lshlrev_b32 v{vT+6}, 2, v{vL15}')
    e(f'v_add_u32 v{vT+6}, s{s_t0}, v{vT+6}')
    e(f'v_xor_b32 v{vT+7}, 64, v{vT+6}')
    e(f'ds_read_b32 v{MR+0}, v{vT+6}')
    e(f'ds_read_b32 v{MR+2}, v{vT+7}')
    e(f'ds_read_b32 v{MR+4}, v{vT+6} offset:256')
    e(f'ds_read_b32 v{MR+6}, v{vT+7} offset:256')
    e(f's_lshl_b32 s{s_t0}, s{s_rb}, 2')
    e(f's_lshl_b32 s{s_t1}, s{s_wr}, 1')
    e(f's_add_u32 s{s_t0}, s{s_t0}, s{s_t1}')
    e(f's_add_u32 s{s_t1}, s{s_t0}, s{s_wc}')
    e(f's_xor_b32 s{s_t2}, s{s_t1}, 1')
    e(f's_mul_i32 s{s_off}, s{s_cb}, 6')
    e(f's_mul_i32 s{s_j}, s{s_wc}, 3')
    e(f's_add_u32 s{s_off}, s{s_off}, s{s_j}')
    e(f's_mul_i32 s{s_t1}, s{s_t1}, 48')
    e(f's_add_u32 s{s_t1}, s{s_t1}, s{s_off}')
    e(f's_lshl_b32 s{s_t1}, s{s_t1}, 9')
    e(f's_add_u32 s{s_t1}, s{s_t1}, {Z1F}')
    e(f's_mul_i32 s{s_t2}, s{s_t2}, 48')
    e(f's_add_u32 s{s_t2}, s{s_t2}, s{s_off}')
    e(f's_lshl_b32 s{s_t2}, s{s_t2}, 9')
    e(f's_add_u32 s{s_t2}, s{s_t2}, {Z1F}')
    e(f'v_lshlrev_b32 v{vT+6}, 3, v{vLane}')
    if fused:
        e(f's_lshl_b32 s{s_j}, s{s_wr}, 1')
        e(f's_add_u32 s{s_j}, s{s_j}, s{s_wc}')
        e(f's_mul_i32 s{s_off}, s{s_j}, 3072')
        e(f's_mul_i32 s{s_t0}, s{s_wc}, 1536')
        e(f's_add_u32 s{s_off}, s{s_off}, s{s_t0}')
        e(f's_add_u32 s{s_off}, s{s_off}, {Z1L}')
        e(f'v_add_u32 v{vT+8}, s{s_off}, v{vT+6}')
        e(f's_xor_b32 s{s_j}, s{s_j}, 1')
        e(f's_mul_i32 s{s_off}, s{s_j}, 3072')
        e(f's_add_u32 s{s_off}, s{s_off}, s{s_t0}')
        e(f's_add_u32 s{s_off}, s{s_off}, {Z1L}')
        e(f'v_add_u32 v{vT+9}, s{s_off}, v{vT+6}')
    e('s_waitcnt lgkmcnt(0)')
    for i in range(12):
        e(f'v_add_f32 v{NC2+i}, v{NC2+i}, v{CS+i}')
        e(f'v_sub_f32 v{NC2+i}, 0, v{NC2+i}')
    ZO = AP
    for T in range(2):
        for ft in range(3):
            for p in range(2):
                a = ACC + (T*3+ft)*4 + 2*p
                n = NC2 + ft*4 + 2*p
                m = MR + 2*T; r = MR + 4 + 2*T
                g = G + 4*p
                e(f'v_pk_fma_f32 v[{a}:{a+1}], v[{n}:{n+1}], v[{m}:{m+1}], v[{a}:{a+1}] op_sel_hi:[1,0,1]')
                e(f'v_pk_mul_f32 v[{a}:{a+1}], v[{a}:{a+1}], v[{r}:{r+1}] op_sel_hi:[1,0]')
                gelu_pair(a, g)
                e(f'v_cvt_pk_bf16_f32 v{ZO+(T*3+ft)*2+p}, v{g}, v{g+1}')
            so = s_t1 if T == 0 else s_t2
            z = ZO + (T*3+ft)*2
            if fused:
                e(f'ds_write_b64 v{vT+8+T}, v[{z}:{z+1}] offset:{ft*512}')
            else:
                e(f'buffer_store_dwordx2 v[{z}:{z+1}], v{vT+6}, s[{sWS}:{sWS+3}], s{so} offen offset:{ft*512} {STF_EARLY}')
    if fused:
        H.after_B(e, stB, bar)
    if not fused: stB.flush(e, 0, sWS, vT, s_w)
    e.label('K1_END')
    e('s_endpgm')
    if fused: return nbar
    print('k1 barriers', nbar)
    assert nbar['A'] == nbar['B'] == nbar['L'], nbar
    nn = e.finalize()
    return kernel_wrap('k1_kernel', e.text(), vgpr=168, sgpr=96), nn
```

```python
from common import *
import os
HCP = 4160
CW_U = 4 * HCP
CW_SZ = CW_U + 512 + 4096
RING = 65536
CONV0 = RING
LDS2 = CONV0 + 3 * CW_SZ
GRID2 = 256
BLOCK2 = 768

def ids(e, s_rb, s_cb, s_w, s_wl, t0, t1, t2, vT):
    e(f'v_and_b32 v1, 63, v0')
    e(f'v_lshrrev_b32 v{vT}, 6, v0')
    e(f'v_lshrrev_b32 v2, 4, v1')
    e(f'v_readfirstlane_b32 s{s_w}, v{vT}')
    e(f'v_and_b32 v3, 15, v1')
    e(f's_and_b32 s{t0}, s2, 7')
    e(f's_lshr_b32 s{t1}, s2, 3')
    e(f's_lshr_b32 s{s_rb}, s{t0}, 1')
    e(f's_lshl_b32 s{s_rb}, s{s_rb}, 3')
    e(f's_lshr_b32 s{t2}, s{t1}, 2')
    e(f's_add_u32 s{s_rb}, s{s_rb}, s{t2}')
    e(f's_and_b32 s{s_cb}, s{t0}, 1')
    e(f's_lshl_b32 s{s_cb}, s{s_cb}, 2')
    e(f's_and_b32 s{t2}, s{t1}, 3')
    e(f's_add_u32 s{s_cb}, s{s_cb}, s{t2}')
    e(f's_and_b32 s{s_wl}, s{s_w}, 3')

RED = 0
def gen_k2(e=None, fused=False, stp=None, stC=None):
    if e is None: e = Emitter()
    sSP, sWS, sB, sH, sDd = 8, 16, 12, 20, 24
    LF = 'sc1' if fused else ''
    s_tb, s_fb, s_w, s_wl = 32, 33, 34, 55
    s_t0, s_t1, s_t2 = 40, 41, 42
    s_mask = 47; s_ex = 52
    P = 56
    vLane, vQ, vL15 = 1, 2, 3
    nbar = {'G': 0, 'C': 0, 'L': 0, 'I': 0}
    def bar(r):
        e('s_barrier'); nbar[r] += 1
    NB = 19
    e('s_cmp_ge_u32 s2, 256')
    e('s_cbranch_scc1 K2_END')
    stp = Stamper(); stp.start(e)
    e(f's_load_dwordx4 s[{P}:{P+3}], s[0:1], 64')
    e(f's_load_dwordx2 s[{P+4}:{P+5}], s[0:1], 104')
    e(f's_load_dwordx4 s[{P+8}:{P+11}], s[0:1], 32')
    ids(e, s_tb, s_fb, s_w, s_wl, s_t0, s_t1, s_t2, 9)
    e(f's_mov_b32 s{s_mask}, 0xffff0000')
    e(f's_mov_b64 s[{s_ex}:{s_ex+1}], exec')
    e(f's_cmp_ge_u32 s{s_w}, 8')
    e('s_cbranch_scc1 K2_L')
    e(f's_cmp_ge_u32 s{s_w}, 4')
    e('s_cbranch_scc1 K2_C')

    e.c('role G')
    s_fh, s_kh, s_st, s_bz, s_kz, s_sd = 35, 36, 37, 38, 39, 43
    vB0, vB1, vA, vT = 4, 5, 6, 9
    BF = 16; ACC = 48; ZA = 96
    e(f's_and_b32 s{s_fh}, s{s_w}, 1')
    e(f's_lshr_b32 s{s_kh}, s{s_w}, 1')
    e(f'v_xor_b32 v{vT}, v{vQ}, v{vL15}')
    e(f'v_lshlrev_b32 v{vT}, 4, v{vT}')
    e(f's_lshl_b32 s{s_t0}, s{s_kh}, 6')
    e(f'v_xor_b32 v{vT}, s{s_t0}, v{vT}')
    e(f'v_lshlrev_b32 v{vT+1}, 8, v{vL15}')
    e(f'v_add_u32 v{vB0}, v{vT}, v{vT+1}')
    e(f'v_xor_b32 v{vB1}, 128, v{vB0}')
    e(f's_mul_i32 s{s_t0}, s{s_fb}, 6')
    e(f's_mul_i32 s{s_t1}, s{s_fh}, 3')
    e(f's_add_u32 s44, s{s_t0}, s{s_t1}')
    e(f's_lshl_b32 s{s_t0}, s44, 16')
    e(f's_add_u32 s{s_t0}, s{s_t0}, {Z2F}')
    e(f'v_lshlrev_b32 v{vT}, 4, v{vLane}')
    for ft in range(3):
        e(f's_add_u32 s{s_t1}, s{s_t0}, {ft*65536}')
        e(f'v_add_u32 v{vA+ft}, s{s_t1}, v{vT}')
    e(f's_lshl_b32 s{s_kz}, s{s_kh}, 10')
    e('s_waitcnt lgkmcnt(0)')
    srd(e, sWS, P+4, WS_SIZE)
    srd(e, sB, P+2, S*2)
    def zl(n_mod6, s_off):
        L = []
        for ft in range(3):
            z = ZA + (n_mod6*3 + ft)*4
            L.append(f'buffer_load_dwordx4 v[{z}:{z+3}], v{vA+ft}, s[{sWS}:{sWS+3}], s{s_off} offen')
        return L
    for n in range(5):
        e(f's_add_u32 s{s_bz}, s{s_kz}, {2*n*1024}')
        for x in zl(n, s_bz): e(x)
    for i in range(48): e(f'v_mov_b32 v{ACC+i}, 0')
    def brd(buf, vb):
        return [f'ds_read_b128 v[{BF+buf*16+tt*4}:{BF+buf*16+tt*4+3}], v{vb} offset:{tt*4096}' for tt in range(4)]
    def mfl(buf, n6):
        L = []
        for tt in range(4):
            for ft in range(3):
                a = ACC + (ft*4+tt)*4; z = ZA + (n6*3+ft)*4; b = BF + buf*16 + tt*4
                L.append(f'v_mfma_f32_16x16x32_bf16 v[{a}:{a+3}], v[{z}:{z+3}], v[{b}:{b+3}], v[{a}:{a+3}]')
        return L
    def zoff(add):
        e(f's_lshl_b32 s{s_t0}, s{s_st}, 1')
        e(f's_add_u32 s{s_t0}, s{s_t0}, {add}')
        e(f's_lshl_b32 s{s_bz}, s{s_t0}, 11')
        e(f's_add_u32 s{s_bz}, s{s_bz}, s{s_kz}')
        e(f's_cmp_lt_u32 s{s_t0}, 32')
        e(f's_cselect_b32 s{s_bz}, s{s_bz}, 0x80000000')
    bar('G')
    stp.stamp(e)
    e(f's_mov_b32 s{s_st}, 0')
    for x in brd(0, vB0): e(x)
    e.label('K2_GLOOP')
    for u in range(3):
        n0 = (2*u) % 6; n1 = (2*u + 1) % 6
        zoff(5)
        e('s_waitcnt vmcnt(12) lgkmcnt(0)')
        fills = [[] for _ in range(12)]
        for k_, r in enumerate(brd(1, vB1)): fills[k_].append(r)
        for k_, z in enumerate(zl((n0 + 5) % 6, s_bz)): fills[4 + 2*k_].append(z)
        weave(e, mfl(0, n0), fills)
        e(f's_and_b32 s{s_t0}, s{s_st}, 3')
        e(f's_movk_i32 s{s_sd}, 16384')
        e(f's_cmp_eq_u32 s{s_t0}, 3')
        e(f's_cselect_b32 s{s_sd}, {(-49152) & 0xffffffff}, s{s_sd}')
        zoff(6)
        e('s_waitcnt lgkmcnt(0)')
        e('s_barrier')
        e(f'v_add_u32 v{vB0}, s{s_sd}, v{vB0}')
        e('s_waitcnt vmcnt(12)')
        fills = [[] for _ in range(12)]
        for k_, r in enumerate(brd(0, vB0)): fills[k_].append(r)
        for k_, z in enumerate(zl((n1 + 5) % 6, s_bz)): fills[4 + 2*k_].append(z)
        weave(e, mfl(1, n1), fills)
        e(f'v_add_u32 v{vB1}, s{s_sd}, v{vB1}')
        e(f's_add_u32 s{s_st}, s{s_st}, 1')
        e(f's_cmp_eq_u32 s{s_st}, 16')
        if u < 2: e('s_cbranch_scc1 K2_GDONE')
        else: e('s_cbranch_scc0 K2_GLOOP')
    e.label('K2_GDONE')
    nbar['G'] += 16
    stp.stamp(e)
    e.c('G epilogue')
    e('s_waitcnt vmcnt(0)')
    Z1 = ZA; BS = ZA + 12
    e(f's_lshl_b32 s{s_t0}, s{s_tb}, 2')
    e(f's_lshl_b32 s{s_t1}, s{s_kh}, 1')
    e(f's_add_u32 s45, s{s_t0}, s{s_t1}')
    e(f's_mul_i32 s{s_t1}, s45, 48')
    e(f's_add_u32 s{s_t1}, s{s_t1}, s44')
    e(f's_lshl_b32 s{s_t1}, s{s_t1}, 9')
    e(f's_add_u32 s{s_t1}, s{s_t1}, {Z1F}')
    e(f's_add_u32 s{s_t2}, s{s_t1}, {48*512}')
    e(f'v_lshlrev_b32 v{vT}, 3, v{vLane}')
    for u in range(2):
        for ft in range(3):
            z = Z1 + (u*3+ft)*2
            e(f'buffer_load_dwordx2 v[{z}:{z+1}], v{vT}, s[{sWS}:{sWS+3}], s{s_t1 if u==0 else s_t2} offen offset:{ft*512}')
    e(f'v_lshlrev_b32 v{vT+1}, 1, v{vL15}')
    e(f's_lshl_b32 s{s_t0}, s45, 5')
    e(f'buffer_load_ushort v{BS}, v{vT+1}, s[{sB}:{sB+3}], s{s_t0} offen')
    e(f'buffer_load_ushort v{BS+1}, v{vT+1}, s[{sB}:{sB+3}], s{s_t0} offen offset:32')
    e('s_waitcnt lgkmcnt(0)')
    bar('G')
    e(f's_mul_i32 s{s_t0}, s{s_w}, 6144')
    e(f'v_lshlrev_b32 v{vT}, 4, v{vLane}')
    e(f'v_add_u32 v{vT+1}, s{s_t0}, v{vT}')
    e(f's_xor_b32 s{s_t1}, s{s_w}, 2')
    e(f's_mul_i32 s{s_t1}, s{s_t1}, 6144')
    e(f'v_add_u32 v{vT+2}, s{s_t1}, v{vT}')
    e(f's_cmp_eq_u32 s{s_kh}, 0')
    e('s_cbranch_scc0 K2_KH1')
    RX = BF; OWN = ZA + 16
    for kh in range(2):
        if kh == 1: e.label('K2_KH1')
        for ft in range(3):
            for u in range(2):
                a = ACC + (ft*4 + 2*(1-kh) + u)*4
                e(f'ds_write_b128 v{vT+1}, v[{a}:{a+3}] offset:{(ft*2+u)*1024}')
        for ft in range(3):
            for u in range(2):
                a = ACC + (ft*4 + 2*kh + u)*4
                for r in range(4):
                    e(f'v_mov_b32 v{OWN+(ft*2+u)*4+r}, v{a+r}')
        if kh == 0: e('s_branch K2_KHD')
    e.label('K2_KHD')
    e('s_waitcnt lgkmcnt(0)')
    bar('G')
    for i in range(6):
        e(f'ds_read_b128 v[{RX+i*4}:{RX+i*4+3}], v{vT+2} offset:{i*1024}')
    e('s_waitcnt vmcnt(0)')
    e(f'v_lshlrev_b32 v{vT+4}, 16, v{BS}')
    e(f'v_lshlrev_b32 v{vT+5}, 16, v{BS+1}')
    e(f'v_lshlrev_b32 v{vT+6}, 4, v{vLane}')
    e('s_waitcnt lgkmcnt(0)')
    for ft in range(3):
        e(f's_add_u32 s{s_t0}, s44, {ft}')
        e(f's_lshr_b32 s{s_t1}, s{s_t0}, 1')
        e(f's_and_b32 s{s_t0}, s{s_t0}, 1')
        e(f's_lshl_b32 s{s_t0}, s{s_t0}, 3')
        e(f's_lshl_b32 s{s_t1}, s{s_t1}, 10')
        e(f's_add_u32 s{s_t0}, s{s_t0}, s{s_t1}')
        e(f's_mul_i32 s{s_t1}, s45, {24*1024}')
        e(f's_add_u32 s{s_t0}, s{s_t0}, s{s_t1}')
        e(f's_add_u32 s{s_t0}, s{s_t0}, {PF}')
        e(f's_add_u32 s{s_t1}, s{s_t0}, {24*1024}')
        for u in range(2):
            o = OWN + (ft*2+u)*4; rx = RX + (ft*2+u)*4; z = Z1 + (u*3+ft)*2
            bb = vT + 4 + u
            for p in range(2):
                for h in range(2): e(f'v_add_f32 v{o+2*p+h}, v{o+2*p+h}, v{rx+2*p+h}')
                for h in range(2): e(f'v_add_f32 v{o+2*p+h}, v{o+2*p+h}, v{bb}')
                e(f'v_lshlrev_b32 v{rx+2*p}, 16, v{z+p}')
                e(f'v_and_b32 v{rx+2*p+1}, s{s_mask}, v{z+p}')
                for h in range(2): e(f'v_mul_f32 v{o+2*p+h}, v{o+2*p+h}, v{rx+2*p+h}')
                e(f'v_cvt_pk_bf16_f32 v{z+p}, v{o+2*p}, v{o+2*p+1}')
            e(f'buffer_store_dwordx2 v[{z}:{z+1}], v{vT+6}, s[{sWS}:{sWS+3}], s{s_t0 if u==0 else s_t1} offen')
    stp.flush(e, 1, sWS, vT, s_w)
    e('s_endpgm')

    e.label('K2_L')
    e.c('role L: w_sp loaders')
    vD = 4; t = 10
    s_bw, s_m = 38, 39
    e(f's_lshl_b32 s{s_t0}, s{s_tb}, 6')
    e(f's_lshl_b32 s{s_t1}, s{s_wl}, 4')
    e(f's_add_u32 s{s_t0}, s{s_t0}, s{s_t1}')
    for tt in range(4):
        e(f'v_add_u32 v{t}, {4*tt}, v{vQ}')
        e(f'v_xor_b32 v{t+1}, v{t}, v{vL15}')
        e(f'v_lshlrev_b32 v{t+1}, 4, v{t+1}')
        e(f'v_add_u32 v{t}, s{s_t0}, v{t}')
        e(f'v_lshlrev_b32 v{t}, 12, v{t}')
        e(f'v_add_u32 v{vD+tt}, v{t}, v{t+1}')
    e(f's_lshl_b32 s{s_m}, s{s_wl}, 12')
    e('s_waitcnt lgkmcnt(0)')
    srd(e, sSP, P, S*S*2)
    cnt = [0]; done = {}
    def issue(j):
        e(f's_movk_i32 s{s_bw}, {j*256}')
        for tt in range(4):
            e(f's_add_u32 m0, s{s_m}, {(j % 4)*16384 + tt*1024}')
            e('s_nop 0')
            e(f'buffer_load_dwordx4 v{vD+tt}, s[{sSP}:{sSP+3}], s{s_bw} offen lds')
        cnt[0] += 4; done[j] = cnt[0]
    def lbar(j):
        e(f's_waitcnt vmcnt({cnt[0] - done[j]})'); bar('L')
    for j in range(4): issue(j)
    lbar(0)
    for i in range(16):
        if i + 1 < 16: lbar(i + 1)
        else: bar('L')
        if i + 4 < 16: issue(i + 4)
    bar('L'); bar('L')
    e('s_endpgm')

    e.label('K2_C')
    e.c('role C: conv')
    s_d, s_base, s_p = 35, 36, 37
    vA_, vB_ = 4, 5
    vT = 6
    HC = 16; DV = 46; ACC = 48; AF = 80; BFr = 112
    e(f's_sub_u32 s{s_t2}, s{s_w}, 4')
    e(f's_mul_i32 s{s_d}, s{s_fb}, 80')
    e(f's_mul_i32 s{s_t0}, s{s_tb}, 3')
    e(f's_lshl_b32 s{s_t1}, s{s_tb}, 1')
    e(f's_add_u32 s{s_t1}, s{s_t1}, 16')
    e(f's_cmp_lt_u32 s{s_tb}, 16')
    e(f's_cselect_b32 s{s_t0}, s{s_t0}, s{s_t1}')
    e(f's_cselect_b32 s{s_t1}, 3, 2')
    e(f's_add_u32 s{s_d}, s{s_d}, s{s_t0}')
    e(f's_add_u32 s{s_d}, s{s_d}, s{s_t2}')
    e(f's_cmp_lt_u32 s{s_t2}, s{s_t1}')
    e('s_cbranch_scc0 K2_IDLE')
    e(f's_mul_i32 s{s_base}, s{s_t2}, {CW_SZ}')
    e(f's_add_u32 s{s_base}, s{s_base}, {CONV0}')
    e('s_waitcnt lgkmcnt(0)')
    e(f's_lshl_b32 s{s_t0}, s{s_d}, 12')
    e(f's_add_u32 s{sH}, s{P+8}, s{s_t0}')
    e(f's_addc_u32 s{sH+1}, s{P+9}, 0')
    e(f's_and_b32 s{sH+1}, s{sH+1}, 0xffff')
    e(f's_mov_b32 s{sH+2}, 4096')
    e(f's_mov_b32 s{sH+3}, 0x20000')
    srd(e, sWS, P+4, WS_SIZE)
    srd(e, sDd, P+10, D*2)
    e(f'v_lshlrev_b32 v{vT}, 4, v{vLane}')
    for n in range(4):
        c = HC + n*6
        e(f'buffer_load_dwordx4 v[{c}:{c+3}], v{vT}, s[{sH}:{sH+3}], 0 offen offset:{n*1024}')
        e(f'buffer_load_dwordx2 v[{c+4}:{c+5}], v{vT}, s[{sH}:{sH+3}], 0 offen offset:{n*1024+16}')
    X = 40
    e(f'v_mov_b32 v{vT+1}, 0')
    e(f'buffer_load_dwordx2 v[{X+4}:{X+5}], v{vT+1}, s[{sH}:{sH+3}], 0 offen')
    e(f's_lshl_b32 s{s_t0}, s{s_d}, 1')
    e(f'buffer_load_ushort v{DV}, v{vT+1}, s[{sDd}:{sDd+3}], s{s_t0} offen')
    e(f's_lshl_b32 s{s_t0}, s{s_d}, 12')
    e(f's_add_u32 s{s_t0}, s{s_t0}, {KVT}')
    for n in range(4):
        e(f's_add_u32 m0, s{s_base}, {CW_U + 512 + n*1024}')
        e(f's_add_u32 s{s_t1}, s{s_t0}, {n*1024}')
        e(f'buffer_load_dwordx4 v{vT}, s[{sWS}:{sWS+3}], s{s_t1} offen lds')
    e(f'v_mov_b32 v{vT+2}, 0'); e(f'v_mov_b32 v{vT+3}, 0')
    e(f'v_lshlrev_b32 v{vT+4}, 3, v{vLane}')
    e(f'v_add_u32 v{vT+4}, s{s_base}, v{vT+4}')
    e(f'ds_write_b64 v{vT+4}, v[{vT+2}:{vT+3}] offset:{CW_U}')
    e(f'v_add_u32 v{vT+4}, 1, v{vL15}')
    e(f'v_and_b32 v{vT+4}, 3, v{vT+4}')
    e(f'v_lshrrev_b32 v{vT+5}, 1, v{vQ}')
    e(f'v_and_b32 v{vT+6}, 1, v{vQ}')
    e(f'v_lshlrev_b32 v{vT+7}, 4, v{vT+5}')
    e(f'v_add_u32 v{vT+7}, v{vT+7}, v{vL15}')
    e(f'v_lshlrev_b32 v{vT+8}, 3, v{vT+6}')
    e(f'v_sub_u32 v{vT+7}, v{vT+7}, v{vT+8}')
    e(f'v_add_u32 v{vT+7}, 9, v{vT+7}')
    e(f'v_sub_u32 v{vT+7}, v{vT+7}, v{vT+4}')
    e(f'v_lshlrev_b32 v{vT+7}, 1, v{vT+7}')
    e(f'v_mul_u32_u24 v{vT+4}, {HCP}, v{vT+4}')
    e(f'v_add_u32 v{vT+7}, v{vT+7}, v{vT+4}')
    e(f'v_add_u32 v{vA_}, s{s_base}, v{vT+7}')
    e(f'v_sub_u32 v{vT+7}, v{vL15}, v{vT+5}')
    e(f'v_lshlrev_b32 v{vT+7}, 1, v{vT+7}')
    e(f'v_add_u32 v{vT+7}, v{vT+7}, v{vT+6}')
    e(f'v_lshlrev_b32 v{vT+7}, 4, v{vT+7}')
    e(f's_add_u32 s{s_t0}, s{s_base}, {CW_U + 512}')
    e(f'v_add_u32 v{vB_}, s{s_t0}, v{vT+7}')
    e(f'v_lshlrev_b32 v{vT+4}, 4, v{vLane}')
    e(f'v_add_u32 v{vT+4}, s{s_base}, v{vT+4}')
    bar('C')
    stC = Stamper(); stC.n = 1
    TM = 112
    def copies(c, off, k):
        t_ = TM + (k % 4)*12
        e(f'v_alignbit_b32 v{t_+0}, v{c+1}, v{c+0}, 16')
        e(f'v_alignbit_b32 v{t_+1}, v{c+2}, v{c+1}, 16')
        e(f'v_alignbit_b32 v{t_+2}, v{c+3}, v{c+2}, 16')
        e(f'v_alignbit_b32 v{t_+3}, v{c+4}, v{c+3}, 16')
        e(f'v_mov_b32 v{t_+4}, v{c+1}'); e(f'v_mov_b32 v{t_+5}, v{c+2}')
        e(f'v_mov_b32 v{t_+6}, v{c+3}'); e(f'v_mov_b32 v{t_+7}, v{c+4}')
        e(f'v_mov_b32 v{t_+8}, v{t_+1}'); e(f'v_mov_b32 v{t_+9}, v{t_+2}'); e(f'v_mov_b32 v{t_+10}, v{t_+3}')
        e(f'v_alignbit_b32 v{t_+11}, v{c+5}, v{c+4}, 16')
        e(f'ds_write_b128 v{vT+4}, v[{c}:{c+3}] offset:{off}')
        e(f'ds_write_b128 v{vT+4}, v[{t_}:{t_+3}] offset:{off + HCP}')
        e(f'ds_write_b128 v{vT+4}, v[{t_+4}:{t_+7}] offset:{off + 2*HCP}')
        e(f'ds_write_b128 v{vT+4}, v[{t_+8}:{t_+11}] offset:{off + 3*HCP}')
    e('s_waitcnt vmcnt(0)')
    stC.stamp(e)
    for n in range(2):
        copies(HC + n*6, 32 + n*1024, n)
        e('s_waitcnt lgkmcnt(4)')
    bar('C')
    for n in range(2, 4):
        copies(HC + n*6, 32 + n*1024, n)
        e('s_waitcnt lgkmcnt(4)')
    for i in range(4): e(f'v_mov_b32 v{X+i}, 0')
    e(f'v_cmp_eq_u32 vcc, 1, v{vLane}')
    e(f'v_cndmask_b32 v{X+4}, 0, v{X+4}, vcc')
    e(f'v_cndmask_b32 v{X+5}, 0, v{X+5}, vcc')
    e('s_waitcnt lgkmcnt(0)')
    set_exec(e, 3, 0)
    copies(X, 0, 0)
    e(f's_mov_b64 exec, s[{s_ex}:{s_ex+1}]')
    e(f'v_lshlrev_b32 v{DV}, 16, v{DV}')
    for i in range(32): e(f'v_mov_b32 v{ACC+i}, 0')
    e('s_waitcnt lgkmcnt(0)')
    AFr = 80; B0 = 112; B1 = 144
    def a_rd(m):
        a = AFr + m*4
        return [f'ds_read_b64 v[{a}:{a+1}], v{vA_} offset:{m*512}', f'ds_read_b64 v[{a+2}:{a+3}], v{vA_} offset:{m*512+8}']
    def breg(buf, ee):
        return (B0 + 4*ee) if buf == 0 else (B1 + 4*ee if ee < 6 else B0 + 4*ee)
    e.c('conv main')
    bar('C')
    stC.stamp(e)
    def b_rd(ee):
        b = B0 + 4*ee
        return [f'ds_read_b128 v[{b}:{b+3}], v{vB_} offset:{ee*512}']
    for m in range(8):
        for x in a_rd(m): e(x)
        for x in b_rd(m): e(x)
        if m % 3 == 2: e('s_waitcnt lgkmcnt(6)')
    e(f's_mov_b32 s{s_p}, 0')
    e.label('K2_CLOOP')
    e(f'v_add_u32 v{vA_}, 64, v{vA_}')
    e(f'v_subrev_u32 v{vB_}, 64, v{vB_}')
    e('s_waitcnt lgkmcnt(0)')
    for m in range(8):
        mf = []
        for c in range(m, 8):
            a = AFr + m*4; b = B0 + (c-m)*4; d = ACC + c*4
            mf.append(f'v_mfma_f32_16x16x32_bf16 v[{d}:{d+3}], v[{a}:{a+3}], v[{b}:{b+3}], v[{d}:{d+3}]')
        for x in mf: e(x)
        for x in a_rd(m): e(x)
        for x in b_rd(7 - m): e(x)
        if m in (3, 6): e('s_waitcnt lgkmcnt(6)')
        if m == 2: e('s_barrier')
    e('s_barrier')
    e(f's_add_u32 s{s_p}, s{s_p}, 1')
    e(f's_cmp_lt_u32 s{s_p}, 8')
    e('s_cbranch_scc1 K2_CLOOP')
    nbar['C'] += 16
    e('s_waitcnt lgkmcnt(0)')
    stC.stamp(e)
    e(f'v_lshlrev_b32 v{vT}, 5, v{vL15}')
    e(f'v_lshrrev_b32 v{vT+1}, 1, v{vQ}')
    e(f'v_lshlrev_b32 v{vT+1}, 4, v{vT+1}')
    e(f'v_add_u32 v{vT}, v{vT}, v{vT+1}')
    e(f'v_and_b32 v{vT+1}, 1, v{vQ}')
    e(f'v_xor_b32 v{vT+1}, 1, v{vT+1}')
    e(f'v_lshlrev_b32 v{vT+1}, 3, v{vT+1}')
    e(f'v_add_u32 v{vT}, v{vT}, v{vT+1}')
    e(f's_add_u32 s{s_t0}, s{s_base}, {CW_U + 512}')
    e(f'v_add_u32 v{vT}, s{s_t0}, v{vT}')
    KV = AFr
    for c in range(8):
        e(f'ds_read_b64 v[{KV+2*c}:{KV+2*c+1}], v{vT} offset:{c*512}')
    e(f'v_lshlrev_b32 v{vT+2}, 5, v{vL15}')
    e(f'v_lshlrev_b32 v{vT+3}, 3, v{vQ}')
    e(f'v_add_u32 v{vT+2}, v{vT+2}, v{vT+3}')
    e(f's_lshl_b32 s{s_t0}, s{s_d}, 12')
    e(f's_add_u32 s{s_t0}, s{s_t0}, {YYT}')
    e('s_waitcnt lgkmcnt(0)')
    U = B0
    for c in range(8):
        a = ACC + c*4; k0 = KV + 2*c; u = U + (c % 4)*8
        e(f'v_and_b32 v{u+0}, s{s_mask}, v{k0+1}')
        e(f'v_lshlrev_b32 v{u+1}, 16, v{k0+1}')
        e(f'v_and_b32 v{u+2}, s{s_mask}, v{k0}')
        e(f'v_lshlrev_b32 v{u+3}, 16, v{k0}')
        for r in range(4): e(f'v_fmac_f32 v{a+r}, v{u+r}, v{DV}')
        e(f'v_cvt_pk_bf16_f32 v{u+4}, v{a}, v{a+1}')
        e(f'v_cvt_pk_bf16_f32 v{u+5}, v{a+2}, v{a+3}')
        e(f'buffer_store_dwordx2 v[{u+4}:{u+5}], v{vT+2}, s[{sWS}:{sWS+3}], s{s_t0} offen offset:{c*512}')
    stC.flush(e, 1, sWS, vT, s_w)
    e('s_endpgm')
    e.label('K2_IDLE')
    for _ in range(NB): bar('I')
    e.label('K2_END')
    e('s_endpgm')
    print('k2 barriers', nbar)
    assert nbar['G'] == nbar['C'] == nbar['L'] == nbar['I'] == NB, nbar
    nn = e.finalize()
    return kernel_wrap('k2_kernel', e.text(), vgpr=168, sgpr=96), nn
```

```python
from common import *
from k2b import ids
import os
WO_SZ = 122880
XT = WO_SZ
YT = XT + 10240
LDS3 = YT + 10240
BLOCK3 = 768
NB3 = 6

def gen_k3(e=None, fused=False):
    own = e is None
    if own: e = Emitter()
    sX, sO, sWS = 8, 12, 16
    s_tb, s_db, s_w, s_wl = 32, 33, 34, 55
    s_t0, s_t1, s_t2 = 40, 41, 42
    s_mask = 47; s_ex = 52; s_one = 48
    P = 56
    vLane, vQ, vL15 = 1, 2, 3
    LF = 'sc1' if fused else ''
    nbar = {'G': 0, 'L': 0, 'I': 0}
    def bar(r):
        e('s_barrier'); nbar[r] += 1
    stp = Stamper(); stp.mute = fused
    if not fused:
        e('s_cmp_ge_u32 s2, 256')
        e('s_cbranch_scc1 K3_END')
        stp.start(e)
        e(f's_load_dwordx2 s[{P+4}:{P+5}], s[0:1], 104')
        ids(e, s_tb, s_db, s_w, s_wl, s_t0, s_t1, s_t2, 12)
        e(f's_mov_b32 s{s_mask}, 0xffff0000')
        e(f's_mov_b64 s[{s_ex}:{s_ex+1}], exec')
        e('s_waitcnt lgkmcnt(0)')
        srd(e, sWS, P+4, WS_SIZE)
        e(f's_cmp_ge_u32 s{s_w}, 8')
        e('s_cbranch_scc1 K3_L')
        e(f's_cmp_ge_u32 s{s_w}, 4')
        e('s_cbranch_scc1 K3_END')

    def g3_setup():
        e(f's_load_dwordx2 s[{P}:{P+1}], s[0:1], 0')
        e(f's_load_dwordx2 s[{P+2}:{P+3}], s[0:1], 88')
        e(f'v_lshlrev_b32 v{vL16}, 4, v{vLane}')
        e(f's_lshl_b32 s{s_tt}, s{s_tb}, 2')
        e(f's_add_u32 s{s_tt}, s{s_tt}, s{s_w}')
        e(f's_mul_i32 s{s_pb}, s{s_tt}, {24*1024}')
        e(f's_add_u32 s{s_pb}, s{s_pb}, {PF}')
        e(f's_lshl_b32 s{s_t0}, s{s_tt}, 4')
        e(f's_mul_i32 s{s_t0}, s{s_t0}, 1280')
        e(f's_mul_i32 s{s_t1}, s{s_db}, 160')
        e(f's_add_u32 s{s_t0}, s{s_t0}, s{s_t1}')
        for n in range(3):
            e(f'v_add_u32 v{vT}, {64*n}, v{vLane}')
            e(f'v_mul_u32_u24 v{vT+1}, 6554, v{vT}')
            e(f'v_lshrrev_b32 v{vT+1}, 16, v{vT+1}')
            e(f'v_mul_u32_u24 v{vT+2}, 10, v{vT+1}')
            e(f'v_sub_u32 v{vT+2}, v{vT}, v{vT+2}')
            e(f'v_lshlrev_b32 v{vT+2}, 4, v{vT+2}')
            e(f'v_mul_u32_u24 v{vT+1}, 1280, v{vT+1}')
            e(f'v_add_u32 v{vT+1}, v{vT+1}, v{vT+2}')
            e(f'v_add_u32 v{vXO+n}, s{s_t0}, v{vT+1}')
            e(f'v_lshrrev_b32 v{vT+1}, 1, v{vT}')
            e(f'v_lshlrev_b32 v{vT+1}, 12, v{vT+1}')
            e(f'v_and_b32 v{vT+2}, 1, v{vT}')
            e(f'v_lshlrev_b32 v{vT+2}, 4, v{vT+2}')
            e(f'v_add_u32 v{vYO+n}, v{vT+1}, v{vT+2}')
        e(f's_mul_i32 s{s_xl}, s{s_w}, 2560')
        e(f's_mul_i32 s{s_yo}, s{s_db}, {80*4096}')
        e(f's_lshl_b32 s{s_t1}, s{s_tt}, 5')
        e(f's_add_u32 s{s_yo}, s{s_yo}, s{s_t1}')
        e(f's_add_u32 s{s_yo}, s{s_yo}, {YYT}')
        e(f'v_lshlrev_b32 v{vT+9}, 3, v{vL15}')
        e(f's_lshl_b32 s{s_st}, s{s_tt}, 7')
        e(f's_add_u32 s{s_st}, s{s_st}, {ST1}')
        e(f'v_add_u32 v{vT+8}, 65536, v{vL16}')
        e('s_waitcnt lgkmcnt(0)')
        srd(e, sX, P, S*D*2)
        srd(e, sO, P+2, S*D*2)
    vL16 = 4; vXO = 5; vYO = 8; vT = 12; ST = 24
    AFr = 28; ACC = 68; PFR = 88
    s_tt, s_pb, s_xl, s_yo, s_st = 35, 36, 37, 38, 39
    if not fused:
        e.label('K3_G')
        g3_setup()
    def g3_main():
        def pl(ks):
            r = PFR + (ks % 12)*4
            return [f's_add_u32 s{s_t0}, s{s_pb}, {(ks // 4)*4096}',
                    f'buffer_load_dwordx4 v[{r}:{r+3}], v{vL16}, s[{sWS}:{sWS+3}], s{s_t0} offen offset:{(ks % 4)*1024} {LF}']
        for ks in range(12):
            for x in pl(ks): e(x)
        tail = []
        for n in range(3):
            pre = ['s_mov_b32 exec_hi, 0'] if n == 2 else []
            post = ['s_mov_b32 exec_hi, -1'] if n == 2 else []
            tail.append(pre + [f's_add_u32 m0, s{s_xl}, {XT + n*1024}', 's_nop 0',
                         f'buffer_load_dwordx4 v{vXO+n}, s[{sX}:{sX+3}], 0 offen lds'] + post)
            tail.append(pre + [f's_add_u32 m0, s{s_xl}, {YT + n*1024}', 's_nop 0',
                         f'buffer_load_dwordx4 v{vYO+n}, s[{sWS}:{sWS+3}], s{s_yo} offen {LF} lds'] + post)
        tail.append([f'buffer_load_dwordx2 v[{ST}:{ST+1}], v{vT+9}, s[{sWS}:{sWS+3}], s{s_st} offen {LF}'])
        for i in range(20): e(f'v_mov_b32 v{ACC+i}, 0')
        def rds(buf, ks):
            L = []
            for dt in range(5):
                a = AFr + buf*20 + dt*4
                L.append(f'ds_read_b128 v[{a}:{a+3}], v{vL16 if (ks*5+dt)*1024 < 65536 else vT+8} offset:{((ks*5+dt)*1024) % 65536}')
            return L
        bar('G')
        stp.stamp(e)
        for x in rds(0, 0): e(x)
        for ks in range(24):
            buf = ks % 2; kk = ks % 4
            nvm = 11 if ks < 12 else (23 - ks + min(7, ks - 12))
            nxt = []
            if ks + 1 < 24:
                if kk == 3:
                    e(f's_waitcnt vmcnt({nvm}) lgkmcnt(0)')
                    bar('G')
                else:
                    e(f's_waitcnt vmcnt({nvm}) lgkmcnt(0)')
                nxt = rds(1 - buf, ks + 1)
            else:
                e(f's_waitcnt vmcnt({nvm}) lgkmcnt(0)')
            mf = []
            for dt in range(5):
                a = AFr + buf*20 + dt*4; d = ACC + dt*4; p = PFR + (ks % 12)*4
                mf.append(f'v_mfma_f32_16x16x32_bf16 v[{d}:{d+3}], v[{a}:{a+3}], v[{p}:{p+3}], v[{d}:{d+3}]')
            fills = [[] for _ in range(5)]
            for n, r in enumerate(nxt): fills[n].append(r)
            if ks < 12: fills[4] += pl(ks + 12)
            elif ks - 12 < 7: fills[4] += tail[ks - 12]
            weave(e, mf, fills)
        e.c('k3 epilogue')
        stp.stamp(e)
        e('s_waitcnt vmcnt(0)')
        e(f'v_mul_u32_u24 v{vT}, 160, v{vL15}')
        e(f'v_lshlrev_b32 v{vT+1}, 3, v{vQ}')
        e(f'v_add_u32 v{vT}, v{vT}, v{vT+1}')
        e(f's_add_u32 s{s_t0}, s{s_xl}, {XT}')
        e(f'v_add_u32 v{vT}, s{s_t0}, v{vT}')
        e(f'v_lshlrev_b32 v{vT+1}, 7, v{vQ}')
        e(f'v_lshlrev_b32 v{vT+2}, 3, v{vL15}')
        e(f'v_add_u32 v{vT+1}, v{vT+1}, v{vT+2}')
        e(f's_add_u32 s{s_t0}, s{s_xl}, {YT}')
        e(f'v_add_u32 v{vT+1}, s{s_t0}, v{vT+1}')
        E = PFR
        XR = E; YR = E + 10
        for dt in range(5):
            e(f'ds_read_b64 v[{XR+2*dt}:{XR+2*dt+1}], v{vT} offset:{dt*32}')
            e(f'ds_read_b64_tr_b16 v[{YR+2*dt}:{YR+2*dt+1}], v{vT+1} offset:{dt*512}')
        NM = vT + 2
        e(f'v_sub_f32 v{NM}, 0, v{ST}')
        e(f'v_mov_b32 v{vT+4}, v{ST+1}')
        e(f's_mov_b32 s{s_one}, 1.0'); e(f's_mov_b32 s{s_one+1}, 1.0')
        e(f'v_mov_b32 v{vT+6}, {hexf(-1.4426950408889634)}'); e(f'v_mov_b32 v{vT+7}, {hexf(-1.4426950408889634)}')
        e('s_waitcnt lgkmcnt(0)')
        W = E + 20
        for dt in range(5):
            for p in range(2):
                a = ACC + dt*4 + 2*p
                x = W + (p*8); y = x + 2; g = x + 4; s = x + 6
                e(f'v_lshlrev_b32 v{x}, 16, v{XR+2*dt+p}')
                e(f'v_and_b32 v{x+1}, s{s_mask}, v{XR+2*dt+p}')
                e(f'v_lshlrev_b32 v{y}, 16, v{YR+2*dt+p}')
                e(f'v_and_b32 v{y+1}, s{s_mask}, v{YR+2*dt+p}')
                e(f'v_pk_mul_f32 v[{g}:{g+1}], v[{a}:{a+1}], v[{vT+6}:{vT+7}]')
                e(f'v_exp_f32 v{g}, v{g}')
                e(f'v_exp_f32 v{g+1}, v{g+1}')
                e(f'v_pk_add_f32 v[{s}:{s+1}], v[{x}:{x+1}], v[{NM}:{NM+1}] op_sel_hi:[1,0]')
                e(f'v_pk_add_f32 v[{g}:{g+1}], v[{g}:{g+1}], s[{s_one}:{s_one+1}]')
                e(f'v_pk_mul_f32 v[{s}:{s+1}], v[{s}:{s+1}], v[{vT+4}:{vT+5}] op_sel_hi:[1,0]')
                e(f'v_rcp_f32 v{g}, v{g}')
                e(f'v_rcp_f32 v{g+1}, v{g+1}')
                e(f'v_pk_mul_f32 v[{s}:{s+1}], v[{s}:{s+1}], v[{y}:{y+1}]')
                e(f'v_pk_mul_f32 v[{g}:{g+1}], v[{g}:{g+1}], v[{a}:{a+1}]')
                e(f'v_pk_fma_f32 v[{s}:{s+1}], v[{s}:{s+1}], v[{g}:{g+1}], v[{x}:{x+1}]')
                e(f'v_cvt_pk_bf16_f32 v{XR+2*dt+p}, v{s}, v{s+1}')
            e(f'ds_write_b64 v{vT}, v[{XR+2*dt}:{XR+2*dt+1}] offset:{dt*32}')
        e('s_waitcnt lgkmcnt(0)')
        e(f's_add_u32 s{s_t0}, s{s_xl}, {XT}')
        e(f'v_add_u32 v{vT+1}, s{s_t0}, v{vL16}')
        OR = W + 16
        for n in range(3):
            e(f'ds_read_b128 v[{OR+4*n}:{OR+4*n+3}], v{vT+1} offset:{n*1024}')
        e('s_waitcnt lgkmcnt(0)')
        for n in range(3):
            if n == 2: set_exec(e, 0xffffffff, 0)
            e(f'buffer_store_dwordx4 v[{OR+4*n}:{OR+4*n+3}], v{vXO+n}, s[{sO}:{sO+3}], 0 offen')
        e(f's_mov_b64 exec, s[{s_ex}:{s_ex+1}]')
    def l3_issue_all():
        s_wb, s_l5 = 35, 36
        e(f'v_lshlrev_b32 v4, 4, v{vLane}')
        e(f's_mul_i32 s{s_wb}, s{s_db}, {5*24*1024}')
        e(f's_lshl_b32 s{s_t0}, s{s_wl}, 10')
        e(f's_add_u32 s{s_wb}, s{s_wb}, s{s_t0}')
        e(f's_add_u32 s{s_wb}, s{s_wb}, {WOF}')
        e(f's_mul_i32 s{s_l5}, s{s_wl}, 5120')
        def grp(g):
            for u in range(5):
                e(f's_add_u32 m0, s{s_l5}, {(4*g*5 + u)*1024}')
                e(f's_add_u32 s{s_t0}, s{s_wb}, {(u*24 + 4*g)*1024}')
                e(f'buffer_load_dwordx4 v4, s[{sWS}:{sWS+3}], s{s_t0} offen {LF} lds')
        return grp
    if fused:
        return dict(g3_setup=g3_setup, g3_main=g3_main, l3=l3_issue_all, nbar=nbar, bar=bar)
    g3_main()
    stp.flush(e, 2, sWS, vT, s_w)
    e('s_endpgm')
    e.label('K3_L')
    grp = l3_issue_all()
    grp(0); grp(1)
    for g in range(6):
        issued = min(6, g + 2)
        e(f's_waitcnt vmcnt({5*(issued - g - 1)})'); bar('L')
        if g + 2 < 6: grp(g + 2)
    e.label('K3_END')
    e('s_endpgm')
    print('k3 barriers', nbar)
    assert nbar['G'] == nbar['L'] == NB3
    nn = e.finalize()
    return kernel_wrap('k3_kernel', e.text(), vgpr=168, sgpr=96), nn
```

```python
from common import *
import k1 as K1
import k3b as K3
import os
HCP = 4160
CW_U = 4 * HCP
CW_SZ = CW_U + 512 + 4096
CONV0 = 65536
Z1L = K1.Z1L
LDSF = Z1L + 12288
BLOCKF = 768
NAME = 'recurrent_scan__ssm_conv_h3__mixer_gmlp__prompt_kernel'
POLL_MAX = 1 << 21

s_rb, s_cb, s_w, s_wl = 32, 33, 34, 55
s_t0, s_t1, s_t2 = 40, 41, 42
s_mask = 47; s_ex = 52
sWS = 16; sD = 4
P = 56
vLane, vQ, vL15 = 1, 2, 3

class Hooks:
    def __init__(self):
        self.nb = {}
    def flag_addr(self, e, v, vt):
        e(f's_lshl_b32 s{s_t0}, s{s_cb}, 7')
        e(f's_lshl_b32 s{s_t1}, s{s_rb}, 2')
        e(f's_add_u32 s{s_t0}, s{s_t0}, s{s_t1}')
        e(f's_add_u32 s{s_t1}, s{s_t0}, {FL2A}')
        e(f's_add_u32 s{s_t0}, s{s_t0}, {FL1}')
        e(f'v_mov_b32 v{v}, s{s_t0}')
        e(f'v_mov_b32 v{vt}, s{s_t1}')
        e(f'v_cmp_eq_u32 vcc, 1, v{vLane}')
        e(f'v_cndmask_b32 v{v}, v{v}, v{vt}, vcc')
        e(f's_lshl_b32 s{s_t0}, s{s_rb}, 5')
        e(f's_lshl_b32 s{s_t1}, s{s_cb}, 2')
        e(f's_add_u32 s{s_t0}, s{s_t0}, s{s_t1}')
        e(f's_add_u32 s{s_t0}, s{s_t0}, {FL2B}')
        e(f'v_mov_b32 v{vt}, s{s_t0}')
        e(f'v_cmp_eq_u32 vcc, 2, v{vLane}')
        e(f'v_cndmask_b32 v{v}, v{v}, v{vt}, vcc')

    def after_A(self, e, stp, bar1):
        e('s_waitcnt vmcnt(0)')
        bar1('A')
        stp.mute = False
        stp.stamp(e)
        self.g2(e, stp)
    def after_B(self, e, stB, bar1):
        e('s_waitcnt lgkmcnt(0)')
        bar1('B')
        self.c2(e, stB, bar1)
    def after_L(self, e, bar1):
        self.l2(e, bar1)

    def g2(self, e, stp):
        nb = [0]
        def bar():
            e('s_barrier'); nb[0] += 1
        sB = 12
        s_fh, s_kh, s_st, s_bz, s_kz, s_sd = 35, 36, 37, 38, 39, 43
        vB0, vB1, vA, vT = 4, 5, 6, 9
        BF = 16; ACC = 48; ZA = 96
        e.c('phase 2: G')
        e(f's_load_dwordx2 s[{P}:{P+1}], s[0:1], 72')
        e(f's_and_b32 s{s_fh}, s{s_w}, 1')
        e(f's_lshr_b32 s{s_kh}, s{s_w}, 1')
        e(f'v_xor_b32 v{vT}, v{vQ}, v{vL15}')
        e(f'v_lshlrev_b32 v{vT}, 4, v{vT}')
        e(f's_lshl_b32 s{s_t0}, s{s_kh}, 6')
        e(f'v_xor_b32 v{vT}, s{s_t0}, v{vT}')
        e(f'v_lshlrev_b32 v{vT+1}, 8, v{vL15}')
        e(f'v_add_u32 v{vB0}, v{vT}, v{vT+1}')
        e(f'v_xor_b32 v{vB1}, 128, v{vB0}')
        e(f's_mul_i32 s{s_t0}, s{s_cb}, 6')
        e(f's_mul_i32 s{s_t1}, s{s_fh}, 3')
        e(f's_add_u32 s{s_t0}, s{s_t0}, s{s_t1}')
        e(f's_lshl_b32 s{s_t0}, s{s_t0}, 16')
        e(f's_add_u32 s{s_t0}, s{s_t0}, {Z2F}')
        e(f'v_lshlrev_b32 v{vT}, 4, v{vLane}')
        for ft in range(3):
            e(f's_add_u32 s{s_t1}, s{s_t0}, {ft*65536}')
            e(f'v_add_u32 v{vA+ft}, s{s_t1}, v{vT}')
        e(f's_lshl_b32 s{s_kz}, s{s_kh}, 10')
        for i in range(48): e(f'v_mov_b32 v{ACC+i}, 0')
        e('s_waitcnt lgkmcnt(0)')
        srd(e, sB, P, S*2)
        def zl(n6, s_off):
            return [f'buffer_load_dwordx4 v[{ZA+(n6*3+ft)*4}:{ZA+(n6*3+ft)*4+3}], v{vA+ft}, s[{sWS}:{sWS+3}], s{s_off} offen sc1' for ft in range(3)]
        bar()
        stp.stamp(e)
        for n in range(5):
            e(f's_add_u32 s{s_bz}, s{s_kz}, {2*n*1024}')
            for x in zl(n, s_bz): e(x)
        def brd(buf, vb):
            return [f'ds_read_b128 v[{BF+buf*16+tt*4}:{BF+buf*16+tt*4+3}], v{vb} offset:{tt*4096}' for tt in range(4)]
        def mfl(buf, n6):
            L = []
            for tt in range(4):
                for ft in range(3):
                    a = ACC + (ft*4+tt)*4; z = ZA + (n6*3+ft)*4; b = BF + buf*16 + tt*4
                    L.append(f'v_mfma_f32_16x16x32_bf16 v[{a}:{a+3}], v[{z}:{z+3}], v[{b}:{b+3}], v[{a}:{a+3}]')
            return L
        def zoff(add):
            e(f's_lshl_b32 s{s_t0}, s{s_st}, 1')
            e(f's_add_u32 s{s_t0}, s{s_t0}, {add}')
            e(f's_lshl_b32 s{s_bz}, s{s_t0}, 11')
            e(f's_add_u32 s{s_bz}, s{s_bz}, s{s_kz}')
            e(f's_cmp_lt_u32 s{s_t0}, 32')
            e(f's_cselect_b32 s{s_bz}, s{s_bz}, 0x80000000')
        e(f's_mov_b32 s{s_st}, 0')
        for x in brd(0, vB0): e(x)
        e.label('F2_GLOOP')
        for u in range(3):
            n0 = (2*u) % 6; n1 = (2*u + 1) % 6
            zoff(5)
            e('s_waitcnt vmcnt(12) lgkmcnt(0)')
            fills = [[] for _ in range(12)]
            for k_, r in enumerate(brd(1, vB1)): fills[k_].append(r)
            for k_, z in enumerate(zl((n0 + 5) % 6, s_bz)): fills[4 + 2*k_].append(z)
            weave(e, mfl(0, n0), fills)
            e(f's_and_b32 s{s_t0}, s{s_st}, 3')
            e(f's_movk_i32 s{s_sd}, 16384')
            e(f's_cmp_eq_u32 s{s_t0}, 3')
            e(f's_cselect_b32 s{s_sd}, {(-49152) & 0xffffffff}, s{s_sd}')
            zoff(6)
            e('s_waitcnt lgkmcnt(0)')
            e('s_barrier')
            e(f'v_add_u32 v{vB0}, s{s_sd}, v{vB0}')
            e('s_waitcnt vmcnt(12)')
            fills = [[] for _ in range(12)]
            for k_, r in enumerate(brd(0, vB0)): fills[k_].append(r)
            for k_, z in enumerate(zl((n1 + 5) % 6, s_bz)): fills[4 + 2*k_].append(z)
            weave(e, mfl(1, n1), fills)
            e(f'v_add_u32 v{vB1}, s{s_sd}, v{vB1}')
            e(f's_add_u32 s{s_st}, s{s_st}, 1')
            e(f's_cmp_eq_u32 s{s_st}, 16')
            if u < 2: e('s_cbranch_scc1 F2_GDONE')
            else: e('s_cbranch_scc0 F2_GLOOP')
        e.label('F2_GDONE')
        nb[0] += 16
        stp.stamp(e)
        e.c('G epilogue')
        BS = vT + 6
        e(f's_lshl_b32 s{s_t0}, s{s_rb}, 2')
        e(f's_add_u32 s45, s{s_t0}, s{s_w}')
        e(f'v_lshlrev_b32 v{vT+1}, 1, v{vL15}')
        e(f's_lshl_b32 s{s_t0}, s45, 5')
        e(f'buffer_load_ushort v{BS}, v{vT+1}, s[{sB}:{sB+3}], s{s_t0} offen')
        e('s_waitcnt lgkmcnt(0)')
        bar()
        e(f's_mul_i32 s{s_t0}, s{s_w}, 3072')
        e(f'v_lshlrev_b32 v{vT}, 4, v{vLane}')
        e(f'v_add_u32 v{vT+1}, s{s_t0}, v{vT}')
        for tt in range(4):
            for ft in range(3):
                a = ACC + (ft*4 + tt)*4
                e(f'ds_write_b128 v{vT+1}, v[{a}:{a+3}] offset:{tt*12288 + ft*1024}')
                if (tt*3 + ft) % 6 == 5: e('s_waitcnt lgkmcnt(6)')
        e('s_waitcnt lgkmcnt(0)')
        bar()
        RX = 16
        e(f's_mul_i32 s{s_t0}, s{s_w}, 12288')
        e(f'v_add_u32 v{vT+1}, s{s_t0}, v{vT}')
        for v in range(4):
            for ft in range(3):
                r = RX + (v*3 + ft)*4
                e(f'ds_read_b128 v[{r}:{r+3}], v{vT+1} offset:{v*3072 + ft*1024}')
            if v == 2: e('s_waitcnt lgkmcnt(6)')
        Z1 = 64
        e(f's_mul_i32 s{s_t0}, s{s_w}, 3072')
        e(f's_add_u32 s{s_t0}, s{s_t0}, {Z1L}')
        e(f'v_lshlrev_b32 v{vT+2}, 3, v{vLane}')
        e(f'v_add_u32 v{vT+2}, s{s_t0}, v{vT+2}')
        e('s_waitcnt lgkmcnt(6)')
        for ftg in range(6):
            e(f'ds_read_b64 v[{Z1+2*ftg}:{Z1+2*ftg+1}], v{vT+2} offset:{ftg*512}')
        e('s_waitcnt vmcnt(0)')
        e(f'v_lshlrev_b32 v{BS}, 16, v{BS}')
        e(f's_mul_i32 s{s_t0}, s45, {24*1024}')
        e(f's_mul_i32 s{s_t1}, s{s_cb}, {3*1024}')
        e(f's_add_u32 s{s_t0}, s{s_t0}, s{s_t1}')
        e(f's_add_u32 s{s_t0}, s{s_t0}, {PF}')
        e('s_waitcnt lgkmcnt(0)')
        OUTP = 76
        TU = 88
        for ftg in range(6):
            fh, ft = ftg // 3, ftg % 3
            a = RX + ((fh + 0)*3 + ft)*4
            b = RX + ((fh + 2)*3 + ft)*4
            for r in range(4): e(f'v_add_f32 v{a+r}, v{a+r}, v{b+r}')
            for r in range(4): e(f'v_add_f32 v{a+r}, v{a+r}, v{BS}')
            for p in range(2):
                e(f'v_lshlrev_b32 v{TU+2*p}, 16, v{Z1+2*ftg+p}')
                e(f'v_and_b32 v{TU+2*p+1}, s{s_mask}, v{Z1+2*ftg+p}')
            for r in range(4): e(f'v_mul_f32 v{a+r}, v{a+r}, v{TU+r}')
            for p in range(2):
                e(f'v_cvt_pk_bf16_f32 v{OUTP+2*ftg+p}, v{a+2*p}, v{a+2*p+1}')
            if ftg % 2 == 1:
                j = ftg // 2
                e(f'buffer_store_dwordx4 v[{OUTP+4*j}:{OUTP+4*j+3}], v{vT}, s[{sWS}:{sWS+3}], s{s_t0} offen offset:{j*1024} sc1')
        e('s_waitcnt vmcnt(0)')
        bar()
        stp.stamp(e)
        self.k3['g3_setup']()
        bar()
        stp.stamp(e)
        self.k3['g3_main']()
        stp.flush(e, 0, sWS, 12, s_w)
        e('s_endpgm')
        self.nb['A2'] = nb[0]

    def poll(self, e, tag, vaddr, vval, srd, nlanes_lo, nlanes_hi, want, ge=False):
        e(f's_mov_b32 s{s_t2}, 0')
        set_exec(e, nlanes_lo, nlanes_hi)
        e.label(f'FP_{tag}')
        e(f'buffer_load_dword v{vval}, v{vaddr}, s[{srd}:{srd+3}], 0 offen sc1')
        e('s_waitcnt vmcnt(0)')
        e(f'v_cmp_{"gt" if ge else "ne"}_u32 vcc, {want}, v{vval}')
        e(f's_add_u32 s{s_t2}, s{s_t2}, 1')
        e('s_cmp_eq_u64 vcc, 0')
        e(f's_cbranch_scc1 FP_{tag}_OK')
        e(f's_cmp_lt_u32 s{s_t2}, {POLL_MAX}')
        e(f's_cbranch_scc0 FP_{tag}_OK')
        e('s_sleep 1')
        e(f's_branch FP_{tag}')
        e.label(f'FP_{tag}_OK')
        e(f's_mov_b64 exec, s[{s_ex}:{s_ex+1}]')

    def c2(self, e, stC, bar1):
        nb = [0]
        def bar():
            e('s_barrier'); nb[0] += 1
        sH, sDd = 20, 24
        s_d, s_base, s_p = 35, 36, 37
        vA_, vB_ = 4, 5
        vT = 6
        HC = 16; DV = 46; ACC = 48
        e.c('phase 2: B stream')
        e(f's_cmp_eq_u32 s{s_w}, 7')
        e('s_cbranch_scc1 F2_SYNC')
        e(f's_load_dwordx4 s[{P+8}:{P+11}], s[0:1], 32')
        e(f's_sub_u32 s{s_t2}, s{s_w}, 4')
        e(f's_mul_i32 s{s_d}, s{s_cb}, 80')
        e(f's_mul_i32 s{s_t0}, s{s_rb}, 3')
        e(f's_lshl_b32 s{s_t1}, s{s_rb}, 1')
        e(f's_add_u32 s{s_t1}, s{s_t1}, 16')
        e(f's_cmp_lt_u32 s{s_rb}, 16')
        e(f's_cselect_b32 s{s_t0}, s{s_t0}, s{s_t1}')
        e(f's_cselect_b32 s{s_t1}, 3, 2')
        e(f's_add_u32 s{s_d}, s{s_d}, s{s_t0}')
        e(f's_add_u32 s{s_d}, s{s_d}, s{s_t2}')
        e(f's_cmp_lt_u32 s{s_t2}, s{s_t1}')
        e('s_cbranch_scc0 F2_IDLE')
        e(f's_mul_i32 s{s_base}, s{s_t2}, {CW_SZ}')
        e(f's_add_u32 s{s_base}, s{s_base}, {CONV0}')
        e('s_waitcnt lgkmcnt(0)')
        e(f's_lshl_b32 s{s_t0}, s{s_d}, 12')
        e(f's_add_u32 s{sH}, s{P+8}, s{s_t0}')
        e(f's_addc_u32 s{sH+1}, s{P+9}, 0')
        e(f's_and_b32 s{sH+1}, s{sH+1}, 0xffff')
        e(f's_mov_b32 s{sH+2}, 4096')
        e(f's_mov_b32 s{sH+3}, 0x20000')
        srd(e, sDd, P+10, D*2)
        e(f'v_lshlrev_b32 v{vT}, 4, v{vLane}')
        for n in range(4):
            c = HC + n*6
            e(f'buffer_load_dwordx4 v[{c}:{c+3}], v{vT}, s[{sH}:{sH+3}], 0 offen offset:{n*1024}')
            e(f'buffer_load_dwordx2 v[{c+4}:{c+5}], v{vT}, s[{sH}:{sH+3}], 0 offen offset:{n*1024+16}')
        X = 40
        e(f'v_mov_b32 v{vT+1}, 0')
        e(f'buffer_load_dwordx2 v[{X+4}:{X+5}], v{vT+1}, s[{sH}:{sH+3}], 0 offen')
        e(f's_lshl_b32 s{s_t0}, s{s_d}, 1')
        e(f'buffer_load_ushort v{DV}, v{vT+1}, s[{sDd}:{sDd+3}], s{s_t0} offen')
        e(f'v_add_u32 v{vT+4}, 1, v{vL15}')
        e(f'v_and_b32 v{vT+4}, 3, v{vT+4}')
        e(f'v_lshrrev_b32 v{vT+5}, 1, v{vQ}')
        e(f'v_and_b32 v{vT+6}, 1, v{vQ}')
        e(f'v_lshlrev_b32 v{vT+7}, 4, v{vT+5}')
        e(f'v_add_u32 v{vT+7}, v{vT+7}, v{vL15}')
        e(f'v_lshlrev_b32 v{vT+8}, 3, v{vT+6}')
        e(f'v_sub_u32 v{vT+7}, v{vT+7}, v{vT+8}')
        e(f'v_add_u32 v{vT+7}, 9, v{vT+7}')
        e(f'v_sub_u32 v{vT+7}, v{vT+7}, v{vT+4}')
        e(f'v_lshlrev_b32 v{vT+7}, 1, v{vT+7}')
        e(f'v_mul_u32_u24 v{vT+4}, {HCP}, v{vT+4}')
        e(f'v_add_u32 v{vT+7}, v{vT+7}, v{vT+4}')
        e(f'v_add_u32 v{vA_}, s{s_base}, v{vT+7}')
        e(f'v_sub_u32 v{vT+7}, v{vL15}, v{vT+5}')
        e(f'v_lshlrev_b32 v{vT+7}, 1, v{vT+7}')
        e(f'v_add_u32 v{vT+7}, v{vT+7}, v{vT+6}')
        e(f'v_lshlrev_b32 v{vT+7}, 4, v{vT+7}')
        e(f's_add_u32 s{s_t0}, s{s_base}, {CW_U + 512}')
        e(f'v_add_u32 v{vB_}, s{s_t0}, v{vT+7}')
        e('s_waitcnt vmcnt(0)')
        bar1('B')
        e(f'v_mov_b32 v{vT+2}, 0'); e(f'v_mov_b32 v{vT+3}, 0')
        e(f'v_lshlrev_b32 v{vT+4}, 3, v{vLane}')
        e(f'v_add_u32 v{vT+4}, s{s_base}, v{vT+4}')
        e(f'ds_write_b64 v{vT+4}, v[{vT+2}:{vT+3}] offset:{CW_U}')
        e(f'v_lshlrev_b32 v{vT+4}, 4, v{vLane}')
        e(f'v_add_u32 v{vT+4}, s{s_base}, v{vT+4}')
        TM = 112
        def copies(c, off, k):
            t_ = TM + (k % 4)*12
            e(f'v_alignbit_b32 v{t_+0}, v{c+1}, v{c+0}, 16')
            e(f'v_alignbit_b32 v{t_+1}, v{c+2}, v{c+1}, 16')
            e(f'v_alignbit_b32 v{t_+2}, v{c+3}, v{c+2}, 16')
            e(f'v_alignbit_b32 v{t_+3}, v{c+4}, v{c+3}, 16')
            e(f'v_mov_b32 v{t_+4}, v{c+1}'); e(f'v_mov_b32 v{t_+5}, v{c+2}')
            e(f'v_mov_b32 v{t_+6}, v{c+3}'); e(f'v_mov_b32 v{t_+7}, v{c+4}')
            e(f'v_mov_b32 v{t_+8}, v{t_+1}'); e(f'v_mov_b32 v{t_+9}, v{t_+2}'); e(f'v_mov_b32 v{t_+10}, v{t_+3}')
            e(f'v_alignbit_b32 v{t_+11}, v{c+5}, v{c+4}, 16')
            e(f'ds_write_b128 v{vT+4}, v[{c}:{c+3}] offset:{off}')
            e(f'ds_write_b128 v{vT+4}, v[{t_}:{t_+3}] offset:{off + HCP}')
            e(f'ds_write_b128 v{vT+4}, v[{t_+4}:{t_+7}] offset:{off + 2*HCP}')
            e(f'ds_write_b128 v{vT+4}, v[{t_+8}:{t_+11}] offset:{off + 3*HCP}')
        for n in range(4):
            copies(HC + n*6, 32 + n*1024, n)
            e('s_waitcnt lgkmcnt(4)')
        for i in range(4): e(f'v_mov_b32 v{X+i}, 0')
        e(f'v_cmp_eq_u32 vcc, 1, v{vLane}')
        e(f'v_cndmask_b32 v{X+4}, 0, v{X+4}, vcc')
        e(f'v_cndmask_b32 v{X+5}, 0, v{X+5}, vcc')
        e('s_waitcnt lgkmcnt(0)')
        set_exec(e, 3, 0)
        copies(X, 0, 0)
        e(f's_mov_b64 exec, s[{s_ex}:{s_ex+1}]')
        e(f'v_lshlrev_b32 v{DV}, 16, v{DV}')
        for i in range(32): e(f'v_mov_b32 v{ACC+i}, 0')
        e(f'v_lshlrev_b32 v{vT}, 4, v{vLane}')
        e(f's_lshl_b32 s{s_t0}, s{s_d}, 12')
        e(f's_add_u32 s{s_t0}, s{s_t0}, {KVT}')
        e('s_waitcnt lgkmcnt(0)')
        bar()
        for n in range(4):
            e(f's_add_u32 m0, s{s_base}, {CW_U + 512 + n*1024}')
            e(f's_add_u32 s{s_t1}, s{s_t0}, {n*1024}')
            e(f'buffer_load_dwordx4 v{vT}, s[{sWS}:{sWS+3}], s{s_t1} offen sc1 lds')
        AFr = 80; B0 = 112
        def a_rd(m):
            a = AFr + m*4
            return [f'ds_read_b64 v[{a}:{a+1}], v{vA_} offset:{m*512}', f'ds_read_b64 v[{a+2}:{a+3}], v{vA_} offset:{m*512+8}']
        def b_rd(ee):
            b = B0 + 4*ee
            return [f'ds_read_b128 v[{b}:{b+3}], v{vB_} offset:{ee*512}']
        for m in range(8):
            for x in a_rd(m): e(x)
            if m % 4 == 3: e('s_waitcnt lgkmcnt(6)')
        e('s_waitcnt vmcnt(0)')
        for m in range(8):
            for x in b_rd(m): e(x)
        bar()
        e(f's_mov_b32 s{s_p}, 0')
        e.label('F2_CLOOP')
        e(f'v_add_u32 v{vA_}, 64, v{vA_}')
        e(f'v_subrev_u32 v{vB_}, 64, v{vB_}')
        e('s_waitcnt lgkmcnt(0)')
        for m in range(8):
            for c in range(m, 8):
                a = AFr + m*4; b = B0 + (c-m)*4; d = ACC + c*4
                e(f'v_mfma_f32_16x16x32_bf16 v[{d}:{d+3}], v[{a}:{a+3}], v[{b}:{b+3}], v[{d}:{d+3}]')
            for x in a_rd(m): e(x)
            for x in b_rd(7 - m): e(x)
            if m in (3, 6): e('s_waitcnt lgkmcnt(6)')
            if m == 2: e('s_barrier')
        e('s_barrier')
        e(f's_add_u32 s{s_p}, s{s_p}, 1')
        e(f's_cmp_lt_u32 s{s_p}, 8')
        e('s_cbranch_scc1 F2_CLOOP')
        nb[0] += 16
        e('s_waitcnt lgkmcnt(0)')
        e(f'v_lshlrev_b32 v{vT}, 5, v{vL15}')
        e(f'v_lshrrev_b32 v{vT+1}, 1, v{vQ}')
        e(f'v_lshlrev_b32 v{vT+1}, 4, v{vT+1}')
        e(f'v_add_u32 v{vT}, v{vT}, v{vT+1}')
        e(f'v_and_b32 v{vT+1}, 1, v{vQ}')
        e(f'v_xor_b32 v{vT+1}, 1, v{vT+1}')
        e(f'v_lshlrev_b32 v{vT+1}, 3, v{vT+1}')
        e(f'v_add_u32 v{vT}, v{vT}, v{vT+1}')
        e(f's_add_u32 s{s_t0}, s{s_base}, {CW_U + 512}')
        e(f'v_add_u32 v{vT}, s{s_t0}, v{vT}')
        KV = AFr
        for c in range(8):
            e(f'ds_read_b64 v[{KV+2*c}:{KV+2*c+1}], v{vT} offset:{c*512}')
        e(f'v_lshlrev_b32 v{vT+2}, 5, v{vL15}')
        e(f'v_lshlrev_b32 v{vT+3}, 3, v{vQ}')
        e(f'v_add_u32 v{vT+2}, v{vT+2}, v{vT+3}')
        e(f's_lshl_b32 s{s_t0}, s{s_d}, 12')
        e(f's_add_u32 s{s_t0}, s{s_t0}, {YYT}')
        bar()
        e('s_waitcnt lgkmcnt(0)')
        U = B0
        for c in range(8):
            a = ACC + c*4; k0 = KV + 2*c; u = U + (c % 4)*8
            e(f'v_and_b32 v{u+0}, s{s_mask}, v{k0+1}')
            e(f'v_lshlrev_b32 v{u+1}, 16, v{k0+1}')
            e(f'v_and_b32 v{u+2}, s{s_mask}, v{k0}')
            e(f'v_lshlrev_b32 v{u+3}, 16, v{k0}')
            for r in range(4): e(f'v_fmac_f32 v{a+r}, v{u+r}, v{DV}')
            e(f'v_cvt_pk_bf16_f32 v{u+4}, v{a}, v{a+1}')
            e(f'v_cvt_pk_bf16_f32 v{u+5}, v{a+2}, v{a+3}')
            e(f'buffer_store_dwordx2 v[{u+4}:{u+5}], v{vT+2}, s[{sWS}:{sWS+3}], s{s_t0} offen offset:{c*512} sc1')
        e('s_waitcnt vmcnt(0)')
        bar()
        n_c = nb[0]
        e.label('F3_IDLE')
        for _ in range(1 + K3.NB3): e('s_barrier')
        stC.flush(e, 0, sWS, vT, s_w)
        e('s_endpgm')
        e.label('F2_IDLE')
        e('s_waitcnt vmcnt(0)')
        bar1('I1')
        for _ in range(n_c): e('s_barrier')
        e('s_branch F3_IDLE')
        e.label('F2_SYNC')
        vt = 6
        e(f'v_lshlrev_b32 v{vt}, 2, v{vLane}')
        self.poll(e, 'CNT', vt, vt+1, sD, 0xffffffff, 0, 8, ge=True)
        self.flag_addr(e, vt+2, vt+3)
        e(f'v_mov_b32 v{vt+4}, 1')
        e('s_waitcnt vmcnt(0)')
        bar1('I2')
        set_exec(e, 1, 0)
        e(f'buffer_store_dword v{vt+4}, v{vt+2}, s[{sWS}:{sWS+3}], 0 offen sc1')
        e(f's_mov_b64 exec, s[{s_ex}:{s_ex+1}]')
        e(f's_lshl_b32 s{s_t0}, s{s_cb}, 7')
        e(f's_add_u32 s{s_t0}, s{s_t0}, {FL1}')
        e(f'v_lshlrev_b32 v{vt}, 2, v{vLane}')
        e(f'v_add_u32 v{vt}, s{s_t0}, v{vt}')
        self.poll(e, 'F1', vt, vt+1, sWS, 0xffffffff, 0, 1)
        for _ in range(n_c): e('s_barrier')
        set_exec(e, 6, 0)
        e(f'buffer_store_dword v{vt+4}, v{vt+2}, s[{sWS}:{sWS+3}], 0 offen sc1')
        e(f's_mov_b64 exec, s[{s_ex}:{s_ex+1}]')
        e(f's_lshl_b32 s{s_t0}, s{s_cb}, 7')
        e(f's_add_u32 s{s_t0}, s{s_t0}, {FL2A}')
        e(f'v_lshlrev_b32 v{vt}, 2, v{vLane}')
        e(f'v_add_u32 v{vt+5}, s{s_t0}, v{vt}')
        e(f's_lshl_b32 s{s_t0}, s{s_rb}, 5')
        e(f's_add_u32 s{s_t0}, s{s_t0}, {FL2B - 128}')
        e(f'v_add_u32 v{vt+6}, s{s_t0}, v{vt}')
        e(f'v_cmp_gt_u32 vcc, 32, v{vLane}')
        e(f'v_cndmask_b32 v{vt}, v{vt+6}, v{vt+5}, vcc')
        self.poll(e, 'F2', vt, vt+1, sWS, 0xffffffff, 0xff, 1)
        e('s_branch F3_IDLE')
        self.nb['B2'] = n_c

    def l2(self, e, bar1):
        nb = [0]
        def bar():
            e('s_barrier'); nb[0] += 1
        sSP = 8
        vD = 4; t = 10
        s_bw, s_m = 38, 39
        e.c('phase 2: L')
        e(f's_load_dwordx2 s[{P}:{P+1}], s[0:1], 64')
        e(f's_load_dwordx2 s[{P+4}:{P+5}], s[0:1], 104')
        e(f's_lshl_b32 s{s_t0}, s{s_rb}, 6')
        e(f's_lshl_b32 s{s_t1}, s{s_wl}, 4')
        e(f's_add_u32 s{s_t0}, s{s_t0}, s{s_t1}')
        for tt in range(4):
            e(f'v_add_u32 v{t}, {4*tt}, v{vQ}')
            e(f'v_xor_b32 v{t+1}, v{t}, v{vL15}')
            e(f'v_lshlrev_b32 v{t+1}, 4, v{t+1}')
            e(f'v_add_u32 v{t}, s{s_t0}, v{t}')
            e(f'v_lshlrev_b32 v{t}, 12, v{t}')
            e(f'v_add_u32 v{vD+tt}, v{t}, v{t+1}')
        e(f's_lshl_b32 s{s_m}, s{s_wl}, 12')
        e('s_waitcnt lgkmcnt(0)')
        srd(e, sSP, P, S*S*2)
        srd(e, sWS, P+4, WS_SIZE)
        cnt = [0]; done = {}
        def issue(j):
            e(f's_movk_i32 s{s_bw}, {j*256}')
            for tt in range(4):
                e(f's_add_u32 m0, s{s_m}, {(j % 4)*16384 + tt*1024}')
                e('s_nop 0')
                e(f'buffer_load_dwordx4 v{vD+tt}, s[{sSP}:{sSP+3}], s{s_bw} offen lds')
            cnt[0] += 4; done[j] = cnt[0]
        def lbar(j):
            e(f's_waitcnt vmcnt({cnt[0] - done[j]})'); bar()
        for j in range(4): issue(j)
        bar1('L'); bar1('L')
        lbar(0)
        for i in range(16):
            if i + 1 < 16: lbar(i + 1)
            else: bar()
            if i + 4 < 16: issue(i + 4)
        bar(); bar()
        bar()
        self.nb['L2'] = nb[0]
        grp = self.k3['l3']()
        for g in range(6): grp(g)
        e('s_barrier')
        for g in range(6):
            e(f's_waitcnt vmcnt({5*(5 - g)})')
            e('s_barrier')
        e('s_endpgm')

def gen_kf():
    e = Emitter()
    H = Hooks()
    H.k3 = K3.gen_k3(e=e, fused=True)
    nbar = K1.gen_k1(e=e, fused=True, H=H)
    print('phase1 barriers', nbar, 'phase2', H.nb, 'phase3', H.k3['nbar'])
    assert nbar['A'] == nbar['L'] == 24 and nbar['B'] == 24 and nbar['I1'] == 1 and nbar['I2'] == 1, nbar
    assert H.nb['A2'] - 1 == H.nb['B2'] == H.nb['L2'] == 20, H.nb
    assert H.k3['nbar']['G'] == K3.NB3
    nn = e.finalize()
    return kernel_wrap(NAME, e.text(), vgpr=168, sgpr=96), nn
```

```python
from common import *

WSLOT = 12288; NSLOT = 5
XB0 = NSLOT * WSLOT
XST = 8192
PREP = XB0
PREPV = 11520
MISC = XB0 + 10 * XST
L_M1 = MISC; L_R1 = MISC + 256
L_CSA = MISC + 512
L_CSB = MISC + 1280
L_PS = MISC + 2048
L_PQ = MISC + 2560
L_W2 = MISC + 3072
LDS1 = 147456
import os
PREFETCH = os.environ.get('PREFETCH', '1') == '1'
XP_NOPREP = os.environ.get('XP_NOPREP', '0') == '1'
XP_NODOT = os.environ.get('XP_NODOT', '0') == '1'
XP_NOCOMP = os.environ.get('XP_NOCOMP', '0')
BLOCK1 = 768
SENT = 0xbf800000

K1c = -2.0 * 1.4426950408889634 * 0.7978845608028654
K2c = K1c * 0.044715

KVS = 49152; KVP_ = 144; Z1L = 147456
def gen_k1(e=None, fused=False, H=None):
    if e is None: e = Emitter()
    SC = 'sc1' if fused else ''
    sX, sW, sWS, sK, sV, sT = 8, 12, 16, 20, 24, 28
    s_rb, s_cb, s_w, s_wr, s_wc, s_wl = 32, 33, 34, 35, 36, 55
    s_i, s_j, s_off, s_t0, s_t1, s_t2 = 37, 38, 39, 40, 41, 42
    s_z2b, s_z1b, s_slot, s_mask = 43, 44, 45, 47
    s_k2 = 48; s_one = 50; s_ex = 52; s_xo = 54
    sD = 4
    P = 56
    vLane, vQ, vL15 = 1, 2, 3
    vXA, vXB, vW = 4, 6, 8
    vT = 14
    XF = 26; WF = 42; ACC = 66; CS = 90; ONE = 102; SUM = 106; GR = 110; AP = 114; E = 126
    nbar = {'A': 0, 'B': 0, 'L': 0}
    def bar(role, name=''):
        e('s_barrier'); nbar[role] = nbar.get(role, 0) + 1

    e.c('---- k1: GEMM1 (LN1 folded) + gelu + LN2 + kv prep + w_out retile ; roles A(0-3) B(4-7) L(8)')
    e('s_cmp_ge_u32 s2, 256')
    e('s_cbranch_scc1 K1_END')
    stp = Stamper(); stp.start(e)
    stp.mute = fused and os.environ.get('P1ST') != '1'
    e(f's_load_dwordx4 s[{P}:{P+3}], s[0:1], 0')
    e(f's_load_dwordx4 s[{P+4}:{P+7}], s[0:1], 16')
    e(f's_load_dwordx2 s[{P+8}:{P+9}], s[0:1], 56')
    e(f's_load_dwordx2 s[{P+10}:{P+11}], s[0:1], 80')
    e(f's_load_dwordx4 s[{P+12}:{P+15}], s[0:1], 96')
    e(f's_load_dwordx2 s[{P+18}:{P+19}], s[0:1], 64')
    e(f's_load_dwordx2 s[{P+20}:{P+21}], s[0:1], 32')
    e(f'v_and_b32 v{vLane}, 63, v0')
    e(f'v_lshrrev_b32 v{vT}, 6, v0')
    e(f'v_lshrrev_b32 v{vQ}, 4, v{vLane}')
    e(f'v_readfirstlane_b32 s{s_w}, v{vT}')
    e(f'v_and_b32 v{vL15}, 15, v{vLane}')
    e(f's_and_b32 s{s_t0}, s2, 7')
    e(f's_lshr_b32 s{s_t1}, s2, 3')
    e(f's_lshr_b32 s{s_rb}, s{s_t0}, 1')
    e(f's_lshl_b32 s{s_rb}, s{s_rb}, 3')
    e(f's_lshr_b32 s{s_t2}, s{s_t1}, 2')
    e(f's_add_u32 s{s_rb}, s{s_rb}, s{s_t2}')
    e(f's_and_b32 s{s_cb}, s{s_t0}, 1')
    e(f's_lshl_b32 s{s_cb}, s{s_cb}, 2')
    e(f's_and_b32 s{s_t2}, s{s_t1}, 3')
    e(f's_add_u32 s{s_cb}, s{s_cb}, s{s_t2}')
    e(f's_and_b32 s{s_wl}, s{s_w}, 3')
    e(f's_lshr_b32 s{s_wr}, s{s_wl}, 1')
    e(f's_and_b32 s{s_wc}, s{s_wl}, 1')
    e(f's_mov_b32 s{s_mask}, 0xffff0000')
    e(f's_mov_b64 s[{s_ex}:{s_ex+1}], exec')
    e(f's_mul_i32 s{s_z1b}, s{s_cb}, 192')
    e(f's_add_u32 s{s_z2b}, s{s_z1b}, {768*2}')
    e(f's_cmp_ge_u32 s{s_w}, 8')
    e('s_cbranch_scc0 K1_AB')

    e.c('loader (4 waves; L = w&3 handles instr n = 4h + L of each stage)')
    stL = Stamper(); stL.n = 1; stL.mute = fused
    vP, vPr = 4, 5
    VX = 8
    VW = 12
    t = 30
    s_L = s_wl
    s_xs, s_ws_, s_lb = s_j, s_off, s_slot
    e(f's_lshl_b32 s{s_t0}, s{s_rb}, 6')
    e(f's_lshl_b32 s{s_t1}, s{s_L}, 3')
    e(f's_add_u32 s{s_t0}, s{s_t0}, s{s_t1}')
    e(f's_lshl_b32 s{s_lb}, s{s_L}, 10')
    e(f'v_lshrrev_b32 v{t}, 3, v{vLane}')
    e(f'v_add_u32 v{t+2}, s{s_t1}, v{t}')
    e(f'v_lshrrev_b32 v{t+1}, 1, v{t+2}')
    e(f'v_xor_b32 v{t+1}, v{t+1}, v{vLane}')
    e(f'v_and_b32 v{t+1}, 7, v{t+1}')
    e(f'v_lshlrev_b32 v{t+1}, 4, v{t+1}')
    e(f'v_add_u32 v{t}, s{s_t0}, v{t}')
    e(f'v_mul_u32_u24 v{t}, 1280, v{t}')
    e(f'v_add_u32 v{VX}, v{t}, v{t+1}')
    e(f'v_add_u32 v{VX+1}, {32*1280}, v{VX}')
    e('s_waitcnt lgkmcnt(0)')
    stL.stamp(e)
    srd(e, sX, P, S*D*2)
    srd(e, sW, P+8, D*F*2)
    cnt = [0]; done_at = {}
    s_rot = s_i
    e(f's_and_b32 s{s_t0}, s{s_rb}, 7')
    e(f's_and_b32 s{s_t1}, s{s_cb}, 3')
    e(f's_mul_i32 s{s_t1}, s{s_t1}, 3')
    e(f's_add_u32 s{s_rot}, s{s_t0}, s{s_t1}')
    e(f's_sub_u32 s{s_t0}, s{s_rot}, 10')
    e(f's_cmp_ge_u32 s{s_rot}, 10')
    e(f's_cselect_b32 s{s_rot}, s{s_t0}, s{s_rot}')
    def kslice(j, dst):
        e(f's_add_u32 s{dst}, s{s_rot}, {j % 10}')
        e(f's_sub_u32 s{s_t0}, s{dst}, 10')
        e(f's_cmp_ge_u32 s{dst}, 10')
        e(f's_cselect_b32 s{dst}, s{s_t0}, s{dst}')
    def issue_x(j):
        kslice(j, s_xs)
        e(f's_lshl_b32 s{s_xs}, s{s_xs}, 7')
        for h in range(2):
            e(f's_add_u32 m0, s{s_lb}, {XB0 + j*XST + 4096*h}')
            e('s_nop 0')
            e(f'buffer_load_dwordx4 v{VX+h}, s[{sX}:{sX+3}], s{s_xs} offen lds')
        cnt[0] += 2
    def issue_w(j):
        base = s_z2b if j < 10 else s_z1b
        kslice(j, s_ws_)
        e(f's_mul_i32 s{s_ws_}, s{s_ws_}, {64*3072}')
        e(f's_add_u32 s{s_ws_}, s{s_ws_}, s{base}')
        for h in range(3):
            e(f's_add_u32 m0, s{s_lb}, {(j % NSLOT)*WSLOT + 4096*h}')
            e('s_nop 0')
            e(f'buffer_load_dwordx4 v{VW+h}, s[{sW}:{sW+3}], s{s_ws_} offen lds')
        cnt[0] += 3
    for h in range(3):
        e(f's_lshl_b32 s{s_t0}, s{s_L}, 6')
        e(f's_add_u32 s{s_t0}, s{s_t0}, {64*4*h}')
        e(f'v_add_u32 v{t}, s{s_t0}, v{vLane}')
        e(f'v_mul_u32_u24 v{t+1}, 5462, v{t}')
        e(f'v_lshrrev_b32 v{t+1}, 16, v{t+1}')
        e(f'v_mul_u32_u24 v{t+2}, 12, v{t+1}')
        e(f'v_sub_u32 v{t+2}, v{t}, v{t+2}')
        e(f'v_lshrrev_b32 v{t+3}, 2, v{t+1}')
        e(f'v_and_b32 v{t+3}, 2, v{t+3}')
        e(f'v_xor_b32 v{t+2}, v{t+2}, v{t+3}')
        e(f'v_lshlrev_b32 v{t+2}, 4, v{t+2}')
        e(f'v_mul_u32_u24 v{t+1}, 3072, v{t+1}')
        e(f'v_add_u32 v{VW+h}, v{t+1}, v{t+2}')
    stL.stamp(e)
    issue_x(0)
    issue_w(0); done_at[0] = cnt[0]
    def issue(j):
        if j < 10: issue_x(j)
        issue_w(j)
        done_at[j] = cnt[0]
    def lbar(k):
        n = cnt[0] - done_at[k]
        e(f's_waitcnt vmcnt({min(n, 63)})'); bar('L')
    def issue_prep():
        e(f'v_mul_u32_u24 v{vPr}, 6554, v{vLane}')
        e(f'v_lshrrev_b32 v{vPr}, 16, v{vPr}')
        e(f'v_mul_u32_u24 v{vP}, 10, v{vPr}')
        e(f'v_sub_u32 v{vP}, v{vLane}, v{vP}')
        e(f'v_lshlrev_b32 v{vP}, 4, v{vP}')
        e(f'v_mul_u32_u24 v{t}, 1280, v{vPr}')
        e(f'v_add_u32 v{vP}, v{vP}, v{t}')
        srd(e, sK, P+2, S*D*2)
        srd(e, sV, P+4, S*D*2)
        set_exec(e, 0xffffffff, 0x0fffffff)
        sa, sb, sc = 46, 78, 79
        e(f's_lshl_b32 s{s_t0}, s{s_rb}, 6')
        e(f's_mul_i32 s{s_t1}, s{s_L}, 6')
        e(f's_add_u32 s{s_t0}, s{s_t0}, s{s_t1}')
        e(f's_mul_i32 s{sa}, s{s_t0}, 1280')
        e(f's_mul_i32 s{s_t1}, s{s_cb}, 160')
        e(f's_add_u32 s{sa}, s{sa}, s{s_t1}')
        e(f's_mul_i32 s{sb}, s{s_L}, 960')
        e(f's_add_u32 s{sb}, s{sb}, {PREP}')
        e(f'v_mov_b32 v{t}, v{vP}')
        e(f's_sub_u32 s{sc}, s{sa}, {3*1280}')
        e(f's_cmp_eq_u32 s{s_t0}, 0')
        e('s_cbranch_scc0 K1_NONNEG')
        e(f'v_subrev_u32 v{t}, {3*1280}, v{vP}')
        e(f'v_cmp_gt_u32 vcc, 3, v{vPr}')
        e(f'v_mov_b32 v{t+1}, 0x80000000')
        e(f'v_cndmask_b32 v{t}, v{t}, v{t+1}, vcc')
        e(f's_mov_b32 s{sc}, s{sa}')
        e.label('K1_NONNEG')
        for n in range(3):
            e(f's_add_u32 m0, s{sb}, {n*3840}')
            e('s_nop 0')
            e(f'buffer_load_dwordx4 v{t if n == 0 else vP}, s[{sK}:{sK+3}], s{sc} offen lds')
            e(f's_add_u32 m0, s{sb}, {n*3840 + PREPV}')
            e('s_nop 0')
            e(f'buffer_load_dwordx4 v{vP}, s[{sV}:{sV+3}], s{sa} offen lds')
            e(f's_add_u32 s{sa}, s{sa}, {24*1280}')
            e(f's_sub_u32 s{sc}, s{sa}, {3*1280}')
        e(f's_mov_b64 exec, s[{s_ex}:{s_ex+1}]')
        cnt[0] += 6
    def prefetch_tail():
        e(f'v_lshlrev_b32 v{t}, 6, v{vLane}')
        e(f's_and_b32 s{s_t0}, s2, 7')
        e(f's_lshl_b32 s{s_t0}, s{s_t0}, 8')
        e(f's_lshr_b32 s{s_t1}, s2, 3')
        e(f's_lshl_b32 s{s_t1}, s{s_t1}, 3')
        e(f's_add_u32 s{s_t0}, s{s_t0}, s{s_t1}')
        e(f's_lshl_b32 s{s_t1}, s{s_L}, 1')
        e(f's_add_u32 s{s_t0}, s{s_t0}, s{s_t1}')
        e(f's_lshl_b32 s{s_t0}, s{s_t0}, 12')
        srd(e, sK, P+18, S*S*2)
        for r in range(2):
            e(f'buffer_load_dword v{t+1+r}, v{t}, s[{sK}:{sK+3}], s{s_t0} offen')
            e(f's_add_u32 s{s_t0}, s{s_t0}, 4096')
        srd(e, sV, P+20, D*S*2)
        e(f's_mul_i32 s{s_t0}, s2, 3')
        e(f's_add_u32 s{s_t0}, s{s_t0}, s{s_L}')
        e(f's_lshl_b32 s{s_t0}, s{s_t0}, 12')
        e(f's_cmp_eq_u32 s{s_L}, 3')
        e(f's_cselect_b32 s{s_t0}, 0x80000000, s{s_t0}')
        e(f'buffer_load_dword v{t+5}, v{t}, s[{sV}:{sV+3}], s{s_t0} offen')
        cnt[0] += 3
    xs = {1: [1, 2], 2: [3, 4], 3: [5, 6], 4: [7, 8], 5: [9]}
    wn = 1
    for k in range(20):
        if k >= 1:
            lim = {1: 2, 2: 4}.get(k, min(19, k + 2 if k <= 5 else k + 3))
            todo_x = list(xs.get(k, []))
            while wn <= lim or todo_x:
                if todo_x: issue_x(todo_x.pop(0))
                if wn <= lim:
                    issue_w(wn); done_at[wn] = cnt[0]; wn += 1
                    if wn == 20: issue_prep()
        lbar(k)
        if k in (0, 1): stL.stamp(e)
    assert wn == 20
    bar('L'); bar('L')
    e('s_waitcnt vmcnt(0)')
    bar('L')
    if fused:
        H.after_L(e, bar)
    if STAMPS and not fused:
        srd(e, sWS, P+14, WS_SIZE) if False else None
        e(f's_load_dwordx2 s[{P+14}:{P+15}], s[0:1], 104')
        e('s_waitcnt lgkmcnt(0)')
        srd(e, sWS, P+14, WS_SIZE)
        stL.flush(e, 3, sWS, t, s_wl)
    if not fused: e('s_endpgm')

    e.label('K1_AB')
    e(f'v_lshrrev_b32 v{vT+3}, 1, v{vL15}')
    e(f'v_xor_b32 v{vT+3}, v{vT+3}, v{vQ}')
    e(f'v_lshlrev_b32 v{vT+3}, 4, v{vT+3}')
    e(f'v_lshlrev_b32 v{vT+4}, 7, v{vL15}')
    e(f'v_add_u32 v{vT+3}, v{vT+3}, v{vT+4}')
    e(f'v_xor_b32 v{vT+4}, 64, v{vT+3}')
    e(f's_lshl_b32 s{s_t0}, s{s_wr}, 12')
    e(f's_lshl_b32 s{s_t1}, s{s_wc}, 11')
    e(f's_add_u32 s{s_t2}, s{s_t0}, s{s_t1}')
    e(f's_add_u32 s{s_t2}, s{s_t2}, {XB0}')
    e(f'v_add_u32 v{vXA}, s{s_t2}, v{vT+3}')
    e(f'v_add_u32 v{vXA+1}, s{s_t2}, v{vT+4}')
    e(f's_xor_b32 s{s_t1}, s{s_t1}, 2048')
    e(f's_add_u32 s{s_t2}, s{s_t0}, s{s_t1}')
    e(f's_add_u32 s{s_t2}, s{s_t2}, {XB0}')
    e(f'v_add_u32 v{vXB}, s{s_t2}, v{vT+3}')
    e(f'v_add_u32 v{vXB+1}, s{s_t2}, v{vT+4}')
    e(f'v_lshrrev_b32 v{vT+3}, 2, v{vLane}')
    e(f'v_and_b32 v{vT+3}, 3, v{vT+3}')
    e(f'v_lshlrev_b32 v{vT+4}, 3, v{vQ}')
    e(f'v_add_u32 v{vT+3}, v{vT+3}, v{vT+4}')
    e(f'v_mul_u32_u24 v{vT+3}, 192, v{vT+3}')
    e(f'v_and_b32 v{vT+4}, 3, v{vLane}')
    e(f'v_lshlrev_b32 v{vT+4}, 3, v{vT+4}')
    e(f'v_add_u32 v{vT+3}, v{vT+3}, v{vT+4}')
    e(f'v_and_b32 v{vT+5}, 1, v{vQ}')
    e(f's_mul_i32 s{s_t0}, s{s_wc}, 3')
    for ft in range(3):
        e(f's_add_u32 s{s_t1}, s{s_t0}, {ft}')
        e(f'v_xor_b32 v{vT+4}, s{s_t1}, v{vT+5}')
        e(f'v_lshlrev_b32 v{vT+4}, 5, v{vT+4}')
        e(f'v_add_u32 v{vW+ft}, v{vT+3}, v{vT+4}')
    e(f's_mov_b32 s{s_k2}, {hexf(K2c)}'); e(f's_mov_b32 s{s_k2+1}, {hexf(K2c)}')
    e(f's_mov_b32 s{s_one}, 1.0'); e(f's_mov_b32 s{s_one+1}, 1.0')
    e('s_waitcnt lgkmcnt(0)')
    srd(e, sWS, P+14, WS_SIZE)
    srd(e, sD, P+12, 256)
    e(f's_cmp_ge_u32 s{s_w}, 4')
    e('s_cbranch_scc1 K1_B')

    def rd_list(buf, ksl, xoff, woff):
        L = []
        L.append(f'ds_read_b128 v[{XF+buf*8}:{XF+buf*8+3}], v{vXA+ksl} offset:{xoff}')
        for ft in range(3):
            b = WF + buf*12 + ft*4
            L.append(f'ds_read_b64_tr_b16 v[{b}:{b+1}], v{vW+ft} offset:{woff+ksl*6144}')
            L.append(f'ds_read_b64_tr_b16 v[{b+2}:{b+3}], v{vW+ft} offset:{woff+ksl*6144+768}')
            if ft == 0:
                L.append(f'ds_read_b128 v[{XF+buf*8+4}:{XF+buf*8+7}], v{vXB+ksl} offset:{xoff}')
        return L
    def phase(buf, ksl, p, tag, nxt_reads):
        mf = []
        for ft in range(3):
            for T in range(2):
                a = ACC + (T*3+ft)*4
                x = f'v[{XF+buf*8+T*4}:{XF+buf*8+T*4+3}]'
                w = f'v[{WF+buf*12+ft*4}:{WF+buf*12+ft*4+3}]'
                if p == 1: mf.append(f'v_mfma_f32_16x16x32_bf16 v[{a}:{a+3}], {x}, {w}, v[{a}:{a+3}]')
                else:      mf.append(f'v_mfma_f32_16x16x32_bf16 v[{a}:{a+3}], {w}, {x}, v[{a}:{a+3}]')
        fills = [nxt_reads[0:2], nxt_reads[2:4], nxt_reads[4:6], nxt_reads[6:8], [], []]
        if p == 1 and not XP_NODOT:
            x = f'v[{XF+buf*8}:{XF+buf*8+3}]'
            mf.append(f'v_mfma_f32_16x16x32_bf16 v[{SUM}:{SUM+3}], v[{ONE}:{ONE+3}], {x}, v[{SUM}:{SUM+3}]')
            mf.append(f'v_mfma_f32_16x16x32_bf16 v[{GR}:{GR+3}], {x}, {x}, v[{GR}:{GR+3}]')
        if XP_NOCOMP == '2': fills = [[] for _ in fills]
        if XP_NOCOMP == '3': mf = ['s_nop 0'] * len(mf)
        weave(e, mf, fills)
        e(f's_cmp_eq_u32 s{s_wr}, {ksl}')
        e(f's_cbranch_scc0 K1_SK_{tag}')
        for ft in range(3):
            a = CS + ft*4
            w = f'v[{WF+buf*12+ft*4}:{WF+buf*12+ft*4+3}]'
            o = f'v[{ONE}:{ONE+3}]'
            if p == 1: e(f'v_mfma_f32_16x16x32_bf16 v[{a}:{a+3}], {o}, {w}, v[{a}:{a+3}]')
            else:      e(f'v_mfma_f32_16x16x32_bf16 v[{a}:{a+3}], {w}, {o}, v[{a}:{a+3}]')
        e.label(f'K1_SK_{tag}')
    def init_acc():
        for i in range(4): e(f'v_mov_b32 v{ONE+i}, 0x3f803f80')
        for i in range(24): e(f'v_mov_b32 v{ACC+i}, 0')
        for i in range(12): e(f'v_mov_b32 v{CS+i}, 0')
        for i in range(8): e(f'v_mov_b32 v{SUM+i}, 0')
    def loop(p, role):
        L = f'K1_LOOP{p}'
        if XP_NOCOMP == '1':
            for _ in range(10): bar(role)
            return
        e(f's_mov_b32 s{s_i}, 0')
        for x in rd_list(0, 0, 0, 0): e(x)
        e.label(L)
        for u in range(5):
            e('s_waitcnt lgkmcnt(0)')
            phase(0, 0, p, f'{p}a{u}', rd_list(1, 1, u*XST, u*WSLOT))
            e('s_waitcnt lgkmcnt(0)')
            e('s_barrier')
            if u == 4:
                for r in (vXA, vXA+1, vXB, vXB+1):
                    e(f'v_add_u32 v{r}, {5*XST}, v{r}')
                nx = rd_list(0, 0, 0, 0)
            else:
                nx = rd_list(0, 0, (u+1)*XST, (u+1)*WSLOT)
            phase(1, 1, p, f'{p}b{u}', nx)
            if p == 2 and PREFETCH:
                if u == 2 and not fused:
                    e(f'buffer_load_dword v148, v144, s[{sK}:{sK+3}], s54 offen')
                    e('s_add_u32 s54, s54, 4096')
                if u == 3 and not fused:
                    e(f'buffer_load_dword v149, v144, s[{sV}:{sV+3}], s46 offen')
                    e('s_mov_b32 s46, 0x80000000')
        e(f's_add_u32 s{s_i}, s{s_i}, 1')
        e(f's_cmp_lt_u32 s{s_i}, 2')
        e(f's_cbranch_scc1 {L}')
        nbar[role] += 10
    K1V = E + 0
    G = E + 2
    def gelu_pair_sc(t, u):
        for h in range(2):
            e(f'v_mul_f32 v{u+h}, v{t+h}, v{t+h}')
        for h in range(2):
            e(f'v_fma_f32 v{u+h}, v{u+h}, s{s_k2}, v{K1V}')
        for h in range(2):
            e(f'v_mul_f32 v{u+h}, v{u+h}, v{t+h}')
        for h in range(2):
            e(f'v_exp_f32 v{u+h}, v{u+h}')
        for h in range(2):
            e(f'v_add_f32 v{u+h}, 1.0, v{u+h}')
        for h in range(2):
            e(f'v_rcp_f32 v{u+h}, v{u+h}')
        for h in range(2):
            e(f'v_mul_f32 v{u+h}, v{u+h}, v{t+h}')
    def gelu_pair(t, u):
        e(f'v_pk_mul_f32 v[{u}:{u+1}], v[{t}:{t+1}], v[{t}:{t+1}]')
        e(f'v_pk_fma_f32 v[{u}:{u+1}], v[{u}:{u+1}], s[{s_k2}:{s_k2+1}], v[{K1V}:{K1V+1}]')
        e(f'v_pk_mul_f32 v[{u}:{u+1}], v[{u}:{u+1}], v[{t}:{t+1}]')
        e(f'v_exp_f32 v{u}, v{u}')
        e(f'v_exp_f32 v{u+1}, v{u+1}')
        e(f'v_pk_add_f32 v[{u}:{u+1}], v[{u}:{u+1}], s[{s_one}:{s_one+1}]')
        e(f'v_rcp_f32 v{u}, v{u}')
        e(f'v_rcp_f32 v{u+1}, v{u+1}')
        e(f'v_pk_mul_f32 v[{u}:{u+1}], v[{u}:{u+1}], v[{t}:{t+1}]')

    e.c('role A')
    init_acc()
    bar('A')
    stp.stamp(e)
    loop(1, 'A')
    stp.stamp(e)
    e.c('A epilogue')
    e('s_setprio 2')
    e(f's_lshl_b32 s{s_t0}, s{s_rb}, 2')
    e(f'v_mov_b32 v{vT+8}, s{s_t0}')
    PC = vT + 9
    e(f'buffer_load_dword v{PC}, v{vT+8}, s[{sD}:{sD+3}], 0 offen sc1')
    SK = 160
    srd(e, sT, P+6, D*4*2)
    e(f'v_lshlrev_b32 v{vT+3}, 4, v{vLane}')
    e(f's_mul_i32 s{s_t1}, s{s_cb}, 640')
    e(f'buffer_load_dwordx4 v[{SK}:{SK+3}], v{vT+3}, s[{sT}:{sT+3}], s{s_t1} offen')
    e(f'v_and_b32 v{vT}, 3, v{vL15}')
    e(f'v_cmp_eq_u32 vcc, 1, v{vT}')
    e(f'v_cndmask_b32 v{GR}, v{GR}, v{GR+1}, vcc')
    e(f'v_cmp_eq_u32 vcc, 2, v{vT}')
    e(f'v_cndmask_b32 v{GR}, v{GR}, v{GR+2}, vcc')
    e(f'v_cmp_eq_u32 vcc, 3, v{vT}')
    e(f'v_cndmask_b32 v{GR}, v{GR}, v{GR+3}, vcc')
    ln_finalize(e, SUM, GR, D, vT+2, vT+3, vT+4, vT+5)
    e(f's_lshl_b32 s{s_t0}, s{s_wr}, 5')
    e(f's_lshl_b32 s{s_t1}, s{s_wc}, 4')
    e(f's_add_u32 s{s_t0}, s{s_t0}, s{s_t1}')
    e(f'v_add_u32 v{vT+4}, s{s_t0}, v{vL15}')
    e(f'v_lshlrev_b32 v{vT+5}, 2, v{vT+4}')
    e(f'v_add_u32 v{vT+5}, {L_M1}, v{vT+5}')
    set_exec(e, 0x00f0000f, 0xf0000f00)
    e(f'ds_write_b32 v{vT+5}, v{vT+2}')
    e(f'ds_write_b32 v{vT+5}, v{vT+3} offset:256')
    if fused: e('s_branch K1_NOST1X')
    e(f's_cmp_eq_u32 s{s_cb}, 0')
    e('s_cbranch_scc0 K1_NOST1X')
    e(f's_lshl_b32 s{s_t1}, s{s_rb}, 9')
    e(f's_add_u32 s{s_t1}, s{s_t1}, {ST1}')
    e(f'v_lshlrev_b32 v{vT+4}, 3, v{vT+4}')
    e(f'buffer_store_dwordx2 v[{vT+2}:{vT+3}], v{vT+4}, s[{sWS}:{sWS+3}], s{s_t1} offen {SC}')
    e.label('K1_NOST1X')
    e(f's_mov_b64 exec, s[{s_ex}:{s_ex+1}]')
    e(f's_mul_i32 s{s_t0}, s{s_wl}, 192')
    e(f's_add_u32 s{s_t0}, s{s_t0}, {L_CSA}')
    e(f'v_lshlrev_b32 v{vT+6}, 2, v{vL15}')
    e(f'v_add_u32 v{vT+6}, s{s_t0}, v{vT+6}')
    for ft in range(3):
        e(f'ds_write_b32 v{vT+6}, v{CS+ft*4} offset:{ft*64}')
    e('s_waitcnt lgkmcnt(0)')
    bar('A')
    e(f's_xor_b32 s{s_t1}, s{s_wl}, 2')
    e(f's_mul_i32 s{s_t1}, s{s_t1}, 192')
    e(f's_add_u32 s{s_t1}, s{s_t1}, {L_CSA}')
    e(f'v_lshlrev_b32 v{vT+4}, 2, v{vL15}')
    e(f'v_add_u32 v{vT+4}, s{s_t1}, v{vT+4}')
    NCS = E + 10
    for ft in range(3):
        e(f'ds_read_b32 v{NCS+2*ft}, v{vT+4} offset:{ft*64}')
    M1 = XF
    R1 = XF + 8
    e(f's_lshl_b32 s{s_t0}, s{s_wr}, 7')
    e(f's_lshl_b32 s{s_t1}, s{s_wc}, 6')
    e(f's_add_u32 s{s_t0}, s{s_t0}, s{s_t1}')
    e(f's_add_u32 s{s_t0}, s{s_t0}, {L_M1}')
    e(f'v_lshlrev_b32 v{vT+5}, 4, v{vQ}')
    e(f'v_add_u32 v{vT+5}, s{s_t0}, v{vT+5}')
    e(f'v_xor_b32 v{vT+6}, 64, v{vT+5}')
    e(f'ds_read_b128 v[{M1}:{M1+3}], v{vT+5}')
    e(f'ds_read_b128 v[{M1+4}:{M1+7}], v{vT+6}')
    e(f'ds_read_b128 v[{R1}:{R1+3}], v{vT+5} offset:256')
    e(f'ds_read_b128 v[{R1+4}:{R1+7}], v{vT+6} offset:256')
    e(f'v_mov_b32 v{K1V}, {hexf(K1c)}'); e(f'v_mov_b32 v{K1V+1}, {hexf(K1c)}')
    SA = WF
    for i in range(16): e(f'v_mov_b32 v{SA+i}, 0')
    e('s_waitcnt lgkmcnt(0)')
    for ft in range(3):
        e(f'v_add_f32 v{NCS+2*ft}, v{NCS+2*ft}, v{CS+ft*4}')
        e(f'v_sub_f32 v{NCS+2*ft}, 0, v{NCS+2*ft}')
    npair = 0
    for ft in range(3):
        for T in range(2):
            for p in range(2):
                a = ACC + (T*3+ft)*4 + 2*p
                n = NCS + 2*ft
                g = G + 4*p
                for h in range(2):
                    e(f'v_fma_f32 v{a+h}, v{M1+T*4+2*p+h}, v{n}, v{a+h}')
                for h in range(2):
                    e(f'v_mul_f32 v{a+h}, v{a+h}, v{R1+T*4+2*p+h}')
                gelu_pair_sc(a, g)
                e(f'v_cvt_pk_bf16_f32 v{AP+ft*4+T*2+p}, v{g}, v{g+1}')
                s_ = SA + T*4 + 2*p
                for h in range(2):
                    e(f'v_add_f32 v{s_+h}, v{s_+h}, v{g+h}')
                for h in range(2):
                    e(f'v_fma_f32 v{s_+8+h}, v{g+h}, v{g+h}, v{s_+8+h}')
                npair += 1
                if npair in (4, 9): bar('A')
    for k, sh in enumerate((8, 4, 2, 1)):
        for i in range(16):
            e(f'v_add_f32_dpp v{SA+i}, v{SA+i}, v{SA+i} row_ror:{sh} row_mask:0xf bank_mask:0xf')
    e(f's_lshl_b32 s{s_t0}, s{s_wc}, 8')
    e(f's_add_u32 s{s_t0}, s{s_t0}, {L_PS - L_M1}')
    e(f'v_add_u32 v{vT+5}, s{s_t0}, v{vT+5}')
    e(f'v_add_u32 v{vT+6}, s{s_t0}, v{vT+6}')
    set_exec(e, 0x00010001, 0x00010001)
    e(f'ds_write_b128 v{vT+5}, v[{SA}:{SA+3}]')
    e(f'ds_write_b128 v{vT+6}, v[{SA+4}:{SA+7}]')
    e(f'ds_write_b128 v{vT+5}, v[{SA+8}:{SA+11}] offset:{L_PQ-L_PS}')
    e(f'ds_write_b128 v{vT+6}, v[{SA+12}:{SA+15}] offset:{L_PQ-L_PS}')
    e(f's_mov_b64 exec, s[{s_ex}:{s_ex+1}]')
    e('s_waitcnt lgkmcnt(0)')
    bar('A')
    e(f's_cmp_eq_u32 s{s_w}, 0')
    e('s_cbranch_scc0 K1_NOPUB')
    e(f'v_lshlrev_b32 v{vT}, 2, v{vLane}')
    e(f'v_add_u32 v{vT}, {L_PS}, v{vT}')
    e(f'ds_read_b32 v{vT+2}, v{vT}')
    e(f'ds_read_b32 v{vT+4}, v{vT} offset:256')
    e(f'ds_read_b32 v{vT+3}, v{vT} offset:{L_PQ-L_PS}')
    e(f'ds_read_b32 v{vT+5}, v{vT} offset:{L_PQ-L_PS+256}')
    e(f's_lshl_b32 s{s_t0}, s{s_rb}, 3')
    e(f's_add_u32 s{s_t0}, s{s_t0}, s{s_cb}')
    e(f's_lshl_b32 s{s_t0}, s{s_t0}, 9')
    e(f's_add_u32 s{s_t0}, s{s_t0}, {XCH}')
    e(f'v_lshlrev_b32 v{vT+1}, 3, v{vLane}')
    e('s_waitcnt lgkmcnt(0)')
    e(f'v_add_f32 v{vT+2}, v{vT+2}, v{vT+4}')
    e(f'v_add_f32 v{vT+3}, v{vT+3}, v{vT+5}')
    e(f'v_max_f32 v{vT+3}, 0, v{vT+3}')
    e(f'buffer_store_dwordx2 v[{vT+2}:{vT+3}], v{vT+1}, s[{sWS}:{sWS+3}], s{s_t0} offen sc1')
    e.label('K1_NOPUB')
    stp.stamp(e)
    e(f's_mul_i32 s{s_t0}, s{s_cb}, 6')
    e(f's_mul_i32 s{s_t1}, s{s_wc}, 3')
    e(f's_add_u32 s{s_t0}, s{s_t0}, s{s_t1}')
    e(f's_lshl_b32 s{s_t0}, s{s_t0}, 6')
    e(f's_lshl_b32 s{s_t1}, s{s_rb}, 1')
    e(f's_add_u32 s{s_t0}, s{s_t0}, s{s_t1}')
    e(f's_add_u32 s{s_t0}, s{s_t0}, s{s_wr}')
    e(f's_lshl_b32 s{s_t0}, s{s_t0}, 10')
    e(f's_add_u32 s{s_off}, s{s_t0}, {Z2F}')
    e(f'v_and_b32 v{vT+7}, 1, v{vQ}')
    e(f'v_lshlrev_b32 v{vT+7}, 1, v{vT+7}')
    e(f'v_lshrrev_b32 v{vT+10}, 1, v{vQ}')
    e(f'v_or_b32 v{vT+7}, v{vT+7}, v{vT+10}')
    e(f's_lshl_b32 s{s_t1}, s{s_wc}, 1')
    e(f'v_xor_b32 v{vT+7}, s{s_t1}, v{vT+7}')
    e(f'v_lshlrev_b32 v{vT+7}, 4, v{vT+7}')
    e(f'v_add_u32 v{vT+7}, v{vT+7}, v{vL15}')
    e(f'v_lshlrev_b32 v{vT+7}, 4, v{vT+7}')
    e(f'v_and_b32 v{vT+10}, 31, v{vLane}')
    e(f's_lshl_b32 s{s_j}, s{s_wr}, 5')
    e(f'v_add_u32 v{vT+10}, s{s_j}, v{vT+10}')
    e(f'v_lshlrev_b32 v{vT+10}, 3, v{vT+10}')
    e(f's_lshl_b32 s{s_j}, s{s_rb}, 12')
    e(f's_add_u32 s{s_j}, s{s_j}, {XCH}')
    bar('A')
    bar('A')
    for _ in range(5): bar('A')
    e('s_setprio 0')
    bar('A')
    KR = 26; VRr = 45; KP = 62; CP = 100; KVP = 126
    e(f's_mul_i32 s{s_t0}, s{s_wl}, {16*160}')
    e(f's_add_u32 s{s_t0}, s{s_t0}, {PREP}')
    e(f'v_lshlrev_b32 v{vT+3}, 2, v{vLane}')
    e(f'v_min_u32 v{vT+3}, 156, v{vT+3}')
    e(f'v_add_u32 v{vT+3}, s{s_t0}, v{vT+3}')
    for r in range(19):
        e(f'ds_read_b32 v{KR+r}, v{vT+3} offset:{r*160}')
        if r == 13: e('s_waitcnt lgkmcnt(6)')
    for r in range(16):
        if r in (2, 10): e('s_waitcnt lgkmcnt(6)')
        e(f'ds_read_b32 v{VRr+r}, v{vT+3} offset:{PREPV + r*160}')
    e('s_waitcnt vmcnt(0)')
    e(f'v_lshlrev_b32 v{CP+0}, 16, v{SK+0}'); e(f'v_lshlrev_b32 v{CP+1}, 16, v{SK+2}')
    e(f'v_and_b32 v{CP+2}, s{s_mask}, v{SK+0}'); e(f'v_and_b32 v{CP+3}, s{s_mask}, v{SK+2}')
    e(f'v_lshlrev_b32 v{CP+4}, 16, v{SK+1}'); e(f'v_lshlrev_b32 v{CP+5}, 16, v{SK+3}')
    e(f'v_and_b32 v{CP+6}, s{s_mask}, v{SK+1}'); e(f'v_and_b32 v{CP+7}, s{s_mask}, v{SK+3}')
    e('s_waitcnt lgkmcnt(12)')
    for r in range(19):
        if r == 12: e('s_waitcnt lgkmcnt(0)')
        e(f'v_lshlrev_b32 v{KP+2*r}, 16, v{KR+r}')
        e(f'v_and_b32 v{KP+2*r+1}, s{s_mask}, v{KR+r}')
    for i in range(16):
        t_ = KVP + 2*i
        e(f'v_pk_mul_f32 v[{t_}:{t_+1}], v[{CP+6}:{CP+7}], v[{KP+2*i}:{KP+2*i+1}]')
        e(f'v_lshlrev_b32 v{vT+4}, 16, v{VRr+i}')
        e(f'v_pk_fma_f32 v[{t_}:{t_+1}], v[{CP+4}:{CP+5}], v[{KP+2*i+2}:{KP+2*i+3}], v[{t_}:{t_+1}]')
        e(f'v_and_b32 v{vT+5}, s{s_mask}, v{VRr+i}')
        e(f'v_pk_fma_f32 v[{t_}:{t_+1}], v[{CP+2}:{CP+3}], v[{KP+2*i+4}:{KP+2*i+5}], v[{t_}:{t_+1}]')
        e(f'v_pk_fma_f32 v[{t_}:{t_+1}], v[{CP+0}:{CP+1}], v[{KP+2*i+6}:{KP+2*i+7}], v[{t_}:{t_+1}]')
        e(f'v_pk_mul_f32 v[{t_}:{t_+1}], v[{t_}:{t_+1}], v[{vT+4}:{vT+5}]')
    OUT = 26
    for dd in range(2):
        for g in range(2):
            for n in range(4):
                lo = KVP + 2*(8*g + 7 - 2*n) + dd
                hi = KVP + 2*(8*g + 6 - 2*n) + dd
                e(f'v_cvt_pk_bf16_f32 v{OUT + dd*8 + g*4 + n}, v{lo}, v{hi}')
    XP = WF + 2
    if fused:
        e(f'v_mul_u32_u24 v{vT+3}, {2*KVP_}, v{vLane}')
        e(f's_lshl_b32 s{s_t0}, s{s_wl}, 5')
        e(f's_add_u32 s{s_t0}, s{s_t0}, {KVS}')
        e(f'v_add_u32 v{vT+3}, s{s_t0}, v{vT+3}')
        set_exec(e, 0xffffffff, 0xff)
        for dd in range(2):
            for g in range(2):
                o = OUT + dd*8 + g*4
                e(f'ds_write_b128 v{vT+3}, v[{o}:{o+3}] offset:{dd*KVP_ + g*16}')
        e(f's_mov_b64 exec, s[{s_ex}:{s_ex+1}]')
        e('s_waitcnt lgkmcnt(0)')
        bar('A')
        for c in range(8):
            e(f'buffer_load_dwordx2 v[{XP+2*c}:{XP+2*c+1}], v{vT+10}, s[{sWS}:{sWS+3}], s{s_j} offen offset:{c*512} sc1')
        KO = 62
        e(f'v_lshrrev_b32 v{vT+3}, 3, v{vLane}')
        e(f's_lshl_b32 s{s_t0}, s{s_wl}, 3')
        e(f'v_add_u32 v{vT+3}, s{s_t0}, v{vT+3}')
        e(f'v_and_b32 v{vT+4}, 7, v{vLane}')
        e(f'v_lshlrev_b32 v{vT+4}, 4, v{vT+4}')
        e(f'v_mul_u32_u24 v{vT+5}, {KVP_}, v{vT+3}')
        e(f'v_add_u32 v{vT+5}, v{vT+5}, v{vT+4}')
        e(f'v_add_u32 v{vT+5}, {KVS}, v{vT+5}')
        e(f'v_lshlrev_b32 v{vT+3}, 12, v{vT+3}')
        e(f'v_add_u32 v{vT+3}, v{vT+3}, v{vT+4}')
        for n in range(3):
            e(f'ds_read_b128 v[{KO+4*n}:{KO+4*n+3}], v{vT+5} offset:{n*32*KVP_}')
        e(f's_mul_i32 s{s_t0}, s{s_cb}, {80*4096}')
        e(f's_lshl_b32 s{s_t1}, s{s_rb}, 7')
        e(f's_add_u32 s{s_t0}, s{s_t0}, s{s_t1}')
        e(f's_add_u32 s{s_t0}, s{s_t0}, {KVT}')
        e('s_waitcnt lgkmcnt(0)')
        for n in range(3):
            if n == 2:
                e(f's_cmp_lt_u32 s{s_wl}, 2')
                e(f's_cselect_b32 s{s_t0}, s{s_t0}, 0x80000000')
            e(f'buffer_store_dwordx4 v[{KO+4*n}:{KO+4*n+3}], v{vT+3}, s[{sWS}:{sWS+3}], s{s_t0} offen sc1')
            e(f's_add_u32 s{s_t0}, s{s_t0}, {32*4096}')
        NKV = 3
    else:
        for c in range(8):
            e(f'buffer_load_dwordx2 v[{XP+2*c}:{XP+2*c+1}], v{vT+10}, s[{sWS}:{sWS+3}], s{s_j} offen offset:{c*512} sc1')
        e(f'v_lshlrev_b32 v{vT+3}, 13, v{vLane}')
        e(f's_mul_i32 s{s_t0}, s{s_cb}, {80*4096}')
        e(f's_lshl_b32 s{s_t1}, s{s_rb}, 7')
        e(f's_add_u32 s{s_t0}, s{s_t0}, s{s_t1}')
        e(f's_lshl_b32 s{s_t1}, s{s_wl}, 5')
        e(f's_add_u32 s{s_t0}, s{s_t0}, s{s_t1}')
        e(f's_add_u32 s{s_t0}, s{s_t0}, {KVT}')
        e(f's_add_u32 s{s_t1}, s{s_t0}, 4096')
        set_exec(e, 0xffffffff, 0xff)
        e(f'buffer_store_dwordx4 v[{OUT}:{OUT+3}], v{vT+3}, s[{sWS}:{sWS+3}], s{s_t0} offen {STF_EARLY}')
        e(f'buffer_store_dwordx4 v[{OUT+4}:{OUT+7}], v{vT+3}, s[{sWS}:{sWS+3}], s{s_t0} offen offset:16 {STF_EARLY}')
        e(f'buffer_store_dwordx4 v[{OUT+8}:{OUT+11}], v{vT+3}, s[{sWS}:{sWS+3}], s{s_t1} offen {STF_EARLY}')
        e(f'buffer_store_dwordx4 v[{OUT+12}:{OUT+15}], v{vT+3}, s[{sWS}:{sWS+3}], s{s_t1} offen offset:16 {STF_EARLY}')
        e(f's_mov_b64 exec, s[{s_ex}:{s_ex+1}]')
        NKV = 4
    stp.stamp(e)
    e(f'v_readfirstlane_b32 s{s_t0}, v{PC}')
    e(f's_cmp_ge_u32 s{s_t0}, 8')
    e('s_cbranch_scc1 K1_CPOLLED')
    e('s_mov_b32 s54, 0')
    e.label('K1_CPOLL')
    e('s_add_u32 s54, s54, 1')
    e('s_cmp_lt_u32 s54, 0x200000')
    e('s_cbranch_scc0 K1_POLLED')
    e('s_sleep 4')
    e(f'buffer_load_dword v{PC}, v{vT+8}, s[{sD}:{sD+3}], 0 offen sc1')
    e('s_waitcnt vmcnt(0)')
    e(f'v_readfirstlane_b32 s{s_t0}, v{PC}')
    e(f's_cmp_ge_u32 s{s_t0}, 8')
    e('s_cbranch_scc0 K1_CPOLL')
    e('s_branch K1_POLL')
    e.label('K1_CPOLLED')
    e('s_mov_b32 s54, 0')
    e(f's_waitcnt vmcnt({NKV})')
    e('s_branch K1_CHECK')
    e.label('K1_POLL')
    for c in range(8):
        e(f'buffer_load_dwordx2 v[{XP+2*c}:{XP+2*c+1}], v{vT+10}, s[{sWS}:{sWS+3}], s{s_j} offen offset:{c*512} sc1')
    e('s_waitcnt vmcnt(0)')
    e.label('K1_CHECK')
    e(f's_mov_b32 s{s_t0}, {hex(SENT)}')
    e(f'v_cmp_eq_u32 vcc, s{s_t0}, v{XP+1}')
    for c in range(1, 8):
        e(f'v_cmp_eq_u32 s[{P}:{P+1}], s{s_t0}, v{XP+2*c+1}')
        e(f's_or_b64 vcc, vcc, s[{P}:{P+1}]')
    e('s_cmp_eq_u64 vcc, 0')
    e('s_cbranch_scc1 K1_POLLED')
    e('s_add_u32 s54, s54, 1')
    e('s_cmp_lt_u32 s54, 0x200000')
    e('s_cbranch_scc0 K1_POLLED')
    e('s_sleep 2')
    e('s_branch K1_POLL')
    e.label('K1_POLLED')
    for c in range(1, 8):
        e(f'v_pk_add_f32 v[{XP}:{XP+1}], v[{XP}:{XP+1}], v[{XP+2*c}:{XP+2*c+1}]')
    ln_finalize(e, XP, XP+1, FH, vT+2, vT+3, vT+4, vT+5)
    e(f'v_mul_f32 v{vT+2}, v{vT+2}, v{vT+3}')
    e(f'v_sub_f32 v{vT+2}, 0, v{vT+2}')
    e(f's_lshl_b32 s{s_t0}, s{s_wl}, 8')
    e(f's_add_u32 s{s_t0}, s{s_t0}, {L_W2}')
    e(f'v_and_b32 v{vT+4}, 31, v{vLane}')
    e(f'v_lshlrev_b32 v{vT+4}, 2, v{vT+4}')
    e(f'v_add_u32 v{vT+4}, s{s_t0}, v{vT+4}')
    e(f'ds_write_b32 v{vT+4}, v{vT+2}')
    e(f'ds_write_b32 v{vT+4}, v{vT+3} offset:128')
    e(f's_lshl_b32 s{s_t1}, s{s_wc}, 6')
    e(f's_add_u32 s{s_t0}, s{s_t0}, s{s_t1}')
    e(f'v_lshlrev_b32 v{vT+5}, 4, v{vQ}')
    e(f'v_add_u32 v{vT+5}, s{s_t0}, v{vT+5}')
    e(f'v_xor_b32 v{vT+6}, 64, v{vT+5}')
    e('s_waitcnt lgkmcnt(0)')
    e(f'ds_read_b128 v[{M1}:{M1+3}], v{vT+5}')
    e(f'ds_read_b128 v[{M1+4}:{M1+7}], v{vT+6}')
    e(f'ds_read_b128 v[{R1}:{R1+3}], v{vT+5} offset:128')
    e(f'ds_read_b128 v[{R1+4}:{R1+7}], v{vT+6} offset:128')
    e('s_waitcnt lgkmcnt(0)')
    for ft in range(3):
        for T in range(2):
            for p in range(2):
                a = AP + ft*4 + T*2 + p
                g = G + 4*p
                e(f'v_lshlrev_b32 v{g}, 16, v{a}')
                e(f'v_and_b32 v{g+1}, s{s_mask}, v{a}')
                e(f'v_pk_fma_f32 v[{g}:{g+1}], v[{g}:{g+1}], v[{R1+T*4+2*p}:{R1+T*4+2*p+1}], v[{M1+T*4+2*p}:{M1+T*4+2*p+1}]')
                e(f'v_cvt_pk_bf16_f32 v{a}, v{g}, v{g+1}')
        b = AP + ft*4
        e(f'v_permlane16_swap_b32 v{b}, v{b+2}')
        e(f'v_permlane16_swap_b32 v{b+1}, v{b+3}')
        e(f's_add_u32 s{s_t1}, s{s_off}, {ft*65536}')
        e(f'buffer_store_dwordx4 v[{b}:{b+3}], v{vT+7}, s[{sWS}:{sWS+3}], s{s_t1} offen {SC if fused else STF}')
    if fused:
        H.after_A(e, stp, bar)
    else:
        stp.flush(e, 0, sWS, vT, s_w)
        e('s_endpgm')

    e.label('K1_B')
    e.c('role B')
    stB = Stamper(); stB.n = 1; stB.mute = fused
    SK = 160; WR = 152; WO = 164
    e(f's_cmp_eq_u32 s{s_w}, 4')
    e('s_cbranch_scc0 K1_NORST')
    e(f's_lshl_b32 s{s_t0}, s{s_rb}, 3')
    e(f's_add_u32 s{s_t0}, s{s_t0}, s{s_cb}')
    e(f's_lshl_b32 s{s_t0}, s{s_t0}, 9')
    e(f's_add_u32 s{s_t0}, s{s_t0}, {XCH}')
    e(f'v_lshlrev_b32 v{vT+1}, 3, v{vLane}')
    e(f'v_mov_b32 v{vT+6}, 0')
    e(f'v_mov_b32 v{vT+7}, {hex(SENT)}')
    e(f'buffer_store_dwordx2 v[{vT+6}:{vT+7}], v{vT+1}, s[{sWS}:{sWS+3}], s{s_t0} offen sc1')
    if fused:
        H.flag_addr(e, vT+1, vT+2)
        set_exec(e, 7, 0)
        e(f'buffer_store_dword v{vT+6}, v{vT+1}, s[{sWS}:{sWS+3}], 0 offen sc1')
        e(f's_mov_b64 exec, s[{s_ex}:{s_ex+1}]')
    e.label('K1_NORST')
    DUM = 140
    vTP = 144; vKV = 145; s_tpw = 54; s_tps = 46; s_kv = 78
    e(f's_lshl_b32 s{s_t0}, s2, 2')
    e(f's_add_u32 s{s_t0}, s{s_t0}, s{s_wl}')
    e(f's_mul_i32 s{s_t1}, s{s_t0}, 2731')
    e(f's_lshr_b32 s{s_t1}, s{s_t1}, 16')
    e(f's_mul_i32 s{s_t2}, s{s_t1}, 24')
    e(f's_sub_u32 s{s_t2}, s{s_t0}, s{s_t2}')
    e(f's_mov_b32 s{P+16}, s{s_t0}')
    e(f'v_mul_u32_u24 v{vT+3}, {4*1280}, v{vQ}')
    e(f'v_lshlrev_b32 v{vT+4}, 1, v{vL15}')
    e(f'v_add_u32 v{vT+3}, v{vT+3}, v{vT+4}')
    e(f's_lshl_b32 s{s_t1}, s{s_t1}, 5')
    e(f's_mul_i32 s{s_t2}, s{s_t2}, {32*1280}')
    e(f's_add_u32 s{s_t1}, s{s_t1}, s{s_t2}')
    e(f's_add_u32 s{s_t2}, s{s_t1}, {16*1280}')
    bar('B')
    stB.stamp(e)
    srd(e, sT, P+10, FH*D*2)
    for j in range(8):
        so = s_t1 if j < 4 else s_t2
        e(f'buffer_load_ushort v{WR + j}, v{vT+3}, s[{sT}:{sT+3}], s{so} offen offset:{(j%4)*1280}')
    for k in range(1, 10):
        if PREFETCH and k == 8:
            e(f'v_lshrrev_b32 v{vKV}, 2, v{vLane}')
            e(f'v_mul_u32_u24 v{vKV}, 1280, v{vKV}')
            e(f'v_and_b32 v{vT+9}, 3, v{vLane}')
            e(f'v_lshlrev_b32 v{vT+9}, 6, v{vT+9}')
            e(f'v_add_u32 v{vKV}, v{vKV}, v{vT+9}')
            e(f's_lshl_b32 s{s_kv}, s{s_rb}, 6')
            e(f's_lshl_b32 s{s_off}, s{s_wc}, 5')
            e(f's_add_u32 s{s_kv}, s{s_kv}, s{s_off}')
            e(f's_mul_i32 s{s_kv}, s{s_kv}, 1280')
            e(f's_mul_i32 s{s_off}, s{s_cb}, 160')
            e(f's_andn2_b32 s{s_off}, s{s_off}, 63')
            e(f's_add_u32 s{s_kv}, s{s_kv}, s{s_off}')
            e(f's_cmp_eq_u32 s{s_wr}, 0')
            e(f's_cselect_b32 s{P+0}, s{P+2}, s{P+4}')
            e(f's_cselect_b32 s{P+1}, s{P+3}, s{P+5}')
            srd(e, sT, P, S*D*2)
        if PREFETCH and k == 9:
            e(f'v_lshlrev_b32 v{vTP}, 6, v{vLane}')
            e(f's_and_b32 s{s_tpw}, s2, 7')
            e(f's_lshl_b32 s{s_tpw}, s{s_tpw}, 8')
            e(f's_lshr_b32 s{s_off}, s2, 3')
            e(f's_lshl_b32 s{s_off}, s{s_off}, 3')
            e(f's_add_u32 s{s_tpw}, s{s_tpw}, s{s_off}')
            e(f's_lshl_b32 s{s_off}, s{s_wl}, 1')
            e(f's_add_u32 s{s_tpw}, s{s_tpw}, s{s_off}')
            e(f's_lshl_b32 s{s_tpw}, s{s_tpw}, 12')
            srd(e, sK, P+18, S*S*2)
            srd(e, sV, P+20, D*S*2)
            e(f's_mul_i32 s{s_tps}, s2, 3')
            e(f's_add_u32 s{s_tps}, s{s_tps}, s{s_wl}')
            e(f's_lshl_b32 s{s_tps}, s{s_tps}, 12')
            e(f's_cmp_eq_u32 s{s_wl}, 3')
            e(f's_cselect_b32 s{s_tps}, 0x80000000, s{s_tps}')
        if k == 4:
            e(f's_cmp_eq_u32 s{s_w}, 4')
            e('s_cbranch_scc0 K1_NOCNT')
            e('s_waitcnt vmcnt(0)')
            e(f's_lshl_b32 s{s_off}, s{s_rb}, 2')
            e(f'v_mov_b32 v{vT+6}, s{s_off}')
            e(f'v_mov_b32 v{vT+7}, 1')
            set_exec(e, 1, 0)
            e(f'buffer_atomic_add v{vT+7}, v{vT+6}, s[{sD}:{sD+3}], 0 offen sc1')
            e(f's_mov_b64 exec, s[{s_ex}:{s_ex+1}]')
            e.label('K1_NOCNT')
        if k == 5:
            e(f's_cmp_ge_u32 s{P+16}, 960')
            e('s_cbranch_scc1 K1_NOWOF')
            e('s_waitcnt vmcnt(0)')
            for j in range(4):
                e(f'v_lshl_or_b32 v{WO+j}, v{WR+2*j+1}, 16, v{WR+2*j}')
            e(f'v_lshlrev_b32 v{vT+3}, 4, v{vLane}')
            e(f's_lshl_b32 s{s_t0}, s{P+16}, 10')
            e(f's_add_u32 s{s_t0}, s{s_t0}, {WOF}')
            e(f'buffer_store_dwordx4 v[{WO}:{WO+3}], v{vT+3}, s[{sWS}:{sWS+3}], s{s_t0} offen {SC if fused else STF_EARLY}')
            e.label('K1_NOWOF')
        bar('B')
    init_acc()
    bar('B')
    stB.stamp(e)
    loop(2, 'B')
    stB.stamp(e)
    e.c('B epilogue')
    e(f's_mul_i32 s{s_t0}, s{s_wl}, 192')
    e(f's_add_u32 s{s_t0}, s{s_t0}, {L_CSB}')
    e(f'v_lshlrev_b32 v{vT+4}, 4, v{vQ}')
    e(f'v_add_u32 v{vT+5}, s{s_t0}, v{vT+4}')
    set_exec(e, 0x00010001, 0x00010001)
    for ft in range(3):
        e(f'ds_write_b128 v{vT+5}, v[{CS+ft*4}:{CS+ft*4+3}] offset:{ft*64}')
    e(f's_mov_b64 exec, s[{s_ex}:{s_ex+1}]')
    e(f'v_mov_b32 v{K1V}, {hexf(K1c)}'); e(f'v_mov_b32 v{K1V+1}, {hexf(K1c)}')
    e('s_waitcnt lgkmcnt(0)')
    bar('B')
    if fused: H.conv_early(e)
    e(f's_xor_b32 s{s_t1}, s{s_wl}, 2')
    e(f's_mul_i32 s{s_t1}, s{s_t1}, 192')
    e(f's_add_u32 s{s_t1}, s{s_t1}, {L_CSB}')
    e(f'v_add_u32 v{vT+5}, s{s_t1}, v{vT+4}')
    NC2 = XF
    for ft in range(3):
        e(f'ds_read_b128 v[{NC2+ft*4}:{NC2+ft*4+3}], v{vT+5} offset:{ft*64}')
    MR = WF
    e(f's_lshl_b32 s{s_t0}, s{s_wr}, 7')
    e(f's_lshl_b32 s{s_t1}, s{s_wc}, 6')
    e(f's_add_u32 s{s_t0}, s{s_t0}, s{s_t1}')
    e(f's_add_u32 s{s_t0}, s{s_t0}, {L_M1}')
    e(f'v_lshlrev_b32 v{vT+6}, 2, v{vL15}')
    e(f'v_add_u32 v{vT+6}, s{s_t0}, v{vT+6}')
    e(f'v_xor_b32 v{vT+7}, 64, v{vT+6}')
    e(f'ds_read_b32 v{MR+0}, v{vT+6}')
    e(f'ds_read_b32 v{MR+2}, v{vT+7}')
    e(f'ds_read_b32 v{MR+4}, v{vT+6} offset:256')
    e(f'ds_read_b32 v{MR+6}, v{vT+7} offset:256')
    e(f's_lshl_b32 s{s_t0}, s{s_rb}, 2')
    e(f's_lshl_b32 s{s_t1}, s{s_wr}, 1')
    e(f's_add_u32 s{s_t0}, s{s_t0}, s{s_t1}')
    e(f's_add_u32 s{s_t1}, s{s_t0}, s{s_wc}')
    e(f's_xor_b32 s{s_t2}, s{s_t1}, 1')
    e(f's_mul_i32 s{s_off}, s{s_cb}, 6')
    e(f's_mul_i32 s{s_j}, s{s_wc}, 3')
    e(f's_add_u32 s{s_off}, s{s_off}, s{s_j}')
    e(f's_mul_i32 s{s_t1}, s{s_t1}, 48')
    e(f's_add_u32 s{s_t1}, s{s_t1}, s{s_off}')
    e(f's_lshl_b32 s{s_t1}, s{s_t1}, 9')
    e(f's_add_u32 s{s_t1}, s{s_t1}, {Z1F}')
    e(f's_mul_i32 s{s_t2}, s{s_t2}, 48')
    e(f's_add_u32 s{s_t2}, s{s_t2}, s{s_off}')
    e(f's_lshl_b32 s{s_t2}, s{s_t2}, 9')
    e(f's_add_u32 s{s_t2}, s{s_t2}, {Z1F}')
    e(f'v_lshlrev_b32 v{vT+6}, 3, v{vLane}')
    if fused:
        e(f's_lshl_b32 s{s_j}, s{s_wr}, 1')
        e(f's_add_u32 s{s_j}, s{s_j}, s{s_wc}')
        e(f's_mul_i32 s{s_off}, s{s_j}, 3072')
        e(f's_mul_i32 s{s_t0}, s{s_wc}, 1536')
        e(f's_add_u32 s{s_off}, s{s_off}, s{s_t0}')
        e(f's_add_u32 s{s_off}, s{s_off}, {Z1L}')
        e(f'v_add_u32 v{vT+8}, s{s_off}, v{vT+6}')
        e(f's_xor_b32 s{s_j}, s{s_j}, 1')
        e(f's_mul_i32 s{s_off}, s{s_j}, 3072')
        e(f's_add_u32 s{s_off}, s{s_off}, s{s_t0}')
        e(f's_add_u32 s{s_off}, s{s_off}, {Z1L}')
        e(f'v_add_u32 v{vT+9}, s{s_off}, v{vT+6}')
    e('s_waitcnt lgkmcnt(0)')
    for i in range(12):
        e(f'v_add_f32 v{NC2+i}, v{NC2+i}, v{CS+i}')
        e(f'v_sub_f32 v{NC2+i}, 0, v{NC2+i}')
    ZO = AP
    for T in range(2):
        for ft in range(3):
            for p in range(2):
                a = ACC + (T*3+ft)*4 + 2*p
                n = NC2 + ft*4 + 2*p
                m = MR + 2*T; r = MR + 4 + 2*T
                g = G + 4*p
                e(f'v_pk_fma_f32 v[{a}:{a+1}], v[{n}:{n+1}], v[{m}:{m+1}], v[{a}:{a+1}] op_sel_hi:[1,0,1]')
                e(f'v_pk_mul_f32 v[{a}:{a+1}], v[{a}:{a+1}], v[{r}:{r+1}] op_sel_hi:[1,0]')
                gelu_pair(a, g)
                e(f'v_cvt_pk_bf16_f32 v{ZO+(T*3+ft)*2+p}, v{g}, v{g+1}')
            so = s_t1 if T == 0 else s_t2
            z = ZO + (T*3+ft)*2
            if fused:
                e(f'ds_write_b64 v{vT+8+T}, v[{z}:{z+1}] offset:{ft*512}')
            else:
                e(f'buffer_store_dwordx2 v[{z}:{z+1}], v{vT+6}, s[{sWS}:{sWS+3}], s{so} offen offset:{ft*512} {STF_EARLY}')
        if T == 0: bar('B')
    if fused:
        H.after_B(e, stB, bar)
    if not fused: stB.flush(e, 0, sWS, vT, s_w)
    e.label('K1_END')
    e('s_endpgm')
    if fused: return nbar
    print('k1 barriers', nbar)
    assert nbar['A'] == nbar['B'] == nbar['L'], nbar
    nn = e.finalize()
    return kernel_wrap('k1_kernel', e.text(), vgpr=168, sgpr=96), nn
```

```python
from common import *
from k2b import ids
import os
WO_SZ = 122880
XT = WO_SZ
YT = XT + 10240
LDS3 = YT + 10240
BLOCK3 = 768
NB3 = 6

def gen_k3(e=None, fused=False):
    own = e is None
    if own: e = Emitter()
    sX, sO, sWS = 8, 12, 16
    s_tb, s_db, s_w, s_wl = 32, 33, 34, 55
    s_t0, s_t1, s_t2 = 40, 41, 42
    s_mask = 47; s_ex = 52; s_one = 48
    P = 56
    vLane, vQ, vL15 = 1, 2, 3
    LF = 'sc1' if fused else ''
    nbar = {'G': 0, 'L': 0, 'I': 0}
    def bar(r):
        e('s_barrier'); nbar[r] += 1
    stp = Stamper(); stp.mute = fused
    if not fused:
        e('s_cmp_ge_u32 s2, 256')
        e('s_cbranch_scc1 K3_END')
        stp.start(e)
        e(f's_load_dwordx2 s[{P+4}:{P+5}], s[0:1], 104')
        ids(e, s_tb, s_db, s_w, s_wl, s_t0, s_t1, s_t2, 12)
        e(f's_mov_b32 s{s_mask}, 0xffff0000')
        e(f's_mov_b64 s[{s_ex}:{s_ex+1}], exec')
        e('s_waitcnt lgkmcnt(0)')
        srd(e, sWS, P+4, WS_SIZE)
        e(f's_cmp_ge_u32 s{s_w}, 8')
        e('s_cbranch_scc1 K3_L')
        e(f's_cmp_ge_u32 s{s_w}, 4')
        e('s_cbranch_scc1 K3_END')

    def g3_setup():
        e(f's_load_dwordx2 s[{P}:{P+1}], s[0:1], 0')
        e(f's_load_dwordx2 s[{P+2}:{P+3}], s[0:1], 88')
        e(f'v_lshlrev_b32 v{vL16}, 4, v{vLane}')
        e(f's_lshl_b32 s{s_tt}, s{s_tb}, 2')
        e(f's_add_u32 s{s_tt}, s{s_tt}, s{s_w}')
        e(f's_mul_i32 s{s_pb}, s{s_tt}, {24*1024}')
        e(f's_add_u32 s{s_pb}, s{s_pb}, {PF}')
        e(f's_lshl_b32 s{s_t0}, s{s_tt}, 4')
        e(f's_mul_i32 s{s_t0}, s{s_t0}, 1280')
        e(f's_mul_i32 s{s_t1}, s{s_db}, 160')
        e(f's_add_u32 s{s_t0}, s{s_t0}, s{s_t1}')
        for n in range(3):
            e(f'v_add_u32 v{vT}, {64*n}, v{vLane}')
            e(f'v_mul_u32_u24 v{vT+1}, 6554, v{vT}')
            e(f'v_lshrrev_b32 v{vT+1}, 16, v{vT+1}')
            e(f'v_mul_u32_u24 v{vT+2}, 10, v{vT+1}')
            e(f'v_sub_u32 v{vT+2}, v{vT}, v{vT+2}')
            e(f'v_lshlrev_b32 v{vT+2}, 4, v{vT+2}')
            e(f'v_mul_u32_u24 v{vT+1}, 1280, v{vT+1}')
            e(f'v_add_u32 v{vT+1}, v{vT+1}, v{vT+2}')
            e(f'v_add_u32 v{vXO+n}, s{s_t0}, v{vT+1}')
            e(f'v_lshrrev_b32 v{vT+1}, 1, v{vT}')
            e(f'v_lshlrev_b32 v{vT+1}, 12, v{vT+1}')
            e(f'v_and_b32 v{vT+2}, 1, v{vT}')
            e(f'v_lshlrev_b32 v{vT+2}, 4, v{vT+2}')
            e(f'v_add_u32 v{vYO+n}, v{vT+1}, v{vT+2}')
        e(f's_mul_i32 s{s_xl}, s{s_w}, 2560')
        e(f's_mul_i32 s{s_yo}, s{s_db}, {80*4096}')
        e(f's_lshl_b32 s{s_t1}, s{s_tt}, 5')
        e(f's_add_u32 s{s_yo}, s{s_yo}, s{s_t1}')
        e(f's_add_u32 s{s_yo}, s{s_yo}, {YYT}')
        e(f'v_lshlrev_b32 v{vT+9}, 3, v{vL15}')
        e(f's_lshl_b32 s{s_st}, s{s_tt}, 7')
        e(f's_add_u32 s{s_st}, s{s_st}, {ST1}')
        e(f'v_add_u32 v{vT+8}, 65536, v{vL16}')
        e('s_waitcnt lgkmcnt(0)')
        srd(e, sX, P, S*D*2)
        srd(e, sO, P+2, S*D*2)
        if fused:
            for n in range(3):
                if n == 2: e('s_mov_b32 exec_hi, 0')
                e(f's_add_u32 m0, s{s_xl}, {XT + n*1024}')
                e('s_nop 0')
                e(f'buffer_load_dwordx4 v{vXO+n}, s[{sX}:{sX+3}], 0 offen lds')
            e('s_mov_b32 exec_hi, -1')
            e(f's_lshl_b32 s{s_t0}, s{s_w}, 6')
            e(f's_add_u32 s{s_t0}, s{s_t0}, 143360')
            e(f'v_lshlrev_b32 v{vT+9}, 2, v{vL15}')
            e(f'v_add_u32 v{vT+9}, s{s_t0}, v{vT+9}')
            e(f'ds_read_b32 v{ST}, v{vT+9}')
            e(f'ds_read_b32 v{ST+1}, v{vT+9} offset:256')
    vL16 = 4; vXO = 5; vYO = 8; vT = 12; ST = 24
    AFr = 28; ACC = 68; PFR = 88
    s_tt, s_pb, s_xl, s_yo, s_st = 35, 36, 37, 38, 39
    if not fused:
        e.label('K3_G')
        g3_setup()
    def g3_main():
        def pl(ks):
            r = PFR + (ks % 12)*4
            return [f's_add_u32 s{s_t0}, s{s_pb}, {(ks // 4)*4096}',
                    f'buffer_load_dwordx4 v[{r}:{r+3}], v{vL16}, s[{sWS}:{sWS+3}], s{s_t0} offen offset:{(ks % 4)*1024} {LF}']
        for ks in range(12):
            for x in pl(ks): e(x)
        tail = []
        for n in range(3):
            pre = ['s_mov_b32 exec_hi, 0'] if n == 2 else []
            post = ['s_mov_b32 exec_hi, -1'] if n == 2 else []
            if not fused:
                tail.append(pre + [f's_add_u32 m0, s{s_xl}, {XT + n*1024}', 's_nop 0',
                             f'buffer_load_dwordx4 v{vXO+n}, s[{sX}:{sX+3}], 0 offen lds'] + post)
            tail.append(pre + [f's_add_u32 m0, s{s_xl}, {YT + n*1024}', 's_nop 0',
                         f'buffer_load_dwordx4 v{vYO+n}, s[{sWS}:{sWS+3}], s{s_yo} offen {LF} lds'] + post)
        if not fused:
            tail.append([f'buffer_load_dwordx2 v[{ST}:{ST+1}], v{vT+9}, s[{sWS}:{sWS+3}], s{s_st} offen {LF}'])
        NT = len(tail)
        for i in range(20): e(f'v_mov_b32 v{ACC+i}, 0')
        def rds(buf, ks):
            L = []
            for dt in range(5):
                a = AFr + buf*20 + dt*4
                L.append(f'ds_read_b128 v[{a}:{a+3}], v{vL16 if (ks*5+dt)*1024 < 65536 else vT+8} offset:{((ks*5+dt)*1024) % 65536}')
            return L
        bar('G')
        stp.stamp(e)
        for x in rds(0, 0): e(x)
        for ks in range(24):
            buf = ks % 2; kk = ks % 4
            nvm = 11 if ks < 12 else (23 - ks + min(NT, ks - 12))
            nxt = []
            if ks + 1 < 24:
                if kk == 3:
                    e(f's_waitcnt vmcnt({nvm}) lgkmcnt(0)')
                    bar('G')
                else:
                    e(f's_waitcnt vmcnt({nvm}) lgkmcnt(0)')
                nxt = rds(1 - buf, ks + 1)
            else:
                e(f's_waitcnt vmcnt({nvm}) lgkmcnt(0)')
            mf = []
            for dt in range(5):
                a = AFr + buf*20 + dt*4; d = ACC + dt*4; p = PFR + (ks % 12)*4
                mf.append(f'v_mfma_f32_16x16x32_bf16 v[{d}:{d+3}], v[{a}:{a+3}], v[{p}:{p+3}], v[{d}:{d+3}]')
            fills = [[] for _ in range(5)]
            for n, r in enumerate(nxt): fills[n].append(r)
            if ks < 12: fills[4] += pl(ks + 12)
            elif ks - 12 < NT: fills[4] += tail[ks - 12]
            weave(e, mf, fills)
        e.c('k3 epilogue')
        stp.stamp(e)
        e('s_waitcnt vmcnt(0)')
        e(f'v_mul_u32_u24 v{vT}, 160, v{vL15}')
        e(f'v_lshlrev_b32 v{vT+1}, 3, v{vQ}')
        e(f'v_add_u32 v{vT}, v{vT}, v{vT+1}')
        e(f's_add_u32 s{s_t0}, s{s_xl}, {XT}')
        e(f'v_add_u32 v{vT}, s{s_t0}, v{vT}')
        e(f'v_lshlrev_b32 v{vT+1}, 7, v{vQ}')
        e(f'v_lshlrev_b32 v{vT+2}, 3, v{vL15}')
        e(f'v_add_u32 v{vT+1}, v{vT+1}, v{vT+2}')
        e(f's_add_u32 s{s_t0}, s{s_xl}, {YT}')
        e(f'v_add_u32 v{vT+1}, s{s_t0}, v{vT+1}')
        E = PFR
        XR = E; YR = E + 10
        for dt in range(5):
            e(f'ds_read_b64 v[{XR+2*dt}:{XR+2*dt+1}], v{vT} offset:{dt*32}')
            e(f'ds_read_b64_tr_b16 v[{YR+2*dt}:{YR+2*dt+1}], v{vT+1} offset:{dt*512}')
        NM = vT + 2
        e(f'v_sub_f32 v{NM}, 0, v{ST}')
        e(f'v_mov_b32 v{vT+4}, v{ST+1}')
        e(f's_mov_b32 s{s_one}, 1.0'); e(f's_mov_b32 s{s_one+1}, 1.0')
        e(f'v_mov_b32 v{vT+6}, {hexf(-1.4426950408889634)}'); e(f'v_mov_b32 v{vT+7}, {hexf(-1.4426950408889634)}')
        e('s_waitcnt lgkmcnt(0)')
        W = E + 20
        for dt in range(5):
            for p in range(2):
                a = ACC + dt*4 + 2*p
                x = W + (p*8); y = x + 2; g = x + 4; s = x + 6
                e(f'v_lshlrev_b32 v{x}, 16, v{XR+2*dt+p}')
                e(f'v_and_b32 v{x+1}, s{s_mask}, v{XR+2*dt+p}')
                e(f'v_lshlrev_b32 v{y}, 16, v{YR+2*dt+p}')
                e(f'v_and_b32 v{y+1}, s{s_mask}, v{YR+2*dt+p}')
                e(f'v_pk_mul_f32 v[{g}:{g+1}], v[{a}:{a+1}], v[{vT+6}:{vT+7}]')
                e(f'v_exp_f32 v{g}, v{g}')
                e(f'v_exp_f32 v{g+1}, v{g+1}')
                e(f'v_pk_add_f32 v[{s}:{s+1}], v[{x}:{x+1}], v[{NM}:{NM+1}] op_sel_hi:[1,0]')
                e(f'v_pk_add_f32 v[{g}:{g+1}], v[{g}:{g+1}], s[{s_one}:{s_one+1}]')
                e(f'v_pk_mul_f32 v[{s}:{s+1}], v[{s}:{s+1}], v[{vT+4}:{vT+5}] op_sel_hi:[1,0]')
                e(f'v_rcp_f32 v{g}, v{g}')
                e(f'v_rcp_f32 v{g+1}, v{g+1}')
                e(f'v_pk_mul_f32 v[{s}:{s+1}], v[{s}:{s+1}], v[{y}:{y+1}]')
                e(f'v_pk_mul_f32 v[{g}:{g+1}], v[{g}:{g+1}], v[{a}:{a+1}]')
                e(f'v_pk_fma_f32 v[{s}:{s+1}], v[{s}:{s+1}], v[{g}:{g+1}], v[{x}:{x+1}]')
                e(f'v_cvt_pk_bf16_f32 v{XR+2*dt+p}, v{s}, v{s+1}')
            e(f'ds_write_b64 v{vT}, v[{XR+2*dt}:{XR+2*dt+1}] offset:{dt*32}')
        e('s_waitcnt lgkmcnt(0)')
        e(f's_add_u32 s{s_t0}, s{s_xl}, {XT}')
        e(f'v_add_u32 v{vT+1}, s{s_t0}, v{vL16}')
        OR = W + 16
        for n in range(3):
            e(f'ds_read_b128 v[{OR+4*n}:{OR+4*n+3}], v{vT+1} offset:{n*1024}')
        e('s_waitcnt lgkmcnt(0)')
        for n in range(3):
            if n == 2: set_exec(e, 0xffffffff, 0)
            e(f'buffer_store_dwordx4 v[{OR+4*n}:{OR+4*n+3}], v{vXO+n}, s[{sO}:{sO+3}], 0 offen {NT1}')
        e(f's_mov_b64 exec, s[{s_ex}:{s_ex+1}]')
    def l3_issue_all():
        s_wb, s_l5 = 35, 36
        e(f'v_lshlrev_b32 v4, 4, v{vLane}')
        e(f's_mul_i32 s{s_wb}, s{s_db}, {5*24*1024}')
        e(f's_lshl_b32 s{s_t0}, s{s_wl}, 10')
        e(f's_add_u32 s{s_wb}, s{s_wb}, s{s_t0}')
        e(f's_add_u32 s{s_wb}, s{s_wb}, {WOF}')
        e(f's_mul_i32 s{s_l5}, s{s_wl}, 5120')
        def grp(g):
            for u in range(5):
                e(f's_add_u32 m0, s{s_l5}, {(4*g*5 + u)*1024}')
                e(f's_add_u32 s{s_t0}, s{s_wb}, {(u*24 + 4*g)*1024}')
                e(f'buffer_load_dwordx4 v4, s[{sWS}:{sWS+3}], s{s_t0} offen {LF} lds')
        return grp
    if fused:
        return dict(g3_setup=g3_setup, g3_main=g3_main, l3=l3_issue_all, nbar=nbar, bar=bar)
    g3_main()
    stp.flush(e, 2, sWS, vT, s_w)
    e('s_endpgm')
    e.label('K3_L')
    grp = l3_issue_all()
    grp(0); grp(1)
    for g in range(6):
        issued = min(6, g + 2)
        e(f's_waitcnt vmcnt({5*(issued - g - 1)})'); bar('L')
        if g + 2 < 6: grp(g + 2)
    e.label('K3_END')
    e('s_endpgm')
    print('k3 barriers', nbar)
    assert nbar['G'] == nbar['L'] == NB3
    nn = e.finalize()
    return kernel_wrap('k3_kernel', e.text(), vgpr=168, sgpr=96), nn
```

```python
from common import *
import k1 as K1
import k3b as K3
import os
HCP = 4160
CW_U = 4 * HCP
CW_SZ = CW_U + 512 + 4096
CONV0 = 65536
Z1L = K1.Z1L
LDSF = Z1L + 12288
BLOCKF = 768
NAME = 'recurrent_scan__ssm_conv_h3__mixer_gmlp__prompt_kernel'
POLL_MAX = 1 << 21

s_rb, s_cb, s_w, s_wl = 32, 33, 34, 55
s_t0, s_t1, s_t2 = 40, 41, 42
s_mask = 47; s_ex = 52
sWS = 16; sD = 4
P = 56
vLane, vQ, vL15 = 1, 2, 3

class Hooks:
    def __init__(self):
        self.nb = {}
    def flag_addr(self, e, v, vt):
        e(f's_lshl_b32 s{s_t0}, s{s_cb}, 7')
        e(f's_lshl_b32 s{s_t1}, s{s_rb}, 2')
        e(f's_add_u32 s{s_t0}, s{s_t0}, s{s_t1}')
        e(f's_add_u32 s{s_t1}, s{s_t0}, {FL2A}')
        e(f's_add_u32 s{s_t0}, s{s_t0}, {FL1}')
        e(f'v_mov_b32 v{v}, s{s_t0}')
        e(f'v_mov_b32 v{vt}, s{s_t1}')
        e(f'v_cmp_eq_u32 vcc, 1, v{vLane}')
        e(f'v_cndmask_b32 v{v}, v{v}, v{vt}, vcc')
        e(f's_lshl_b32 s{s_t0}, s{s_rb}, 5')
        e(f's_lshl_b32 s{s_t1}, s{s_cb}, 2')
        e(f's_add_u32 s{s_t0}, s{s_t0}, s{s_t1}')
        e(f's_add_u32 s{s_t0}, s{s_t0}, {FL2B}')
        e(f'v_mov_b32 v{vt}, s{s_t0}')
        e(f'v_cmp_eq_u32 vcc, 2, v{vLane}')
        e(f'v_cndmask_b32 v{v}, v{v}, v{vt}, vcc')

    def after_A(self, e, stp, bar1):
        e('s_waitcnt vmcnt(0)')
        bar1('A')
        p1 = os.environ.get('P1ST') == '1'
        stp.mute = False
        stp.stamp(e)
        stp.mute = p1
        self.g2(e, stp)
    def after_B(self, e, stB, bar1):
        e('s_waitcnt lgkmcnt(0)')
        bar1('B')
        self.c2(e, stB, bar1)
    def after_L(self, e, bar1):
        self.l2(e, bar1)

    def g2(self, e, stp):
        nb = [0]
        def bar():
            e('s_barrier'); nb[0] += 1
        sB = 12
        s_fh, s_kh, s_st, s_bz, s_kz, s_sd = 35, 36, 37, 38, 39, 43
        vB0, vB1, vA, vT = 4, 5, 6, 9
        BF = 16; ACC = 48; ZA = 96
        e.c('phase 2: G')
        e(f's_load_dwordx2 s[{P}:{P+1}], s[0:1], 72')
        e(f's_and_b32 s{s_fh}, s{s_w}, 1')
        e(f's_lshr_b32 s{s_kh}, s{s_w}, 1')
        e(f'v_xor_b32 v{vT}, v{vQ}, v{vL15}')
        e(f'v_lshlrev_b32 v{vT}, 4, v{vT}')
        e(f's_lshl_b32 s{s_t0}, s{s_kh}, 6')
        e(f'v_xor_b32 v{vT}, s{s_t0}, v{vT}')
        e(f'v_lshlrev_b32 v{vT+1}, 8, v{vL15}')
        e(f'v_add_u32 v{vB0}, v{vT}, v{vT+1}')
        e(f'v_xor_b32 v{vB1}, 128, v{vB0}')
        e(f's_mul_i32 s{s_t0}, s{s_cb}, 6')
        e(f's_mul_i32 s{s_t1}, s{s_fh}, 3')
        e(f's_add_u32 s{s_t0}, s{s_t0}, s{s_t1}')
        e(f's_lshl_b32 s{s_t0}, s{s_t0}, 16')
        e(f's_add_u32 s{s_t0}, s{s_t0}, {Z2F}')
        e(f'v_lshlrev_b32 v{vT}, 4, v{vLane}')
        for ft in range(3):
            e(f's_add_u32 s{s_t1}, s{s_t0}, {ft*65536}')
            e(f'v_add_u32 v{vA+ft}, s{s_t1}, v{vT}')
        e(f's_lshl_b32 s{s_kz}, s{s_kh}, 10')
        for i in range(48): e(f'v_mov_b32 v{ACC+i}, 0')
        e('s_waitcnt lgkmcnt(0)')
        srd(e, sB, P, S*2)
        def zl(n6, s_off):
            return [f'buffer_load_dwordx4 v[{ZA+(n6*3+ft)*4}:{ZA+(n6*3+ft)*4+3}], v{vA+ft}, s[{sWS}:{sWS+3}], s{s_off} offen sc1' for ft in range(3)]
        bar()
        stp.stamp(e)
        for n in range(5):
            e(f's_add_u32 s{s_bz}, s{s_kz}, {2*n*1024}')
            for x in zl(n, s_bz): e(x)
        def brd(buf, vb):
            return [f'ds_read_b128 v[{BF+buf*16+tt*4}:{BF+buf*16+tt*4+3}], v{vb} offset:{tt*4096}' for tt in range(4)]
        def mfl(buf, n6):
            L = []
            for tt in range(4):
                for ft in range(3):
                    a = ACC + (ft*4+tt)*4; z = ZA + (n6*3+ft)*4; b = BF + buf*16 + tt*4
                    L.append(f'v_mfma_f32_16x16x32_bf16 v[{a}:{a+3}], v[{z}:{z+3}], v[{b}:{b+3}], v[{a}:{a+3}]')
            return L
        def zoff(add):
            e(f's_lshl_b32 s{s_t0}, s{s_st}, 1')
            e(f's_add_u32 s{s_t0}, s{s_t0}, {add}')
            e(f's_lshl_b32 s{s_bz}, s{s_t0}, 11')
            e(f's_add_u32 s{s_bz}, s{s_bz}, s{s_kz}')
            e(f's_cmp_lt_u32 s{s_t0}, 32')
            e(f's_cselect_b32 s{s_bz}, s{s_bz}, 0x80000000')
        e(f's_mov_b32 s{s_st}, 0')
        for x in brd(0, vB0): e(x)
        e.label('F2_GLOOP')
        for u in range(3):
            n0 = (2*u) % 6; n1 = (2*u + 1) % 6
            zoff(5)
            e('s_waitcnt vmcnt(12) lgkmcnt(0)')
            fills = [[] for _ in range(12)]
            for k_, r in enumerate(brd(1, vB1)): fills[k_].append(r)
            for k_, z in enumerate(zl((n0 + 5) % 6, s_bz)): fills[4 + 2*k_].append(z)
            weave(e, mfl(0, n0), fills)
            e(f's_and_b32 s{s_t0}, s{s_st}, 3')
            e(f's_movk_i32 s{s_sd}, 16384')
            e(f's_cmp_eq_u32 s{s_t0}, 3')
            e(f's_cselect_b32 s{s_sd}, {(-49152) & 0xffffffff}, s{s_sd}')
            zoff(6)
            e('s_waitcnt lgkmcnt(0)')
            e('s_barrier')
            e(f'v_add_u32 v{vB0}, s{s_sd}, v{vB0}')
            e('s_waitcnt vmcnt(12)')
            fills = [[] for _ in range(12)]
            for k_, r in enumerate(brd(0, vB0)): fills[k_].append(r)
            for k_, z in enumerate(zl((n1 + 5) % 6, s_bz)): fills[4 + 2*k_].append(z)
            weave(e, mfl(1, n1), fills)
            e(f'v_add_u32 v{vB1}, s{s_sd}, v{vB1}')
            e(f's_add_u32 s{s_st}, s{s_st}, 1')
            e(f's_cmp_eq_u32 s{s_st}, 16')
            if u < 2: e('s_cbranch_scc1 F2_GDONE')
            else: e('s_cbranch_scc0 F2_GLOOP')
        e.label('F2_GDONE')
        nb[0] += 16
        stp.stamp(e)
        e.c('G epilogue')
        BS = vT + 6
        e(f's_lshl_b32 s{s_t0}, s{s_rb}, 2')
        e(f's_add_u32 s45, s{s_t0}, s{s_w}')
        e(f'v_lshlrev_b32 v{vT+1}, 1, v{vL15}')
        e(f's_lshl_b32 s{s_t0}, s45, 5')
        e(f'buffer_load_ushort v{BS}, v{vT+1}, s[{sB}:{sB+3}], s{s_t0} offen')
        e('s_waitcnt lgkmcnt(0)')
        bar()
        e(f's_mul_i32 s{s_t0}, s{s_w}, 3072')
        e(f'v_lshlrev_b32 v{vT}, 4, v{vLane}')
        e(f'v_add_u32 v{vT+1}, s{s_t0}, v{vT}')
        for tt in range(4):
            for ft in range(3):
                a = ACC + (ft*4 + tt)*4
                e(f'ds_write_b128 v{vT+1}, v[{a}:{a+3}] offset:{tt*12288 + ft*1024}')
                if (tt*3 + ft) % 6 == 5: e('s_waitcnt lgkmcnt(6)')
        e('s_waitcnt lgkmcnt(0)')
        bar()
        RX = 16
        e(f's_mul_i32 s{s_t0}, s{s_w}, 12288')
        e(f'v_add_u32 v{vT+1}, s{s_t0}, v{vT}')
        for v in range(4):
            for ft in range(3):
                r = RX + (v*3 + ft)*4
                e(f'ds_read_b128 v[{r}:{r+3}], v{vT+1} offset:{v*3072 + ft*1024}')
            if v == 2: e('s_waitcnt lgkmcnt(6)')
        Z1 = 64
        e(f's_mul_i32 s{s_t0}, s{s_w}, 3072')
        e(f's_add_u32 s{s_t0}, s{s_t0}, {Z1L}')
        e(f'v_lshlrev_b32 v{vT+2}, 3, v{vLane}')
        e(f'v_add_u32 v{vT+2}, s{s_t0}, v{vT+2}')
        e('s_waitcnt lgkmcnt(6)')
        for ftg in range(6):
            e(f'ds_read_b64 v[{Z1+2*ftg}:{Z1+2*ftg+1}], v{vT+2} offset:{ftg*512}')
        e('s_waitcnt vmcnt(0)')
        e(f'v_lshlrev_b32 v{BS}, 16, v{BS}')
        e(f's_mul_i32 s{s_t0}, s45, {24*1024}')
        e(f's_mul_i32 s{s_t1}, s{s_cb}, {3*1024}')
        e(f's_add_u32 s{s_t0}, s{s_t0}, s{s_t1}')
        e(f's_add_u32 s{s_t0}, s{s_t0}, {PF}')
        e('s_waitcnt lgkmcnt(0)')
        OUTP = 76
        TU = 88
        for ftg in range(6):
            fh, ft = ftg // 3, ftg % 3
            a = RX + ((fh + 0)*3 + ft)*4
            b = RX + ((fh + 2)*3 + ft)*4
            for r in range(4): e(f'v_add_f32 v{a+r}, v{a+r}, v{b+r}')
            for r in range(4): e(f'v_add_f32 v{a+r}, v{a+r}, v{BS}')
            for p in range(2):
                e(f'v_lshlrev_b32 v{TU+2*p}, 16, v{Z1+2*ftg+p}')
                e(f'v_and_b32 v{TU+2*p+1}, s{s_mask}, v{Z1+2*ftg+p}')
            for r in range(4): e(f'v_mul_f32 v{a+r}, v{a+r}, v{TU+r}')
            for p in range(2):
                e(f'v_cvt_pk_bf16_f32 v{OUTP+2*ftg+p}, v{a+2*p}, v{a+2*p+1}')
            if ftg % 2 == 1:
                j = ftg // 2
                e(f'buffer_store_dwordx4 v[{OUTP+4*j}:{OUTP+4*j+3}], v{vT}, s[{sWS}:{sWS+3}], s{s_t0} offen offset:{j*1024} sc1')
        e('s_waitcnt vmcnt(0)')
        bar()
        stp.stamp(e)
        self.k3['g3_setup']()
        bar()
        stp.stamp(e)
        self.k3['g3_main']()
        stp.flush(e, 0, sWS, 12, s_w)
        e('s_endpgm')
        self.nb['A2'] = nb[0]

    def poll(self, e, tag, vaddr, vval, srd, nlanes_lo, nlanes_hi, want, ge=False):
        e(f's_mov_b32 s{s_t2}, 0')
        set_exec(e, nlanes_lo, nlanes_hi)
        e.label(f'FP_{tag}')
        e(f'buffer_load_dword v{vval}, v{vaddr}, s[{srd}:{srd+3}], 0 offen sc1')
        e('s_waitcnt vmcnt(0)')
        e(f'v_cmp_{"gt" if ge else "ne"}_u32 vcc, {want}, v{vval}')
        e(f's_add_u32 s{s_t2}, s{s_t2}, 1')
        e('s_cmp_eq_u64 vcc, 0')
        e(f's_cbranch_scc1 FP_{tag}_OK')
        e(f's_cmp_lt_u32 s{s_t2}, {POLL_MAX}')
        e(f's_cbranch_scc0 FP_{tag}_OK')
        e('s_sleep 1')
        e(f's_branch FP_{tag}')
        e.label(f'FP_{tag}_OK')
        e(f's_mov_b64 exec, s[{s_ex}:{s_ex+1}]')

    def conv_early(self, e):
        sH, sDd = 20, 24
        HC = 136; X = 160; DV = 166
        e(f's_load_dwordx4 s[{P+8}:{P+11}], s[0:1], 32')
        e(f's_sub_u32 s{s_t2}, s{s_w}, 4')
        e(f's_mul_i32 s44, s{s_cb}, 80')
        e(f's_mul_i32 s{s_t0}, s{s_rb}, 3')
        e(f's_lshl_b32 s{s_t1}, s{s_rb}, 1')
        e(f's_add_u32 s{s_t1}, s{s_t1}, 16')
        e(f's_cmp_lt_u32 s{s_rb}, 16')
        e(f's_cselect_b32 s{s_t0}, s{s_t0}, s{s_t1}')
        e(f's_cselect_b32 s{s_t1}, 3, 2')
        e(f's_add_u32 s44, s44, s{s_t0}')
        e(f's_add_u32 s44, s44, s{s_t2}')
        e(f's_cmp_lt_u32 s{s_t2}, s{s_t1}')
        e(f's_cselect_b32 s45, 1, 0')
        e('s_cbranch_scc0 F2_NOH')
        e('s_waitcnt lgkmcnt(0)')
        e(f's_lshl_b32 s{s_t0}, s44, 12')
        e(f's_add_u32 s{sH}, s{P+8}, s{s_t0}')
        e(f's_addc_u32 s{sH+1}, s{P+9}, 0')
        e(f's_and_b32 s{sH+1}, s{sH+1}, 0xffff')
        e(f's_mov_b32 s{sH+2}, 4096')
        e(f's_mov_b32 s{sH+3}, 0x20000')
        srd(e, sDd, P+10, D*2)
        e(f'v_lshlrev_b32 v167, 4, v{vLane}')
        for n in range(4):
            c = HC + n*6
            e(f'buffer_load_dwordx4 v[{c}:{c+3}], v167, s[{sH}:{sH+3}], 0 offen offset:{n*1024}')
            e(f'buffer_load_dwordx2 v[{c+4}:{c+5}], v167, s[{sH}:{sH+3}], 0 offen offset:{n*1024+16}')
        e(f'v_mov_b32 v167, 0')
        e(f'buffer_load_dwordx2 v[{X+4}:{X+5}], v167, s[{sH}:{sH+3}], 0 offen')
        e(f's_lshl_b32 s{s_t0}, s44, 1')
        e(f'buffer_load_ushort v{DV}, v167, s[{sDd}:{sDd+3}], s{s_t0} offen')
        e.label('F2_NOH')
        e('s_waitcnt lgkmcnt(0)')

    def c2(self, e, stC, bar1):
        nb = [0]
        def bar():
            e('s_barrier'); nb[0] += 1
        sH, sDd = 20, 24
        s_d, s_base, s_p = 35, 36, 37
        vA_, vB_ = 4, 5
        vT = 6
        HC = 136; X = 160; DV = 46; ACC = 48
        e.c('phase 2: B stream')
        e(f's_cmp_eq_u32 s{s_w}, 7')
        e('s_cbranch_scc1 F2_SYNC')
        e(f's_cmp_eq_u32 s45, 0')
        e('s_cbranch_scc1 F2_IDLE')
        e(f's_mov_b32 s{s_d}, s44')
        e(f's_sub_u32 s{s_t2}, s{s_w}, 4')
        e(f's_mul_i32 s{s_base}, s{s_t2}, {CW_SZ}')
        e(f's_add_u32 s{s_base}, s{s_base}, {CONV0}')
        e(f'v_add_u32 v{vT+4}, 1, v{vL15}')
        e(f'v_and_b32 v{vT+4}, 3, v{vT+4}')
        e(f'v_lshrrev_b32 v{vT+5}, 1, v{vQ}')
        e(f'v_and_b32 v{vT+6}, 1, v{vQ}')
        e(f'v_lshlrev_b32 v{vT+7}, 4, v{vT+5}')
        e(f'v_add_u32 v{vT+7}, v{vT+7}, v{vL15}')
        e(f'v_lshlrev_b32 v{vT+8}, 3, v{vT+6}')
        e(f'v_sub_u32 v{vT+7}, v{vT+7}, v{vT+8}')
        e(f'v_add_u32 v{vT+7}, 9, v{vT+7}')
        e(f'v_sub_u32 v{vT+7}, v{vT+7}, v{vT+4}')
        e(f'v_lshlrev_b32 v{vT+7}, 1, v{vT+7}')
        e(f'v_mul_u32_u24 v{vT+4}, {HCP}, v{vT+4}')
        e(f'v_add_u32 v{vT+7}, v{vT+7}, v{vT+4}')
        e(f'v_add_u32 v{vA_}, s{s_base}, v{vT+7}')
        e(f'v_sub_u32 v{vT+7}, v{vL15}, v{vT+5}')
        e(f'v_lshlrev_b32 v{vT+7}, 1, v{vT+7}')
        e(f'v_add_u32 v{vT+7}, v{vT+7}, v{vT+6}')
        e(f'v_lshlrev_b32 v{vT+7}, 4, v{vT+7}')
        e(f's_add_u32 s{s_t0}, s{s_base}, {CW_U + 512}')
        e(f'v_add_u32 v{vB_}, s{s_t0}, v{vT+7}')
        e('s_waitcnt vmcnt(0)')
        e(f'v_mov_b32 v{DV}, v166')
        e(f'v_mov_b32 v{vT+2}, 0'); e(f'v_mov_b32 v{vT+3}, 0')
        e(f'v_lshlrev_b32 v{vT+4}, 3, v{vLane}')
        e(f'v_add_u32 v{vT+4}, s{s_base}, v{vT+4}')
        e(f'ds_write_b64 v{vT+4}, v[{vT+2}:{vT+3}] offset:{CW_U}')
        e(f'v_lshlrev_b32 v{vT+4}, 4, v{vLane}')
        e(f'v_add_u32 v{vT+4}, s{s_base}, v{vT+4}')
        TM = 80
        def copies(c, off, k):
            t_ = TM + (k % 4)*12
            e(f'v_alignbit_b32 v{t_+0}, v{c+1}, v{c+0}, 16')
            e(f'v_alignbit_b32 v{t_+1}, v{c+2}, v{c+1}, 16')
            e(f'v_alignbit_b32 v{t_+2}, v{c+3}, v{c+2}, 16')
            e(f'v_alignbit_b32 v{t_+3}, v{c+4}, v{c+3}, 16')
            e(f'v_mov_b32 v{t_+4}, v{c+1}'); e(f'v_mov_b32 v{t_+5}, v{c+2}')
            e(f'v_mov_b32 v{t_+6}, v{c+3}'); e(f'v_mov_b32 v{t_+7}, v{c+4}')
            e(f'v_mov_b32 v{t_+8}, v{t_+1}'); e(f'v_mov_b32 v{t_+9}, v{t_+2}'); e(f'v_mov_b32 v{t_+10}, v{t_+3}')
            e(f'v_alignbit_b32 v{t_+11}, v{c+5}, v{c+4}, 16')
            e(f'ds_write_b128 v{vT+4}, v[{c}:{c+3}] offset:{off}')
            e(f'ds_write_b128 v{vT+4}, v[{t_}:{t_+3}] offset:{off + HCP}')
            e(f'ds_write_b128 v{vT+4}, v[{t_+4}:{t_+7}] offset:{off + 2*HCP}')
            e(f'ds_write_b128 v{vT+4}, v[{t_+8}:{t_+11}] offset:{off + 3*HCP}')
        for n in range(4):
            copies(HC + n*6, 32 + n*1024, n)
            e('s_waitcnt lgkmcnt(4)')
        for i in range(4): e(f'v_mov_b32 v{X+i}, 0')
        e(f'v_cmp_eq_u32 vcc, 1, v{vLane}')
        e(f'v_cndmask_b32 v{X+4}, 0, v{X+4}, vcc')
        e(f'v_cndmask_b32 v{X+5}, 0, v{X+5}, vcc')
        e('s_waitcnt lgkmcnt(0)')
        set_exec(e, 3, 0)
        copies(X, 0, 0)
        e(f's_mov_b64 exec, s[{s_ex}:{s_ex+1}]')
        e(f'v_lshlrev_b32 v{DV}, 16, v{DV}')
        for i in range(32): e(f'v_mov_b32 v{ACC+i}, 0')
        e(f'v_lshlrev_b32 v{vT}, 4, v{vLane}')
        e(f's_lshl_b32 s{s_t0}, s{s_d}, 12')
        e(f's_add_u32 s{s_t0}, s{s_t0}, {KVT}')
        e('s_waitcnt lgkmcnt(0)')
        bar1('B')
        bar()
        for n in range(4):
            e(f's_add_u32 m0, s{s_base}, {CW_U + 512 + n*1024}')
            e(f's_add_u32 s{s_t1}, s{s_t0}, {n*1024}')
            e(f'buffer_load_dwordx4 v{vT}, s[{sWS}:{sWS+3}], s{s_t1} offen sc1 lds')
        AFr = 80; B0 = 112
        def a_rd(m):
            a = AFr + m*4
            return [f'ds_read_b64 v[{a}:{a+1}], v{vA_} offset:{m*512}', f'ds_read_b64 v[{a+2}:{a+3}], v{vA_} offset:{m*512+8}']
        def b_rd(ee):
            b = B0 + 4*ee
            return [f'ds_read_b128 v[{b}:{b+3}], v{vB_} offset:{ee*512}']
        for m in range(8):
            for x in a_rd(m): e(x)
            if m % 4 == 3: e('s_waitcnt lgkmcnt(6)')
        e('s_waitcnt vmcnt(0)')
        for m in range(8):
            for x in b_rd(m): e(x)
        bar()
        e(f's_mov_b32 s{s_p}, 0')
        e.label('F2_CLOOP')
        e(f'v_add_u32 v{vA_}, 64, v{vA_}')
        e(f'v_subrev_u32 v{vB_}, 64, v{vB_}')
        e('s_waitcnt lgkmcnt(0)')
        for m in range(8):
            for c in range(m, 8):
                a = AFr + m*4; b = B0 + (c-m)*4; d = ACC + c*4
                e(f'v_mfma_f32_16x16x32_bf16 v[{d}:{d+3}], v[{a}:{a+3}], v[{b}:{b+3}], v[{d}:{d+3}]')
            for x in a_rd(m): e(x)
            for x in b_rd(7 - m): e(x)
            if m in (3, 6): e('s_waitcnt lgkmcnt(6)')
            if m == 2: e('s_barrier')
        e('s_barrier')
        e(f's_add_u32 s{s_p}, s{s_p}, 1')
        e(f's_cmp_lt_u32 s{s_p}, 8')
        e('s_cbranch_scc1 F2_CLOOP')
        nb[0] += 16
        e('s_waitcnt lgkmcnt(0)')
        e(f'v_lshlrev_b32 v{vT}, 5, v{vL15}')
        e(f'v_lshrrev_b32 v{vT+1}, 1, v{vQ}')
        e(f'v_lshlrev_b32 v{vT+1}, 4, v{vT+1}')
        e(f'v_add_u32 v{vT}, v{vT}, v{vT+1}')
        e(f'v_and_b32 v{vT+1}, 1, v{vQ}')
        e(f'v_xor_b32 v{vT+1}, 1, v{vT+1}')
        e(f'v_lshlrev_b32 v{vT+1}, 3, v{vT+1}')
        e(f'v_add_u32 v{vT}, v{vT}, v{vT+1}')
        e(f's_add_u32 s{s_t0}, s{s_base}, {CW_U + 512}')
        e(f'v_add_u32 v{vT}, s{s_t0}, v{vT}')
        KV = AFr
        for c in range(8):
            e(f'ds_read_b64 v[{KV+2*c}:{KV+2*c+1}], v{vT} offset:{c*512}')
        e(f'v_lshlrev_b32 v{vT+2}, 5, v{vL15}')
        e(f'v_lshlrev_b32 v{vT+3}, 3, v{vQ}')
        e(f'v_add_u32 v{vT+2}, v{vT+2}, v{vT+3}')
        e(f's_lshl_b32 s{s_t0}, s{s_d}, 12')
        e(f's_add_u32 s{s_t0}, s{s_t0}, {YYT}')
        bar()
        e('s_waitcnt lgkmcnt(0)')
        U = B0
        for c in range(8):
            a = ACC + c*4; k0 = KV + 2*c; u = U + (c % 4)*8
            e(f'v_and_b32 v{u+0}, s{s_mask}, v{k0+1}')
            e(f'v_lshlrev_b32 v{u+1}, 16, v{k0+1}')
            e(f'v_and_b32 v{u+2}, s{s_mask}, v{k0}')
            e(f'v_lshlrev_b32 v{u+3}, 16, v{k0}')
            for r in range(4): e(f'v_fmac_f32 v{a+r}, v{u+r}, v{DV}')
            e(f'v_cvt_pk_bf16_f32 v{u+4}, v{a}, v{a+1}')
            e(f'v_cvt_pk_bf16_f32 v{u+5}, v{a+2}, v{a+3}')
            e(f'buffer_store_dwordx2 v[{u+4}:{u+5}], v{vT+2}, s[{sWS}:{sWS+3}], s{s_t0} offen offset:{c*512} sc1')
        e('s_waitcnt vmcnt(0)')
        bar()
        n_c = nb[0]
        e.label('F3_IDLE')
        for _ in range(1 + K3.NB3): e('s_barrier')
        stC.flush(e, 0, sWS, vT, s_w)
        e('s_endpgm')
        e.label('F2_IDLE')
        e('s_waitcnt vmcnt(0)')
        bar1('I1')
        for _ in range(n_c): e('s_barrier')
        e('s_branch F3_IDLE')
        e.label('F2_SYNC')
        vt = 6
        e(f'v_lshlrev_b32 v{vt}, 2, v{vLane}')
        self.poll(e, 'CNT', vt, vt+1, sD, 0xffffffff, 0, 8, ge=True)
        self.flag_addr(e, vt+2, vt+3)
        e(f'v_mov_b32 v{vt+4}, 1')
        e('s_waitcnt vmcnt(0)')
        bar1('I2')
        set_exec(e, 1, 0)
        e(f'buffer_store_dword v{vt+4}, v{vt+2}, s[{sWS}:{sWS+3}], 0 offen sc1')
        e(f's_mov_b64 exec, s[{s_ex}:{s_ex+1}]')
        e(f's_lshl_b32 s{s_t0}, s{s_cb}, 7')
        e(f's_add_u32 s{s_t0}, s{s_t0}, {FL1}')
        e(f'v_lshlrev_b32 v{vt}, 2, v{vLane}')
        e(f'v_add_u32 v{vt}, s{s_t0}, v{vt}')
        self.poll(e, 'F1', vt, vt+1, sWS, 0xffffffff, 0, 1)
        for _ in range(n_c): e('s_barrier')
        set_exec(e, 6, 0)
        e(f'buffer_store_dword v{vt+4}, v{vt+2}, s[{sWS}:{sWS+3}], 0 offen sc1')
        e(f's_mov_b64 exec, s[{s_ex}:{s_ex+1}]')
        e(f's_lshl_b32 s{s_t0}, s{s_cb}, 7')
        e(f's_add_u32 s{s_t0}, s{s_t0}, {FL2A}')
        e(f'v_lshlrev_b32 v{vt}, 2, v{vLane}')
        e(f'v_add_u32 v{vt+5}, s{s_t0}, v{vt}')
        e(f's_lshl_b32 s{s_t0}, s{s_rb}, 5')
        e(f's_add_u32 s{s_t0}, s{s_t0}, {FL2B - 128}')
        e(f'v_add_u32 v{vt+6}, s{s_t0}, v{vt}')
        e(f'v_cmp_gt_u32 vcc, 32, v{vLane}')
        e(f'v_cndmask_b32 v{vt}, v{vt+6}, v{vt+5}, vcc')
        self.poll(e, 'F2', vt, vt+1, sWS, 0xffffffff, 0xff, 1)
        e('s_branch F3_IDLE')
        self.nb['B2'] = n_c

    def l2(self, e, bar1):
        nb = [0]
        def bar():
            e('s_barrier'); nb[0] += 1
        sSP = 8
        vD = 4; t = 10
        s_bw, s_m = 38, 39
        e.c('phase 2: L')
        e(f's_load_dwordx2 s[{P}:{P+1}], s[0:1], 64')
        e(f's_load_dwordx2 s[{P+4}:{P+5}], s[0:1], 104')
        e(f's_lshl_b32 s{s_t0}, s{s_rb}, 6')
        e(f's_lshl_b32 s{s_t1}, s{s_wl}, 4')
        e(f's_add_u32 s{s_t0}, s{s_t0}, s{s_t1}')
        for tt in range(4):
            e(f'v_add_u32 v{t}, {4*tt}, v{vQ}')
            e(f'v_xor_b32 v{t+1}, v{t}, v{vL15}')
            e(f'v_lshlrev_b32 v{t+1}, 4, v{t+1}')
            e(f'v_add_u32 v{t}, s{s_t0}, v{t}')
            e(f'v_lshlrev_b32 v{t}, 12, v{t}')
            e(f'v_add_u32 v{vD+tt}, v{t}, v{t+1}')
        e(f's_lshl_b32 s{s_m}, s{s_wl}, 12')
        e('s_waitcnt lgkmcnt(0)')
        srd(e, sSP, P, S*S*2)
        srd(e, sWS, P+4, WS_SIZE)
        cnt = [0]; done = {}
        def issue(j):
            e(f's_movk_i32 s{s_bw}, {j*256}')
            for tt in range(4):
                e(f's_add_u32 m0, s{s_m}, {(j % 4)*16384 + tt*1024}')
                e('s_nop 0')
                e(f'buffer_load_dwordx4 v{vD+tt}, s[{sSP}:{sSP+3}], s{s_bw} offen lds')
            cnt[0] += 4; done[j] = cnt[0]
        def lbar(j):
            e(f's_waitcnt vmcnt({cnt[0] - done[j]})'); bar()
        def touch():
            e(f'v_lshlrev_b32 v{t}, 6, v{vLane}')
            e(f's_and_b32 s{s_t0}, s2, 7')
            e(f's_lshl_b32 s{s_t0}, s{s_t0}, 8')
            e(f's_lshr_b32 s{s_t1}, s2, 3')
            e(f's_lshl_b32 s{s_t1}, s{s_t1}, 3')
            e(f's_add_u32 s{s_t0}, s{s_t0}, s{s_t1}')
            e(f's_lshl_b32 s{s_t1}, s{s_wl}, 1')
            e(f's_add_u32 s{s_t0}, s{s_t0}, s{s_t1}')
            e(f's_lshl_b32 s{s_t0}, s{s_t0}, 12')
            e(f'buffer_load_dword v{t+1}, v{t}, s[{sSP}:{sSP+3}], s{s_t0} offen')
            e(f's_add_u32 s{s_t0}, s{s_t0}, 4096')
            e(f'buffer_load_dword v{t+2}, v{t}, s[{sSP}:{sSP+3}], s{s_t0} offen')
            cnt[0] += 2
        LORD = os.environ.get('LORD', 'A')
        if LORD == 'A':
            issue(0); bar1('L'); e('s_waitcnt vmcnt(0)'); issue(1); bar1('L'); touch(); issue(2); issue(3)
        elif LORD == 'B':
            touch(); bar1('L'); e('s_waitcnt vmcnt(0)'); issue(0); issue(1); bar1('L'); issue(2); issue(3)
        elif LORD == 'C':
            bar1('L'); bar1('L'); touch(); issue(0)
        elif LORD == 'D':
            bar1('L'); e('s_sleep 8'); touch(); bar1('L'); issue(0); issue(1)
        lbar(0)
        for j in range(4):
            if j not in done: issue(j)
        for i in range(16):
            if i + 1 < 16: lbar(i + 1)
            else: bar()
            if i + 4 < 16: issue(i + 4)
        bar(); bar()
        bar()
        self.nb['L2'] = nb[0]
        grp = self.k3['l3']()
        grp(0); grp(1)
        e('s_barrier')
        issued = 2
        for g in range(6):
            if issued < 6:
                grp(issued); issued += 1
            e(f's_waitcnt vmcnt({5*(issued - g - 1)})')
            e('s_barrier')
        e('s_endpgm')

def gen_kf():
    e = Emitter()
    H = Hooks()
    H.k3 = K3.gen_k3(e=e, fused=True)
    nbar = K1.gen_k1(e=e, fused=True, H=H)
    print('phase1 barriers', nbar, 'phase2', H.nb, 'phase3', H.k3['nbar'])
    assert nbar['A'] == nbar['L'] == 25 and nbar['B'] == 25 and nbar['I1'] == 1 and nbar['I2'] == 1, nbar
    assert H.nb['A2'] - 1 == H.nb['B2'] == H.nb['L2'] == 20, H.nb
    assert H.k3['nbar']['G'] == K3.NB3
    nn = e.finalize()
    return kernel_wrap(NAME, e.text(), vgpr=168, sgpr=96), nn
```

```python
from common import *

WSLOT = 12288; NSLOT = 5
XB0 = NSLOT * WSLOT
XST = 8192
PREP = XB0
PREPV = 11520
MISC = XB0 + 10 * XST
L_M1 = MISC; L_R1 = MISC + 256
L_CSA = MISC + 512
L_CSB = MISC + 1280
L_PS = MISC + 2048
L_PQ = MISC + 2560
L_W2 = MISC + 3072
LDS1 = 147456
import os
PREFETCH = os.environ.get('PREFETCH', '1') == '1'
XP_NOPREP = os.environ.get('XP_NOPREP', '0') == '1'
XP_NODOT = os.environ.get('XP_NODOT', '0') == '1'
XP_NOCOMP = os.environ.get('XP_NOCOMP', '0')
BLOCK1 = 768
SENT = 0xbf800000

K1c = -2.0 * 1.4426950408889634 * 0.7978845608028654
K2c = K1c * 0.044715

KVS = 49152; KVP_ = 144; Z1L = 147456
def gen_k1(e=None, fused=False, H=None):
    if e is None: e = Emitter()
    SC = 'sc1' if fused else ''
    sX, sW, sWS, sK, sV, sT = 8, 12, 16, 20, 24, 28
    s_rb, s_cb, s_w, s_wr, s_wc, s_wl = 32, 33, 34, 35, 36, 55
    s_i, s_j, s_off, s_t0, s_t1, s_t2 = 37, 38, 39, 40, 41, 42
    s_z2b, s_z1b, s_slot, s_mask = 43, 44, 45, 47
    s_k2 = 48; s_one = 50; s_ex = 52; s_xo = 54
    sD = 4
    P = 56
    vLane, vQ, vL15 = 1, 2, 3
    vXA, vXB, vW = 4, 6, 8
    vT = 14
    XF = 26; WF = 42; ACC = 66; CS = 90; ONE = 102; SUM = 106; GR = 110; AP = 114; E = 126
    nbar = {'A': 0, 'B': 0, 'L': 0}
    def bar(role, name=''):
        e('s_barrier'); nbar[role] = nbar.get(role, 0) + 1

    e.c('---- k1: GEMM1 (LN1 folded) + gelu + LN2 + kv prep + w_out retile ; roles A(0-3) B(4-7) L(8)')
    e('s_cmp_ge_u32 s2, 256')
    e('s_cbranch_scc1 K1_END')
    stp = Stamper(); stp.start(e)
    stp.mute = fused and os.environ.get('P1ST') != '1'
    e(f's_load_dwordx4 s[{P}:{P+3}], s[0:1], 0')
    e(f's_load_dwordx4 s[{P+4}:{P+7}], s[0:1], 16')
    e(f's_load_dwordx2 s[{P+8}:{P+9}], s[0:1], 56')
    e(f's_load_dwordx2 s[{P+10}:{P+11}], s[0:1], 80')
    e(f's_load_dwordx4 s[{P+12}:{P+15}], s[0:1], 96')
    e(f's_load_dwordx2 s[{P+18}:{P+19}], s[0:1], 64')
    e(f's_load_dwordx2 s[{P+20}:{P+21}], s[0:1], 32')
    e(f'v_and_b32 v{vLane}, 63, v0')
    e(f'v_lshrrev_b32 v{vT}, 6, v0')
    e(f'v_lshrrev_b32 v{vQ}, 4, v{vLane}')
    e(f'v_readfirstlane_b32 s{s_w}, v{vT}')
    e(f'v_and_b32 v{vL15}, 15, v{vLane}')
    e(f's_and_b32 s{s_t0}, s2, 7')
    e(f's_lshr_b32 s{s_t1}, s2, 3')
    e(f's_lshr_b32 s{s_rb}, s{s_t0}, 1')
    e(f's_lshl_b32 s{s_rb}, s{s_rb}, 3')
    e(f's_lshr_b32 s{s_t2}, s{s_t1}, 2')
    e(f's_add_u32 s{s_rb}, s{s_rb}, s{s_t2}')
    e(f's_and_b32 s{s_cb}, s{s_t0}, 1')
    e(f's_lshl_b32 s{s_cb}, s{s_cb}, 2')
    e(f's_and_b32 s{s_t2}, s{s_t1}, 3')
    e(f's_add_u32 s{s_cb}, s{s_cb}, s{s_t2}')
    e(f's_and_b32 s{s_wl}, s{s_w}, 3')
    e(f's_lshr_b32 s{s_wr}, s{s_wl}, 1')
    e(f's_and_b32 s{s_wc}, s{s_wl}, 1')
    e(f's_mov_b32 s{s_mask}, 0xffff0000')
    e(f's_mov_b64 s[{s_ex}:{s_ex+1}], exec')
    e(f's_mul_i32 s{s_z1b}, s{s_cb}, 192')
    e(f's_add_u32 s{s_z2b}, s{s_z1b}, {768*2}')
    e(f's_cmp_ge_u32 s{s_w}, 8')
    e('s_cbranch_scc0 K1_AB')

    e.c('loader (4 waves; L = w&3 handles instr n = 4h + L of each stage)')
    stL = Stamper(); stL.n = 1; stL.mute = fused
    vP, vPr = 4, 5
    VX = 8
    VW = 12
    t = 30
    s_L = s_wl
    s_xs, s_ws_, s_lb = s_j, s_off, s_slot
    e(f's_lshl_b32 s{s_t0}, s{s_rb}, 6')
    e(f's_lshl_b32 s{s_t1}, s{s_L}, 3')
    e(f's_add_u32 s{s_t0}, s{s_t0}, s{s_t1}')
    e(f's_lshl_b32 s{s_lb}, s{s_L}, 10')
    e(f'v_lshrrev_b32 v{t}, 3, v{vLane}')
    e(f'v_add_u32 v{t+2}, s{s_t1}, v{t}')
    e(f'v_lshrrev_b32 v{t+1}, 1, v{t+2}')
    e(f'v_xor_b32 v{t+1}, v{t+1}, v{vLane}')
    e(f'v_and_b32 v{t+1}, 7, v{t+1}')
    e(f'v_lshlrev_b32 v{t+1}, 4, v{t+1}')
    e(f'v_add_u32 v{t}, s{s_t0}, v{t}')
    e(f'v_mul_u32_u24 v{t}, 1280, v{t}')
    e(f'v_add_u32 v{VX}, v{t}, v{t+1}')
    e(f'v_add_u32 v{VX+1}, {32*1280}, v{VX}')
    e('s_waitcnt lgkmcnt(0)')
    stL.stamp(e)
    srd(e, sX, P, S*D*2)
    srd(e, sW, P+8, D*F*2)
    cnt = [0]; done_at = {}
    s_rot = s_i
    e(f's_and_b32 s{s_t0}, s{s_rb}, 7')
    e(f's_and_b32 s{s_t1}, s{s_cb}, 3')
    e(f's_mul_i32 s{s_t1}, s{s_t1}, 3')
    e(f's_add_u32 s{s_rot}, s{s_t0}, s{s_t1}')
    e(f's_sub_u32 s{s_t0}, s{s_rot}, 10')
    e(f's_cmp_ge_u32 s{s_rot}, 10')
    e(f's_cselect_b32 s{s_rot}, s{s_t0}, s{s_rot}')
    def kslice(j, dst):
        e(f's_add_u32 s{dst}, s{s_rot}, {j % 10}')
        e(f's_sub_u32 s{s_t0}, s{dst}, 10')
        e(f's_cmp_ge_u32 s{dst}, 10')
        e(f's_cselect_b32 s{dst}, s{s_t0}, s{dst}')
    def issue_x(j):
        kslice(j, s_xs)
        e(f's_lshl_b32 s{s_xs}, s{s_xs}, 7')
        for h in range(2):
            e(f's_add_u32 m0, s{s_lb}, {XB0 + j*XST + 4096*h}')
            e('s_nop 0')
            e(f'buffer_load_dwordx4 v{VX+h}, s[{sX}:{sX+3}], s{s_xs} offen lds')
        cnt[0] += 2
    def issue_w(j):
        base = s_z2b if j < 10 else s_z1b
        kslice(j, s_ws_)
        e(f's_mul_i32 s{s_ws_}, s{s_ws_}, {64*3072}')
        e(f's_add_u32 s{s_ws_}, s{s_ws_}, s{base}')
        for h in range(3):
            e(f's_add_u32 m0, s{s_lb}, {(j % NSLOT)*WSLOT + 4096*h}')
            e('s_nop 0')
            e(f'buffer_load_dwordx4 v{VW+h}, s[{sW}:{sW+3}], s{s_ws_} offen lds')
        cnt[0] += 3
    for h in range(3):
        e(f's_lshl_b32 s{s_t0}, s{s_L}, 6')
        e(f's_add_u32 s{s_t0}, s{s_t0}, {64*4*h}')
        e(f'v_add_u32 v{t}, s{s_t0}, v{vLane}')
        e(f'v_mul_u32_u24 v{t+1}, 5462, v{t}')
        e(f'v_lshrrev_b32 v{t+1}, 16, v{t+1}')
        e(f'v_mul_u32_u24 v{t+2}, 12, v{t+1}')
        e(f'v_sub_u32 v{t+2}, v{t}, v{t+2}')
        e(f'v_lshrrev_b32 v{t+3}, 2, v{t+1}')
        e(f'v_and_b32 v{t+3}, 2, v{t+3}')
        e(f'v_xor_b32 v{t+2}, v{t+2}, v{t+3}')
        e(f'v_lshlrev_b32 v{t+2}, 4, v{t+2}')
        e(f'v_mul_u32_u24 v{t+1}, 3072, v{t+1}')
        e(f'v_add_u32 v{VW+h}, v{t+1}, v{t+2}')
    stL.stamp(e)
    issue_x(0)
    issue_w(0); done_at[0] = cnt[0]
    def issue(j):
        if j < 10: issue_x(j)
        issue_w(j)
        done_at[j] = cnt[0]
    def lbar(k):
        n = cnt[0] - done_at[k]
        e(f's_waitcnt vmcnt({min(n, 63)})'); bar('L')
    def issue_prep():
        e(f'v_mul_u32_u24 v{vPr}, 6554, v{vLane}')
        e(f'v_lshrrev_b32 v{vPr}, 16, v{vPr}')
        e(f'v_mul_u32_u24 v{vP}, 10, v{vPr}')
        e(f'v_sub_u32 v{vP}, v{vLane}, v{vP}')
        e(f'v_lshlrev_b32 v{vP}, 4, v{vP}')
        e(f'v_mul_u32_u24 v{t}, 1280, v{vPr}')
        e(f'v_add_u32 v{vP}, v{vP}, v{t}')
        srd(e, sK, P+2, S*D*2)
        srd(e, sV, P+4, S*D*2)
        set_exec(e, 0xffffffff, 0x0fffffff)
        sa, sb, sc = 46, 78, 79
        e(f's_lshl_b32 s{s_t0}, s{s_rb}, 6')
        e(f's_mul_i32 s{s_t1}, s{s_L}, 6')
        e(f's_add_u32 s{s_t0}, s{s_t0}, s{s_t1}')
        e(f's_mul_i32 s{sa}, s{s_t0}, 1280')
        e(f's_mul_i32 s{s_t1}, s{s_cb}, 160')
        e(f's_add_u32 s{sa}, s{sa}, s{s_t1}')
        e(f's_mul_i32 s{sb}, s{s_L}, 960')
        e(f's_add_u32 s{sb}, s{sb}, {PREP}')
        e(f'v_mov_b32 v{t}, v{vP}')
        e(f's_sub_u32 s{sc}, s{sa}, {3*1280}')
        e(f's_cmp_eq_u32 s{s_t0}, 0')
        e('s_cbranch_scc0 K1_NONNEG')
        e(f'v_subrev_u32 v{t}, {3*1280}, v{vP}')
        e(f'v_cmp_gt_u32 vcc, 3, v{vPr}')
        e(f'v_mov_b32 v{t+1}, 0x80000000')
        e(f'v_cndmask_b32 v{t}, v{t}, v{t+1}, vcc')
        e(f's_mov_b32 s{sc}, s{sa}')
        e.label('K1_NONNEG')
        for n in range(3):
            e(f's_add_u32 m0, s{sb}, {n*3840}')
            e('s_nop 0')
            e(f'buffer_load_dwordx4 v{t if n == 0 else vP}, s[{sK}:{sK+3}], s{sc} offen lds')
            e(f's_add_u32 m0, s{sb}, {n*3840 + PREPV}')
            e('s_nop 0')
            e(f'buffer_load_dwordx4 v{vP}, s[{sV}:{sV+3}], s{sa} offen lds')
            e(f's_add_u32 s{sa}, s{sa}, {24*1280}')
            e(f's_sub_u32 s{sc}, s{sa}, {3*1280}')
        e(f's_mov_b64 exec, s[{s_ex}:{s_ex+1}]')
        cnt[0] += 6
    def prefetch_tail():
        e(f'v_lshlrev_b32 v{t}, 6, v{vLane}')
        e(f's_and_b32 s{s_t0}, s2, 7')
        e(f's_lshl_b32 s{s_t0}, s{s_t0}, 8')
        e(f's_lshr_b32 s{s_t1}, s2, 3')
        e(f's_lshl_b32 s{s_t1}, s{s_t1}, 3')
        e(f's_add_u32 s{s_t0}, s{s_t0}, s{s_t1}')
        e(f's_lshl_b32 s{s_t1}, s{s_L}, 1')
        e(f's_add_u32 s{s_t0}, s{s_t0}, s{s_t1}')
        e(f's_lshl_b32 s{s_t0}, s{s_t0}, 12')
        srd(e, sK, P+18, S*S*2)
        for r in range(2):
            e(f'buffer_load_dword v{t+1+r}, v{t}, s[{sK}:{sK+3}], s{s_t0} offen')
            e(f's_add_u32 s{s_t0}, s{s_t0}, 4096')
        srd(e, sV, P+20, D*S*2)
        e(f's_mul_i32 s{s_t0}, s2, 3')
        e(f's_add_u32 s{s_t0}, s{s_t0}, s{s_L}')
        e(f's_lshl_b32 s{s_t0}, s{s_t0}, 12')
        e(f's_cmp_eq_u32 s{s_L}, 3')
        e(f's_cselect_b32 s{s_t0}, 0x80000000, s{s_t0}')
        e(f'buffer_load_dword v{t+5}, v{t}, s[{sV}:{sV+3}], s{s_t0} offen')
        cnt[0] += 3
    xs = {1: [1, 2], 2: [3, 4], 3: [5, 6], 4: [7, 8], 5: [9]}
    wn = 1
    for k in range(20):
        if k >= 1:
            lim = {1: 2, 2: 4}.get(k, min(19, k + 2 if k <= 5 else k + 3))
            todo_x = list(xs.get(k, []))
            while wn <= lim or todo_x:
                if todo_x: issue_x(todo_x.pop(0))
                if wn <= lim:
                    issue_w(wn); done_at[wn] = cnt[0]; wn += 1
                    if wn == 20: issue_prep()
        lbar(k)
        if k in (0, 1): stL.stamp(e)
    assert wn == 20
    bar('L'); bar('L')
    e('s_waitcnt vmcnt(0)')
    bar('L')
    if fused:
        H.after_L(e, bar)
    if STAMPS and not fused:
        srd(e, sWS, P+14, WS_SIZE) if False else None
        e(f's_load_dwordx2 s[{P+14}:{P+15}], s[0:1], 104')
        e('s_waitcnt lgkmcnt(0)')
        srd(e, sWS, P+14, WS_SIZE)
        stL.flush(e, 3, sWS, t, s_wl)
    if not fused: e('s_endpgm')

    e.label('K1_AB')
    e(f'v_lshrrev_b32 v{vT+3}, 1, v{vL15}')
    e(f'v_xor_b32 v{vT+3}, v{vT+3}, v{vQ}')
    e(f'v_lshlrev_b32 v{vT+3}, 4, v{vT+3}')
    e(f'v_lshlrev_b32 v{vT+4}, 7, v{vL15}')
    e(f'v_add_u32 v{vT+3}, v{vT+3}, v{vT+4}')
    e(f'v_xor_b32 v{vT+4}, 64, v{vT+3}')
    e(f's_lshl_b32 s{s_t0}, s{s_wr}, 12')
    e(f's_lshl_b32 s{s_t1}, s{s_wc}, 11')
    e(f's_add_u32 s{s_t2}, s{s_t0}, s{s_t1}')
    e(f's_add_u32 s{s_t2}, s{s_t2}, {XB0}')
    e(f'v_add_u32 v{vXA}, s{s_t2}, v{vT+3}')
    e(f'v_add_u32 v{vXA+1}, s{s_t2}, v{vT+4}')
    e(f's_xor_b32 s{s_t1}, s{s_t1}, 2048')
    e(f's_add_u32 s{s_t2}, s{s_t0}, s{s_t1}')
    e(f's_add_u32 s{s_t2}, s{s_t2}, {XB0}')
    e(f'v_add_u32 v{vXB}, s{s_t2}, v{vT+3}')
    e(f'v_add_u32 v{vXB+1}, s{s_t2}, v{vT+4}')
    e(f'v_lshrrev_b32 v{vT+3}, 2, v{vLane}')
    e(f'v_and_b32 v{vT+3}, 3, v{vT+3}')
    e(f'v_lshlrev_b32 v{vT+4}, 3, v{vQ}')
    e(f'v_add_u32 v{vT+3}, v{vT+3}, v{vT+4}')
    e(f'v_mul_u32_u24 v{vT+3}, 192, v{vT+3}')
    e(f'v_and_b32 v{vT+4}, 3, v{vLane}')
    e(f'v_lshlrev_b32 v{vT+4}, 3, v{vT+4}')
    e(f'v_add_u32 v{vT+3}, v{vT+3}, v{vT+4}')
    e(f'v_and_b32 v{vT+5}, 1, v{vQ}')
    e(f's_mul_i32 s{s_t0}, s{s_wc}, 3')
    for ft in range(3):
        e(f's_add_u32 s{s_t1}, s{s_t0}, {ft}')
        e(f'v_xor_b32 v{vT+4}, s{s_t1}, v{vT+5}')
        e(f'v_lshlrev_b32 v{vT+4}, 5, v{vT+4}')
        e(f'v_add_u32 v{vW+ft}, v{vT+3}, v{vT+4}')
    e(f's_mov_b32 s{s_k2}, {hexf(K2c)}'); e(f's_mov_b32 s{s_k2+1}, {hexf(K2c)}')
    e(f's_mov_b32 s{s_one}, 1.0'); e(f's_mov_b32 s{s_one+1}, 1.0')
    e('s_waitcnt lgkmcnt(0)')
    srd(e, sWS, P+14, WS_SIZE)
    srd(e, sD, P+12, 256)
    e(f's_cmp_ge_u32 s{s_w}, 4')
    e('s_cbranch_scc1 K1_B')

    def rd_list(buf, ksl, xoff, woff):
        L = []
        L.append(f'ds_read_b128 v[{XF+buf*8}:{XF+buf*8+3}], v{vXA+ksl} offset:{xoff}')
        for ft in range(3):
            b = WF + buf*12 + ft*4
            L.append(f'ds_read_b64_tr_b16 v[{b}:{b+1}], v{vW+ft} offset:{woff+ksl*6144}')
            L.append(f'ds_read_b64_tr_b16 v[{b+2}:{b+3}], v{vW+ft} offset:{woff+ksl*6144+768}')
            if ft == 0:
                L.append(f'ds_read_b128 v[{XF+buf*8+4}:{XF+buf*8+7}], v{vXB+ksl} offset:{xoff}')
        return L
    def phase(buf, ksl, p, tag, nxt_reads):
        mf = []
        for ft in range(3):
            for T in range(2):
                a = ACC + (T*3+ft)*4
                x = f'v[{XF+buf*8+T*4}:{XF+buf*8+T*4+3}]'
                w = f'v[{WF+buf*12+ft*4}:{WF+buf*12+ft*4+3}]'
                if p == 1: mf.append(f'v_mfma_f32_16x16x32_bf16 v[{a}:{a+3}], {x}, {w}, v[{a}:{a+3}]')
                else:      mf.append(f'v_mfma_f32_16x16x32_bf16 v[{a}:{a+3}], {w}, {x}, v[{a}:{a+3}]')
        fills = [nxt_reads[0:2], nxt_reads[2:4], nxt_reads[4:6], nxt_reads[6:8], [], []]
        if p == 1 and not XP_NODOT:
            x = f'v[{XF+buf*8}:{XF+buf*8+3}]'
            mf.append(f'v_mfma_f32_16x16x32_bf16 v[{SUM}:{SUM+3}], v[{ONE}:{ONE+3}], {x}, v[{SUM}:{SUM+3}]')
            mf.append(f'v_mfma_f32_16x16x32_bf16 v[{GR}:{GR+3}], {x}, {x}, v[{GR}:{GR+3}]')
        if XP_NOCOMP == '2': fills = [[] for _ in fills]
        if XP_NOCOMP == '3': mf = ['s_nop 0'] * len(mf)
        weave(e, mf, fills)
        e(f's_cmp_eq_u32 s{s_wr}, {ksl}')
        e(f's_cbranch_scc0 K1_SK_{tag}')
        for ft in range(3):
            a = CS + ft*4
            w = f'v[{WF+buf*12+ft*4}:{WF+buf*12+ft*4+3}]'
            o = f'v[{ONE}:{ONE+3}]'
            if p == 1: e(f'v_mfma_f32_16x16x32_bf16 v[{a}:{a+3}], {o}, {w}, v[{a}:{a+3}]')
            else:      e(f'v_mfma_f32_16x16x32_bf16 v[{a}:{a+3}], {w}, {o}, v[{a}:{a+3}]')
        e.label(f'K1_SK_{tag}')
    def init_acc():
        for i in range(4): e(f'v_mov_b32 v{ONE+i}, 0x3f803f80')
        for i in range(24): e(f'v_mov_b32 v{ACC+i}, 0')
        for i in range(12): e(f'v_mov_b32 v{CS+i}, 0')
        for i in range(8): e(f'v_mov_b32 v{SUM+i}, 0')
    def loop(p, role):
        L = f'K1_LOOP{p}'
        if XP_NOCOMP == '1':
            for _ in range(10): bar(role)
            return
        e(f's_mov_b32 s{s_i}, 0')
        for x in rd_list(0, 0, 0, 0): e(x)
        e.label(L)
        for u in range(5):
            e('s_waitcnt lgkmcnt(0)')
            phase(0, 0, p, f'{p}a{u}', rd_list(1, 1, u*XST, u*WSLOT))
            e('s_waitcnt lgkmcnt(0)')
            e('s_barrier')
            if u == 4:
                for r in (vXA, vXA+1, vXB, vXB+1):
                    e(f'v_add_u32 v{r}, {5*XST}, v{r}')
                nx = rd_list(0, 0, 0, 0)
            else:
                nx = rd_list(0, 0, (u+1)*XST, (u+1)*WSLOT)
            phase(1, 1, p, f'{p}b{u}', nx)
            if p == 2 and PREFETCH and (not fused or os.environ.get('TOUCH') == 'p2'):
                e(f's_and_b32 s{s_t0}, s46, 3')
                e(f's_cmp_eq_u32 s{s_t0}, s{s_wl}')
                e(f's_cbranch_scc0 K1_NT{u}')
                e('s_cmp_lt_u32 s46, 8')
                e(f's_cbranch_scc0 K1_NT{u}')
                e(f'buffer_load_dword v148, v144, s[{sK}:{sK+3}], s54 offen')
                e.label(f'K1_NT{u}')
                e('s_add_u32 s46, s46, 1')
                e('s_add_u32 s54, s54, 4096')
        e(f's_add_u32 s{s_i}, s{s_i}, 1')
        e(f's_cmp_lt_u32 s{s_i}, 2')
        e(f's_cbranch_scc1 {L}')
        nbar[role] += 10
    K1V = E + 0
    G = E + 2
    def gelu_pair_sc(t, u):
        for h in range(2):
            e(f'v_mul_f32 v{u+h}, v{t+h}, v{t+h}')
        for h in range(2):
            e(f'v_fma_f32 v{u+h}, v{u+h}, s{s_k2}, v{K1V}')
        for h in range(2):
            e(f'v_mul_f32 v{u+h}, v{u+h}, v{t+h}')
        for h in range(2):
            e(f'v_exp_f32 v{u+h}, v{u+h}')
        for h in range(2):
            e(f'v_add_f32 v{u+h}, 1.0, v{u+h}')
        for h in range(2):
            e(f'v_rcp_f32 v{u+h}, v{u+h}')
        for h in range(2):
            e(f'v_mul_f32 v{u+h}, v{u+h}, v{t+h}')
    def gelu_pair(t, u):
        e(f'v_pk_mul_f32 v[{u}:{u+1}], v[{t}:{t+1}], v[{t}:{t+1}]')
        e(f'v_pk_fma_f32 v[{u}:{u+1}], v[{u}:{u+1}], s[{s_k2}:{s_k2+1}], v[{K1V}:{K1V+1}]')
        e(f'v_pk_mul_f32 v[{u}:{u+1}], v[{u}:{u+1}], v[{t}:{t+1}]')
        e(f'v_exp_f32 v{u}, v{u}')
        e(f'v_exp_f32 v{u+1}, v{u+1}')
        e(f'v_pk_add_f32 v[{u}:{u+1}], v[{u}:{u+1}], s[{s_one}:{s_one+1}]')
        e(f'v_rcp_f32 v{u}, v{u}')
        e(f'v_rcp_f32 v{u+1}, v{u+1}')
        e(f'v_pk_mul_f32 v[{u}:{u+1}], v[{u}:{u+1}], v[{t}:{t+1}]')

    e.c('role A')
    init_acc()
    bar('A')
    stp.stamp(e)
    loop(1, 'A')
    stp.stamp(e)
    e.c('A epilogue')
    e('s_setprio 2')
    e(f's_lshl_b32 s{s_t0}, s{s_rb}, 2')
    e(f'v_mov_b32 v{vT+8}, s{s_t0}')
    PC = vT + 9
    SK = 160
    srd(e, sT, P+6, D*4*2)
    e(f'v_lshlrev_b32 v{vT+3}, 4, v{vLane}')
    e(f's_mul_i32 s{s_t1}, s{s_cb}, 640')
    e(f'buffer_load_dwordx4 v[{SK}:{SK+3}], v{vT+3}, s[{sT}:{sT+3}], s{s_t1} offen')
    e(f'v_and_b32 v{vT}, 3, v{vL15}')
    e(f'v_cmp_eq_u32 vcc, 1, v{vT}')
    e(f'v_cndmask_b32 v{GR}, v{GR}, v{GR+1}, vcc')
    e(f'v_cmp_eq_u32 vcc, 2, v{vT}')
    e(f'v_cndmask_b32 v{GR}, v{GR}, v{GR+2}, vcc')
    e(f'v_cmp_eq_u32 vcc, 3, v{vT}')
    e(f'v_cndmask_b32 v{GR}, v{GR}, v{GR+3}, vcc')
    ln_finalize(e, SUM, GR, D, vT+2, vT+3, vT+4, vT+5)
    e(f's_lshl_b32 s{s_t0}, s{s_wr}, 5')
    e(f's_lshl_b32 s{s_t1}, s{s_wc}, 4')
    e(f's_add_u32 s{s_t0}, s{s_t0}, s{s_t1}')
    e(f'v_add_u32 v{vT+4}, s{s_t0}, v{vL15}')
    e(f'v_lshlrev_b32 v{vT+5}, 2, v{vT+4}')
    e(f'v_add_u32 v{vT+5}, {L_M1}, v{vT+5}')
    set_exec(e, 0x00f0000f, 0xf0000f00)
    e(f'ds_write_b32 v{vT+5}, v{vT+2}')
    e(f'ds_write_b32 v{vT+5}, v{vT+3} offset:256')
    if fused: e('s_branch K1_NOST1X')
    e(f's_cmp_eq_u32 s{s_cb}, 0')
    e('s_cbranch_scc0 K1_NOST1X')
    e(f's_lshl_b32 s{s_t1}, s{s_rb}, 9')
    e(f's_add_u32 s{s_t1}, s{s_t1}, {ST1}')
    e(f'v_lshlrev_b32 v{vT+4}, 3, v{vT+4}')
    e(f'buffer_store_dwordx2 v[{vT+2}:{vT+3}], v{vT+4}, s[{sWS}:{sWS+3}], s{s_t1} offen {SC}')
    e.label('K1_NOST1X')
    e(f's_mov_b64 exec, s[{s_ex}:{s_ex+1}]')
    e(f's_mul_i32 s{s_t0}, s{s_wl}, 192')
    e(f's_add_u32 s{s_t0}, s{s_t0}, {L_CSA}')
    e(f'v_lshlrev_b32 v{vT+6}, 2, v{vL15}')
    e(f'v_add_u32 v{vT+6}, s{s_t0}, v{vT+6}')
    for ft in range(3):
        e(f'ds_write_b32 v{vT+6}, v{CS+ft*4} offset:{ft*64}')
    e('s_waitcnt lgkmcnt(0)')
    bar('A')
    e(f's_xor_b32 s{s_t1}, s{s_wl}, 2')
    e(f's_mul_i32 s{s_t1}, s{s_t1}, 192')
    e(f's_add_u32 s{s_t1}, s{s_t1}, {L_CSA}')
    e(f'v_lshlrev_b32 v{vT+4}, 2, v{vL15}')
    e(f'v_add_u32 v{vT+4}, s{s_t1}, v{vT+4}')
    NCS = E + 10
    for ft in range(3):
        e(f'ds_read_b32 v{NCS+2*ft}, v{vT+4} offset:{ft*64}')
    M1 = XF
    R1 = XF + 8
    e(f's_lshl_b32 s{s_t0}, s{s_wr}, 7')
    e(f's_lshl_b32 s{s_t1}, s{s_wc}, 6')
    e(f's_add_u32 s{s_t0}, s{s_t0}, s{s_t1}')
    e(f's_add_u32 s{s_t0}, s{s_t0}, {L_M1}')
    e(f'v_lshlrev_b32 v{vT+5}, 4, v{vQ}')
    e(f'v_add_u32 v{vT+5}, s{s_t0}, v{vT+5}')
    e(f'v_xor_b32 v{vT+6}, 64, v{vT+5}')
    e(f'ds_read_b128 v[{M1}:{M1+3}], v{vT+5}')
    e(f'ds_read_b128 v[{M1+4}:{M1+7}], v{vT+6}')
    e(f'ds_read_b128 v[{R1}:{R1+3}], v{vT+5} offset:256')
    e(f'ds_read_b128 v[{R1+4}:{R1+7}], v{vT+6} offset:256')
    e(f'v_mov_b32 v{K1V}, {hexf(K1c)}'); e(f'v_mov_b32 v{K1V+1}, {hexf(K1c)}')
    SA = WF
    for i in range(16): e(f'v_mov_b32 v{SA+i}, 0')
    e('s_waitcnt lgkmcnt(0)')
    for ft in range(3):
        e(f'v_add_f32 v{NCS+2*ft}, v{NCS+2*ft}, v{CS+ft*4}')
        e(f'v_sub_f32 v{NCS+2*ft}, 0, v{NCS+2*ft}')
    npair = 0
    for ft in range(3):
        for T in range(2):
            for p in range(2):
                a = ACC + (T*3+ft)*4 + 2*p
                n = NCS + 2*ft
                g = G + 4*p
                for h in range(2):
                    e(f'v_fma_f32 v{a+h}, v{M1+T*4+2*p+h}, v{n}, v{a+h}')
                for h in range(2):
                    e(f'v_mul_f32 v{a+h}, v{a+h}, v{R1+T*4+2*p+h}')
                gelu_pair_sc(a, g)
                e(f'v_cvt_pk_bf16_f32 v{AP+ft*4+T*2+p}, v{g}, v{g+1}')
                s_ = SA + T*4 + 2*p
                for h in range(2):
                    e(f'v_add_f32 v{s_+h}, v{s_+h}, v{g+h}')
                for h in range(2):
                    e(f'v_fma_f32 v{s_+8+h}, v{g+h}, v{g+h}, v{s_+8+h}')
                npair += 1
                if npair in (4, 9): bar('A')
    for k, sh in enumerate((8, 4, 2, 1)):
        for i in range(16):
            e(f'v_add_f32_dpp v{SA+i}, v{SA+i}, v{SA+i} row_ror:{sh} row_mask:0xf bank_mask:0xf')
    e(f's_lshl_b32 s{s_t0}, s{s_wc}, 8')
    e(f's_add_u32 s{s_t0}, s{s_t0}, {L_PS - L_M1}')
    e(f'v_add_u32 v{vT+5}, s{s_t0}, v{vT+5}')
    e(f'v_add_u32 v{vT+6}, s{s_t0}, v{vT+6}')
    set_exec(e, 0x00010001, 0x00010001)
    e(f'ds_write_b128 v{vT+5}, v[{SA}:{SA+3}]')
    e(f'ds_write_b128 v{vT+6}, v[{SA+4}:{SA+7}]')
    e(f'ds_write_b128 v{vT+5}, v[{SA+8}:{SA+11}] offset:{L_PQ-L_PS}')
    e(f'ds_write_b128 v{vT+6}, v[{SA+12}:{SA+15}] offset:{L_PQ-L_PS}')
    e(f's_mov_b64 exec, s[{s_ex}:{s_ex+1}]')
    e('s_waitcnt lgkmcnt(0)')
    bar('A')
    e(f's_cmp_eq_u32 s{s_w}, 0')
    e('s_cbranch_scc0 K1_NOPUB')
    e(f'v_lshlrev_b32 v{vT}, 2, v{vLane}')
    e(f'v_add_u32 v{vT}, {L_PS}, v{vT}')
    e(f'ds_read_b32 v{vT+2}, v{vT}')
    e(f'ds_read_b32 v{vT+4}, v{vT} offset:256')
    e(f'ds_read_b32 v{vT+3}, v{vT} offset:{L_PQ-L_PS}')
    e(f'ds_read_b32 v{vT+5}, v{vT} offset:{L_PQ-L_PS+256}')
    e(f's_lshl_b32 s{s_t0}, s{s_rb}, 3')
    e(f's_add_u32 s{s_t0}, s{s_t0}, s{s_cb}')
    e(f's_lshl_b32 s{s_t0}, s{s_t0}, 9')
    e(f's_add_u32 s{s_t0}, s{s_t0}, {XCH}')
    e(f'v_lshlrev_b32 v{vT+1}, 3, v{vLane}')
    e('s_waitcnt lgkmcnt(0)')
    e(f'v_add_f32 v{vT+2}, v{vT+2}, v{vT+4}')
    e(f'v_add_f32 v{vT+3}, v{vT+3}, v{vT+5}')
    e(f'v_max_f32 v{vT+3}, 0, v{vT+3}')
    e(f'buffer_store_dwordx2 v[{vT+2}:{vT+3}], v{vT+1}, s[{sWS}:{sWS+3}], s{s_t0} offen sc1')
    e.label('K1_NOPUB')
    stp.stamp(e)
    e(f's_mul_i32 s{s_t0}, s{s_cb}, 6')
    e(f's_mul_i32 s{s_t1}, s{s_wc}, 3')
    e(f's_add_u32 s{s_t0}, s{s_t0}, s{s_t1}')
    e(f's_lshl_b32 s{s_t0}, s{s_t0}, 6')
    e(f's_lshl_b32 s{s_t1}, s{s_rb}, 1')
    e(f's_add_u32 s{s_t0}, s{s_t0}, s{s_t1}')
    e(f's_add_u32 s{s_t0}, s{s_t0}, s{s_wr}')
    e(f's_lshl_b32 s{s_t0}, s{s_t0}, 10')
    e(f's_add_u32 s{s_off}, s{s_t0}, {Z2F}')
    e(f'v_and_b32 v{vT+7}, 1, v{vQ}')
    e(f'v_lshlrev_b32 v{vT+7}, 1, v{vT+7}')
    e(f'v_lshrrev_b32 v{vT+10}, 1, v{vQ}')
    e(f'v_or_b32 v{vT+7}, v{vT+7}, v{vT+10}')
    e(f's_lshl_b32 s{s_t1}, s{s_wc}, 1')
    e(f'v_xor_b32 v{vT+7}, s{s_t1}, v{vT+7}')
    e(f'v_lshlrev_b32 v{vT+7}, 4, v{vT+7}')
    e(f'v_add_u32 v{vT+7}, v{vT+7}, v{vL15}')
    e(f'v_lshlrev_b32 v{vT+7}, 4, v{vT+7}')
    e(f'v_and_b32 v{vT+10}, 31, v{vLane}')
    e(f's_lshl_b32 s{s_j}, s{s_wr}, 5')
    e(f'v_add_u32 v{vT+10}, s{s_j}, v{vT+10}')
    e(f'v_lshlrev_b32 v{vT+10}, 3, v{vT+10}')
    e(f's_lshl_b32 s{s_j}, s{s_rb}, 12')
    e(f's_add_u32 s{s_j}, s{s_j}, {XCH}')
    bar('A')
    bar('A')
    for _ in range(3): bar('A')
    e(f'buffer_load_dword v{PC}, v{vT+8}, s[{sD}:{sD+3}], 0 offen sc1')
    bar('A'); bar('A')
    e('s_setprio 0')
    bar('A')
    KR = 26; VRr = 45; KP = 62; CP = 100; KVP = 126
    e(f's_mul_i32 s{s_t0}, s{s_wl}, {16*160}')
    e(f's_add_u32 s{s_t0}, s{s_t0}, {PREP}')
    e(f'v_lshlrev_b32 v{vT+3}, 2, v{vLane}')
    e(f'v_min_u32 v{vT+3}, 156, v{vT+3}')
    e(f'v_add_u32 v{vT+3}, s{s_t0}, v{vT+3}')
    for r in range(19):
        e(f'ds_read_b32 v{KR+r}, v{vT+3} offset:{r*160}')
        if r == 13: e('s_waitcnt lgkmcnt(6)')
    for r in range(16):
        if r in (2, 10): e('s_waitcnt lgkmcnt(6)')
        e(f'ds_read_b32 v{VRr+r}, v{vT+3} offset:{PREPV + r*160}')
    e('s_waitcnt vmcnt(0)')
    e(f'v_lshlrev_b32 v{CP+0}, 16, v{SK+0}'); e(f'v_lshlrev_b32 v{CP+1}, 16, v{SK+2}')
    e(f'v_and_b32 v{CP+2}, s{s_mask}, v{SK+0}'); e(f'v_and_b32 v{CP+3}, s{s_mask}, v{SK+2}')
    e(f'v_lshlrev_b32 v{CP+4}, 16, v{SK+1}'); e(f'v_lshlrev_b32 v{CP+5}, 16, v{SK+3}')
    e(f'v_and_b32 v{CP+6}, s{s_mask}, v{SK+1}'); e(f'v_and_b32 v{CP+7}, s{s_mask}, v{SK+3}')
    e('s_waitcnt lgkmcnt(12)')
    for r in range(19):
        if r == 12: e('s_waitcnt lgkmcnt(0)')
        e(f'v_lshlrev_b32 v{KP+2*r}, 16, v{KR+r}')
        e(f'v_and_b32 v{KP+2*r+1}, s{s_mask}, v{KR+r}')
    for i in range(16):
        t_ = KVP + 2*i
        e(f'v_pk_mul_f32 v[{t_}:{t_+1}], v[{CP+6}:{CP+7}], v[{KP+2*i}:{KP+2*i+1}]')
        e(f'v_lshlrev_b32 v{vT+4}, 16, v{VRr+i}')
        e(f'v_pk_fma_f32 v[{t_}:{t_+1}], v[{CP+4}:{CP+5}], v[{KP+2*i+2}:{KP+2*i+3}], v[{t_}:{t_+1}]')
        e(f'v_and_b32 v{vT+5}, s{s_mask}, v{VRr+i}')
        e(f'v_pk_fma_f32 v[{t_}:{t_+1}], v[{CP+2}:{CP+3}], v[{KP+2*i+4}:{KP+2*i+5}], v[{t_}:{t_+1}]')
        e(f'v_pk_fma_f32 v[{t_}:{t_+1}], v[{CP+0}:{CP+1}], v[{KP+2*i+6}:{KP+2*i+7}], v[{t_}:{t_+1}]')
        e(f'v_pk_mul_f32 v[{t_}:{t_+1}], v[{t_}:{t_+1}], v[{vT+4}:{vT+5}]')
    OUT = 26
    for dd in range(2):
        for g in range(2):
            for n in range(4):
                lo = KVP + 2*(8*g + 7 - 2*n) + dd
                hi = KVP + 2*(8*g + 6 - 2*n) + dd
                e(f'v_cvt_pk_bf16_f32 v{OUT + dd*8 + g*4 + n}, v{lo}, v{hi}')
    XP = WF + 2
    if fused:
        e(f'v_mul_u32_u24 v{vT+3}, {2*KVP_}, v{vLane}')
        e(f's_lshl_b32 s{s_t0}, s{s_wl}, 5')
        e(f's_add_u32 s{s_t0}, s{s_t0}, {KVS}')
        e(f'v_add_u32 v{vT+3}, s{s_t0}, v{vT+3}')
        set_exec(e, 0xffffffff, 0xff)
        for dd in range(2):
            for g in range(2):
                o = OUT + dd*8 + g*4
                e(f'ds_write_b128 v{vT+3}, v[{o}:{o+3}] offset:{dd*KVP_ + g*16}')
        e(f's_mov_b64 exec, s[{s_ex}:{s_ex+1}]')
        e('s_waitcnt lgkmcnt(0)')
        bar('A')
        for c in range(8):
            e(f'buffer_load_dwordx2 v[{XP+2*c}:{XP+2*c+1}], v{vT+10}, s[{sWS}:{sWS+3}], s{s_j} offen offset:{c*512} sc1')
        NKV = 0
    else:
        for c in range(8):
            e(f'buffer_load_dwordx2 v[{XP+2*c}:{XP+2*c+1}], v{vT+10}, s[{sWS}:{sWS+3}], s{s_j} offen offset:{c*512} sc1')
        e(f'v_lshlrev_b32 v{vT+3}, 13, v{vLane}')
        e(f's_mul_i32 s{s_t0}, s{s_cb}, {80*4096}')
        e(f's_lshl_b32 s{s_t1}, s{s_rb}, 7')
        e(f's_add_u32 s{s_t0}, s{s_t0}, s{s_t1}')
        e(f's_lshl_b32 s{s_t1}, s{s_wl}, 5')
        e(f's_add_u32 s{s_t0}, s{s_t0}, s{s_t1}')
        e(f's_add_u32 s{s_t0}, s{s_t0}, {KVT}')
        e(f's_add_u32 s{s_t1}, s{s_t0}, 4096')
        set_exec(e, 0xffffffff, 0xff)
        e(f'buffer_store_dwordx4 v[{OUT}:{OUT+3}], v{vT+3}, s[{sWS}:{sWS+3}], s{s_t0} offen {STF_EARLY}')
        e(f'buffer_store_dwordx4 v[{OUT+4}:{OUT+7}], v{vT+3}, s[{sWS}:{sWS+3}], s{s_t0} offen offset:16 {STF_EARLY}')
        e(f'buffer_store_dwordx4 v[{OUT+8}:{OUT+11}], v{vT+3}, s[{sWS}:{sWS+3}], s{s_t1} offen {STF_EARLY}')
        e(f'buffer_store_dwordx4 v[{OUT+12}:{OUT+15}], v{vT+3}, s[{sWS}:{sWS+3}], s{s_t1} offen offset:16 {STF_EARLY}')
        e(f's_mov_b64 exec, s[{s_ex}:{s_ex+1}]')
        NKV = 4
    stp.stamp(e)
    e(f'v_readfirstlane_b32 s{s_t0}, v{PC}')
    e(f's_cmp_ge_u32 s{s_t0}, 8')
    e('s_cbranch_scc1 K1_CPOLLED')
    e('s_mov_b32 s54, 0')
    e.label('K1_CPOLL')
    e('s_add_u32 s54, s54, 1')
    e('s_cmp_lt_u32 s54, 0x200000')
    e('s_cbranch_scc0 K1_POLLED')
    e('s_sleep 4')
    e(f'buffer_load_dword v{PC}, v{vT+8}, s[{sD}:{sD+3}], 0 offen sc1')
    e('s_waitcnt vmcnt(0)')
    e(f'v_readfirstlane_b32 s{s_t0}, v{PC}')
    e(f's_cmp_ge_u32 s{s_t0}, 8')
    e('s_cbranch_scc0 K1_CPOLL')
    e('s_branch K1_POLL')
    e.label('K1_CPOLLED')
    e('s_mov_b32 s54, 0')
    e(f's_waitcnt vmcnt({NKV})')
    e('s_branch K1_CHECK')
    e.label('K1_POLL')
    for c in range(8):
        e(f'buffer_load_dwordx2 v[{XP+2*c}:{XP+2*c+1}], v{vT+10}, s[{sWS}:{sWS+3}], s{s_j} offen offset:{c*512} sc1')
    e('s_waitcnt vmcnt(0)')
    e.label('K1_CHECK')
    e(f's_mov_b32 s{s_t0}, {hex(SENT)}')
    e(f'v_cmp_eq_u32 vcc, s{s_t0}, v{XP+1}')
    for c in range(1, 8):
        e(f'v_cmp_eq_u32 s[{P}:{P+1}], s{s_t0}, v{XP+2*c+1}')
        e(f's_or_b64 vcc, vcc, s[{P}:{P+1}]')
    e('s_cmp_eq_u64 vcc, 0')
    e('s_cbranch_scc1 K1_POLLED')
    e('s_add_u32 s54, s54, 1')
    e('s_cmp_lt_u32 s54, 0x200000')
    e('s_cbranch_scc0 K1_POLLED')
    e('s_sleep 2')
    e('s_branch K1_POLL')
    e.label('K1_POLLED')
    for c in range(1, 8):
        e(f'v_pk_add_f32 v[{XP}:{XP+1}], v[{XP}:{XP+1}], v[{XP+2*c}:{XP+2*c+1}]')
    ln_finalize(e, XP, XP+1, FH, vT+2, vT+3, vT+4, vT+5)
    e(f'v_mul_f32 v{vT+2}, v{vT+2}, v{vT+3}')
    e(f'v_sub_f32 v{vT+2}, 0, v{vT+2}')
    e(f's_lshl_b32 s{s_t0}, s{s_wl}, 8')
    e(f's_add_u32 s{s_t0}, s{s_t0}, {L_W2}')
    e(f'v_and_b32 v{vT+4}, 31, v{vLane}')
    e(f'v_lshlrev_b32 v{vT+4}, 2, v{vT+4}')
    e(f'v_add_u32 v{vT+4}, s{s_t0}, v{vT+4}')
    e(f'ds_write_b32 v{vT+4}, v{vT+2}')
    e(f'ds_write_b32 v{vT+4}, v{vT+3} offset:128')
    e(f's_lshl_b32 s{s_t1}, s{s_wc}, 6')
    e(f's_add_u32 s{s_t0}, s{s_t0}, s{s_t1}')
    e(f'v_lshlrev_b32 v{vT+5}, 4, v{vQ}')
    e(f'v_add_u32 v{vT+5}, s{s_t0}, v{vT+5}')
    e(f'v_xor_b32 v{vT+6}, 64, v{vT+5}')
    e('s_waitcnt lgkmcnt(0)')
    e(f'ds_read_b128 v[{M1}:{M1+3}], v{vT+5}')
    e(f'ds_read_b128 v[{M1+4}:{M1+7}], v{vT+6}')
    e(f'ds_read_b128 v[{R1}:{R1+3}], v{vT+5} offset:128')
    e(f'ds_read_b128 v[{R1+4}:{R1+7}], v{vT+6} offset:128')
    e('s_waitcnt lgkmcnt(0)')
    for ft in range(3):
        for T in range(2):
            for p in range(2):
                a = AP + ft*4 + T*2 + p
                g = G + 4*p
                e(f'v_lshlrev_b32 v{g}, 16, v{a}')
                e(f'v_and_b32 v{g+1}, s{s_mask}, v{a}')
                e(f'v_pk_fma_f32 v[{g}:{g+1}], v[{g}:{g+1}], v[{R1+T*4+2*p}:{R1+T*4+2*p+1}], v[{M1+T*4+2*p}:{M1+T*4+2*p+1}]')
                e(f'v_cvt_pk_bf16_f32 v{a}, v{g}, v{g+1}')
        b = AP + ft*4
        e(f'v_permlane16_swap_b32 v{b}, v{b+2}')
        e(f'v_permlane16_swap_b32 v{b+1}, v{b+3}')
        e(f's_add_u32 s{s_t1}, s{s_off}, {ft*65536}')
        e(f'buffer_store_dwordx4 v[{b}:{b+3}], v{vT+7}, s[{sWS}:{sWS+3}], s{s_t1} offen {SC if fused else STF}')
    if fused:
        H.after_A(e, stp, bar)
    else:
        stp.flush(e, 0, sWS, vT, s_w)
        e('s_endpgm')

    e.label('K1_B')
    e.c('role B')
    stB = Stamper(); stB.n = 1; stB.mute = fused
    SK = 160; WR = 152; WO = 164
    e(f's_cmp_eq_u32 s{s_w}, 4')
    e('s_cbranch_scc0 K1_NORST')
    e(f's_lshl_b32 s{s_t0}, s{s_rb}, 3')
    e(f's_add_u32 s{s_t0}, s{s_t0}, s{s_cb}')
    e(f's_lshl_b32 s{s_t0}, s{s_t0}, 9')
    e(f's_add_u32 s{s_t0}, s{s_t0}, {XCH}')
    e(f'v_lshlrev_b32 v{vT+1}, 3, v{vLane}')
    e(f'v_mov_b32 v{vT+6}, 0')
    e(f'v_mov_b32 v{vT+7}, {hex(SENT)}')
    e(f'buffer_store_dwordx2 v[{vT+6}:{vT+7}], v{vT+1}, s[{sWS}:{sWS+3}], s{s_t0} offen sc1')
    if fused:
        H.flag_addr(e, vT+1, vT+2)
        set_exec(e, 15, 0)
        e(f'buffer_store_dword v{vT+6}, v{vT+1}, s[{sWS}:{sWS+3}], 0 offen sc1')
        e(f's_mov_b64 exec, s[{s_ex}:{s_ex+1}]')
    e.label('K1_NORST')
    DUM = 140
    vTP = 144; vKV = 145; s_tpw = 54; s_tps = 46; s_kv = 78
    e(f's_lshl_b32 s{s_t0}, s2, 2')
    e(f's_add_u32 s{s_t0}, s{s_t0}, s{s_wl}')
    e(f's_mul_i32 s{s_t1}, s{s_t0}, 2731')
    e(f's_lshr_b32 s{s_t1}, s{s_t1}, 16')
    e(f's_mul_i32 s{s_t2}, s{s_t1}, 24')
    e(f's_sub_u32 s{s_t2}, s{s_t0}, s{s_t2}')
    e(f's_mov_b32 s{P+16}, s{s_t0}')
    e(f'v_mul_u32_u24 v{vT+3}, {4*1280}, v{vQ}')
    e(f'v_lshlrev_b32 v{vT+4}, 1, v{vL15}')
    e(f'v_add_u32 v{vT+3}, v{vT+3}, v{vT+4}')
    e(f's_lshl_b32 s{s_t1}, s{s_t1}, 5')
    e(f's_mul_i32 s{s_t2}, s{s_t2}, {32*1280}')
    e(f's_add_u32 s{s_t1}, s{s_t1}, s{s_t2}')
    e(f's_add_u32 s{s_t2}, s{s_t1}, {16*1280}')
    bar('B')
    stB.stamp(e)
    srd(e, sT, P+10, FH*D*2)
    for j in range(8):
        so = s_t1 if j < 4 else s_t2
        e(f'buffer_load_ushort v{WR + j}, v{vT+3}, s[{sT}:{sT+3}], s{so} offen offset:{(j%4)*1280}')
    for k in range(1, 10):
        if PREFETCH and k == 9:
            e(f'v_lshlrev_b32 v{vTP}, 6, v{vLane}')
            e(f's_and_b32 s{s_tpw}, s2, 7')
            e(f's_lshl_b32 s{s_tpw}, s{s_tpw}, 8')
            e(f's_lshr_b32 s{s_off}, s2, 3')
            e(f's_lshl_b32 s{s_off}, s{s_off}, 3')
            e(f's_add_u32 s{s_tpw}, s{s_tpw}, s{s_off}')
            e(f's_lshl_b32 s{s_tpw}, s{s_tpw}, 12')
            srd(e, sK, P+18, S*S*2)
            e('s_mov_b32 s46, 0')
        if k == 4:
            e(f's_cmp_eq_u32 s{s_w}, 4')
            e('s_cbranch_scc0 K1_NOCNT')
            e('s_waitcnt vmcnt(0)')
            e(f's_lshl_b32 s{s_off}, s{s_rb}, 2')
            e(f'v_mov_b32 v{vT+6}, s{s_off}')
            e(f'v_mov_b32 v{vT+7}, 1')
            set_exec(e, 1, 0)
            e(f'buffer_atomic_add v{vT+7}, v{vT+6}, s[{sD}:{sD+3}], 0 offen sc1')
            e(f's_mov_b64 exec, s[{s_ex}:{s_ex+1}]')
            e.label('K1_NOCNT')
        if k == 5:
            e(f's_cmp_ge_u32 s{P+16}, 960')
            e('s_cbranch_scc1 K1_NOWOF')
            e('s_waitcnt vmcnt(0)')
            for j in range(4):
                e(f'v_lshl_or_b32 v{WO+j}, v{WR+2*j+1}, 16, v{WR+2*j}')
            e(f'v_lshlrev_b32 v{vT+3}, 4, v{vLane}')
            e(f's_lshl_b32 s{s_t0}, s{P+16}, 10')
            e(f's_add_u32 s{s_t0}, s{s_t0}, {WOF}')
            e(f'buffer_store_dwordx4 v[{WO}:{WO+3}], v{vT+3}, s[{sWS}:{sWS+3}], s{s_t0} offen {SC if fused else STF_EARLY}')
            e.label('K1_NOWOF')
        bar('B')
    init_acc()
    bar('B')
    stB.stamp(e)
    loop(2, 'B')
    stB.stamp(e)
    e.c('B epilogue')
    e(f's_mul_i32 s{s_t0}, s{s_wl}, 192')
    e(f's_add_u32 s{s_t0}, s{s_t0}, {L_CSB}')
    e(f'v_lshlrev_b32 v{vT+4}, 4, v{vQ}')
    e(f'v_add_u32 v{vT+5}, s{s_t0}, v{vT+4}')
    set_exec(e, 0x00010001, 0x00010001)
    for ft in range(3):
        e(f'ds_write_b128 v{vT+5}, v[{CS+ft*4}:{CS+ft*4+3}] offset:{ft*64}')
    e(f's_mov_b64 exec, s[{s_ex}:{s_ex+1}]')
    e(f'v_mov_b32 v{K1V}, {hexf(K1c)}'); e(f'v_mov_b32 v{K1V+1}, {hexf(K1c)}')
    e('s_waitcnt lgkmcnt(0)')
    bar('B')
    if fused: H.conv_early(e)
    e(f's_xor_b32 s{s_t1}, s{s_wl}, 2')
    e(f's_mul_i32 s{s_t1}, s{s_t1}, 192')
    e(f's_add_u32 s{s_t1}, s{s_t1}, {L_CSB}')
    e(f'v_add_u32 v{vT+5}, s{s_t1}, v{vT+4}')
    NC2 = XF
    for ft in range(3):
        e(f'ds_read_b128 v[{NC2+ft*4}:{NC2+ft*4+3}], v{vT+5} offset:{ft*64}')
    MR = WF
    e(f's_lshl_b32 s{s_t0}, s{s_wr}, 7')
    e(f's_lshl_b32 s{s_t1}, s{s_wc}, 6')
    e(f's_add_u32 s{s_t0}, s{s_t0}, s{s_t1}')
    e(f's_add_u32 s{s_t0}, s{s_t0}, {L_M1}')
    e(f'v_lshlrev_b32 v{vT+6}, 2, v{vL15}')
    e(f'v_add_u32 v{vT+6}, s{s_t0}, v{vT+6}')
    e(f'v_xor_b32 v{vT+7}, 64, v{vT+6}')
    e(f'ds_read_b32 v{MR+0}, v{vT+6}')
    e(f'ds_read_b32 v{MR+2}, v{vT+7}')
    e(f'ds_read_b32 v{MR+4}, v{vT+6} offset:256')
    e(f'ds_read_b32 v{MR+6}, v{vT+7} offset:256')
    e(f's_lshl_b32 s{s_t0}, s{s_rb}, 2')
    e(f's_lshl_b32 s{s_t1}, s{s_wr}, 1')
    e(f's_add_u32 s{s_t0}, s{s_t0}, s{s_t1}')
    e(f's_add_u32 s{s_t1}, s{s_t0}, s{s_wc}')
    e(f's_xor_b32 s{s_t2}, s{s_t1}, 1')
    e(f's_mul_i32 s{s_off}, s{s_cb}, 6')
    e(f's_mul_i32 s{s_j}, s{s_wc}, 3')
    e(f's_add_u32 s{s_off}, s{s_off}, s{s_j}')
    e(f's_mul_i32 s{s_t1}, s{s_t1}, 48')
    e(f's_add_u32 s{s_t1}, s{s_t1}, s{s_off}')
    e(f's_lshl_b32 s{s_t1}, s{s_t1}, 9')
    e(f's_add_u32 s{s_t1}, s{s_t1}, {Z1F}')
    e(f's_mul_i32 s{s_t2}, s{s_t2}, 48')
    e(f's_add_u32 s{s_t2}, s{s_t2}, s{s_off}')
    e(f's_lshl_b32 s{s_t2}, s{s_t2}, 9')
    e(f's_add_u32 s{s_t2}, s{s_t2}, {Z1F}')
    e(f'v_lshlrev_b32 v{vT+6}, 3, v{vLane}')
    if fused:
        e(f's_lshl_b32 s{s_j}, s{s_wr}, 1')
        e(f's_add_u32 s{s_j}, s{s_j}, s{s_wc}')
        e(f's_mul_i32 s{s_off}, s{s_j}, 3072')
        e(f's_mul_i32 s{s_t0}, s{s_wc}, 1536')
        e(f's_add_u32 s{s_off}, s{s_off}, s{s_t0}')
        e(f's_add_u32 s{s_off}, s{s_off}, {Z1L}')
        e(f'v_add_u32 v{vT+8}, s{s_off}, v{vT+6}')
        e(f's_xor_b32 s{s_j}, s{s_j}, 1')
        e(f's_mul_i32 s{s_off}, s{s_j}, 3072')
        e(f's_add_u32 s{s_off}, s{s_off}, s{s_t0}')
        e(f's_add_u32 s{s_off}, s{s_off}, {Z1L}')
        e(f'v_add_u32 v{vT+9}, s{s_off}, v{vT+6}')
    e('s_waitcnt lgkmcnt(0)')
    for i in range(12):
        e(f'v_add_f32 v{NC2+i}, v{NC2+i}, v{CS+i}')
        e(f'v_sub_f32 v{NC2+i}, 0, v{NC2+i}')
    ZO = AP
    for T in range(2):
        for ft in range(3):
            for p in range(2):
                a = ACC + (T*3+ft)*4 + 2*p
                n = NC2 + ft*4 + 2*p
                m = MR + 2*T; r = MR + 4 + 2*T
                g = G + 4*p
                e(f'v_pk_fma_f32 v[{a}:{a+1}], v[{n}:{n+1}], v[{m}:{m+1}], v[{a}:{a+1}] op_sel_hi:[1,0,1]')
                e(f'v_pk_mul_f32 v[{a}:{a+1}], v[{a}:{a+1}], v[{r}:{r+1}] op_sel_hi:[1,0]')
                gelu_pair(a, g)
                e(f'v_cvt_pk_bf16_f32 v{ZO+(T*3+ft)*2+p}, v{g}, v{g+1}')
            so = s_t1 if T == 0 else s_t2
            z = ZO + (T*3+ft)*2
            if fused:
                e(f'ds_write_b64 v{vT+8+T}, v[{z}:{z+1}] offset:{ft*512}')
            else:
                e(f'buffer_store_dwordx2 v[{z}:{z+1}], v{vT+6}, s[{sWS}:{sWS+3}], s{so} offen offset:{ft*512} {STF_EARLY}')
        if T == 0: bar('B')
    if fused:
        H.after_B(e, stB, bar)
    if not fused: stB.flush(e, 0, sWS, vT, s_w)
    e.label('K1_END')
    e('s_endpgm')
    if fused: return nbar
    print('k1 barriers', nbar)
    assert nbar['A'] == nbar['B'] == nbar['L'], nbar
    nn = e.finalize()
    return kernel_wrap('k1_kernel', e.text(), vgpr=168, sgpr=96), nn
```

```python
from common import *
import k1 as K1
import k3b as K3
import os
HCP = 4160
CW_U = 4 * HCP
CW_SZ = CW_U + 512 + 4096
CONV0 = 65536
Z1L = K1.Z1L
LDSF = Z1L + 12288
BLOCKF = 768
NAME = 'recurrent_scan__ssm_conv_h3__mixer_gmlp__prompt_kernel'
POLL_MAX = 1 << 21

s_rb, s_cb, s_w, s_wl = 32, 33, 34, 55
s_t0, s_t1, s_t2 = 40, 41, 42
s_mask = 47; s_ex = 52
sWS = 16; sD = 4
P = 56
vLane, vQ, vL15 = 1, 2, 3

class Hooks:
    def __init__(self):
        self.nb = {}
    def flag_addr(self, e, v, vt):
        e(f's_lshl_b32 s{s_t0}, s{s_cb}, 7')
        e(f's_lshl_b32 s{s_t1}, s{s_rb}, 2')
        e(f's_add_u32 s{s_t0}, s{s_t0}, s{s_t1}')
        e(f's_add_u32 s{s_t1}, s{s_t0}, {FL2A}')
        e(f's_add_u32 s{s_t0}, s{s_t0}, {FL1}')
        e(f'v_mov_b32 v{v}, s{s_t0}')
        e(f'v_mov_b32 v{vt}, s{s_t1}')
        e(f'v_cmp_eq_u32 vcc, 1, v{vLane}')
        e(f'v_cndmask_b32 v{v}, v{v}, v{vt}, vcc')
        e(f's_lshl_b32 s{s_t0}, s{s_rb}, 5')
        e(f's_lshl_b32 s{s_t1}, s{s_cb}, 2')
        e(f's_add_u32 s{s_t0}, s{s_t0}, s{s_t1}')
        e(f's_add_u32 s{s_t0}, s{s_t0}, {FL2B}')
        e(f'v_mov_b32 v{vt}, s{s_t0}')
        e(f'v_cmp_eq_u32 vcc, 2, v{vLane}')
        e(f'v_cndmask_b32 v{v}, v{v}, v{vt}, vcc')
        e(f's_lshl_b32 s{s_t0}, s{s_cb}, 7')
        e(f's_lshl_b32 s{s_t1}, s{s_rb}, 2')
        e(f's_add_u32 s{s_t0}, s{s_t0}, s{s_t1}')
        e(f's_add_u32 s{s_t0}, s{s_t0}, {FLKV}')
        e(f'v_mov_b32 v{vt}, s{s_t0}')
        e(f'v_cmp_eq_u32 vcc, 3, v{vLane}')
        e(f'v_cndmask_b32 v{v}, v{v}, v{vt}, vcc')

    def after_A(self, e, stp, bar1):
        e('s_waitcnt vmcnt(0)')
        bar1('A')
        p1 = os.environ.get('P1ST') == '1'
        stp.mute = False
        stp.stamp(e)
        stp.mute = p1
        self.g2(e, stp)
    def after_B(self, e, stB, bar1):
        e(f's_cmp_eq_u32 s{s_w}, 7')
        e('s_cbranch_scc0 F2_NOCNT')
        e(f'v_lshlrev_b32 v6, 2, v{vLane}')
        self.poll(e, 'CNT', 6, 7, sD, 0xffffffff, 0, 8, ge=True)
        e.label('F2_NOCNT')
        e('s_waitcnt lgkmcnt(0)')
        bar1('B')
        self.c2(e, stB, bar1)
    def after_L(self, e, bar1):
        self.l2(e, bar1)

    def g2(self, e, stp):
        nb = [0]
        def bar():
            e('s_barrier'); nb[0] += 1
        sB = 12
        s_fh, s_kh, s_st, s_bz, s_kz, s_sd = 35, 36, 37, 38, 39, 43
        vB0, vB1, vA, vT = 4, 5, 6, 9
        BF = 16; ACC = 48; ZA = 96
        e.c('phase 2: G')
        e(f's_load_dwordx2 s[{P}:{P+1}], s[0:1], 72')
        e(f's_and_b32 s{s_fh}, s{s_w}, 1')
        e(f's_lshr_b32 s{s_kh}, s{s_w}, 1')
        e(f'v_xor_b32 v{vT}, v{vQ}, v{vL15}')
        e(f'v_lshlrev_b32 v{vT}, 4, v{vT}')
        e(f's_lshl_b32 s{s_t0}, s{s_kh}, 6')
        e(f'v_xor_b32 v{vT}, s{s_t0}, v{vT}')
        e(f'v_lshlrev_b32 v{vT+1}, 8, v{vL15}')
        e(f'v_add_u32 v{vB0}, v{vT}, v{vT+1}')
        e(f'v_xor_b32 v{vB1}, 128, v{vB0}')
        e(f's_mul_i32 s{s_t0}, s{s_cb}, 6')
        e(f's_mul_i32 s{s_t1}, s{s_fh}, 3')
        e(f's_add_u32 s{s_t0}, s{s_t0}, s{s_t1}')
        e(f's_lshl_b32 s{s_t0}, s{s_t0}, 16')
        e(f's_add_u32 s{s_t0}, s{s_t0}, {Z2F}')
        e(f'v_lshlrev_b32 v{vT}, 4, v{vLane}')
        for ft in range(3):
            e(f's_add_u32 s{s_t1}, s{s_t0}, {ft*65536}')
            e(f'v_add_u32 v{vA+ft}, s{s_t1}, v{vT}')
        e(f's_lshl_b32 s{s_kz}, s{s_kh}, 10')
        for i in range(48): e(f'v_mov_b32 v{ACC+i}, 0')
        e('s_waitcnt lgkmcnt(0)')
        srd(e, sB, P, S*2)
        def zl(n6, s_off):
            return [f'buffer_load_dwordx4 v[{ZA+(n6*3+ft)*4}:{ZA+(n6*3+ft)*4+3}], v{vA+ft}, s[{sWS}:{sWS+3}], s{s_off} offen sc1' for ft in range(3)]
        bar()
        stp.stamp(e)
        for n in range(5):
            e(f's_add_u32 s{s_bz}, s{s_kz}, {2*n*1024}')
            for x in zl(n, s_bz): e(x)
        def brd(buf, vb):
            return [f'ds_read_b128 v[{BF+buf*16+tt*4}:{BF+buf*16+tt*4+3}], v{vb} offset:{tt*4096}' for tt in range(4)]
        def mfl(buf, n6):
            L = []
            for tt in range(4):
                for ft in range(3):
                    a = ACC + (ft*4+tt)*4; z = ZA + (n6*3+ft)*4; b = BF + buf*16 + tt*4
                    L.append(f'v_mfma_f32_16x16x32_bf16 v[{a}:{a+3}], v[{z}:{z+3}], v[{b}:{b+3}], v[{a}:{a+3}]')
            return L
        def zoff(add):
            e(f's_lshl_b32 s{s_t0}, s{s_st}, 1')
            e(f's_add_u32 s{s_t0}, s{s_t0}, {add}')
            e(f's_lshl_b32 s{s_bz}, s{s_t0}, 11')
            e(f's_add_u32 s{s_bz}, s{s_bz}, s{s_kz}')
            e(f's_cmp_lt_u32 s{s_t0}, 32')
            e(f's_cselect_b32 s{s_bz}, s{s_bz}, 0x80000000')
        e(f's_mov_b32 s{s_st}, 0')
        for x in brd(0, vB0): e(x)
        e.label('F2_GLOOP')
        for u in range(3):
            n0 = (2*u) % 6; n1 = (2*u + 1) % 6
            zoff(5)
            e('s_waitcnt vmcnt(12) lgkmcnt(0)')
            fills = [[] for _ in range(12)]
            for k_, r in enumerate(brd(1, vB1)): fills[k_].append(r)
            for k_, z in enumerate(zl((n0 + 5) % 6, s_bz)): fills[4 + 2*k_].append(z)
            weave(e, mfl(0, n0), fills)
            e(f's_and_b32 s{s_t0}, s{s_st}, 3')
            e(f's_movk_i32 s{s_sd}, 16384')
            e(f's_cmp_eq_u32 s{s_t0}, 3')
            e(f's_cselect_b32 s{s_sd}, {(-49152) & 0xffffffff}, s{s_sd}')
            zoff(6)
            e('s_waitcnt lgkmcnt(0)')
            e('s_barrier')
            e(f'v_add_u32 v{vB0}, s{s_sd}, v{vB0}')
            e('s_waitcnt vmcnt(12)')
            fills = [[] for _ in range(12)]
            for k_, r in enumerate(brd(0, vB0)): fills[k_].append(r)
            for k_, z in enumerate(zl((n1 + 5) % 6, s_bz)): fills[4 + 2*k_].append(z)
            weave(e, mfl(1, n1), fills)
            e(f'v_add_u32 v{vB1}, s{s_sd}, v{vB1}')
            e(f's_add_u32 s{s_st}, s{s_st}, 1')
            e(f's_cmp_eq_u32 s{s_st}, 16')
            if u < 2: e('s_cbranch_scc1 F2_GDONE')
            else: e('s_cbranch_scc0 F2_GLOOP')
        e.label('F2_GDONE')
        nb[0] += 16
        stp.stamp(e)
        e.c('G epilogue')
        BS = vT + 6
        e(f's_lshl_b32 s{s_t0}, s{s_rb}, 2')
        e(f's_add_u32 s45, s{s_t0}, s{s_w}')
        e(f'v_lshlrev_b32 v{vT+1}, 1, v{vL15}')
        e(f's_lshl_b32 s{s_t0}, s45, 5')
        e(f'buffer_load_ushort v{BS}, v{vT+1}, s[{sB}:{sB+3}], s{s_t0} offen')
        e('s_waitcnt lgkmcnt(0)')
        bar()
        e(f's_mul_i32 s{s_t0}, s{s_w}, 3072')
        e(f'v_lshlrev_b32 v{vT}, 4, v{vLane}')
        e(f'v_add_u32 v{vT+1}, s{s_t0}, v{vT}')
        for tt in range(4):
            for ft in range(3):
                a = ACC + (ft*4 + tt)*4
                e(f'ds_write_b128 v{vT+1}, v[{a}:{a+3}] offset:{tt*12288 + ft*1024}')
                if (tt*3 + ft) % 6 == 5: e('s_waitcnt lgkmcnt(6)')
        e('s_waitcnt lgkmcnt(0)')
        bar()
        RX = 16
        e(f's_mul_i32 s{s_t0}, s{s_w}, 12288')
        e(f'v_add_u32 v{vT+1}, s{s_t0}, v{vT}')
        for v in range(4):
            for ft in range(3):
                r = RX + (v*3 + ft)*4
                e(f'ds_read_b128 v[{r}:{r+3}], v{vT+1} offset:{v*3072 + ft*1024}')
            if v == 2: e('s_waitcnt lgkmcnt(6)')
        Z1 = 64
        e(f's_mul_i32 s{s_t0}, s{s_w}, 3072')
        e(f's_add_u32 s{s_t0}, s{s_t0}, {Z1L}')
        e(f'v_lshlrev_b32 v{vT+2}, 3, v{vLane}')
        e(f'v_add_u32 v{vT+2}, s{s_t0}, v{vT+2}')
        e('s_waitcnt lgkmcnt(6)')
        for ftg in range(6):
            e(f'ds_read_b64 v[{Z1+2*ftg}:{Z1+2*ftg+1}], v{vT+2} offset:{ftg*512}')
        e('s_waitcnt vmcnt(0)')
        e(f'v_lshlrev_b32 v{BS}, 16, v{BS}')
        e(f's_mul_i32 s{s_t0}, s45, {24*1024}')
        e(f's_mul_i32 s{s_t1}, s{s_cb}, {3*1024}')
        e(f's_add_u32 s{s_t0}, s{s_t0}, s{s_t1}')
        e(f's_add_u32 s{s_t0}, s{s_t0}, {PF}')
        e('s_waitcnt lgkmcnt(0)')
        OUTP = 76
        TU = 88
        for ftg in range(6):
            fh, ft = ftg // 3, ftg % 3
            a = RX + ((fh + 0)*3 + ft)*4
            b = RX + ((fh + 2)*3 + ft)*4
            for r in range(4): e(f'v_add_f32 v{a+r}, v{a+r}, v{b+r}')
            for r in range(4): e(f'v_add_f32 v{a+r}, v{a+r}, v{BS}')
            for p in range(2):
                e(f'v_lshlrev_b32 v{TU+2*p}, 16, v{Z1+2*ftg+p}')
                e(f'v_and_b32 v{TU+2*p+1}, s{s_mask}, v{Z1+2*ftg+p}')
            for r in range(4): e(f'v_mul_f32 v{a+r}, v{a+r}, v{TU+r}')
            for p in range(2):
                e(f'v_cvt_pk_bf16_f32 v{OUTP+2*ftg+p}, v{a+2*p}, v{a+2*p+1}')
            if ftg % 2 == 1:
                j = ftg // 2
                e(f'buffer_store_dwordx4 v[{OUTP+4*j}:{OUTP+4*j+3}], v{vT}, s[{sWS}:{sWS+3}], s{s_t0} offen offset:{j*1024} sc1')
        e('s_waitcnt vmcnt(0)')
        bar()
        stp.stamp(e)
        self.k3['g3_setup']()
        bar()
        stp.stamp(e)
        self.k3['g3_main']()
        stp.flush(e, 0, sWS, 12, s_w)
        e('s_endpgm')
        self.nb['A2'] = nb[0]

    def poll(self, e, tag, vaddr, vval, srd, nlanes_lo, nlanes_hi, want, ge=False):
        e(f's_mov_b32 s{s_t2}, 0')
        set_exec(e, nlanes_lo, nlanes_hi)
        e.label(f'FP_{tag}')
        e(f'buffer_load_dword v{vval}, v{vaddr}, s[{srd}:{srd+3}], 0 offen sc1')
        e('s_waitcnt vmcnt(0)')
        e(f'v_cmp_{"gt" if ge else "ne"}_u32 vcc, {want}, v{vval}')
        e(f's_add_u32 s{s_t2}, s{s_t2}, 1')
        e('s_cmp_eq_u64 vcc, 0')
        e(f's_cbranch_scc1 FP_{tag}_OK')
        e(f's_cmp_lt_u32 s{s_t2}, {POLL_MAX}')
        e(f's_cbranch_scc0 FP_{tag}_OK')
        e('s_sleep 1')
        e(f's_branch FP_{tag}')
        e.label(f'FP_{tag}_OK')
        e(f's_mov_b64 exec, s[{s_ex}:{s_ex+1}]')

    def spoll(self, e, tag, off_sgpr, first, n):
        e(f's_add_u32 s74, s{off_sgpr}, {first*4}')
        e(f's_mov_b32 s{s_t2}, 0')
        e.label(f'SP_{tag}')
        e(f's_load_dwordx{n} s[56:{56+n-1}], s[72:73], s74 glc')
        e('s_waitcnt lgkmcnt(0)')
        k = n
        while k > 1:
            k //= 2
            for i in range(0, k, 2) if k >= 2 else [0]:
                if k >= 2: e(f's_and_b64 s[{56+i}:{57+i}], s[{56+i}:{57+i}], s[{56+k+i}:{57+k+i}]')
                else: e(f's_and_b32 s56, s56, s57')
        e(f's_add_u32 s{s_t2}, s{s_t2}, 1')
        e('s_cmp_eq_u32 s56, 1')
        e(f's_cbranch_scc1 SP_{tag}_OK')
        e(f's_cmp_lt_u32 s{s_t2}, {POLL_MAX}')
        e(f's_cbranch_scc1 SP_{tag}')
        e.label(f'SP_{tag}_OK')

    def kv_store(self, e, vt):
        KVS, KVP_ = K1.KVS, K1.KVP_
        KO = 16
        e(f's_sub_u32 s{s_t2}, s{s_w}, 4')
        e(f'v_lshrrev_b32 v{vt}, 3, v{vLane}')
        e(f's_lshl_b32 s{s_t0}, s{s_t2}, 3')
        e(f'v_add_u32 v{vt}, s{s_t0}, v{vt}')
        e(f'v_and_b32 v{vt+1}, 7, v{vLane}')
        e(f'v_lshlrev_b32 v{vt+1}, 4, v{vt+1}')
        e(f'v_mul_u32_u24 v{vt+2}, {KVP_}, v{vt}')
        e(f'v_add_u32 v{vt+2}, v{vt+2}, v{vt+1}')
        e(f'v_add_u32 v{vt+2}, {KVS}, v{vt+2}')
        e(f'v_lshlrev_b32 v{vt}, 12, v{vt}')
        e(f'v_add_u32 v{vt}, v{vt}, v{vt+1}')
        for n in range(4):
            e(f'ds_read_b128 v[{KO+4*n}:{KO+4*n+3}], v{vt+2} offset:{n*24*KVP_}')
        e(f's_mul_i32 s{s_t0}, s{s_cb}, {80*4096}')
        e(f's_lshl_b32 s{s_t1}, s{s_rb}, 7')
        e(f's_add_u32 s{s_t0}, s{s_t0}, s{s_t1}')
        e(f's_add_u32 s{s_t0}, s{s_t0}, {KVT}')
        e('s_waitcnt lgkmcnt(0)')
        for n in range(4):
            if n == 3:
                e(f's_cmp_eq_u32 s{s_t2}, 0')
                e(f's_cselect_b32 s{s_t0}, s{s_t0}, 0x80000000')
            e(f'buffer_store_dwordx4 v[{KO+4*n}:{KO+4*n+3}], v{vt}, s[{sWS}:{sWS+3}], s{s_t0} offen sc1')
            e(f's_add_u32 s{s_t0}, s{s_t0}, {24*4096}')

    def conv_early(self, e):
        sH, sDd = 20, 24
        HC = 136; X = 160; DV = 166
        e(f's_load_dwordx4 s[{P+8}:{P+11}], s[0:1], 32')
        e(f's_sub_u32 s{s_t2}, s{s_w}, 4')
        e(f's_mul_i32 s44, s{s_cb}, 80')
        e(f's_mul_i32 s{s_t0}, s{s_rb}, 3')
        e(f's_lshl_b32 s{s_t1}, s{s_rb}, 1')
        e(f's_add_u32 s{s_t1}, s{s_t1}, 16')
        e(f's_cmp_lt_u32 s{s_rb}, 16')
        e(f's_cselect_b32 s{s_t0}, s{s_t0}, s{s_t1}')
        e(f's_cselect_b32 s{s_t1}, 3, 2')
        e(f's_add_u32 s44, s44, s{s_t0}')
        e(f's_add_u32 s44, s44, s{s_t2}')
        e(f's_cmp_lt_u32 s{s_t2}, s{s_t1}')
        e(f's_cselect_b32 s45, 1, 0')
        e('s_cbranch_scc0 F2_NOH')
        e('s_waitcnt lgkmcnt(0)')
        e(f's_lshl_b32 s{s_t0}, s44, 12')
        e(f's_add_u32 s{sH}, s{P+8}, s{s_t0}')
        e(f's_addc_u32 s{sH+1}, s{P+9}, 0')
        e(f's_and_b32 s{sH+1}, s{sH+1}, 0xffff')
        e(f's_mov_b32 s{sH+2}, 4096')
        e(f's_mov_b32 s{sH+3}, 0x20000')
        srd(e, sDd, P+10, D*2)
        e(f'v_lshlrev_b32 v167, 4, v{vLane}')
        for n in range(4):
            c = HC + n*6
            e(f'buffer_load_dwordx4 v[{c}:{c+3}], v167, s[{sH}:{sH+3}], 0 offen offset:{n*1024}')
            e(f'buffer_load_dwordx2 v[{c+4}:{c+5}], v167, s[{sH}:{sH+3}], 0 offen offset:{n*1024+16}')
        e(f'v_mov_b32 v167, 0')
        e(f'buffer_load_dwordx2 v[{X+4}:{X+5}], v167, s[{sH}:{sH+3}], 0 offen')
        e(f's_lshl_b32 s{s_t0}, s44, 1')
        e(f'buffer_load_ushort v{DV}, v167, s[{sDd}:{sDd+3}], s{s_t0} offen')
        e.label('F2_NOH')
        e('s_waitcnt lgkmcnt(0)')

    def c2(self, e, stC, bar1):
        nb = [0]
        def bar():
            e('s_barrier'); nb[0] += 1
        sH, sDd = 20, 24
        s_d, s_base, s_p = 35, 36, 37
        vA_, vB_ = 4, 5
        vT = 6
        HC = 136; X = 160; DV = 46; ACC = 48
        e.c('phase 2: B stream')
        e(f's_cmp_eq_u32 s{s_w}, 7')
        e('s_cbranch_scc1 F2_SYNC')
        e(f's_cmp_eq_u32 s45, 0')
        e('s_cbranch_scc1 F2_IDLE')
        e(f's_mov_b32 s{s_d}, s44')
        e(f's_sub_u32 s{s_t2}, s{s_w}, 4')
        e(f's_mul_i32 s{s_base}, s{s_t2}, {CW_SZ}')
        e(f's_add_u32 s{s_base}, s{s_base}, {CONV0}')
        e(f'v_add_u32 v{vT+4}, 1, v{vL15}')
        e(f'v_and_b32 v{vT+4}, 3, v{vT+4}')
        e(f'v_lshrrev_b32 v{vT+5}, 1, v{vQ}')
        e(f'v_and_b32 v{vT+6}, 1, v{vQ}')
        e(f'v_lshlrev_b32 v{vT+7}, 4, v{vT+5}')
        e(f'v_add_u32 v{vT+7}, v{vT+7}, v{vL15}')
        e(f'v_lshlrev_b32 v{vT+8}, 3, v{vT+6}')
        e(f'v_sub_u32 v{vT+7}, v{vT+7}, v{vT+8}')
        e(f'v_add_u32 v{vT+7}, 9, v{vT+7}')
        e(f'v_sub_u32 v{vT+7}, v{vT+7}, v{vT+4}')
        e(f'v_lshlrev_b32 v{vT+7}, 1, v{vT+7}')
        e(f'v_mul_u32_u24 v{vT+4}, {HCP}, v{vT+4}')
        e(f'v_add_u32 v{vT+7}, v{vT+7}, v{vT+4}')
        e(f'v_add_u32 v{vA_}, s{s_base}, v{vT+7}')
        e(f'v_sub_u32 v{vT+7}, v{vL15}, v{vT+5}')
        e(f'v_lshlrev_b32 v{vT+7}, 1, v{vT+7}')
        e(f'v_add_u32 v{vT+7}, v{vT+7}, v{vT+6}')
        e(f'v_lshlrev_b32 v{vT+7}, 4, v{vT+7}')
        e(f's_add_u32 s{s_t0}, s{s_base}, {CW_U + 512}')
        e(f'v_add_u32 v{vB_}, s{s_t0}, v{vT+7}')
        e('s_waitcnt vmcnt(0)')
        e(f'v_mov_b32 v{DV}, v166')
        e(f'v_mov_b32 v{vT+2}, 0'); e(f'v_mov_b32 v{vT+3}, 0')
        e(f'v_lshlrev_b32 v{vT+4}, 3, v{vLane}')
        e(f'v_add_u32 v{vT+4}, s{s_base}, v{vT+4}')
        e(f'ds_write_b64 v{vT+4}, v[{vT+2}:{vT+3}] offset:{CW_U}')
        e(f'v_lshlrev_b32 v{vT+4}, 4, v{vLane}')
        e(f'v_add_u32 v{vT+4}, s{s_base}, v{vT+4}')
        TM = 80
        def copies(c, off, k):
            t_ = TM + (k % 4)*12
            e(f'v_alignbit_b32 v{t_+0}, v{c+1}, v{c+0}, 16')
            e(f'v_alignbit_b32 v{t_+1}, v{c+2}, v{c+1}, 16')
            e(f'v_alignbit_b32 v{t_+2}, v{c+3}, v{c+2}, 16')
            e(f'v_alignbit_b32 v{t_+3}, v{c+4}, v{c+3}, 16')
            e(f'v_mov_b32 v{t_+4}, v{c+1}'); e(f'v_mov_b32 v{t_+5}, v{c+2}')
            e(f'v_mov_b32 v{t_+6}, v{c+3}'); e(f'v_mov_b32 v{t_+7}, v{c+4}')
            e(f'v_mov_b32 v{t_+8}, v{t_+1}'); e(f'v_mov_b32 v{t_+9}, v{t_+2}'); e(f'v_mov_b32 v{t_+10}, v{t_+3}')
            e(f'v_alignbit_b32 v{t_+11}, v{c+5}, v{c+4}, 16')
            e(f'ds_write_b128 v{vT+4}, v[{c}:{c+3}] offset:{off}')
            e(f'ds_write_b128 v{vT+4}, v[{t_}:{t_+3}] offset:{off + HCP}')
            e(f'ds_write_b128 v{vT+4}, v[{t_+4}:{t_+7}] offset:{off + 2*HCP}')
            e(f'ds_write_b128 v{vT+4}, v[{t_+8}:{t_+11}] offset:{off + 3*HCP}')
        for n in range(4):
            copies(HC + n*6, 32 + n*1024, n)
            e('s_waitcnt lgkmcnt(4)')
        for i in range(4): e(f'v_mov_b32 v{X+i}, 0')
        e(f'v_cmp_eq_u32 vcc, 1, v{vLane}')
        e(f'v_cndmask_b32 v{X+4}, 0, v{X+4}, vcc')
        e(f'v_cndmask_b32 v{X+5}, 0, v{X+5}, vcc')
        e('s_waitcnt lgkmcnt(0)')
        set_exec(e, 3, 0)
        copies(X, 0, 0)
        e(f's_mov_b64 exec, s[{s_ex}:{s_ex+1}]')
        e(f'v_lshlrev_b32 v{DV}, 16, v{DV}')
        for i in range(32): e(f'v_mov_b32 v{ACC+i}, 0')
        e(f'v_lshlrev_b32 v{vT}, 4, v{vLane}')
        e(f's_lshl_b32 s{s_t0}, s{s_d}, 12')
        e(f's_add_u32 s{s_t0}, s{s_t0}, {KVT}')
        e('s_waitcnt lgkmcnt(0)')
        bar1('B')
        self.kv_store(e, 8)
        bar(); bar()
        e('s_waitcnt vmcnt(0)')
        for _ in range(4): bar()
        e(f'v_lshlrev_b32 v{vT}, 4, v{vLane}')
        e(f's_lshl_b32 s{s_t0}, s{s_d}, 12')
        e(f's_add_u32 s{s_t0}, s{s_t0}, {KVT}')
        for n in range(4):
            e(f's_add_u32 m0, s{s_base}, {CW_U + 512 + n*1024}')
            e(f's_add_u32 s{s_t1}, s{s_t0}, {n*1024}')
            e(f'buffer_load_dwordx4 v{vT}, s[{sWS}:{sWS+3}], s{s_t1} offen sc1 lds')
        AFr = 80; B0 = 112
        def a_rd(m):
            a = AFr + m*4
            return [f'ds_read_b64 v[{a}:{a+1}], v{vA_} offset:{m*512}', f'ds_read_b64 v[{a+2}:{a+3}], v{vA_} offset:{m*512+8}']
        def b_rd(ee):
            b = B0 + 4*ee
            return [f'ds_read_b128 v[{b}:{b+3}], v{vB_} offset:{ee*512}']
        for m in range(8):
            for x in a_rd(m): e(x)
            if m % 4 == 3: e('s_waitcnt lgkmcnt(6)')
        bar()
        e('s_waitcnt vmcnt(0)')
        for m in range(8):
            for x in b_rd(m): e(x)
        e(f's_mov_b32 s{s_p}, 0')
        e.label('F2_CLOOP')
        e(f'v_add_u32 v{vA_}, 64, v{vA_}')
        e(f'v_subrev_u32 v{vB_}, 64, v{vB_}')
        e('s_waitcnt lgkmcnt(0)')
        for m in range(8):
            for c in range(m, 8):
                a = AFr + m*4; b = B0 + (c-m)*4; d = ACC + c*4
                e(f'v_mfma_f32_16x16x32_bf16 v[{d}:{d+3}], v[{a}:{a+3}], v[{b}:{b+3}], v[{d}:{d+3}]')
            for x in a_rd(m): e(x)
            for x in b_rd(7 - m): e(x)
            if m in (3, 6): e('s_waitcnt lgkmcnt(6)')
        e('s_barrier')
        e(f's_add_u32 s{s_p}, s{s_p}, 1')
        e(f's_cmp_lt_u32 s{s_p}, 8')
        e('s_cbranch_scc1 F2_CLOOP')
        nb[0] += 8
        e('s_waitcnt lgkmcnt(0)')
        e(f'v_lshlrev_b32 v{vT}, 5, v{vL15}')
        e(f'v_lshrrev_b32 v{vT+1}, 1, v{vQ}')
        e(f'v_lshlrev_b32 v{vT+1}, 4, v{vT+1}')
        e(f'v_add_u32 v{vT}, v{vT}, v{vT+1}')
        e(f'v_and_b32 v{vT+1}, 1, v{vQ}')
        e(f'v_xor_b32 v{vT+1}, 1, v{vT+1}')
        e(f'v_lshlrev_b32 v{vT+1}, 3, v{vT+1}')
        e(f'v_add_u32 v{vT}, v{vT}, v{vT+1}')
        e(f's_add_u32 s{s_t0}, s{s_base}, {CW_U + 512}')
        e(f'v_add_u32 v{vT}, s{s_t0}, v{vT}')
        KV = AFr
        for c in range(8):
            e(f'ds_read_b64 v[{KV+2*c}:{KV+2*c+1}], v{vT} offset:{c*512}')
        e(f'v_lshlrev_b32 v{vT+2}, 5, v{vL15}')
        e(f'v_lshlrev_b32 v{vT+3}, 3, v{vQ}')
        e(f'v_add_u32 v{vT+2}, v{vT+2}, v{vT+3}')
        e(f's_lshl_b32 s{s_t0}, s{s_d}, 12')
        e(f's_add_u32 s{s_t0}, s{s_t0}, {YYT}')
        e('s_waitcnt lgkmcnt(0)')
        U = B0
        for c in range(8):
            a = ACC + c*4; k0 = KV + 2*c; u = U + (c % 4)*8
            e(f'v_and_b32 v{u+0}, s{s_mask}, v{k0+1}')
            e(f'v_lshlrev_b32 v{u+1}, 16, v{k0+1}')
            e(f'v_and_b32 v{u+2}, s{s_mask}, v{k0}')
            e(f'v_lshlrev_b32 v{u+3}, 16, v{k0}')
            for r in range(4): e(f'v_fmac_f32 v{a+r}, v{u+r}, v{DV}')
            e(f'v_cvt_pk_bf16_f32 v{u+4}, v{a}, v{a+1}')
            e(f'v_cvt_pk_bf16_f32 v{u+5}, v{a+2}, v{a+3}')
            e(f'buffer_store_dwordx2 v[{u+4}:{u+5}], v{vT+2}, s[{sWS}:{sWS+3}], s{s_t0} offen offset:{c*512} sc1')
        bar()
        e('s_waitcnt vmcnt(0)')
        bar()
        bar(); bar(); bar()
        n_c = nb[0]
        e.label('F3_IDLE')
        for _ in range(1 + K3.NB3): e('s_barrier')
        stC.flush(e, 0, sWS, vT, s_w)
        e('s_endpgm')
        e.label('F2_IDLE')
        e('s_waitcnt vmcnt(0)')
        bar1('I1')
        self.kv_store(e, 8)
        e('s_barrier'); e('s_barrier')
        e('s_waitcnt vmcnt(0)')
        for _ in range(n_c - 2): e('s_barrier')
        e('s_branch F3_IDLE')
        e.label('F2_SYNC')
        vt = 6
        e('s_load_dwordx2 s[72:73], s[0:1], 104')
        e('s_waitcnt lgkmcnt(0)')
        sSP = 8
        e(f's_load_dwordx2 s[70:71], s[0:1], 64')
        e(f's_lshl_b32 s{s_t0}, s{s_rb}, 6')
        e(f's_lshl_b32 s{s_t1}, s{s_cb}, 3')
        e(f's_add_u32 s{s_t0}, s{s_t0}, s{s_t1}')
        e(f'v_lshrrev_b32 v20, 3, v{vLane}')
        e(f'v_add_u32 v20, s{s_t0}, v20')
        e(f'v_lshlrev_b32 v20, 12, v20')
        e(f'v_and_b32 v21, 7, v{vLane}')
        e(f'v_lshlrev_b32 v21, 6, v21')
        e(f'v_add_u32 v20, v20, v21')
        e(f'v_lshrrev_b32 v22, 2, v{vLane}')
        e(f'v_add_u32 v22, s{s_t0}, v22')
        e(f'v_lshlrev_b32 v22, 12, v22')
        e(f'v_and_b32 v21, 3, v{vLane}')
        e(f'v_lshlrev_b32 v21, 6, v21')
        e(f'v_add_u32 v22, v22, v21')
        e('s_waitcnt lgkmcnt(0)')
        srd(e, sSP, 70, S*S*2)
        JIT = os.environ.get('TOUCH', 'jit') == 'jit'
        for p in range(3 if JIT else 0):
            e(f'buffer_load_dword v{24+p}, v20, s[{sSP}:{sSP+3}], 0 offen offset:{p*512}')
        self.flag_addr(e, vt+2, vt+3)
        e(f'v_mov_b32 v{vt+4}, 1')
        e('s_waitcnt vmcnt(0)')
        bar1('I2')
        stS = Stamper(); stS.n = 1
        stS.stamp(e)
        set_exec(e, 1, 0)
        e(f'buffer_store_dword v{vt+4}, v{vt+2}, s[{sWS}:{sWS+3}], 0 offen sc1')
        e(f's_mov_b64 exec, s[{s_ex}:{s_ex+1}]')
        SPOLL = os.environ.get('SPOLL', '1') == '1'
        e(f's_lshl_b32 s{s_t0}, s{s_cb}, 7')
        e(f's_add_u32 s75, s{s_t0}, {FL1}')
        e(f's_add_u32 s{s_t0}, s{s_t0}, {FL1}')
        e(f'v_lshlrev_b32 v{vt}, 2, v{vLane}')
        e(f'v_add_u32 v{vt}, s{s_t0}, v{vt}')
        if SPOLL:
            self.spoll(e, 'F1a', 75, 0, 8)
        else:
            self.poll(e, 'F1a', vt, vt+1, sWS, 0x3f, 0, 1)
        stS.stamp(e)
        e('s_barrier')
        stS.stamp(e)
        def mbar(i):
            e('s_barrier')
            j = i + 6
            if j < 16 and JIT:
                e('s_mov_b32 exec_hi, 0')
                e(f's_movk_i32 s{s_t0}, {j*256}')
                e(f'buffer_load_dword v{28 + (i % 4)}, v22, s[{sSP}:{sSP+3}], s{s_t0} offen')
                e('s_mov_b32 exec_hi, -1')
        mbar(0)
        self.spoll(e, 'F1b', 75, 8, 8)
        mbar(1)
        set_exec(e, 8, 0)
        e(f'buffer_store_dword v{vt+4}, v{vt+2}, s[{sWS}:{sWS+3}], 0 offen sc1')
        e(f's_mov_b64 exec, s[{s_ex}:{s_ex+1}]')
        mbar(2)
        self.spoll(e, 'F1c', 75, 16, 16)
        mbar(3)
        e(f's_add_u32 s75, s75, {FLKV - FL1}')
        self.spoll(e, 'FKa', 75, 0, 16)
        self.spoll(e, 'FKb', 75, 16, 16)
        for i in range(4, 16): mbar(i)
        set_exec(e, 2, 0)
        e(f'buffer_store_dword v{vt+4}, v{vt+2}, s[{sWS}:{sWS+3}], 0 offen sc1')
        e(f's_mov_b64 exec, s[{s_ex}:{s_ex+1}]')
        for _ in range(3): e('s_barrier')
        set_exec(e, 4, 0)
        e(f'buffer_store_dword v{vt+4}, v{vt+2}, s[{sWS}:{sWS+3}], 0 offen sc1')
        e(f's_mov_b64 exec, s[{s_ex}:{s_ex+1}]')
        e(f's_lshl_b32 s{s_t0}, s{s_rb}, 5')
        e(f's_add_u32 s75, s{s_t0}, {FL2B}')
        e(f's_add_u32 s{s_t0}, s{s_t0}, {FL2B}')
        e(f'v_lshlrev_b32 v{vt}, 2, v{vLane}')
        e(f'v_add_u32 v{vt+6}, s{s_t0}, v{vt}')
        stS.stamp(e)
        if SPOLL: self.spoll(e, 'F2B', 75, 0, 8)
        else: self.poll(e, 'F2B', vt+6, vt+1, sWS, 0xff, 0, 1)
        stS.stamp(e)
        e('s_barrier')
        e(f's_lshl_b32 s{s_t0}, s{s_cb}, 7')
        e(f's_add_u32 s75, s{s_t0}, {FL2A}')
        e(f's_add_u32 s{s_t0}, s{s_t0}, {FL2A}')
        e(f'v_add_u32 v{vt+5}, s{s_t0}, v{vt}')
        e('s_barrier')
        if SPOLL:
            self.spoll(e, 'F2Aa', 75, 0, 16)
            self.spoll(e, 'F2Ab', 75, 16, 16)
        else:
            self.poll(e, 'F2A', vt+5, vt+1, sWS, 0xffffffff, 0, 1)
        for _ in range(K3.NB3 - 1): e('s_barrier')
        stS.flush(e, 2, sWS, vt, s_wl)
        e('s_endpgm')
        self.nb['B2'] = n_c

    def l2(self, e, bar1):
        nb = [0]
        def bar():
            e('s_barrier'); nb[0] += 1
        sSP = 8
        vD = 4; t = 10
        s_bw, s_m = 38, 39
        e.c('phase 2: L')
        e(f's_load_dwordx2 s[{P}:{P+1}], s[0:1], 64')
        e(f's_load_dwordx2 s[{P+4}:{P+5}], s[0:1], 104')
        e(f's_lshl_b32 s{s_t0}, s{s_rb}, 6')
        e(f's_lshl_b32 s{s_t1}, s{s_wl}, 4')
        e(f's_add_u32 s{s_t0}, s{s_t0}, s{s_t1}')
        for tt in range(4):
            e(f'v_add_u32 v{t}, {4*tt}, v{vQ}')
            e(f'v_xor_b32 v{t+1}, v{t}, v{vL15}')
            e(f'v_lshlrev_b32 v{t+1}, 4, v{t+1}')
            e(f'v_add_u32 v{t}, s{s_t0}, v{t}')
            e(f'v_lshlrev_b32 v{t}, 12, v{t}')
            e(f'v_add_u32 v{vD+tt}, v{t}, v{t+1}')
        e(f's_lshl_b32 s{s_m}, s{s_wl}, 12')
        e('s_waitcnt lgkmcnt(0)')
        srd(e, sSP, P, S*S*2)
        srd(e, sWS, P+4, WS_SIZE)
        cnt = [0]; done = {}
        def issue(j):
            e(f's_movk_i32 s{s_bw}, {j*256}')
            for tt in range(4):
                e(f's_add_u32 m0, s{s_m}, {(j % 4)*16384 + tt*1024}')
                e('s_nop 0')
                e(f'buffer_load_dwordx4 v{vD+tt}, s[{sSP}:{sSP+3}], s{s_bw} offen lds')
            cnt[0] += 4; done[j] = cnt[0]
        def lbar(j):
            e(f's_waitcnt vmcnt({cnt[0] - done[j]})'); bar()
        def touch():
            e(f'v_lshlrev_b32 v{t}, 6, v{vLane}')
            e(f's_and_b32 s{s_t0}, s2, 7')
            e(f's_lshl_b32 s{s_t0}, s{s_t0}, 8')
            e(f's_lshr_b32 s{s_t1}, s2, 3')
            e(f's_lshl_b32 s{s_t1}, s{s_t1}, 3')
            e(f's_add_u32 s{s_t0}, s{s_t0}, s{s_t1}')
            e(f's_lshl_b32 s{s_t1}, s{s_wl}, 1')
            e(f's_add_u32 s{s_t0}, s{s_t0}, s{s_t1}')
            e(f's_lshl_b32 s{s_t0}, s{s_t0}, 12')
            e(f'buffer_load_dword v{t+1}, v{t}, s[{sSP}:{sSP+3}], s{s_t0} offen')
            e(f's_add_u32 s{s_t0}, s{s_t0}, 4096')
            e(f'buffer_load_dword v{t+2}, v{t}, s[{sSP}:{sSP+3}], s{s_t0} offen')
            cnt[0] += 2
        LORD = os.environ.get('LORD', 'G')
        if LORD == 'A':
            issue(0); bar1('L'); e('s_waitcnt vmcnt(0)'); issue(1); bar1('L'); e('s_sleep 4'); touch(); issue(2)
        elif LORD == 'B':
            touch(); bar1('L'); e('s_waitcnt vmcnt(0)'); issue(0); issue(1); bar1('L'); issue(2); issue(3)
        elif LORD == 'E':
            issue(0); bar1('L'); e('s_waitcnt vmcnt(0)'); issue(1); bar1('L')
        elif LORD == 'F':
            issue(0); bar1('L'); issue(1); bar1('L'); e('s_sleep 4'); issue(2)
        elif LORD == 'G':
            bar1('L'); bar1('L'); e('s_sleep 4'); issue(0); issue(1)
        elif LORD == 'C':
            bar1('L'); bar1('L'); touch(); issue(0)
        elif LORD == 'D':
            bar1('L'); e('s_sleep 8'); touch(); bar1('L'); issue(0); issue(1)
        lbar(0)
        LA = int(os.environ.get('LA', '2'))
        nxt = max(done) + 1
        while nxt < LA + 1:
            issue(nxt); nxt += 1
        for i in range(16):
            if i + 1 < 16: lbar(i + 1)
            else: bar()
            while nxt < 16 and nxt <= i + 1 + LA:
                issue(nxt); nxt += 1
        bar(); bar()
        bar()
        self.nb['L2'] = nb[0]
        grp = self.k3['l3']()
        e('s_sleep 4')
        grp(0); grp(1)
        e('s_barrier')
        issued = 2
        for g in range(6):
            if issued < 6:
                grp(issued); issued += 1
            e(f's_waitcnt vmcnt({5*(issued - g - 1)})')
            e('s_barrier')
        e('s_endpgm')

def gen_kf():
    e = Emitter()
    H = Hooks()
    H.k3 = K3.gen_k3(e=e, fused=True)
    nbar = K1.gen_k1(e=e, fused=True, H=H)
    print('phase1 barriers', nbar, 'phase2', H.nb, 'phase3', H.k3['nbar'])
    assert nbar['A'] == nbar['L'] == 25 and nbar['B'] == 25 and nbar['I1'] == 1 and nbar['I2'] == 1, nbar
    assert H.nb['A2'] - 1 == H.nb['B2'] == H.nb['L2'] == 20, H.nb
    assert H.k3['nbar']['G'] == K3.NB3
    nn = e.finalize()
    return kernel_wrap(NAME, e.text(), vgpr=168, sgpr=96), nn
```

```python
from common import *

WSLOT = 12288; NSLOT = 5
XB0 = NSLOT * WSLOT
XST = 8192
PREP = XB0
PREPV = 11520
MISC = XB0 + 10 * XST
L_M1 = MISC; L_R1 = MISC + 256
L_CSA = MISC + 512
L_CSB = MISC + 1280
L_PS = MISC + 2048
L_PQ = MISC + 2560
L_W2 = MISC + 3072
LDS1 = 147456
import os
PREFETCH = os.environ.get('PREFETCH', '1') == '1'
XP_NOPREP = os.environ.get('XP_NOPREP', '0') == '1'
XP_NODOT = os.environ.get('XP_NODOT', '0') == '1'
XP_NOCOMP = os.environ.get('XP_NOCOMP', '0')
BLOCK1 = 768
BARST = os.environ.get('BARST') == '1'
SENT = 0xbf800000

K1c = -2.0 * 1.4426950408889634 * 0.7978845608028654
K2c = K1c * 0.044715

KVS = 49152; KVP_ = 144; Z1L = 147456
def gen_k1(e=None, fused=False, H=None):
    if e is None: e = Emitter()
    SC = 'sc1' if fused else ''
    sX, sW, sWS, sK, sV, sT = 8, 12, 16, 20, 24, 28
    s_rb, s_cb, s_w, s_wr, s_wc, s_wl = 32, 33, 34, 35, 36, 55
    s_i, s_j, s_off, s_t0, s_t1, s_t2 = 37, 38, 39, 40, 41, 42
    s_z2b, s_z1b, s_slot, s_mask = 43, 44, 45, 47
    s_k2 = 48; s_one = 50; s_ex = 52; s_xo = 54
    sD = 4
    P = 56
    vLane, vQ, vL15 = 1, 2, 3
    vXA, vXB, vW = 4, 6, 8
    vT = 14
    XF = 26; WF = 42; ACC = 66; CS = 90; ONE = 102; SUM = 106; GR = 110; AP = 114; E = 126
    nbar = {'A': 0, 'B': 0, 'L': 0}
    def bar(role, name=''):
        e('s_barrier'); nbar[role] = nbar.get(role, 0) + 1

    e.c('---- k1: GEMM1 (LN1 folded) + gelu + LN2 + kv prep + w_out retile ; roles A(0-3) B(4-7) L(8)')
    e('s_cmp_ge_u32 s2, 256')
    e('s_cbranch_scc1 K1_END')
    stp = Stamper(); stp.start(e)
    stp.mute = fused and os.environ.get('P1ST') != '1'
    e(f's_load_dwordx4 s[{P}:{P+3}], s[0:1], 0')
    e(f's_load_dwordx4 s[{P+4}:{P+7}], s[0:1], 16')
    e(f's_load_dwordx2 s[{P+8}:{P+9}], s[0:1], 56')
    e(f's_load_dwordx2 s[{P+10}:{P+11}], s[0:1], 80')
    e(f's_load_dwordx4 s[{P+12}:{P+15}], s[0:1], 96')
    e(f's_load_dwordx2 s[{P+18}:{P+19}], s[0:1], 64')
    e(f's_load_dwordx2 s[{P+20}:{P+21}], s[0:1], 32')
    e(f'v_and_b32 v{vLane}, 63, v0')
    e(f'v_lshrrev_b32 v{vT}, 6, v0')
    e(f'v_lshrrev_b32 v{vQ}, 4, v{vLane}')
    e(f'v_readfirstlane_b32 s{s_w}, v{vT}')
    e(f'v_and_b32 v{vL15}, 15, v{vLane}')
    e(f's_and_b32 s{s_t0}, s2, 7')
    e(f's_lshr_b32 s{s_t1}, s2, 3')
    e(f's_lshr_b32 s{s_rb}, s{s_t0}, 1')
    e(f's_lshl_b32 s{s_rb}, s{s_rb}, 3')
    e(f's_lshr_b32 s{s_t2}, s{s_t1}, 2')
    e(f's_add_u32 s{s_rb}, s{s_rb}, s{s_t2}')
    e(f's_and_b32 s{s_cb}, s{s_t0}, 1')
    e(f's_lshl_b32 s{s_cb}, s{s_cb}, 2')
    e(f's_and_b32 s{s_t2}, s{s_t1}, 3')
    e(f's_add_u32 s{s_cb}, s{s_cb}, s{s_t2}')
    e(f's_and_b32 s{s_wl}, s{s_w}, 3')
    e(f's_lshr_b32 s{s_wr}, s{s_wl}, 1')
    e(f's_and_b32 s{s_wc}, s{s_wl}, 1')
    e(f's_mov_b32 s{s_mask}, 0xffff0000')
    e(f's_mov_b64 s[{s_ex}:{s_ex+1}], exec')
    e(f's_mul_i32 s{s_z1b}, s{s_cb}, 192')
    e(f's_add_u32 s{s_z2b}, s{s_z1b}, {768*2}')
    e(f's_cmp_ge_u32 s{s_w}, 8')
    e('s_cbranch_scc0 K1_AB')

    e.c('loader (4 waves; L = w&3 handles instr n = 4h + L of each stage)')
    stL = Stamper(); stL.n = 1; stL.mute = fused
    vP, vPr = 4, 5
    VX = 8
    VW = 12
    t = 30
    s_L = s_wl
    s_xs, s_ws_, s_lb = s_j, s_off, s_slot
    e(f's_lshl_b32 s{s_t0}, s{s_rb}, 6')
    e(f's_lshl_b32 s{s_t1}, s{s_L}, 3')
    e(f's_add_u32 s{s_t0}, s{s_t0}, s{s_t1}')
    e(f's_lshl_b32 s{s_lb}, s{s_L}, 10')
    e(f'v_lshrrev_b32 v{t}, 3, v{vLane}')
    e(f'v_add_u32 v{t+2}, s{s_t1}, v{t}')
    e(f'v_lshrrev_b32 v{t+1}, 1, v{t+2}')
    e(f'v_xor_b32 v{t+1}, v{t+1}, v{vLane}')
    e(f'v_and_b32 v{t+1}, 7, v{t+1}')
    e(f'v_lshlrev_b32 v{t+1}, 4, v{t+1}')
    e(f'v_add_u32 v{t}, s{s_t0}, v{t}')
    e(f'v_mul_u32_u24 v{t}, 1280, v{t}')
    e(f'v_add_u32 v{VX}, v{t}, v{t+1}')
    e(f'v_add_u32 v{VX+1}, {32*1280}, v{VX}')
    e('s_waitcnt lgkmcnt(0)')
    stL.stamp(e)
    srd(e, sX, P, S*D*2)
    srd(e, sW, P+8, D*F*2)
    cnt = [0]; done_at = {}
    s_rot = s_i
    e(f's_and_b32 s{s_t0}, s{s_rb}, 7')
    e(f's_and_b32 s{s_t1}, s{s_cb}, 3')
    e(f's_mul_i32 s{s_t1}, s{s_t1}, 3')
    e(f's_add_u32 s{s_rot}, s{s_t0}, s{s_t1}')
    e(f's_sub_u32 s{s_t0}, s{s_rot}, 10')
    e(f's_cmp_ge_u32 s{s_rot}, 10')
    e(f's_cselect_b32 s{s_rot}, s{s_t0}, s{s_rot}')
    def kslice(j, dst):
        e(f's_add_u32 s{dst}, s{s_rot}, {j % 10}')
        e(f's_sub_u32 s{s_t0}, s{dst}, 10')
        e(f's_cmp_ge_u32 s{dst}, 10')
        e(f's_cselect_b32 s{dst}, s{s_t0}, s{dst}')
    def issue_x(j):
        kslice(j, s_xs)
        e(f's_lshl_b32 s{s_xs}, s{s_xs}, 7')
        for h in range(2):
            e(f's_add_u32 m0, s{s_lb}, {XB0 + j*XST + 4096*h}')
            e('s_nop 0')
            e(f'buffer_load_dwordx4 v{VX+h}, s[{sX}:{sX+3}], s{s_xs} offen lds')
        cnt[0] += 2
    def issue_w(j):
        base = s_z2b if j < 10 else s_z1b
        kslice(j, s_ws_)
        e(f's_mul_i32 s{s_ws_}, s{s_ws_}, {64*3072}')
        e(f's_add_u32 s{s_ws_}, s{s_ws_}, s{base}')
        for h in range(3):
            e(f's_add_u32 m0, s{s_lb}, {(j % NSLOT)*WSLOT + 4096*h}')
            e('s_nop 0')
            e(f'buffer_load_dwordx4 v{VW+h}, s[{sW}:{sW+3}], s{s_ws_} offen lds')
        cnt[0] += 3
    for h in range(3):
        e(f's_lshl_b32 s{s_t0}, s{s_L}, 6')
        e(f's_add_u32 s{s_t0}, s{s_t0}, {64*4*h}')
        e(f'v_add_u32 v{t}, s{s_t0}, v{vLane}')
        e(f'v_mul_u32_u24 v{t+1}, 5462, v{t}')
        e(f'v_lshrrev_b32 v{t+1}, 16, v{t+1}')
        e(f'v_mul_u32_u24 v{t+2}, 12, v{t+1}')
        e(f'v_sub_u32 v{t+2}, v{t}, v{t+2}')
        e(f'v_lshrrev_b32 v{t+3}, 2, v{t+1}')
        e(f'v_and_b32 v{t+3}, 2, v{t+3}')
        e(f'v_xor_b32 v{t+2}, v{t+2}, v{t+3}')
        e(f'v_lshlrev_b32 v{t+2}, 4, v{t+2}')
        e(f'v_mul_u32_u24 v{t+1}, 3072, v{t+1}')
        e(f'v_add_u32 v{VW+h}, v{t+1}, v{t+2}')
    stL.stamp(e)
    issue_x(0)
    issue_w(0); done_at[0] = cnt[0]
    def issue(j):
        if j < 10: issue_x(j)
        issue_w(j)
        done_at[j] = cnt[0]
    def lbar(k):
        n = cnt[0] - done_at[k]
        e(f's_waitcnt vmcnt({min(n, 63)})'); bar('L')
    vK0 = 20
    sa, sb, sc = 46, 78, 79
    def setup_prep():
        e(f'v_mul_u32_u24 v{vPr}, 6554, v{vLane}')
        e(f'v_lshrrev_b32 v{vPr}, 16, v{vPr}')
        e(f'v_mul_u32_u24 v{vP}, 10, v{vPr}')
        e(f'v_sub_u32 v{vP}, v{vLane}, v{vP}')
        e(f'v_lshlrev_b32 v{vP}, 4, v{vP}')
        e(f'v_mul_u32_u24 v{t}, 1280, v{vPr}')
        e(f'v_add_u32 v{vP}, v{vP}, v{t}')
        srd(e, sK, P+2, S*D*2)
        srd(e, sV, P+4, S*D*2)
        e(f's_lshl_b32 s{s_t0}, s{s_rb}, 6')
        e(f's_mul_i32 s{s_t1}, s{s_L}, 6')
        e(f's_add_u32 s{s_t0}, s{s_t0}, s{s_t1}')
        e(f's_mul_i32 s{sa}, s{s_t0}, 1280')
        e(f's_mul_i32 s{s_t1}, s{s_cb}, 160')
        e(f's_add_u32 s{sa}, s{sa}, s{s_t1}')
        e(f's_mul_i32 s{sb}, s{s_L}, 960')
        e(f's_add_u32 s{sb}, s{sb}, {PREP}')
        e(f'v_mov_b32 v{vK0}, v{vP}')
        e(f's_sub_u32 s{sc}, s{sa}, {3*1280}')
        e(f's_cmp_eq_u32 s{s_t0}, 0')
        e('s_cbranch_scc0 K1_NONNEG')
        e(f'v_subrev_u32 v{vK0}, {3*1280}, v{vP}')
        e(f'v_cmp_gt_u32 vcc, 3, v{vPr}')
        e(f'v_mov_b32 v{t+1}, 0x80000000')
        e(f'v_cndmask_b32 v{vK0}, v{vK0}, v{t+1}, vcc')
        e(f's_mov_b32 s{sc}, s{sa}')
        e.label('K1_NONNEG')
        srd(e, sT, P+6, D*4*2)
        e(f'v_lshlrev_b32 v21, 4, v{vLane}')
        e(f's_mul_i32 s54, s{s_cb}, 640')
    def issue_prep():
        set_exec(e, 0xffffffff, 0x0fffffff)
        for n in range(3):
            e(f's_add_u32 m0, s{sb}, {n*3840}')
            e('s_nop 0')
            e(f'buffer_load_dwordx4 v{vK0 if n == 0 else vP}, s[{sK}:{sK+3}], s{sc} offen lds')
            e(f's_add_u32 m0, s{sb}, {n*3840 + PREPV}')
            e('s_nop 0')
            e(f'buffer_load_dwordx4 v{vP}, s[{sV}:{sV+3}], s{sa} offen lds')
            e(f's_add_u32 s{sa}, s{sa}, {24*1280}')
            e(f's_sub_u32 s{sc}, s{sa}, {3*1280}')
        e(f's_mov_b64 exec, s[{s_ex}:{s_ex+1}]')
        e(f'buffer_load_dwordx4 v[156:159], v21, s[{sT}:{sT+3}], s54 offen')
        cnt[0] += 7
    def prefetch_tail():
        e(f'v_lshlrev_b32 v{t}, 6, v{vLane}')
        e(f's_and_b32 s{s_t0}, s2, 7')
        e(f's_lshl_b32 s{s_t0}, s{s_t0}, 8')
        e(f's_lshr_b32 s{s_t1}, s2, 3')
        e(f's_lshl_b32 s{s_t1}, s{s_t1}, 3')
        e(f's_add_u32 s{s_t0}, s{s_t0}, s{s_t1}')
        e(f's_lshl_b32 s{s_t1}, s{s_L}, 1')
        e(f's_add_u32 s{s_t0}, s{s_t0}, s{s_t1}')
        e(f's_lshl_b32 s{s_t0}, s{s_t0}, 12')
        srd(e, sK, P+18, S*S*2)
        for r in range(2):
            e(f'buffer_load_dword v{t+1+r}, v{t}, s[{sK}:{sK+3}], s{s_t0} offen')
            e(f's_add_u32 s{s_t0}, s{s_t0}, 4096')
        srd(e, sV, P+20, D*S*2)
        e(f's_mul_i32 s{s_t0}, s2, 3')
        e(f's_add_u32 s{s_t0}, s{s_t0}, s{s_L}')
        e(f's_lshl_b32 s{s_t0}, s{s_t0}, 12')
        e(f's_cmp_eq_u32 s{s_L}, 3')
        e(f's_cselect_b32 s{s_t0}, 0x80000000, s{s_t0}')
        e(f'buffer_load_dword v{t+5}, v{t}, s[{sV}:{sV+3}], s{s_t0} offen')
        cnt[0] += 3
    xs = {1: [1, 2], 2: [3, 4], 3: [5, 6], 4: [7, 8], 5: [9]}
    wn = 1
    if os.environ.get('UP1', '1') == '1':
        issue_x(1); issue_w(1); done_at[1] = cnt[0]; wn = 2
        xs = {1: [2, 3], 2: [4, 5], 3: [6, 7], 4: [8, 9]}
    for k in range(20):
        if k >= 1:
            lim = {1: 3 if os.environ.get('UP1', '1') == '1' else 2, 2: 4}.get(k, min(19, k + 2 if k <= 5 else k + 3))
            todo_x = list(xs.get(k, []))
            while wn <= lim or todo_x:
                if todo_x: issue_x(todo_x.pop(0))
                if wn <= lim:
                    issue_w(wn); done_at[wn] = cnt[0]; wn += 1
                    if wn == 20: issue_prep()
        if k == 11: setup_prep()
        lbar(k)
        if k in (0, 1): stL.stamp(e)
    assert wn == 20
    bar('L'); bar('L')
    H.l2_pre(e)
    e('s_waitcnt vmcnt(12)')
    bar('L')
    SKL = 156; KR = 40; VRr = 59; KP = 76; CP = 114; KVP = 122; OUT = 40
    vt = 30
    e(f's_mul_i32 s{s_t0}, s{s_wl}, {16*160}')
    e(f's_add_u32 s{s_t0}, s{s_t0}, {PREP}')
    e(f'v_lshlrev_b32 v{vt}, 2, v{vLane}')
    e(f'v_min_u32 v{vt}, 156, v{vt}')
    e(f'v_add_u32 v{vt}, s{s_t0}, v{vt}')
    for r in range(19):
        e(f'ds_read_b32 v{KR+r}, v{vt} offset:{r*160}')
        if r == 13: e('s_waitcnt lgkmcnt(6)')
    for r in range(16):
        if r in (2, 10): e('s_waitcnt lgkmcnt(6)')
        e(f'ds_read_b32 v{VRr+r}, v{vt} offset:{PREPV + r*160}')
    e(f'v_lshlrev_b32 v{CP+0}, 16, v{SKL+0}'); e(f'v_lshlrev_b32 v{CP+1}, 16, v{SKL+2}')
    e(f'v_and_b32 v{CP+2}, s{s_mask}, v{SKL+0}'); e(f'v_and_b32 v{CP+3}, s{s_mask}, v{SKL+2}')
    e(f'v_lshlrev_b32 v{CP+4}, 16, v{SKL+1}'); e(f'v_lshlrev_b32 v{CP+5}, 16, v{SKL+3}')
    e(f'v_and_b32 v{CP+6}, s{s_mask}, v{SKL+1}'); e(f'v_and_b32 v{CP+7}, s{s_mask}, v{SKL+3}')
    e('s_waitcnt lgkmcnt(12)')
    for r in range(19):
        if r == 12: e('s_waitcnt lgkmcnt(0)')
        e(f'v_lshlrev_b32 v{KP+2*r}, 16, v{KR+r}')
        e(f'v_and_b32 v{KP+2*r+1}, s{s_mask}, v{KR+r}')
    for i in range(16):
        t_ = KVP + 2*i
        e(f'v_pk_mul_f32 v[{t_}:{t_+1}], v[{CP+6}:{CP+7}], v[{KP+2*i}:{KP+2*i+1}]')
        e(f'v_lshlrev_b32 v{vt+2}, 16, v{VRr+i}')
        e(f'v_pk_fma_f32 v[{t_}:{t_+1}], v[{CP+4}:{CP+5}], v[{KP+2*i+2}:{KP+2*i+3}], v[{t_}:{t_+1}]')
        e(f'v_and_b32 v{vt+3}, s{s_mask}, v{VRr+i}')
        e(f'v_pk_fma_f32 v[{t_}:{t_+1}], v[{CP+2}:{CP+3}], v[{KP+2*i+4}:{KP+2*i+5}], v[{t_}:{t_+1}]')
        e(f'v_pk_fma_f32 v[{t_}:{t_+1}], v[{CP+0}:{CP+1}], v[{KP+2*i+6}:{KP+2*i+7}], v[{t_}:{t_+1}]')
        e(f'v_pk_mul_f32 v[{t_}:{t_+1}], v[{t_}:{t_+1}], v[{vt+2}:{vt+3}]')
    for dd in range(2):
        for g in range(2):
            for n in range(4):
                lo = KVP + 2*(8*g + 7 - 2*n) + dd
                hi = KVP + 2*(8*g + 6 - 2*n) + dd
                e(f'v_cvt_pk_bf16_f32 v{OUT + dd*8 + g*4 + n}, v{lo}, v{hi}')
    e(f'v_mul_u32_u24 v{vt}, {2*KVP_}, v{vLane}')
    e(f's_lshl_b32 s{s_t0}, s{s_wl}, 5')
    e(f's_add_u32 s{s_t0}, s{s_t0}, {KVS}')
    e(f'v_add_u32 v{vt}, s{s_t0}, v{vt}')
    set_exec(e, 0xffffffff, 0xff)
    for dd in range(2):
        for g in range(2):
            o = OUT + dd*8 + g*4
            e(f'ds_write_b128 v{vt}, v[{o}:{o+3}] offset:{dd*KVP_ + g*16}')
    e(f's_mov_b64 exec, s[{s_ex}:{s_ex+1}]')
    e('s_waitcnt lgkmcnt(0)')
    H.after_L(e, bar)
    if STAMPS and not fused:
        srd(e, sWS, P+14, WS_SIZE) if False else None
        e(f's_load_dwordx2 s[{P+14}:{P+15}], s[0:1], 104')
        e('s_waitcnt lgkmcnt(0)')
        srd(e, sWS, P+14, WS_SIZE)
        stL.flush(e, 3, sWS, t, s_wl)
    if not fused: e('s_endpgm')

    e.label('K1_AB')
    e(f'v_lshrrev_b32 v{vT+3}, 1, v{vL15}')
    e(f'v_xor_b32 v{vT+3}, v{vT+3}, v{vQ}')
    e(f'v_lshlrev_b32 v{vT+3}, 4, v{vT+3}')
    e(f'v_lshlrev_b32 v{vT+4}, 7, v{vL15}')
    e(f'v_add_u32 v{vT+3}, v{vT+3}, v{vT+4}')
    e(f'v_xor_b32 v{vT+4}, 64, v{vT+3}')
    e(f's_lshl_b32 s{s_t0}, s{s_wr}, 12')
    e(f's_lshl_b32 s{s_t1}, s{s_wc}, 11')
    e(f's_add_u32 s{s_t2}, s{s_t0}, s{s_t1}')
    e(f's_add_u32 s{s_t2}, s{s_t2}, {XB0}')
    e(f'v_add_u32 v{vXA}, s{s_t2}, v{vT+3}')
    e(f'v_add_u32 v{vXA+1}, s{s_t2}, v{vT+4}')
    e(f's_xor_b32 s{s_t1}, s{s_t1}, 2048')
    e(f's_add_u32 s{s_t2}, s{s_t0}, s{s_t1}')
    e(f's_add_u32 s{s_t2}, s{s_t2}, {XB0}')
    e(f'v_add_u32 v{vXB}, s{s_t2}, v{vT+3}')
    e(f'v_add_u32 v{vXB+1}, s{s_t2}, v{vT+4}')
    e(f'v_lshrrev_b32 v{vT+3}, 2, v{vLane}')
    e(f'v_and_b32 v{vT+3}, 3, v{vT+3}')
    e(f'v_lshlrev_b32 v{vT+4}, 3, v{vQ}')
    e(f'v_add_u32 v{vT+3}, v{vT+3}, v{vT+4}')
    e(f'v_mul_u32_u24 v{vT+3}, 192, v{vT+3}')
    e(f'v_and_b32 v{vT+4}, 3, v{vLane}')
    e(f'v_lshlrev_b32 v{vT+4}, 3, v{vT+4}')
    e(f'v_add_u32 v{vT+3}, v{vT+3}, v{vT+4}')
    e(f'v_and_b32 v{vT+5}, 1, v{vQ}')
    e(f's_mul_i32 s{s_t0}, s{s_wc}, 3')
    for ft in range(3):
        e(f's_add_u32 s{s_t1}, s{s_t0}, {ft}')
        e(f'v_xor_b32 v{vT+4}, s{s_t1}, v{vT+5}')
        e(f'v_lshlrev_b32 v{vT+4}, 5, v{vT+4}')
        e(f'v_add_u32 v{vW+ft}, v{vT+3}, v{vT+4}')
    e(f's_mov_b32 s{s_k2}, {hexf(K2c)}'); e(f's_mov_b32 s{s_k2+1}, {hexf(K2c)}')
    e(f's_mov_b32 s{s_one}, 1.0'); e(f's_mov_b32 s{s_one+1}, 1.0')
    e('s_waitcnt lgkmcnt(0)')
    srd(e, sWS, P+14, WS_SIZE)
    srd(e, sD, P+12, 256)
    e(f's_cmp_ge_u32 s{s_w}, 4')
    e('s_cbranch_scc1 K1_B')

    def rd_list(buf, ksl, xoff, woff):
        L = []
        L.append(f'ds_read_b128 v[{XF+buf*8}:{XF+buf*8+3}], v{vXA+ksl} offset:{xoff}')
        for ft in range(3):
            b = WF + buf*12 + ft*4
            L.append(f'ds_read_b64_tr_b16 v[{b}:{b+1}], v{vW+ft} offset:{woff+ksl*6144}')
            L.append(f'ds_read_b64_tr_b16 v[{b+2}:{b+3}], v{vW+ft} offset:{woff+ksl*6144+768}')
            if ft == 0:
                L.append(f'ds_read_b128 v[{XF+buf*8+4}:{XF+buf*8+7}], v{vXB+ksl} offset:{xoff}')
        return L
    def phase(buf, ksl, p, tag, nxt_reads):
        mf = []
        for ft in range(3):
            for T in range(2):
                a = ACC + (T*3+ft)*4
                x = f'v[{XF+buf*8+T*4}:{XF+buf*8+T*4+3}]'
                w = f'v[{WF+buf*12+ft*4}:{WF+buf*12+ft*4+3}]'
                if p == 1: mf.append(f'v_mfma_f32_16x16x32_bf16 v[{a}:{a+3}], {x}, {w}, v[{a}:{a+3}]')
                else:      mf.append(f'v_mfma_f32_16x16x32_bf16 v[{a}:{a+3}], {w}, {x}, v[{a}:{a+3}]')
        fills = [nxt_reads[0:2], nxt_reads[2:4], nxt_reads[4:6], nxt_reads[6:8], [], []]
        if p == 1 and not XP_NODOT:
            x = f'v[{XF+buf*8}:{XF+buf*8+3}]'
            mf.append(f'v_mfma_f32_16x16x32_bf16 v[{SUM}:{SUM+3}], v[{ONE}:{ONE+3}], {x}, v[{SUM}:{SUM+3}]')
            mf.append(f'v_mfma_f32_16x16x32_bf16 v[{GR}:{GR+3}], {x}, {x}, v[{GR}:{GR+3}]')
        if XP_NOCOMP == '2': fills = [[] for _ in fills]
        if XP_NOCOMP == '3': mf = ['s_nop 0'] * len(mf)
        weave(e, mf, fills)
        e(f's_cmp_eq_u32 s{s_wr}, {ksl}')
        e(f's_cbranch_scc0 K1_SK_{tag}')
        for ft in range(3):
            a = CS + ft*4
            w = f'v[{WF+buf*12+ft*4}:{WF+buf*12+ft*4+3}]'
            o = f'v[{ONE}:{ONE+3}]'
            if p == 1: e(f'v_mfma_f32_16x16x32_bf16 v[{a}:{a+3}], {o}, {w}, v[{a}:{a+3}]')
            else:      e(f'v_mfma_f32_16x16x32_bf16 v[{a}:{a+3}], {w}, {o}, v[{a}:{a+3}]')
        e.label(f'K1_SK_{tag}')
    def init_acc():
        for i in range(4): e(f'v_mov_b32 v{ONE+i}, 0x3f803f80')
        for i in range(24): e(f'v_mov_b32 v{ACC+i}, 0')
        for i in range(12): e(f'v_mov_b32 v{CS+i}, 0')
        for i in range(8): e(f'v_mov_b32 v{SUM+i}, 0')
    def loop(p, role):
        L = f'K1_LOOP{p}'
        if BARST:
            e('s_mov_b32 m0, 0'); e('s_memtime s[90:91]'); e('v_mov_b32 v150, 0')
        if XP_NOCOMP == '1':
            for _ in range(10): bar(role)
            return
        e(f's_mov_b32 s{s_i}, 0')
        for x in rd_list(0, 0, 0, 0): e(x)
        e.label(L)
        for u in range(5):
            e('s_waitcnt lgkmcnt(0)')
            phase(0, 0, p, f'{p}a{u}', rd_list(1, 1, u*XST, u*WSLOT))
            e('s_waitcnt lgkmcnt(0)')
            if BARST:
                e('v_writelane_b32 v150, s90, m0')
                e('s_add_u32 m0, m0, 1')
            e('s_barrier')
            if BARST: e('s_memtime s[90:91]')
            if u == 4:
                for r in (vXA, vXA+1, vXB, vXB+1):
                    e(f'v_add_u32 v{r}, {5*XST}, v{r}')
                nx = rd_list(0, 0, 0, 0)
            else:
                nx = rd_list(0, 0, (u+1)*XST, (u+1)*WSLOT)
            phase(1, 1, p, f'{p}b{u}', nx)
            if p == 2 and PREFETCH and (not fused or os.environ.get('TOUCH') == 'p2'):
                e(f's_and_b32 s{s_t0}, s46, 3')
                e(f's_cmp_eq_u32 s{s_t0}, s{s_wl}')
                e(f's_cbranch_scc0 K1_NT{u}')
                e('s_cmp_lt_u32 s46, 8')
                e(f's_cbranch_scc0 K1_NT{u}')
                e(f'buffer_load_dword v148, v144, s[{sK}:{sK+3}], s54 offen')
                e.label(f'K1_NT{u}')
                e('s_add_u32 s46, s46, 1')
                e('s_add_u32 s54, s54, 4096')
        e(f's_add_u32 s{s_i}, s{s_i}, 1')
        e(f's_cmp_lt_u32 s{s_i}, 2')
        e(f's_cbranch_scc1 {L}')
        nbar[role] += 10
        if BARST:
            e('s_waitcnt lgkmcnt(0)')
            e('v_writelane_b32 v150, s90, m0')
            e(f's_lshl_b32 s{s_t0}, s2, 3'); e(f's_add_u32 s{s_t0}, s{s_t0}, s{s_w}'); e(f's_lshl_b32 s{s_t0}, s{s_t0}, 6')
            e(f's_add_u32 s{s_t0}, s{s_t0}, {TSB + 3*0x40000}')
            e(f'v_lshlrev_b32 v151, 2, v{vLane}')
            set_exec(e, 0xffff, 0)
            e(f'buffer_store_dword v150, v151, s[{sWS}:{sWS+3}], s{s_t0} offen')
            e(f's_mov_b64 exec, s[{s_ex}:{s_ex+1}]')
    K1V = E + 0
    G = E + 2
    def gelu_pair_sc(t, u):
        for h in range(2):
            e(f'v_mul_f32 v{u+h}, v{t+h}, v{t+h}')
        for h in range(2):
            e(f'v_fma_f32 v{u+h}, v{u+h}, s{s_k2}, v{K1V}')
        for h in range(2):
            e(f'v_mul_f32 v{u+h}, v{u+h}, v{t+h}')
        for h in range(2):
            e(f'v_exp_f32 v{u+h}, v{u+h}')
        for h in range(2):
            e(f'v_add_f32 v{u+h}, 1.0, v{u+h}')
        for h in range(2):
            e(f'v_rcp_f32 v{u+h}, v{u+h}')
        for h in range(2):
            e(f'v_mul_f32 v{u+h}, v{u+h}, v{t+h}')
    def gelu_pair(t, u):
        e(f'v_pk_mul_f32 v[{u}:{u+1}], v[{t}:{t+1}], v[{t}:{t+1}]')
        e(f'v_pk_fma_f32 v[{u}:{u+1}], v[{u}:{u+1}], s[{s_k2}:{s_k2+1}], v[{K1V}:{K1V+1}]')
        e(f'v_pk_mul_f32 v[{u}:{u+1}], v[{u}:{u+1}], v[{t}:{t+1}]')
        e(f'v_exp_f32 v{u}, v{u}')
        e(f'v_exp_f32 v{u+1}, v{u+1}')
        e(f'v_pk_add_f32 v[{u}:{u+1}], v[{u}:{u+1}], s[{s_one}:{s_one+1}]')
        e(f'v_rcp_f32 v{u}, v{u}')
        e(f'v_rcp_f32 v{u+1}, v{u+1}')
        e(f'v_pk_mul_f32 v[{u}:{u+1}], v[{u}:{u+1}], v[{t}:{t+1}]')

    e.c('role A')
    init_acc()
    bar('A')
    stp.stamp(e)
    loop(1, 'A')
    stp.stamp(e)
    e.c('A epilogue')
    e('s_setprio 2')
    e(f's_lshl_b32 s{s_t0}, s{s_rb}, 2')
    e(f'v_mov_b32 v{vT+8}, s{s_t0}')
    PC = vT + 9
    e(f'v_and_b32 v{vT}, 3, v{vL15}')
    e(f'v_cmp_eq_u32 vcc, 1, v{vT}')
    e(f'v_cndmask_b32 v{GR}, v{GR}, v{GR+1}, vcc')
    e(f'v_cmp_eq_u32 vcc, 2, v{vT}')
    e(f'v_cndmask_b32 v{GR}, v{GR}, v{GR+2}, vcc')
    e(f'v_cmp_eq_u32 vcc, 3, v{vT}')
    e(f'v_cndmask_b32 v{GR}, v{GR}, v{GR+3}, vcc')
    ln_finalize(e, SUM, GR, D, vT+2, vT+3, vT+4, vT+5)
    e(f's_lshl_b32 s{s_t0}, s{s_wr}, 5')
    e(f's_lshl_b32 s{s_t1}, s{s_wc}, 4')
    e(f's_add_u32 s{s_t0}, s{s_t0}, s{s_t1}')
    e(f'v_add_u32 v{vT+4}, s{s_t0}, v{vL15}')
    e(f'v_lshlrev_b32 v{vT+5}, 2, v{vT+4}')
    e(f'v_add_u32 v{vT+5}, {L_M1}, v{vT+5}')
    set_exec(e, 0x00f0000f, 0xf0000f00)
    e(f'ds_write_b32 v{vT+5}, v{vT+2}')
    e(f'ds_write_b32 v{vT+5}, v{vT+3} offset:256')
    if fused: e('s_branch K1_NOST1X')
    e(f's_cmp_eq_u32 s{s_cb}, 0')
    e('s_cbranch_scc0 K1_NOST1X')
    e(f's_lshl_b32 s{s_t1}, s{s_rb}, 9')
    e(f's_add_u32 s{s_t1}, s{s_t1}, {ST1}')
    e(f'v_lshlrev_b32 v{vT+4}, 3, v{vT+4}')
    e(f'buffer_store_dwordx2 v[{vT+2}:{vT+3}], v{vT+4}, s[{sWS}:{sWS+3}], s{s_t1} offen {SC}')
    e.label('K1_NOST1X')
    e(f's_mov_b64 exec, s[{s_ex}:{s_ex+1}]')
    e(f's_mul_i32 s{s_t0}, s{s_wl}, 192')
    e(f's_add_u32 s{s_t0}, s{s_t0}, {L_CSA}')
    e(f'v_lshlrev_b32 v{vT+6}, 2, v{vL15}')
    e(f'v_add_u32 v{vT+6}, s{s_t0}, v{vT+6}')
    for ft in range(3):
        e(f'ds_write_b32 v{vT+6}, v{CS+ft*4} offset:{ft*64}')
    e('s_waitcnt lgkmcnt(0)')
    bar('A')
    e(f's_xor_b32 s{s_t1}, s{s_wl}, 2')
    e(f's_mul_i32 s{s_t1}, s{s_t1}, 192')
    e(f's_add_u32 s{s_t1}, s{s_t1}, {L_CSA}')
    e(f'v_lshlrev_b32 v{vT+4}, 2, v{vL15}')
    e(f'v_add_u32 v{vT+4}, s{s_t1}, v{vT+4}')
    NCS = E + 10
    for ft in range(3):
        e(f'ds_read_b32 v{NCS+2*ft}, v{vT+4} offset:{ft*64}')
    M1 = XF
    R1 = XF + 8
    e(f's_lshl_b32 s{s_t0}, s{s_wr}, 7')
    e(f's_lshl_b32 s{s_t1}, s{s_wc}, 6')
    e(f's_add_u32 s{s_t0}, s{s_t0}, s{s_t1}')
    e(f's_add_u32 s{s_t0}, s{s_t0}, {L_M1}')
    e(f'v_lshlrev_b32 v{vT+5}, 4, v{vQ}')
    e(f'v_add_u32 v{vT+5}, s{s_t0}, v{vT+5}')
    e(f'v_xor_b32 v{vT+6}, 64, v{vT+5}')
    e(f'ds_read_b128 v[{M1}:{M1+3}], v{vT+5}')
    e(f'ds_read_b128 v[{M1+4}:{M1+7}], v{vT+6}')
    e(f'ds_read_b128 v[{R1}:{R1+3}], v{vT+5} offset:256')
    e(f'ds_read_b128 v[{R1+4}:{R1+7}], v{vT+6} offset:256')
    e(f'v_mov_b32 v{K1V}, {hexf(K1c)}'); e(f'v_mov_b32 v{K1V+1}, {hexf(K1c)}')
    SA = WF
    for i in range(16): e(f'v_mov_b32 v{SA+i}, 0')
    e('s_waitcnt lgkmcnt(0)')
    for ft in range(3):
        e(f'v_add_f32 v{NCS+2*ft}, v{NCS+2*ft}, v{CS+ft*4}')
        e(f'v_sub_f32 v{NCS+2*ft}, 0, v{NCS+2*ft}')
    npair = 0
    for ft in range(3):
        for T in range(2):
            for p in range(2):
                a = ACC + (T*3+ft)*4 + 2*p
                n = NCS + 2*ft
                g = G + 4*p
                for h in range(2):
                    e(f'v_fma_f32 v{a+h}, v{M1+T*4+2*p+h}, v{n}, v{a+h}')
                for h in range(2):
                    e(f'v_mul_f32 v{a+h}, v{a+h}, v{R1+T*4+2*p+h}')
                gelu_pair_sc(a, g)
                e(f'v_cvt_pk_bf16_f32 v{AP+ft*4+T*2+p}, v{g}, v{g+1}')
                s_ = SA + T*4 + 2*p
                for h in range(2):
                    e(f'v_add_f32 v{s_+h}, v{s_+h}, v{g+h}')
                for h in range(2):
                    e(f'v_fma_f32 v{s_+8+h}, v{g+h}, v{g+h}, v{s_+8+h}')
                npair += 1
                if npair in (2, 5, 7, 10, 12): bar('A')
    for k, sh in enumerate((8, 4, 2, 1)):
        for i in range(16):
            e(f'v_add_f32_dpp v{SA+i}, v{SA+i}, v{SA+i} row_ror:{sh} row_mask:0xf bank_mask:0xf')
    e(f's_lshl_b32 s{s_t0}, s{s_wc}, 8')
    e(f's_add_u32 s{s_t0}, s{s_t0}, {L_PS - L_M1}')
    e(f'v_add_u32 v{vT+5}, s{s_t0}, v{vT+5}')
    e(f'v_add_u32 v{vT+6}, s{s_t0}, v{vT+6}')
    set_exec(e, 0x00010001, 0x00010001)
    e(f'ds_write_b128 v{vT+5}, v[{SA}:{SA+3}]')
    e(f'ds_write_b128 v{vT+6}, v[{SA+4}:{SA+7}]')
    e(f'ds_write_b128 v{vT+5}, v[{SA+8}:{SA+11}] offset:{L_PQ-L_PS}')
    e(f'ds_write_b128 v{vT+6}, v[{SA+12}:{SA+15}] offset:{L_PQ-L_PS}')
    e(f's_mov_b64 exec, s[{s_ex}:{s_ex+1}]')
    e('s_waitcnt lgkmcnt(0)')
    bar('A')
    e(f's_cmp_eq_u32 s{s_w}, 0')
    e('s_cbranch_scc0 K1_NOPUB')
    e(f'v_lshlrev_b32 v{vT}, 2, v{vLane}')
    e(f'v_add_u32 v{vT}, {L_PS}, v{vT}')
    e(f'ds_read_b32 v{vT+2}, v{vT}')
    e(f'ds_read_b32 v{vT+4}, v{vT} offset:256')
    e(f'ds_read_b32 v{vT+3}, v{vT} offset:{L_PQ-L_PS}')
    e(f'ds_read_b32 v{vT+5}, v{vT} offset:{L_PQ-L_PS+256}')
    e(f's_lshl_b32 s{s_t0}, s{s_rb}, 3')
    e(f's_add_u32 s{s_t0}, s{s_t0}, s{s_cb}')
    e(f's_lshl_b32 s{s_t0}, s{s_t0}, 9')
    e(f's_add_u32 s{s_t0}, s{s_t0}, {XCH}')
    e(f'v_lshlrev_b32 v{vT+1}, 3, v{vLane}')
    e('s_waitcnt lgkmcnt(0)')
    e(f'v_add_f32 v{vT+2}, v{vT+2}, v{vT+4}')
    e(f'v_add_f32 v{vT+3}, v{vT+3}, v{vT+5}')
    e(f'v_max_f32 v{vT+3}, 0, v{vT+3}')
    e(f'buffer_store_dwordx2 v[{vT+2}:{vT+3}], v{vT+1}, s[{sWS}:{sWS+3}], s{s_t0} offen sc1')
    e.label('K1_NOPUB')
    stp.stamp(e)
    e(f's_mul_i32 s{s_t0}, s{s_cb}, 6')
    e(f's_mul_i32 s{s_t1}, s{s_wc}, 3')
    e(f's_add_u32 s{s_t0}, s{s_t0}, s{s_t1}')
    e(f's_lshl_b32 s{s_t0}, s{s_t0}, 6')
    e(f's_lshl_b32 s{s_t1}, s{s_rb}, 1')
    e(f's_add_u32 s{s_t0}, s{s_t0}, s{s_t1}')
    e(f's_add_u32 s{s_t0}, s{s_t0}, s{s_wr}')
    e(f's_lshl_b32 s{s_t0}, s{s_t0}, 10')
    e(f's_add_u32 s{s_off}, s{s_t0}, {Z2F}')
    e(f'v_and_b32 v{vT+7}, 1, v{vQ}')
    e(f'v_lshlrev_b32 v{vT+7}, 1, v{vT+7}')
    e(f'v_lshrrev_b32 v{vT+10}, 1, v{vQ}')
    e(f'v_or_b32 v{vT+7}, v{vT+7}, v{vT+10}')
    e(f's_lshl_b32 s{s_t1}, s{s_wc}, 1')
    e(f'v_xor_b32 v{vT+7}, s{s_t1}, v{vT+7}')
    e(f'v_lshlrev_b32 v{vT+7}, 4, v{vT+7}')
    e(f'v_add_u32 v{vT+7}, v{vT+7}, v{vL15}')
    e(f'v_lshlrev_b32 v{vT+7}, 4, v{vT+7}')
    e(f'v_and_b32 v{vT+10}, 31, v{vLane}')
    e(f's_lshl_b32 s{s_j}, s{s_wr}, 5')
    e(f'v_add_u32 v{vT+10}, s{s_j}, v{vT+10}')
    e(f'v_lshlrev_b32 v{vT+10}, 3, v{vT+10}')
    e(f's_lshl_b32 s{s_j}, s{s_rb}, 12')
    e(f's_add_u32 s{s_j}, s{s_j}, {XCH}')
    e(f'buffer_load_dword v{PC}, v{vT+8}, s[{sD}:{sD+3}], 0 offen sc1')
    bar('A'); bar('A'); bar('A')
    e('s_waitcnt vmcnt(0)')
    e('s_mov_b32 s54, 0')
    e.label('K1_CCHK')
    e(f'v_readfirstlane_b32 s{s_t0}, v{PC}')
    e(f's_cmp_ge_u32 s{s_t0}, 8')
    e('s_cbranch_scc1 K1_COK')
    e('s_add_u32 s54, s54, 1')
    e('s_cmp_lt_u32 s54, 0x200000')
    e('s_cbranch_scc0 K1_COK')
    e('s_sleep 4')
    e(f'buffer_load_dword v{PC}, v{vT+8}, s[{sD}:{sD+3}], 0 offen sc1')
    e('s_waitcnt vmcnt(0)')
    e('s_branch K1_CCHK')
    e.label('K1_COK')
    XP = WF + 2
    for c in range(8):
        e(f'buffer_load_dwordx2 v[{XP+2*c}:{XP+2*c+1}], v{vT+10}, s[{sWS}:{sWS+3}], s{s_j} offen offset:{c*512} sc1')
    bar('A')
    e('s_setprio 0')
    bar('A')
    e('s_waitcnt vmcnt(0)')
    e('s_mov_b32 s54, 0')
    e.label('K1_CHECK')
    e(f's_mov_b32 s{s_t0}, {hex(SENT)}')
    e(f'v_cmp_eq_u32 vcc, s{s_t0}, v{XP+1}')
    for c in range(1, 8):
        e(f'v_cmp_eq_u32 s[{P}:{P+1}], s{s_t0}, v{XP+2*c+1}')
        e(f's_or_b64 vcc, vcc, s[{P}:{P+1}]')
    e('s_cmp_eq_u64 vcc, 0')
    e('s_cbranch_scc1 K1_POLLED')
    e('s_add_u32 s54, s54, 1')
    e('s_cmp_lt_u32 s54, 0x200000')
    e('s_cbranch_scc0 K1_POLLED')
    for c in range(8):
        e(f'buffer_load_dwordx2 v[{XP+2*c}:{XP+2*c+1}], v{vT+10}, s[{sWS}:{sWS+3}], s{s_j} offen offset:{c*512} sc1')
    e('s_waitcnt vmcnt(0)')
    e('s_branch K1_CHECK')
    e.label('K1_POLLED')
    stp.stamp(e)
    for c in range(1, 8):
        e(f'v_pk_add_f32 v[{XP}:{XP+1}], v[{XP}:{XP+1}], v[{XP+2*c}:{XP+2*c+1}]')
    ln_finalize(e, XP, XP+1, FH, vT+2, vT+3, vT+4, vT+5)
    e(f'v_mul_f32 v{vT+2}, v{vT+2}, v{vT+3}')
    e(f'v_sub_f32 v{vT+2}, 0, v{vT+2}')
    e(f's_lshl_b32 s{s_t0}, s{s_wl}, 8')
    e(f's_add_u32 s{s_t0}, s{s_t0}, {L_W2}')
    e(f'v_and_b32 v{vT+4}, 31, v{vLane}')
    e(f'v_lshlrev_b32 v{vT+4}, 2, v{vT+4}')
    e(f'v_add_u32 v{vT+4}, s{s_t0}, v{vT+4}')
    e(f'ds_write_b32 v{vT+4}, v{vT+2}')
    e(f'ds_write_b32 v{vT+4}, v{vT+3} offset:128')
    e(f's_lshl_b32 s{s_t1}, s{s_wc}, 6')
    e(f's_add_u32 s{s_t0}, s{s_t0}, s{s_t1}')
    e(f'v_lshlrev_b32 v{vT+5}, 4, v{vQ}')
    e(f'v_add_u32 v{vT+5}, s{s_t0}, v{vT+5}')
    e(f'v_xor_b32 v{vT+6}, 64, v{vT+5}')
    e('s_waitcnt lgkmcnt(0)')
    e(f'ds_read_b128 v[{M1}:{M1+3}], v{vT+5}')
    e(f'ds_read_b128 v[{M1+4}:{M1+7}], v{vT+6}')
    e(f'ds_read_b128 v[{R1}:{R1+3}], v{vT+5} offset:128')
    e(f'ds_read_b128 v[{R1+4}:{R1+7}], v{vT+6} offset:128')
    e('s_waitcnt lgkmcnt(0)')
    for ft in range(3):
        for T in range(2):
            for p in range(2):
                a = AP + ft*4 + T*2 + p
                g = G + 4*p
                e(f'v_lshlrev_b32 v{g}, 16, v{a}')
                e(f'v_and_b32 v{g+1}, s{s_mask}, v{a}')
                e(f'v_pk_fma_f32 v[{g}:{g+1}], v[{g}:{g+1}], v[{R1+T*4+2*p}:{R1+T*4+2*p+1}], v[{M1+T*4+2*p}:{M1+T*4+2*p+1}]')
                e(f'v_cvt_pk_bf16_f32 v{a}, v{g}, v{g+1}')
        b = AP + ft*4
        e(f'v_permlane16_swap_b32 v{b}, v{b+2}')
        e(f'v_permlane16_swap_b32 v{b+1}, v{b+3}')
        e(f's_add_u32 s{s_t1}, s{s_off}, {ft*65536}')
        e(f'buffer_store_dwordx4 v[{b}:{b+3}], v{vT+7}, s[{sWS}:{sWS+3}], s{s_t1} offen sc1')
    if fused:
        H.after_A(e, stp, bar)
    else:
        stp.flush(e, 0, sWS, vT, s_w)
        e('s_endpgm')

    e.label('K1_B')
    e.c('role B')
    stB = Stamper(); stB.n = 1; stB.mute = fused and os.environ.get('P1ST') != '1'
    SK = 160; WR = 152; WO = 164
    e(f's_cmp_eq_u32 s{s_w}, 4')
    e('s_cbranch_scc0 K1_NORST')
    e(f's_lshl_b32 s{s_t0}, s{s_rb}, 3')
    e(f's_add_u32 s{s_t0}, s{s_t0}, s{s_cb}')
    e(f's_lshl_b32 s{s_t0}, s{s_t0}, 9')
    e(f's_add_u32 s{s_t0}, s{s_t0}, {XCH}')
    e(f'v_lshlrev_b32 v{vT+1}, 3, v{vLane}')
    e(f'v_mov_b32 v{vT+6}, 0')
    e(f'v_mov_b32 v{vT+7}, {hex(SENT)}')
    e(f'buffer_store_dwordx2 v[{vT+6}:{vT+7}], v{vT+1}, s[{sWS}:{sWS+3}], s{s_t0} offen sc1')
    if fused:
        H.flag_addr(e, vT+1, vT+2)
        set_exec(e, 15, 0)
        e(f'buffer_store_dword v{vT+6}, v{vT+1}, s[{sWS}:{sWS+3}], 0 offen sc1')
        e(f's_mov_b64 exec, s[{s_ex}:{s_ex+1}]')
    e.label('K1_NORST')
    DUM = 140
    vTP = 144; vKV = 145; s_tpw = 54; s_tps = 46; s_kv = 78
    e(f's_lshl_b32 s{s_t0}, s2, 2')
    e(f's_add_u32 s{s_t0}, s{s_t0}, s{s_wl}')
    e(f's_mul_i32 s{s_t1}, s{s_t0}, 2731')
    e(f's_lshr_b32 s{s_t1}, s{s_t1}, 16')
    e(f's_mul_i32 s{s_t2}, s{s_t1}, 24')
    e(f's_sub_u32 s{s_t2}, s{s_t0}, s{s_t2}')
    e(f's_mov_b32 s{P+16}, s{s_t0}')
    e(f'v_mul_u32_u24 v{vT+3}, {4*1280}, v{vQ}')
    e(f'v_lshlrev_b32 v{vT+4}, 1, v{vL15}')
    e(f'v_add_u32 v{vT+3}, v{vT+3}, v{vT+4}')
    e(f's_lshl_b32 s{s_t1}, s{s_t1}, 5')
    e(f's_mul_i32 s{s_t2}, s{s_t2}, {32*1280}')
    e(f's_add_u32 s{s_t1}, s{s_t1}, s{s_t2}')
    e(f's_add_u32 s{s_t2}, s{s_t1}, {16*1280}')
    bar('B')
    stB.stamp(e)
    srd(e, sT, P+10, FH*D*2)
    for j in range(8):
        so = s_t1 if j < 4 else s_t2
        e(f'buffer_load_ushort v{WR + j}, v{vT+3}, s[{sT}:{sT+3}], s{so} offen offset:{(j%4)*1280}')
    for k in range(1, 10):
        if PREFETCH and k == 9:
            e(f'v_lshlrev_b32 v{vTP}, 6, v{vLane}')
            e(f's_and_b32 s{s_tpw}, s2, 7')
            e(f's_lshl_b32 s{s_tpw}, s{s_tpw}, 8')
            e(f's_lshr_b32 s{s_off}, s2, 3')
            e(f's_lshl_b32 s{s_off}, s{s_off}, 3')
            e(f's_add_u32 s{s_tpw}, s{s_tpw}, s{s_off}')
            e(f's_lshl_b32 s{s_tpw}, s{s_tpw}, 12')
            srd(e, sK, P+18, S*S*2)
            e('s_mov_b32 s46, 0')
        if k == 3:
            e(f's_cmp_eq_u32 s{s_w}, 4')
            e('s_cbranch_scc0 K1_NOCNT')
            e('s_waitcnt vmcnt(8)')
            e(f's_lshl_b32 s{s_off}, s{s_rb}, 2')
            e(f'v_mov_b32 v{vT+6}, s{s_off}')
            e(f'v_mov_b32 v{vT+7}, 1')
            set_exec(e, 1, 0)
            e(f'buffer_atomic_add v{vT+7}, v{vT+6}, s[{sD}:{sD+3}], 0 offen sc1')
            e(f's_mov_b64 exec, s[{s_ex}:{s_ex+1}]')
            e.label('K1_NOCNT')
        if k == 9:
            e(f's_cmp_ge_u32 s{P+16}, 960')
            e('s_cbranch_scc1 K1_NOWOF')
            e('s_waitcnt vmcnt(0)')
            for j in range(4):
                e(f'v_lshl_or_b32 v{WO+j}, v{WR+2*j+1}, 16, v{WR+2*j}')
            e(f'v_lshlrev_b32 v{vT+3}, 4, v{vLane}')
            e(f's_lshl_b32 s{s_t0}, s{P+16}, 10')
            e(f's_add_u32 s{s_t0}, s{s_t0}, {WOF}')
            e(f'buffer_store_dwordx4 v[{WO}:{WO+3}], v{vT+3}, s[{sWS}:{sWS+3}], s{s_t0} offen {SC if fused else STF_EARLY}')
            e.label('K1_NOWOF')
        bar('B')
    init_acc()
    bar('B')
    stB.stamp(e)
    loop(2, 'B')
    stB.stamp(e)
    e.c('B epilogue')
    e(f's_mul_i32 s{s_t0}, s{s_wl}, 192')
    e(f's_add_u32 s{s_t0}, s{s_t0}, {L_CSB}')
    e(f'v_lshlrev_b32 v{vT+4}, 4, v{vQ}')
    e(f'v_add_u32 v{vT+5}, s{s_t0}, v{vT+4}')
    set_exec(e, 0x00010001, 0x00010001)
    for ft in range(3):
        e(f'ds_write_b128 v{vT+5}, v[{CS+ft*4}:{CS+ft*4+3}] offset:{ft*64}')
    e(f's_mov_b64 exec, s[{s_ex}:{s_ex+1}]')
    e(f'v_mov_b32 v{K1V}, {hexf(K1c)}'); e(f'v_mov_b32 v{K1V+1}, {hexf(K1c)}')
    e('s_waitcnt lgkmcnt(0)')
    bar('B')
    if fused: H.conv_early(e)
    e(f's_xor_b32 s{s_t1}, s{s_wl}, 2')
    e(f's_mul_i32 s{s_t1}, s{s_t1}, 192')
    e(f's_add_u32 s{s_t1}, s{s_t1}, {L_CSB}')
    e(f'v_add_u32 v{vT+5}, s{s_t1}, v{vT+4}')
    NC2 = XF
    for ft in range(3):
        e(f'ds_read_b128 v[{NC2+ft*4}:{NC2+ft*4+3}], v{vT+5} offset:{ft*64}')
    MR = WF
    e(f's_lshl_b32 s{s_t0}, s{s_wr}, 7')
    e(f's_lshl_b32 s{s_t1}, s{s_wc}, 6')
    e(f's_add_u32 s{s_t0}, s{s_t0}, s{s_t1}')
    e(f's_add_u32 s{s_t0}, s{s_t0}, {L_M1}')
    e(f'v_lshlrev_b32 v{vT+6}, 2, v{vL15}')
    e(f'v_add_u32 v{vT+6}, s{s_t0}, v{vT+6}')
    e(f'v_xor_b32 v{vT+7}, 64, v{vT+6}')
    e(f'ds_read_b32 v{MR+0}, v{vT+6}')
    e(f'ds_read_b32 v{MR+2}, v{vT+7}')
    e(f'ds_read_b32 v{MR+4}, v{vT+6} offset:256')
    e(f'ds_read_b32 v{MR+6}, v{vT+7} offset:256')
    e(f's_lshl_b32 s{s_t0}, s{s_rb}, 2')
    e(f's_lshl_b32 s{s_t1}, s{s_wr}, 1')
    e(f's_add_u32 s{s_t0}, s{s_t0}, s{s_t1}')
    e(f's_add_u32 s{s_t1}, s{s_t0}, s{s_wc}')
    e(f's_xor_b32 s{s_t2}, s{s_t1}, 1')
    e(f's_mul_i32 s{s_off}, s{s_cb}, 6')
    e(f's_mul_i32 s{s_j}, s{s_wc}, 3')
    e(f's_add_u32 s{s_off}, s{s_off}, s{s_j}')
    e(f's_mul_i32 s{s_t1}, s{s_t1}, 48')
    e(f's_add_u32 s{s_t1}, s{s_t1}, s{s_off}')
    e(f's_lshl_b32 s{s_t1}, s{s_t1}, 9')
    e(f's_add_u32 s{s_t1}, s{s_t1}, {Z1F}')
    e(f's_mul_i32 s{s_t2}, s{s_t2}, 48')
    e(f's_add_u32 s{s_t2}, s{s_t2}, s{s_off}')
    e(f's_lshl_b32 s{s_t2}, s{s_t2}, 9')
    e(f's_add_u32 s{s_t2}, s{s_t2}, {Z1F}')
    e(f'v_lshlrev_b32 v{vT+6}, 3, v{vLane}')
    if fused:
        e(f's_lshl_b32 s{s_j}, s{s_wr}, 1')
        e(f's_add_u32 s{s_j}, s{s_j}, s{s_wc}')
        e(f's_mul_i32 s{s_off}, s{s_j}, 3072')
        e(f's_mul_i32 s{s_t0}, s{s_wc}, 1536')
        e(f's_add_u32 s{s_off}, s{s_off}, s{s_t0}')
        e(f's_add_u32 s{s_off}, s{s_off}, {Z1L}')
        e(f'v_add_u32 v{vT+8}, s{s_off}, v{vT+6}')
        e(f's_xor_b32 s{s_j}, s{s_j}, 1')
        e(f's_mul_i32 s{s_off}, s{s_j}, 3072')
        e(f's_add_u32 s{s_off}, s{s_off}, s{s_t0}')
        e(f's_add_u32 s{s_off}, s{s_off}, {Z1L}')
        e(f'v_add_u32 v{vT+9}, s{s_off}, v{vT+6}')
    e('s_waitcnt lgkmcnt(0)')
    for i in range(12):
        e(f'v_add_f32 v{NC2+i}, v{NC2+i}, v{CS+i}')
        e(f'v_sub_f32 v{NC2+i}, 0, v{NC2+i}')
    ZO = AP
    for T in range(2):
        for ft in range(3):
            for p in range(2):
                a = ACC + (T*3+ft)*4 + 2*p
                n = NC2 + ft*4 + 2*p
                m = MR + 2*T; r = MR + 4 + 2*T
                g = G + 4*p
                e(f'v_pk_fma_f32 v[{a}:{a+1}], v[{n}:{n+1}], v[{m}:{m+1}], v[{a}:{a+1}] op_sel_hi:[1,0,1]')
                e(f'v_pk_mul_f32 v[{a}:{a+1}], v[{a}:{a+1}], v[{r}:{r+1}] op_sel_hi:[1,0]')
                gelu_pair(a, g)
                e(f'v_cvt_pk_bf16_f32 v{ZO+(T*3+ft)*2+p}, v{g}, v{g+1}')
            so = s_t1 if T == 0 else s_t2
            z = ZO + (T*3+ft)*2
            if fused:
                e(f'ds_write_b64 v{vT+8+T}, v[{z}:{z+1}] offset:{ft*512}')
            else:
                e(f'buffer_store_dwordx2 v[{z}:{z+1}], v{vT+6}, s[{sWS}:{sWS+3}], s{so} offen offset:{ft*512} {STF_EARLY}')
        if T == 0: bar('B')
    if fused:
        H.after_B(e, stB, bar)
    if not fused: stB.flush(e, 0, sWS, vT, s_w)
    e.label('K1_END')
    e('s_endpgm')
    if fused: return nbar
    print('k1 barriers', nbar)
    assert nbar['A'] == nbar['B'] == nbar['L'], nbar
    nn = e.finalize()
    return kernel_wrap('k1_kernel', e.text(), vgpr=168, sgpr=96), nn
```

```python
from common import *
import k1 as K1
import k3b as K3
import os
HCP = 4160
CW_U = 4 * HCP
CW_SZ = CW_U + 512 + 4096
CONV0 = 65536
Z1L = K1.Z1L
LDSF = Z1L + 12288
BLOCKF = 768
NAME = 'recurrent_scan__ssm_conv_h3__mixer_gmlp__prompt_kernel'
POLL_MAX = 1 << 21

s_rb, s_cb, s_w, s_wl = 32, 33, 34, 55
s_t0, s_t1, s_t2 = 40, 41, 42
s_mask = 47; s_ex = 52
sWS = 16; sD = 4
P = 56
vLane, vQ, vL15 = 1, 2, 3

class Hooks:
    def __init__(self):
        self.nb = {}
    def flag_addr(self, e, v, vt):
        e(f's_lshl_b32 s{s_t0}, s{s_cb}, 7')
        e(f's_lshl_b32 s{s_t1}, s{s_rb}, 2')
        e(f's_add_u32 s{s_t0}, s{s_t0}, s{s_t1}')
        e(f's_add_u32 s{s_t1}, s{s_t0}, {FL2A}')
        e(f's_add_u32 s{s_t0}, s{s_t0}, {FL1}')
        e(f'v_mov_b32 v{v}, s{s_t0}')
        e(f'v_mov_b32 v{vt}, s{s_t1}')
        e(f'v_cmp_eq_u32 vcc, 1, v{vLane}')
        e(f'v_cndmask_b32 v{v}, v{v}, v{vt}, vcc')
        e(f's_lshl_b32 s{s_t0}, s{s_rb}, 5')
        e(f's_lshl_b32 s{s_t1}, s{s_cb}, 2')
        e(f's_add_u32 s{s_t0}, s{s_t0}, s{s_t1}')
        e(f's_add_u32 s{s_t0}, s{s_t0}, {FL2B}')
        e(f'v_mov_b32 v{vt}, s{s_t0}')
        e(f'v_cmp_eq_u32 vcc, 2, v{vLane}')
        e(f'v_cndmask_b32 v{v}, v{v}, v{vt}, vcc')
        e(f's_lshl_b32 s{s_t0}, s{s_cb}, 7')
        e(f's_lshl_b32 s{s_t1}, s{s_rb}, 2')
        e(f's_add_u32 s{s_t0}, s{s_t0}, s{s_t1}')
        e(f's_add_u32 s{s_t0}, s{s_t0}, {FLKV}')
        e(f'v_mov_b32 v{vt}, s{s_t0}')
        e(f'v_cmp_eq_u32 vcc, 3, v{vLane}')
        e(f'v_cndmask_b32 v{v}, v{v}, v{vt}, vcc')

    def after_A(self, e, stp, bar1):
        e('s_waitcnt vmcnt(0)')
        bar1('A')
        p1 = os.environ.get('P1ST') == '1'
        stp.mute = False
        stp.stamp(e)
        stp.mute = p1
        self.g2(e, stp)
    def after_B(self, e, stB, bar1):
        e(f's_cmp_eq_u32 s{s_w}, 7')
        e('s_cbranch_scc0 F2_NOCNT')
        e('s_waitcnt vmcnt(0)')
        set_exec(e, 0xffffffff, 0)
        e('v_cmp_gt_u32 vcc, 8, v167')
        e(f's_mov_b64 exec, s[{s_ex}:{s_ex+1}]')
        e('s_cmp_eq_u64 vcc, 0')
        e('s_cbranch_scc1 F2_NOCNT')
        e(f'v_lshlrev_b32 v6, 2, v{vLane}')
        self.poll(e, 'CNT', 6, 7, sD, 0xffffffff, 0, 8, ge=True)
        e.label('F2_NOCNT')
        e('s_waitcnt lgkmcnt(0)')
        self.c2(e, stB, bar1)
    def after_L(self, e, bar1):
        self.l2(e, bar1)

    def g2(self, e, stp):
        nb = [0]
        def bar():
            e('s_barrier'); nb[0] += 1
        sB = 12
        s_fh, s_kh, s_st, s_bz, s_kz, s_sd = 35, 36, 37, 38, 39, 43
        vB0, vB1, vA, vT = 4, 5, 6, 9
        BF = 16; ACC = 48; ZA = 96
        e.c('phase 2: G')
        e(f's_load_dwordx2 s[{P}:{P+1}], s[0:1], 72')
        e(f's_and_b32 s{s_fh}, s{s_w}, 1')
        e(f's_lshr_b32 s{s_kh}, s{s_w}, 1')
        e(f'v_xor_b32 v{vT}, v{vQ}, v{vL15}')
        e(f'v_lshlrev_b32 v{vT}, 4, v{vT}')
        e(f's_lshl_b32 s{s_t0}, s{s_kh}, 6')
        e(f'v_xor_b32 v{vT}, s{s_t0}, v{vT}')
        e(f'v_lshlrev_b32 v{vT+1}, 8, v{vL15}')
        e(f'v_add_u32 v{vB0}, v{vT}, v{vT+1}')
        e(f'v_xor_b32 v{vB1}, 128, v{vB0}')
        e(f's_mul_i32 s{s_t0}, s{s_cb}, 6')
        e(f's_mul_i32 s{s_t1}, s{s_fh}, 3')
        e(f's_add_u32 s{s_t0}, s{s_t0}, s{s_t1}')
        e(f's_lshl_b32 s{s_t0}, s{s_t0}, 16')
        e(f's_add_u32 s{s_t0}, s{s_t0}, {Z2F}')
        e(f'v_lshlrev_b32 v{vT}, 4, v{vLane}')
        for ft in range(3):
            e(f's_add_u32 s{s_t1}, s{s_t0}, {ft*65536}')
            e(f'v_add_u32 v{vA+ft}, s{s_t1}, v{vT}')
        e(f's_lshl_b32 s{s_kz}, s{s_kh}, 10')
        for i in range(48): e(f'v_mov_b32 v{ACC+i}, 0')
        e('s_waitcnt lgkmcnt(0)')
        srd(e, sB, P, S*2)
        def zl(n6, s_off):
            return [f'buffer_load_dwordx4 v[{ZA+(n6*3+ft)*4}:{ZA+(n6*3+ft)*4+3}], v{vA+ft}, s[{sWS}:{sWS+3}], s{s_off} offen sc1' for ft in range(3)]
        bar()
        stp.stamp(e)
        for n in range(5):
            e(f's_add_u32 s{s_bz}, s{s_kz}, {2*n*1024}')
            for x in zl(n, s_bz): e(x)
        def brd(buf, vb):
            return [f'ds_read_b128 v[{BF+buf*16+tt*4}:{BF+buf*16+tt*4+3}], v{vb} offset:{tt*4096}' for tt in range(4)]
        def mfl(buf, n6):
            L = []
            for tt in range(4):
                for ft in range(3):
                    a = ACC + (ft*4+tt)*4; z = ZA + (n6*3+ft)*4; b = BF + buf*16 + tt*4
                    L.append(f'v_mfma_f32_16x16x32_bf16 v[{a}:{a+3}], v[{z}:{z+3}], v[{b}:{b+3}], v[{a}:{a+3}]')
            return L
        def zoff(add):
            e(f's_lshl_b32 s{s_t0}, s{s_st}, 1')
            e(f's_add_u32 s{s_t0}, s{s_t0}, {add}')
            e(f's_lshl_b32 s{s_bz}, s{s_t0}, 11')
            e(f's_add_u32 s{s_bz}, s{s_bz}, s{s_kz}')
            e(f's_cmp_lt_u32 s{s_t0}, 32')
            e(f's_cselect_b32 s{s_bz}, s{s_bz}, 0x80000000')
        e(f's_mov_b32 s{s_st}, 0')
        for x in brd(0, vB0): e(x)
        e.label('F2_GLOOP')
        for u in range(3):
            n0 = (2*u) % 6; n1 = (2*u + 1) % 6
            zoff(5)
            e('s_waitcnt vmcnt(12) lgkmcnt(0)')
            fills = [[] for _ in range(12)]
            for k_, r in enumerate(brd(1, vB1)): fills[k_].append(r)
            for k_, z in enumerate(zl((n0 + 5) % 6, s_bz)): fills[4 + 2*k_].append(z)
            weave(e, mfl(0, n0), fills)
            e(f's_and_b32 s{s_t0}, s{s_st}, 3')
            e(f's_movk_i32 s{s_sd}, 16384')
            e(f's_cmp_eq_u32 s{s_t0}, 3')
            e(f's_cselect_b32 s{s_sd}, {(-49152) & 0xffffffff}, s{s_sd}')
            zoff(6)
            e('s_waitcnt lgkmcnt(0)')
            e('s_barrier')
            e(f'v_add_u32 v{vB0}, s{s_sd}, v{vB0}')
            e('s_waitcnt vmcnt(12)')
            fills = [[] for _ in range(12)]
            for k_, r in enumerate(brd(0, vB0)): fills[k_].append(r)
            for k_, z in enumerate(zl((n1 + 5) % 6, s_bz)): fills[4 + 2*k_].append(z)
            weave(e, mfl(1, n1), fills)
            e(f'v_add_u32 v{vB1}, s{s_sd}, v{vB1}')
            e(f's_add_u32 s{s_st}, s{s_st}, 1')
            e(f's_cmp_eq_u32 s{s_st}, 16')
            if u < 2: e('s_cbranch_scc1 F2_GDONE')
            else: e('s_cbranch_scc0 F2_GLOOP')
        e.label('F2_GDONE')
        nb[0] += 16
        stp.stamp(e)
        e.c('G epilogue')
        BS = vT + 6
        e(f's_lshl_b32 s{s_t0}, s{s_rb}, 2')
        e(f's_add_u32 s45, s{s_t0}, s{s_w}')
        e(f'v_lshlrev_b32 v{vT+1}, 1, v{vL15}')
        e(f's_lshl_b32 s{s_t0}, s45, 5')
        e(f'buffer_load_ushort v{BS}, v{vT+1}, s[{sB}:{sB+3}], s{s_t0} offen')
        e('s_waitcnt lgkmcnt(0)')
        bar()
        e(f's_mul_i32 s{s_t0}, s{s_w}, 3072')
        e(f'v_lshlrev_b32 v{vT}, 4, v{vLane}')
        e(f'v_add_u32 v{vT+1}, s{s_t0}, v{vT}')
        for tt in range(4):
            for ft in range(3):
                a = ACC + (ft*4 + tt)*4
                e(f'ds_write_b128 v{vT+1}, v[{a}:{a+3}] offset:{tt*12288 + ft*1024}')
                if (tt*3 + ft) % 6 == 5: e('s_waitcnt lgkmcnt(6)')
        e('s_waitcnt lgkmcnt(0)')
        bar()
        RX = 16
        e(f's_mul_i32 s{s_t0}, s{s_w}, 12288')
        e(f'v_add_u32 v{vT+1}, s{s_t0}, v{vT}')
        for v in range(4):
            for ft in range(3):
                r = RX + (v*3 + ft)*4
                e(f'ds_read_b128 v[{r}:{r+3}], v{vT+1} offset:{v*3072 + ft*1024}')
            if v == 2: e('s_waitcnt lgkmcnt(6)')
        Z1 = 64
        e(f's_mul_i32 s{s_t0}, s{s_w}, 3072')
        e(f's_add_u32 s{s_t0}, s{s_t0}, {Z1L}')
        e(f'v_lshlrev_b32 v{vT+2}, 3, v{vLane}')
        e(f'v_add_u32 v{vT+2}, s{s_t0}, v{vT+2}')
        e('s_waitcnt lgkmcnt(6)')
        for ftg in range(6):
            e(f'ds_read_b64 v[{Z1+2*ftg}:{Z1+2*ftg+1}], v{vT+2} offset:{ftg*512}')
        e('s_waitcnt vmcnt(0)')
        e(f'v_lshlrev_b32 v{BS}, 16, v{BS}')
        e(f's_mul_i32 s{s_t0}, s45, {24*1024}')
        e(f's_mul_i32 s{s_t1}, s{s_cb}, {3*1024}')
        e(f's_add_u32 s{s_t0}, s{s_t0}, s{s_t1}')
        e(f's_add_u32 s{s_t0}, s{s_t0}, {PF}')
        e('s_waitcnt lgkmcnt(0)')
        OUTP = 76
        TU = 88
        for ftg in range(6):
            fh, ft = ftg // 3, ftg % 3
            a = RX + ((fh + 0)*3 + ft)*4
            b = RX + ((fh + 2)*3 + ft)*4
            for r in range(4): e(f'v_add_f32 v{a+r}, v{a+r}, v{b+r}')
            for r in range(4): e(f'v_add_f32 v{a+r}, v{a+r}, v{BS}')
            for p in range(2):
                e(f'v_lshlrev_b32 v{TU+2*p}, 16, v{Z1+2*ftg+p}')
                e(f'v_and_b32 v{TU+2*p+1}, s{s_mask}, v{Z1+2*ftg+p}')
            for r in range(4): e(f'v_mul_f32 v{a+r}, v{a+r}, v{TU+r}')
            for p in range(2):
                e(f'v_cvt_pk_bf16_f32 v{OUTP+2*ftg+p}, v{a+2*p}, v{a+2*p+1}')
            if ftg % 2 == 1:
                j = ftg // 2
                e(f'buffer_store_dwordx4 v[{OUTP+4*j}:{OUTP+4*j+3}], v{vT}, s[{sWS}:{sWS+3}], s{s_t0} offen offset:{j*1024} sc1')
        e('s_waitcnt vmcnt(0)')
        bar()
        stp.stamp(e)
        self.k3['g3_setup']()
        bar()
        stp.stamp(e)
        self.k3['g3_main']()
        stp.flush(e, 0, sWS, 12, s_w)
        e('s_endpgm')
        self.nb['A2'] = nb[0]

    def poll(self, e, tag, vaddr, vval, srd, nlanes_lo, nlanes_hi, want, ge=False):
        e(f's_mov_b32 s{s_t2}, 0')
        set_exec(e, nlanes_lo, nlanes_hi)
        e.label(f'FP_{tag}')
        e(f'buffer_load_dword v{vval}, v{vaddr}, s[{srd}:{srd+3}], 0 offen sc1')
        e('s_waitcnt vmcnt(0)')
        e(f'v_cmp_{"gt" if ge else "ne"}_u32 vcc, {want}, v{vval}')
        e(f's_add_u32 s{s_t2}, s{s_t2}, 1')
        e('s_cmp_eq_u64 vcc, 0')
        e(f's_cbranch_scc1 FP_{tag}_OK')
        e(f's_cmp_lt_u32 s{s_t2}, {POLL_MAX}')
        e(f's_cbranch_scc0 FP_{tag}_OK')
        e('s_sleep 1')
        e(f's_branch FP_{tag}')
        e.label(f'FP_{tag}_OK')
        e(f's_mov_b64 exec, s[{s_ex}:{s_ex+1}]')

    def spoll(self, e, tag, off_sgpr, first, n):
        e(f's_add_u32 s74, s{off_sgpr}, {first*4}')
        e(f's_mov_b32 s{s_t2}, 0')
        e.label(f'SP_{tag}')
        e(f's_load_dwordx{n} s[56:{56+n-1}], s[72:73], s74 glc')
        e('s_waitcnt lgkmcnt(0)')
        k = n
        while k > 1:
            k //= 2
            for i in range(0, k, 2) if k >= 2 else [0]:
                if k >= 2: e(f's_and_b64 s[{56+i}:{57+i}], s[{56+i}:{57+i}], s[{56+k+i}:{57+k+i}]')
                else: e(f's_and_b32 s56, s56, s57')
        e(f's_add_u32 s{s_t2}, s{s_t2}, 1')
        e('s_cmp_eq_u32 s56, 1')
        e(f's_cbranch_scc1 SP_{tag}_OK')
        e(f's_cmp_lt_u32 s{s_t2}, {POLL_MAX}')
        e(f's_cbranch_scc1 SP_{tag}')
        e.label(f'SP_{tag}_OK')

    def kv_store(self, e, vt):
        KVS, KVP_ = K1.KVS, K1.KVP_
        KO = 16
        e(f's_sub_u32 s{s_t2}, s{s_w}, 4')
        e(f'v_lshrrev_b32 v{vt}, 3, v{vLane}')
        e(f's_lshl_b32 s{s_t0}, s{s_t2}, 3')
        e(f'v_add_u32 v{vt}, s{s_t0}, v{vt}')
        e(f'v_and_b32 v{vt+1}, 7, v{vLane}')
        e(f'v_lshlrev_b32 v{vt+1}, 4, v{vt+1}')
        e(f'v_mul_u32_u24 v{vt+2}, {KVP_}, v{vt}')
        e(f'v_add_u32 v{vt+2}, v{vt+2}, v{vt+1}')
        e(f'v_add_u32 v{vt+2}, {KVS}, v{vt+2}')
        e(f'v_lshlrev_b32 v{vt}, 12, v{vt}')
        e(f'v_add_u32 v{vt}, v{vt}, v{vt+1}')
        for n in range(4):
            e(f'ds_read_b128 v[{KO+4*n}:{KO+4*n+3}], v{vt+2} offset:{n*24*KVP_}')
        e(f's_mul_i32 s{s_t0}, s{s_cb}, {80*4096}')
        e(f's_lshl_b32 s{s_t1}, s{s_rb}, 7')
        e(f's_add_u32 s{s_t0}, s{s_t0}, s{s_t1}')
        e(f's_add_u32 s{s_t0}, s{s_t0}, {KVT}')
        e('s_waitcnt lgkmcnt(0)')
        for n in range(4):
            if n == 3:
                e(f's_cmp_eq_u32 s{s_t2}, 0')
                e(f's_cselect_b32 s{s_t0}, s{s_t0}, 0x80000000')
            e(f'buffer_store_dwordx4 v[{KO+4*n}:{KO+4*n+3}], v{vt}, s[{sWS}:{sWS+3}], s{s_t0} offen sc1')
            e(f's_add_u32 s{s_t0}, s{s_t0}, {24*4096}')

    def conv_early(self, e):
        sH, sDd = 20, 24
        HC = 136; X = 160; DV = 166
        e(f's_load_dwordx4 s[{P+8}:{P+11}], s[0:1], 32')
        e(f's_sub_u32 s{s_t2}, s{s_w}, 4')
        e(f's_mul_i32 s44, s{s_cb}, 80')
        e(f's_mul_i32 s{s_t0}, s{s_rb}, 3')
        e(f's_lshl_b32 s{s_t1}, s{s_rb}, 1')
        e(f's_add_u32 s{s_t1}, s{s_t1}, 16')
        e(f's_cmp_lt_u32 s{s_rb}, 16')
        e(f's_cselect_b32 s{s_t0}, s{s_t0}, s{s_t1}')
        e(f's_cselect_b32 s{s_t1}, 3, 2')
        e(f's_add_u32 s44, s44, s{s_t0}')
        e(f's_add_u32 s44, s44, s{s_t2}')
        e(f's_cmp_lt_u32 s{s_t2}, s{s_t1}')
        e(f's_cselect_b32 s45, 1, 0')
        e('s_cbranch_scc0 F2_NOH')
        e('s_waitcnt lgkmcnt(0)')
        e(f's_lshl_b32 s{s_t0}, s44, 12')
        e(f's_add_u32 s{sH}, s{P+8}, s{s_t0}')
        e(f's_addc_u32 s{sH+1}, s{P+9}, 0')
        e(f's_and_b32 s{sH+1}, s{sH+1}, 0xffff')
        e(f's_mov_b32 s{sH+2}, 4096')
        e(f's_mov_b32 s{sH+3}, 0x20000')
        srd(e, sDd, P+10, D*2)
        e(f'v_lshlrev_b32 v167, 4, v{vLane}')
        for n in range(4):
            c = HC + n*6
            e(f'buffer_load_dwordx4 v[{c}:{c+3}], v167, s[{sH}:{sH+3}], 0 offen offset:{n*1024} {NT1}')
            e(f'buffer_load_dwordx2 v[{c+4}:{c+5}], v167, s[{sH}:{sH+3}], 0 offen offset:{n*1024+16} {NT1}')
        e(f'v_mov_b32 v167, 0')
        e(f'buffer_load_dwordx2 v[{X+4}:{X+5}], v167, s[{sH}:{sH+3}], 0 offen')
        e(f's_lshl_b32 s{s_t0}, s44, 1')
        e(f'buffer_load_ushort v{DV}, v167, s[{sDd}:{sDd+3}], s{s_t0} offen')
        e.label('F2_NOH')
        e('s_waitcnt lgkmcnt(0)')
        e(f's_cmp_eq_u32 s{s_w}, 7')
        e('s_cbranch_scc0 F2_NOCE')
        e(f'v_lshlrev_b32 v166, 2, v{vLane}')
        e(f'buffer_load_dword v167, v166, s[{sD}:{sD+3}], 0 offen sc1')
        e.label('F2_NOCE')

    def c2(self, e, stC, bar1):
        nb = [0]
        def bar():
            e('s_barrier'); nb[0] += 1
        sH, sDd = 20, 24
        s_d, s_base, s_p = 35, 36, 37
        vA_, vB_ = 4, 5
        vT = 6
        HC = 136; X = 160; DV = 46; ACC = 48
        e.c('phase 2: B stream')
        e(f's_cmp_eq_u32 s{s_w}, 7')
        e('s_cbranch_scc1 F2_SYNC')
        e(f's_cmp_eq_u32 s45, 0')
        e('s_cbranch_scc1 F2_IDLE')
        e(f's_mov_b32 s{s_d}, s44')
        e(f's_sub_u32 s{s_t2}, s{s_w}, 4')
        e(f's_mul_i32 s{s_base}, s{s_t2}, {CW_SZ}')
        e(f's_add_u32 s{s_base}, s{s_base}, {CONV0}')
        e(f'v_add_u32 v{vT+4}, 1, v{vL15}')
        e(f'v_and_b32 v{vT+4}, 3, v{vT+4}')
        e(f'v_lshrrev_b32 v{vT+5}, 1, v{vQ}')
        e(f'v_and_b32 v{vT+6}, 1, v{vQ}')
        e(f'v_lshlrev_b32 v{vT+7}, 4, v{vT+5}')
        e(f'v_add_u32 v{vT+7}, v{vT+7}, v{vL15}')
        e(f'v_lshlrev_b32 v{vT+8}, 3, v{vT+6}')
        e(f'v_sub_u32 v{vT+7}, v{vT+7}, v{vT+8}')
        e(f'v_add_u32 v{vT+7}, 9, v{vT+7}')
        e(f'v_sub_u32 v{vT+7}, v{vT+7}, v{vT+4}')
        e(f'v_lshlrev_b32 v{vT+7}, 1, v{vT+7}')
        e(f'v_mul_u32_u24 v{vT+4}, {HCP}, v{vT+4}')
        e(f'v_add_u32 v{vT+7}, v{vT+7}, v{vT+4}')
        e(f'v_add_u32 v{vA_}, s{s_base}, v{vT+7}')
        e(f'v_sub_u32 v{vT+7}, v{vL15}, v{vT+5}')
        e(f'v_lshlrev_b32 v{vT+7}, 1, v{vT+7}')
        e(f'v_add_u32 v{vT+7}, v{vT+7}, v{vT+6}')
        e(f'v_lshlrev_b32 v{vT+7}, 4, v{vT+7}')
        e(f's_add_u32 s{s_t0}, s{s_base}, {CW_U + 512}')
        e(f'v_add_u32 v{vB_}, s{s_t0}, v{vT+7}')
        e('s_waitcnt vmcnt(10)')
        stC.stamp(e)
        bar1('B')
        stC.stamp(e)
        self.kv_store(e, 8)
        bar()
        e('s_waitcnt vmcnt(4)')
        e(f'v_mov_b32 v{DV}, v166')
        e(f'v_mov_b32 v{vT+2}, 0'); e(f'v_mov_b32 v{vT+3}, 0')
        e(f'v_lshlrev_b32 v{vT+4}, 3, v{vLane}')
        e(f'v_add_u32 v{vT+4}, s{s_base}, v{vT+4}')
        e(f'ds_write_b64 v{vT+4}, v[{vT+2}:{vT+3}] offset:{CW_U}')
        e(f'v_lshlrev_b32 v{vT+4}, 4, v{vLane}')
        e(f'v_add_u32 v{vT+4}, s{s_base}, v{vT+4}')
        TM = 80
        def copies(c, off, k):
            t_ = TM + (k % 4)*12
            e(f'v_alignbit_b32 v{t_+0}, v{c+1}, v{c+0}, 16')
            e(f'v_alignbit_b32 v{t_+1}, v{c+2}, v{c+1}, 16')
            e(f'v_alignbit_b32 v{t_+2}, v{c+3}, v{c+2}, 16')
            e(f'v_alignbit_b32 v{t_+3}, v{c+4}, v{c+3}, 16')
            e(f'v_mov_b32 v{t_+4}, v{c+1}'); e(f'v_mov_b32 v{t_+5}, v{c+2}')
            e(f'v_mov_b32 v{t_+6}, v{c+3}'); e(f'v_mov_b32 v{t_+7}, v{c+4}')
            e(f'v_mov_b32 v{t_+8}, v{t_+1}'); e(f'v_mov_b32 v{t_+9}, v{t_+2}'); e(f'v_mov_b32 v{t_+10}, v{t_+3}')
            e(f'v_alignbit_b32 v{t_+11}, v{c+5}, v{c+4}, 16')
            e(f'ds_write_b128 v{vT+4}, v[{c}:{c+3}] offset:{off}')
            e(f'ds_write_b128 v{vT+4}, v[{t_}:{t_+3}] offset:{off + HCP}')
            e(f'ds_write_b128 v{vT+4}, v[{t_+4}:{t_+7}] offset:{off + 2*HCP}')
            e(f'ds_write_b128 v{vT+4}, v[{t_+8}:{t_+11}] offset:{off + 3*HCP}')
        for n in range(4):
            copies(HC + n*6, 32 + n*1024, n)
            e('s_waitcnt lgkmcnt(4)')
            if n == 1: bar()
        for i in range(4): e(f'v_mov_b32 v{X+i}, 0')
        e(f'v_cmp_eq_u32 vcc, 1, v{vLane}')
        e(f'v_cndmask_b32 v{X+4}, 0, v{X+4}, vcc')
        e(f'v_cndmask_b32 v{X+5}, 0, v{X+5}, vcc')
        e('s_waitcnt lgkmcnt(0)')
        set_exec(e, 3, 0)
        copies(X, 0, 0)
        e(f's_mov_b64 exec, s[{s_ex}:{s_ex+1}]')
        e(f'v_lshlrev_b32 v{DV}, 16, v{DV}')
        for i in range(32): e(f'v_mov_b32 v{ACC+i}, 0')
        e('s_waitcnt vmcnt(0) lgkmcnt(0)')
        for _ in range(4): bar()
        e(f'v_lshlrev_b32 v{vT}, 4, v{vLane}')
        e(f's_lshl_b32 s{s_t0}, s{s_d}, 12')
        e(f's_add_u32 s{s_t0}, s{s_t0}, {KVT}')
        for n in range(4):
            e(f's_add_u32 m0, s{s_base}, {CW_U + 512 + n*1024}')
            e(f's_add_u32 s{s_t1}, s{s_t0}, {n*1024}')
            e(f'buffer_load_dwordx4 v{vT}, s[{sWS}:{sWS+3}], s{s_t1} offen sc1 lds')
        AFr = 80; B0 = 112
        def a_rd(m):
            a = AFr + m*4
            return [f'ds_read_b64 v[{a}:{a+1}], v{vA_} offset:{m*512}', f'ds_read_b64 v[{a+2}:{a+3}], v{vA_} offset:{m*512+8}']
        def b_rd(ee):
            b = B0 + 4*ee
            return [f'ds_read_b128 v[{b}:{b+3}], v{vB_} offset:{ee*512}']
        for m in range(8):
            for x in a_rd(m): e(x)
            if m % 4 == 3: e('s_waitcnt lgkmcnt(6)')
        bar()
        e('s_waitcnt vmcnt(0)')
        for m in range(8):
            for x in b_rd(m): e(x)
        e(f's_mov_b32 s{s_p}, 0')
        e.label('F2_CLOOP')
        for half in range(2):
            e(f'v_add_u32 v{vA_}, 64, v{vA_}')
            e(f'v_subrev_u32 v{vB_}, 64, v{vB_}')
            e('s_waitcnt lgkmcnt(0)')
            for m in range(8):
                for c in range(m, 8):
                    a = AFr + m*4; b = B0 + (c-m)*4; d = ACC + c*4
                    e(f'v_mfma_f32_16x16x32_bf16 v[{d}:{d+3}], v[{a}:{a+3}], v[{b}:{b+3}], v[{d}:{d+3}]')
                for x in a_rd(m): e(x)
                for x in b_rd(7 - m): e(x)
                if m in (3, 6): e('s_waitcnt lgkmcnt(6)')
                if (half == 0 and m == 3) or (half == 1 and m == 1): e('s_barrier')
        e('s_barrier')
        e(f's_add_u32 s{s_p}, s{s_p}, 2')
        e(f's_cmp_lt_u32 s{s_p}, 8')
        e('s_cbranch_scc1 F2_CLOOP')
        nb[0] += 12
        e('s_waitcnt lgkmcnt(0)')
        e(f'v_lshlrev_b32 v{vT}, 5, v{vL15}')
        e(f'v_lshrrev_b32 v{vT+1}, 1, v{vQ}')
        e(f'v_lshlrev_b32 v{vT+1}, 4, v{vT+1}')
        e(f'v_add_u32 v{vT}, v{vT}, v{vT+1}')
        e(f'v_and_b32 v{vT+1}, 1, v{vQ}')
        e(f'v_xor_b32 v{vT+1}, 1, v{vT+1}')
        e(f'v_lshlrev_b32 v{vT+1}, 3, v{vT+1}')
        e(f'v_add_u32 v{vT}, v{vT}, v{vT+1}')
        e(f's_add_u32 s{s_t0}, s{s_base}, {CW_U + 512}')
        e(f'v_add_u32 v{vT}, s{s_t0}, v{vT}')
        KV = AFr
        for c in range(8):
            e(f'ds_read_b64 v[{KV+2*c}:{KV+2*c+1}], v{vT} offset:{c*512}')
        e(f'v_lshlrev_b32 v{vT+2}, 5, v{vL15}')
        e(f'v_lshlrev_b32 v{vT+3}, 3, v{vQ}')
        e(f'v_add_u32 v{vT+2}, v{vT+2}, v{vT+3}')
        e(f's_lshl_b32 s{s_t0}, s{s_d}, 12')
        e(f's_add_u32 s{s_t0}, s{s_t0}, {YYT}')
        e('s_waitcnt lgkmcnt(0)')
        U = B0
        for c in range(8):
            a = ACC + c*4; k0 = KV + 2*c; u = U + (c % 4)*8
            e(f'v_and_b32 v{u+0}, s{s_mask}, v{k0+1}')
            e(f'v_lshlrev_b32 v{u+1}, 16, v{k0+1}')
            e(f'v_and_b32 v{u+2}, s{s_mask}, v{k0}')
            e(f'v_lshlrev_b32 v{u+3}, 16, v{k0}')
            for r in range(4): e(f'v_fmac_f32 v{a+r}, v{u+r}, v{DV}')
            e(f'v_cvt_pk_bf16_f32 v{u+4}, v{a}, v{a+1}')
            e(f'v_cvt_pk_bf16_f32 v{u+5}, v{a+2}, v{a+3}')
            e(f'buffer_store_dwordx2 v[{u+4}:{u+5}], v{vT+2}, s[{sWS}:{sWS+3}], s{s_t0} offen offset:{c*512} sc1')
        e('s_waitcnt vmcnt(0)')
        bar()
        n_c = nb[0]
        e.label('F3_IDLE')
        for _ in range(1 + K3.NB3): e('s_barrier')
        stC.flush(e, 0, sWS, vT, s_w)
        e('s_endpgm')
        e.label('F2_IDLE')
        e('s_waitcnt vmcnt(0)')
        bar1('I1')
        self.kv_store(e, 8)
        e('s_barrier'); e('s_barrier')
        e('s_waitcnt vmcnt(0)')
        for _ in range(n_c - 2): e('s_barrier')
        e('s_branch F3_IDLE')
        e.label('F2_SYNC')
        vt = 6
        e('s_load_dwordx2 s[72:73], s[0:1], 104')
        e('s_waitcnt lgkmcnt(0)')
        sSP = 8
        e(f's_load_dwordx2 s[70:71], s[0:1], 64')
        e(f's_lshl_b32 s{s_t0}, s{s_rb}, 6')
        e(f's_lshl_b32 s{s_t1}, s{s_cb}, 3')
        e(f's_add_u32 s{s_t0}, s{s_t0}, s{s_t1}')
        e(f'v_lshrrev_b32 v20, 3, v{vLane}')
        e(f'v_add_u32 v20, s{s_t0}, v20')
        e(f'v_lshlrev_b32 v20, 12, v20')
        e(f'v_and_b32 v21, 7, v{vLane}')
        e(f'v_lshlrev_b32 v21, 6, v21')
        e(f'v_add_u32 v20, v20, v21')
        e(f'v_lshrrev_b32 v22, 2, v{vLane}')
        e(f'v_add_u32 v22, s{s_t0}, v22')
        e(f'v_lshlrev_b32 v22, 12, v22')
        e(f'v_and_b32 v21, 3, v{vLane}')
        e(f'v_lshlrev_b32 v21, 6, v21')
        e(f'v_add_u32 v22, v22, v21')
        e('s_waitcnt lgkmcnt(0)')
        srd(e, sSP, 70, S*S*2)
        JIT = os.environ.get('TOUCH', 'x1') == 'jit'
        for p in range(3 if JIT else 0):
            e(f'buffer_load_dword v{24+p}, v20, s[{sSP}:{sSP+3}], 0 offen offset:{p*512}')
        self.flag_addr(e, vt+2, vt+3)
        e(f'v_mov_b32 v{vt+4}, 1')
        e('s_waitcnt vmcnt(0)')
        bar1('I2')
        stS = Stamper(); stS.n = 1
        stS.stamp(e)
        set_exec(e, 1, 0)
        e(f'buffer_store_dword v{vt+4}, v{vt+2}, s[{sWS}:{sWS+3}], 0 offen sc1')
        e(f's_mov_b64 exec, s[{s_ex}:{s_ex+1}]')
        SPOLL = os.environ.get('SPOLL', '1') == '1'
        e(f's_lshl_b32 s{s_t0}, s{s_cb}, 7')
        e(f's_add_u32 s75, s{s_t0}, {FL1}')
        e(f's_add_u32 s{s_t0}, s{s_t0}, {FL1}')
        e(f'v_lshlrev_b32 v{vt}, 2, v{vLane}')
        e(f'v_add_u32 v{vt}, s{s_t0}, v{vt}')
        if SPOLL:
            self.spoll(e, 'F1a', 75, 0, 8)
        else:
            self.poll(e, 'F1a', vt, vt+1, sWS, 0x3f, 0, 1)
        stS.stamp(e)
        e('s_barrier')
        stS.stamp(e)
        def mbar(i):
            e('s_barrier')
            j = i + 6
            if j < 16 and JIT:
                e('s_mov_b32 exec_hi, 0')
                e(f's_movk_i32 s{s_t0}, {j*256}')
                e(f'buffer_load_dword v{28 + (i % 4)}, v22, s[{sSP}:{sSP+3}], s{s_t0} offen')
                e('s_mov_b32 exec_hi, -1')
        mbar(0)
        self.spoll(e, 'F1b', 75, 8, 8)
        mbar(1)
        set_exec(e, 8, 0)
        e(f'buffer_store_dword v{vt+4}, v{vt+2}, s[{sWS}:{sWS+3}], 0 offen sc1')
        e(f's_mov_b64 exec, s[{s_ex}:{s_ex+1}]')
        mbar(2)
        self.spoll(e, 'F1c', 75, 16, 16)
        mbar(3)
        e(f's_add_u32 s75, s75, {FLKV - FL1}')
        self.spoll(e, 'FKa', 75, 0, 16)
        self.spoll(e, 'FKb', 75, 16, 16)
        for i in range(4, 16): mbar(i)
        for _ in range(3): e('s_barrier')
        set_exec(e, 6, 0)
        e(f'buffer_store_dword v{vt+4}, v{vt+2}, s[{sWS}:{sWS+3}], 0 offen sc1')
        e(f's_mov_b64 exec, s[{s_ex}:{s_ex+1}]')
        e(f's_lshl_b32 s{s_t0}, s{s_rb}, 5')
        e(f's_add_u32 s75, s{s_t0}, {FL2B}')
        e(f's_add_u32 s{s_t0}, s{s_t0}, {FL2B}')
        e(f'v_lshlrev_b32 v{vt}, 2, v{vLane}')
        e(f'v_add_u32 v{vt+6}, s{s_t0}, v{vt}')
        stS.stamp(e)
        if SPOLL: self.spoll(e, 'F2B', 75, 0, 8)
        else: self.poll(e, 'F2B', vt+6, vt+1, sWS, 0xff, 0, 1)
        stS.stamp(e)
        e('s_barrier')
        e(f's_lshl_b32 s{s_t0}, s{s_cb}, 7')
        e(f's_add_u32 s75, s{s_t0}, {FL2A}')
        e(f's_add_u32 s{s_t0}, s{s_t0}, {FL2A}')
        e(f'v_add_u32 v{vt+5}, s{s_t0}, v{vt}')
        e('s_barrier')
        if SPOLL:
            self.spoll(e, 'F2Aa', 75, 0, 16)
            self.spoll(e, 'F2Ab', 75, 16, 16)
        else:
            self.poll(e, 'F2A', vt+5, vt+1, sWS, 0xffffffff, 0, 1)
        for _ in range(K3.NB3 - 1): e('s_barrier')
        stS.flush(e, 2, sWS, vt, s_wl)
        e('s_endpgm')
        self.nb['B2'] = n_c

    def l2_pre(self, e):
        sSP = 8
        vD = 4; t = 10
        s_bw, s_m = 38, 39
        e.c('phase 2: L (pre)')
        e(f's_load_dwordx2 s[{P}:{P+1}], s[0:1], 64')
        e(f's_load_dwordx2 s[{P+4}:{P+5}], s[0:1], 104')
        e(f's_lshl_b32 s{s_t0}, s{s_rb}, 6')
        e(f's_lshl_b32 s{s_t1}, s{s_wl}, 4')
        e(f's_add_u32 s{s_t0}, s{s_t0}, s{s_t1}')
        for tt in range(4):
            e(f'v_add_u32 v{t}, {4*tt}, v{vQ}')
            e(f'v_xor_b32 v{t+1}, v{t}, v{vL15}')
            e(f'v_lshlrev_b32 v{t+1}, 4, v{t+1}')
            e(f'v_add_u32 v{t}, s{s_t0}, v{t}')
            e(f'v_lshlrev_b32 v{t}, 12, v{t}')
            e(f'v_add_u32 v{vD+tt}, v{t}, v{t+1}')
        e(f's_lshl_b32 s{s_m}, s{s_wl}, 12')
        e('s_waitcnt lgkmcnt(0)')
        srd(e, sSP, P, S*S*2)
        srd(e, sWS, P+4, WS_SIZE)
        self.lcnt = [0]; self.ldone = {}
        for j in range(3): self.lissue(e, j)
    def lissue(self, e, j):
        sSP = 8; vD = 4; s_bw, s_m = 38, 39
        e(f's_movk_i32 s{s_bw}, {j*256}')
        for tt in range(4):
            e(f's_add_u32 m0, s{s_m}, {(j % 4)*16384 + tt*1024}')
            e('s_nop 0')
            e(f'buffer_load_dwordx4 v{vD+tt}, s[{sSP}:{sSP+3}], s{s_bw} offen {NT3} lds')
        self.lcnt[0] += 4; self.ldone[j] = self.lcnt[0]

    def l2(self, e, bar1):
        nb = [0]
        def bar():
            e('s_barrier'); nb[0] += 1
        cnt, done = self.lcnt, self.ldone
        issue = lambda j: self.lissue(e, j)
        def lbar(j):
            e(f's_waitcnt vmcnt({cnt[0] - done[j]})'); bar()
        bar1('L')
        lbar(0)
        LA = int(os.environ.get('LA', '3'))
        nxt = max(done) + 1
        while nxt < LA + 1:
            issue(nxt); nxt += 1
        for i in range(16):
            if i + 1 < 16: lbar(i + 1)
            else: bar()
            while nxt < 16 and nxt <= i + 1 + LA:
                issue(nxt); nxt += 1
        bar(); bar()
        bar()
        self.nb['L2'] = nb[0]
        grp = self.k3['l3']()
        e('s_sleep 4')
        grp(0); grp(1)
        e('s_barrier')
        issued = 2
        for g in range(6):
            if issued < 6:
                grp(issued); issued += 1
            e(f's_waitcnt vmcnt({5*(issued - g - 1)})')
            e('s_barrier')
        e('s_endpgm')

def gen_kf():
    e = Emitter()
    H = Hooks()
    H.k3 = K3.gen_k3(e=e, fused=True)
    nbar = K1.gen_k1(e=e, fused=True, H=H)
    print('phase1 barriers', nbar, 'phase2', H.nb, 'phase3', H.k3['nbar'])
    assert nbar['A'] == nbar['L'] == 24 and nbar['B'] == 24 and nbar['I1'] == 1 and nbar['I2'] == 1, nbar
    assert H.nb['A2'] - 1 == H.nb['B2'] == H.nb['L2'] == 20, H.nb
    assert H.k3['nbar']['G'] == K3.NB3
    nn = e.finalize()
    return kernel_wrap(NAME, e.text(), vgpr=168, sgpr=96), nn
```

```python
from common import *

WSLOT = 12288; NSLOT = 5
XB0 = NSLOT * WSLOT
XST = 8192
PREP = XB0
PREPV = 11520
MISC = XB0 + 10 * XST
L_M1 = MISC; L_R1 = MISC + 256
L_CSA = MISC + 512
L_CSB = MISC + 1280
L_PS = MISC + 2048
L_PQ = MISC + 2560
L_W2 = MISC + 3072
LDS1 = 147456
import os
PREFETCH = os.environ.get('PREFETCH', '1') == '1'
XP_NOPREP = os.environ.get('XP_NOPREP', '0') == '1'
XP_NODOT = os.environ.get('XP_NODOT', '0') == '1'
XP_NOCOMP = os.environ.get('XP_NOCOMP', '0')
BLOCK1 = 768
BARST = os.environ.get('BARST') == '1'
SENT = 0xbf800000

K1c = -2.0 * 1.4426950408889634 * 0.7978845608028654
K2c = K1c * 0.044715

KVS = 49152; KVP_ = 144; Z1L = 147456
def gen_k1(e=None, fused=False, H=None):
    if e is None: e = Emitter()
    SC = 'sc1' if fused else ''
    sX, sW, sWS, sK, sV, sT = 8, 12, 16, 20, 24, 28
    s_rb, s_cb, s_w, s_wr, s_wc, s_wl = 32, 33, 34, 35, 36, 55
    s_i, s_j, s_off, s_t0, s_t1, s_t2 = 37, 38, 39, 40, 41, 42
    s_z2b, s_z1b, s_slot, s_mask = 43, 44, 45, 47
    s_k2 = 48; s_one = 50; s_ex = 52; s_xo = 54
    sD = 4
    P = 56
    vLane, vQ, vL15 = 1, 2, 3
    vXA, vXB, vW = 4, 6, 8
    vT = 14
    XF = 26; WF = 42; ACC = 66; CS = 90; ONE = 102; SUM = 106; GR = 110; AP = 114; E = 126
    nbar = {'A': 0, 'B': 0, 'L': 0}
    def bar(role, name=''):
        e('s_barrier'); nbar[role] = nbar.get(role, 0) + 1

    e.c('---- k1: GEMM1 (LN1 folded) + gelu + LN2 + kv prep + w_out retile ; roles A(0-3) B(4-7) L(8)')
    e('s_cmp_ge_u32 s2, 256')
    e('s_cbranch_scc1 K1_END')
    stp = Stamper(); stp.start(e)
    stp.mute = fused and os.environ.get('P1ST') != '1'
    e(f's_load_dwordx4 s[{P}:{P+3}], s[0:1], 0')
    e(f's_load_dwordx4 s[{P+4}:{P+7}], s[0:1], 16')
    e(f's_load_dwordx2 s[{P+8}:{P+9}], s[0:1], 56')
    e(f's_load_dwordx2 s[{P+10}:{P+11}], s[0:1], 80')
    e(f's_load_dwordx4 s[{P+12}:{P+15}], s[0:1], 96')
    e(f's_load_dwordx2 s[{P+18}:{P+19}], s[0:1], 64')
    e(f's_load_dwordx2 s[{P+20}:{P+21}], s[0:1], 32')
    e(f'v_and_b32 v{vLane}, 63, v0')
    e(f'v_lshrrev_b32 v{vT}, 6, v0')
    e(f'v_lshrrev_b32 v{vQ}, 4, v{vLane}')
    e(f'v_readfirstlane_b32 s{s_w}, v{vT}')
    e(f'v_and_b32 v{vL15}, 15, v{vLane}')
    e(f's_and_b32 s{s_t0}, s2, 7')
    e(f's_lshr_b32 s{s_t1}, s2, 3')
    e(f's_lshr_b32 s{s_rb}, s{s_t0}, 1')
    e(f's_lshl_b32 s{s_rb}, s{s_rb}, 3')
    e(f's_lshr_b32 s{s_t2}, s{s_t1}, 2')
    e(f's_add_u32 s{s_rb}, s{s_rb}, s{s_t2}')
    e(f's_and_b32 s{s_cb}, s{s_t0}, 1')
    e(f's_lshl_b32 s{s_cb}, s{s_cb}, 2')
    e(f's_and_b32 s{s_t2}, s{s_t1}, 3')
    e(f's_add_u32 s{s_cb}, s{s_cb}, s{s_t2}')
    e(f's_and_b32 s{s_wl}, s{s_w}, 3')
    e(f's_lshr_b32 s{s_wr}, s{s_wl}, 1')
    e(f's_and_b32 s{s_wc}, s{s_wl}, 1')
    e(f's_mov_b32 s{s_mask}, 0xffff0000')
    e(f's_mov_b64 s[{s_ex}:{s_ex+1}], exec')
    e(f's_mul_i32 s{s_z1b}, s{s_cb}, 192')
    e(f's_add_u32 s{s_z2b}, s{s_z1b}, {768*2}')
    e(f's_cmp_ge_u32 s{s_w}, 8')
    e('s_cbranch_scc0 K1_AB')

    e.c('loader (4 waves; L = w&3 handles instr n = 4h + L of each stage)')
    stL = Stamper(); stL.n = 1; stL.mute = fused
    vP, vPr = 4, 5
    VX = 8
    VW = 12
    t = 30
    s_L = s_wl
    s_xs, s_ws_, s_lb = s_j, s_off, s_slot
    e(f's_lshl_b32 s{s_t0}, s{s_rb}, 6')
    e(f's_lshl_b32 s{s_t1}, s{s_L}, 3')
    e(f's_add_u32 s{s_t0}, s{s_t0}, s{s_t1}')
    e(f's_lshl_b32 s{s_lb}, s{s_L}, 10')
    e(f'v_lshrrev_b32 v{t}, 3, v{vLane}')
    e(f'v_add_u32 v{t+2}, s{s_t1}, v{t}')
    e(f'v_lshrrev_b32 v{t+1}, 1, v{t+2}')
    e(f'v_xor_b32 v{t+1}, v{t+1}, v{vLane}')
    e(f'v_and_b32 v{t+1}, 7, v{t+1}')
    e(f'v_lshlrev_b32 v{t+1}, 4, v{t+1}')
    e(f'v_add_u32 v{t}, s{s_t0}, v{t}')
    e(f'v_mul_u32_u24 v{t}, 1280, v{t}')
    e(f'v_add_u32 v{VX}, v{t}, v{t+1}')
    e(f'v_add_u32 v{VX+1}, {32*1280}, v{VX}')
    e('s_waitcnt lgkmcnt(0)')
    stL.stamp(e)
    srd(e, sX, P, S*D*2)
    srd(e, sW, P+8, D*F*2)
    cnt = [0]; done_at = {}
    s_rot = s_i
    e(f's_and_b32 s{s_t0}, s{s_rb}, 7')
    e(f's_and_b32 s{s_t1}, s{s_cb}, 3')
    e(f's_mul_i32 s{s_t1}, s{s_t1}, 3')
    e(f's_add_u32 s{s_rot}, s{s_t0}, s{s_t1}')
    e(f's_sub_u32 s{s_t0}, s{s_rot}, 10')
    e(f's_cmp_ge_u32 s{s_rot}, 10')
    e(f's_cselect_b32 s{s_rot}, s{s_t0}, s{s_rot}')
    def kslice(j, dst):
        e(f's_add_u32 s{dst}, s{s_rot}, {j % 10}')
        e(f's_sub_u32 s{s_t0}, s{dst}, 10')
        e(f's_cmp_ge_u32 s{dst}, 10')
        e(f's_cselect_b32 s{dst}, s{s_t0}, s{dst}')
    def issue_x(j):
        kslice(j, s_xs)
        e(f's_lshl_b32 s{s_xs}, s{s_xs}, 7')
        for h in range(2):
            e(f's_add_u32 m0, s{s_lb}, {XB0 + j*XST + 4096*h}')
            e('s_nop 0')
            e(f'buffer_load_dwordx4 v{VX+h}, s[{sX}:{sX+3}], s{s_xs} offen {NT2} lds')
        cnt[0] += 2
    def issue_w(j):
        base = s_z2b if j < 10 else s_z1b
        kslice(j, s_ws_)
        e(f's_mul_i32 s{s_ws_}, s{s_ws_}, {64*3072}')
        e(f's_add_u32 s{s_ws_}, s{s_ws_}, s{base}')
        for h in range(3):
            e(f's_add_u32 m0, s{s_lb}, {(j % NSLOT)*WSLOT + 4096*h}')
            e('s_nop 0')
            e(f'buffer_load_dwordx4 v{VW+h}, s[{sW}:{sW+3}], s{s_ws_} offen {NT2} lds')
        cnt[0] += 3
    for h in range(3):
        e(f's_lshl_b32 s{s_t0}, s{s_L}, 6')
        e(f's_add_u32 s{s_t0}, s{s_t0}, {64*4*h}')
        e(f'v_add_u32 v{t}, s{s_t0}, v{vLane}')
        e(f'v_mul_u32_u24 v{t+1}, 5462, v{t}')
        e(f'v_lshrrev_b32 v{t+1}, 16, v{t+1}')
        e(f'v_mul_u32_u24 v{t+2}, 12, v{t+1}')
        e(f'v_sub_u32 v{t+2}, v{t}, v{t+2}')
        e(f'v_lshrrev_b32 v{t+3}, 2, v{t+1}')
        e(f'v_and_b32 v{t+3}, 2, v{t+3}')
        e(f'v_xor_b32 v{t+2}, v{t+2}, v{t+3}')
        e(f'v_lshlrev_b32 v{t+2}, 4, v{t+2}')
        e(f'v_mul_u32_u24 v{t+1}, 3072, v{t+1}')
        e(f'v_add_u32 v{VW+h}, v{t+1}, v{t+2}')
    stL.stamp(e)
    issue_x(0)
    issue_w(0); done_at[0] = cnt[0]
    def issue(j):
        if j < 10: issue_x(j)
        issue_w(j)
        done_at[j] = cnt[0]
    def lbar(k):
        n = cnt[0] - done_at[k]
        e(f's_waitcnt vmcnt({min(n, 63)})'); bar('L')
    vK0 = 20
    sa, sb, sc = 46, 78, 79
    def setup_prep():
        e(f'v_mul_u32_u24 v{vPr}, 6554, v{vLane}')
        e(f'v_lshrrev_b32 v{vPr}, 16, v{vPr}')
        e(f'v_mul_u32_u24 v{vP}, 10, v{vPr}')
        e(f'v_sub_u32 v{vP}, v{vLane}, v{vP}')
        e(f'v_lshlrev_b32 v{vP}, 4, v{vP}')
        e(f'v_mul_u32_u24 v{t}, 1280, v{vPr}')
        e(f'v_add_u32 v{vP}, v{vP}, v{t}')
        srd(e, sK, P+2, S*D*2)
        srd(e, sV, P+4, S*D*2)
        e(f's_lshl_b32 s{s_t0}, s{s_rb}, 6')
        e(f's_mul_i32 s{s_t1}, s{s_L}, 6')
        e(f's_add_u32 s{s_t0}, s{s_t0}, s{s_t1}')
        e(f's_mul_i32 s{sa}, s{s_t0}, 1280')
        e(f's_mul_i32 s{s_t1}, s{s_cb}, 160')
        e(f's_add_u32 s{sa}, s{sa}, s{s_t1}')
        e(f's_mul_i32 s{sb}, s{s_L}, 960')
        e(f's_add_u32 s{sb}, s{sb}, {PREP}')
        e(f'v_mov_b32 v{vK0}, v{vP}')
        e(f's_sub_u32 s{sc}, s{sa}, {3*1280}')
        e(f's_cmp_eq_u32 s{s_t0}, 0')
        e('s_cbranch_scc0 K1_NONNEG')
        e(f'v_subrev_u32 v{vK0}, {3*1280}, v{vP}')
        e(f'v_cmp_gt_u32 vcc, 3, v{vPr}')
        e(f'v_mov_b32 v{t+1}, 0x80000000')
        e(f'v_cndmask_b32 v{vK0}, v{vK0}, v{t+1}, vcc')
        e(f's_mov_b32 s{sc}, s{sa}')
        e.label('K1_NONNEG')
        srd(e, sT, P+6, D*4*2)
        e(f'v_lshlrev_b32 v21, 4, v{vLane}')
        e(f's_mul_i32 s54, s{s_cb}, 640')
    def issue_prep():
        set_exec(e, 0xffffffff, 0x0fffffff)
        for n in range(3):
            e(f's_add_u32 m0, s{sb}, {n*3840}')
            e('s_nop 0')
            e(f'buffer_load_dwordx4 v{vK0 if n == 0 else vP}, s[{sK}:{sK+3}], s{sc} offen {NT1} lds')
            e(f's_add_u32 m0, s{sb}, {n*3840 + PREPV}')
            e('s_nop 0')
            e(f'buffer_load_dwordx4 v{vP}, s[{sV}:{sV+3}], s{sa} offen {NT1} lds')
            e(f's_add_u32 s{sa}, s{sa}, {24*1280}')
            e(f's_sub_u32 s{sc}, s{sa}, {3*1280}')
        e(f's_mov_b64 exec, s[{s_ex}:{s_ex+1}]')
        e(f'buffer_load_dwordx4 v[156:159], v21, s[{sT}:{sT+3}], s54 offen')
        cnt[0] += 7
    def prefetch_tail():
        e(f'v_lshlrev_b32 v{t}, 6, v{vLane}')
        e(f's_and_b32 s{s_t0}, s2, 7')
        e(f's_lshl_b32 s{s_t0}, s{s_t0}, 8')
        e(f's_lshr_b32 s{s_t1}, s2, 3')
        e(f's_lshl_b32 s{s_t1}, s{s_t1}, 3')
        e(f's_add_u32 s{s_t0}, s{s_t0}, s{s_t1}')
        e(f's_lshl_b32 s{s_t1}, s{s_L}, 1')
        e(f's_add_u32 s{s_t0}, s{s_t0}, s{s_t1}')
        e(f's_lshl_b32 s{s_t0}, s{s_t0}, 12')
        srd(e, sK, P+18, S*S*2)
        for r in range(2):
            e(f'buffer_load_dword v{t+1+r}, v{t}, s[{sK}:{sK+3}], s{s_t0} offen')
            e(f's_add_u32 s{s_t0}, s{s_t0}, 4096')
        srd(e, sV, P+20, D*S*2)
        e(f's_mul_i32 s{s_t0}, s2, 3')
        e(f's_add_u32 s{s_t0}, s{s_t0}, s{s_L}')
        e(f's_lshl_b32 s{s_t0}, s{s_t0}, 12')
        e(f's_cmp_eq_u32 s{s_L}, 3')
        e(f's_cselect_b32 s{s_t0}, 0x80000000, s{s_t0}')
        e(f'buffer_load_dword v{t+5}, v{t}, s[{sV}:{sV+3}], s{s_t0} offen')
        cnt[0] += 3
    xs = {1: [1, 2], 2: [3, 4], 3: [5, 6], 4: [7, 8], 5: [9]}
    wn = 1
    if os.environ.get('UP1', '1') == '1':
        issue_x(1); issue_w(1); done_at[1] = cnt[0]; wn = 2
        xs = {1: [2, 3], 2: [4, 5], 3: [6, 7], 4: [8, 9]}
    for k in range(20):
        if k >= 1:
            lim = {1: 3 if os.environ.get('UP1', '1') == '1' else 2, 2: 4}.get(k, min(19, k + 2 if k <= 5 else k + 3))
            todo_x = list(xs.get(k, []))
            while wn <= lim or todo_x:
                if todo_x: issue_x(todo_x.pop(0))
                if wn <= lim:
                    issue_w(wn); done_at[wn] = cnt[0]; wn += 1
                    if wn == 20: issue_prep()
        if k == 11: setup_prep()
        lbar(k)
        if k in (0, 1): stL.stamp(e)
    assert wn == 20
    bar('L'); bar('L')
    H.l2_pre(e)
    e('s_waitcnt vmcnt(12)')
    bar('L')
    SKL = 156; KR = 40; VRr = 59; KP = 76; CP = 114; KVP = 122; OUT = 40
    vt = 30
    e(f's_mul_i32 s{s_t0}, s{s_wl}, {16*160}')
    e(f's_add_u32 s{s_t0}, s{s_t0}, {PREP}')
    e(f'v_lshlrev_b32 v{vt}, 2, v{vLane}')
    e(f'v_min_u32 v{vt}, 156, v{vt}')
    e(f'v_add_u32 v{vt}, s{s_t0}, v{vt}')
    for r in range(19):
        e(f'ds_read_b32 v{KR+r}, v{vt} offset:{r*160}')
        if r == 13: e('s_waitcnt lgkmcnt(6)')
    for r in range(16):
        if r in (2, 10): e('s_waitcnt lgkmcnt(6)')
        e(f'ds_read_b32 v{VRr+r}, v{vt} offset:{PREPV + r*160}')
    e(f'v_lshlrev_b32 v{CP+0}, 16, v{SKL+0}'); e(f'v_lshlrev_b32 v{CP+1}, 16, v{SKL+2}')
    e(f'v_and_b32 v{CP+2}, s{s_mask}, v{SKL+0}'); e(f'v_and_b32 v{CP+3}, s{s_mask}, v{SKL+2}')
    e(f'v_lshlrev_b32 v{CP+4}, 16, v{SKL+1}'); e(f'v_lshlrev_b32 v{CP+5}, 16, v{SKL+3}')
    e(f'v_and_b32 v{CP+6}, s{s_mask}, v{SKL+1}'); e(f'v_and_b32 v{CP+7}, s{s_mask}, v{SKL+3}')
    e('s_waitcnt lgkmcnt(12)')
    for r in range(19):
        if r == 12: e('s_waitcnt lgkmcnt(0)')
        e(f'v_lshlrev_b32 v{KP+2*r}, 16, v{KR+r}')
        e(f'v_and_b32 v{KP+2*r+1}, s{s_mask}, v{KR+r}')
    for i in range(16):
        t_ = KVP + 2*i
        e(f'v_pk_mul_f32 v[{t_}:{t_+1}], v[{CP+6}:{CP+7}], v[{KP+2*i}:{KP+2*i+1}]')
        e(f'v_lshlrev_b32 v{vt+2}, 16, v{VRr+i}')
        e(f'v_pk_fma_f32 v[{t_}:{t_+1}], v[{CP+4}:{CP+5}], v[{KP+2*i+2}:{KP+2*i+3}], v[{t_}:{t_+1}]')
        e(f'v_and_b32 v{vt+3}, s{s_mask}, v{VRr+i}')
        e(f'v_pk_fma_f32 v[{t_}:{t_+1}], v[{CP+2}:{CP+3}], v[{KP+2*i+4}:{KP+2*i+5}], v[{t_}:{t_+1}]')
        e(f'v_pk_fma_f32 v[{t_}:{t_+1}], v[{CP+0}:{CP+1}], v[{KP+2*i+6}:{KP+2*i+7}], v[{t_}:{t_+1}]')
        e(f'v_pk_mul_f32 v[{t_}:{t_+1}], v[{t_}:{t_+1}], v[{vt+2}:{vt+3}]')
    for dd in range(2):
        for g in range(2):
            for n in range(4):
                lo = KVP + 2*(8*g + 7 - 2*n) + dd
                hi = KVP + 2*(8*g + 6 - 2*n) + dd
                e(f'v_cvt_pk_bf16_f32 v{OUT + dd*8 + g*4 + n}, v{lo}, v{hi}')
    e(f'v_mul_u32_u24 v{vt}, {2*KVP_}, v{vLane}')
    e(f's_lshl_b32 s{s_t0}, s{s_wl}, 5')
    e(f's_add_u32 s{s_t0}, s{s_t0}, {KVS}')
    e(f'v_add_u32 v{vt}, s{s_t0}, v{vt}')
    set_exec(e, 0xffffffff, 0xff)
    for dd in range(2):
        for g in range(2):
            o = OUT + dd*8 + g*4
            e(f'ds_write_b128 v{vt}, v[{o}:{o+3}] offset:{dd*KVP_ + g*16}')
    e(f's_mov_b64 exec, s[{s_ex}:{s_ex+1}]')
    e('s_waitcnt lgkmcnt(0)')
    H.after_L(e, bar)
    if STAMPS and not fused:
        srd(e, sWS, P+14, WS_SIZE) if False else None
        e(f's_load_dwordx2 s[{P+14}:{P+15}], s[0:1], 104')
        e('s_waitcnt lgkmcnt(0)')
        srd(e, sWS, P+14, WS_SIZE)
        stL.flush(e, 3, sWS, t, s_wl)
    if not fused: e('s_endpgm')

    e.label('K1_AB')
    e(f'v_lshrrev_b32 v{vT+3}, 1, v{vL15}')
    e(f'v_xor_b32 v{vT+3}, v{vT+3}, v{vQ}')
    e(f'v_lshlrev_b32 v{vT+3}, 4, v{vT+3}')
    e(f'v_lshlrev_b32 v{vT+4}, 7, v{vL15}')
    e(f'v_add_u32 v{vT+3}, v{vT+3}, v{vT+4}')
    e(f'v_xor_b32 v{vT+4}, 64, v{vT+3}')
    e(f's_lshl_b32 s{s_t0}, s{s_wr}, 12')
    e(f's_lshl_b32 s{s_t1}, s{s_wc}, 11')
    e(f's_add_u32 s{s_t2}, s{s_t0}, s{s_t1}')
    e(f's_add_u32 s{s_t2}, s{s_t2}, {XB0}')
    e(f'v_add_u32 v{vXA}, s{s_t2}, v{vT+3}')
    e(f'v_add_u32 v{vXA+1}, s{s_t2}, v{vT+4}')
    e(f's_xor_b32 s{s_t1}, s{s_t1}, 2048')
    e(f's_add_u32 s{s_t2}, s{s_t0}, s{s_t1}')
    e(f's_add_u32 s{s_t2}, s{s_t2}, {XB0}')
    e(f'v_add_u32 v{vXB}, s{s_t2}, v{vT+3}')
    e(f'v_add_u32 v{vXB+1}, s{s_t2}, v{vT+4}')
    e(f'v_lshrrev_b32 v{vT+3}, 2, v{vLane}')
    e(f'v_and_b32 v{vT+3}, 3, v{vT+3}')
    e(f'v_lshlrev_b32 v{vT+4}, 3, v{vQ}')
    e(f'v_add_u32 v{vT+3}, v{vT+3}, v{vT+4}')
    e(f'v_mul_u32_u24 v{vT+3}, 192, v{vT+3}')
    e(f'v_and_b32 v{vT+4}, 3, v{vLane}')
    e(f'v_lshlrev_b32 v{vT+4}, 3, v{vT+4}')
    e(f'v_add_u32 v{vT+3}, v{vT+3}, v{vT+4}')
    e(f'v_and_b32 v{vT+5}, 1, v{vQ}')
    e(f's_mul_i32 s{s_t0}, s{s_wc}, 3')
    for ft in range(3):
        e(f's_add_u32 s{s_t1}, s{s_t0}, {ft}')
        e(f'v_xor_b32 v{vT+4}, s{s_t1}, v{vT+5}')
        e(f'v_lshlrev_b32 v{vT+4}, 5, v{vT+4}')
        e(f'v_add_u32 v{vW+ft}, v{vT+3}, v{vT+4}')
    e(f's_mov_b32 s{s_k2}, {hexf(K2c)}'); e(f's_mov_b32 s{s_k2+1}, {hexf(K2c)}')
    e(f's_mov_b32 s{s_one}, 1.0'); e(f's_mov_b32 s{s_one+1}, 1.0')
    e('s_waitcnt lgkmcnt(0)')
    srd(e, sWS, P+14, WS_SIZE)
    srd(e, sD, P+12, 256)
    e(f's_cmp_ge_u32 s{s_w}, 4')
    e('s_cbranch_scc1 K1_B')

    def rd_list(buf, ksl, xoff, woff):
        L = []
        L.append(f'ds_read_b128 v[{XF+buf*8}:{XF+buf*8+3}], v{vXA+ksl} offset:{xoff}')
        for ft in range(3):
            b = WF + buf*12 + ft*4
            L.append(f'ds_read_b64_tr_b16 v[{b}:{b+1}], v{vW+ft} offset:{woff+ksl*6144}')
            L.append(f'ds_read_b64_tr_b16 v[{b+2}:{b+3}], v{vW+ft} offset:{woff+ksl*6144+768}')
            if ft == 0:
                L.append(f'ds_read_b128 v[{XF+buf*8+4}:{XF+buf*8+7}], v{vXB+ksl} offset:{xoff}')
        return L
    def phase(buf, ksl, p, tag, nxt_reads):
        mf = []
        for ft in range(3):
            for T in range(2):
                a = ACC + (T*3+ft)*4
                x = f'v[{XF+buf*8+T*4}:{XF+buf*8+T*4+3}]'
                w = f'v[{WF+buf*12+ft*4}:{WF+buf*12+ft*4+3}]'
                if p == 1: mf.append(f'v_mfma_f32_16x16x32_bf16 v[{a}:{a+3}], {x}, {w}, v[{a}:{a+3}]')
                else:      mf.append(f'v_mfma_f32_16x16x32_bf16 v[{a}:{a+3}], {w}, {x}, v[{a}:{a+3}]')
        fills = [nxt_reads[0:2], nxt_reads[2:4], nxt_reads[4:6], nxt_reads[6:8], [], []]
        if p == 1 and not XP_NODOT:
            x = f'v[{XF+buf*8}:{XF+buf*8+3}]'
            mf.append(f'v_mfma_f32_16x16x32_bf16 v[{SUM}:{SUM+3}], v[{ONE}:{ONE+3}], {x}, v[{SUM}:{SUM+3}]')
            mf.append(f'v_mfma_f32_16x16x32_bf16 v[{GR}:{GR+3}], {x}, {x}, v[{GR}:{GR+3}]')
        if XP_NOCOMP == '2': fills = [[] for _ in fills]
        if XP_NOCOMP == '3': mf = ['s_nop 0'] * len(mf)
        weave(e, mf, fills)
        e(f's_cmp_eq_u32 s{s_wr}, {ksl}')
        e(f's_cbranch_scc0 K1_SK_{tag}')
        for ft in range(3):
            a = CS + ft*4
            w = f'v[{WF+buf*12+ft*4}:{WF+buf*12+ft*4+3}]'
            o = f'v[{ONE}:{ONE+3}]'
            if p == 1: e(f'v_mfma_f32_16x16x32_bf16 v[{a}:{a+3}], {o}, {w}, v[{a}:{a+3}]')
            else:      e(f'v_mfma_f32_16x16x32_bf16 v[{a}:{a+3}], {w}, {o}, v[{a}:{a+3}]')
        e.label(f'K1_SK_{tag}')
    def init_acc():
        for i in range(4): e(f'v_mov_b32 v{ONE+i}, 0x3f803f80')
        for i in range(24): e(f'v_mov_b32 v{ACC+i}, 0')
        for i in range(12): e(f'v_mov_b32 v{CS+i}, 0')
        for i in range(8): e(f'v_mov_b32 v{SUM+i}, 0')
    def loop(p, role):
        L = f'K1_LOOP{p}'
        if BARST:
            e('s_mov_b32 m0, 0'); e('s_memtime s[90:91]'); e('v_mov_b32 v150, 0')
        if XP_NOCOMP == '1':
            for _ in range(10): bar(role)
            return
        e(f's_mov_b32 s{s_i}, 0')
        for x in rd_list(0, 0, 0, 0): e(x)
        e.label(L)
        for u in range(5):
            e('s_waitcnt lgkmcnt(0)')
            phase(0, 0, p, f'{p}a{u}', rd_list(1, 1, u*XST, u*WSLOT))
            e('s_waitcnt lgkmcnt(0)')
            if BARST:
                e('v_writelane_b32 v150, s90, m0')
                e('s_add_u32 m0, m0, 1')
            e('s_barrier')
            if BARST: e('s_memtime s[90:91]')
            if u == 4:
                for r in (vXA, vXA+1, vXB, vXB+1):
                    e(f'v_add_u32 v{r}, {5*XST}, v{r}')
                nx = rd_list(0, 0, 0, 0)
            else:
                nx = rd_list(0, 0, (u+1)*XST, (u+1)*WSLOT)
            phase(1, 1, p, f'{p}b{u}', nx)
            if p == 2 and PREFETCH and (not fused or os.environ.get('TOUCH') == 'p2'):
                e(f's_and_b32 s{s_t0}, s46, 3')
                e(f's_cmp_eq_u32 s{s_t0}, s{s_wl}')
                e(f's_cbranch_scc0 K1_NT{u}')
                e('s_cmp_lt_u32 s46, 8')
                e(f's_cbranch_scc0 K1_NT{u}')
                e(f'buffer_load_dword v148, v144, s[{sK}:{sK+3}], s54 offen')
                e.label(f'K1_NT{u}')
                e('s_add_u32 s46, s46, 1')
                e('s_add_u32 s54, s54, 4096')
        e(f's_add_u32 s{s_i}, s{s_i}, 1')
        e(f's_cmp_lt_u32 s{s_i}, 2')
        e(f's_cbranch_scc1 {L}')
        nbar[role] += 10
        if BARST:
            e('s_waitcnt lgkmcnt(0)')
            e('v_writelane_b32 v150, s90, m0')
            e(f's_lshl_b32 s{s_t0}, s2, 3'); e(f's_add_u32 s{s_t0}, s{s_t0}, s{s_w}'); e(f's_lshl_b32 s{s_t0}, s{s_t0}, 6')
            e(f's_add_u32 s{s_t0}, s{s_t0}, {TSB + 3*0x40000}')
            e(f'v_lshlrev_b32 v151, 2, v{vLane}')
            set_exec(e, 0xffff, 0)
            e(f'buffer_store_dword v150, v151, s[{sWS}:{sWS+3}], s{s_t0} offen')
            e(f's_mov_b64 exec, s[{s_ex}:{s_ex+1}]')
    K1V = E + 0
    G = E + 2
    def gelu_pair_sc(t, u):
        for h in range(2):
            e(f'v_mul_f32 v{u+h}, v{t+h}, v{t+h}')
        for h in range(2):
            e(f'v_fma_f32 v{u+h}, v{u+h}, s{s_k2}, v{K1V}')
        for h in range(2):
            e(f'v_mul_f32 v{u+h}, v{u+h}, v{t+h}')
        for h in range(2):
            e(f'v_exp_f32 v{u+h}, v{u+h}')
        for h in range(2):
            e(f'v_add_f32 v{u+h}, 1.0, v{u+h}')
        for h in range(2):
            e(f'v_rcp_f32 v{u+h}, v{u+h}')
        for h in range(2):
            e(f'v_mul_f32 v{u+h}, v{u+h}, v{t+h}')
    def gelu_pair(t, u):
        e(f'v_pk_mul_f32 v[{u}:{u+1}], v[{t}:{t+1}], v[{t}:{t+1}]')
        e(f'v_pk_fma_f32 v[{u}:{u+1}], v[{u}:{u+1}], s[{s_k2}:{s_k2+1}], v[{K1V}:{K1V+1}]')
        e(f'v_pk_mul_f32 v[{u}:{u+1}], v[{u}:{u+1}], v[{t}:{t+1}]')
        e(f'v_exp_f32 v{u}, v{u}')
        e(f'v_exp_f32 v{u+1}, v{u+1}')
        e(f'v_pk_add_f32 v[{u}:{u+1}], v[{u}:{u+1}], s[{s_one}:{s_one+1}]')
        e(f'v_rcp_f32 v{u}, v{u}')
        e(f'v_rcp_f32 v{u+1}, v{u+1}')
        e(f'v_pk_mul_f32 v[{u}:{u+1}], v[{u}:{u+1}], v[{t}:{t+1}]')

    e.c('role A')
    init_acc()
    bar('A')
    stp.stamp(e)
    loop(1, 'A')
    stp.stamp(e)
    e.c('A epilogue')
    e('s_setprio 2')
    e(f's_lshl_b32 s{s_t0}, s{s_rb}, 2')
    e(f'v_mov_b32 v{vT+8}, s{s_t0}')
    PC = vT + 9
    e(f'v_and_b32 v{vT}, 3, v{vL15}')
    e(f'v_cmp_eq_u32 vcc, 1, v{vT}')
    e(f'v_cndmask_b32 v{GR}, v{GR}, v{GR+1}, vcc')
    e(f'v_cmp_eq_u32 vcc, 2, v{vT}')
    e(f'v_cndmask_b32 v{GR}, v{GR}, v{GR+2}, vcc')
    e(f'v_cmp_eq_u32 vcc, 3, v{vT}')
    e(f'v_cndmask_b32 v{GR}, v{GR}, v{GR+3}, vcc')
    ln_finalize(e, SUM, GR, D, vT+2, vT+3, vT+4, vT+5)
    e(f's_lshl_b32 s{s_t0}, s{s_wr}, 5')
    e(f's_lshl_b32 s{s_t1}, s{s_wc}, 4')
    e(f's_add_u32 s{s_t0}, s{s_t0}, s{s_t1}')
    e(f'v_add_u32 v{vT+4}, s{s_t0}, v{vL15}')
    e(f'v_lshlrev_b32 v{vT+5}, 2, v{vT+4}')
    e(f'v_add_u32 v{vT+5}, {L_M1}, v{vT+5}')
    set_exec(e, 0x00f0000f, 0xf0000f00)
    e(f'ds_write_b32 v{vT+5}, v{vT+2}')
    e(f'ds_write_b32 v{vT+5}, v{vT+3} offset:256')
    if fused: e('s_branch K1_NOST1X')
    e(f's_cmp_eq_u32 s{s_cb}, 0')
    e('s_cbranch_scc0 K1_NOST1X')
    e(f's_lshl_b32 s{s_t1}, s{s_rb}, 9')
    e(f's_add_u32 s{s_t1}, s{s_t1}, {ST1}')
    e(f'v_lshlrev_b32 v{vT+4}, 3, v{vT+4}')
    e(f'buffer_store_dwordx2 v[{vT+2}:{vT+3}], v{vT+4}, s[{sWS}:{sWS+3}], s{s_t1} offen {SC}')
    e.label('K1_NOST1X')
    e(f's_mov_b64 exec, s[{s_ex}:{s_ex+1}]')
    e(f's_mul_i32 s{s_t0}, s{s_wl}, 192')
    e(f's_add_u32 s{s_t0}, s{s_t0}, {L_CSA}')
    e(f'v_lshlrev_b32 v{vT+6}, 2, v{vL15}')
    e(f'v_add_u32 v{vT+6}, s{s_t0}, v{vT+6}')
    for ft in range(3):
        e(f'ds_write_b32 v{vT+6}, v{CS+ft*4} offset:{ft*64}')
    e('s_waitcnt lgkmcnt(0)')
    bar('A')
    e(f's_xor_b32 s{s_t1}, s{s_wl}, 2')
    e(f's_mul_i32 s{s_t1}, s{s_t1}, 192')
    e(f's_add_u32 s{s_t1}, s{s_t1}, {L_CSA}')
    e(f'v_lshlrev_b32 v{vT+4}, 2, v{vL15}')
    e(f'v_add_u32 v{vT+4}, s{s_t1}, v{vT+4}')
    NCS = E + 10
    for ft in range(3):
        e(f'ds_read_b32 v{NCS+2*ft}, v{vT+4} offset:{ft*64}')
    M1 = XF
    R1 = XF + 8
    e(f's_lshl_b32 s{s_t0}, s{s_wr}, 7')
    e(f's_lshl_b32 s{s_t1}, s{s_wc}, 6')
    e(f's_add_u32 s{s_t0}, s{s_t0}, s{s_t1}')
    e(f's_add_u32 s{s_t0}, s{s_t0}, {L_M1}')
    e(f'v_lshlrev_b32 v{vT+5}, 4, v{vQ}')
    e(f'v_add_u32 v{vT+5}, s{s_t0}, v{vT+5}')
    e(f'v_xor_b32 v{vT+6}, 64, v{vT+5}')
    e(f'ds_read_b128 v[{M1}:{M1+3}], v{vT+5}')
    e(f'ds_read_b128 v[{M1+4}:{M1+7}], v{vT+6}')
    e(f'ds_read_b128 v[{R1}:{R1+3}], v{vT+5} offset:256')
    e(f'ds_read_b128 v[{R1+4}:{R1+7}], v{vT+6} offset:256')
    e(f'v_mov_b32 v{K1V}, {hexf(K1c)}'); e(f'v_mov_b32 v{K1V+1}, {hexf(K1c)}')
    SA = WF
    for i in range(16): e(f'v_mov_b32 v{SA+i}, 0')
    e('s_waitcnt lgkmcnt(0)')
    for ft in range(3):
        e(f'v_add_f32 v{NCS+2*ft}, v{NCS+2*ft}, v{CS+ft*4}')
        e(f'v_sub_f32 v{NCS+2*ft}, 0, v{NCS+2*ft}')
    npair = 0
    for ft in range(3):
        for T in range(2):
            for p in range(2):
                a = ACC + (T*3+ft)*4 + 2*p
                n = NCS + 2*ft
                g = G + 4*p
                for h in range(2):
                    e(f'v_fma_f32 v{a+h}, v{M1+T*4+2*p+h}, v{n}, v{a+h}')
                for h in range(2):
                    e(f'v_mul_f32 v{a+h}, v{a+h}, v{R1+T*4+2*p+h}')
                gelu_pair_sc(a, g)
                e(f'v_cvt_pk_bf16_f32 v{AP+ft*4+T*2+p}, v{g}, v{g+1}')
                s_ = SA + T*4 + 2*p
                for h in range(2):
                    e(f'v_add_f32 v{s_+h}, v{s_+h}, v{g+h}')
                for h in range(2):
                    e(f'v_fma_f32 v{s_+8+h}, v{g+h}, v{g+h}, v{s_+8+h}')
                npair += 1
                if npair in (2, 5, 7, 10, 12): bar('A')
    for k, sh in enumerate((8, 4, 2, 1)):
        for i in range(16):
            e(f'v_add_f32_dpp v{SA+i}, v{SA+i}, v{SA+i} row_ror:{sh} row_mask:0xf bank_mask:0xf')
    e(f's_lshl_b32 s{s_t0}, s{s_wc}, 8')
    e(f's_add_u32 s{s_t0}, s{s_t0}, {L_PS - L_M1}')
    e(f'v_add_u32 v{vT+5}, s{s_t0}, v{vT+5}')
    e(f'v_add_u32 v{vT+6}, s{s_t0}, v{vT+6}')
    set_exec(e, 0x00010001, 0x00010001)
    e(f'ds_write_b128 v{vT+5}, v[{SA}:{SA+3}]')
    e(f'ds_write_b128 v{vT+6}, v[{SA+4}:{SA+7}]')
    e(f'ds_write_b128 v{vT+5}, v[{SA+8}:{SA+11}] offset:{L_PQ-L_PS}')
    e(f'ds_write_b128 v{vT+6}, v[{SA+12}:{SA+15}] offset:{L_PQ-L_PS}')
    e(f's_mov_b64 exec, s[{s_ex}:{s_ex+1}]')
    e('s_waitcnt lgkmcnt(0)')
    bar('A')
    e(f's_cmp_eq_u32 s{s_w}, 0')
    e('s_cbranch_scc0 K1_NOPUB')
    e(f'v_lshlrev_b32 v{vT}, 2, v{vLane}')
    e(f'v_add_u32 v{vT}, {L_PS}, v{vT}')
    e(f'ds_read_b32 v{vT+2}, v{vT}')
    e(f'ds_read_b32 v{vT+4}, v{vT} offset:256')
    e(f'ds_read_b32 v{vT+3}, v{vT} offset:{L_PQ-L_PS}')
    e(f'ds_read_b32 v{vT+5}, v{vT} offset:{L_PQ-L_PS+256}')
    e(f's_lshl_b32 s{s_t0}, s{s_rb}, 3')
    e(f's_add_u32 s{s_t0}, s{s_t0}, s{s_cb}')
    e(f's_lshl_b32 s{s_t0}, s{s_t0}, 9')
    e(f's_add_u32 s{s_t0}, s{s_t0}, {XCH}')
    e(f'v_lshlrev_b32 v{vT+1}, 3, v{vLane}')
    e('s_waitcnt lgkmcnt(0)')
    e(f'v_add_f32 v{vT+2}, v{vT+2}, v{vT+4}')
    e(f'v_add_f32 v{vT+3}, v{vT+3}, v{vT+5}')
    e(f'v_max_f32 v{vT+3}, 0, v{vT+3}')
    e(f'buffer_store_dwordx2 v[{vT+2}:{vT+3}], v{vT+1}, s[{sWS}:{sWS+3}], s{s_t0} offen sc1')
    e.label('K1_NOPUB')
    stp.stamp(e)
    e(f's_mul_i32 s{s_t0}, s{s_cb}, 6')
    e(f's_mul_i32 s{s_t1}, s{s_wc}, 3')
    e(f's_add_u32 s{s_t0}, s{s_t0}, s{s_t1}')
    e(f's_lshl_b32 s{s_t0}, s{s_t0}, 6')
    e(f's_lshl_b32 s{s_t1}, s{s_rb}, 1')
    e(f's_add_u32 s{s_t0}, s{s_t0}, s{s_t1}')
    e(f's_add_u32 s{s_t0}, s{s_t0}, s{s_wr}')
    e(f's_lshl_b32 s{s_t0}, s{s_t0}, 10')
    e(f's_add_u32 s{s_off}, s{s_t0}, {Z2F}')
    e(f'v_and_b32 v{vT+7}, 1, v{vQ}')
    e(f'v_lshlrev_b32 v{vT+7}, 1, v{vT+7}')
    e(f'v_lshrrev_b32 v{vT+10}, 1, v{vQ}')
    e(f'v_or_b32 v{vT+7}, v{vT+7}, v{vT+10}')
    e(f's_lshl_b32 s{s_t1}, s{s_wc}, 1')
    e(f'v_xor_b32 v{vT+7}, s{s_t1}, v{vT+7}')
    e(f'v_lshlrev_b32 v{vT+7}, 4, v{vT+7}')
    e(f'v_add_u32 v{vT+7}, v{vT+7}, v{vL15}')
    e(f'v_lshlrev_b32 v{vT+7}, 4, v{vT+7}')
    e(f'v_and_b32 v{vT+10}, 31, v{vLane}')
    e(f's_lshl_b32 s{s_j}, s{s_wr}, 5')
    e(f'v_add_u32 v{vT+10}, s{s_j}, v{vT+10}')
    e(f'v_lshlrev_b32 v{vT+10}, 3, v{vT+10}')
    e(f's_lshl_b32 s{s_j}, s{s_rb}, 12')
    e(f's_add_u32 s{s_j}, s{s_j}, {XCH}')
    e(f'buffer_load_dword v{PC}, v{vT+8}, s[{sD}:{sD+3}], 0 offen sc1')
    bar('A'); bar('A'); bar('A')
    e('s_waitcnt vmcnt(0)')
    e('s_mov_b32 s54, 0')
    e.label('K1_CCHK')
    e(f'v_readfirstlane_b32 s{s_t0}, v{PC}')
    e(f's_cmp_ge_u32 s{s_t0}, 8')
    e('s_cbranch_scc1 K1_COK')
    e('s_add_u32 s54, s54, 1')
    e('s_cmp_lt_u32 s54, 0x200000')
    e('s_cbranch_scc0 K1_COK')
    e('s_sleep 4')
    e(f'buffer_load_dword v{PC}, v{vT+8}, s[{sD}:{sD+3}], 0 offen sc1')
    e('s_waitcnt vmcnt(0)')
    e('s_branch K1_CCHK')
    e.label('K1_COK')
    XP = WF + 2
    for c in range(8):
        e(f'buffer_load_dwordx2 v[{XP+2*c}:{XP+2*c+1}], v{vT+10}, s[{sWS}:{sWS+3}], s{s_j} offen offset:{c*512} sc1')
    bar('A')
    e('s_setprio 0')
    bar('A')
    e('s_waitcnt vmcnt(0)')
    e('s_mov_b32 s54, 0')
    e.label('K1_CHECK')
    e(f's_mov_b32 s{s_t0}, {hex(SENT)}')
    e(f'v_cmp_eq_u32 vcc, s{s_t0}, v{XP+1}')
    for c in range(1, 8):
        e(f'v_cmp_eq_u32 s[{P}:{P+1}], s{s_t0}, v{XP+2*c+1}')
        e(f's_or_b64 vcc, vcc, s[{P}:{P+1}]')
    e('s_cmp_eq_u64 vcc, 0')
    e('s_cbranch_scc1 K1_POLLED')
    e('s_add_u32 s54, s54, 1')
    e('s_cmp_lt_u32 s54, 0x200000')
    e('s_cbranch_scc0 K1_POLLED')
    for c in range(8):
        e(f'buffer_load_dwordx2 v[{XP+2*c}:{XP+2*c+1}], v{vT+10}, s[{sWS}:{sWS+3}], s{s_j} offen offset:{c*512} sc1')
    e('s_waitcnt vmcnt(0)')
    e('s_branch K1_CHECK')
    e.label('K1_POLLED')
    stp.stamp(e)
    for c in range(1, 8):
        e(f'v_pk_add_f32 v[{XP}:{XP+1}], v[{XP}:{XP+1}], v[{XP+2*c}:{XP+2*c+1}]')
    ln_finalize(e, XP, XP+1, FH, vT+2, vT+3, vT+4, vT+5)
    e(f'v_mul_f32 v{vT+2}, v{vT+2}, v{vT+3}')
    e(f'v_sub_f32 v{vT+2}, 0, v{vT+2}')
    e(f's_lshl_b32 s{s_t0}, s{s_wl}, 8')
    e(f's_add_u32 s{s_t0}, s{s_t0}, {L_W2}')
    e(f'v_and_b32 v{vT+4}, 31, v{vLane}')
    e(f'v_lshlrev_b32 v{vT+4}, 2, v{vT+4}')
    e(f'v_add_u32 v{vT+4}, s{s_t0}, v{vT+4}')
    e(f'ds_write_b32 v{vT+4}, v{vT+2}')
    e(f'ds_write_b32 v{vT+4}, v{vT+3} offset:128')
    e(f's_lshl_b32 s{s_t1}, s{s_wc}, 6')
    e(f's_add_u32 s{s_t0}, s{s_t0}, s{s_t1}')
    e(f'v_lshlrev_b32 v{vT+5}, 4, v{vQ}')
    e(f'v_add_u32 v{vT+5}, s{s_t0}, v{vT+5}')
    e(f'v_xor_b32 v{vT+6}, 64, v{vT+5}')
    e('s_waitcnt lgkmcnt(0)')
    e(f'ds_read_b128 v[{M1}:{M1+3}], v{vT+5}')
    e(f'ds_read_b128 v[{M1+4}:{M1+7}], v{vT+6}')
    e(f'ds_read_b128 v[{R1}:{R1+3}], v{vT+5} offset:128')
    e(f'ds_read_b128 v[{R1+4}:{R1+7}], v{vT+6} offset:128')
    e('s_waitcnt lgkmcnt(0)')
    for ft in range(3):
        for T in range(2):
            for p in range(2):
                a = AP + ft*4 + T*2 + p
                g = G + 4*p
                e(f'v_lshlrev_b32 v{g}, 16, v{a}')
                e(f'v_and_b32 v{g+1}, s{s_mask}, v{a}')
                e(f'v_pk_fma_f32 v[{g}:{g+1}], v[{g}:{g+1}], v[{R1+T*4+2*p}:{R1+T*4+2*p+1}], v[{M1+T*4+2*p}:{M1+T*4+2*p+1}]')
                e(f'v_cvt_pk_bf16_f32 v{a}, v{g}, v{g+1}')
        b = AP + ft*4
        e(f'v_permlane16_swap_b32 v{b}, v{b+2}')
        e(f'v_permlane16_swap_b32 v{b+1}, v{b+3}')
        e(f's_add_u32 s{s_t1}, s{s_off}, {ft*65536}')
        e(f'buffer_store_dwordx4 v[{b}:{b+3}], v{vT+7}, s[{sWS}:{sWS+3}], s{s_t1} offen sc1')
    if fused:
        H.after_A(e, stp, bar)
    else:
        stp.flush(e, 0, sWS, vT, s_w)
        e('s_endpgm')

    e.label('K1_B')
    e.c('role B')
    stB = Stamper(); stB.n = 1; stB.mute = fused and os.environ.get('P1ST') != '1'
    SK = 160; WR = 152; WO = 164
    e(f's_cmp_eq_u32 s{s_w}, 4')
    e('s_cbranch_scc0 K1_NORST')
    e(f's_lshl_b32 s{s_t0}, s{s_rb}, 3')
    e(f's_add_u32 s{s_t0}, s{s_t0}, s{s_cb}')
    e(f's_lshl_b32 s{s_t0}, s{s_t0}, 9')
    e(f's_add_u32 s{s_t0}, s{s_t0}, {XCH}')
    e(f'v_lshlrev_b32 v{vT+1}, 3, v{vLane}')
    e(f'v_mov_b32 v{vT+6}, 0')
    e(f'v_mov_b32 v{vT+7}, {hex(SENT)}')
    e(f'buffer_store_dwordx2 v[{vT+6}:{vT+7}], v{vT+1}, s[{sWS}:{sWS+3}], s{s_t0} offen sc1')
    if fused:
        H.flag_addr(e, vT+1, vT+2)
        set_exec(e, 15, 0)
        e(f'buffer_store_dword v{vT+6}, v{vT+1}, s[{sWS}:{sWS+3}], 0 offen sc1')
        e(f's_mov_b64 exec, s[{s_ex}:{s_ex+1}]')
    e.label('K1_NORST')
    DUM = 140
    vTP = 144; vKV = 145; s_tpw = 54; s_tps = 46; s_kv = 78
    e(f's_lshl_b32 s{s_t0}, s2, 2')
    e(f's_add_u32 s{s_t0}, s{s_t0}, s{s_wl}')
    e(f's_mul_i32 s{s_t1}, s{s_t0}, 2731')
    e(f's_lshr_b32 s{s_t1}, s{s_t1}, 16')
    e(f's_mul_i32 s{s_t2}, s{s_t1}, 24')
    e(f's_sub_u32 s{s_t2}, s{s_t0}, s{s_t2}')
    e(f's_mov_b32 s{P+16}, s{s_t0}')
    e(f'v_mul_u32_u24 v{vT+3}, {4*1280}, v{vQ}')
    e(f'v_lshlrev_b32 v{vT+4}, 1, v{vL15}')
    e(f'v_add_u32 v{vT+3}, v{vT+3}, v{vT+4}')
    e(f's_lshl_b32 s{s_t1}, s{s_t1}, 5')
    e(f's_mul_i32 s{s_t2}, s{s_t2}, {32*1280}')
    e(f's_add_u32 s{s_t1}, s{s_t1}, s{s_t2}')
    e(f's_add_u32 s{s_t2}, s{s_t1}, {16*1280}')
    bar('B')
    stB.stamp(e)
    srd(e, sT, P+10, FH*D*2)
    for j in range(8):
        so = s_t1 if j < 4 else s_t2
        e(f'buffer_load_ushort v{WR + j}, v{vT+3}, s[{sT}:{sT+3}], s{so} offen offset:{(j%4)*1280} {NT1}')
    for k in range(1, 10):
        if PREFETCH and k == 9:
            e(f'v_lshlrev_b32 v{vTP}, 6, v{vLane}')
            e(f's_and_b32 s{s_tpw}, s2, 7')
            e(f's_lshl_b32 s{s_tpw}, s{s_tpw}, 8')
            e(f's_lshr_b32 s{s_off}, s2, 3')
            e(f's_lshl_b32 s{s_off}, s{s_off}, 3')
            e(f's_add_u32 s{s_tpw}, s{s_tpw}, s{s_off}')
            e(f's_lshl_b32 s{s_tpw}, s{s_tpw}, 12')
            srd(e, sK, P+18, S*S*2)
            e('s_mov_b32 s46, 0')
        if k == 3:
            e(f's_cmp_eq_u32 s{s_w}, 4')
            e('s_cbranch_scc0 K1_NOCNT')
            e('s_waitcnt vmcnt(8)')
            e(f's_lshl_b32 s{s_off}, s{s_rb}, 2')
            e(f'v_mov_b32 v{vT+6}, s{s_off}')
            e(f'v_mov_b32 v{vT+7}, 1')
            set_exec(e, 1, 0)
            e(f'buffer_atomic_add v{vT+7}, v{vT+6}, s[{sD}:{sD+3}], 0 offen sc1')
            e(f's_mov_b64 exec, s[{s_ex}:{s_ex+1}]')
            e.label('K1_NOCNT')
        if k == 9:
            e(f's_cmp_ge_u32 s{P+16}, 960')
            e('s_cbranch_scc1 K1_NOWOF')
            e('s_waitcnt vmcnt(0)')
            for j in range(4):
                e(f'v_lshl_or_b32 v{WO+j}, v{WR+2*j+1}, 16, v{WR+2*j}')
            e(f'v_lshlrev_b32 v{vT+3}, 4, v{vLane}')
            e(f's_lshl_b32 s{s_t0}, s{P+16}, 10')
            e(f's_add_u32 s{s_t0}, s{s_t0}, {WOF}')
            e(f'buffer_store_dwordx4 v[{WO}:{WO+3}], v{vT+3}, s[{sWS}:{sWS+3}], s{s_t0} offen {SC if fused else STF_EARLY}')
            e.label('K1_NOWOF')
        bar('B')
    init_acc()
    bar('B')
    stB.stamp(e)
    loop(2, 'B')
    stB.stamp(e)
    e.c('B epilogue')
    e(f's_mul_i32 s{s_t0}, s{s_wl}, 192')
    e(f's_add_u32 s{s_t0}, s{s_t0}, {L_CSB}')
    e(f'v_lshlrev_b32 v{vT+4}, 4, v{vQ}')
    e(f'v_add_u32 v{vT+5}, s{s_t0}, v{vT+4}')
    set_exec(e, 0x00010001, 0x00010001)
    for ft in range(3):
        e(f'ds_write_b128 v{vT+5}, v[{CS+ft*4}:{CS+ft*4+3}] offset:{ft*64}')
    e(f's_mov_b64 exec, s[{s_ex}:{s_ex+1}]')
    e(f'v_mov_b32 v{K1V}, {hexf(K1c)}'); e(f'v_mov_b32 v{K1V+1}, {hexf(K1c)}')
    e('s_waitcnt lgkmcnt(0)')
    bar('B')
    if fused: H.conv_early(e)
    e(f's_xor_b32 s{s_t1}, s{s_wl}, 2')
    e(f's_mul_i32 s{s_t1}, s{s_t1}, 192')
    e(f's_add_u32 s{s_t1}, s{s_t1}, {L_CSB}')
    e(f'v_add_u32 v{vT+5}, s{s_t1}, v{vT+4}')
    NC2 = XF
    for ft in range(3):
        e(f'ds_read_b128 v[{NC2+ft*4}:{NC2+ft*4+3}], v{vT+5} offset:{ft*64}')
    MR = WF
    e(f's_lshl_b32 s{s_t0}, s{s_wr}, 7')
    e(f's_lshl_b32 s{s_t1}, s{s_wc}, 6')
    e(f's_add_u32 s{s_t0}, s{s_t0}, s{s_t1}')
    e(f's_add_u32 s{s_t0}, s{s_t0}, {L_M1}')
    e(f'v_lshlrev_b32 v{vT+6}, 2, v{vL15}')
    e(f'v_add_u32 v{vT+6}, s{s_t0}, v{vT+6}')
    e(f'v_xor_b32 v{vT+7}, 64, v{vT+6}')
    e(f'ds_read_b32 v{MR+0}, v{vT+6}')
    e(f'ds_read_b32 v{MR+2}, v{vT+7}')
    e(f'ds_read_b32 v{MR+4}, v{vT+6} offset:256')
    e(f'ds_read_b32 v{MR+6}, v{vT+7} offset:256')
    e(f's_lshl_b32 s{s_t0}, s{s_rb}, 2')
    e(f's_lshl_b32 s{s_t1}, s{s_wr}, 1')
    e(f's_add_u32 s{s_t0}, s{s_t0}, s{s_t1}')
    e(f's_add_u32 s{s_t1}, s{s_t0}, s{s_wc}')
    e(f's_xor_b32 s{s_t2}, s{s_t1}, 1')
    e(f's_mul_i32 s{s_off}, s{s_cb}, 6')
    e(f's_mul_i32 s{s_j}, s{s_wc}, 3')
    e(f's_add_u32 s{s_off}, s{s_off}, s{s_j}')
    e(f's_mul_i32 s{s_t1}, s{s_t1}, 48')
    e(f's_add_u32 s{s_t1}, s{s_t1}, s{s_off}')
    e(f's_lshl_b32 s{s_t1}, s{s_t1}, 9')
    e(f's_add_u32 s{s_t1}, s{s_t1}, {Z1F}')
    e(f's_mul_i32 s{s_t2}, s{s_t2}, 48')
    e(f's_add_u32 s{s_t2}, s{s_t2}, s{s_off}')
    e(f's_lshl_b32 s{s_t2}, s{s_t2}, 9')
    e(f's_add_u32 s{s_t2}, s{s_t2}, {Z1F}')
    e(f'v_lshlrev_b32 v{vT+6}, 3, v{vLane}')
    if fused:
        e(f's_lshl_b32 s{s_j}, s{s_wr}, 1')
        e(f's_add_u32 s{s_j}, s{s_j}, s{s_wc}')
        e(f's_mul_i32 s{s_off}, s{s_j}, 3072')
        e(f's_mul_i32 s{s_t0}, s{s_wc}, 1536')
        e(f's_add_u32 s{s_off}, s{s_off}, s{s_t0}')
        e(f's_add_u32 s{s_off}, s{s_off}, {Z1L}')
        e(f'v_add_u32 v{vT+8}, s{s_off}, v{vT+6}')
        e(f's_xor_b32 s{s_j}, s{s_j}, 1')
        e(f's_mul_i32 s{s_off}, s{s_j}, 3072')
        e(f's_add_u32 s{s_off}, s{s_off}, s{s_t0}')
        e(f's_add_u32 s{s_off}, s{s_off}, {Z1L}')
        e(f'v_add_u32 v{vT+9}, s{s_off}, v{vT+6}')
    e('s_waitcnt lgkmcnt(0)')
    for i in range(12):
        e(f'v_add_f32 v{NC2+i}, v{NC2+i}, v{CS+i}')
        e(f'v_sub_f32 v{NC2+i}, 0, v{NC2+i}')
    ZO = AP
    for T in range(2):
        for ft in range(3):
            for p in range(2):
                a = ACC + (T*3+ft)*4 + 2*p
                n = NC2 + ft*4 + 2*p
                m = MR + 2*T; r = MR + 4 + 2*T
                g = G + 4*p
                e(f'v_pk_fma_f32 v[{a}:{a+1}], v[{n}:{n+1}], v[{m}:{m+1}], v[{a}:{a+1}] op_sel_hi:[1,0,1]')
                e(f'v_pk_mul_f32 v[{a}:{a+1}], v[{a}:{a+1}], v[{r}:{r+1}] op_sel_hi:[1,0]')
                gelu_pair(a, g)
                e(f'v_cvt_pk_bf16_f32 v{ZO+(T*3+ft)*2+p}, v{g}, v{g+1}')
            so = s_t1 if T == 0 else s_t2
            z = ZO + (T*3+ft)*2
            if fused:
                e(f'ds_write_b64 v{vT+8+T}, v[{z}:{z+1}] offset:{ft*512}')
            else:
                e(f'buffer_store_dwordx2 v[{z}:{z+1}], v{vT+6}, s[{sWS}:{sWS+3}], s{so} offen offset:{ft*512} {STF_EARLY}')
        if T == 0: bar('B')
    if fused:
        H.after_B(e, stB, bar)
    if not fused: stB.flush(e, 0, sWS, vT, s_w)
    e.label('K1_END')
    e('s_endpgm')
    if fused: return nbar
    print('k1 barriers', nbar)
    assert nbar['A'] == nbar['B'] == nbar['L'], nbar
    nn = e.finalize()
    return kernel_wrap('k1_kernel', e.text(), vgpr=168, sgpr=96), nn
```

```python
from common import *

WSLOT = 12288; NSLOT = 5
XB0 = NSLOT * WSLOT
XST = 8192
PREP = XB0
PREPV = 11520
MISC = XB0 + 10 * XST
L_M1 = MISC; L_R1 = MISC + 256
L_CSA = MISC + 512
L_CSB = MISC + 1280
L_PS = MISC + 2048
L_PQ = MISC + 2560
L_W2 = MISC + 3072
LDS1 = 147456
import os
PREFETCH = os.environ.get('PREFETCH', '1') == '1'
XP_NOPREP = os.environ.get('XP_NOPREP', '0') == '1'
XP_NODOT = os.environ.get('XP_NODOT', '0') == '1'
XP_NOCOMP = os.environ.get('XP_NOCOMP', '0')
BLOCK1 = 768
DIAG = os.environ.get('DIAG') == '1'
CB = 128 if DIAG else 0
BARST = os.environ.get('BARST') == '1'
SENT = 0xbf800000

K1c = -2.0 * 1.4426950408889634 * 0.7978845608028654
K2c = K1c * 0.044715

KVS = 49152; KVP_ = 144; Z1L = 147456
def gen_k1(e=None, fused=False, H=None):
    if e is None: e = Emitter()
    SC = 'sc1' if fused else ''
    sX, sW, sWS, sK, sV, sT = 8, 12, 16, 20, 24, 28
    s_rb, s_cb, s_w, s_wr, s_wc, s_wl = 32, 33, 34, 35, 36, 55
    s_i, s_j, s_off, s_t0, s_t1, s_t2 = 37, 38, 39, 40, 41, 42
    s_z2b, s_z1b, s_slot, s_mask = 43, 44, 45, 47
    s_k2 = 48; s_one = 50; s_ex = 52; s_xo = 54
    sD = 4
    P = 56
    vLane, vQ, vL15 = 1, 2, 3
    vXA, vXB, vW = 4, 6, 8
    vT = 14
    XF = 26; WF = 42; ACC = 66; CS = 90; ONE = 102; SUM = 106; GR = 110; AP = 114; E = 126
    nbar = {'A': 0, 'B': 0, 'L': 0}
    def bar(role, name=''):
        e('s_barrier'); nbar[role] = nbar.get(role, 0) + 1

    e.c('---- k1: GEMM1 (LN1 folded) + gelu + LN2 + kv prep + w_out retile ; roles A(0-3) B(4-7) L(8)')
    e('s_cmp_ge_u32 s2, 256')
    e('s_cbranch_scc1 K1_END')
    stp = Stamper(); stp.start(e)
    if DIAG:
        e('s_memrealtime s[96:97]'); e('s_memtime s[98:99]')
    stp.mute = fused and os.environ.get('P1ST') != '1'
    e(f's_load_dwordx4 s[{P}:{P+3}], s[0:1], 0')
    e(f's_load_dwordx4 s[{P+4}:{P+7}], s[0:1], 16')
    e(f's_load_dwordx2 s[{P+8}:{P+9}], s[0:1], 56')
    e(f's_load_dwordx2 s[{P+10}:{P+11}], s[0:1], 80')
    e(f's_load_dwordx4 s[{P+12}:{P+15}], s[0:1], 96')
    e(f's_load_dwordx2 s[{P+18}:{P+19}], s[0:1], 64')
    e(f's_load_dwordx2 s[{P+20}:{P+21}], s[0:1], 32')
    e(f'v_and_b32 v{vLane}, 63, v0')
    e(f'v_lshrrev_b32 v{vT}, 6, v0')
    e(f'v_lshrrev_b32 v{vQ}, 4, v{vLane}')
    e(f'v_readfirstlane_b32 s{s_w}, v{vT}')
    e(f'v_and_b32 v{vL15}, 15, v{vLane}')
    e(f's_and_b32 s{s_t0}, s2, 7')
    e(f's_lshr_b32 s{s_t1}, s2, 3')
    e(f's_lshr_b32 s{s_rb}, s{s_t0}, 1')
    e(f's_lshl_b32 s{s_rb}, s{s_rb}, 3')
    e(f's_lshr_b32 s{s_t2}, s{s_t1}, 2')
    e(f's_add_u32 s{s_rb}, s{s_rb}, s{s_t2}')
    e(f's_and_b32 s{s_cb}, s{s_t0}, 1')
    e(f's_lshl_b32 s{s_cb}, s{s_cb}, 2')
    e(f's_and_b32 s{s_t2}, s{s_t1}, 3')
    e(f's_add_u32 s{s_cb}, s{s_cb}, s{s_t2}')
    e(f's_and_b32 s{s_wl}, s{s_w}, 3')
    e(f's_lshr_b32 s{s_wr}, s{s_wl}, 1')
    e(f's_and_b32 s{s_wc}, s{s_wl}, 1')
    e(f's_mov_b32 s{s_mask}, 0xffff0000')
    e(f's_mov_b64 s[{s_ex}:{s_ex+1}], exec')
    e(f's_mul_i32 s{s_z1b}, s{s_cb}, 192')
    e(f's_add_u32 s{s_z2b}, s{s_z1b}, {768*2}')
    e(f's_cmp_ge_u32 s{s_w}, 8')
    e('s_cbranch_scc0 K1_AB')

    e.c('loader (4 waves; L = w&3 handles instr n = 4h + L of each stage)')
    stL = Stamper(); stL.n = 1; stL.mute = fused
    vP, vPr = 4, 5
    VX = 8
    VW = 12
    t = 30
    s_L = s_wl
    s_xs, s_ws_, s_lb = s_j, s_off, s_slot
    e(f's_lshl_b32 s{s_t0}, s{s_rb}, 6')
    e(f's_lshl_b32 s{s_t1}, s{s_L}, 3')
    e(f's_add_u32 s{s_t0}, s{s_t0}, s{s_t1}')
    e(f's_lshl_b32 s{s_lb}, s{s_L}, 10')
    e(f'v_lshrrev_b32 v{t}, 3, v{vLane}')
    e(f'v_add_u32 v{t+2}, s{s_t1}, v{t}')
    e(f'v_lshrrev_b32 v{t+1}, 1, v{t+2}')
    e(f'v_xor_b32 v{t+1}, v{t+1}, v{vLane}')
    e(f'v_and_b32 v{t+1}, 7, v{t+1}')
    e(f'v_lshlrev_b32 v{t+1}, 4, v{t+1}')
    e(f'v_add_u32 v{t}, s{s_t0}, v{t}')
    e(f'v_mul_u32_u24 v{t}, 1280, v{t}')
    e(f'v_add_u32 v{VX}, v{t}, v{t+1}')
    e(f'v_add_u32 v{VX+1}, {32*1280}, v{VX}')
    e('s_waitcnt lgkmcnt(0)')
    stL.stamp(e)
    srd(e, sX, P, S*D*2)
    srd(e, sW, P+8, D*F*2)
    cnt = [0]; done_at = {}
    s_rot = s_i
    e(f's_and_b32 s{s_t0}, s{s_rb}, 7')
    e(f's_and_b32 s{s_t1}, s{s_cb}, 3')
    e(f's_mul_i32 s{s_t1}, s{s_t1}, 3')
    e(f's_add_u32 s{s_rot}, s{s_t0}, s{s_t1}')
    e(f's_sub_u32 s{s_t0}, s{s_rot}, 10')
    e(f's_cmp_ge_u32 s{s_rot}, 10')
    e(f's_cselect_b32 s{s_rot}, s{s_t0}, s{s_rot}')
    def kslice(j, dst):
        e(f's_add_u32 s{dst}, s{s_rot}, {j % 10}')
        e(f's_sub_u32 s{s_t0}, s{dst}, 10')
        e(f's_cmp_ge_u32 s{dst}, 10')
        e(f's_cselect_b32 s{dst}, s{s_t0}, s{dst}')
    def issue_x(j):
        kslice(j, s_xs)
        e(f's_lshl_b32 s{s_xs}, s{s_xs}, 7')
        for h in range(2):
            e(f's_add_u32 m0, s{s_lb}, {XB0 + j*XST + 4096*h}')
            e('s_nop 0')
            e(f'buffer_load_dwordx4 v{VX+h}, s[{sX}:{sX+3}], s{s_xs} offen {NT2} lds')
        cnt[0] += 2
    def issue_w(j):
        base = s_z2b if j < 10 else s_z1b
        kslice(j, s_ws_)
        e(f's_mul_i32 s{s_ws_}, s{s_ws_}, {64*3072}')
        e(f's_add_u32 s{s_ws_}, s{s_ws_}, s{base}')
        for h in range(3):
            e(f's_add_u32 m0, s{s_lb}, {(j % NSLOT)*WSLOT + 4096*h}')
            e('s_nop 0')
            e(f'buffer_load_dwordx4 v{VW+h}, s[{sW}:{sW+3}], s{s_ws_} offen {NT2} lds')
        cnt[0] += 3
    for h in range(3):
        e(f's_lshl_b32 s{s_t0}, s{s_L}, 6')
        e(f's_add_u32 s{s_t0}, s{s_t0}, {64*4*h}')
        e(f'v_add_u32 v{t}, s{s_t0}, v{vLane}')
        e(f'v_mul_u32_u24 v{t+1}, 5462, v{t}')
        e(f'v_lshrrev_b32 v{t+1}, 16, v{t+1}')
        e(f'v_mul_u32_u24 v{t+2}, 12, v{t+1}')
        e(f'v_sub_u32 v{t+2}, v{t}, v{t+2}')
        e(f'v_lshrrev_b32 v{t+3}, 2, v{t+1}')
        e(f'v_and_b32 v{t+3}, 2, v{t+3}')
        e(f'v_xor_b32 v{t+2}, v{t+2}, v{t+3}')
        e(f'v_lshlrev_b32 v{t+2}, 4, v{t+2}')
        e(f'v_mul_u32_u24 v{t+1}, 3072, v{t+1}')
        e(f'v_add_u32 v{VW+h}, v{t+1}, v{t+2}')
    stL.stamp(e)
    issue_x(0)
    issue_w(0); done_at[0] = cnt[0]
    def issue(j):
        if j < 10: issue_x(j)
        issue_w(j)
        done_at[j] = cnt[0]
    def lbar(k):
        n = cnt[0] - done_at[k]
        e(f's_waitcnt vmcnt({min(n, 63)})'); bar('L')
    vK0 = 20
    sa, sb, sc = 46, 78, 79
    def setup_prep():
        e(f'v_mul_u32_u24 v{vPr}, 6554, v{vLane}')
        e(f'v_lshrrev_b32 v{vPr}, 16, v{vPr}')
        e(f'v_mul_u32_u24 v{vP}, 10, v{vPr}')
        e(f'v_sub_u32 v{vP}, v{vLane}, v{vP}')
        e(f'v_lshlrev_b32 v{vP}, 4, v{vP}')
        e(f'v_mul_u32_u24 v{t}, 1280, v{vPr}')
        e(f'v_add_u32 v{vP}, v{vP}, v{t}')
        srd(e, sK, P+2, S*D*2)
        srd(e, sV, P+4, S*D*2)
        e(f's_lshl_b32 s{s_t0}, s{s_rb}, 6')
        e(f's_mul_i32 s{s_t1}, s{s_L}, 6')
        e(f's_add_u32 s{s_t0}, s{s_t0}, s{s_t1}')
        e(f's_mul_i32 s{sa}, s{s_t0}, 1280')
        e(f's_mul_i32 s{s_t1}, s{s_cb}, 160')
        e(f's_add_u32 s{sa}, s{sa}, s{s_t1}')
        e(f's_mul_i32 s{sb}, s{s_L}, 960')
        e(f's_add_u32 s{sb}, s{sb}, {PREP}')
        e(f'v_mov_b32 v{vK0}, v{vP}')
        e(f's_sub_u32 s{sc}, s{sa}, {3*1280}')
        e(f's_cmp_eq_u32 s{s_t0}, 0')
        e('s_cbranch_scc0 K1_NONNEG')
        e(f'v_subrev_u32 v{vK0}, {3*1280}, v{vP}')
        e(f'v_cmp_gt_u32 vcc, 3, v{vPr}')
        e(f'v_mov_b32 v{t+1}, 0x80000000')
        e(f'v_cndmask_b32 v{vK0}, v{vK0}, v{t+1}, vcc')
        e(f's_mov_b32 s{sc}, s{sa}')
        e.label('K1_NONNEG')
        srd(e, sT, P+6, D*4*2)
        e(f'v_lshlrev_b32 v21, 4, v{vLane}')
        e(f's_mul_i32 s54, s{s_cb}, 640')
    def issue_prep():
        set_exec(e, 0xffffffff, 0x0fffffff)
        for n in range(3):
            e(f's_add_u32 m0, s{sb}, {n*3840}')
            e('s_nop 0')
            e(f'buffer_load_dwordx4 v{vK0 if n == 0 else vP}, s[{sK}:{sK+3}], s{sc} offen {NT1} lds')
            e(f's_add_u32 m0, s{sb}, {n*3840 + PREPV}')
            e('s_nop 0')
            e(f'buffer_load_dwordx4 v{vP}, s[{sV}:{sV+3}], s{sa} offen {NT1} lds')
            e(f's_add_u32 s{sa}, s{sa}, {24*1280}')
            e(f's_sub_u32 s{sc}, s{sa}, {3*1280}')
        e(f's_mov_b64 exec, s[{s_ex}:{s_ex+1}]')
        e(f'buffer_load_dwordx4 v[156:159], v21, s[{sT}:{sT+3}], s54 offen')
        cnt[0] += 7
    def prefetch_tail():
        e(f'v_lshlrev_b32 v{t}, 6, v{vLane}')
        e(f's_and_b32 s{s_t0}, s2, 7')
        e(f's_lshl_b32 s{s_t0}, s{s_t0}, 8')
        e(f's_lshr_b32 s{s_t1}, s2, 3')
        e(f's_lshl_b32 s{s_t1}, s{s_t1}, 3')
        e(f's_add_u32 s{s_t0}, s{s_t0}, s{s_t1}')
        e(f's_lshl_b32 s{s_t1}, s{s_L}, 1')
        e(f's_add_u32 s{s_t0}, s{s_t0}, s{s_t1}')
        e(f's_lshl_b32 s{s_t0}, s{s_t0}, 12')
        srd(e, sK, P+18, S*S*2)
        for r in range(2):
            e(f'buffer_load_dword v{t+1+r}, v{t}, s[{sK}:{sK+3}], s{s_t0} offen')
            e(f's_add_u32 s{s_t0}, s{s_t0}, 4096')
        srd(e, sV, P+20, D*S*2)
        e(f's_mul_i32 s{s_t0}, s2, 3')
        e(f's_add_u32 s{s_t0}, s{s_t0}, s{s_L}')
        e(f's_lshl_b32 s{s_t0}, s{s_t0}, 12')
        e(f's_cmp_eq_u32 s{s_L}, 3')
        e(f's_cselect_b32 s{s_t0}, 0x80000000, s{s_t0}')
        e(f'buffer_load_dword v{t+5}, v{t}, s[{sV}:{sV+3}], s{s_t0} offen')
        cnt[0] += 3
    xs = {1: [1, 2], 2: [3, 4], 3: [5, 6], 4: [7, 8], 5: [9]}
    wn = 1
    if os.environ.get('UP1', '1') == '1':
        issue_x(1); issue_w(1); done_at[1] = cnt[0]; wn = 2
        xs = {1: [2, 3], 2: [4, 5], 3: [6, 7], 4: [8, 9]}
    for k in range(20):
        if k >= 1:
            lim = {1: 3 if os.environ.get('UP1', '1') == '1' else 2, 2: 4}.get(k, min(19, k + 2 if k <= 5 else k + 3))
            todo_x = list(xs.get(k, []))
            while wn <= lim or todo_x:
                if todo_x: issue_x(todo_x.pop(0))
                if wn <= lim:
                    issue_w(wn); done_at[wn] = cnt[0]; wn += 1
                    if wn == 20: issue_prep()
        if k == 11: setup_prep()
        lbar(k)
        if k in (0, 1): stL.stamp(e)
    assert wn == 20
    bar('L'); bar('L')
    H.l2_pre(e)
    e('s_waitcnt vmcnt(12)')
    bar('L')
    SKL = 156; KR = 40; VRr = 59; KP = 76; CP = 114; KVP = 122; OUT = 40
    vt = 30
    e(f's_mul_i32 s{s_t0}, s{s_wl}, {16*160}')
    e(f's_add_u32 s{s_t0}, s{s_t0}, {PREP}')
    e(f'v_lshlrev_b32 v{vt}, 2, v{vLane}')
    e(f'v_min_u32 v{vt}, 156, v{vt}')
    e(f'v_add_u32 v{vt}, s{s_t0}, v{vt}')
    for r in range(19):
        e(f'ds_read_b32 v{KR+r}, v{vt} offset:{r*160}')
        if r == 13: e('s_waitcnt lgkmcnt(6)')
    for r in range(16):
        if r in (2, 10): e('s_waitcnt lgkmcnt(6)')
        e(f'ds_read_b32 v{VRr+r}, v{vt} offset:{PREPV + r*160}')
    e(f'v_lshlrev_b32 v{CP+0}, 16, v{SKL+0}'); e(f'v_lshlrev_b32 v{CP+1}, 16, v{SKL+2}')
    e(f'v_and_b32 v{CP+2}, s{s_mask}, v{SKL+0}'); e(f'v_and_b32 v{CP+3}, s{s_mask}, v{SKL+2}')
    e(f'v_lshlrev_b32 v{CP+4}, 16, v{SKL+1}'); e(f'v_lshlrev_b32 v{CP+5}, 16, v{SKL+3}')
    e(f'v_and_b32 v{CP+6}, s{s_mask}, v{SKL+1}'); e(f'v_and_b32 v{CP+7}, s{s_mask}, v{SKL+3}')
    e('s_waitcnt lgkmcnt(12)')
    for r in range(19):
        if r == 12: e('s_waitcnt lgkmcnt(0)')
        e(f'v_lshlrev_b32 v{KP+2*r}, 16, v{KR+r}')
        e(f'v_and_b32 v{KP+2*r+1}, s{s_mask}, v{KR+r}')
    for i in range(16):
        t_ = KVP + 2*i
        e(f'v_pk_mul_f32 v[{t_}:{t_+1}], v[{CP+6}:{CP+7}], v[{KP+2*i}:{KP+2*i+1}]')
        e(f'v_lshlrev_b32 v{vt+2}, 16, v{VRr+i}')
        e(f'v_pk_fma_f32 v[{t_}:{t_+1}], v[{CP+4}:{CP+5}], v[{KP+2*i+2}:{KP+2*i+3}], v[{t_}:{t_+1}]')
        e(f'v_and_b32 v{vt+3}, s{s_mask}, v{VRr+i}')
        e(f'v_pk_fma_f32 v[{t_}:{t_+1}], v[{CP+2}:{CP+3}], v[{KP+2*i+4}:{KP+2*i+5}], v[{t_}:{t_+1}]')
        e(f'v_pk_fma_f32 v[{t_}:{t_+1}], v[{CP+0}:{CP+1}], v[{KP+2*i+6}:{KP+2*i+7}], v[{t_}:{t_+1}]')
        e(f'v_pk_mul_f32 v[{t_}:{t_+1}], v[{t_}:{t_+1}], v[{vt+2}:{vt+3}]')
    for dd in range(2):
        for g in range(2):
            for n in range(4):
                lo = KVP + 2*(8*g + 7 - 2*n) + dd
                hi = KVP + 2*(8*g + 6 - 2*n) + dd
                e(f'v_cvt_pk_bf16_f32 v{OUT + dd*8 + g*4 + n}, v{lo}, v{hi}')
    e(f'v_mul_u32_u24 v{vt}, {2*KVP_}, v{vLane}')
    e(f's_lshl_b32 s{s_t0}, s{s_wl}, 5')
    e(f's_add_u32 s{s_t0}, s{s_t0}, {KVS}')
    e(f'v_add_u32 v{vt}, s{s_t0}, v{vt}')
    set_exec(e, 0xffffffff, 0xff)
    for dd in range(2):
        for g in range(2):
            o = OUT + dd*8 + g*4
            e(f'ds_write_b128 v{vt}, v[{o}:{o+3}] offset:{dd*KVP_ + g*16}')
    e(f's_mov_b64 exec, s[{s_ex}:{s_ex+1}]')
    e('s_waitcnt lgkmcnt(0)')
    H.after_L(e, bar)
    if STAMPS and not fused:
        srd(e, sWS, P+14, WS_SIZE) if False else None
        e(f's_load_dwordx2 s[{P+14}:{P+15}], s[0:1], 104')
        e('s_waitcnt lgkmcnt(0)')
        srd(e, sWS, P+14, WS_SIZE)
        stL.flush(e, 3, sWS, t, s_wl)
    if not fused: e('s_endpgm')

    e.label('K1_AB')
    e(f'v_lshrrev_b32 v{vT+3}, 1, v{vL15}')
    e(f'v_xor_b32 v{vT+3}, v{vT+3}, v{vQ}')
    e(f'v_lshlrev_b32 v{vT+3}, 4, v{vT+3}')
    e(f'v_lshlrev_b32 v{vT+4}, 7, v{vL15}')
    e(f'v_add_u32 v{vT+3}, v{vT+3}, v{vT+4}')
    e(f'v_xor_b32 v{vT+4}, 64, v{vT+3}')
    e(f's_lshl_b32 s{s_t0}, s{s_wr}, 12')
    e(f's_lshl_b32 s{s_t1}, s{s_wc}, 11')
    e(f's_add_u32 s{s_t2}, s{s_t0}, s{s_t1}')
    e(f's_add_u32 s{s_t2}, s{s_t2}, {XB0}')
    e(f'v_add_u32 v{vXA}, s{s_t2}, v{vT+3}')
    e(f'v_add_u32 v{vXA+1}, s{s_t2}, v{vT+4}')
    e(f's_xor_b32 s{s_t1}, s{s_t1}, 2048')
    e(f's_add_u32 s{s_t2}, s{s_t0}, s{s_t1}')
    e(f's_add_u32 s{s_t2}, s{s_t2}, {XB0}')
    e(f'v_add_u32 v{vXB}, s{s_t2}, v{vT+3}')
    e(f'v_add_u32 v{vXB+1}, s{s_t2}, v{vT+4}')
    e(f'v_lshrrev_b32 v{vT+3}, 2, v{vLane}')
    e(f'v_and_b32 v{vT+3}, 3, v{vT+3}')
    e(f'v_lshlrev_b32 v{vT+4}, 3, v{vQ}')
    e(f'v_add_u32 v{vT+3}, v{vT+3}, v{vT+4}')
    e(f'v_mul_u32_u24 v{vT+3}, 192, v{vT+3}')
    e(f'v_and_b32 v{vT+4}, 3, v{vLane}')
    e(f'v_lshlrev_b32 v{vT+4}, 3, v{vT+4}')
    e(f'v_add_u32 v{vT+3}, v{vT+3}, v{vT+4}')
    e(f'v_and_b32 v{vT+5}, 1, v{vQ}')
    e(f's_mul_i32 s{s_t0}, s{s_wc}, 3')
    for ft in range(3):
        e(f's_add_u32 s{s_t1}, s{s_t0}, {ft}')
        e(f'v_xor_b32 v{vT+4}, s{s_t1}, v{vT+5}')
        e(f'v_lshlrev_b32 v{vT+4}, 5, v{vT+4}')
        e(f'v_add_u32 v{vW+ft}, v{vT+3}, v{vT+4}')
    e(f's_mov_b32 s{s_k2}, {hexf(K2c)}'); e(f's_mov_b32 s{s_k2+1}, {hexf(K2c)}')
    e(f's_mov_b32 s{s_one}, 1.0'); e(f's_mov_b32 s{s_one+1}, 1.0')
    e('s_waitcnt lgkmcnt(0)')
    srd(e, sWS, P+14, WS_SIZE)
    srd(e, sD, P+12, 256)
    e(f's_cmp_ge_u32 s{s_w}, 4')
    e('s_cbranch_scc1 K1_B')

    def rd_list(buf, ksl, xoff, woff):
        L = []
        L.append(f'ds_read_b128 v[{XF+buf*8}:{XF+buf*8+3}], v{vXA+ksl} offset:{xoff}')
        for ft in range(3):
            b = WF + buf*12 + ft*4
            L.append(f'ds_read_b64_tr_b16 v[{b}:{b+1}], v{vW+ft} offset:{woff+ksl*6144}')
            L.append(f'ds_read_b64_tr_b16 v[{b+2}:{b+3}], v{vW+ft} offset:{woff+ksl*6144+768}')
            if ft == 0:
                L.append(f'ds_read_b128 v[{XF+buf*8+4}:{XF+buf*8+7}], v{vXB+ksl} offset:{xoff}')
        return L
    def phase(buf, ksl, p, tag, nxt_reads):
        mf = []
        for ft in range(3):
            for T in range(2):
                a = ACC + (T*3+ft)*4
                x = f'v[{XF+buf*8+T*4}:{XF+buf*8+T*4+3}]'
                w = f'v[{WF+buf*12+ft*4}:{WF+buf*12+ft*4+3}]'
                if p == 1: mf.append(f'v_mfma_f32_16x16x32_bf16 v[{a}:{a+3}], {x}, {w}, v[{a}:{a+3}]')
                else:      mf.append(f'v_mfma_f32_16x16x32_bf16 v[{a}:{a+3}], {w}, {x}, v[{a}:{a+3}]')
        fills = [nxt_reads[0:2], nxt_reads[2:4], nxt_reads[4:6], nxt_reads[6:8], [], []]
        if p == 1 and not XP_NODOT:
            x = f'v[{XF+buf*8}:{XF+buf*8+3}]'
            mf.append(f'v_mfma_f32_16x16x32_bf16 v[{SUM}:{SUM+3}], v[{ONE}:{ONE+3}], {x}, v[{SUM}:{SUM+3}]')
            mf.append(f'v_mfma_f32_16x16x32_bf16 v[{GR}:{GR+3}], {x}, {x}, v[{GR}:{GR+3}]')
        if XP_NOCOMP == '2': fills = [[] for _ in fills]
        if XP_NOCOMP == '3': mf = ['s_nop 0'] * len(mf)
        weave(e, mf, fills)
        e(f's_cmp_eq_u32 s{s_wr}, {ksl}')
        e(f's_cbranch_scc0 K1_SK_{tag}')
        for ft in range(3):
            a = CS + ft*4
            w = f'v[{WF+buf*12+ft*4}:{WF+buf*12+ft*4+3}]'
            o = f'v[{ONE}:{ONE+3}]'
            if p == 1: e(f'v_mfma_f32_16x16x32_bf16 v[{a}:{a+3}], {o}, {w}, v[{a}:{a+3}]')
            else:      e(f'v_mfma_f32_16x16x32_bf16 v[{a}:{a+3}], {w}, {o}, v[{a}:{a+3}]')
        e.label(f'K1_SK_{tag}')
    def init_acc():
        for i in range(4): e(f'v_mov_b32 v{ONE+i}, 0x3f803f80')
        for i in range(24): e(f'v_mov_b32 v{ACC+i}, 0')
        for i in range(12): e(f'v_mov_b32 v{CS+i}, 0')
        for i in range(8): e(f'v_mov_b32 v{SUM+i}, 0')
    def loop(p, role):
        L = f'K1_LOOP{p}'
        if BARST:
            e('s_mov_b32 m0, 0'); e('s_memtime s[90:91]'); e('v_mov_b32 v150, 0')
        if XP_NOCOMP == '1':
            for _ in range(10): bar(role)
            return
        e(f's_mov_b32 s{s_i}, 0')
        for x in rd_list(0, 0, 0, 0): e(x)
        e.label(L)
        for u in range(5):
            e('s_waitcnt lgkmcnt(0)')
            phase(0, 0, p, f'{p}a{u}', rd_list(1, 1, u*XST, u*WSLOT))
            e('s_waitcnt lgkmcnt(0)')
            if BARST:
                e('v_writelane_b32 v150, s90, m0')
                e('s_add_u32 m0, m0, 1')
            e('s_barrier')
            if BARST: e('s_memtime s[90:91]')
            if u == 4:
                for r in (vXA, vXA+1, vXB, vXB+1):
                    e(f'v_add_u32 v{r}, {5*XST}, v{r}')
                nx = rd_list(0, 0, 0, 0)
            else:
                nx = rd_list(0, 0, (u+1)*XST, (u+1)*WSLOT)
            phase(1, 1, p, f'{p}b{u}', nx)
            if p == 2 and PREFETCH and (not fused or os.environ.get('TOUCH') == 'p2'):
                e(f's_and_b32 s{s_t0}, s46, 3')
                e(f's_cmp_eq_u32 s{s_t0}, s{s_wl}')
                e(f's_cbranch_scc0 K1_NT{u}')
                e('s_cmp_lt_u32 s46, 8')
                e(f's_cbranch_scc0 K1_NT{u}')
                e(f'buffer_load_dword v148, v144, s[{sK}:{sK+3}], s54 offen')
                e.label(f'K1_NT{u}')
                e('s_add_u32 s46, s46, 1')
                e('s_add_u32 s54, s54, 4096')
        e(f's_add_u32 s{s_i}, s{s_i}, 1')
        e(f's_cmp_lt_u32 s{s_i}, 2')
        e(f's_cbranch_scc1 {L}')
        nbar[role] += 10
        if BARST:
            e('s_waitcnt lgkmcnt(0)')
            e('v_writelane_b32 v150, s90, m0')
            e(f's_lshl_b32 s{s_t0}, s2, 3'); e(f's_add_u32 s{s_t0}, s{s_t0}, s{s_w}'); e(f's_lshl_b32 s{s_t0}, s{s_t0}, 6')
            e(f's_add_u32 s{s_t0}, s{s_t0}, {TSB + 3*0x40000}')
            e(f'v_lshlrev_b32 v151, 2, v{vLane}')
            set_exec(e, 0xffff, 0)
            e(f'buffer_store_dword v150, v151, s[{sWS}:{sWS+3}], s{s_t0} offen')
            e(f's_mov_b64 exec, s[{s_ex}:{s_ex+1}]')
    K1V = E + 0
    G = E + 2
    def gelu_pair_sc(t, u):
        for h in range(2):
            e(f'v_mul_f32 v{u+h}, v{t+h}, v{t+h}')
        for h in range(2):
            e(f'v_fma_f32 v{u+h}, v{u+h}, s{s_k2}, v{K1V}')
        for h in range(2):
            e(f'v_mul_f32 v{u+h}, v{u+h}, v{t+h}')
        for h in range(2):
            e(f'v_exp_f32 v{u+h}, v{u+h}')
        for h in range(2):
            e(f'v_add_f32 v{u+h}, 1.0, v{u+h}')
        for h in range(2):
            e(f'v_rcp_f32 v{u+h}, v{u+h}')
        for h in range(2):
            e(f'v_mul_f32 v{u+h}, v{u+h}, v{t+h}')
    def gelu_pair(t, u):
        e(f'v_pk_mul_f32 v[{u}:{u+1}], v[{t}:{t+1}], v[{t}:{t+1}]')
        e(f'v_pk_fma_f32 v[{u}:{u+1}], v[{u}:{u+1}], s[{s_k2}:{s_k2+1}], v[{K1V}:{K1V+1}]')
        e(f'v_pk_mul_f32 v[{u}:{u+1}], v[{u}:{u+1}], v[{t}:{t+1}]')
        e(f'v_exp_f32 v{u}, v{u}')
        e(f'v_exp_f32 v{u+1}, v{u+1}')
        e(f'v_pk_add_f32 v[{u}:{u+1}], v[{u}:{u+1}], s[{s_one}:{s_one+1}]')
        e(f'v_rcp_f32 v{u}, v{u}')
        e(f'v_rcp_f32 v{u+1}, v{u+1}')
        e(f'v_pk_mul_f32 v[{u}:{u+1}], v[{u}:{u+1}], v[{t}:{t+1}]')

    e.c('role A')
    init_acc()
    bar('A')
    stp.stamp(e)
    loop(1, 'A')
    stp.stamp(e)
    e.c('A epilogue')
    e('s_setprio 2')
    e(f's_lshl_b32 s{s_t0}, s{s_rb}, 2')
    e(f'v_mov_b32 v{vT+8}, s{s_t0}')
    PC = vT + 9
    e(f'v_and_b32 v{vT}, 3, v{vL15}')
    e(f'v_cmp_eq_u32 vcc, 1, v{vT}')
    e(f'v_cndmask_b32 v{GR}, v{GR}, v{GR+1}, vcc')
    e(f'v_cmp_eq_u32 vcc, 2, v{vT}')
    e(f'v_cndmask_b32 v{GR}, v{GR}, v{GR+2}, vcc')
    e(f'v_cmp_eq_u32 vcc, 3, v{vT}')
    e(f'v_cndmask_b32 v{GR}, v{GR}, v{GR+3}, vcc')
    ln_finalize(e, SUM, GR, D, vT+2, vT+3, vT+4, vT+5)
    e(f's_lshl_b32 s{s_t0}, s{s_wr}, 5')
    e(f's_lshl_b32 s{s_t1}, s{s_wc}, 4')
    e(f's_add_u32 s{s_t0}, s{s_t0}, s{s_t1}')
    e(f'v_add_u32 v{vT+4}, s{s_t0}, v{vL15}')
    e(f'v_lshlrev_b32 v{vT+5}, 2, v{vT+4}')
    e(f'v_add_u32 v{vT+5}, {L_M1}, v{vT+5}')
    set_exec(e, 0x00f0000f, 0xf0000f00)
    e(f'ds_write_b32 v{vT+5}, v{vT+2}')
    e(f'ds_write_b32 v{vT+5}, v{vT+3} offset:256')
    if fused: e('s_branch K1_NOST1X')
    e(f's_cmp_eq_u32 s{s_cb}, 0')
    e('s_cbranch_scc0 K1_NOST1X')
    e(f's_lshl_b32 s{s_t1}, s{s_rb}, 9')
    e(f's_add_u32 s{s_t1}, s{s_t1}, {ST1}')
    e(f'v_lshlrev_b32 v{vT+4}, 3, v{vT+4}')
    e(f'buffer_store_dwordx2 v[{vT+2}:{vT+3}], v{vT+4}, s[{sWS}:{sWS+3}], s{s_t1} offen {SC}')
    e.label('K1_NOST1X')
    e(f's_mov_b64 exec, s[{s_ex}:{s_ex+1}]')
    e(f's_mul_i32 s{s_t0}, s{s_wl}, 192')
    e(f's_add_u32 s{s_t0}, s{s_t0}, {L_CSA}')
    e(f'v_lshlrev_b32 v{vT+6}, 2, v{vL15}')
    e(f'v_add_u32 v{vT+6}, s{s_t0}, v{vT+6}')
    for ft in range(3):
        e(f'ds_write_b32 v{vT+6}, v{CS+ft*4} offset:{ft*64}')
    e('s_waitcnt lgkmcnt(0)')
    bar('A')
    e(f's_xor_b32 s{s_t1}, s{s_wl}, 2')
    e(f's_mul_i32 s{s_t1}, s{s_t1}, 192')
    e(f's_add_u32 s{s_t1}, s{s_t1}, {L_CSA}')
    e(f'v_lshlrev_b32 v{vT+4}, 2, v{vL15}')
    e(f'v_add_u32 v{vT+4}, s{s_t1}, v{vT+4}')
    NCS = E + 10
    for ft in range(3):
        e(f'ds_read_b32 v{NCS+2*ft}, v{vT+4} offset:{ft*64}')
    M1 = XF
    R1 = XF + 8
    e(f's_lshl_b32 s{s_t0}, s{s_wr}, 7')
    e(f's_lshl_b32 s{s_t1}, s{s_wc}, 6')
    e(f's_add_u32 s{s_t0}, s{s_t0}, s{s_t1}')
    e(f's_add_u32 s{s_t0}, s{s_t0}, {L_M1}')
    e(f'v_lshlrev_b32 v{vT+5}, 4, v{vQ}')
    e(f'v_add_u32 v{vT+5}, s{s_t0}, v{vT+5}')
    e(f'v_xor_b32 v{vT+6}, 64, v{vT+5}')
    e(f'ds_read_b128 v[{M1}:{M1+3}], v{vT+5}')
    e(f'ds_read_b128 v[{M1+4}:{M1+7}], v{vT+6}')
    e(f'ds_read_b128 v[{R1}:{R1+3}], v{vT+5} offset:256')
    e(f'ds_read_b128 v[{R1+4}:{R1+7}], v{vT+6} offset:256')
    e(f'v_mov_b32 v{K1V}, {hexf(K1c)}'); e(f'v_mov_b32 v{K1V+1}, {hexf(K1c)}')
    SA = WF
    for i in range(16): e(f'v_mov_b32 v{SA+i}, 0')
    e('s_waitcnt lgkmcnt(0)')
    for ft in range(3):
        e(f'v_add_f32 v{NCS+2*ft}, v{NCS+2*ft}, v{CS+ft*4}')
        e(f'v_sub_f32 v{NCS+2*ft}, 0, v{NCS+2*ft}')
    npair = 0
    for ft in range(3):
        for T in range(2):
            for p in range(2):
                a = ACC + (T*3+ft)*4 + 2*p
                n = NCS + 2*ft
                g = G + 4*p
                for h in range(2):
                    e(f'v_fma_f32 v{a+h}, v{M1+T*4+2*p+h}, v{n}, v{a+h}')
                for h in range(2):
                    e(f'v_mul_f32 v{a+h}, v{a+h}, v{R1+T*4+2*p+h}')
                gelu_pair_sc(a, g)
                e(f'v_cvt_pk_bf16_f32 v{AP+ft*4+T*2+p}, v{g}, v{g+1}')
                s_ = SA + T*4 + 2*p
                for h in range(2):
                    e(f'v_add_f32 v{s_+h}, v{s_+h}, v{g+h}')
                for h in range(2):
                    e(f'v_fma_f32 v{s_+8+h}, v{g+h}, v{g+h}, v{s_+8+h}')
                npair += 1
                if npair in (2, 5, 7, 10, 12): bar('A')
    for k, sh in enumerate((8, 4, 2, 1)):
        for i in range(16):
            e(f'v_add_f32_dpp v{SA+i}, v{SA+i}, v{SA+i} row_ror:{sh} row_mask:0xf bank_mask:0xf')
    e(f's_lshl_b32 s{s_t0}, s{s_wc}, 8')
    e(f's_add_u32 s{s_t0}, s{s_t0}, {L_PS - L_M1}')
    e(f'v_add_u32 v{vT+5}, s{s_t0}, v{vT+5}')
    e(f'v_add_u32 v{vT+6}, s{s_t0}, v{vT+6}')
    set_exec(e, 0x00010001, 0x00010001)
    e(f'ds_write_b128 v{vT+5}, v[{SA}:{SA+3}]')
    e(f'ds_write_b128 v{vT+6}, v[{SA+4}:{SA+7}]')
    e(f'ds_write_b128 v{vT+5}, v[{SA+8}:{SA+11}] offset:{L_PQ-L_PS}')
    e(f'ds_write_b128 v{vT+6}, v[{SA+12}:{SA+15}] offset:{L_PQ-L_PS}')
    e(f's_mov_b64 exec, s[{s_ex}:{s_ex+1}]')
    e('s_waitcnt lgkmcnt(0)')
    bar('A')
    e(f's_cmp_eq_u32 s{s_w}, 0')
    e('s_cbranch_scc0 K1_NOPUB')
    e(f'v_lshlrev_b32 v{vT}, 2, v{vLane}')
    e(f'v_add_u32 v{vT}, {L_PS}, v{vT}')
    e(f'ds_read_b32 v{vT+2}, v{vT}')
    e(f'ds_read_b32 v{vT+4}, v{vT} offset:256')
    e(f'ds_read_b32 v{vT+3}, v{vT} offset:{L_PQ-L_PS}')
    e(f'ds_read_b32 v{vT+5}, v{vT} offset:{L_PQ-L_PS+256}')
    e(f's_lshl_b32 s{s_t0}, s{s_rb}, 3')
    e(f's_add_u32 s{s_t0}, s{s_t0}, s{s_cb}')
    e(f's_lshl_b32 s{s_t0}, s{s_t0}, 9')
    e(f's_add_u32 s{s_t0}, s{s_t0}, {XCH}')
    e(f'v_lshlrev_b32 v{vT+1}, 3, v{vLane}')
    e('s_waitcnt lgkmcnt(0)')
    e(f'v_add_f32 v{vT+2}, v{vT+2}, v{vT+4}')
    e(f'v_add_f32 v{vT+3}, v{vT+3}, v{vT+5}')
    e(f'v_max_f32 v{vT+3}, 0, v{vT+3}')
    e(f'buffer_store_dwordx2 v[{vT+2}:{vT+3}], v{vT+1}, s[{sWS}:{sWS+3}], s{s_t0} offen sc1')
    e.label('K1_NOPUB')
    stp.stamp(e)
    e(f's_mul_i32 s{s_t0}, s{s_cb}, 6')
    e(f's_mul_i32 s{s_t1}, s{s_wc}, 3')
    e(f's_add_u32 s{s_t0}, s{s_t0}, s{s_t1}')
    e(f's_lshl_b32 s{s_t0}, s{s_t0}, 6')
    e(f's_lshl_b32 s{s_t1}, s{s_rb}, 1')
    e(f's_add_u32 s{s_t0}, s{s_t0}, s{s_t1}')
    e(f's_add_u32 s{s_t0}, s{s_t0}, s{s_wr}')
    e(f's_lshl_b32 s{s_t0}, s{s_t0}, 10')
    e(f's_add_u32 s{s_off}, s{s_t0}, {Z2F}')
    e(f'v_and_b32 v{vT+7}, 1, v{vQ}')
    e(f'v_lshlrev_b32 v{vT+7}, 1, v{vT+7}')
    e(f'v_lshrrev_b32 v{vT+10}, 1, v{vQ}')
    e(f'v_or_b32 v{vT+7}, v{vT+7}, v{vT+10}')
    e(f's_lshl_b32 s{s_t1}, s{s_wc}, 1')
    e(f'v_xor_b32 v{vT+7}, s{s_t1}, v{vT+7}')
    e(f'v_lshlrev_b32 v{vT+7}, 4, v{vT+7}')
    e(f'v_add_u32 v{vT+7}, v{vT+7}, v{vL15}')
    e(f'v_lshlrev_b32 v{vT+7}, 4, v{vT+7}')
    e(f'v_and_b32 v{vT+10}, 31, v{vLane}')
    e(f's_lshl_b32 s{s_j}, s{s_wr}, 5')
    e(f'v_add_u32 v{vT+10}, s{s_j}, v{vT+10}')
    e(f'v_lshlrev_b32 v{vT+10}, 3, v{vT+10}')
    e(f's_lshl_b32 s{s_j}, s{s_rb}, 12')
    e(f's_add_u32 s{s_j}, s{s_j}, {XCH}')
    e(f'buffer_load_dword v{PC}, v{vT+8}, s[{sD}:{sD+3}], 0 offen offset:{CB} sc1')
    bar('A'); bar('A'); bar('A')
    e('s_waitcnt vmcnt(0)')
    e('s_mov_b32 s54, 0')
    e.label('K1_CCHK')
    e(f'v_readfirstlane_b32 s{s_t0}, v{PC}')
    e(f's_cmp_ge_u32 s{s_t0}, 8')
    e('s_cbranch_scc1 K1_COK')
    e('s_add_u32 s54, s54, 1')
    e('s_cmp_lt_u32 s54, 0x200000')
    e('s_cbranch_scc0 K1_COK')
    e('s_sleep 4')
    e(f'buffer_load_dword v{PC}, v{vT+8}, s[{sD}:{sD+3}], 0 offen offset:{CB} sc1')
    e('s_waitcnt vmcnt(0)')
    e('s_branch K1_CCHK')
    e.label('K1_COK')
    XP = WF + 2
    for c in range(8):
        e(f'buffer_load_dwordx2 v[{XP+2*c}:{XP+2*c+1}], v{vT+10}, s[{sWS}:{sWS+3}], s{s_j} offen offset:{c*512} sc1')
    bar('A')
    e('s_setprio 0')
    bar('A')
    e('s_waitcnt vmcnt(0)')
    e('s_mov_b32 s54, 0')
    e.label('K1_CHECK')
    e(f's_mov_b32 s{s_t0}, {hex(SENT)}')
    e(f'v_cmp_eq_u32 vcc, s{s_t0}, v{XP+1}')
    for c in range(1, 8):
        e(f'v_cmp_eq_u32 s[{P}:{P+1}], s{s_t0}, v{XP+2*c+1}')
        e(f's_or_b64 vcc, vcc, s[{P}:{P+1}]')
    e('s_cmp_eq_u64 vcc, 0')
    e('s_cbranch_scc1 K1_POLLED')
    e('s_add_u32 s54, s54, 1')
    e('s_cmp_lt_u32 s54, 0x200000')
    e('s_cbranch_scc0 K1_POLLED')
    for c in range(8):
        e(f'buffer_load_dwordx2 v[{XP+2*c}:{XP+2*c+1}], v{vT+10}, s[{sWS}:{sWS+3}], s{s_j} offen offset:{c*512} sc1')
    e('s_waitcnt vmcnt(0)')
    e('s_branch K1_CHECK')
    e.label('K1_POLLED')
    stp.stamp(e)
    for c in range(1, 8):
        e(f'v_pk_add_f32 v[{XP}:{XP+1}], v[{XP}:{XP+1}], v[{XP+2*c}:{XP+2*c+1}]')
    ln_finalize(e, XP, XP+1, FH, vT+2, vT+3, vT+4, vT+5)
    e(f'v_mul_f32 v{vT+2}, v{vT+2}, v{vT+3}')
    e(f'v_sub_f32 v{vT+2}, 0, v{vT+2}')
    e(f's_lshl_b32 s{s_t0}, s{s_wl}, 8')
    e(f's_add_u32 s{s_t0}, s{s_t0}, {L_W2}')
    e(f'v_and_b32 v{vT+4}, 31, v{vLane}')
    e(f'v_lshlrev_b32 v{vT+4}, 2, v{vT+4}')
    e(f'v_add_u32 v{vT+4}, s{s_t0}, v{vT+4}')
    e(f'ds_write_b32 v{vT+4}, v{vT+2}')
    e(f'ds_write_b32 v{vT+4}, v{vT+3} offset:128')
    e(f's_lshl_b32 s{s_t1}, s{s_wc}, 6')
    e(f's_add_u32 s{s_t0}, s{s_t0}, s{s_t1}')
    e(f'v_lshlrev_b32 v{vT+5}, 4, v{vQ}')
    e(f'v_add_u32 v{vT+5}, s{s_t0}, v{vT+5}')
    e(f'v_xor_b32 v{vT+6}, 64, v{vT+5}')
    e('s_waitcnt lgkmcnt(0)')
    e(f'ds_read_b128 v[{M1}:{M1+3}], v{vT+5}')
    e(f'ds_read_b128 v[{M1+4}:{M1+7}], v{vT+6}')
    e(f'ds_read_b128 v[{R1}:{R1+3}], v{vT+5} offset:128')
    e(f'ds_read_b128 v[{R1+4}:{R1+7}], v{vT+6} offset:128')
    e('s_waitcnt lgkmcnt(0)')
    for ft in range(3):
        for T in range(2):
            for p in range(2):
                a = AP + ft*4 + T*2 + p
                g = G + 4*p
                e(f'v_lshlrev_b32 v{g}, 16, v{a}')
                e(f'v_and_b32 v{g+1}, s{s_mask}, v{a}')
                e(f'v_pk_fma_f32 v[{g}:{g+1}], v[{g}:{g+1}], v[{R1+T*4+2*p}:{R1+T*4+2*p+1}], v[{M1+T*4+2*p}:{M1+T*4+2*p+1}]')
                e(f'v_cvt_pk_bf16_f32 v{a}, v{g}, v{g+1}')
        b = AP + ft*4
        e(f'v_permlane16_swap_b32 v{b}, v{b+2}')
        e(f'v_permlane16_swap_b32 v{b+1}, v{b+3}')
        e(f's_add_u32 s{s_t1}, s{s_off}, {ft*65536}')
        e(f'buffer_store_dwordx4 v[{b}:{b+3}], v{vT+7}, s[{sWS}:{sWS+3}], s{s_t1} offen sc1')
    if fused:
        H.after_A(e, stp, bar)
    else:
        stp.flush(e, 0, sWS, vT, s_w)
        e('s_endpgm')

    e.label('K1_B')
    e.c('role B')
    stB = Stamper(); stB.n = 1; stB.mute = fused and os.environ.get('P1ST') != '1'
    SK = 160; WR = 152; WO = 164
    e(f's_cmp_eq_u32 s{s_w}, 4')
    e('s_cbranch_scc0 K1_NORST')
    e(f's_lshl_b32 s{s_t0}, s{s_rb}, 3')
    e(f's_add_u32 s{s_t0}, s{s_t0}, s{s_cb}')
    e(f's_lshl_b32 s{s_t0}, s{s_t0}, 9')
    e(f's_add_u32 s{s_t0}, s{s_t0}, {XCH}')
    e(f'v_lshlrev_b32 v{vT+1}, 3, v{vLane}')
    e(f'v_mov_b32 v{vT+6}, 0')
    e(f'v_mov_b32 v{vT+7}, {hex(SENT)}')
    e(f'buffer_store_dwordx2 v[{vT+6}:{vT+7}], v{vT+1}, s[{sWS}:{sWS+3}], s{s_t0} offen sc1')
    if fused:
        H.flag_addr(e, vT+1, vT+2)
        set_exec(e, 15, 0)
        e(f'buffer_store_dword v{vT+6}, v{vT+1}, s[{sWS}:{sWS+3}], 0 offen sc1')
        e(f's_mov_b64 exec, s[{s_ex}:{s_ex+1}]')
    e.label('K1_NORST')
    DUM = 140
    vTP = 144; vKV = 145; s_tpw = 54; s_tps = 46; s_kv = 78
    e(f's_lshl_b32 s{s_t0}, s2, 2')
    e(f's_add_u32 s{s_t0}, s{s_t0}, s{s_wl}')
    e(f's_mul_i32 s{s_t1}, s{s_t0}, 2731')
    e(f's_lshr_b32 s{s_t1}, s{s_t1}, 16')
    e(f's_mul_i32 s{s_t2}, s{s_t1}, 24')
    e(f's_sub_u32 s{s_t2}, s{s_t0}, s{s_t2}')
    e(f's_mov_b32 s{P+16}, s{s_t0}')
    e(f'v_mul_u32_u24 v{vT+3}, {4*1280}, v{vQ}')
    e(f'v_lshlrev_b32 v{vT+4}, 1, v{vL15}')
    e(f'v_add_u32 v{vT+3}, v{vT+3}, v{vT+4}')
    e(f's_lshl_b32 s{s_t1}, s{s_t1}, 5')
    e(f's_mul_i32 s{s_t2}, s{s_t2}, {32*1280}')
    e(f's_add_u32 s{s_t1}, s{s_t1}, s{s_t2}')
    e(f's_add_u32 s{s_t2}, s{s_t1}, {16*1280}')
    bar('B')
    stB.stamp(e)
    srd(e, sT, P+10, FH*D*2)
    for j in range(8):
        so = s_t1 if j < 4 else s_t2
        e(f'buffer_load_ushort v{WR + j}, v{vT+3}, s[{sT}:{sT+3}], s{so} offen offset:{(j%4)*1280} {NT1}')
    for k in range(1, 10):
        if PREFETCH and k == 9:
            e(f'v_lshlrev_b32 v{vTP}, 6, v{vLane}')
            e(f's_and_b32 s{s_tpw}, s2, 7')
            e(f's_lshl_b32 s{s_tpw}, s{s_tpw}, 8')
            e(f's_lshr_b32 s{s_off}, s2, 3')
            e(f's_lshl_b32 s{s_off}, s{s_off}, 3')
            e(f's_add_u32 s{s_tpw}, s{s_tpw}, s{s_off}')
            e(f's_lshl_b32 s{s_tpw}, s{s_tpw}, 12')
            srd(e, sK, P+18, S*S*2)
            e('s_mov_b32 s46, 0')
        if k == 3:
            e(f's_cmp_eq_u32 s{s_w}, 4')
            e('s_cbranch_scc0 K1_NOCNT')
            e('s_waitcnt vmcnt(8)')
            e(f's_lshl_b32 s{s_off}, s{s_rb}, 2')
            e(f'v_mov_b32 v{vT+6}, s{s_off}')
            e(f'v_mov_b32 v{vT+7}, 1')
            set_exec(e, 1, 0)
            e(f'buffer_atomic_add v{vT+7}, v{vT+6}, s[{sD}:{sD+3}], 0 offen offset:{CB} sc1')
            e(f's_mov_b64 exec, s[{s_ex}:{s_ex+1}]')
            e.label('K1_NOCNT')
        if k == 9:
            e(f's_cmp_ge_u32 s{P+16}, 960')
            e('s_cbranch_scc1 K1_NOWOF')
            e('s_waitcnt vmcnt(0)')
            for j in range(4):
                e(f'v_lshl_or_b32 v{WO+j}, v{WR+2*j+1}, 16, v{WR+2*j}')
            e(f'v_lshlrev_b32 v{vT+3}, 4, v{vLane}')
            e(f's_lshl_b32 s{s_t0}, s{P+16}, 10')
            e(f's_add_u32 s{s_t0}, s{s_t0}, {WOF}')
            e(f'buffer_store_dwordx4 v[{WO}:{WO+3}], v{vT+3}, s[{sWS}:{sWS+3}], s{s_t0} offen {SC if fused else STF_EARLY}')
            e.label('K1_NOWOF')
        bar('B')
    init_acc()
    bar('B')
    stB.stamp(e)
    loop(2, 'B')
    stB.stamp(e)
    e.c('B epilogue')
    e(f's_mul_i32 s{s_t0}, s{s_wl}, 192')
    e(f's_add_u32 s{s_t0}, s{s_t0}, {L_CSB}')
    e(f'v_lshlrev_b32 v{vT+4}, 4, v{vQ}')
    e(f'v_add_u32 v{vT+5}, s{s_t0}, v{vT+4}')
    set_exec(e, 0x00010001, 0x00010001)
    for ft in range(3):
        e(f'ds_write_b128 v{vT+5}, v[{CS+ft*4}:{CS+ft*4+3}] offset:{ft*64}')
    e(f's_mov_b64 exec, s[{s_ex}:{s_ex+1}]')
    e(f'v_mov_b32 v{K1V}, {hexf(K1c)}'); e(f'v_mov_b32 v{K1V+1}, {hexf(K1c)}')
    e('s_waitcnt lgkmcnt(0)')
    bar('B')
    if fused: H.conv_early(e)
    e(f's_xor_b32 s{s_t1}, s{s_wl}, 2')
    e(f's_mul_i32 s{s_t1}, s{s_t1}, 192')
    e(f's_add_u32 s{s_t1}, s{s_t1}, {L_CSB}')
    e(f'v_add_u32 v{vT+5}, s{s_t1}, v{vT+4}')
    NC2 = XF
    for ft in range(3):
        e(f'ds_read_b128 v[{NC2+ft*4}:{NC2+ft*4+3}], v{vT+5} offset:{ft*64}')
    MR = WF
    e(f's_lshl_b32 s{s_t0}, s{s_wr}, 7')
    e(f's_lshl_b32 s{s_t1}, s{s_wc}, 6')
    e(f's_add_u32 s{s_t0}, s{s_t0}, s{s_t1}')
    e(f's_add_u32 s{s_t0}, s{s_t0}, {L_M1}')
    e(f'v_lshlrev_b32 v{vT+6}, 2, v{vL15}')
    e(f'v_add_u32 v{vT+6}, s{s_t0}, v{vT+6}')
    e(f'v_xor_b32 v{vT+7}, 64, v{vT+6}')
    e(f'ds_read_b32 v{MR+0}, v{vT+6}')
    e(f'ds_read_b32 v{MR+2}, v{vT+7}')
    e(f'ds_read_b32 v{MR+4}, v{vT+6} offset:256')
    e(f'ds_read_b32 v{MR+6}, v{vT+7} offset:256')
    e(f's_lshl_b32 s{s_t0}, s{s_rb}, 2')
    e(f's_lshl_b32 s{s_t1}, s{s_wr}, 1')
    e(f's_add_u32 s{s_t0}, s{s_t0}, s{s_t1}')
    e(f's_add_u32 s{s_t1}, s{s_t0}, s{s_wc}')
    e(f's_xor_b32 s{s_t2}, s{s_t1}, 1')
    e(f's_mul_i32 s{s_off}, s{s_cb}, 6')
    e(f's_mul_i32 s{s_j}, s{s_wc}, 3')
    e(f's_add_u32 s{s_off}, s{s_off}, s{s_j}')
    e(f's_mul_i32 s{s_t1}, s{s_t1}, 48')
    e(f's_add_u32 s{s_t1}, s{s_t1}, s{s_off}')
    e(f's_lshl_b32 s{s_t1}, s{s_t1}, 9')
    e(f's_add_u32 s{s_t1}, s{s_t1}, {Z1F}')
    e(f's_mul_i32 s{s_t2}, s{s_t2}, 48')
    e(f's_add_u32 s{s_t2}, s{s_t2}, s{s_off}')
    e(f's_lshl_b32 s{s_t2}, s{s_t2}, 9')
    e(f's_add_u32 s{s_t2}, s{s_t2}, {Z1F}')
    e(f'v_lshlrev_b32 v{vT+6}, 3, v{vLane}')
    if fused:
        e(f's_lshl_b32 s{s_j}, s{s_wr}, 1')
        e(f's_add_u32 s{s_j}, s{s_j}, s{s_wc}')
        e(f's_mul_i32 s{s_off}, s{s_j}, 3072')
        e(f's_mul_i32 s{s_t0}, s{s_wc}, 1536')
        e(f's_add_u32 s{s_off}, s{s_off}, s{s_t0}')
        e(f's_add_u32 s{s_off}, s{s_off}, {Z1L}')
        e(f'v_add_u32 v{vT+8}, s{s_off}, v{vT+6}')
        e(f's_xor_b32 s{s_j}, s{s_j}, 1')
        e(f's_mul_i32 s{s_off}, s{s_j}, 3072')
        e(f's_add_u32 s{s_off}, s{s_off}, s{s_t0}')
        e(f's_add_u32 s{s_off}, s{s_off}, {Z1L}')
        e(f'v_add_u32 v{vT+9}, s{s_off}, v{vT+6}')
    e('s_waitcnt lgkmcnt(0)')
    for i in range(12):
        e(f'v_add_f32 v{NC2+i}, v{NC2+i}, v{CS+i}')
        e(f'v_sub_f32 v{NC2+i}, 0, v{NC2+i}')
    ZO = AP
    for T in range(2):
        for ft in range(3):
            for p in range(2):
                a = ACC + (T*3+ft)*4 + 2*p
                n = NC2 + ft*4 + 2*p
                m = MR + 2*T; r = MR + 4 + 2*T
                g = G + 4*p
                e(f'v_pk_fma_f32 v[{a}:{a+1}], v[{n}:{n+1}], v[{m}:{m+1}], v[{a}:{a+1}] op_sel_hi:[1,0,1]')
                e(f'v_pk_mul_f32 v[{a}:{a+1}], v[{a}:{a+1}], v[{r}:{r+1}] op_sel_hi:[1,0]')
                gelu_pair(a, g)
                e(f'v_cvt_pk_bf16_f32 v{ZO+(T*3+ft)*2+p}, v{g}, v{g+1}')
            so = s_t1 if T == 0 else s_t2
            z = ZO + (T*3+ft)*2
            if fused:
                e(f'ds_write_b64 v{vT+8+T}, v[{z}:{z+1}] offset:{ft*512}')
            else:
                e(f'buffer_store_dwordx2 v[{z}:{z+1}], v{vT+6}, s[{sWS}:{sWS+3}], s{so} offen offset:{ft*512} {STF_EARLY}')
        if T == 0: bar('B')
    if fused:
        H.after_B(e, stB, bar)
    if not fused: stB.flush(e, 0, sWS, vT, s_w)
    e.label('K1_END')
    e('s_endpgm')
    if fused: return nbar
    print('k1 barriers', nbar)
    assert nbar['A'] == nbar['B'] == nbar['L'], nbar
    nn = e.finalize()
    return kernel_wrap('k1_kernel', e.text(), vgpr=168, sgpr=96), nn
```

```python
from common import *
import k1 as K1
import k3b as K3
import os
HCP = 4160
CW_U = 4 * HCP
CW_SZ = CW_U + 512 + 4096
CONV0 = 65536
Z1L = K1.Z1L
LDSF = Z1L + 12288
BLOCKF = 768
NAME = 'recurrent_scan__ssm_conv_h3__mixer_gmlp__prompt_kernel'
POLL_MAX = 1 << 21

s_rb, s_cb, s_w, s_wl = 32, 33, 34, 55
s_t0, s_t1, s_t2 = 40, 41, 42
s_mask = 47; s_ex = 52
sWS = 16; sD = 4
P = 56
vLane, vQ, vL15 = 1, 2, 3

class Hooks:
    def __init__(self):
        self.nb = {}
    def flag_addr(self, e, v, vt):
        e(f's_lshl_b32 s{s_t0}, s{s_cb}, 7')
        e(f's_lshl_b32 s{s_t1}, s{s_rb}, 2')
        e(f's_add_u32 s{s_t0}, s{s_t0}, s{s_t1}')
        e(f's_add_u32 s{s_t1}, s{s_t0}, {FL2A}')
        e(f's_add_u32 s{s_t0}, s{s_t0}, {FL1}')
        e(f'v_mov_b32 v{v}, s{s_t0}')
        e(f'v_mov_b32 v{vt}, s{s_t1}')
        e(f'v_cmp_eq_u32 vcc, 1, v{vLane}')
        e(f'v_cndmask_b32 v{v}, v{v}, v{vt}, vcc')
        e(f's_lshl_b32 s{s_t0}, s{s_rb}, 5')
        e(f's_lshl_b32 s{s_t1}, s{s_cb}, 2')
        e(f's_add_u32 s{s_t0}, s{s_t0}, s{s_t1}')
        e(f's_add_u32 s{s_t0}, s{s_t0}, {FL2B}')
        e(f'v_mov_b32 v{vt}, s{s_t0}')
        e(f'v_cmp_eq_u32 vcc, 2, v{vLane}')
        e(f'v_cndmask_b32 v{v}, v{v}, v{vt}, vcc')
        e(f's_lshl_b32 s{s_t0}, s{s_cb}, 7')
        e(f's_lshl_b32 s{s_t1}, s{s_rb}, 2')
        e(f's_add_u32 s{s_t0}, s{s_t0}, s{s_t1}')
        e(f's_add_u32 s{s_t0}, s{s_t0}, {FLKV}')
        e(f'v_mov_b32 v{vt}, s{s_t0}')
        e(f'v_cmp_eq_u32 vcc, 3, v{vLane}')
        e(f'v_cndmask_b32 v{v}, v{v}, v{vt}, vcc')

    def after_A(self, e, stp, bar1):
        e('s_waitcnt vmcnt(0)')
        bar1('A')
        p1 = os.environ.get('P1ST') == '1'
        stp.mute = False
        stp.stamp(e)
        stp.mute = p1
        self.g2(e, stp)
    def after_B(self, e, stB, bar1):
        e(f's_cmp_eq_u32 s{s_w}, 7')
        e('s_cbranch_scc0 F2_NOCNT')
        e('s_waitcnt vmcnt(0)')
        set_exec(e, 0xffffffff, 0)
        e('v_cmp_gt_u32 vcc, 8, v167')
        e(f's_mov_b64 exec, s[{s_ex}:{s_ex+1}]')
        e('s_cmp_eq_u64 vcc, 0')
        e('s_cbranch_scc1 F2_NOCNT')
        e(f'v_lshlrev_b32 v6, 2, v{vLane}')
        self.poll(e, 'CNT', 6, 7, sD, 0xffffffff, 0, 8, ge=True)
        e.label('F2_NOCNT')
        e('s_waitcnt lgkmcnt(0)')
        self.c2(e, stB, bar1)
    def after_L(self, e, bar1):
        self.l2(e, bar1)

    def g2(self, e, stp):
        nb = [0]
        def bar():
            e('s_barrier'); nb[0] += 1
        sB = 12
        s_fh, s_kh, s_st, s_bz, s_kz, s_sd = 35, 36, 37, 38, 39, 43
        vB0, vB1, vA, vT = 4, 5, 6, 9
        BF = 16; ACC = 48; ZA = 96
        e.c('phase 2: G')
        e(f's_load_dwordx2 s[{P}:{P+1}], s[0:1], 72')
        e(f's_and_b32 s{s_fh}, s{s_w}, 1')
        e(f's_lshr_b32 s{s_kh}, s{s_w}, 1')
        e(f'v_xor_b32 v{vT}, v{vQ}, v{vL15}')
        e(f'v_lshlrev_b32 v{vT}, 4, v{vT}')
        e(f's_lshl_b32 s{s_t0}, s{s_kh}, 6')
        e(f'v_xor_b32 v{vT}, s{s_t0}, v{vT}')
        e(f'v_lshlrev_b32 v{vT+1}, 8, v{vL15}')
        e(f'v_add_u32 v{vB0}, v{vT}, v{vT+1}')
        e(f'v_xor_b32 v{vB1}, 128, v{vB0}')
        e(f's_mul_i32 s{s_t0}, s{s_cb}, 6')
        e(f's_mul_i32 s{s_t1}, s{s_fh}, 3')
        e(f's_add_u32 s{s_t0}, s{s_t0}, s{s_t1}')
        e(f's_lshl_b32 s{s_t0}, s{s_t0}, 16')
        e(f's_add_u32 s{s_t0}, s{s_t0}, {Z2F}')
        e(f'v_lshlrev_b32 v{vT}, 4, v{vLane}')
        for ft in range(3):
            e(f's_add_u32 s{s_t1}, s{s_t0}, {ft*65536}')
            e(f'v_add_u32 v{vA+ft}, s{s_t1}, v{vT}')
        e(f's_lshl_b32 s{s_kz}, s{s_kh}, 10')
        for i in range(48): e(f'v_mov_b32 v{ACC+i}, 0')
        e('s_waitcnt lgkmcnt(0)')
        srd(e, sB, P, S*2)
        def zl(n6, s_off):
            return [f'buffer_load_dwordx4 v[{ZA+(n6*3+ft)*4}:{ZA+(n6*3+ft)*4+3}], v{vA+ft}, s[{sWS}:{sWS+3}], s{s_off} offen sc1' for ft in range(3)]
        bar()
        stp.stamp(e)
        for n in range(5):
            e(f's_add_u32 s{s_bz}, s{s_kz}, {2*n*1024}')
            for x in zl(n, s_bz): e(x)
        def brd(buf, vb):
            return [f'ds_read_b128 v[{BF+buf*16+tt*4}:{BF+buf*16+tt*4+3}], v{vb} offset:{tt*4096}' for tt in range(4)]
        def mfl(buf, n6):
            L = []
            for tt in range(4):
                for ft in range(3):
                    a = ACC + (ft*4+tt)*4; z = ZA + (n6*3+ft)*4; b = BF + buf*16 + tt*4
                    L.append(f'v_mfma_f32_16x16x32_bf16 v[{a}:{a+3}], v[{z}:{z+3}], v[{b}:{b+3}], v[{a}:{a+3}]')
            return L
        def zoff(add):
            e(f's_lshl_b32 s{s_t0}, s{s_st}, 1')
            e(f's_add_u32 s{s_t0}, s{s_t0}, {add}')
            e(f's_lshl_b32 s{s_bz}, s{s_t0}, 11')
            e(f's_add_u32 s{s_bz}, s{s_bz}, s{s_kz}')
            e(f's_cmp_lt_u32 s{s_t0}, 32')
            e(f's_cselect_b32 s{s_bz}, s{s_bz}, 0x80000000')
        e(f's_mov_b32 s{s_st}, 0')
        for x in brd(0, vB0): e(x)
        e.label('F2_GLOOP')
        for u in range(3):
            n0 = (2*u) % 6; n1 = (2*u + 1) % 6
            zoff(5)
            e('s_waitcnt vmcnt(12) lgkmcnt(0)')
            fills = [[] for _ in range(12)]
            for k_, r in enumerate(brd(1, vB1)): fills[k_].append(r)
            for k_, z in enumerate(zl((n0 + 5) % 6, s_bz)): fills[4 + 2*k_].append(z)
            weave(e, mfl(0, n0), fills)
            e(f's_and_b32 s{s_t0}, s{s_st}, 3')
            e(f's_movk_i32 s{s_sd}, 16384')
            e(f's_cmp_eq_u32 s{s_t0}, 3')
            e(f's_cselect_b32 s{s_sd}, {(-49152) & 0xffffffff}, s{s_sd}')
            zoff(6)
            e('s_waitcnt lgkmcnt(0)')
            e('s_barrier')
            e(f'v_add_u32 v{vB0}, s{s_sd}, v{vB0}')
            e('s_waitcnt vmcnt(12)')
            fills = [[] for _ in range(12)]
            for k_, r in enumerate(brd(0, vB0)): fills[k_].append(r)
            for k_, z in enumerate(zl((n1 + 5) % 6, s_bz)): fills[4 + 2*k_].append(z)
            weave(e, mfl(1, n1), fills)
            e(f'v_add_u32 v{vB1}, s{s_sd}, v{vB1}')
            e(f's_add_u32 s{s_st}, s{s_st}, 1')
            e(f's_cmp_eq_u32 s{s_st}, 16')
            if u < 2: e('s_cbranch_scc1 F2_GDONE')
            else: e('s_cbranch_scc0 F2_GLOOP')
        e.label('F2_GDONE')
        nb[0] += 16
        stp.stamp(e)
        e.c('G epilogue')
        BS = vT + 6
        e(f's_lshl_b32 s{s_t0}, s{s_rb}, 2')
        e(f's_add_u32 s45, s{s_t0}, s{s_w}')
        e(f'v_lshlrev_b32 v{vT+1}, 1, v{vL15}')
        e(f's_lshl_b32 s{s_t0}, s45, 5')
        e(f'buffer_load_ushort v{BS}, v{vT+1}, s[{sB}:{sB+3}], s{s_t0} offen')
        e('s_waitcnt lgkmcnt(0)')
        bar()
        e(f's_mul_i32 s{s_t0}, s{s_w}, 3072')
        e(f'v_lshlrev_b32 v{vT}, 4, v{vLane}')
        e(f'v_add_u32 v{vT+1}, s{s_t0}, v{vT}')
        for tt in range(4):
            for ft in range(3):
                a = ACC + (ft*4 + tt)*4
                e(f'ds_write_b128 v{vT+1}, v[{a}:{a+3}] offset:{tt*12288 + ft*1024}')
                if (tt*3 + ft) % 6 == 5: e('s_waitcnt lgkmcnt(6)')
        e('s_waitcnt lgkmcnt(0)')
        bar()
        RX = 16
        e(f's_mul_i32 s{s_t0}, s{s_w}, 12288')
        e(f'v_add_u32 v{vT+1}, s{s_t0}, v{vT}')
        for v in range(4):
            for ft in range(3):
                r = RX + (v*3 + ft)*4
                e(f'ds_read_b128 v[{r}:{r+3}], v{vT+1} offset:{v*3072 + ft*1024}')
            if v == 2: e('s_waitcnt lgkmcnt(6)')
        Z1 = 64
        e(f's_mul_i32 s{s_t0}, s{s_w}, 3072')
        e(f's_add_u32 s{s_t0}, s{s_t0}, {Z1L}')
        e(f'v_lshlrev_b32 v{vT+2}, 3, v{vLane}')
        e(f'v_add_u32 v{vT+2}, s{s_t0}, v{vT+2}')
        e('s_waitcnt lgkmcnt(6)')
        for ftg in range(6):
            e(f'ds_read_b64 v[{Z1+2*ftg}:{Z1+2*ftg+1}], v{vT+2} offset:{ftg*512}')
        e('s_waitcnt vmcnt(0)')
        e(f'v_lshlrev_b32 v{BS}, 16, v{BS}')
        e(f's_mul_i32 s{s_t0}, s45, {24*1024}')
        e(f's_mul_i32 s{s_t1}, s{s_cb}, {3*1024}')
        e(f's_add_u32 s{s_t0}, s{s_t0}, s{s_t1}')
        e(f's_add_u32 s{s_t0}, s{s_t0}, {PF}')
        e('s_waitcnt lgkmcnt(0)')
        OUTP = 76
        TU = 88
        for ftg in range(6):
            fh, ft = ftg // 3, ftg % 3
            a = RX + ((fh + 0)*3 + ft)*4
            b = RX + ((fh + 2)*3 + ft)*4
            for r in range(4): e(f'v_add_f32 v{a+r}, v{a+r}, v{b+r}')
            for r in range(4): e(f'v_add_f32 v{a+r}, v{a+r}, v{BS}')
            for p in range(2):
                e(f'v_lshlrev_b32 v{TU+2*p}, 16, v{Z1+2*ftg+p}')
                e(f'v_and_b32 v{TU+2*p+1}, s{s_mask}, v{Z1+2*ftg+p}')
            for r in range(4): e(f'v_mul_f32 v{a+r}, v{a+r}, v{TU+r}')
            for p in range(2):
                e(f'v_cvt_pk_bf16_f32 v{OUTP+2*ftg+p}, v{a+2*p}, v{a+2*p+1}')
            if ftg % 2 == 1:
                j = ftg // 2
                e(f'buffer_store_dwordx4 v[{OUTP+4*j}:{OUTP+4*j+3}], v{vT}, s[{sWS}:{sWS+3}], s{s_t0} offen offset:{j*1024} sc1')
        e('s_waitcnt vmcnt(0)')
        bar()
        stp.stamp(e)
        self.k3['g3_setup']()
        bar()
        stp.stamp(e)
        self.k3['g3_main']()
        if K1.DIAG:
            e('s_memrealtime s[56:57]'); e('s_memtime s[58:59]'); e('s_waitcnt lgkmcnt(0)')
            e('s_sub_u32 s60, s56, s96'); e('s_sub_u32 s61, s58, s98')
            e(f's_cmp_eq_u32 s{s_w}, 0'); e('s_cbranch_scc0 FD_END')
            e('s_and_b32 s62, s2, 63'); e('s_cmp_eq_u32 s62, 0'); e('s_cbranch_scc0 FD_END')
            e('s_lshr_b32 s62, s2, 6'); e('s_lshl_b32 s62, s62, 4')
            e('v_mov_b32 v12, s62'); e('v_mov_b32 v16, s60'); e('v_mov_b32 v17, s61'); e('v_mov_b32 v18, s96'); e('v_mov_b32 v19, s56')
            set_exec(e, 1, 0)
            e(f'buffer_store_dwordx4 v[16:19], v12, s[{sD}:{sD+3}], 0 offen')
            e.label('FD_END')
        stp.flush(e, 0, sWS, 12, s_w)
        e('s_endpgm')
        self.nb['A2'] = nb[0]

    def poll(self, e, tag, vaddr, vval, srd, nlanes_lo, nlanes_hi, want, ge=False):
        e(f's_mov_b32 s{s_t2}, 0')
        set_exec(e, nlanes_lo, nlanes_hi)
        e.label(f'FP_{tag}')
        e(f'buffer_load_dword v{vval}, v{vaddr}, s[{srd}:{srd+3}], 0 offen offset:{K1.CB if srd == sD else 0} sc1')
        e('s_waitcnt vmcnt(0)')
        e(f'v_cmp_{"gt" if ge else "ne"}_u32 vcc, {want}, v{vval}')
        e(f's_add_u32 s{s_t2}, s{s_t2}, 1')
        e('s_cmp_eq_u64 vcc, 0')
        e(f's_cbranch_scc1 FP_{tag}_OK')
        e(f's_cmp_lt_u32 s{s_t2}, {POLL_MAX}')
        e(f's_cbranch_scc0 FP_{tag}_OK')
        e('s_sleep 1')
        e(f's_branch FP_{tag}')
        e.label(f'FP_{tag}_OK')
        e(f's_mov_b64 exec, s[{s_ex}:{s_ex+1}]')

    def spoll(self, e, tag, off_sgpr, first, n):
        e(f's_add_u32 s74, s{off_sgpr}, {first*4}')
        e(f's_mov_b32 s{s_t2}, 0')
        e.label(f'SP_{tag}')
        e(f's_load_dwordx{n} s[56:{56+n-1}], s[72:73], s74 glc')
        e('s_waitcnt lgkmcnt(0)')
        k = n
        while k > 1:
            k //= 2
            for i in range(0, k, 2) if k >= 2 else [0]:
                if k >= 2: e(f's_and_b64 s[{56+i}:{57+i}], s[{56+i}:{57+i}], s[{56+k+i}:{57+k+i}]')
                else: e(f's_and_b32 s56, s56, s57')
        e(f's_add_u32 s{s_t2}, s{s_t2}, 1')
        e('s_cmp_eq_u32 s56, 1')
        e(f's_cbranch_scc1 SP_{tag}_OK')
        e(f's_cmp_lt_u32 s{s_t2}, {POLL_MAX}')
        e(f's_cbranch_scc1 SP_{tag}')
        e.label(f'SP_{tag}_OK')

    def kv_store(self, e, vt):
        KVS, KVP_ = K1.KVS, K1.KVP_
        KO = 16
        e(f's_sub_u32 s{s_t2}, s{s_w}, 4')
        e(f'v_lshrrev_b32 v{vt}, 3, v{vLane}')
        e(f's_lshl_b32 s{s_t0}, s{s_t2}, 3')
        e(f'v_add_u32 v{vt}, s{s_t0}, v{vt}')
        e(f'v_and_b32 v{vt+1}, 7, v{vLane}')
        e(f'v_lshlrev_b32 v{vt+1}, 4, v{vt+1}')
        e(f'v_mul_u32_u24 v{vt+2}, {KVP_}, v{vt}')
        e(f'v_add_u32 v{vt+2}, v{vt+2}, v{vt+1}')
        e(f'v_add_u32 v{vt+2}, {KVS}, v{vt+2}')
        e(f'v_lshlrev_b32 v{vt}, 12, v{vt}')
        e(f'v_add_u32 v{vt}, v{vt}, v{vt+1}')
        for n in range(4):
            e(f'ds_read_b128 v[{KO+4*n}:{KO+4*n+3}], v{vt+2} offset:{n*24*KVP_}')
        e(f's_mul_i32 s{s_t0}, s{s_cb}, {80*4096}')
        e(f's_lshl_b32 s{s_t1}, s{s_rb}, 7')
        e(f's_add_u32 s{s_t0}, s{s_t0}, s{s_t1}')
        e(f's_add_u32 s{s_t0}, s{s_t0}, {KVT}')
        e('s_waitcnt lgkmcnt(0)')
        for n in range(4):
            if n == 3:
                e(f's_cmp_eq_u32 s{s_t2}, 0')
                e(f's_cselect_b32 s{s_t0}, s{s_t0}, 0x80000000')
            e(f'buffer_store_dwordx4 v[{KO+4*n}:{KO+4*n+3}], v{vt}, s[{sWS}:{sWS+3}], s{s_t0} offen sc1')
            e(f's_add_u32 s{s_t0}, s{s_t0}, {24*4096}')

    def conv_early(self, e):
        sH, sDd = 20, 24
        HC = 136; X = 160; DV = 166
        e(f's_load_dwordx4 s[{P+8}:{P+11}], s[0:1], 32')
        e(f's_sub_u32 s{s_t2}, s{s_w}, 4')
        e(f's_mul_i32 s44, s{s_cb}, 80')
        e(f's_mul_i32 s{s_t0}, s{s_rb}, 3')
        e(f's_lshl_b32 s{s_t1}, s{s_rb}, 1')
        e(f's_add_u32 s{s_t1}, s{s_t1}, 16')
        e(f's_cmp_lt_u32 s{s_rb}, 16')
        e(f's_cselect_b32 s{s_t0}, s{s_t0}, s{s_t1}')
        e(f's_cselect_b32 s{s_t1}, 3, 2')
        e(f's_add_u32 s44, s44, s{s_t0}')
        e(f's_add_u32 s44, s44, s{s_t2}')
        e(f's_cmp_lt_u32 s{s_t2}, s{s_t1}')
        e(f's_cselect_b32 s45, 1, 0')
        e('s_cbranch_scc0 F2_NOH')
        e('s_waitcnt lgkmcnt(0)')
        e(f's_lshl_b32 s{s_t0}, s44, 12')
        e(f's_add_u32 s{sH}, s{P+8}, s{s_t0}')
        e(f's_addc_u32 s{sH+1}, s{P+9}, 0')
        e(f's_and_b32 s{sH+1}, s{sH+1}, 0xffff')
        e(f's_mov_b32 s{sH+2}, 4096')
        e(f's_mov_b32 s{sH+3}, 0x20000')
        srd(e, sDd, P+10, D*2)
        e(f'v_lshlrev_b32 v167, 4, v{vLane}')
        for n in range(4):
            c = HC + n*6
            e(f'buffer_load_dwordx4 v[{c}:{c+3}], v167, s[{sH}:{sH+3}], 0 offen offset:{n*1024} {NT1}')
            e(f'buffer_load_dwordx2 v[{c+4}:{c+5}], v167, s[{sH}:{sH+3}], 0 offen offset:{n*1024+16} {NT1}')
        e(f'v_mov_b32 v167, 0')
        e(f'buffer_load_dwordx2 v[{X+4}:{X+5}], v167, s[{sH}:{sH+3}], 0 offen')
        e(f's_lshl_b32 s{s_t0}, s44, 1')
        e(f'buffer_load_ushort v{DV}, v167, s[{sDd}:{sDd+3}], s{s_t0} offen')
        e.label('F2_NOH')
        e('s_waitcnt lgkmcnt(0)')
        e(f's_cmp_eq_u32 s{s_w}, 7')
        e('s_cbranch_scc0 F2_NOCE')
        e(f'v_lshlrev_b32 v166, 2, v{vLane}')
        e(f'buffer_load_dword v167, v166, s[{sD}:{sD+3}], 0 offen offset:{K1.CB} sc1')
        e.label('F2_NOCE')

    def c2(self, e, stC, bar1):
        nb = [0]
        def bar():
            e('s_barrier'); nb[0] += 1
        sH, sDd = 20, 24
        s_d, s_base, s_p = 35, 36, 37
        vA_, vB_ = 4, 5
        vT = 6
        HC = 136; X = 160; DV = 46; ACC = 48
        e.c('phase 2: B stream')
        e(f's_cmp_eq_u32 s{s_w}, 7')
        e('s_cbranch_scc1 F2_SYNC')
        e(f's_cmp_eq_u32 s45, 0')
        e('s_cbranch_scc1 F2_IDLE')
        e(f's_mov_b32 s{s_d}, s44')
        e(f's_sub_u32 s{s_t2}, s{s_w}, 4')
        e(f's_mul_i32 s{s_base}, s{s_t2}, {CW_SZ}')
        e(f's_add_u32 s{s_base}, s{s_base}, {CONV0}')
        e(f'v_add_u32 v{vT+4}, 1, v{vL15}')
        e(f'v_and_b32 v{vT+4}, 3, v{vT+4}')
        e(f'v_lshrrev_b32 v{vT+5}, 1, v{vQ}')
        e(f'v_and_b32 v{vT+6}, 1, v{vQ}')
        e(f'v_lshlrev_b32 v{vT+7}, 4, v{vT+5}')
        e(f'v_add_u32 v{vT+7}, v{vT+7}, v{vL15}')
        e(f'v_lshlrev_b32 v{vT+8}, 3, v{vT+6}')
        e(f'v_sub_u32 v{vT+7}, v{vT+7}, v{vT+8}')
        e(f'v_add_u32 v{vT+7}, 9, v{vT+7}')
        e(f'v_sub_u32 v{vT+7}, v{vT+7}, v{vT+4}')
        e(f'v_lshlrev_b32 v{vT+7}, 1, v{vT+7}')
        e(f'v_mul_u32_u24 v{vT+4}, {HCP}, v{vT+4}')
        e(f'v_add_u32 v{vT+7}, v{vT+7}, v{vT+4}')
        e(f'v_add_u32 v{vA_}, s{s_base}, v{vT+7}')
        e(f'v_sub_u32 v{vT+7}, v{vL15}, v{vT+5}')
        e(f'v_lshlrev_b32 v{vT+7}, 1, v{vT+7}')
        e(f'v_add_u32 v{vT+7}, v{vT+7}, v{vT+6}')
        e(f'v_lshlrev_b32 v{vT+7}, 4, v{vT+7}')
        e(f's_add_u32 s{s_t0}, s{s_base}, {CW_U + 512}')
        e(f'v_add_u32 v{vB_}, s{s_t0}, v{vT+7}')
        e('s_waitcnt vmcnt(10)')
        stC.stamp(e)
        bar1('B')
        stC.stamp(e)
        self.kv_store(e, 8)
        bar()
        e('s_waitcnt vmcnt(4)')
        e(f'v_mov_b32 v{DV}, v166')
        e(f'v_mov_b32 v{vT+2}, 0'); e(f'v_mov_b32 v{vT+3}, 0')
        e(f'v_lshlrev_b32 v{vT+4}, 3, v{vLane}')
        e(f'v_add_u32 v{vT+4}, s{s_base}, v{vT+4}')
        e(f'ds_write_b64 v{vT+4}, v[{vT+2}:{vT+3}] offset:{CW_U}')
        e(f'v_lshlrev_b32 v{vT+4}, 4, v{vLane}')
        e(f'v_add_u32 v{vT+4}, s{s_base}, v{vT+4}')
        TM = 80
        def copies(c, off, k):
            t_ = TM + (k % 4)*12
            e(f'v_alignbit_b32 v{t_+0}, v{c+1}, v{c+0}, 16')
            e(f'v_alignbit_b32 v{t_+1}, v{c+2}, v{c+1}, 16')
            e(f'v_alignbit_b32 v{t_+2}, v{c+3}, v{c+2}, 16')
            e(f'v_alignbit_b32 v{t_+3}, v{c+4}, v{c+3}, 16')
            e(f'v_mov_b32 v{t_+4}, v{c+1}'); e(f'v_mov_b32 v{t_+5}, v{c+2}')
            e(f'v_mov_b32 v{t_+6}, v{c+3}'); e(f'v_mov_b32 v{t_+7}, v{c+4}')
            e(f'v_mov_b32 v{t_+8}, v{t_+1}'); e(f'v_mov_b32 v{t_+9}, v{t_+2}'); e(f'v_mov_b32 v{t_+10}, v{t_+3}')
            e(f'v_alignbit_b32 v{t_+11}, v{c+5}, v{c+4}, 16')
            e(f'ds_write_b128 v{vT+4}, v[{c}:{c+3}] offset:{off}')
            e(f'ds_write_b128 v{vT+4}, v[{t_}:{t_+3}] offset:{off + HCP}')
            e(f'ds_write_b128 v{vT+4}, v[{t_+4}:{t_+7}] offset:{off + 2*HCP}')
            e(f'ds_write_b128 v{vT+4}, v[{t_+8}:{t_+11}] offset:{off + 3*HCP}')
        for n in range(4):
            copies(HC + n*6, 32 + n*1024, n)
            e('s_waitcnt lgkmcnt(4)')
            if n == 1: bar()
        for i in range(4): e(f'v_mov_b32 v{X+i}, 0')
        e(f'v_cmp_eq_u32 vcc, 1, v{vLane}')
        e(f'v_cndmask_b32 v{X+4}, 0, v{X+4}, vcc')
        e(f'v_cndmask_b32 v{X+5}, 0, v{X+5}, vcc')
        e('s_waitcnt lgkmcnt(0)')
        set_exec(e, 3, 0)
        copies(X, 0, 0)
        e(f's_mov_b64 exec, s[{s_ex}:{s_ex+1}]')
        e(f'v_lshlrev_b32 v{DV}, 16, v{DV}')
        for i in range(32): e(f'v_mov_b32 v{ACC+i}, 0')
        e('s_waitcnt vmcnt(0) lgkmcnt(0)')
        for _ in range(4): bar()
        e(f'v_lshlrev_b32 v{vT}, 4, v{vLane}')
        e(f's_lshl_b32 s{s_t0}, s{s_d}, 12')
        e(f's_add_u32 s{s_t0}, s{s_t0}, {KVT}')
        for n in range(4):
            e(f's_add_u32 m0, s{s_base}, {CW_U + 512 + n*1024}')
            e(f's_add_u32 s{s_t1}, s{s_t0}, {n*1024}')
            e(f'buffer_load_dwordx4 v{vT}, s[{sWS}:{sWS+3}], s{s_t1} offen sc1 lds')
        AFr = 80; B0 = 112
        def a_rd(m):
            a = AFr + m*4
            return [f'ds_read_b64 v[{a}:{a+1}], v{vA_} offset:{m*512}', f'ds_read_b64 v[{a+2}:{a+3}], v{vA_} offset:{m*512+8}']
        def b_rd(ee):
            b = B0 + 4*ee
            return [f'ds_read_b128 v[{b}:{b+3}], v{vB_} offset:{ee*512}']
        for m in range(8):
            for x in a_rd(m): e(x)
            if m % 4 == 3: e('s_waitcnt lgkmcnt(6)')
        bar()
        e('s_waitcnt vmcnt(0)')
        for m in range(8):
            for x in b_rd(m): e(x)
        e(f's_mov_b32 s{s_p}, 0')
        e.label('F2_CLOOP')
        for half in range(2):
            e(f'v_add_u32 v{vA_}, 64, v{vA_}')
            e(f'v_subrev_u32 v{vB_}, 64, v{vB_}')
            e('s_waitcnt lgkmcnt(0)')
            for m in range(8):
                for c in range(m, 8):
                    a = AFr + m*4; b = B0 + (c-m)*4; d = ACC + c*4
                    e(f'v_mfma_f32_16x16x32_bf16 v[{d}:{d+3}], v[{a}:{a+3}], v[{b}:{b+3}], v[{d}:{d+3}]')
                for x in a_rd(m): e(x)
                for x in b_rd(7 - m): e(x)
                if m in (3, 6): e('s_waitcnt lgkmcnt(6)')
                if (half == 0 and m == 3) or (half == 1 and m == 1): e('s_barrier')
        e('s_barrier')
        e(f's_add_u32 s{s_p}, s{s_p}, 2')
        e(f's_cmp_lt_u32 s{s_p}, 8')
        e('s_cbranch_scc1 F2_CLOOP')
        nb[0] += 12
        e('s_waitcnt lgkmcnt(0)')
        e(f'v_lshlrev_b32 v{vT}, 5, v{vL15}')
        e(f'v_lshrrev_b32 v{vT+1}, 1, v{vQ}')
        e(f'v_lshlrev_b32 v{vT+1}, 4, v{vT+1}')
        e(f'v_add_u32 v{vT}, v{vT}, v{vT+1}')
        e(f'v_and_b32 v{vT+1}, 1, v{vQ}')
        e(f'v_xor_b32 v{vT+1}, 1, v{vT+1}')
        e(f'v_lshlrev_b32 v{vT+1}, 3, v{vT+1}')
        e(f'v_add_u32 v{vT}, v{vT}, v{vT+1}')
        e(f's_add_u32 s{s_t0}, s{s_base}, {CW_U + 512}')
        e(f'v_add_u32 v{vT}, s{s_t0}, v{vT}')
        KV = AFr
        for c in range(8):
            e(f'ds_read_b64 v[{KV+2*c}:{KV+2*c+1}], v{vT} offset:{c*512}')
        e(f'v_lshlrev_b32 v{vT+2}, 5, v{vL15}')
        e(f'v_lshlrev_b32 v{vT+3}, 3, v{vQ}')
        e(f'v_add_u32 v{vT+2}, v{vT+2}, v{vT+3}')
        e(f's_lshl_b32 s{s_t0}, s{s_d}, 12')
        e(f's_add_u32 s{s_t0}, s{s_t0}, {YYT}')
        e('s_waitcnt lgkmcnt(0)')
        U = B0
        for c in range(8):
            a = ACC + c*4; k0 = KV + 2*c; u = U + (c % 4)*8
            e(f'v_and_b32 v{u+0}, s{s_mask}, v{k0+1}')
            e(f'v_lshlrev_b32 v{u+1}, 16, v{k0+1}')
            e(f'v_and_b32 v{u+2}, s{s_mask}, v{k0}')
            e(f'v_lshlrev_b32 v{u+3}, 16, v{k0}')
            for r in range(4): e(f'v_fmac_f32 v{a+r}, v{u+r}, v{DV}')
            e(f'v_cvt_pk_bf16_f32 v{u+4}, v{a}, v{a+1}')
            e(f'v_cvt_pk_bf16_f32 v{u+5}, v{a+2}, v{a+3}')
            e(f'buffer_store_dwordx2 v[{u+4}:{u+5}], v{vT+2}, s[{sWS}:{sWS+3}], s{s_t0} offen offset:{c*512} sc1')
        e('s_waitcnt vmcnt(0)')
        bar()
        n_c = nb[0]
        e.label('F3_IDLE')
        for _ in range(1 + K3.NB3): e('s_barrier')
        stC.flush(e, 0, sWS, vT, s_w)
        e('s_endpgm')
        e.label('F2_IDLE')
        e('s_waitcnt vmcnt(0)')
        bar1('I1')
        self.kv_store(e, 8)
        e('s_barrier'); e('s_barrier')
        e('s_waitcnt vmcnt(0)')
        for _ in range(n_c - 2): e('s_barrier')
        e('s_branch F3_IDLE')
        e.label('F2_SYNC')
        vt = 6
        e('s_load_dwordx2 s[72:73], s[0:1], 104')
        e('s_waitcnt lgkmcnt(0)')
        sSP = 8
        e(f's_load_dwordx2 s[70:71], s[0:1], 64')
        e(f's_lshl_b32 s{s_t0}, s{s_rb}, 6')
        e(f's_lshl_b32 s{s_t1}, s{s_cb}, 3')
        e(f's_add_u32 s{s_t0}, s{s_t0}, s{s_t1}')
        e(f'v_lshrrev_b32 v20, 3, v{vLane}')
        e(f'v_add_u32 v20, s{s_t0}, v20')
        e(f'v_lshlrev_b32 v20, 12, v20')
        e(f'v_and_b32 v21, 7, v{vLane}')
        e(f'v_lshlrev_b32 v21, 6, v21')
        e(f'v_add_u32 v20, v20, v21')
        e(f'v_lshrrev_b32 v22, 2, v{vLane}')
        e(f'v_add_u32 v22, s{s_t0}, v22')
        e(f'v_lshlrev_b32 v22, 12, v22')
        e(f'v_and_b32 v21, 3, v{vLane}')
        e(f'v_lshlrev_b32 v21, 6, v21')
        e(f'v_add_u32 v22, v22, v21')
        e('s_waitcnt lgkmcnt(0)')
        srd(e, sSP, 70, S*S*2)
        JIT = os.environ.get('TOUCH', 'x1') == 'jit'
        for p in range(3 if JIT else 0):
            e(f'buffer_load_dword v{24+p}, v20, s[{sSP}:{sSP+3}], 0 offen offset:{p*512}')
        self.flag_addr(e, vt+2, vt+3)
        e(f'v_mov_b32 v{vt+4}, 1')
        e('s_waitcnt vmcnt(0)')
        bar1('I2')
        stS = Stamper(); stS.n = 1
        stS.stamp(e)
        set_exec(e, 1, 0)
        e(f'buffer_store_dword v{vt+4}, v{vt+2}, s[{sWS}:{sWS+3}], 0 offen sc1')
        e(f's_mov_b64 exec, s[{s_ex}:{s_ex+1}]')
        SPOLL = os.environ.get('SPOLL', '1') == '1'
        e(f's_lshl_b32 s{s_t0}, s{s_cb}, 7')
        e(f's_add_u32 s75, s{s_t0}, {FL1}')
        e(f's_add_u32 s{s_t0}, s{s_t0}, {FL1}')
        e(f'v_lshlrev_b32 v{vt}, 2, v{vLane}')
        e(f'v_add_u32 v{vt}, s{s_t0}, v{vt}')
        if SPOLL:
            self.spoll(e, 'F1a', 75, 0, 8)
        else:
            self.poll(e, 'F1a', vt, vt+1, sWS, 0x3f, 0, 1)
        stS.stamp(e)
        e('s_barrier')
        stS.stamp(e)
        def mbar(i):
            e('s_barrier')
            j = i + 6
            if j < 16 and JIT:
                e('s_mov_b32 exec_hi, 0')
                e(f's_movk_i32 s{s_t0}, {j*256}')
                e(f'buffer_load_dword v{28 + (i % 4)}, v22, s[{sSP}:{sSP+3}], s{s_t0} offen')
                e('s_mov_b32 exec_hi, -1')
        mbar(0)
        self.spoll(e, 'F1b', 75, 8, 8)
        mbar(1)
        set_exec(e, 8, 0)
        e(f'buffer_store_dword v{vt+4}, v{vt+2}, s[{sWS}:{sWS+3}], 0 offen sc1')
        e(f's_mov_b64 exec, s[{s_ex}:{s_ex+1}]')
        mbar(2)
        self.spoll(e, 'F1c', 75, 16, 16)
        mbar(3)
        e(f's_add_u32 s75, s75, {FLKV - FL1}')
        self.spoll(e, 'FKa', 75, 0, 16)
        self.spoll(e, 'FKb', 75, 16, 16)
        for i in range(4, 16): mbar(i)
        for _ in range(3): e('s_barrier')
        set_exec(e, 6, 0)
        e(f'buffer_store_dword v{vt+4}, v{vt+2}, s[{sWS}:{sWS+3}], 0 offen sc1')
        e(f's_mov_b64 exec, s[{s_ex}:{s_ex+1}]')
        e(f's_lshl_b32 s{s_t0}, s{s_rb}, 5')
        e(f's_add_u32 s75, s{s_t0}, {FL2B}')
        e(f's_add_u32 s{s_t0}, s{s_t0}, {FL2B}')
        e(f'v_lshlrev_b32 v{vt}, 2, v{vLane}')
        e(f'v_add_u32 v{vt+6}, s{s_t0}, v{vt}')
        stS.stamp(e)
        if SPOLL: self.spoll(e, 'F2B', 75, 0, 8)
        else: self.poll(e, 'F2B', vt+6, vt+1, sWS, 0xff, 0, 1)
        stS.stamp(e)
        e('s_barrier')
        e(f's_lshl_b32 s{s_t0}, s{s_cb}, 7')
        e(f's_add_u32 s75, s{s_t0}, {FL2A}')
        e(f's_add_u32 s{s_t0}, s{s_t0}, {FL2A}')
        e(f'v_add_u32 v{vt+5}, s{s_t0}, v{vt}')
        e('s_barrier')
        if SPOLL:
            self.spoll(e, 'F2Aa', 75, 0, 16)
            self.spoll(e, 'F2Ab', 75, 16, 16)
        else:
            self.poll(e, 'F2A', vt+5, vt+1, sWS, 0xffffffff, 0, 1)
        for _ in range(K3.NB3 - 1): e('s_barrier')
        stS.flush(e, 2, sWS, vt, s_wl)
        e('s_endpgm')
        self.nb['B2'] = n_c

    def l2_pre(self, e):
        sSP = 8
        vD = 4; t = 10
        s_bw, s_m = 38, 39
        e.c('phase 2: L (pre)')
        e(f's_load_dwordx2 s[{P}:{P+1}], s[0:1], 64')
        e(f's_load_dwordx2 s[{P+4}:{P+5}], s[0:1], 104')
        e(f's_lshl_b32 s{s_t0}, s{s_rb}, 6')
        e(f's_lshl_b32 s{s_t1}, s{s_wl}, 4')
        e(f's_add_u32 s{s_t0}, s{s_t0}, s{s_t1}')
        for tt in range(4):
            e(f'v_add_u32 v{t}, {4*tt}, v{vQ}')
            e(f'v_xor_b32 v{t+1}, v{t}, v{vL15}')
            e(f'v_lshlrev_b32 v{t+1}, 4, v{t+1}')
            e(f'v_add_u32 v{t}, s{s_t0}, v{t}')
            e(f'v_lshlrev_b32 v{t}, 12, v{t}')
            e(f'v_add_u32 v{vD+tt}, v{t}, v{t+1}')
        e(f's_lshl_b32 s{s_m}, s{s_wl}, 12')
        e('s_waitcnt lgkmcnt(0)')
        srd(e, sSP, P, S*S*2)
        srd(e, sWS, P+4, WS_SIZE)
        self.lcnt = [0]; self.ldone = {}
        for j in range(3): self.lissue(e, j)
    def lissue(self, e, j):
        sSP = 8; vD = 4; s_bw, s_m = 38, 39
        e(f's_movk_i32 s{s_bw}, {j*256}')
        for tt in range(4):
            e(f's_add_u32 m0, s{s_m}, {(j % 4)*16384 + tt*1024}')
            e('s_nop 0')
            e(f'buffer_load_dwordx4 v{vD+tt}, s[{sSP}:{sSP+3}], s{s_bw} offen {NT3} lds')
        self.lcnt[0] += 4; self.ldone[j] = self.lcnt[0]

    def l2(self, e, bar1):
        nb = [0]
        def bar():
            e('s_barrier'); nb[0] += 1
        cnt, done = self.lcnt, self.ldone
        issue = lambda j: self.lissue(e, j)
        def lbar(j):
            e(f's_waitcnt vmcnt({cnt[0] - done[j]})'); bar()
        bar1('L')
        lbar(0)
        LA = int(os.environ.get('LA', '3'))
        nxt = max(done) + 1
        while nxt < LA + 1:
            issue(nxt); nxt += 1
        for i in range(16):
            if i + 1 < 16: lbar(i + 1)
            else: bar()
            while nxt < 16 and nxt <= i + 1 + LA:
                issue(nxt); nxt += 1
        bar(); bar()
        bar()
        self.nb['L2'] = nb[0]
        grp = self.k3['l3']()
        e('s_sleep 4')
        grp(0); grp(1)
        e('s_barrier')
        issued = 2
        for g in range(6):
            if issued < 6:
                grp(issued); issued += 1
            e(f's_waitcnt vmcnt({5*(issued - g - 1)})')
            e('s_barrier')
        e('s_endpgm')

def gen_kf():
    e = Emitter()
    H = Hooks()
    H.k3 = K3.gen_k3(e=e, fused=True)
    nbar = K1.gen_k1(e=e, fused=True, H=H)
    print('phase1 barriers', nbar, 'phase2', H.nb, 'phase3', H.k3['nbar'])
    assert nbar['A'] == nbar['L'] == 24 and nbar['B'] == 24 and nbar['I1'] == 1 and nbar['I2'] == 1, nbar
    assert H.nb['A2'] - 1 == H.nb['B2'] == H.nb['L2'] == 20, H.nb
    assert H.k3['nbar']['G'] == K3.NB3
    nn = e.finalize()
    return kernel_wrap(NAME, e.text(), vgpr=168, sgpr=102 if K1.DIAG else 96), nn
```

```python
from common import *

WSLOT = 12288; NSLOT = 5
XB0 = NSLOT * WSLOT
XST = 8192
PREP = XB0
PREPV = 11520
MISC = XB0 + 10 * XST
L_M1 = MISC; L_R1 = MISC + 256
L_CSA = MISC + 512
L_CSB = MISC + 1280
L_PS = MISC + 2048
L_PQ = MISC + 2560
L_W2 = MISC + 3072
LDS1 = 147456
import os
PREFETCH = os.environ.get('PREFETCH', '1') == '1'
XP_NOPREP = os.environ.get('XP_NOPREP', '0') == '1'
XP_NODOT = os.environ.get('XP_NODOT', '0') == '1'
XP_NOCOMP = os.environ.get('XP_NOCOMP', '0')
BLOCK1 = 768
DIAG = os.environ.get('DIAG') == '1'
CB = 128 if DIAG else 0
BARST = os.environ.get('BARST') == '1'
SENT = 0xbf800000

K1c = -2.0 * 1.4426950408889634 * 0.7978845608028654
K2c = K1c * 0.044715

KVS = 49152; KVP_ = 144; Z1L = 147456
def gen_k1(e=None, fused=False, H=None):
    if e is None: e = Emitter()
    SC = 'sc1' if fused else ''
    sX, sW, sWS, sK, sV, sT = 8, 12, 16, 20, 24, 28
    s_rb, s_cb, s_w, s_wr, s_wc, s_wl = 32, 33, 34, 35, 36, 55
    s_i, s_j, s_off, s_t0, s_t1, s_t2 = 37, 38, 39, 40, 41, 42
    s_z2b, s_z1b, s_slot, s_mask = 43, 44, 45, 47
    s_k2 = 48; s_one = 50; s_ex = 52; s_xo = 54
    sD = 4
    P = 56
    vLane, vQ, vL15 = 1, 2, 3
    vXA, vXB, vW = 4, 6, 8
    vT = 14
    XF = 26; WF = 42; ACC = 66; CS = 90; ONE = 102; SUM = 106; GR = 110; AP = 114; E = 126
    nbar = {'A': 0, 'B': 0, 'L': 0}
    def bar(role, name=''):
        e('s_barrier'); nbar[role] = nbar.get(role, 0) + 1

    e.c('---- k1: GEMM1 (LN1 folded) + gelu + LN2 + kv prep + w_out retile ; roles A(0-3) B(4-7) L(8)')
    e('s_cmp_ge_u32 s2, 256')
    e('s_cbranch_scc1 K1_END')
    stp = Stamper(); stp.start(e)
    if DIAG:
        e('s_memrealtime s[96:97]'); e('s_memtime s[98:99]')
    stp.mute = fused and os.environ.get('P1ST') != '1'
    e(f's_load_dwordx4 s[{P}:{P+3}], s[0:1], 0')
    e(f's_load_dwordx4 s[{P+4}:{P+7}], s[0:1], 16')
    e(f's_load_dwordx2 s[{P+8}:{P+9}], s[0:1], 56')
    e(f's_load_dwordx2 s[{P+10}:{P+11}], s[0:1], 80')
    e(f's_load_dwordx4 s[{P+12}:{P+15}], s[0:1], 96')
    e(f's_load_dwordx2 s[{P+18}:{P+19}], s[0:1], 64')
    e(f's_load_dwordx2 s[{P+20}:{P+21}], s[0:1], 32')
    e(f'v_and_b32 v{vLane}, 63, v0')
    e(f'v_lshrrev_b32 v{vT}, 6, v0')
    e(f'v_lshrrev_b32 v{vQ}, 4, v{vLane}')
    e(f'v_readfirstlane_b32 s{s_w}, v{vT}')
    e(f'v_and_b32 v{vL15}, 15, v{vLane}')
    e(f's_and_b32 s{s_t0}, s2, 7')
    e(f's_lshr_b32 s{s_t1}, s2, 3')
    e(f's_lshr_b32 s{s_rb}, s{s_t0}, 1')
    e(f's_lshl_b32 s{s_rb}, s{s_rb}, 3')
    e(f's_lshr_b32 s{s_t2}, s{s_t1}, 2')
    e(f's_add_u32 s{s_rb}, s{s_rb}, s{s_t2}')
    e(f's_and_b32 s{s_cb}, s{s_t0}, 1')
    e(f's_lshl_b32 s{s_cb}, s{s_cb}, 2')
    e(f's_and_b32 s{s_t2}, s{s_t1}, 3')
    e(f's_add_u32 s{s_cb}, s{s_cb}, s{s_t2}')
    e(f's_and_b32 s{s_wl}, s{s_w}, 3')
    e(f's_lshr_b32 s{s_wr}, s{s_wl}, 1')
    e(f's_and_b32 s{s_wc}, s{s_wl}, 1')
    e(f's_mov_b32 s{s_mask}, 0xffff0000')
    e(f's_mov_b64 s[{s_ex}:{s_ex+1}], exec')
    e(f's_mul_i32 s{s_z1b}, s{s_cb}, 192')
    e(f's_add_u32 s{s_z2b}, s{s_z1b}, {768*2}')
    e(f's_cmp_ge_u32 s{s_w}, 8')
    e('s_cbranch_scc0 K1_AB')

    e.c('loader (4 waves; L = w&3 handles instr n = 4h + L of each stage)')
    stL = Stamper(); stL.n = 1; stL.mute = fused
    vP, vPr = 4, 5
    VX = 8
    VW = 12
    t = 30
    s_L = s_wl
    s_xs, s_ws_, s_lb = s_j, s_off, s_slot
    e(f's_lshl_b32 s{s_t0}, s{s_rb}, 6')
    e(f's_lshl_b32 s{s_t1}, s{s_L}, 3')
    e(f's_add_u32 s{s_t0}, s{s_t0}, s{s_t1}')
    e(f's_lshl_b32 s{s_lb}, s{s_L}, 10')
    e(f'v_lshrrev_b32 v{t}, 3, v{vLane}')
    e(f'v_add_u32 v{t+2}, s{s_t1}, v{t}')
    e(f'v_lshrrev_b32 v{t+1}, 1, v{t+2}')
    e(f'v_xor_b32 v{t+1}, v{t+1}, v{vLane}')
    e(f'v_and_b32 v{t+1}, 7, v{t+1}')
    e(f'v_lshlrev_b32 v{t+1}, 4, v{t+1}')
    e(f'v_add_u32 v{t}, s{s_t0}, v{t}')
    e(f'v_mul_u32_u24 v{t}, 1280, v{t}')
    e(f'v_add_u32 v{VX}, v{t}, v{t+1}')
    e(f'v_add_u32 v{VX+1}, {32*1280}, v{VX}')
    e('s_waitcnt lgkmcnt(0)')
    stL.stamp(e)
    srd(e, sX, P, S*D*2)
    srd(e, sW, P+8, D*F*2)
    cnt = [0]; done_at = {}
    s_rot = s_i
    e(f's_and_b32 s{s_t0}, s{s_rb}, 7')
    e(f's_and_b32 s{s_t1}, s{s_cb}, 3')
    e(f's_mul_i32 s{s_t1}, s{s_t1}, 3')
    e(f's_add_u32 s{s_rot}, s{s_t0}, s{s_t1}')
    e(f's_sub_u32 s{s_t0}, s{s_rot}, 10')
    e(f's_cmp_ge_u32 s{s_rot}, 10')
    e(f's_cselect_b32 s{s_rot}, s{s_t0}, s{s_rot}')
    def kslice(j, dst):
        e(f's_add_u32 s{dst}, s{s_rot}, {j % 10}')
        e(f's_sub_u32 s{s_t0}, s{dst}, 10')
        e(f's_cmp_ge_u32 s{dst}, 10')
        e(f's_cselect_b32 s{dst}, s{s_t0}, s{dst}')
    def issue_x(j):
        kslice(j, s_xs)
        e(f's_lshl_b32 s{s_xs}, s{s_xs}, 7')
        for h in range(2):
            e(f's_add_u32 m0, s{s_lb}, {XB0 + j*XST + 4096*h}')
            e('s_nop 0')
            e(f'buffer_load_dwordx4 v{VX+h}, s[{sX}:{sX+3}], s{s_xs} offen {NT2} lds')
        cnt[0] += 2
    def issue_w(j):
        base = s_z2b if j < 10 else s_z1b
        kslice(j, s_ws_)
        e(f's_mul_i32 s{s_ws_}, s{s_ws_}, {64*3072}')
        e(f's_add_u32 s{s_ws_}, s{s_ws_}, s{base}')
        for h in range(3):
            e(f's_add_u32 m0, s{s_lb}, {(j % NSLOT)*WSLOT + 4096*h}')
            e('s_nop 0')
            e(f'buffer_load_dwordx4 v{VW+h}, s[{sW}:{sW+3}], s{s_ws_} offen {NT2} lds')
        cnt[0] += 3
    for h in range(3):
        e(f's_lshl_b32 s{s_t0}, s{s_L}, 6')
        e(f's_add_u32 s{s_t0}, s{s_t0}, {64*4*h}')
        e(f'v_add_u32 v{t}, s{s_t0}, v{vLane}')
        e(f'v_mul_u32_u24 v{t+1}, 5462, v{t}')
        e(f'v_lshrrev_b32 v{t+1}, 16, v{t+1}')
        e(f'v_mul_u32_u24 v{t+2}, 12, v{t+1}')
        e(f'v_sub_u32 v{t+2}, v{t}, v{t+2}')
        e(f'v_lshrrev_b32 v{t+3}, 2, v{t+1}')
        e(f'v_and_b32 v{t+3}, 2, v{t+3}')
        e(f'v_xor_b32 v{t+2}, v{t+2}, v{t+3}')
        e(f'v_lshlrev_b32 v{t+2}, 4, v{t+2}')
        e(f'v_mul_u32_u24 v{t+1}, 3072, v{t+1}')
        e(f'v_add_u32 v{VW+h}, v{t+1}, v{t+2}')
    stL.stamp(e)
    issue_x(0)
    issue_w(0); done_at[0] = cnt[0]
    def issue(j):
        if j < 10: issue_x(j)
        issue_w(j)
        done_at[j] = cnt[0]
    def lbar(k):
        n = cnt[0] - done_at[k]
        e(f's_waitcnt vmcnt({min(n, 63)})'); bar('L')
    vK0 = 20
    sa, sb, sc = 46, 78, 79
    PW = 6720
    def setup_prep():
        e(f'v_mul_u32_u24 v{vPr}, 6554, v{vLane}')
        e(f'v_lshrrev_b32 v{vPr}, 16, v{vPr}')
        e(f'v_mul_u32_u24 v{vP}, 10, v{vPr}')
        e(f'v_sub_u32 v{vP}, v{vLane}, v{vP}')
        e(f'v_lshlrev_b32 v{vP}, 4, v{vP}')
        e(f'v_mul_u32_u24 v{t}, 1280, v{vPr}')
        e(f'v_add_u32 v{vP}, v{vP}, v{t}')
        srd(e, sK, P+2, S*D*2)
        srd(e, sV, P+4, S*D*2)
        e(f's_lshl_b32 s{s_t0}, s{s_rb}, 6')
        e(f's_lshl_b32 s{s_t1}, s{s_L}, 4')
        e(f's_add_u32 s{s_t0}, s{s_t0}, s{s_t1}')
        e(f's_mul_i32 s{sa}, s{s_t0}, 1280')
        e(f's_mul_i32 s{s_t1}, s{s_cb}, 160')
        e(f's_add_u32 s{sa}, s{sa}, s{s_t1}')
        e(f's_mul_i32 s{sb}, s{s_L}, {PW}')
        e(f's_add_u32 s{sb}, s{sb}, {PREP}')
        e(f'v_mov_b32 v{vK0}, v{vP}')
        e(f's_sub_u32 s{sc}, s{sa}, {3*1280}')
        e(f's_cmp_eq_u32 s{s_t0}, 0')
        e('s_cbranch_scc0 K1_NONNEG')
        e(f'v_subrev_u32 v{vK0}, {3*1280}, v{vP}')
        e(f'v_cmp_gt_u32 vcc, 3, v{vPr}')
        e(f'v_mov_b32 v{t+1}, 0x80000000')
        e(f'v_cndmask_b32 v{vK0}, v{vK0}, v{t+1}, vcc')
        e(f's_mov_b32 s{sc}, s{sa}')
        e.label('K1_NONNEG')
        srd(e, sT, P+6, D*4*2)
        e(f'v_lshlrev_b32 v21, 4, v{vLane}')
        e(f's_mul_i32 s54, s{s_cb}, 640')
    def issue_prep():
        set_exec(e, 0xffffffff, 0x0fffffff)
        for n in range(4):
            e(f's_add_u32 m0, s{sb}, {n*960}')
            if n > 0: e(f's_add_u32 s{sc}, s{sa}, {(6*n-3)*1280}')
            else: e('s_nop 0')
            e(f'buffer_load_dwordx4 v{vK0 if n == 0 else vP}, s[{sK}:{sK+3}], s{sc} offen {NT1} lds')
        for n in range(3):
            e(f's_add_u32 m0, s{sb}, {3840 + n*960}')
            e(f's_add_u32 s{sc}, s{sa}, {6*n*1280}')
            e(f'buffer_load_dwordx4 v{vP}, s[{sV}:{sV+3}], s{sc} offen {NT1} lds')
        e(f's_mov_b64 exec, s[{s_ex}:{s_ex+1}]')
        e(f'buffer_load_dwordx4 v[156:159], v21, s[{sT}:{sT+3}], s54 offen')
        cnt[0] += 8
    def prefetch_tail():
        e(f'v_lshlrev_b32 v{t}, 6, v{vLane}')
        e(f's_and_b32 s{s_t0}, s2, 7')
        e(f's_lshl_b32 s{s_t0}, s{s_t0}, 8')
        e(f's_lshr_b32 s{s_t1}, s2, 3')
        e(f's_lshl_b32 s{s_t1}, s{s_t1}, 3')
        e(f's_add_u32 s{s_t0}, s{s_t0}, s{s_t1}')
        e(f's_lshl_b32 s{s_t1}, s{s_L}, 1')
        e(f's_add_u32 s{s_t0}, s{s_t0}, s{s_t1}')
        e(f's_lshl_b32 s{s_t0}, s{s_t0}, 12')
        srd(e, sK, P+18, S*S*2)
        for r in range(2):
            e(f'buffer_load_dword v{t+1+r}, v{t}, s[{sK}:{sK+3}], s{s_t0} offen')
            e(f's_add_u32 s{s_t0}, s{s_t0}, 4096')
        srd(e, sV, P+20, D*S*2)
        e(f's_mul_i32 s{s_t0}, s2, 3')
        e(f's_add_u32 s{s_t0}, s{s_t0}, s{s_L}')
        e(f's_lshl_b32 s{s_t0}, s{s_t0}, 12')
        e(f's_cmp_eq_u32 s{s_L}, 3')
        e(f's_cselect_b32 s{s_t0}, 0x80000000, s{s_t0}')
        e(f'buffer_load_dword v{t+5}, v{t}, s[{sV}:{sV+3}], s{s_t0} offen')
        cnt[0] += 3
    xs = {1: [1, 2], 2: [3, 4], 3: [5, 6], 4: [7, 8], 5: [9]}
    wn = 1
    if os.environ.get('UP1', '1') == '1':
        issue_x(1); issue_w(1); done_at[1] = cnt[0]; wn = 2
        xs = {1: [2, 3], 2: [4, 5], 3: [6, 7], 4: [8, 9]}
    for k in range(20):
        if k >= 1:
            lim = {1: 3 if os.environ.get('UP1', '1') == '1' else 2, 2: 4}.get(k, min(19, k + 2 if k <= 5 else k + 3))
            todo_x = list(xs.get(k, []))
            while wn <= lim or todo_x:
                if todo_x: issue_x(todo_x.pop(0))
                if wn <= lim:
                    issue_w(wn); done_at[wn] = cnt[0]; wn += 1
                    if wn == 20: issue_prep()
        if k == 11: setup_prep()
        lbar(k)
        if k in (0, 1): stL.stamp(e)
    assert wn == 20
    SKL = 156; KR = 40; VRr = 59; KP = 76; CP = 114; KVP = 122; OUT = 40
    vt = 30
    e('s_waitcnt vmcnt(0)')
    e(f'v_lshlrev_b32 v{vt}, 2, v{vLane}')
    e(f'v_min_u32 v{vt}, 156, v{vt}')
    e(f'v_add_u32 v{vt}, s{sb}, v{vt}')
    for r in range(19):
        e(f'ds_read_b32 v{KR+r}, v{vt} offset:{r*160}')
        if r == 13: e('s_waitcnt lgkmcnt(6)')
    bar('L')
    for r in range(16):
        if r in (2, 10): e('s_waitcnt lgkmcnt(6)')
        e(f'ds_read_b32 v{VRr+r}, v{vt} offset:{3840 + r*160}')
    e(f'v_lshlrev_b32 v{CP+0}, 16, v{SKL+0}'); e(f'v_lshlrev_b32 v{CP+1}, 16, v{SKL+2}')
    e(f'v_and_b32 v{CP+2}, s{s_mask}, v{SKL+0}'); e(f'v_and_b32 v{CP+3}, s{s_mask}, v{SKL+2}')
    e(f'v_lshlrev_b32 v{CP+4}, 16, v{SKL+1}'); e(f'v_lshlrev_b32 v{CP+5}, 16, v{SKL+3}')
    e(f'v_and_b32 v{CP+6}, s{s_mask}, v{SKL+1}'); e(f'v_and_b32 v{CP+7}, s{s_mask}, v{SKL+3}')
    e('s_waitcnt lgkmcnt(0)')
    bar('L')
    for r in range(19):
        e(f'v_lshlrev_b32 v{KP+2*r}, 16, v{KR+r}')
        e(f'v_and_b32 v{KP+2*r+1}, s{s_mask}, v{KR+r}')
    for i in range(16):
        t_ = KVP + 2*i
        e(f'v_pk_mul_f32 v[{t_}:{t_+1}], v[{CP+6}:{CP+7}], v[{KP+2*i}:{KP+2*i+1}]')
        e(f'v_lshlrev_b32 v{vt+2}, 16, v{VRr+i}')
        e(f'v_pk_fma_f32 v[{t_}:{t_+1}], v[{CP+4}:{CP+5}], v[{KP+2*i+2}:{KP+2*i+3}], v[{t_}:{t_+1}]')
        e(f'v_and_b32 v{vt+3}, s{s_mask}, v{VRr+i}')
        e(f'v_pk_fma_f32 v[{t_}:{t_+1}], v[{CP+2}:{CP+3}], v[{KP+2*i+4}:{KP+2*i+5}], v[{t_}:{t_+1}]')
        e(f'v_pk_fma_f32 v[{t_}:{t_+1}], v[{CP+0}:{CP+1}], v[{KP+2*i+6}:{KP+2*i+7}], v[{t_}:{t_+1}]')
        e(f'v_pk_mul_f32 v[{t_}:{t_+1}], v[{t_}:{t_+1}], v[{vt+2}:{vt+3}]')
    for dd in range(2):
        for g in range(2):
            for n in range(4):
                lo = KVP + 2*(8*g + 7 - 2*n) + dd
                hi = KVP + 2*(8*g + 6 - 2*n) + dd
                e(f'v_cvt_pk_bf16_f32 v{OUT + dd*8 + g*4 + n}, v{lo}, v{hi}')
    e(f'v_mul_u32_u24 v{vt}, {2*KVP_}, v{vLane}')
    e(f's_lshl_b32 s{s_t0}, s{s_wl}, 5')
    e(f's_add_u32 s{s_t0}, s{s_t0}, {KVS}')
    e(f'v_add_u32 v{vt}, s{s_t0}, v{vt}')
    set_exec(e, 0xffffffff, 0xff)
    for dd in range(2):
        for g in range(2):
            o = OUT + dd*8 + g*4
            e(f'ds_write_b128 v{vt}, v[{o}:{o+3}] offset:{dd*KVP_ + g*16}')
    e(f's_mov_b64 exec, s[{s_ex}:{s_ex+1}]')
    H.l2_pre(e)
    e('s_waitcnt lgkmcnt(0)')
    H.after_L(e, bar)
    if STAMPS and not fused:
        srd(e, sWS, P+14, WS_SIZE) if False else None
        e(f's_load_dwordx2 s[{P+14}:{P+15}], s[0:1], 104')
        e('s_waitcnt lgkmcnt(0)')
        srd(e, sWS, P+14, WS_SIZE)
        stL.flush(e, 3, sWS, t, s_wl)
    if not fused: e('s_endpgm')

    e.label('K1_AB')
    e(f'v_lshrrev_b32 v{vT+3}, 1, v{vL15}')
    e(f'v_xor_b32 v{vT+3}, v{vT+3}, v{vQ}')
    e(f'v_lshlrev_b32 v{vT+3}, 4, v{vT+3}')
    e(f'v_lshlrev_b32 v{vT+4}, 7, v{vL15}')
    e(f'v_add_u32 v{vT+3}, v{vT+3}, v{vT+4}')
    e(f'v_xor_b32 v{vT+4}, 64, v{vT+3}')
    e(f's_lshl_b32 s{s_t0}, s{s_wr}, 12')
    e(f's_lshl_b32 s{s_t1}, s{s_wc}, 11')
    e(f's_add_u32 s{s_t2}, s{s_t0}, s{s_t1}')
    e(f's_add_u32 s{s_t2}, s{s_t2}, {XB0}')
    e(f'v_add_u32 v{vXA}, s{s_t2}, v{vT+3}')
    e(f'v_add_u32 v{vXA+1}, s{s_t2}, v{vT+4}')
    e(f's_xor_b32 s{s_t1}, s{s_t1}, 2048')
    e(f's_add_u32 s{s_t2}, s{s_t0}, s{s_t1}')
    e(f's_add_u32 s{s_t2}, s{s_t2}, {XB0}')
    e(f'v_add_u32 v{vXB}, s{s_t2}, v{vT+3}')
    e(f'v_add_u32 v{vXB+1}, s{s_t2}, v{vT+4}')
    e(f'v_lshrrev_b32 v{vT+3}, 2, v{vLane}')
    e(f'v_and_b32 v{vT+3}, 3, v{vT+3}')
    e(f'v_lshlrev_b32 v{vT+4}, 3, v{vQ}')
    e(f'v_add_u32 v{vT+3}, v{vT+3}, v{vT+4}')
    e(f'v_mul_u32_u24 v{vT+3}, 192, v{vT+3}')
    e(f'v_and_b32 v{vT+4}, 3, v{vLane}')
    e(f'v_lshlrev_b32 v{vT+4}, 3, v{vT+4}')
    e(f'v_add_u32 v{vT+3}, v{vT+3}, v{vT+4}')
    e(f'v_and_b32 v{vT+5}, 1, v{vQ}')
    e(f's_mul_i32 s{s_t0}, s{s_wc}, 3')
    for ft in range(3):
        e(f's_add_u32 s{s_t1}, s{s_t0}, {ft}')
        e(f'v_xor_b32 v{vT+4}, s{s_t1}, v{vT+5}')
        e(f'v_lshlrev_b32 v{vT+4}, 5, v{vT+4}')
        e(f'v_add_u32 v{vW+ft}, v{vT+3}, v{vT+4}')
    e(f's_mov_b32 s{s_k2}, {hexf(K2c)}'); e(f's_mov_b32 s{s_k2+1}, {hexf(K2c)}')
    e(f's_mov_b32 s{s_one}, 1.0'); e(f's_mov_b32 s{s_one+1}, 1.0')
    e('s_waitcnt lgkmcnt(0)')
    srd(e, sWS, P+14, WS_SIZE)
    srd(e, sD, P+12, 256)
    e(f's_cmp_ge_u32 s{s_w}, 4')
    e('s_cbranch_scc1 K1_B')

    def rd_list(buf, ksl, xoff, woff):
        L = []
        L.append(f'ds_read_b128 v[{XF+buf*8}:{XF+buf*8+3}], v{vXA+ksl} offset:{xoff}')
        for ft in range(3):
            b = WF + buf*12 + ft*4
            L.append(f'ds_read_b64_tr_b16 v[{b}:{b+1}], v{vW+ft} offset:{woff+ksl*6144}')
            L.append(f'ds_read_b64_tr_b16 v[{b+2}:{b+3}], v{vW+ft} offset:{woff+ksl*6144+768}')
            if ft == 0:
                L.append(f'ds_read_b128 v[{XF+buf*8+4}:{XF+buf*8+7}], v{vXB+ksl} offset:{xoff}')
        return L
    def phase(buf, ksl, p, tag, nxt_reads):
        mf = []
        for ft in range(3):
            for T in range(2):
                a = ACC + (T*3+ft)*4
                x = f'v[{XF+buf*8+T*4}:{XF+buf*8+T*4+3}]'
                w = f'v[{WF+buf*12+ft*4}:{WF+buf*12+ft*4+3}]'
                if p == 1: mf.append(f'v_mfma_f32_16x16x32_bf16 v[{a}:{a+3}], {x}, {w}, v[{a}:{a+3}]')
                else:      mf.append(f'v_mfma_f32_16x16x32_bf16 v[{a}:{a+3}], {w}, {x}, v[{a}:{a+3}]')
        fills = [nxt_reads[0:2], nxt_reads[2:4], nxt_reads[4:6], nxt_reads[6:8], [], []]
        if p == 1 and not XP_NODOT:
            x = f'v[{XF+buf*8}:{XF+buf*8+3}]'
            mf.append(f'v_mfma_f32_16x16x32_bf16 v[{SUM}:{SUM+3}], v[{ONE}:{ONE+3}], {x}, v[{SUM}:{SUM+3}]')
            mf.append(f'v_mfma_f32_16x16x32_bf16 v[{GR}:{GR+3}], {x}, {x}, v[{GR}:{GR+3}]')
        if XP_NOCOMP == '2': fills = [[] for _ in fills]
        if XP_NOCOMP == '3': mf = ['s_nop 0'] * len(mf)
        weave(e, mf, fills)
        e(f's_cmp_eq_u32 s{s_wr}, {ksl}')
        e(f's_cbranch_scc0 K1_SK_{tag}')
        for ft in range(3):
            a = CS + ft*4
            w = f'v[{WF+buf*12+ft*4}:{WF+buf*12+ft*4+3}]'
            o = f'v[{ONE}:{ONE+3}]'
            if p == 1: e(f'v_mfma_f32_16x16x32_bf16 v[{a}:{a+3}], {o}, {w}, v[{a}:{a+3}]')
            else:      e(f'v_mfma_f32_16x16x32_bf16 v[{a}:{a+3}], {w}, {o}, v[{a}:{a+3}]')
        e.label(f'K1_SK_{tag}')
    def init_acc():
        for i in range(4): e(f'v_mov_b32 v{ONE+i}, 0x3f803f80')
        for i in range(24): e(f'v_mov_b32 v{ACC+i}, 0')
        for i in range(12): e(f'v_mov_b32 v{CS+i}, 0')
        for i in range(8): e(f'v_mov_b32 v{SUM+i}, 0')
    def loop(p, role):
        L = f'K1_LOOP{p}'
        if BARST:
            e('s_mov_b32 m0, 0'); e('s_memtime s[90:91]'); e('v_mov_b32 v150, 0')
        if XP_NOCOMP == '1':
            for _ in range(10): bar(role)
            return
        e(f's_mov_b32 s{s_i}, 0')
        for x in rd_list(0, 0, 0, 0): e(x)
        e.label(L)
        for u in range(5):
            e('s_waitcnt lgkmcnt(0)')
            phase(0, 0, p, f'{p}a{u}', rd_list(1, 1, u*XST, u*WSLOT))
            e('s_waitcnt lgkmcnt(0)')
            if BARST:
                e('v_writelane_b32 v150, s90, m0')
                e('s_add_u32 m0, m0, 1')
            e('s_barrier')
            if BARST: e('s_memtime s[90:91]')
            if u == 4:
                for r in (vXA, vXA+1, vXB, vXB+1):
                    e(f'v_add_u32 v{r}, {5*XST}, v{r}')
                nx = rd_list(0, 0, 0, 0)
            else:
                nx = rd_list(0, 0, (u+1)*XST, (u+1)*WSLOT)
            phase(1, 1, p, f'{p}b{u}', nx)
            if p == 2 and PREFETCH and (not fused or os.environ.get('TOUCH') == 'p2'):
                e(f's_and_b32 s{s_t0}, s46, 3')
                e(f's_cmp_eq_u32 s{s_t0}, s{s_wl}')
                e(f's_cbranch_scc0 K1_NT{u}')
                e('s_cmp_lt_u32 s46, 8')
                e(f's_cbranch_scc0 K1_NT{u}')
                e(f'buffer_load_dword v148, v144, s[{sK}:{sK+3}], s54 offen')
                e.label(f'K1_NT{u}')
                e('s_add_u32 s46, s46, 1')
                e('s_add_u32 s54, s54, 4096')
        e(f's_add_u32 s{s_i}, s{s_i}, 1')
        e(f's_cmp_lt_u32 s{s_i}, 2')
        e(f's_cbranch_scc1 {L}')
        nbar[role] += 10
        if BARST:
            e('s_waitcnt lgkmcnt(0)')
            e('v_writelane_b32 v150, s90, m0')
            e(f's_lshl_b32 s{s_t0}, s2, 3'); e(f's_add_u32 s{s_t0}, s{s_t0}, s{s_w}'); e(f's_lshl_b32 s{s_t0}, s{s_t0}, 6')
            e(f's_add_u32 s{s_t0}, s{s_t0}, {TSB + 3*0x40000}')
            e(f'v_lshlrev_b32 v151, 2, v{vLane}')
            set_exec(e, 0xffff, 0)
            e(f'buffer_store_dword v150, v151, s[{sWS}:{sWS+3}], s{s_t0} offen')
            e(f's_mov_b64 exec, s[{s_ex}:{s_ex+1}]')
    K1V = E + 0
    G = E + 2
    def gelu_pair_sc(t, u):
        for h in range(2):
            e(f'v_mul_f32 v{u+h}, v{t+h}, v{t+h}')
        for h in range(2):
            e(f'v_fma_f32 v{u+h}, v{u+h}, s{s_k2}, v{K1V}')
        for h in range(2):
            e(f'v_mul_f32 v{u+h}, v{u+h}, v{t+h}')
        for h in range(2):
            e(f'v_exp_f32 v{u+h}, v{u+h}')
        for h in range(2):
            e(f'v_add_f32 v{u+h}, 1.0, v{u+h}')
        for h in range(2):
            e(f'v_rcp_f32 v{u+h}, v{u+h}')
        for h in range(2):
            e(f'v_mul_f32 v{u+h}, v{u+h}, v{t+h}')
    def gelu_pair(t, u):
        e(f'v_pk_mul_f32 v[{u}:{u+1}], v[{t}:{t+1}], v[{t}:{t+1}]')
        e(f'v_pk_fma_f32 v[{u}:{u+1}], v[{u}:{u+1}], s[{s_k2}:{s_k2+1}], v[{K1V}:{K1V+1}]')
        e(f'v_pk_mul_f32 v[{u}:{u+1}], v[{u}:{u+1}], v[{t}:{t+1}]')
        e(f'v_exp_f32 v{u}, v{u}')
        e(f'v_exp_f32 v{u+1}, v{u+1}')
        e(f'v_pk_add_f32 v[{u}:{u+1}], v[{u}:{u+1}], s[{s_one}:{s_one+1}]')
        e(f'v_rcp_f32 v{u}, v{u}')
        e(f'v_rcp_f32 v{u+1}, v{u+1}')
        e(f'v_pk_mul_f32 v[{u}:{u+1}], v[{u}:{u+1}], v[{t}:{t+1}]')

    e.c('role A')
    init_acc()
    bar('A')
    stp.stamp(e)
    loop(1, 'A')
    stp.stamp(e)
    e.c('A epilogue')
    e('s_setprio 2')
    e(f's_lshl_b32 s{s_t0}, s{s_rb}, 2')
    e(f'v_mov_b32 v{vT+8}, s{s_t0}')
    PC = vT + 9
    e(f'v_and_b32 v{vT}, 3, v{vL15}')
    e(f'v_cmp_eq_u32 vcc, 1, v{vT}')
    e(f'v_cndmask_b32 v{GR}, v{GR}, v{GR+1}, vcc')
    e(f'v_cmp_eq_u32 vcc, 2, v{vT}')
    e(f'v_cndmask_b32 v{GR}, v{GR}, v{GR+2}, vcc')
    e(f'v_cmp_eq_u32 vcc, 3, v{vT}')
    e(f'v_cndmask_b32 v{GR}, v{GR}, v{GR+3}, vcc')
    ln_finalize(e, SUM, GR, D, vT+2, vT+3, vT+4, vT+5)
    e(f's_lshl_b32 s{s_t0}, s{s_wr}, 5')
    e(f's_lshl_b32 s{s_t1}, s{s_wc}, 4')
    e(f's_add_u32 s{s_t0}, s{s_t0}, s{s_t1}')
    e(f'v_add_u32 v{vT+4}, s{s_t0}, v{vL15}')
    e(f'v_lshlrev_b32 v{vT+5}, 2, v{vT+4}')
    e(f'v_add_u32 v{vT+5}, {L_M1}, v{vT+5}')
    set_exec(e, 0x00f0000f, 0xf0000f00)
    e(f'ds_write_b32 v{vT+5}, v{vT+2}')
    e(f'ds_write_b32 v{vT+5}, v{vT+3} offset:256')
    if fused: e('s_branch K1_NOST1X')
    e(f's_cmp_eq_u32 s{s_cb}, 0')
    e('s_cbranch_scc0 K1_NOST1X')
    e(f's_lshl_b32 s{s_t1}, s{s_rb}, 9')
    e(f's_add_u32 s{s_t1}, s{s_t1}, {ST1}')
    e(f'v_lshlrev_b32 v{vT+4}, 3, v{vT+4}')
    e(f'buffer_store_dwordx2 v[{vT+2}:{vT+3}], v{vT+4}, s[{sWS}:{sWS+3}], s{s_t1} offen {SC}')
    e.label('K1_NOST1X')
    e(f's_mov_b64 exec, s[{s_ex}:{s_ex+1}]')
    e(f's_mul_i32 s{s_t0}, s{s_wl}, 192')
    e(f's_add_u32 s{s_t0}, s{s_t0}, {L_CSA}')
    e(f'v_lshlrev_b32 v{vT+6}, 2, v{vL15}')
    e(f'v_add_u32 v{vT+6}, s{s_t0}, v{vT+6}')
    for ft in range(3):
        e(f'ds_write_b32 v{vT+6}, v{CS+ft*4} offset:{ft*64}')
    e('s_waitcnt lgkmcnt(0)')
    bar('A')
    e(f's_xor_b32 s{s_t1}, s{s_wl}, 2')
    e(f's_mul_i32 s{s_t1}, s{s_t1}, 192')
    e(f's_add_u32 s{s_t1}, s{s_t1}, {L_CSA}')
    e(f'v_lshlrev_b32 v{vT+4}, 2, v{vL15}')
    e(f'v_add_u32 v{vT+4}, s{s_t1}, v{vT+4}')
    NCS = E + 10
    for ft in range(3):
        e(f'ds_read_b32 v{NCS+2*ft}, v{vT+4} offset:{ft*64}')
    M1 = XF
    R1 = XF + 8
    e(f's_lshl_b32 s{s_t0}, s{s_wr}, 7')
    e(f's_lshl_b32 s{s_t1}, s{s_wc}, 6')
    e(f's_add_u32 s{s_t0}, s{s_t0}, s{s_t1}')
    e(f's_add_u32 s{s_t0}, s{s_t0}, {L_M1}')
    e(f'v_lshlrev_b32 v{vT+5}, 4, v{vQ}')
    e(f'v_add_u32 v{vT+5}, s{s_t0}, v{vT+5}')
    e(f'v_xor_b32 v{vT+6}, 64, v{vT+5}')
    e(f'ds_read_b128 v[{M1}:{M1+3}], v{vT+5}')
    e(f'ds_read_b128 v[{M1+4}:{M1+7}], v{vT+6}')
    e(f'ds_read_b128 v[{R1}:{R1+3}], v{vT+5} offset:256')
    e(f'ds_read_b128 v[{R1+4}:{R1+7}], v{vT+6} offset:256')
    e(f'v_mov_b32 v{K1V}, {hexf(K1c)}'); e(f'v_mov_b32 v{K1V+1}, {hexf(K1c)}')
    SA = WF
    for i in range(16): e(f'v_mov_b32 v{SA+i}, 0')
    e('s_waitcnt lgkmcnt(0)')
    for ft in range(3):
        e(f'v_add_f32 v{NCS+2*ft}, v{NCS+2*ft}, v{CS+ft*4}')
        e(f'v_sub_f32 v{NCS+2*ft}, 0, v{NCS+2*ft}')
    npair = 0
    for ft in range(3):
        for T in range(2):
            for p in range(2):
                a = ACC + (T*3+ft)*4 + 2*p
                n = NCS + 2*ft
                g = G + 4*p
                for h in range(2):
                    e(f'v_fma_f32 v{a+h}, v{M1+T*4+2*p+h}, v{n}, v{a+h}')
                for h in range(2):
                    e(f'v_mul_f32 v{a+h}, v{a+h}, v{R1+T*4+2*p+h}')
                gelu_pair_sc(a, g)
                e(f'v_cvt_pk_bf16_f32 v{AP+ft*4+T*2+p}, v{g}, v{g+1}')
                s_ = SA + T*4 + 2*p
                for h in range(2):
                    e(f'v_add_f32 v{s_+h}, v{s_+h}, v{g+h}')
                for h in range(2):
                    e(f'v_fma_f32 v{s_+8+h}, v{g+h}, v{g+h}, v{s_+8+h}')
                npair += 1
                if npair in (2, 5, 7, 10, 12): bar('A')
    for k, sh in enumerate((8, 4, 2, 1)):
        for i in range(16):
            e(f'v_add_f32_dpp v{SA+i}, v{SA+i}, v{SA+i} row_ror:{sh} row_mask:0xf bank_mask:0xf')
    e(f's_lshl_b32 s{s_t0}, s{s_wc}, 8')
    e(f's_add_u32 s{s_t0}, s{s_t0}, {L_PS - L_M1}')
    e(f'v_add_u32 v{vT+5}, s{s_t0}, v{vT+5}')
    e(f'v_add_u32 v{vT+6}, s{s_t0}, v{vT+6}')
    set_exec(e, 0x00010001, 0x00010001)
    e(f'ds_write_b128 v{vT+5}, v[{SA}:{SA+3}]')
    e(f'ds_write_b128 v{vT+6}, v[{SA+4}:{SA+7}]')
    e(f'ds_write_b128 v{vT+5}, v[{SA+8}:{SA+11}] offset:{L_PQ-L_PS}')
    e(f'ds_write_b128 v{vT+6}, v[{SA+12}:{SA+15}] offset:{L_PQ-L_PS}')
    e(f's_mov_b64 exec, s[{s_ex}:{s_ex+1}]')
    e('s_waitcnt lgkmcnt(0)')
    bar('A')
    e(f's_cmp_eq_u32 s{s_w}, 0')
    e('s_cbranch_scc0 K1_NOPUB')
    e(f'v_lshlrev_b32 v{vT}, 2, v{vLane}')
    e(f'v_add_u32 v{vT}, {L_PS}, v{vT}')
    e(f'ds_read_b32 v{vT+2}, v{vT}')
    e(f'ds_read_b32 v{vT+4}, v{vT} offset:256')
    e(f'ds_read_b32 v{vT+3}, v{vT} offset:{L_PQ-L_PS}')
    e(f'ds_read_b32 v{vT+5}, v{vT} offset:{L_PQ-L_PS+256}')
    e(f's_lshl_b32 s{s_t0}, s{s_rb}, 3')
    e(f's_add_u32 s{s_t0}, s{s_t0}, s{s_cb}')
    e(f's_lshl_b32 s{s_t0}, s{s_t0}, 9')
    e(f's_add_u32 s{s_t0}, s{s_t0}, {XCH}')
    e(f'v_lshlrev_b32 v{vT+1}, 3, v{vLane}')
    e('s_waitcnt lgkmcnt(0)')
    e(f'v_add_f32 v{vT+2}, v{vT+2}, v{vT+4}')
    e(f'v_add_f32 v{vT+3}, v{vT+3}, v{vT+5}')
    e(f'v_max_f32 v{vT+3}, 0, v{vT+3}')
    e(f'buffer_store_dwordx2 v[{vT+2}:{vT+3}], v{vT+1}, s[{sWS}:{sWS+3}], s{s_t0} offen sc1')
    e.label('K1_NOPUB')
    stp.stamp(e)
    e(f's_mul_i32 s{s_t0}, s{s_cb}, 6')
    e(f's_mul_i32 s{s_t1}, s{s_wc}, 3')
    e(f's_add_u32 s{s_t0}, s{s_t0}, s{s_t1}')
    e(f's_lshl_b32 s{s_t0}, s{s_t0}, 6')
    e(f's_lshl_b32 s{s_t1}, s{s_rb}, 1')
    e(f's_add_u32 s{s_t0}, s{s_t0}, s{s_t1}')
    e(f's_add_u32 s{s_t0}, s{s_t0}, s{s_wr}')
    e(f's_lshl_b32 s{s_t0}, s{s_t0}, 10')
    e(f's_add_u32 s{s_off}, s{s_t0}, {Z2F}')
    e(f'v_and_b32 v{vT+7}, 1, v{vQ}')
    e(f'v_lshlrev_b32 v{vT+7}, 1, v{vT+7}')
    e(f'v_lshrrev_b32 v{vT+10}, 1, v{vQ}')
    e(f'v_or_b32 v{vT+7}, v{vT+7}, v{vT+10}')
    e(f's_lshl_b32 s{s_t1}, s{s_wc}, 1')
    e(f'v_xor_b32 v{vT+7}, s{s_t1}, v{vT+7}')
    e(f'v_lshlrev_b32 v{vT+7}, 4, v{vT+7}')
    e(f'v_add_u32 v{vT+7}, v{vT+7}, v{vL15}')
    e(f'v_lshlrev_b32 v{vT+7}, 4, v{vT+7}')
    e(f'v_and_b32 v{vT+10}, 31, v{vLane}')
    e(f's_lshl_b32 s{s_j}, s{s_wr}, 5')
    e(f'v_add_u32 v{vT+10}, s{s_j}, v{vT+10}')
    e(f'v_lshlrev_b32 v{vT+10}, 3, v{vT+10}')
    e(f's_lshl_b32 s{s_j}, s{s_rb}, 12')
    e(f's_add_u32 s{s_j}, s{s_j}, {XCH}')
    e(f'buffer_load_dword v{PC}, v{vT+8}, s[{sD}:{sD+3}], 0 offen offset:{CB} sc1')
    bar('A'); bar('A'); bar('A')
    e('s_waitcnt vmcnt(0)')
    e('s_mov_b32 s54, 0')
    e.label('K1_CCHK')
    e(f'v_readfirstlane_b32 s{s_t0}, v{PC}')
    e(f's_cmp_ge_u32 s{s_t0}, 8')
    e('s_cbranch_scc1 K1_COK')
    e('s_add_u32 s54, s54, 1')
    e('s_cmp_lt_u32 s54, 0x200000')
    e('s_cbranch_scc0 K1_COK')
    e('s_sleep 4')
    e(f'buffer_load_dword v{PC}, v{vT+8}, s[{sD}:{sD+3}], 0 offen offset:{CB} sc1')
    e('s_waitcnt vmcnt(0)')
    e('s_branch K1_CCHK')
    e.label('K1_COK')
    XP = WF + 2
    for c in range(8):
        e(f'buffer_load_dwordx2 v[{XP+2*c}:{XP+2*c+1}], v{vT+10}, s[{sWS}:{sWS+3}], s{s_j} offen offset:{c*512} sc1')
    bar('A')
    e('s_setprio 0')
    e('s_waitcnt vmcnt(0)')
    e('s_mov_b32 s54, 0')
    e.label('K1_CHECK')
    e(f's_mov_b32 s{s_t0}, {hex(SENT)}')
    e(f'v_cmp_eq_u32 vcc, s{s_t0}, v{XP+1}')
    for c in range(1, 8):
        e(f'v_cmp_eq_u32 s[{P}:{P+1}], s{s_t0}, v{XP+2*c+1}')
        e(f's_or_b64 vcc, vcc, s[{P}:{P+1}]')
    e('s_cmp_eq_u64 vcc, 0')
    e('s_cbranch_scc1 K1_POLLED')
    e('s_add_u32 s54, s54, 1')
    e('s_cmp_lt_u32 s54, 0x200000')
    e('s_cbranch_scc0 K1_POLLED')
    for c in range(8):
        e(f'buffer_load_dwordx2 v[{XP+2*c}:{XP+2*c+1}], v{vT+10}, s[{sWS}:{sWS+3}], s{s_j} offen offset:{c*512} sc1')
    e('s_waitcnt vmcnt(0)')
    e('s_branch K1_CHECK')
    e.label('K1_POLLED')
    stp.stamp(e)
    for c in range(1, 8):
        e(f'v_pk_add_f32 v[{XP}:{XP+1}], v[{XP}:{XP+1}], v[{XP+2*c}:{XP+2*c+1}]')
    ln_finalize(e, XP, XP+1, FH, vT+2, vT+3, vT+4, vT+5)
    e(f'v_mul_f32 v{vT+2}, v{vT+2}, v{vT+3}')
    e(f'v_sub_f32 v{vT+2}, 0, v{vT+2}')
    e(f's_lshl_b32 s{s_t0}, s{s_wl}, 8')
    e(f's_add_u32 s{s_t0}, s{s_t0}, {L_W2}')
    e(f'v_and_b32 v{vT+4}, 31, v{vLane}')
    e(f'v_lshlrev_b32 v{vT+4}, 2, v{vT+4}')
    e(f'v_add_u32 v{vT+4}, s{s_t0}, v{vT+4}')
    e(f'ds_write_b32 v{vT+4}, v{vT+2}')
    e(f'ds_write_b32 v{vT+4}, v{vT+3} offset:128')
    e(f's_lshl_b32 s{s_t1}, s{s_wc}, 6')
    e(f's_add_u32 s{s_t0}, s{s_t0}, s{s_t1}')
    e(f'v_lshlrev_b32 v{vT+5}, 4, v{vQ}')
    e(f'v_add_u32 v{vT+5}, s{s_t0}, v{vT+5}')
    e(f'v_xor_b32 v{vT+6}, 64, v{vT+5}')
    e('s_waitcnt lgkmcnt(0)')
    e(f'ds_read_b128 v[{M1}:{M1+3}], v{vT+5}')
    e(f'ds_read_b128 v[{M1+4}:{M1+7}], v{vT+6}')
    e(f'ds_read_b128 v[{R1}:{R1+3}], v{vT+5} offset:128')
    e(f'ds_read_b128 v[{R1+4}:{R1+7}], v{vT+6} offset:128')
    e('s_waitcnt lgkmcnt(0)')
    for ft in range(3):
        for T in range(2):
            for p in range(2):
                a = AP + ft*4 + T*2 + p
                g = G + 4*p
                e(f'v_lshlrev_b32 v{g}, 16, v{a}')
                e(f'v_and_b32 v{g+1}, s{s_mask}, v{a}')
                e(f'v_pk_fma_f32 v[{g}:{g+1}], v[{g}:{g+1}], v[{R1+T*4+2*p}:{R1+T*4+2*p+1}], v[{M1+T*4+2*p}:{M1+T*4+2*p+1}]')
                e(f'v_cvt_pk_bf16_f32 v{a}, v{g}, v{g+1}')
        b = AP + ft*4
        e(f'v_permlane16_swap_b32 v{b}, v{b+2}')
        e(f'v_permlane16_swap_b32 v{b+1}, v{b+3}')
        e(f's_add_u32 s{s_t1}, s{s_off}, {ft*65536}')
        e(f'buffer_store_dwordx4 v[{b}:{b+3}], v{vT+7}, s[{sWS}:{sWS+3}], s{s_t1} offen sc1')
    if fused:
        H.after_A(e, stp, bar)
    else:
        stp.flush(e, 0, sWS, vT, s_w)
        e('s_endpgm')

    e.label('K1_B')
    e.c('role B')
    stB = Stamper(); stB.n = 1; stB.mute = fused and os.environ.get('P1ST') != '1'
    SK = 160; WR = 152; WO = 164
    e(f's_cmp_eq_u32 s{s_w}, 4')
    e('s_cbranch_scc0 K1_NORST')
    e(f's_lshl_b32 s{s_t0}, s{s_rb}, 3')
    e(f's_add_u32 s{s_t0}, s{s_t0}, s{s_cb}')
    e(f's_lshl_b32 s{s_t0}, s{s_t0}, 9')
    e(f's_add_u32 s{s_t0}, s{s_t0}, {XCH}')
    e(f'v_lshlrev_b32 v{vT+1}, 3, v{vLane}')
    e(f'v_mov_b32 v{vT+6}, 0')
    e(f'v_mov_b32 v{vT+7}, {hex(SENT)}')
    e(f'buffer_store_dwordx2 v[{vT+6}:{vT+7}], v{vT+1}, s[{sWS}:{sWS+3}], s{s_t0} offen sc1')
    if fused:
        H.flag_addr(e, vT+1, vT+2)
        set_exec(e, 15, 0)
        e(f'buffer_store_dword v{vT+6}, v{vT+1}, s[{sWS}:{sWS+3}], 0 offen sc1')
        e(f's_mov_b64 exec, s[{s_ex}:{s_ex+1}]')
    e.label('K1_NORST')
    DUM = 140
    vTP = 144; vKV = 145; s_tpw = 54; s_tps = 46; s_kv = 78
    e(f's_lshl_b32 s{s_t0}, s2, 2')
    e(f's_add_u32 s{s_t0}, s{s_t0}, s{s_wl}')
    e(f's_mul_i32 s{s_t1}, s{s_t0}, 2731')
    e(f's_lshr_b32 s{s_t1}, s{s_t1}, 16')
    e(f's_mul_i32 s{s_t2}, s{s_t1}, 24')
    e(f's_sub_u32 s{s_t2}, s{s_t0}, s{s_t2}')
    e(f's_mov_b32 s{P+16}, s{s_t0}')
    e(f'v_mul_u32_u24 v{vT+3}, {4*1280}, v{vQ}')
    e(f'v_lshlrev_b32 v{vT+4}, 1, v{vL15}')
    e(f'v_add_u32 v{vT+3}, v{vT+3}, v{vT+4}')
    e(f's_lshl_b32 s{s_t1}, s{s_t1}, 5')
    e(f's_mul_i32 s{s_t2}, s{s_t2}, {32*1280}')
    e(f's_add_u32 s{s_t1}, s{s_t1}, s{s_t2}')
    e(f's_add_u32 s{s_t2}, s{s_t1}, {16*1280}')
    bar('B')
    stB.stamp(e)
    srd(e, sT, P+10, FH*D*2)
    for j in range(8):
        so = s_t1 if j < 4 else s_t2
        e(f'buffer_load_ushort v{WR + j}, v{vT+3}, s[{sT}:{sT+3}], s{so} offen offset:{(j%4)*1280} {NT1}')
    for k in range(1, 10):
        if PREFETCH and k == 9:
            e(f'v_lshlrev_b32 v{vTP}, 6, v{vLane}')
            e(f's_and_b32 s{s_tpw}, s2, 7')
            e(f's_lshl_b32 s{s_tpw}, s{s_tpw}, 8')
            e(f's_lshr_b32 s{s_off}, s2, 3')
            e(f's_lshl_b32 s{s_off}, s{s_off}, 3')
            e(f's_add_u32 s{s_tpw}, s{s_tpw}, s{s_off}')
            e(f's_lshl_b32 s{s_tpw}, s{s_tpw}, 12')
            srd(e, sK, P+18, S*S*2)
            e('s_mov_b32 s46, 0')
        if k == 3:
            e(f's_cmp_eq_u32 s{s_w}, 4')
            e('s_cbranch_scc0 K1_NOCNT')
            e('s_waitcnt vmcnt(8)')
            e(f's_lshl_b32 s{s_off}, s{s_rb}, 2')
            e(f'v_mov_b32 v{vT+6}, s{s_off}')
            e(f'v_mov_b32 v{vT+7}, 1')
            set_exec(e, 1, 0)
            e(f'buffer_atomic_add v{vT+7}, v{vT+6}, s[{sD}:{sD+3}], 0 offen offset:{CB} sc1')
            e(f's_mov_b64 exec, s[{s_ex}:{s_ex+1}]')
            e.label('K1_NOCNT')
        if k == 9:
            e(f's_cmp_ge_u32 s{P+16}, 960')
            e('s_cbranch_scc1 K1_NOWOF')
            e('s_waitcnt vmcnt(0)')
            for j in range(4):
                e(f'v_lshl_or_b32 v{WO+j}, v{WR+2*j+1}, 16, v{WR+2*j}')
            e(f'v_lshlrev_b32 v{vT+3}, 4, v{vLane}')
            e(f's_lshl_b32 s{s_t0}, s{P+16}, 10')
            e(f's_add_u32 s{s_t0}, s{s_t0}, {WOF}')
            e(f'buffer_store_dwordx4 v[{WO}:{WO+3}], v{vT+3}, s[{sWS}:{sWS+3}], s{s_t0} offen {SC if fused else STF_EARLY}')
            e.label('K1_NOWOF')
        bar('B')
    init_acc()
    bar('B')
    stB.stamp(e)
    loop(2, 'B')
    stB.stamp(e)
    e.c('B epilogue')
    e(f's_mul_i32 s{s_t0}, s{s_wl}, 192')
    e(f's_add_u32 s{s_t0}, s{s_t0}, {L_CSB}')
    e(f'v_lshlrev_b32 v{vT+4}, 4, v{vQ}')
    e(f'v_add_u32 v{vT+5}, s{s_t0}, v{vT+4}')
    set_exec(e, 0x00010001, 0x00010001)
    for ft in range(3):
        e(f'ds_write_b128 v{vT+5}, v[{CS+ft*4}:{CS+ft*4+3}] offset:{ft*64}')
    e(f's_mov_b64 exec, s[{s_ex}:{s_ex+1}]')
    e(f'v_mov_b32 v{K1V}, {hexf(K1c)}'); e(f'v_mov_b32 v{K1V+1}, {hexf(K1c)}')
    e('s_waitcnt lgkmcnt(0)')
    bar('B')
    if fused: H.cnt_early(e)
    e(f's_xor_b32 s{s_t1}, s{s_wl}, 2')
    e(f's_mul_i32 s{s_t1}, s{s_t1}, 192')
    e(f's_add_u32 s{s_t1}, s{s_t1}, {L_CSB}')
    e(f'v_add_u32 v{vT+5}, s{s_t1}, v{vT+4}')
    NC2 = XF
    for ft in range(3):
        e(f'ds_read_b128 v[{NC2+ft*4}:{NC2+ft*4+3}], v{vT+5} offset:{ft*64}')
    MR = WF
    e(f's_lshl_b32 s{s_t0}, s{s_wr}, 7')
    e(f's_lshl_b32 s{s_t1}, s{s_wc}, 6')
    e(f's_add_u32 s{s_t0}, s{s_t0}, s{s_t1}')
    e(f's_add_u32 s{s_t0}, s{s_t0}, {L_M1}')
    e(f'v_lshlrev_b32 v{vT+6}, 2, v{vL15}')
    e(f'v_add_u32 v{vT+6}, s{s_t0}, v{vT+6}')
    e(f'v_xor_b32 v{vT+7}, 64, v{vT+6}')
    e(f'ds_read_b32 v{MR+0}, v{vT+6}')
    e(f'ds_read_b32 v{MR+2}, v{vT+7}')
    e(f'ds_read_b32 v{MR+4}, v{vT+6} offset:256')
    e(f'ds_read_b32 v{MR+6}, v{vT+7} offset:256')
    e(f's_lshl_b32 s{s_t0}, s{s_rb}, 2')
    e(f's_lshl_b32 s{s_t1}, s{s_wr}, 1')
    e(f's_add_u32 s{s_t0}, s{s_t0}, s{s_t1}')
    e(f's_add_u32 s{s_t1}, s{s_t0}, s{s_wc}')
    e(f's_xor_b32 s{s_t2}, s{s_t1}, 1')
    e(f's_mul_i32 s{s_off}, s{s_cb}, 6')
    e(f's_mul_i32 s{s_j}, s{s_wc}, 3')
    e(f's_add_u32 s{s_off}, s{s_off}, s{s_j}')
    e(f's_mul_i32 s{s_t1}, s{s_t1}, 48')
    e(f's_add_u32 s{s_t1}, s{s_t1}, s{s_off}')
    e(f's_lshl_b32 s{s_t1}, s{s_t1}, 9')
    e(f's_add_u32 s{s_t1}, s{s_t1}, {Z1F}')
    e(f's_mul_i32 s{s_t2}, s{s_t2}, 48')
    e(f's_add_u32 s{s_t2}, s{s_t2}, s{s_off}')
    e(f's_lshl_b32 s{s_t2}, s{s_t2}, 9')
    e(f's_add_u32 s{s_t2}, s{s_t2}, {Z1F}')
    e(f'v_lshlrev_b32 v{vT+6}, 3, v{vLane}')
    if fused:
        e(f's_lshl_b32 s{s_j}, s{s_wr}, 1')
        e(f's_add_u32 s{s_j}, s{s_j}, s{s_wc}')
        e(f's_mul_i32 s{s_off}, s{s_j}, 3072')
        e(f's_mul_i32 s{s_t0}, s{s_wc}, 1536')
        e(f's_add_u32 s{s_off}, s{s_off}, s{s_t0}')
        e(f's_add_u32 s{s_off}, s{s_off}, {Z1L}')
        e(f'v_add_u32 v{vT+8}, s{s_off}, v{vT+6}')
        e(f's_xor_b32 s{s_j}, s{s_j}, 1')
        e(f's_mul_i32 s{s_off}, s{s_j}, 3072')
        e(f's_add_u32 s{s_off}, s{s_off}, s{s_t0}')
        e(f's_add_u32 s{s_off}, s{s_off}, {Z1L}')
        e(f'v_add_u32 v{vT+9}, s{s_off}, v{vT+6}')
    e('s_waitcnt lgkmcnt(0)')
    for i in range(12):
        e(f'v_add_f32 v{NC2+i}, v{NC2+i}, v{CS+i}')
        e(f'v_sub_f32 v{NC2+i}, 0, v{NC2+i}')
    ZO = AP
    for T in range(2):
        for ft in range(3):
            for p in range(2):
                a = ACC + (T*3+ft)*4 + 2*p
                n = NC2 + ft*4 + 2*p
                m = MR + 2*T; r = MR + 4 + 2*T
                g = G + 4*p
                e(f'v_pk_fma_f32 v[{a}:{a+1}], v[{n}:{n+1}], v[{m}:{m+1}], v[{a}:{a+1}] op_sel_hi:[1,0,1]')
                e(f'v_pk_mul_f32 v[{a}:{a+1}], v[{a}:{a+1}], v[{r}:{r+1}] op_sel_hi:[1,0]')
                gelu_pair(a, g)
                e(f'v_cvt_pk_bf16_f32 v{ZO+(T*3+ft)*2+p}, v{g}, v{g+1}')
            so = s_t1 if T == 0 else s_t2
            z = ZO + (T*3+ft)*2
            if fused:
                e(f'ds_write_b64 v{vT+8+T}, v[{z}:{z+1}] offset:{ft*512}')
            else:
                e(f'buffer_store_dwordx2 v[{z}:{z+1}], v{vT+6}, s[{sWS}:{sWS+3}], s{so} offen offset:{ft*512} {STF_EARLY}')
    if fused:
        H.after_B(e, stB, bar)
    if not fused: stB.flush(e, 0, sWS, vT, s_w)
    e.label('K1_END')
    e('s_endpgm')
    if fused: return nbar
    print('k1 barriers', nbar)
    assert nbar['A'] == nbar['B'] == nbar['L'], nbar
    nn = e.finalize()
    return kernel_wrap('k1_kernel', e.text(), vgpr=168, sgpr=96), nn
```

```python
from common import *
import k1 as K1
import k3b as K3
import os
HCP = 4160
CW_U = 4 * HCP
CW_SZ = CW_U + 512 + 4096
CONV0 = 65536
Z1L = K1.Z1L
LDSF = Z1L + 12288
BLOCKF = 768
NAME = 'recurrent_scan__ssm_conv_h3__mixer_gmlp__prompt_kernel'
POLL_MAX = 1 << 21

s_rb, s_cb, s_w, s_wl = 32, 33, 34, 55
s_t0, s_t1, s_t2 = 40, 41, 42
s_mask = 47; s_ex = 52
sWS = 16; sD = 4
P = 56
vLane, vQ, vL15 = 1, 2, 3

class Hooks:
    def __init__(self):
        self.nb = {}
    def flag_addr(self, e, v, vt):
        e(f's_lshl_b32 s{s_t0}, s{s_cb}, 7')
        e(f's_lshl_b32 s{s_t1}, s{s_rb}, 2')
        e(f's_add_u32 s{s_t0}, s{s_t0}, s{s_t1}')
        e(f's_add_u32 s{s_t1}, s{s_t0}, {FL2A}')
        e(f's_add_u32 s{s_t0}, s{s_t0}, {FL1}')
        e(f'v_mov_b32 v{v}, s{s_t0}')
        e(f'v_mov_b32 v{vt}, s{s_t1}')
        e(f'v_cmp_eq_u32 vcc, 1, v{vLane}')
        e(f'v_cndmask_b32 v{v}, v{v}, v{vt}, vcc')
        e(f's_lshl_b32 s{s_t0}, s{s_rb}, 5')
        e(f's_lshl_b32 s{s_t1}, s{s_cb}, 2')
        e(f's_add_u32 s{s_t0}, s{s_t0}, s{s_t1}')
        e(f's_add_u32 s{s_t0}, s{s_t0}, {FL2B}')
        e(f'v_mov_b32 v{vt}, s{s_t0}')
        e(f'v_cmp_eq_u32 vcc, 2, v{vLane}')
        e(f'v_cndmask_b32 v{v}, v{v}, v{vt}, vcc')
        e(f's_lshl_b32 s{s_t0}, s{s_cb}, 7')
        e(f's_lshl_b32 s{s_t1}, s{s_rb}, 2')
        e(f's_add_u32 s{s_t0}, s{s_t0}, s{s_t1}')
        e(f's_add_u32 s{s_t0}, s{s_t0}, {FLKV}')
        e(f'v_mov_b32 v{vt}, s{s_t0}')
        e(f'v_cmp_eq_u32 vcc, 3, v{vLane}')
        e(f'v_cndmask_b32 v{v}, v{v}, v{vt}, vcc')

    def after_A(self, e, stp, bar1):
        e('s_waitcnt vmcnt(0)')
        bar1('A')
        p1 = os.environ.get('P1ST') == '1'
        stp.mute = False
        stp.stamp(e)
        stp.mute = p1
        self.g2(e, stp)
    def after_B(self, e, stB, bar1):
        e(f's_cmp_eq_u32 s{s_w}, 7')
        e('s_cbranch_scc0 F2_NOCNT')
        e('s_waitcnt vmcnt(0)')
        set_exec(e, 0xffffffff, 0)
        e('v_cmp_gt_u32 vcc, 8, v167')
        e(f's_mov_b64 exec, s[{s_ex}:{s_ex+1}]')
        e('s_cmp_eq_u64 vcc, 0')
        e('s_cbranch_scc1 F2_NOCNT')
        e(f'v_lshlrev_b32 v6, 2, v{vLane}')
        self.poll(e, 'CNT', 6, 7, sD, 0xffffffff, 0, 8, ge=True)
        e.label('F2_NOCNT')
        e('s_waitcnt lgkmcnt(0)')
        self.c2(e, stB, bar1)
    def after_L(self, e, bar1):
        self.l2(e, bar1)

    def g2(self, e, stp):
        nb = [0]
        def bar():
            e('s_barrier'); nb[0] += 1
        sB = 12
        s_fh, s_kh, s_st, s_bz, s_kz, s_sd = 35, 36, 37, 38, 39, 43
        vB0, vB1, vA, vT = 4, 5, 6, 9
        BF = 16; ACC = 48; ZA = 96
        e.c('phase 2: G')
        e(f's_load_dwordx2 s[{P}:{P+1}], s[0:1], 72')
        e(f's_and_b32 s{s_fh}, s{s_w}, 1')
        e(f's_lshr_b32 s{s_kh}, s{s_w}, 1')
        e(f'v_xor_b32 v{vT}, v{vQ}, v{vL15}')
        e(f'v_lshlrev_b32 v{vT}, 4, v{vT}')
        e(f's_lshl_b32 s{s_t0}, s{s_kh}, 6')
        e(f'v_xor_b32 v{vT}, s{s_t0}, v{vT}')
        e(f'v_lshlrev_b32 v{vT+1}, 8, v{vL15}')
        e(f'v_add_u32 v{vB0}, v{vT}, v{vT+1}')
        e(f'v_xor_b32 v{vB1}, 128, v{vB0}')
        e(f's_mul_i32 s{s_t0}, s{s_cb}, 6')
        e(f's_mul_i32 s{s_t1}, s{s_fh}, 3')
        e(f's_add_u32 s{s_t0}, s{s_t0}, s{s_t1}')
        e(f's_lshl_b32 s{s_t0}, s{s_t0}, 16')
        e(f's_add_u32 s{s_t0}, s{s_t0}, {Z2F}')
        e(f'v_lshlrev_b32 v{vT}, 4, v{vLane}')
        for ft in range(3):
            e(f's_add_u32 s{s_t1}, s{s_t0}, {ft*65536}')
            e(f'v_add_u32 v{vA+ft}, s{s_t1}, v{vT}')
        e(f's_lshl_b32 s{s_kz}, s{s_kh}, 10')
        for i in range(48): e(f'v_mov_b32 v{ACC+i}, 0')
        e('s_waitcnt lgkmcnt(0)')
        srd(e, sB, P, S*2)
        def zl(n6, s_off):
            return [f'buffer_load_dwordx4 v[{ZA+(n6*3+ft)*4}:{ZA+(n6*3+ft)*4+3}], v{vA+ft}, s[{sWS}:{sWS+3}], s{s_off} offen sc1' for ft in range(3)]
        bar()
        stp.stamp(e)
        for n in range(5):
            e(f's_add_u32 s{s_bz}, s{s_kz}, {2*n*1024}')
            for x in zl(n, s_bz): e(x)
        def brd(buf, vb):
            return [f'ds_read_b128 v[{BF+buf*16+tt*4}:{BF+buf*16+tt*4+3}], v{vb} offset:{tt*4096}' for tt in range(4)]
        def mfl(buf, n6):
            L = []
            for tt in range(4):
                for ft in range(3):
                    a = ACC + (ft*4+tt)*4; z = ZA + (n6*3+ft)*4; b = BF + buf*16 + tt*4
                    L.append(f'v_mfma_f32_16x16x32_bf16 v[{a}:{a+3}], v[{z}:{z+3}], v[{b}:{b+3}], v[{a}:{a+3}]')
            return L
        def zoff(add):
            e(f's_lshl_b32 s{s_t0}, s{s_st}, 1')
            e(f's_add_u32 s{s_t0}, s{s_t0}, {add}')
            e(f's_lshl_b32 s{s_bz}, s{s_t0}, 11')
            e(f's_add_u32 s{s_bz}, s{s_bz}, s{s_kz}')
            e(f's_cmp_lt_u32 s{s_t0}, 32')
            e(f's_cselect_b32 s{s_bz}, s{s_bz}, 0x80000000')
        e(f's_mov_b32 s{s_st}, 0')
        if K1.BARST:
            e('s_mov_b32 m0, 0'); e('s_memtime s[90:91]'); e('v_mov_b32 v15, 0')
        for x in brd(0, vB0): e(x)
        e.label('F2_GLOOP')
        for u in range(3):
            n0 = (2*u) % 6; n1 = (2*u + 1) % 6
            zoff(5)
            e('s_waitcnt vmcnt(12) lgkmcnt(0)')
            fills = [[] for _ in range(12)]
            for k_, r in enumerate(brd(1, vB1)): fills[k_].append(r)
            for k_, z in enumerate(zl((n0 + 5) % 6, s_bz)): fills[4 + 2*k_].append(z)
            weave(e, mfl(0, n0), fills)
            e(f's_and_b32 s{s_t0}, s{s_st}, 3')
            e(f's_movk_i32 s{s_sd}, 16384')
            e(f's_cmp_eq_u32 s{s_t0}, 3')
            e(f's_cselect_b32 s{s_sd}, {(-49152) & 0xffffffff}, s{s_sd}')
            zoff(6)
            e('s_waitcnt lgkmcnt(0)')
            if K1.BARST:
                e('v_writelane_b32 v15, s90, m0'); e('s_add_u32 m0, m0, 1')
            e('s_barrier')
            if K1.BARST: e('s_memtime s[90:91]')
            e(f'v_add_u32 v{vB0}, s{s_sd}, v{vB0}')
            e('s_waitcnt vmcnt(12)')
            fills = [[] for _ in range(12)]
            for k_, r in enumerate(brd(0, vB0)): fills[k_].append(r)
            for k_, z in enumerate(zl((n1 + 5) % 6, s_bz)): fills[4 + 2*k_].append(z)
            weave(e, mfl(1, n1), fills)
            e(f'v_add_u32 v{vB1}, s{s_sd}, v{vB1}')
            e(f's_add_u32 s{s_st}, s{s_st}, 1')
            e(f's_cmp_eq_u32 s{s_st}, 16')
            if u < 2: e('s_cbranch_scc1 F2_GDONE')
            else: e('s_cbranch_scc0 F2_GLOOP')
        e.label('F2_GDONE')
        nb[0] += 16
        if K1.BARST:
            e('s_waitcnt lgkmcnt(0)')
            e('v_writelane_b32 v15, s90, m0')
            e(f's_lshl_b32 s{s_t0}, s2, 3'); e(f's_add_u32 s{s_t0}, s{s_t0}, s{s_w}'); e(f's_lshl_b32 s{s_t0}, s{s_t0}, 7')
            e(f's_add_u32 s{s_t0}, s{s_t0}, {TSB + 1*0x40000}')
            e(f'v_lshlrev_b32 v14, 2, v{vLane}')
            set_exec(e, 0xffffffff, 0)
            e(f'buffer_store_dword v15, v14, s[{sWS}:{sWS+3}], s{s_t0} offen')
            e(f's_mov_b64 exec, s[{s_ex}:{s_ex+1}]')
        stp.stamp(e)
        e.c('G epilogue')
        BS = vT + 6
        e(f's_lshl_b32 s{s_t0}, s{s_rb}, 2')
        e(f's_add_u32 s45, s{s_t0}, s{s_w}')
        e(f'v_lshlrev_b32 v{vT+1}, 1, v{vL15}')
        e(f's_lshl_b32 s{s_t0}, s45, 5')
        e(f'buffer_load_ushort v{BS}, v{vT+1}, s[{sB}:{sB+3}], s{s_t0} offen')
        e('s_waitcnt lgkmcnt(0)')
        bar()
        e(f's_mul_i32 s{s_t0}, s{s_w}, 3072')
        e(f'v_lshlrev_b32 v{vT}, 4, v{vLane}')
        e(f'v_add_u32 v{vT+1}, s{s_t0}, v{vT}')
        for tt in range(4):
            for ft in range(3):
                a = ACC + (ft*4 + tt)*4
                e(f'ds_write_b128 v{vT+1}, v[{a}:{a+3}] offset:{tt*12288 + ft*1024}')
                if (tt*3 + ft) % 6 == 5: e('s_waitcnt lgkmcnt(6)')
        e('s_waitcnt lgkmcnt(0)')
        bar()
        RX = 16
        e(f's_mul_i32 s{s_t0}, s{s_w}, 12288')
        e(f'v_add_u32 v{vT+1}, s{s_t0}, v{vT}')
        for v in range(4):
            for ft in range(3):
                r = RX + (v*3 + ft)*4
                e(f'ds_read_b128 v[{r}:{r+3}], v{vT+1} offset:{v*3072 + ft*1024}')
            if v == 2: e('s_waitcnt lgkmcnt(6)')
        Z1 = 64
        e(f's_mul_i32 s{s_t0}, s{s_w}, 3072')
        e(f's_add_u32 s{s_t0}, s{s_t0}, {Z1L}')
        e(f'v_lshlrev_b32 v{vT+2}, 3, v{vLane}')
        e(f'v_add_u32 v{vT+2}, s{s_t0}, v{vT+2}')
        e('s_waitcnt lgkmcnt(6)')
        for ftg in range(6):
            e(f'ds_read_b64 v[{Z1+2*ftg}:{Z1+2*ftg+1}], v{vT+2} offset:{ftg*512}')
        e('s_waitcnt vmcnt(0)')
        BSP = 92
        e(f'v_lshlrev_b32 v{BSP}, 16, v{BS}')
        e(f's_mul_i32 s{s_t0}, s45, {24*1024}')
        e(f's_mul_i32 s{s_t1}, s{s_cb}, {3*1024}')
        e(f's_add_u32 s{s_t0}, s{s_t0}, s{s_t1}')
        e(f's_add_u32 s{s_t0}, s{s_t0}, {PF}')
        e('s_waitcnt lgkmcnt(0)')
        OUTP = 76
        TU = 88
        for ftg in range(6):
            fh, ft = ftg // 3, ftg % 3
            a = RX + ((fh + 0)*3 + ft)*4
            b = RX + ((fh + 2)*3 + ft)*4
            for p in range(2): e(f'v_pk_add_f32 v[{a+2*p}:{a+2*p+1}], v[{a+2*p}:{a+2*p+1}], v[{b+2*p}:{b+2*p+1}]')
            for p in range(2):
                e(f'v_lshlrev_b32 v{TU+2*p}, 16, v{Z1+2*ftg+p}')
                e(f'v_and_b32 v{TU+2*p+1}, s{s_mask}, v{Z1+2*ftg+p}')
            for p in range(2): e(f'v_pk_add_f32 v[{a+2*p}:{a+2*p+1}], v[{a+2*p}:{a+2*p+1}], v[{BSP}:{BSP+1}] op_sel_hi:[1,0]')
            for p in range(2): e(f'v_pk_mul_f32 v[{a+2*p}:{a+2*p+1}], v[{a+2*p}:{a+2*p+1}], v[{TU+2*p}:{TU+2*p+1}]')
            for p in range(2):
                e(f'v_cvt_pk_bf16_f32 v{OUTP+2*ftg+p}, v{a+2*p}, v{a+2*p+1}')
            if ftg % 2 == 1:
                j = ftg // 2
                e(f'buffer_store_dwordx4 v[{OUTP+4*j}:{OUTP+4*j+3}], v{vT}, s[{sWS}:{sWS+3}], s{s_t0} offen offset:{j*1024} sc1')
        e('s_waitcnt vmcnt(0)')
        bar()
        stp.stamp(e)
        self.k3['g3_setup']()
        bar()
        stp.stamp(e)
        self.k3['g3_main']()
        if K1.DIAG:
            e('s_memrealtime s[56:57]'); e('s_memtime s[58:59]'); e('s_waitcnt lgkmcnt(0)')
            e('s_sub_u32 s60, s56, s96'); e('s_sub_u32 s61, s58, s98')
            e(f's_cmp_eq_u32 s{s_w}, 0'); e('s_cbranch_scc0 FD_END')
            e('s_and_b32 s62, s2, 63'); e('s_cmp_eq_u32 s62, 0'); e('s_cbranch_scc0 FD_END')
            e('s_lshr_b32 s62, s2, 6'); e('s_lshl_b32 s62, s62, 4')
            e('v_mov_b32 v12, s62'); e('v_mov_b32 v16, s60'); e('v_mov_b32 v17, s61'); e('v_mov_b32 v18, s96'); e('v_mov_b32 v19, s56')
            set_exec(e, 1, 0)
            e(f'buffer_store_dwordx4 v[16:19], v12, s[{sD}:{sD+3}], 0 offen')
            e.label('FD_END')
        stp.flush(e, 0, sWS, 12, s_w)
        e('s_endpgm')
        self.nb['A2'] = nb[0]

    def poll(self, e, tag, vaddr, vval, srd, nlanes_lo, nlanes_hi, want, ge=False):
        e(f's_mov_b32 s{s_t2}, 0')
        set_exec(e, nlanes_lo, nlanes_hi)
        e.label(f'FP_{tag}')
        e(f'buffer_load_dword v{vval}, v{vaddr}, s[{srd}:{srd+3}], 0 offen offset:{K1.CB if srd == sD else 0} sc1')
        e('s_waitcnt vmcnt(0)')
        e(f'v_cmp_{"gt" if ge else "ne"}_u32 vcc, {want}, v{vval}')
        e(f's_add_u32 s{s_t2}, s{s_t2}, 1')
        e('s_cmp_eq_u64 vcc, 0')
        e(f's_cbranch_scc1 FP_{tag}_OK')
        e(f's_cmp_lt_u32 s{s_t2}, {POLL_MAX}')
        e(f's_cbranch_scc0 FP_{tag}_OK')
        e('s_sleep 1')
        e(f's_branch FP_{tag}')
        e.label(f'FP_{tag}_OK')
        e(f's_mov_b64 exec, s[{s_ex}:{s_ex+1}]')

    def spoll(self, e, tag, off_sgpr, first, n):
        e(f's_add_u32 s74, s{off_sgpr}, {first*4}')
        e(f's_mov_b32 s{s_t2}, 0')
        e.label(f'SP_{tag}')
        e(f's_load_dwordx{n} s[56:{56+n-1}], s[72:73], s74 glc')
        e('s_waitcnt lgkmcnt(0)')
        k = n
        while k > 1:
            k //= 2
            for i in range(0, k, 2) if k >= 2 else [0]:
                if k >= 2: e(f's_and_b64 s[{56+i}:{57+i}], s[{56+i}:{57+i}], s[{56+k+i}:{57+k+i}]')
                else: e(f's_and_b32 s56, s56, s57')
        e(f's_add_u32 s{s_t2}, s{s_t2}, 1')
        e('s_cmp_eq_u32 s56, 1')
        e(f's_cbranch_scc1 SP_{tag}_OK')
        e(f's_cmp_lt_u32 s{s_t2}, {POLL_MAX}')
        e(f's_cbranch_scc1 SP_{tag}')
        e.label(f'SP_{tag}_OK')

    def kv_store(self, e, vt):
        KVS, KVP_ = K1.KVS, K1.KVP_
        KO = 16
        e('s_sleep 3')
        e(f's_sub_u32 s{s_t2}, s{s_w}, 4')
        e(f'v_lshrrev_b32 v{vt}, 3, v{vLane}')
        e(f's_lshl_b32 s{s_t0}, s{s_t2}, 3')
        e(f'v_add_u32 v{vt}, s{s_t0}, v{vt}')
        e(f'v_and_b32 v{vt+1}, 7, v{vLane}')
        e(f'v_lshlrev_b32 v{vt+1}, 4, v{vt+1}')
        e(f'v_mul_u32_u24 v{vt+2}, {KVP_}, v{vt}')
        e(f'v_add_u32 v{vt+2}, v{vt+2}, v{vt+1}')
        e(f'v_add_u32 v{vt+2}, {KVS}, v{vt+2}')
        e(f'v_lshlrev_b32 v{vt}, 12, v{vt}')
        e(f'v_add_u32 v{vt}, v{vt}, v{vt+1}')
        for n in range(4):
            e(f'ds_read_b128 v[{KO+4*n}:{KO+4*n+3}], v{vt+2} offset:{n*24*KVP_}')
        e(f's_mul_i32 s{s_t0}, s{s_cb}, {80*4096}')
        e(f's_lshl_b32 s{s_t1}, s{s_rb}, 7')
        e(f's_add_u32 s{s_t0}, s{s_t0}, s{s_t1}')
        e(f's_add_u32 s{s_t0}, s{s_t0}, {KVT}')
        e('s_waitcnt lgkmcnt(0)')
        for n in range(4):
            if n == 3:
                e(f's_cmp_eq_u32 s{s_t2}, 0')
                e(f's_cselect_b32 s{s_t0}, s{s_t0}, 0x80000000')
            e(f'buffer_store_dwordx4 v[{KO+4*n}:{KO+4*n+3}], v{vt}, s[{sWS}:{sWS+3}], s{s_t0} offen sc1')
            e(f's_add_u32 s{s_t0}, s{s_t0}, {24*4096}')

    def cnt_early(self, e):
        sH, sDd = 20, 24
        HC = 136; X = 160; DV = 166
        e(f's_load_dwordx4 s[{P+8}:{P+11}], s[0:1], 32')
        e(f's_sub_u32 s{s_t2}, s{s_w}, 4')
        e(f's_mul_i32 s44, s{s_cb}, 80')
        e(f's_mul_i32 s{s_t0}, s{s_rb}, 3')
        e(f's_lshl_b32 s{s_t1}, s{s_rb}, 1')
        e(f's_add_u32 s{s_t1}, s{s_t1}, 16')
        e(f's_cmp_lt_u32 s{s_rb}, 16')
        e(f's_cselect_b32 s{s_t0}, s{s_t0}, s{s_t1}')
        e(f's_cselect_b32 s{s_t1}, 3, 2')
        e(f's_add_u32 s44, s44, s{s_t0}')
        e(f's_add_u32 s44, s44, s{s_t2}')
        e(f's_cmp_lt_u32 s{s_t2}, s{s_t1}')
        e(f's_cselect_b32 s45, 1, 0')
        e(f's_cmp_eq_u32 s{s_w}, 7')
        e('s_cbranch_scc0 F2_NOCE')
        e(f'v_lshlrev_b32 v166, 2, v{vLane}')
        e(f'buffer_load_dword v167, v166, s[{sD}:{sD+3}], 0 offen offset:{K1.CB} sc1')
        e.label('F2_NOCE')


    def h_loads(self, e):
        sH, sDd = 20, 24
        HC = 136; X = 160; DV = 166
        e('s_waitcnt lgkmcnt(0)')
        e(f's_lshl_b32 s{s_t0}, s44, 12')
        e(f's_add_u32 s{sH}, s{P+8}, s{s_t0}')
        e(f's_addc_u32 s{sH+1}, s{P+9}, 0')
        e(f's_and_b32 s{sH+1}, s{sH+1}, 0xffff')
        e(f's_mov_b32 s{sH+2}, 4096')
        e(f's_mov_b32 s{sH+3}, 0x20000')
        srd(e, sDd, P+10, D*2)
        e(f'v_lshlrev_b32 v167, 4, v{vLane}')
        for n in range(4):
            c = HC + n*6
            e(f'buffer_load_dwordx4 v[{c}:{c+3}], v167, s[{sH}:{sH+3}], 0 offen offset:{n*1024} {NT1}')
            e(f'buffer_load_dwordx2 v[{c+4}:{c+5}], v167, s[{sH}:{sH+3}], 0 offen offset:{n*1024+16} {NT1}')
        e(f'v_mov_b32 v167, 0')
        e(f'buffer_load_dwordx2 v[{X+4}:{X+5}], v167, s[{sH}:{sH+3}], 0 offen')
        e(f's_lshl_b32 s{s_t0}, s44, 1')
        e(f'buffer_load_ushort v{DV}, v167, s[{sDd}:{sDd+3}], s{s_t0} offen')

    def c2(self, e, stC, bar1):
        nb = [0]
        def bar():
            e('s_barrier'); nb[0] += 1
        sH, sDd = 20, 24
        s_d, s_base, s_p = 35, 36, 37
        vA_, vB_ = 4, 5
        vT = 6
        HC = 136; X = 160; DV = 46; ACC = 48
        e.c('phase 2: B stream')
        e(f's_cmp_eq_u32 s{s_w}, 7')
        e('s_cbranch_scc1 F2_SYNC')
        e(f's_cmp_eq_u32 s45, 0')
        e('s_cbranch_scc1 F2_IDLE')
        e(f's_mov_b32 s{s_d}, s44')
        e(f's_sub_u32 s{s_t2}, s{s_w}, 4')
        e(f's_mul_i32 s{s_base}, s{s_t2}, {CW_SZ}')
        e(f's_add_u32 s{s_base}, s{s_base}, {CONV0}')
        e(f'v_add_u32 v{vT+4}, 1, v{vL15}')
        e(f'v_and_b32 v{vT+4}, 3, v{vT+4}')
        e(f'v_lshrrev_b32 v{vT+5}, 1, v{vQ}')
        e(f'v_and_b32 v{vT+6}, 1, v{vQ}')
        e(f'v_lshlrev_b32 v{vT+7}, 4, v{vT+5}')
        e(f'v_add_u32 v{vT+7}, v{vT+7}, v{vL15}')
        e(f'v_lshlrev_b32 v{vT+8}, 3, v{vT+6}')
        e(f'v_sub_u32 v{vT+7}, v{vT+7}, v{vT+8}')
        e(f'v_add_u32 v{vT+7}, 9, v{vT+7}')
        e(f'v_sub_u32 v{vT+7}, v{vT+7}, v{vT+4}')
        e(f'v_lshlrev_b32 v{vT+7}, 1, v{vT+7}')
        e(f'v_mul_u32_u24 v{vT+4}, {HCP}, v{vT+4}')
        e(f'v_add_u32 v{vT+7}, v{vT+7}, v{vT+4}')
        e(f'v_add_u32 v{vA_}, s{s_base}, v{vT+7}')
        e(f'v_sub_u32 v{vT+7}, v{vL15}, v{vT+5}')
        e(f'v_lshlrev_b32 v{vT+7}, 1, v{vT+7}')
        e(f'v_add_u32 v{vT+7}, v{vT+7}, v{vT+6}')
        e(f'v_lshlrev_b32 v{vT+7}, 4, v{vT+7}')
        e(f's_add_u32 s{s_t0}, s{s_base}, {CW_U + 512}')
        e(f'v_add_u32 v{vB_}, s{s_t0}, v{vT+7}')
        e('s_waitcnt vmcnt(0)')
        stC.stamp(e)
        bar1('B')
        stC.stamp(e)
        self.kv_store(e, 8)
        self.h_loads(e)
        bar()
        e('s_waitcnt vmcnt(0)')
        e(f'v_mov_b32 v{DV}, v166')
        e(f'v_mov_b32 v{vT+2}, 0'); e(f'v_mov_b32 v{vT+3}, 0')
        e(f'v_lshlrev_b32 v{vT+4}, 3, v{vLane}')
        e(f'v_add_u32 v{vT+4}, s{s_base}, v{vT+4}')
        e(f'ds_write_b64 v{vT+4}, v[{vT+2}:{vT+3}] offset:{CW_U}')
        e(f'v_lshlrev_b32 v{vT+4}, 4, v{vLane}')
        e(f'v_add_u32 v{vT+4}, s{s_base}, v{vT+4}')
        TM = 80
        def copies(c, off, k):
            t_ = TM + (k % 4)*12
            e(f'v_alignbit_b32 v{t_+0}, v{c+1}, v{c+0}, 16')
            e(f'v_alignbit_b32 v{t_+1}, v{c+2}, v{c+1}, 16')
            e(f'v_alignbit_b32 v{t_+2}, v{c+3}, v{c+2}, 16')
            e(f'v_alignbit_b32 v{t_+3}, v{c+4}, v{c+3}, 16')
            e(f'v_mov_b32 v{t_+4}, v{c+1}'); e(f'v_mov_b32 v{t_+5}, v{c+2}')
            e(f'v_mov_b32 v{t_+6}, v{c+3}'); e(f'v_mov_b32 v{t_+7}, v{c+4}')
            e(f'v_mov_b32 v{t_+8}, v{t_+1}'); e(f'v_mov_b32 v{t_+9}, v{t_+2}'); e(f'v_mov_b32 v{t_+10}, v{t_+3}')
            e(f'v_alignbit_b32 v{t_+11}, v{c+5}, v{c+4}, 16')
            e(f'ds_write_b128 v{vT+4}, v[{c}:{c+3}] offset:{off}')
            e(f'ds_write_b128 v{vT+4}, v[{t_}:{t_+3}] offset:{off + HCP}')
            e(f'ds_write_b128 v{vT+4}, v[{t_+4}:{t_+7}] offset:{off + 2*HCP}')
            e(f'ds_write_b128 v{vT+4}, v[{t_+8}:{t_+11}] offset:{off + 3*HCP}')
        for n in range(4):
            copies(HC + n*6, 32 + n*1024, n)
            e('s_waitcnt lgkmcnt(4)')
            if n == 1:
                e('s_waitcnt vmcnt(0)')
                bar()
            if n == 2: bar()
        for i in range(4): e(f'v_mov_b32 v{X+i}, 0')
        e(f'v_cmp_eq_u32 vcc, 1, v{vLane}')
        e(f'v_cndmask_b32 v{X+4}, 0, v{X+4}, vcc')
        e(f'v_cndmask_b32 v{X+5}, 0, v{X+5}, vcc')
        e('s_waitcnt lgkmcnt(0)')
        set_exec(e, 3, 0)
        copies(X, 0, 0)
        e(f's_mov_b64 exec, s[{s_ex}:{s_ex+1}]')
        e(f'v_lshlrev_b32 v{DV}, 16, v{DV}')
        for i in range(32): e(f'v_mov_b32 v{ACC+i}, 0')
        e('s_waitcnt vmcnt(0) lgkmcnt(0)')
        for _ in range(3): bar()
        e(f'v_lshlrev_b32 v{vT}, 4, v{vLane}')
        e(f's_lshl_b32 s{s_t0}, s{s_d}, 12')
        e(f's_add_u32 s{s_t0}, s{s_t0}, {KVT}')
        for n in range(4):
            e(f's_add_u32 m0, s{s_base}, {CW_U + 512 + n*1024}')
            e(f's_add_u32 s{s_t1}, s{s_t0}, {n*1024}')
            e(f'buffer_load_dwordx4 v{vT}, s[{sWS}:{sWS+3}], s{s_t1} offen sc1 lds')
        AFr = 80; B0 = 112
        def a_rd(m):
            a = AFr + m*4
            return [f'ds_read_b64 v[{a}:{a+1}], v{vA_} offset:{m*512}', f'ds_read_b64 v[{a+2}:{a+3}], v{vA_} offset:{m*512+8}']
        def b_rd(ee):
            b = B0 + 4*ee
            return [f'ds_read_b128 v[{b}:{b+3}], v{vB_} offset:{ee*512}']
        for m in range(8):
            for x in a_rd(m): e(x)
            if m % 4 == 3: e('s_waitcnt lgkmcnt(6)')
        bar()
        e('s_waitcnt vmcnt(0)')
        for m in range(8):
            for x in b_rd(m): e(x)
        e(f's_mov_b32 s{s_p}, 0')
        e.label('F2_CLOOP')
        for half in range(2):
            e(f'v_add_u32 v{vA_}, 64, v{vA_}')
            e(f'v_subrev_u32 v{vB_}, 64, v{vB_}')
            e('s_waitcnt lgkmcnt(0)')
            for m in range(8):
                for c in range(m, 8):
                    a = AFr + m*4; b = B0 + (c-m)*4; d = ACC + c*4
                    e(f'v_mfma_f32_16x16x32_bf16 v[{d}:{d+3}], v[{a}:{a+3}], v[{b}:{b+3}], v[{d}:{d+3}]')
                for x in a_rd(m): e(x)
                for x in b_rd(7 - m): e(x)
                if m in (3, 6): e('s_waitcnt lgkmcnt(6)')
                if (half == 0 and m == 3) or (half == 1 and m == 1): e('s_barrier')
        e('s_barrier')
        e(f's_add_u32 s{s_p}, s{s_p}, 2')
        e(f's_cmp_lt_u32 s{s_p}, 8')
        e('s_cbranch_scc1 F2_CLOOP')
        nb[0] += 12
        e('s_waitcnt lgkmcnt(0)')
        e(f'v_lshlrev_b32 v{vT}, 5, v{vL15}')
        e(f'v_lshrrev_b32 v{vT+1}, 1, v{vQ}')
        e(f'v_lshlrev_b32 v{vT+1}, 4, v{vT+1}')
        e(f'v_add_u32 v{vT}, v{vT}, v{vT+1}')
        e(f'v_and_b32 v{vT+1}, 1, v{vQ}')
        e(f'v_xor_b32 v{vT+1}, 1, v{vT+1}')
        e(f'v_lshlrev_b32 v{vT+1}, 3, v{vT+1}')
        e(f'v_add_u32 v{vT}, v{vT}, v{vT+1}')
        e(f's_add_u32 s{s_t0}, s{s_base}, {CW_U + 512}')
        e(f'v_add_u32 v{vT}, s{s_t0}, v{vT}')
        KV = AFr
        for c in range(8):
            e(f'ds_read_b64 v[{KV+2*c}:{KV+2*c+1}], v{vT} offset:{c*512}')
        e(f'v_lshlrev_b32 v{vT+2}, 5, v{vL15}')
        e(f'v_lshlrev_b32 v{vT+3}, 3, v{vQ}')
        e(f'v_add_u32 v{vT+2}, v{vT+2}, v{vT+3}')
        e(f's_lshl_b32 s{s_t0}, s{s_d}, 12')
        e(f's_add_u32 s{s_t0}, s{s_t0}, {YYT}')
        e('s_waitcnt lgkmcnt(0)')
        U = B0
        for c in range(8):
            a = ACC + c*4; k0 = KV + 2*c; u = U + (c % 4)*8
            e(f'v_and_b32 v{u+0}, s{s_mask}, v{k0+1}')
            e(f'v_lshlrev_b32 v{u+1}, 16, v{k0+1}')
            e(f'v_and_b32 v{u+2}, s{s_mask}, v{k0}')
            e(f'v_lshlrev_b32 v{u+3}, 16, v{k0}')
            for r in range(4): e(f'v_fmac_f32 v{a+r}, v{u+r}, v{DV}')
            e(f'v_cvt_pk_bf16_f32 v{u+4}, v{a}, v{a+1}')
            e(f'v_cvt_pk_bf16_f32 v{u+5}, v{a+2}, v{a+3}')
            e(f'buffer_store_dwordx2 v[{u+4}:{u+5}], v{vT+2}, s[{sWS}:{sWS+3}], s{s_t0} offen offset:{c*512} sc1')
        e('s_waitcnt vmcnt(0)')
        bar()
        n_c = nb[0]
        e.label('F3_IDLE')
        for _ in range(1 + K3.NB3): e('s_barrier')
        stC.flush(e, 0, sWS, vT, s_w)
        e('s_endpgm')
        e.label('F2_IDLE')
        e('s_waitcnt vmcnt(0)')
        bar1('I1')
        self.kv_store(e, 8)
        e('s_barrier')
        e('s_waitcnt vmcnt(0)')
        for _ in range(n_c - 1): e('s_barrier')
        e('s_branch F3_IDLE')
        e.label('F2_SYNC')
        vt = 6
        e('s_load_dwordx2 s[72:73], s[0:1], 104')
        e('s_waitcnt lgkmcnt(0)')
        sSP = 8
        e(f's_load_dwordx2 s[70:71], s[0:1], 64')
        e(f's_lshl_b32 s{s_t0}, s{s_rb}, 6')
        e(f's_lshl_b32 s{s_t1}, s{s_cb}, 3')
        e(f's_add_u32 s{s_t0}, s{s_t0}, s{s_t1}')
        e(f'v_lshrrev_b32 v20, 3, v{vLane}')
        e(f'v_add_u32 v20, s{s_t0}, v20')
        e(f'v_lshlrev_b32 v20, 12, v20')
        e(f'v_and_b32 v21, 7, v{vLane}')
        e(f'v_lshlrev_b32 v21, 6, v21')
        e(f'v_add_u32 v20, v20, v21')
        e(f'v_lshrrev_b32 v22, 2, v{vLane}')
        e(f'v_add_u32 v22, s{s_t0}, v22')
        e(f'v_lshlrev_b32 v22, 12, v22')
        e(f'v_and_b32 v21, 3, v{vLane}')
        e(f'v_lshlrev_b32 v21, 6, v21')
        e(f'v_add_u32 v22, v22, v21')
        e('s_waitcnt lgkmcnt(0)')
        srd(e, sSP, 70, S*S*2)
        JIT = os.environ.get('TOUCH', 'p2') == 'jit'
        self.flag_addr(e, vt+2, vt+3)
        e(f'v_mov_b32 v{vt+4}, 1')
        e('s_waitcnt vmcnt(0)')
        bar1('I2')
        stS = Stamper(); stS.n = 1
        stS.stamp(e)
        set_exec(e, 1, 0)
        e(f'buffer_store_dword v{vt+4}, v{vt+2}, s[{sWS}:{sWS+3}], 0 offen sc1')
        e(f's_mov_b64 exec, s[{s_ex}:{s_ex+1}]')
        for p in range(1, 3 if JIT else 0):
            e(f'buffer_load_dword v{24+p}, v20, s[{sSP}:{sSP+3}], 0 offen offset:{p*512}')
        SPOLL = os.environ.get('SPOLL', '1') == '1'
        e(f's_lshl_b32 s{s_t0}, s{s_cb}, 7')
        e(f's_add_u32 s75, s{s_t0}, {FL1}')
        e(f's_add_u32 s{s_t0}, s{s_t0}, {FL1}')
        e(f'v_lshlrev_b32 v{vt}, 2, v{vLane}')
        e(f'v_add_u32 v{vt}, s{s_t0}, v{vt}')
        if SPOLL:
            self.spoll(e, 'F1a', 75, 0, 8)
        else:
            self.poll(e, 'F1a', vt, vt+1, sWS, 0x3f, 0, 1)
        stS.stamp(e)
        e('s_barrier')
        stS.stamp(e)
        def mbar(i):
            e('s_barrier')
            j = i + 6
            if j < 16 and JIT:
                e('s_mov_b32 exec_hi, 0')
                e(f's_movk_i32 s{s_t0}, {j*256}')
                e(f'buffer_load_dword v{28 + (i % 4)}, v22, s[{sSP}:{sSP+3}], s{s_t0} offen')
                e('s_mov_b32 exec_hi, -1')
        mbar(0)
        set_exec(e, 8, 0)
        e(f'buffer_store_dword v{vt+4}, v{vt+2}, s[{sWS}:{sWS+3}], 0 offen sc1')
        e(f's_mov_b64 exec, s[{s_ex}:{s_ex+1}]')
        self.spoll(e, 'F1b', 75, 8, 8)
        mbar(1)
        mbar(2)
        self.spoll(e, 'F1c', 75, 16, 16)
        mbar(3)
        e(f's_add_u32 s75, s75, {FLKV - FL1}')
        self.spoll(e, 'FKa', 75, 0, 16)
        self.spoll(e, 'FKb', 75, 16, 16)
        for i in range(4, 16): mbar(i)
        for _ in range(3): e('s_barrier')
        set_exec(e, 6, 0)
        e(f'buffer_store_dword v{vt+4}, v{vt+2}, s[{sWS}:{sWS+3}], 0 offen sc1')
        e(f's_mov_b64 exec, s[{s_ex}:{s_ex+1}]')
        e(f's_lshl_b32 s{s_t0}, s{s_rb}, 5')
        e(f's_add_u32 s75, s{s_t0}, {FL2B}')
        e(f's_add_u32 s{s_t0}, s{s_t0}, {FL2B}')
        e(f'v_lshlrev_b32 v{vt}, 2, v{vLane}')
        e(f'v_add_u32 v{vt+6}, s{s_t0}, v{vt}')
        stS.stamp(e)
        if SPOLL: self.spoll(e, 'F2B', 75, 0, 8)
        else: self.poll(e, 'F2B', vt+6, vt+1, sWS, 0xff, 0, 1)
        stS.stamp(e)
        e('s_barrier')
        e(f's_lshl_b32 s{s_t0}, s{s_cb}, 7')
        e(f's_add_u32 s75, s{s_t0}, {FL2A}')
        e(f's_add_u32 s{s_t0}, s{s_t0}, {FL2A}')
        e(f'v_add_u32 v{vt+5}, s{s_t0}, v{vt}')
        e('s_barrier')
        if SPOLL:
            self.spoll(e, 'F2Aa', 75, 0, 16)
            self.spoll(e, 'F2Ab', 75, 16, 16)
        else:
            self.poll(e, 'F2A', vt+5, vt+1, sWS, 0xffffffff, 0, 1)
        for _ in range(K3.NB3 - 1): e('s_barrier')
        stS.flush(e, 2, sWS, vt, s_wl)
        e('s_endpgm')
        self.nb['B2'] = n_c

    def l2_pre(self, e):
        sSP = 8
        vD = 4; t = 10
        s_bw, s_m = 38, 39
        e.c('phase 2: L (pre)')
        e(f's_load_dwordx2 s[{P}:{P+1}], s[0:1], 64')
        e(f's_load_dwordx2 s[{P+4}:{P+5}], s[0:1], 104')
        e(f's_lshl_b32 s{s_t0}, s{s_rb}, 6')
        e(f's_lshl_b32 s{s_t1}, s{s_wl}, 4')
        e(f's_add_u32 s{s_t0}, s{s_t0}, s{s_t1}')
        for tt in range(4):
            e(f'v_add_u32 v{t}, {4*tt}, v{vQ}')
            e(f'v_xor_b32 v{t+1}, v{t}, v{vL15}')
            e(f'v_lshlrev_b32 v{t+1}, 4, v{t+1}')
            e(f'v_add_u32 v{t}, s{s_t0}, v{t}')
            e(f'v_lshlrev_b32 v{t}, 12, v{t}')
            e(f'v_add_u32 v{vD+tt}, v{t}, v{t+1}')
        e(f's_lshl_b32 s{s_m}, s{s_wl}, 12')
        e('s_waitcnt lgkmcnt(0)')
        srd(e, sSP, P, S*S*2)
        srd(e, sWS, P+4, WS_SIZE)
        self.lcnt = [0]; self.ldone = {}
    def lissue(self, e, j):
        sSP = 8; vD = 4; s_bw, s_m = 38, 39
        e(f's_movk_i32 s{s_bw}, {j*256}')
        for tt in range(4):
            e(f's_add_u32 m0, s{s_m}, {(j % 4)*16384 + tt*1024}')
            e('s_nop 0')
            e(f'buffer_load_dwordx4 v{vD+tt}, s[{sSP}:{sSP+3}], s{s_bw} offen {NT3} lds')
        self.lcnt[0] += 4; self.ldone[j] = self.lcnt[0]

    def l2(self, e, bar1):
        nb = [0]
        def bar():
            e('s_barrier'); nb[0] += 1
        cnt, done = self.lcnt, self.ldone
        issue = lambda j: self.lissue(e, j)
        def lbar(j):
            e(f's_waitcnt vmcnt({cnt[0] - done[j]})'); bar()
        bar1('L')
        e('s_sleep 5')
        for j in range(2): issue(j)
        lbar(0)
        LA = int(os.environ.get('LA', '3'))
        nxt = max(done) + 1
        while nxt < LA + 1:
            issue(nxt); nxt += 1
        for i in range(16):
            if i + 1 < 16: lbar(i + 1)
            else: bar()
            while nxt < 16 and nxt <= i + 1 + LA:
                issue(nxt); nxt += 1
        bar(); bar()
        bar()
        self.nb['L2'] = nb[0]
        grp = self.k3['l3']()
        e('s_sleep 4')
        grp(0); grp(1)
        e('s_barrier')
        issued = 2
        for g in range(6):
            if issued < 6:
                grp(issued); issued += 1
            e(f's_waitcnt vmcnt({5*(issued - g - 1)})')
            e('s_barrier')
        e('s_endpgm')

def gen_kf():
    e = Emitter()
    H = Hooks(); H.name = NAME
    H.k3 = K3.gen_k3(e=e, fused=True)
    nbar = K1.gen_k1(e=e, fused=True, H=H)
    print('phase1 barriers', nbar, 'phase2', H.nb, 'phase3', H.k3['nbar'])
    assert nbar['A'] == nbar['L'] == 23 and nbar['B'] == 23 and nbar['I1'] == 1 and nbar['I2'] == 1, nbar
    assert H.nb['A2'] - 1 == H.nb['B2'] == H.nb['L2'] == 20, H.nb
    assert H.k3['nbar']['G'] == K3.NB3
    e.label('KF_CODE_END')
    nn = e.finalize()
    return kernel_wrap(NAME, e.text(), vgpr=168, sgpr=102 if K1.DIAG else 96), nn
```

```python
from common import *

WSLOT = 12288; NSLOT = 5
XB0 = NSLOT * WSLOT
XST = 8192
PREP = XB0
PREPV = 11520
MISC = XB0 + 10 * XST
L_M1 = MISC; L_R1 = MISC + 256
L_CSA = MISC + 512
L_CSB = MISC + 1280
L_PS = MISC + 2048
L_PQ = MISC + 2560
L_W2 = MISC + 3072
LDS1 = 147456
import os
PREFETCH = os.environ.get('PREFETCH', '1') == '1'
XP_NOPREP = os.environ.get('XP_NOPREP', '0') == '1'
XP_NODOT = os.environ.get('XP_NODOT', '0') == '1'
XP_NOCOMP = os.environ.get('XP_NOCOMP', '0')
BLOCK1 = 768
DIAG = os.environ.get('DIAG') == '1'
CB = 128 if DIAG else 0
BARST = os.environ.get('BARST') == '1'
SENT = 0xbf800000

K1c = -2.0 * 1.4426950408889634 * 0.7978845608028654
K2c = K1c * 0.044715

KVS = 49152; KVP_ = 144; Z1L = 147456
def gen_k1(e=None, fused=False, H=None):
    if e is None: e = Emitter()
    SC = 'sc1' if fused else ''
    sX, sW, sWS, sK, sV, sT = 8, 12, 16, 20, 24, 28
    s_rb, s_cb, s_w, s_wr, s_wc, s_wl = 32, 33, 34, 35, 36, 55
    s_i, s_j, s_off, s_t0, s_t1, s_t2 = 37, 38, 39, 40, 41, 42
    s_z2b, s_z1b, s_slot, s_mask = 43, 44, 45, 47
    s_k2 = 48; s_one = 50; s_ex = 52; s_xo = 54
    sD = 4
    P = 56
    vLane, vQ, vL15 = 1, 2, 3
    vXA, vXB, vW = 4, 6, 8
    vT = 14
    XF = 26; WF = 42; ACC = 66; CS = 90; ONE = 102; SUM = 106; GR = 110; AP = 114; E = 126
    nbar = {'A': 0, 'B': 0, 'L': 0}
    def bar(role, name=''):
        e('s_barrier'); nbar[role] = nbar.get(role, 0) + 1

    e.c('---- k1: GEMM1 (LN1 folded) + gelu + LN2 + kv prep + w_out retile ; roles A(0-3) B(4-7) L(8)')
    e('s_cmp_ge_u32 s2, 256')
    e('s_cbranch_scc1 K1_END')
    stp = Stamper(); stp.start(e)
    if DIAG:
        e('s_memrealtime s[96:97]'); e('s_memtime s[98:99]')
    stp.mute = fused and os.environ.get('P1ST') != '1'
    e(f's_load_dwordx4 s[{P}:{P+3}], s[0:1], 0')
    e(f's_load_dwordx4 s[{P+4}:{P+7}], s[0:1], 16')
    e(f's_load_dwordx2 s[{P+8}:{P+9}], s[0:1], 56')
    e(f's_load_dwordx2 s[{P+10}:{P+11}], s[0:1], 80')
    e(f's_load_dwordx4 s[{P+12}:{P+15}], s[0:1], 96')
    e(f's_load_dwordx2 s[{P+18}:{P+19}], s[0:1], 64')
    e(f's_load_dwordx2 s[{P+20}:{P+21}], s[0:1], 32')
    e(f'v_and_b32 v{vLane}, 63, v0')
    e(f'v_lshrrev_b32 v{vT}, 6, v0')
    e(f'v_lshrrev_b32 v{vQ}, 4, v{vLane}')
    e(f'v_readfirstlane_b32 s{s_w}, v{vT}')
    e(f'v_and_b32 v{vL15}, 15, v{vLane}')
    e(f's_and_b32 s{s_t0}, s2, 7')
    e(f's_lshr_b32 s{s_t1}, s2, 3')
    e(f's_lshr_b32 s{s_rb}, s{s_t0}, 1')
    e(f's_lshl_b32 s{s_rb}, s{s_rb}, 3')
    e(f's_lshr_b32 s{s_t2}, s{s_t1}, 2')
    e(f's_add_u32 s{s_rb}, s{s_rb}, s{s_t2}')
    e(f's_and_b32 s{s_cb}, s{s_t0}, 1')
    e(f's_lshl_b32 s{s_cb}, s{s_cb}, 2')
    e(f's_and_b32 s{s_t2}, s{s_t1}, 3')
    e(f's_add_u32 s{s_cb}, s{s_cb}, s{s_t2}')
    e(f's_and_b32 s{s_wl}, s{s_w}, 3')
    e(f's_lshr_b32 s{s_wr}, s{s_wl}, 1')
    e(f's_and_b32 s{s_wc}, s{s_wl}, 1')
    e(f's_mov_b32 s{s_mask}, 0xffff0000')
    e(f's_mov_b64 s[{s_ex}:{s_ex+1}], exec')
    e(f's_mul_i32 s{s_z1b}, s{s_cb}, 192')
    e(f's_add_u32 s{s_z2b}, s{s_z1b}, {768*2}')
    e(f's_cmp_ge_u32 s{s_w}, 8')
    e('s_cbranch_scc0 K1_AB')

    e.c('loader (4 waves; L = w&3 handles instr n = 4h + L of each stage)')
    if os.environ.get('PRIOL'): e(f"s_setprio {os.environ['PRIOL']}")
    stL = Stamper(); stL.n = 1; stL.mute = fused
    vP, vPr = 4, 5
    VX = 8
    VW = 12
    t = 30
    s_L = s_wl
    s_xs, s_ws_, s_lb = s_j, s_off, s_slot
    e(f's_lshl_b32 s{s_t0}, s{s_rb}, 6')
    e(f's_lshl_b32 s{s_t1}, s{s_L}, 3')
    e(f's_add_u32 s{s_t0}, s{s_t0}, s{s_t1}')
    e(f's_lshl_b32 s{s_lb}, s{s_L}, 10')
    e(f'v_lshrrev_b32 v{t}, 3, v{vLane}')
    e(f'v_add_u32 v{t+2}, s{s_t1}, v{t}')
    e(f'v_lshrrev_b32 v{t+1}, 1, v{t+2}')
    e(f'v_xor_b32 v{t+1}, v{t+1}, v{vLane}')
    e(f'v_and_b32 v{t+1}, 7, v{t+1}')
    e(f'v_lshlrev_b32 v{t+1}, 4, v{t+1}')
    e(f'v_add_u32 v{t}, s{s_t0}, v{t}')
    e(f'v_mul_u32_u24 v{t}, 1280, v{t}')
    e(f'v_add_u32 v{VX}, v{t}, v{t+1}')
    e(f'v_add_u32 v{VX+1}, {32*1280}, v{VX}')
    e('s_waitcnt lgkmcnt(0)')
    stL.stamp(e)
    srd(e, sX, P, S*D*2)
    srd(e, sW, P+8, D*F*2)
    cnt = [0]; done_at = {}
    s_rot = s_i
    e(f's_and_b32 s{s_t0}, s{s_rb}, 7')
    e(f's_and_b32 s{s_t1}, s{s_cb}, 3')
    e(f's_mul_i32 s{s_t1}, s{s_t1}, 3')
    e(f's_add_u32 s{s_rot}, s{s_t0}, s{s_t1}')
    e(f's_sub_u32 s{s_t0}, s{s_rot}, 10')
    e(f's_cmp_ge_u32 s{s_rot}, 10')
    e(f's_cselect_b32 s{s_rot}, s{s_t0}, s{s_rot}')
    def kslice(j, dst):
        e(f's_add_u32 s{dst}, s{s_rot}, {j % 10}')
        e(f's_sub_u32 s{s_t0}, s{dst}, 10')
        e(f's_cmp_ge_u32 s{dst}, 10')
        e(f's_cselect_b32 s{dst}, s{s_t0}, s{dst}')
    def issue_x(j):
        kslice(j, s_xs)
        e(f's_lshl_b32 s{s_xs}, s{s_xs}, 7')
        for h in range(2):
            e(f's_add_u32 m0, s{s_lb}, {XB0 + j*XST + 4096*h}')
            e('s_nop 0')
            e(f'buffer_load_dwordx4 v{VX+h}, s[{sX}:{sX+3}], s{s_xs} offen {NT2} lds')
        cnt[0] += 2
    def issue_w(j):
        base = s_z2b if j < 10 else s_z1b
        kslice(j, s_ws_)
        e(f's_mul_i32 s{s_ws_}, s{s_ws_}, {64*3072}')
        e(f's_add_u32 s{s_ws_}, s{s_ws_}, s{base}')
        for h in range(3):
            e(f's_add_u32 m0, s{s_lb}, {(j % NSLOT)*WSLOT + 4096*h}')
            e('s_nop 0')
            e(f'buffer_load_dwordx4 v{VW+h}, s[{sW}:{sW+3}], s{s_ws_} offen {NT2} lds')
        cnt[0] += 3
    for h in range(3):
        e(f's_lshl_b32 s{s_t0}, s{s_L}, 6')
        e(f's_add_u32 s{s_t0}, s{s_t0}, {64*4*h}')
        e(f'v_add_u32 v{t}, s{s_t0}, v{vLane}')
        e(f'v_mul_u32_u24 v{t+1}, 5462, v{t}')
        e(f'v_lshrrev_b32 v{t+1}, 16, v{t+1}')
        e(f'v_mul_u32_u24 v{t+2}, 12, v{t+1}')
        e(f'v_sub_u32 v{t+2}, v{t}, v{t+2}')
        e(f'v_lshrrev_b32 v{t+3}, 2, v{t+1}')
        e(f'v_and_b32 v{t+3}, 2, v{t+3}')
        e(f'v_xor_b32 v{t+2}, v{t+2}, v{t+3}')
        e(f'v_lshlrev_b32 v{t+2}, 4, v{t+2}')
        e(f'v_mul_u32_u24 v{t+1}, 3072, v{t+1}')
        e(f'v_add_u32 v{VW+h}, v{t+1}, v{t+2}')
    stL.stamp(e)
    issue_x(0)
    issue_w(0); done_at[0] = cnt[0]
    def issue(j):
        if j < 10: issue_x(j)
        issue_w(j)
        done_at[j] = cnt[0]
    def lbar(k):
        n = cnt[0] - done_at[k]
        e(f's_waitcnt vmcnt({min(n, 63)})'); bar('L')
    vK0 = 20
    sa, sb, sc = 46, 78, 79
    PW = 6720
    def setup_prep():
        e(f'v_mul_u32_u24 v{vPr}, 6554, v{vLane}')
        e(f'v_lshrrev_b32 v{vPr}, 16, v{vPr}')
        e(f'v_mul_u32_u24 v{vP}, 10, v{vPr}')
        e(f'v_sub_u32 v{vP}, v{vLane}, v{vP}')
        e(f'v_lshlrev_b32 v{vP}, 4, v{vP}')
        e(f'v_mul_u32_u24 v{t}, 1280, v{vPr}')
        e(f'v_add_u32 v{vP}, v{vP}, v{t}')
        srd(e, sK, P+2, S*D*2)
        srd(e, sV, P+4, S*D*2)
        e(f's_lshl_b32 s{s_t0}, s{s_rb}, 6')
        e(f's_lshl_b32 s{s_t1}, s{s_L}, 4')
        e(f's_add_u32 s{s_t0}, s{s_t0}, s{s_t1}')
        e(f's_mul_i32 s{sa}, s{s_t0}, 1280')
        e(f's_mul_i32 s{s_t1}, s{s_cb}, 160')
        e(f's_add_u32 s{sa}, s{sa}, s{s_t1}')
        e(f's_mul_i32 s{sb}, s{s_L}, {PW}')
        e(f's_add_u32 s{sb}, s{sb}, {PREP}')
        e(f'v_mov_b32 v{vK0}, v{vP}')
        e(f's_sub_u32 s{sc}, s{sa}, {3*1280}')
        e(f's_cmp_eq_u32 s{s_t0}, 0')
        e('s_cbranch_scc0 K1_NONNEG')
        e(f'v_subrev_u32 v{vK0}, {3*1280}, v{vP}')
        e(f'v_cmp_gt_u32 vcc, 3, v{vPr}')
        e(f'v_mov_b32 v{t+1}, 0x80000000')
        e(f'v_cndmask_b32 v{vK0}, v{vK0}, v{t+1}, vcc')
        e(f's_mov_b32 s{sc}, s{sa}')
        e.label('K1_NONNEG')
        srd(e, sT, P+6, D*4*2)
        e(f'v_lshlrev_b32 v21, 4, v{vLane}')
        e(f's_mul_i32 s54, s{s_cb}, 640')
    def issue_prep():
        set_exec(e, 0xffffffff, 0x0fffffff)
        for n in range(4):
            e(f's_add_u32 m0, s{sb}, {n*960}')
            if n > 0: e(f's_add_u32 s{sc}, s{sa}, {(6*n-3)*1280}')
            else: e('s_nop 0')
            e(f'buffer_load_dwordx4 v{vK0 if n == 0 else vP}, s[{sK}:{sK+3}], s{sc} offen {NT1} lds')
        for n in range(3):
            e(f's_add_u32 m0, s{sb}, {3840 + n*960}')
            e(f's_add_u32 s{sc}, s{sa}, {6*n*1280}')
            e(f'buffer_load_dwordx4 v{vP}, s[{sV}:{sV+3}], s{sc} offen {NT1} lds')
        e(f's_mov_b64 exec, s[{s_ex}:{s_ex+1}]')
        e(f'buffer_load_dwordx4 v[156:159], v21, s[{sT}:{sT+3}], s54 offen')
        cnt[0] += 8
    def prefetch_tail():
        e(f'v_lshlrev_b32 v{t}, 6, v{vLane}')
        e(f's_and_b32 s{s_t0}, s2, 7')
        e(f's_lshl_b32 s{s_t0}, s{s_t0}, 8')
        e(f's_lshr_b32 s{s_t1}, s2, 3')
        e(f's_lshl_b32 s{s_t1}, s{s_t1}, 3')
        e(f's_add_u32 s{s_t0}, s{s_t0}, s{s_t1}')
        e(f's_lshl_b32 s{s_t1}, s{s_L}, 1')
        e(f's_add_u32 s{s_t0}, s{s_t0}, s{s_t1}')
        e(f's_lshl_b32 s{s_t0}, s{s_t0}, 12')
        srd(e, sK, P+18, S*S*2)
        for r in range(2):
            e(f'buffer_load_dword v{t+1+r}, v{t}, s[{sK}:{sK+3}], s{s_t0} offen')
            e(f's_add_u32 s{s_t0}, s{s_t0}, 4096')
        srd(e, sV, P+20, D*S*2)
        e(f's_mul_i32 s{s_t0}, s2, 3')
        e(f's_add_u32 s{s_t0}, s{s_t0}, s{s_L}')
        e(f's_lshl_b32 s{s_t0}, s{s_t0}, 12')
        e(f's_cmp_eq_u32 s{s_L}, 3')
        e(f's_cselect_b32 s{s_t0}, 0x80000000, s{s_t0}')
        e(f'buffer_load_dword v{t+5}, v{t}, s[{sV}:{sV+3}], s{s_t0} offen')
        cnt[0] += 3
    xs = {1: [1, 2], 2: [3, 4], 3: [5, 6], 4: [7, 8], 5: [9]}
    wn = 1
    if os.environ.get('UP1', '1') == '1':
        issue_x(1); issue_w(1); done_at[1] = cnt[0]; wn = 2
        xs = {1: [2, 3], 2: [4, 5], 3: [6, 7], 4: [8, 9]}
    for k in range(20):
        if k >= 1:
            lim = {1: 3 if os.environ.get('UP1', '1') == '1' else 2, 2: 4}.get(k, min(19, k + 2 if k <= 5 else k + 3))
            todo_x = list(xs.get(k, []))
            while wn <= lim or todo_x:
                if todo_x: issue_x(todo_x.pop(0))
                if wn <= lim:
                    issue_w(wn); done_at[wn] = cnt[0]; wn += 1
                    if wn == 20: issue_prep()
        if k == 11: setup_prep()
        lbar(k)
        if k in (0, 1): stL.stamp(e)
    assert wn == 20
    SKL = 156; KR = 40; VRr = 59; KP = 76; CP = 114; KVP = 122; OUT = 40
    vt = 30
    e('s_waitcnt vmcnt(0)')
    e(f'v_lshlrev_b32 v{vt}, 2, v{vLane}')
    e(f'v_min_u32 v{vt}, 156, v{vt}')
    e(f'v_add_u32 v{vt}, s{sb}, v{vt}')
    for r in range(19):
        e(f'ds_read_b32 v{KR+r}, v{vt} offset:{r*160}')
        if r == 13: e('s_waitcnt lgkmcnt(6)')
    bar('L')
    for r in range(16):
        if r in (2, 10): e('s_waitcnt lgkmcnt(6)')
        e(f'ds_read_b32 v{VRr+r}, v{vt} offset:{3840 + r*160}')
    e(f'v_lshlrev_b32 v{CP+0}, 16, v{SKL+0}'); e(f'v_lshlrev_b32 v{CP+1}, 16, v{SKL+2}')
    e(f'v_and_b32 v{CP+2}, s{s_mask}, v{SKL+0}'); e(f'v_and_b32 v{CP+3}, s{s_mask}, v{SKL+2}')
    e(f'v_lshlrev_b32 v{CP+4}, 16, v{SKL+1}'); e(f'v_lshlrev_b32 v{CP+5}, 16, v{SKL+3}')
    e(f'v_and_b32 v{CP+6}, s{s_mask}, v{SKL+1}'); e(f'v_and_b32 v{CP+7}, s{s_mask}, v{SKL+3}')
    e('s_waitcnt lgkmcnt(0)')
    bar('L')
    for r in range(19):
        e(f'v_lshlrev_b32 v{KP+2*r}, 16, v{KR+r}')
        e(f'v_and_b32 v{KP+2*r+1}, s{s_mask}, v{KR+r}')
    for i in range(16):
        t_ = KVP + 2*i
        e(f'v_pk_mul_f32 v[{t_}:{t_+1}], v[{CP+6}:{CP+7}], v[{KP+2*i}:{KP+2*i+1}]')
        e(f'v_lshlrev_b32 v{vt+2}, 16, v{VRr+i}')
        e(f'v_pk_fma_f32 v[{t_}:{t_+1}], v[{CP+4}:{CP+5}], v[{KP+2*i+2}:{KP+2*i+3}], v[{t_}:{t_+1}]')
        e(f'v_and_b32 v{vt+3}, s{s_mask}, v{VRr+i}')
        e(f'v_pk_fma_f32 v[{t_}:{t_+1}], v[{CP+2}:{CP+3}], v[{KP+2*i+4}:{KP+2*i+5}], v[{t_}:{t_+1}]')
        e(f'v_pk_fma_f32 v[{t_}:{t_+1}], v[{CP+0}:{CP+1}], v[{KP+2*i+6}:{KP+2*i+7}], v[{t_}:{t_+1}]')
        e(f'v_pk_mul_f32 v[{t_}:{t_+1}], v[{t_}:{t_+1}], v[{vt+2}:{vt+3}]')
    for dd in range(2):
        for g in range(2):
            for n in range(4):
                lo = KVP + 2*(8*g + 7 - 2*n) + dd
                hi = KVP + 2*(8*g + 6 - 2*n) + dd
                e(f'v_cvt_pk_bf16_f32 v{OUT + dd*8 + g*4 + n}, v{lo}, v{hi}')
    e(f'v_mul_u32_u24 v{vt}, {2*KVP_}, v{vLane}')
    e(f's_lshl_b32 s{s_t0}, s{s_wl}, 5')
    e(f's_add_u32 s{s_t0}, s{s_t0}, {KVS}')
    e(f'v_add_u32 v{vt}, s{s_t0}, v{vt}')
    set_exec(e, 0xffffffff, 0xff)
    for dd in range(2):
        for g in range(2):
            o = OUT + dd*8 + g*4
            e(f'ds_write_b128 v{vt}, v[{o}:{o+3}] offset:{dd*KVP_ + g*16}')
    e(f's_mov_b64 exec, s[{s_ex}:{s_ex+1}]')
    H.l2_pre(e)
    e('s_waitcnt lgkmcnt(0)')
    H.after_L(e, bar)
    if STAMPS and not fused:
        srd(e, sWS, P+14, WS_SIZE) if False else None
        e(f's_load_dwordx2 s[{P+14}:{P+15}], s[0:1], 104')
        e('s_waitcnt lgkmcnt(0)')
        srd(e, sWS, P+14, WS_SIZE)
        stL.flush(e, 3, sWS, t, s_wl)
    if not fused: e('s_endpgm')

    e.label('K1_AB')
    e(f'v_lshrrev_b32 v{vT+3}, 1, v{vL15}')
    e(f'v_xor_b32 v{vT+3}, v{vT+3}, v{vQ}')
    e(f'v_lshlrev_b32 v{vT+3}, 4, v{vT+3}')
    e(f'v_lshlrev_b32 v{vT+4}, 7, v{vL15}')
    e(f'v_add_u32 v{vT+3}, v{vT+3}, v{vT+4}')
    e(f'v_xor_b32 v{vT+4}, 64, v{vT+3}')
    e(f's_lshl_b32 s{s_t0}, s{s_wr}, 12')
    e(f's_lshl_b32 s{s_t1}, s{s_wc}, 11')
    e(f's_add_u32 s{s_t2}, s{s_t0}, s{s_t1}')
    e(f's_add_u32 s{s_t2}, s{s_t2}, {XB0}')
    e(f'v_add_u32 v{vXA}, s{s_t2}, v{vT+3}')
    e(f'v_add_u32 v{vXA+1}, s{s_t2}, v{vT+4}')
    e(f's_xor_b32 s{s_t1}, s{s_t1}, 2048')
    e(f's_add_u32 s{s_t2}, s{s_t0}, s{s_t1}')
    e(f's_add_u32 s{s_t2}, s{s_t2}, {XB0}')
    e(f'v_add_u32 v{vXB}, s{s_t2}, v{vT+3}')
    e(f'v_add_u32 v{vXB+1}, s{s_t2}, v{vT+4}')
    e(f'v_lshrrev_b32 v{vT+3}, 2, v{vLane}')
    e(f'v_and_b32 v{vT+3}, 3, v{vT+3}')
    e(f'v_lshlrev_b32 v{vT+4}, 3, v{vQ}')
    e(f'v_add_u32 v{vT+3}, v{vT+3}, v{vT+4}')
    e(f'v_mul_u32_u24 v{vT+3}, 192, v{vT+3}')
    e(f'v_and_b32 v{vT+4}, 3, v{vLane}')
    e(f'v_lshlrev_b32 v{vT+4}, 3, v{vT+4}')
    e(f'v_add_u32 v{vT+3}, v{vT+3}, v{vT+4}')
    e(f'v_and_b32 v{vT+5}, 1, v{vQ}')
    e(f's_mul_i32 s{s_t0}, s{s_wc}, 3')
    for ft in range(3):
        e(f's_add_u32 s{s_t1}, s{s_t0}, {ft}')
        e(f'v_xor_b32 v{vT+4}, s{s_t1}, v{vT+5}')
        e(f'v_lshlrev_b32 v{vT+4}, 5, v{vT+4}')
        e(f'v_add_u32 v{vW+ft}, v{vT+3}, v{vT+4}')
    e(f's_mov_b32 s{s_k2}, {hexf(K2c)}'); e(f's_mov_b32 s{s_k2+1}, {hexf(K2c)}')
    e(f's_mov_b32 s{s_one}, 1.0'); e(f's_mov_b32 s{s_one+1}, 1.0')
    e('s_waitcnt lgkmcnt(0)')
    srd(e, sWS, P+14, WS_SIZE)
    srd(e, sD, P+12, 256)
    e(f's_cmp_ge_u32 s{s_w}, 4')
    e('s_cbranch_scc1 K1_B')

    def rd_list(buf, ksl, xoff, woff):
        L = []
        L.append(f'ds_read_b128 v[{XF+buf*8}:{XF+buf*8+3}], v{vXA+ksl} offset:{xoff}')
        for ft in range(3):
            b = WF + buf*12 + ft*4
            L.append(f'ds_read_b64_tr_b16 v[{b}:{b+1}], v{vW+ft} offset:{woff+ksl*6144}')
            L.append(f'ds_read_b64_tr_b16 v[{b+2}:{b+3}], v{vW+ft} offset:{woff+ksl*6144+768}')
            if ft == 0:
                L.append(f'ds_read_b128 v[{XF+buf*8+4}:{XF+buf*8+7}], v{vXB+ksl} offset:{xoff}')
        return L
    def phase(buf, ksl, p, tag, nxt_reads):
        mf = []
        for ft in range(3):
            for T in range(2):
                a = ACC + (T*3+ft)*4
                x = f'v[{XF+buf*8+T*4}:{XF+buf*8+T*4+3}]'
                w = f'v[{WF+buf*12+ft*4}:{WF+buf*12+ft*4+3}]'
                if p == 1: mf.append(f'v_mfma_f32_16x16x32_bf16 v[{a}:{a+3}], {x}, {w}, v[{a}:{a+3}]')
                else:      mf.append(f'v_mfma_f32_16x16x32_bf16 v[{a}:{a+3}], {w}, {x}, v[{a}:{a+3}]')
        fills = [nxt_reads[0:2], nxt_reads[2:4], nxt_reads[4:6], nxt_reads[6:8], [], []]
        if p == 1 and not XP_NODOT:
            x = f'v[{XF+buf*8}:{XF+buf*8+3}]'
            mf.append(f'v_mfma_f32_16x16x32_bf16 v[{SUM}:{SUM+3}], v[{ONE}:{ONE+3}], {x}, v[{SUM}:{SUM+3}]')
            mf.append(f'v_mfma_f32_16x16x32_bf16 v[{GR}:{GR+3}], {x}, {x}, v[{GR}:{GR+3}]')
        if XP_NOCOMP == '2': fills = [[] for _ in fills]
        if XP_NOCOMP == '3': mf = ['s_nop 0'] * len(mf)
        weave(e, mf, fills)
        e(f's_cmp_eq_u32 s{s_wr}, {ksl}')
        e(f's_cbranch_scc0 K1_SK_{tag}')
        for ft in range(3):
            a = CS + ft*4
            w = f'v[{WF+buf*12+ft*4}:{WF+buf*12+ft*4+3}]'
            o = f'v[{ONE}:{ONE+3}]'
            if p == 1: e(f'v_mfma_f32_16x16x32_bf16 v[{a}:{a+3}], {o}, {w}, v[{a}:{a+3}]')
            else:      e(f'v_mfma_f32_16x16x32_bf16 v[{a}:{a+3}], {w}, {o}, v[{a}:{a+3}]')
        e.label(f'K1_SK_{tag}')
    def init_acc():
        for i in range(4): e(f'v_mov_b32 v{ONE+i}, 0x3f803f80')
        for i in range(24): e(f'v_mov_b32 v{ACC+i}, 0')
        for i in range(12): e(f'v_mov_b32 v{CS+i}, 0')
        for i in range(8): e(f'v_mov_b32 v{SUM+i}, 0')
    def loop(p, role):
        L = f'K1_LOOP{p}'
        if BARST:
            e('s_mov_b32 m0, 0'); e('s_memtime s[90:91]'); e('v_mov_b32 v150, 0')
        if XP_NOCOMP == '1':
            for _ in range(10): bar(role)
            return
        e(f's_mov_b32 s{s_i}, 0')
        for x in rd_list(0, 0, 0, 0): e(x)
        e.label(L)
        for u in range(5):
            e('s_waitcnt lgkmcnt(0)')
            phase(0, 0, p, f'{p}a{u}', rd_list(1, 1, u*XST, u*WSLOT))
            e('s_waitcnt lgkmcnt(0)')
            if BARST:
                e('v_writelane_b32 v150, s90, m0')
                e('s_add_u32 m0, m0, 1')
            e('s_barrier')
            if BARST: e('s_memtime s[90:91]')
            if u == 4:
                for r in (vXA, vXA+1, vXB, vXB+1):
                    e(f'v_add_u32 v{r}, {5*XST}, v{r}')
                nx = rd_list(0, 0, 0, 0)
            else:
                nx = rd_list(0, 0, (u+1)*XST, (u+1)*WSLOT)
            phase(1, 1, p, f'{p}b{u}', nx)
            if p == 2 and PREFETCH and (not fused or os.environ.get('TOUCH', 'p2') == 'p2'):
                e(f's_and_b32 s{s_t0}, s46, 3')
                e(f's_cmp_eq_u32 s{s_t0}, s{s_wl}')
                e(f's_cbranch_scc0 K1_NT{u}')
                e('s_cmp_lt_u32 s46, 8')
                e(f's_cbranch_scc0 K1_NT{u}')
                e(f'buffer_load_dword v148, v144, s[{sK}:{sK+3}], s54 offen')
                e.label(f'K1_NT{u}')
                e('s_add_u32 s46, s46, 1')
                e('s_add_u32 s54, s54, 4096')
        e(f's_add_u32 s{s_i}, s{s_i}, 1')
        e(f's_cmp_lt_u32 s{s_i}, 2')
        e(f's_cbranch_scc1 {L}')
        nbar[role] += 10
        if BARST:
            e('s_waitcnt lgkmcnt(0)')
            e('v_writelane_b32 v150, s90, m0')
            e(f's_lshl_b32 s{s_t0}, s2, 3'); e(f's_add_u32 s{s_t0}, s{s_t0}, s{s_w}'); e(f's_lshl_b32 s{s_t0}, s{s_t0}, 6')
            e(f's_add_u32 s{s_t0}, s{s_t0}, {TSB + 3*0x40000}')
            e(f'v_lshlrev_b32 v151, 2, v{vLane}')
            set_exec(e, 0xffff, 0)
            e(f'buffer_store_dword v150, v151, s[{sWS}:{sWS+3}], s{s_t0} offen')
            e(f's_mov_b64 exec, s[{s_ex}:{s_ex+1}]')
    K1V = E + 0
    G = E + 2
    def gelu_pair_sc(t, u):
        for h in range(2):
            e(f'v_mul_f32 v{u+h}, v{t+h}, v{t+h}')
        for h in range(2):
            e(f'v_fma_f32 v{u+h}, v{u+h}, s{s_k2}, v{K1V}')
        for h in range(2):
            e(f'v_mul_f32 v{u+h}, v{u+h}, v{t+h}')
        for h in range(2):
            e(f'v_exp_f32 v{u+h}, v{u+h}')
        for h in range(2):
            e(f'v_add_f32 v{u+h}, 1.0, v{u+h}')
        for h in range(2):
            e(f'v_rcp_f32 v{u+h}, v{u+h}')
        for h in range(2):
            e(f'v_mul_f32 v{u+h}, v{u+h}, v{t+h}')
    def gelu_pair(t, u):
        e(f'v_pk_mul_f32 v[{u}:{u+1}], v[{t}:{t+1}], v[{t}:{t+1}]')
        e(f'v_pk_fma_f32 v[{u}:{u+1}], v[{u}:{u+1}], s[{s_k2}:{s_k2+1}], v[{K1V}:{K1V+1}]')
        e(f'v_pk_mul_f32 v[{u}:{u+1}], v[{u}:{u+1}], v[{t}:{t+1}]')
        e(f'v_exp_f32 v{u}, v{u}')
        e(f'v_exp_f32 v{u+1}, v{u+1}')
        e(f'v_pk_add_f32 v[{u}:{u+1}], v[{u}:{u+1}], s[{s_one}:{s_one+1}]')
        e(f'v_rcp_f32 v{u}, v{u}')
        e(f'v_rcp_f32 v{u+1}, v{u+1}')
        e(f'v_pk_mul_f32 v[{u}:{u+1}], v[{u}:{u+1}], v[{t}:{t+1}]')

    e.c('role A')
    init_acc()
    bar('A')
    stp.stamp(e)
    loop(1, 'A')
    stp.stamp(e)
    e.c('A epilogue')
    e('s_setprio 2')
    e(f's_lshl_b32 s{s_t0}, s{s_rb}, 2')
    e(f'v_mov_b32 v{vT+8}, s{s_t0}')
    PC = vT + 9
    e(f'v_and_b32 v{vT}, 3, v{vL15}')
    e(f'v_cmp_eq_u32 vcc, 1, v{vT}')
    e(f'v_cndmask_b32 v{GR}, v{GR}, v{GR+1}, vcc')
    e(f'v_cmp_eq_u32 vcc, 2, v{vT}')
    e(f'v_cndmask_b32 v{GR}, v{GR}, v{GR+2}, vcc')
    e(f'v_cmp_eq_u32 vcc, 3, v{vT}')
    e(f'v_cndmask_b32 v{GR}, v{GR}, v{GR+3}, vcc')
    ln_finalize(e, SUM, GR, D, vT+2, vT+3, vT+4, vT+5)
    e(f's_lshl_b32 s{s_t0}, s{s_wr}, 5')
    e(f's_lshl_b32 s{s_t1}, s{s_wc}, 4')
    e(f's_add_u32 s{s_t0}, s{s_t0}, s{s_t1}')
    e(f'v_add_u32 v{vT+4}, s{s_t0}, v{vL15}')
    e(f'v_lshlrev_b32 v{vT+5}, 2, v{vT+4}')
    e(f'v_add_u32 v{vT+5}, {L_M1}, v{vT+5}')
    set_exec(e, 0x00f0000f, 0xf0000f00)
    e(f'ds_write_b32 v{vT+5}, v{vT+2}')
    e(f'ds_write_b32 v{vT+5}, v{vT+3} offset:256')
    if fused: e('s_branch K1_NOST1X')
    e(f's_cmp_eq_u32 s{s_cb}, 0')
    e('s_cbranch_scc0 K1_NOST1X')
    e(f's_lshl_b32 s{s_t1}, s{s_rb}, 9')
    e(f's_add_u32 s{s_t1}, s{s_t1}, {ST1}')
    e(f'v_lshlrev_b32 v{vT+4}, 3, v{vT+4}')
    e(f'buffer_store_dwordx2 v[{vT+2}:{vT+3}], v{vT+4}, s[{sWS}:{sWS+3}], s{s_t1} offen {SC}')
    e.label('K1_NOST1X')
    e(f's_mov_b64 exec, s[{s_ex}:{s_ex+1}]')
    e(f's_mul_i32 s{s_t0}, s{s_wl}, 192')
    e(f's_add_u32 s{s_t0}, s{s_t0}, {L_CSA}')
    e(f'v_lshlrev_b32 v{vT+6}, 2, v{vL15}')
    e(f'v_add_u32 v{vT+6}, s{s_t0}, v{vT+6}')
    for ft in range(3):
        e(f'ds_write_b32 v{vT+6}, v{CS+ft*4} offset:{ft*64}')
    e('s_waitcnt lgkmcnt(0)')
    bar('A')
    e(f's_xor_b32 s{s_t1}, s{s_wl}, 2')
    e(f's_mul_i32 s{s_t1}, s{s_t1}, 192')
    e(f's_add_u32 s{s_t1}, s{s_t1}, {L_CSA}')
    e(f'v_lshlrev_b32 v{vT+4}, 2, v{vL15}')
    e(f'v_add_u32 v{vT+4}, s{s_t1}, v{vT+4}')
    NCS = E + 10
    for ft in range(3):
        e(f'ds_read_b32 v{NCS+2*ft}, v{vT+4} offset:{ft*64}')
    M1 = XF
    R1 = XF + 8
    e(f's_lshl_b32 s{s_t0}, s{s_wr}, 7')
    e(f's_lshl_b32 s{s_t1}, s{s_wc}, 6')
    e(f's_add_u32 s{s_t0}, s{s_t0}, s{s_t1}')
    e(f's_add_u32 s{s_t0}, s{s_t0}, {L_M1}')
    e(f'v_lshlrev_b32 v{vT+5}, 4, v{vQ}')
    e(f'v_add_u32 v{vT+5}, s{s_t0}, v{vT+5}')
    e(f'v_xor_b32 v{vT+6}, 64, v{vT+5}')
    e(f'ds_read_b128 v[{M1}:{M1+3}], v{vT+5}')
    e(f'ds_read_b128 v[{M1+4}:{M1+7}], v{vT+6}')
    e(f'ds_read_b128 v[{R1}:{R1+3}], v{vT+5} offset:256')
    e(f'ds_read_b128 v[{R1+4}:{R1+7}], v{vT+6} offset:256')
    e(f'v_mov_b32 v{K1V}, {hexf(K1c)}'); e(f'v_mov_b32 v{K1V+1}, {hexf(K1c)}')
    SA = WF
    for i in range(16): e(f'v_mov_b32 v{SA+i}, 0')
    e('s_waitcnt lgkmcnt(0)')
    for ft in range(3):
        e(f'v_add_f32 v{NCS+2*ft}, v{NCS+2*ft}, v{CS+ft*4}')
        e(f'v_sub_f32 v{NCS+2*ft}, 0, v{NCS+2*ft}')
    npair = 0
    for ft in range(3):
        for T in range(2):
            for p in range(2):
                a = ACC + (T*3+ft)*4 + 2*p
                n = NCS + 2*ft
                g = G + 4*p
                for h in range(2):
                    e(f'v_fma_f32 v{a+h}, v{M1+T*4+2*p+h}, v{n}, v{a+h}')
                for h in range(2):
                    e(f'v_mul_f32 v{a+h}, v{a+h}, v{R1+T*4+2*p+h}')
                gelu_pair_sc(a, g)
                e(f'v_cvt_pk_bf16_f32 v{AP+ft*4+T*2+p}, v{g}, v{g+1}')
                s_ = SA + T*4 + 2*p
                for h in range(2):
                    e(f'v_add_f32 v{s_+h}, v{s_+h}, v{g+h}')
                for h in range(2):
                    e(f'v_fma_f32 v{s_+8+h}, v{g+h}, v{g+h}, v{s_+8+h}')
                npair += 1
                if npair in (2, 5, 7, 10, 12): bar('A')
    for k, sh in enumerate((8, 4, 2, 1)):
        for i in range(16):
            e(f'v_add_f32_dpp v{SA+i}, v{SA+i}, v{SA+i} row_ror:{sh} row_mask:0xf bank_mask:0xf')
    e(f's_lshl_b32 s{s_t0}, s{s_wc}, 8')
    e(f's_add_u32 s{s_t0}, s{s_t0}, {L_PS - L_M1}')
    e(f'v_add_u32 v{vT+5}, s{s_t0}, v{vT+5}')
    e(f'v_add_u32 v{vT+6}, s{s_t0}, v{vT+6}')
    set_exec(e, 0x00010001, 0x00010001)
    e(f'ds_write_b128 v{vT+5}, v[{SA}:{SA+3}]')
    e(f'ds_write_b128 v{vT+6}, v[{SA+4}:{SA+7}]')
    e(f'ds_write_b128 v{vT+5}, v[{SA+8}:{SA+11}] offset:{L_PQ-L_PS}')
    e(f'ds_write_b128 v{vT+6}, v[{SA+12}:{SA+15}] offset:{L_PQ-L_PS}')
    e(f's_mov_b64 exec, s[{s_ex}:{s_ex+1}]')
    e('s_waitcnt lgkmcnt(0)')
    bar('A')
    e(f's_cmp_eq_u32 s{s_w}, 0')
    e('s_cbranch_scc0 K1_NOPUB')
    e(f'v_lshlrev_b32 v{vT}, 2, v{vLane}')
    e(f'v_add_u32 v{vT}, {L_PS}, v{vT}')
    e(f'ds_read_b32 v{vT+2}, v{vT}')
    e(f'ds_read_b32 v{vT+4}, v{vT} offset:256')
    e(f'ds_read_b32 v{vT+3}, v{vT} offset:{L_PQ-L_PS}')
    e(f'ds_read_b32 v{vT+5}, v{vT} offset:{L_PQ-L_PS+256}')
    e(f's_lshl_b32 s{s_t0}, s{s_rb}, 3')
    e(f's_add_u32 s{s_t0}, s{s_t0}, s{s_cb}')
    e(f's_lshl_b32 s{s_t0}, s{s_t0}, 9')
    e(f's_add_u32 s{s_t0}, s{s_t0}, {XCH}')
    e(f'v_lshlrev_b32 v{vT+1}, 3, v{vLane}')
    e('s_waitcnt lgkmcnt(0)')
    e(f'v_add_f32 v{vT+2}, v{vT+2}, v{vT+4}')
    e(f'v_add_f32 v{vT+3}, v{vT+3}, v{vT+5}')
    e(f'v_max_f32 v{vT+3}, 0, v{vT+3}')
    e(f'buffer_store_dwordx2 v[{vT+2}:{vT+3}], v{vT+1}, s[{sWS}:{sWS+3}], s{s_t0} offen sc1')
    e.label('K1_NOPUB')
    stp.stamp(e)
    e(f's_mul_i32 s{s_t0}, s{s_cb}, 6')
    e(f's_mul_i32 s{s_t1}, s{s_wc}, 3')
    e(f's_add_u32 s{s_t0}, s{s_t0}, s{s_t1}')
    e(f's_lshl_b32 s{s_t0}, s{s_t0}, 6')
    e(f's_lshl_b32 s{s_t1}, s{s_rb}, 1')
    e(f's_add_u32 s{s_t0}, s{s_t0}, s{s_t1}')
    e(f's_add_u32 s{s_t0}, s{s_t0}, s{s_wr}')
    e(f's_lshl_b32 s{s_t0}, s{s_t0}, 10')
    e(f's_add_u32 s{s_off}, s{s_t0}, {Z2F}')
    e(f'v_and_b32 v{vT+7}, 1, v{vQ}')
    e(f'v_lshlrev_b32 v{vT+7}, 1, v{vT+7}')
    e(f'v_lshrrev_b32 v{vT+10}, 1, v{vQ}')
    e(f'v_or_b32 v{vT+7}, v{vT+7}, v{vT+10}')
    e(f's_lshl_b32 s{s_t1}, s{s_wc}, 1')
    e(f'v_xor_b32 v{vT+7}, s{s_t1}, v{vT+7}')
    e(f'v_lshlrev_b32 v{vT+7}, 4, v{vT+7}')
    e(f'v_add_u32 v{vT+7}, v{vT+7}, v{vL15}')
    e(f'v_lshlrev_b32 v{vT+7}, 4, v{vT+7}')
    e(f'v_and_b32 v{vT+10}, 31, v{vLane}')
    e(f's_lshl_b32 s{s_j}, s{s_wr}, 5')
    e(f'v_add_u32 v{vT+10}, s{s_j}, v{vT+10}')
    e(f'v_lshlrev_b32 v{vT+10}, 3, v{vT+10}')
    e(f's_lshl_b32 s{s_j}, s{s_rb}, 12')
    e(f's_add_u32 s{s_j}, s{s_j}, {XCH}')
    e(f'buffer_load_dword v{PC}, v{vT+8}, s[{sD}:{sD+3}], 0 offen offset:{CB} sc1')
    bar('A'); bar('A'); bar('A')
    e('s_waitcnt vmcnt(0)')
    e('s_mov_b32 s54, 0')
    e.label('K1_CCHK')
    e(f'v_readfirstlane_b32 s{s_t0}, v{PC}')
    e(f's_cmp_ge_u32 s{s_t0}, 8')
    e('s_cbranch_scc1 K1_COK')
    e('s_add_u32 s54, s54, 1')
    e('s_cmp_lt_u32 s54, 0x200000')
    e('s_cbranch_scc0 K1_COK')
    e('s_sleep 4')
    e(f'buffer_load_dword v{PC}, v{vT+8}, s[{sD}:{sD+3}], 0 offen offset:{CB} sc1')
    e('s_waitcnt vmcnt(0)')
    e('s_branch K1_CCHK')
    e.label('K1_COK')
    XP = WF + 2
    for c in range(8):
        e(f'buffer_load_dwordx2 v[{XP+2*c}:{XP+2*c+1}], v{vT+10}, s[{sWS}:{sWS+3}], s{s_j} offen offset:{c*512} sc1')
    bar('A')
    e('s_setprio 0')
    e('s_waitcnt vmcnt(0)')
    e('s_mov_b32 s54, 0')
    e.label('K1_CHECK')
    e(f's_mov_b32 s{s_t0}, {hex(SENT)}')
    e(f'v_cmp_eq_u32 vcc, s{s_t0}, v{XP+1}')
    for c in range(1, 8):
        e(f'v_cmp_eq_u32 s[{P}:{P+1}], s{s_t0}, v{XP+2*c+1}')
        e(f's_or_b64 vcc, vcc, s[{P}:{P+1}]')
    e('s_cmp_eq_u64 vcc, 0')
    e('s_cbranch_scc1 K1_POLLED')
    e('s_add_u32 s54, s54, 1')
    e('s_cmp_lt_u32 s54, 0x200000')
    e('s_cbranch_scc0 K1_POLLED')
    for c in range(8):
        e(f'buffer_load_dwordx2 v[{XP+2*c}:{XP+2*c+1}], v{vT+10}, s[{sWS}:{sWS+3}], s{s_j} offen offset:{c*512} sc1')
    e('s_waitcnt vmcnt(0)')
    e('s_branch K1_CHECK')
    e.label('K1_POLLED')
    stp.stamp(e)
    for c in range(1, 8):
        e(f'v_pk_add_f32 v[{XP}:{XP+1}], v[{XP}:{XP+1}], v[{XP+2*c}:{XP+2*c+1}]')
    ln_finalize(e, XP, XP+1, FH, vT+2, vT+3, vT+4, vT+5)
    e(f'v_mul_f32 v{vT+2}, v{vT+2}, v{vT+3}')
    e(f'v_sub_f32 v{vT+2}, 0, v{vT+2}')
    e(f's_lshl_b32 s{s_t0}, s{s_wl}, 8')
    e(f's_add_u32 s{s_t0}, s{s_t0}, {L_W2}')
    e(f'v_and_b32 v{vT+4}, 31, v{vLane}')
    e(f'v_lshlrev_b32 v{vT+4}, 2, v{vT+4}')
    e(f'v_add_u32 v{vT+4}, s{s_t0}, v{vT+4}')
    e(f'ds_write_b32 v{vT+4}, v{vT+2}')
    e(f'ds_write_b32 v{vT+4}, v{vT+3} offset:128')
    e(f's_lshl_b32 s{s_t1}, s{s_wc}, 6')
    e(f's_add_u32 s{s_t0}, s{s_t0}, s{s_t1}')
    e(f'v_lshlrev_b32 v{vT+5}, 4, v{vQ}')
    e(f'v_add_u32 v{vT+5}, s{s_t0}, v{vT+5}')
    e(f'v_xor_b32 v{vT+6}, 64, v{vT+5}')
    e('s_waitcnt lgkmcnt(0)')
    e(f'ds_read_b128 v[{M1}:{M1+3}], v{vT+5}')
    e(f'ds_read_b128 v[{M1+4}:{M1+7}], v{vT+6}')
    e(f'ds_read_b128 v[{R1}:{R1+3}], v{vT+5} offset:128')
    e(f'ds_read_b128 v[{R1+4}:{R1+7}], v{vT+6} offset:128')
    e('s_waitcnt lgkmcnt(0)')
    for ft in range(3):
        for T in range(2):
            for p in range(2):
                a = AP + ft*4 + T*2 + p
                g = G + 4*p
                e(f'v_lshlrev_b32 v{g}, 16, v{a}')
                e(f'v_and_b32 v{g+1}, s{s_mask}, v{a}')
                e(f'v_pk_fma_f32 v[{g}:{g+1}], v[{g}:{g+1}], v[{R1+T*4+2*p}:{R1+T*4+2*p+1}], v[{M1+T*4+2*p}:{M1+T*4+2*p+1}]')
                e(f'v_cvt_pk_bf16_f32 v{a}, v{g}, v{g+1}')
        b = AP + ft*4
        e(f'v_permlane16_swap_b32 v{b}, v{b+2}')
        e(f'v_permlane16_swap_b32 v{b+1}, v{b+3}')
        e(f's_add_u32 s{s_t1}, s{s_off}, {ft*65536}')
        e(f'buffer_store_dwordx4 v[{b}:{b+3}], v{vT+7}, s[{sWS}:{sWS+3}], s{s_t1} offen sc1')
    if fused:
        H.after_A(e, stp, bar)
    else:
        stp.flush(e, 0, sWS, vT, s_w)
        e('s_endpgm')

    e.label('K1_B')
    e.c('role B')
    stB = Stamper(); stB.n = 1; stB.mute = fused and os.environ.get('P1ST') != '1'
    SK = 160; WR = 152; WO = 164
    e(f's_cmp_eq_u32 s{s_w}, 4')
    e('s_cbranch_scc0 K1_NORST')
    e(f's_lshl_b32 s{s_t0}, s{s_rb}, 3')
    e(f's_add_u32 s{s_t0}, s{s_t0}, s{s_cb}')
    e(f's_lshl_b32 s{s_t0}, s{s_t0}, 9')
    e(f's_add_u32 s{s_t0}, s{s_t0}, {XCH}')
    e(f'v_lshlrev_b32 v{vT+1}, 3, v{vLane}')
    e(f'v_mov_b32 v{vT+6}, 0')
    e(f'v_mov_b32 v{vT+7}, {hex(SENT)}')
    e(f'buffer_store_dwordx2 v[{vT+6}:{vT+7}], v{vT+1}, s[{sWS}:{sWS+3}], s{s_t0} offen sc1')
    if fused:
        H.flag_addr(e, vT+1, vT+2)
        set_exec(e, 15, 0)
        e(f'buffer_store_dword v{vT+6}, v{vT+1}, s[{sWS}:{sWS+3}], 0 offen sc1')
        e(f's_mov_b64 exec, s[{s_ex}:{s_ex+1}]')
    e.label('K1_NORST')
    DUM = 140
    vTP = 144; vKV = 145; s_tpw = 54; s_tps = 46; s_kv = 78
    if fused and os.environ.get('CODEPF', '0') == '1':
        e(f's_cmp_eq_u32 s{s_w}, 5')
        e('s_cbranch_scc0 K1_NOCPF')
        e(f's_getpc_b64 s[{sK}:{sK+1}]')
        e.label('K1_PCREF')
        e(f's_sub_u32 s{sK}, s{sK}, K1_PCREF-{H.name}')
        e(f's_subb_u32 s{sK+1}, s{sK+1}, 0')
        e(f's_and_b32 s{sK+1}, s{sK+1}, 0xffff')
        e(f's_mov_b32 s{sK+2}, KF_CODE_END-{H.name}')
        e(f's_mov_b32 s{sK+3}, 0x20000')
        e(f'v_lshlrev_b32 v{vT+8}, 6, v{vLane}')
        e(f's_lshr_b32 s{s_t0}, s2, 3')
        e(f's_lshl_b32 s{s_t0}, s{s_t0}, 10')
        set_exec(e, 0xffff, 0)
        e(f'buffer_load_dword v141, v{vT+8}, s[{sK}:{sK+3}], s{s_t0} offen')
        e(f's_mov_b64 exec, s[{s_ex}:{s_ex+1}]')
        e.label('K1_NOCPF')
    e(f's_lshl_b32 s{s_t0}, s2, 2')
    e(f's_add_u32 s{s_t0}, s{s_t0}, s{s_wl}')
    e(f's_mul_i32 s{s_t1}, s{s_t0}, 2731')
    e(f's_lshr_b32 s{s_t1}, s{s_t1}, 16')
    e(f's_mul_i32 s{s_t2}, s{s_t1}, 24')
    e(f's_sub_u32 s{s_t2}, s{s_t0}, s{s_t2}')
    e(f's_mov_b32 s{P+16}, s{s_t0}')
    e(f'v_mul_u32_u24 v{vT+3}, {4*1280}, v{vQ}')
    e(f'v_lshlrev_b32 v{vT+4}, 1, v{vL15}')
    e(f'v_add_u32 v{vT+3}, v{vT+3}, v{vT+4}')
    e(f's_lshl_b32 s{s_t1}, s{s_t1}, 5')
    e(f's_mul_i32 s{s_t2}, s{s_t2}, {32*1280}')
    e(f's_add_u32 s{s_t1}, s{s_t1}, s{s_t2}')
    e(f's_add_u32 s{s_t2}, s{s_t1}, {16*1280}')
    bar('B')
    stB.stamp(e)
    srd(e, sT, P+10, FH*D*2)
    for j in range(8):
        so = s_t1 if j < 4 else s_t2
        e(f'buffer_load_ushort v{WR + j}, v{vT+3}, s[{sT}:{sT+3}], s{so} offen offset:{(j%4)*1280} {NT1}')
    for k in range(1, 10):
        if PREFETCH and k == 9:
            e(f'v_lshlrev_b32 v{vTP}, 6, v{vLane}')
            e(f's_and_b32 s{s_tpw}, s2, 7')
            e(f's_lshl_b32 s{s_tpw}, s{s_tpw}, 8')
            e(f's_lshr_b32 s{s_off}, s2, 3')
            e(f's_lshl_b32 s{s_off}, s{s_off}, 3')
            e(f's_add_u32 s{s_tpw}, s{s_tpw}, s{s_off}')
            e(f's_lshl_b32 s{s_tpw}, s{s_tpw}, 12')
            srd(e, sK, P+18, S*S*2)
            e('s_mov_b32 s46, 0')
        if k == 3:
            e(f's_cmp_eq_u32 s{s_w}, 4')
            e('s_cbranch_scc0 K1_NOCNT')
            e('s_waitcnt vmcnt(8)')
            e(f's_lshl_b32 s{s_off}, s{s_rb}, 2')
            e(f'v_mov_b32 v{vT+6}, s{s_off}')
            e(f'v_mov_b32 v{vT+7}, 1')
            set_exec(e, 1, 0)
            e(f'buffer_atomic_add v{vT+7}, v{vT+6}, s[{sD}:{sD+3}], 0 offen offset:{CB} sc1')
            e(f's_mov_b64 exec, s[{s_ex}:{s_ex+1}]')
            e.label('K1_NOCNT')
        if k == 9:
            e(f's_cmp_ge_u32 s{P+16}, 960')
            e('s_cbranch_scc1 K1_NOWOF')
            e('s_waitcnt vmcnt(0)')
            for j in range(4):
                e(f'v_lshl_or_b32 v{WO+j}, v{WR+2*j+1}, 16, v{WR+2*j}')
            e(f'v_lshlrev_b32 v{vT+3}, 4, v{vLane}')
            e(f's_lshl_b32 s{s_t0}, s{P+16}, 10')
            e(f's_add_u32 s{s_t0}, s{s_t0}, {WOF}')
            e(f'buffer_store_dwordx4 v[{WO}:{WO+3}], v{vT+3}, s[{sWS}:{sWS+3}], s{s_t0} offen {SC if fused else STF_EARLY}')
            e.label('K1_NOWOF')
        bar('B')
    init_acc()
    bar('B')
    stB.stamp(e)
    loop(2, 'B')
    stB.stamp(e)
    e.c('B epilogue')
    e(f's_mul_i32 s{s_t0}, s{s_wl}, 192')
    e(f's_add_u32 s{s_t0}, s{s_t0}, {L_CSB}')
    e(f'v_lshlrev_b32 v{vT+4}, 4, v{vQ}')
    e(f'v_add_u32 v{vT+5}, s{s_t0}, v{vT+4}')
    set_exec(e, 0x00010001, 0x00010001)
    for ft in range(3):
        e(f'ds_write_b128 v{vT+5}, v[{CS+ft*4}:{CS+ft*4+3}] offset:{ft*64}')
    e(f's_mov_b64 exec, s[{s_ex}:{s_ex+1}]')
    e(f'v_mov_b32 v{K1V}, {hexf(K1c)}'); e(f'v_mov_b32 v{K1V+1}, {hexf(K1c)}')
    e('s_waitcnt lgkmcnt(0)')
    bar('B')
    if fused: H.cnt_early(e)
    e(f's_xor_b32 s{s_t1}, s{s_wl}, 2')
    e(f's_mul_i32 s{s_t1}, s{s_t1}, 192')
    e(f's_add_u32 s{s_t1}, s{s_t1}, {L_CSB}')
    e(f'v_add_u32 v{vT+5}, s{s_t1}, v{vT+4}')
    NC2 = XF
    for ft in range(3):
        e(f'ds_read_b128 v[{NC2+ft*4}:{NC2+ft*4+3}], v{vT+5} offset:{ft*64}')
    MR = WF
    e(f's_lshl_b32 s{s_t0}, s{s_wr}, 7')
    e(f's_lshl_b32 s{s_t1}, s{s_wc}, 6')
    e(f's_add_u32 s{s_t0}, s{s_t0}, s{s_t1}')
    e(f's_add_u32 s{s_t0}, s{s_t0}, {L_M1}')
    e(f'v_lshlrev_b32 v{vT+6}, 2, v{vL15}')
    e(f'v_add_u32 v{vT+6}, s{s_t0}, v{vT+6}')
    e(f'v_xor_b32 v{vT+7}, 64, v{vT+6}')
    e(f'ds_read_b32 v{MR+0}, v{vT+6}')
    e(f'ds_read_b32 v{MR+2}, v{vT+7}')
    e(f'ds_read_b32 v{MR+4}, v{vT+6} offset:256')
    e(f'ds_read_b32 v{MR+6}, v{vT+7} offset:256')
    e(f's_lshl_b32 s{s_t0}, s{s_rb}, 2')
    e(f's_lshl_b32 s{s_t1}, s{s_wr}, 1')
    e(f's_add_u32 s{s_t0}, s{s_t0}, s{s_t1}')
    e(f's_add_u32 s{s_t1}, s{s_t0}, s{s_wc}')
    e(f's_xor_b32 s{s_t2}, s{s_t1}, 1')
    e(f's_mul_i32 s{s_off}, s{s_cb}, 6')
    e(f's_mul_i32 s{s_j}, s{s_wc}, 3')
    e(f's_add_u32 s{s_off}, s{s_off}, s{s_j}')
    e(f's_mul_i32 s{s_t1}, s{s_t1}, 48')
    e(f's_add_u32 s{s_t1}, s{s_t1}, s{s_off}')
    e(f's_lshl_b32 s{s_t1}, s{s_t1}, 9')
    e(f's_add_u32 s{s_t1}, s{s_t1}, {Z1F}')
    e(f's_mul_i32 s{s_t2}, s{s_t2}, 48')
    e(f's_add_u32 s{s_t2}, s{s_t2}, s{s_off}')
    e(f's_lshl_b32 s{s_t2}, s{s_t2}, 9')
    e(f's_add_u32 s{s_t2}, s{s_t2}, {Z1F}')
    e(f'v_lshlrev_b32 v{vT+6}, 3, v{vLane}')
    if fused:
        e(f's_lshl_b32 s{s_j}, s{s_wr}, 1')
        e(f's_add_u32 s{s_j}, s{s_j}, s{s_wc}')
        e(f's_mul_i32 s{s_off}, s{s_j}, 3072')
        e(f's_mul_i32 s{s_t0}, s{s_wc}, 1536')
        e(f's_add_u32 s{s_off}, s{s_off}, s{s_t0}')
        e(f's_add_u32 s{s_off}, s{s_off}, {Z1L}')
        e(f'v_add_u32 v{vT+8}, s{s_off}, v{vT+6}')
        e(f's_xor_b32 s{s_j}, s{s_j}, 1')
        e(f's_mul_i32 s{s_off}, s{s_j}, 3072')
        e(f's_add_u32 s{s_off}, s{s_off}, s{s_t0}')
        e(f's_add_u32 s{s_off}, s{s_off}, {Z1L}')
        e(f'v_add_u32 v{vT+9}, s{s_off}, v{vT+6}')
    e('s_waitcnt lgkmcnt(0)')
    for i in range(12):
        e(f'v_add_f32 v{NC2+i}, v{NC2+i}, v{CS+i}')
        e(f'v_sub_f32 v{NC2+i}, 0, v{NC2+i}')
    ZO = AP
    for T in range(2):
        for ft in range(3):
            for p in range(2):
                a = ACC + (T*3+ft)*4 + 2*p
                n = NC2 + ft*4 + 2*p
                m = MR + 2*T; r = MR + 4 + 2*T
                g = G + 4*p
                e(f'v_pk_fma_f32 v[{a}:{a+1}], v[{n}:{n+1}], v[{m}:{m+1}], v[{a}:{a+1}] op_sel_hi:[1,0,1]')
                e(f'v_pk_mul_f32 v[{a}:{a+1}], v[{a}:{a+1}], v[{r}:{r+1}] op_sel_hi:[1,0]')
                gelu_pair(a, g)
                e(f'v_cvt_pk_bf16_f32 v{ZO+(T*3+ft)*2+p}, v{g}, v{g+1}')
            so = s_t1 if T == 0 else s_t2
            z = ZO + (T*3+ft)*2
            if fused:
                e(f'ds_write_b64 v{vT+8+T}, v[{z}:{z+1}] offset:{ft*512}')
            else:
                e(f'buffer_store_dwordx2 v[{z}:{z+1}], v{vT+6}, s[{sWS}:{sWS+3}], s{so} offen offset:{ft*512} {STF_EARLY}')
    if fused:
        H.after_B(e, stB, bar)
    if not fused: stB.flush(e, 0, sWS, vT, s_w)
    e.label('K1_END')
    e('s_endpgm')
    if fused: return nbar
    print('k1 barriers', nbar)
    assert nbar['A'] == nbar['B'] == nbar['L'], nbar
    nn = e.finalize()
    return kernel_wrap('k1_kernel', e.text(), vgpr=168, sgpr=96), nn
```

```python
from common import *
WO_SZ = 122880
XT = WO_SZ
YT = XT + 10240
RED3 = 143360 + 512
NB3 = 5
LF = 'sc1'

class P3:
    def __init__(self, e):
        self.e = e
        self.sX, self.sO, self.sWS = 8, 12, 16
    vLane, vQ, vL15 = 1, 2, 3
    vL16 = 4; vXO = 5; vYO = 8; vT = 12; ST = 24; vWB = 26
    AFr = 28; ACC = 68; PFR = 88
    s_tb, s_db, s_w, s_wl = 32, 33, 34, 55
    s_t0, s_t1, s_t2 = 40, 41, 42
    s_mask = 47; s_ex = 52; s_one = 48
    s_tt, s_pb, s_xl, s_yo, s_kh = 35, 36, 37, 38, 39
    P = 56
    def setup(self, is_a):
        e = self.e; s = self
        vT = s.vT; P = s.P
        e(f's_load_dwordx2 s[{P}:{P+1}], s[0:1], 0')
        e(f's_load_dwordx2 s[{P+2}:{P+3}], s[0:1], 88')
        e(f'v_lshlrev_b32 v{s.vL16}, 4, v{s.vLane}')
        e(f's_lshl_b32 s{s.s_tt}, s{s.s_tb}, 2')
        e(f's_add_u32 s{s.s_tt}, s{s.s_tt}, s{s.s_wl}')
        e(f's_lshr_b32 s{s.s_kh}, s{s.s_w}, 2')
        e(f's_mul_i32 s{s.s_pb}, s{s.s_tt}, {24*1024}')
        e(f's_mul_i32 s{s.s_t0}, s{s.s_kh}, {12*1024}')
        e(f's_add_u32 s{s.s_pb}, s{s.s_pb}, s{s.s_t0}')
        e(f's_add_u32 s{s.s_pb}, s{s.s_pb}, {PF}')
        e(f's_mul_i32 s{s.s_t0}, s{s.s_kh}, {60*1024}')
        e(f'v_add_u32 v{s.vWB}, s{s.s_t0}, v{s.vL16}')
        e(f's_lshl_b32 s{s.s_t0}, s{s.s_tt}, 4')
        e(f's_mul_i32 s{s.s_t0}, s{s.s_t0}, 1280')
        e(f's_mul_i32 s{s.s_t1}, s{s.s_db}, 160')
        e(f's_add_u32 s{s.s_t0}, s{s.s_t0}, s{s.s_t1}')
        for n in range(3):
            e(f'v_add_u32 v{vT}, {64*n}, v{s.vLane}')
            e(f'v_mul_u32_u24 v{vT+1}, 6554, v{vT}')
            e(f'v_lshrrev_b32 v{vT+1}, 16, v{vT+1}')
            e(f'v_mul_u32_u24 v{vT+2}, 10, v{vT+1}')
            e(f'v_sub_u32 v{vT+2}, v{vT}, v{vT+2}')
            e(f'v_lshlrev_b32 v{vT+2}, 4, v{vT+2}')
            e(f'v_mul_u32_u24 v{vT+1}, 1280, v{vT+1}')
            e(f'v_add_u32 v{vT+1}, v{vT+1}, v{vT+2}')
            e(f'v_add_u32 v{s.vXO+n}, s{s.s_t0}, v{vT+1}')
            if not is_a:
                e(f'v_lshrrev_b32 v{vT+1}, 1, v{vT}')
                e(f'v_lshlrev_b32 v{vT+1}, 12, v{vT+1}')
                e(f'v_and_b32 v{vT+2}, 1, v{vT}')
                e(f'v_lshlrev_b32 v{vT+2}, 4, v{vT+2}')
                e(f'v_add_u32 v{s.vYO+n}, v{vT+1}, v{vT+2}')
        e(f's_mul_i32 s{s.s_xl}, s{s.s_wl}, 2560')
        e(f's_mul_i32 s{s.s_yo}, s{s.s_db}, {80*4096}')
        e(f's_lshl_b32 s{s.s_t1}, s{s.s_tt}, 5')
        e(f's_add_u32 s{s.s_yo}, s{s.s_yo}, s{s.s_t1}')
        e(f's_add_u32 s{s.s_yo}, s{s.s_yo}, {YYT}')
        e(f's_lshl_b32 s{s.s_t0}, s{s.s_wl}, 6')
        e(f's_add_u32 s{s.s_t0}, s{s.s_t0}, 143360')
        e(f'v_lshlrev_b32 v{vT+9}, 2, v{s.vL15}')
        e(f'v_add_u32 v{vT+9}, s{s.s_t0}, v{vT+9}')
        e(f'ds_read_b32 v{s.ST}, v{vT+9}')
        e(f'ds_read_b32 v{s.ST+1}, v{vT+9} offset:256')
        for i in range(20): e(f'v_mov_b32 v{s.ACC+i}, 0')
        e('s_waitcnt lgkmcnt(0)')
        srd(e, s.sX, P, S*D*2)
        srd(e, s.sO, P+2, S*D*2)
        if is_a:
            for n in range(3):
                if n == 2: e('s_mov_b32 exec_hi, 0')
                e(f's_add_u32 m0, s{s.s_xl}, {XT + n*1024}')
                e('s_nop 0')
                e(f'buffer_load_dwordx4 v{s.vXO+n}, s[{s.sX}:{s.sX+3}], 0 offen lds')
            e('s_mov_b32 exec_hi, -1')
    def main(self, is_a, tag, stp=None):
        e = self.e; s = self
        vT = s.vT; AFr, ACC, PFR = s.AFr, s.ACC, s.PFR
        def pl(ks):
            r = PFR + ks*4
            return [f's_add_u32 s{s.s_t0}, s{s.s_pb}, {(ks // 4)*4096}',
                    f'buffer_load_dwordx4 v[{r}:{r+3}], v{s.vL16}, s[{s.sWS}:{s.sWS+3}], s{s.s_t0} offen offset:{(ks % 4)*1024} {LF}']
        order = []
        LOOK = 5
        for ks in range(LOOK):
            for x in pl(ks): e(x)
            order.append(('p', ks))
        def rds(buf, ks):
            return [f'ds_read_b128 v[{AFr+buf*20+dt*4}:{AFr+buf*20+dt*4+3}], v{s.vWB} offset:{(ks*5+dt)*1024}' for dt in range(5)]
        e('s_barrier')
        if stp: stp.stamp(e)
        for x in rds(0, 0): e(x)
        for ks in range(12):
            buf = ks % 2
            nvm = len(order) - 1 - order.index(('p', ks))
            nxt = []
            e(f's_waitcnt vmcnt({nvm}) lgkmcnt(0)')
            if ks + 1 < 12:
                if ks % 4 == 3:
                    e('s_barrier')
                    if stp: stp.stamp(e)
                nxt = rds(1 - buf, ks + 1)
            mf = [f'v_mfma_f32_16x16x32_bf16 v[{ACC+dt*4}:{ACC+dt*4+3}], v[{AFr+buf*20+dt*4}:{AFr+buf*20+dt*4+3}], v[{PFR+ks*4}:{PFR+ks*4+3}], v[{ACC+dt*4}:{ACC+dt*4+3}]' for dt in range(5)]
            fills = [[] for _ in range(5)]
            for n, r in enumerate(nxt): fills[n].append(r)
            if ks + LOOK < 12:
                fills[2] += pl(ks + LOOK); order.append(('p', ks + LOOK))
            if (not is_a) and 4 <= ks < 7:
                n = ks - 4
                pre = ['s_mov_b32 exec_hi, 0'] if n == 2 else []
                post = ['s_mov_b32 exec_hi, -1'] if n == 2 else []
                fills[4] += pre + [f's_add_u32 m0, s{s.s_xl}, {YT + n*1024}', 's_nop 0',
                                   f'buffer_load_dwordx4 v{s.vYO+n}, s[{s.sWS}:{s.sWS+3}], s{s.s_yo} offen {LF} lds'] + post
                order.append(('y', n))
            weave(e, mf, fills)
        e('s_waitcnt vmcnt(0) lgkmcnt(0)')
        e('s_barrier')
        if stp: stp.stamp(e)
        e(f's_mul_i32 s{s.s_t0}, s{s.s_wl}, 5120')
        e(f'v_add_u32 v{vT}, s{s.s_t0}, v{s.vL16}')
        give = (3, 4) if is_a else (0, 1, 2)
        keep = (0, 1, 2) if is_a else (3, 4)
        for dt in give:
            e(f'ds_write_b128 v{vT}, v[{ACC+dt*4}:{ACC+dt*4+3}] offset:{dt*1024}')
        e(f'v_mul_u32_u24 v{vT+1}, 160, v{s.vL15}')
        e(f'v_lshlrev_b32 v{vT+2}, 3, v{s.vQ}')
        e(f'v_add_u32 v{vT+1}, v{vT+1}, v{vT+2}')
        e(f's_add_u32 s{s.s_t0}, s{s.s_xl}, {XT}')
        e(f'v_add_u32 v{vT+1}, s{s.s_t0}, v{vT+1}')
        e(f'v_lshlrev_b32 v{vT+2}, 7, v{s.vQ}')
        e(f'v_lshlrev_b32 v{vT+3}, 3, v{s.vL15}')
        e(f'v_add_u32 v{vT+2}, v{vT+2}, v{vT+3}')
        e(f's_add_u32 s{s.s_t0}, s{s.s_xl}, {YT}')
        e(f'v_add_u32 v{vT+2}, s{s.s_t0}, v{vT+2}')
        E = PFR
        XR = E; YR = E + 10; RP = E + 20
        for dt in keep:
            e(f'ds_read_b64 v[{XR+2*dt}:{XR+2*dt+1}], v{vT+1} offset:{dt*32}')
            e(f'ds_read_b64_tr_b16 v[{YR+2*dt}:{YR+2*dt+1}], v{vT+2} offset:{dt*512}')
        NM = vT + 4; RI = vT + 6; NL = vT + 8
        e(f'v_sub_f32 v{NM}, 0, v{s.ST}')
        e(f'v_mov_b32 v{RI}, v{s.ST+1}')
        e(f's_mov_b32 s{s.s_one}, 1.0'); e(f's_mov_b32 s{s.s_one+1}, 1.0')
        e(f'v_mov_b32 v{NL}, {hexf(-1.4426950408889634)}'); e(f'v_mov_b32 v{NL+1}, {hexf(-1.4426950408889634)}')
        e('s_waitcnt lgkmcnt(0)')
        e('s_barrier')
        for dt in keep:
            e(f'ds_read_b128 v[{RP+4*dt}:{RP+4*dt+3}], v{vT} offset:{dt*1024}')
        e('s_waitcnt lgkmcnt(0)')
        W = AFr
        for dt in keep:
            for p in range(2):
                a = ACC + dt*4 + 2*p
                x = W + (p*8); y = x + 2; g = x + 4; sv = x + 6
                e(f'v_pk_add_f32 v[{a}:{a+1}], v[{a}:{a+1}], v[{RP+4*dt+2*p}:{RP+4*dt+2*p+1}]')
                e(f'v_lshlrev_b32 v{x}, 16, v{XR+2*dt+p}')
                e(f'v_and_b32 v{x+1}, s{s.s_mask}, v{XR+2*dt+p}')
                e(f'v_pk_mul_f32 v[{g}:{g+1}], v[{a}:{a+1}], v[{NL}:{NL+1}]')
                e(f'v_lshlrev_b32 v{y}, 16, v{YR+2*dt+p}')
                e(f'v_and_b32 v{y+1}, s{s.s_mask}, v{YR+2*dt+p}')
                e(f'v_exp_f32 v{g}, v{g}')
                e(f'v_exp_f32 v{g+1}, v{g+1}')
                e(f'v_pk_add_f32 v[{sv}:{sv+1}], v[{x}:{x+1}], v[{NM}:{NM+1}] op_sel_hi:[1,0]')
                e(f'v_pk_add_f32 v[{g}:{g+1}], v[{g}:{g+1}], s[{s.s_one}:{s.s_one+1}]')
                e(f'v_pk_mul_f32 v[{sv}:{sv+1}], v[{sv}:{sv+1}], v[{RI}:{RI+1}] op_sel_hi:[1,0]')
                e(f'v_rcp_f32 v{g}, v{g}')
                e(f'v_rcp_f32 v{g+1}, v{g+1}')
                e(f'v_pk_mul_f32 v[{sv}:{sv+1}], v[{sv}:{sv+1}], v[{y}:{y+1}]')
                e(f'v_pk_mul_f32 v[{g}:{g+1}], v[{g}:{g+1}], v[{a}:{a+1}]')
                e(f'v_pk_fma_f32 v[{sv}:{sv+1}], v[{sv}:{sv+1}], v[{g}:{g+1}], v[{x}:{x+1}]')
                e(f'v_cvt_pk_bf16_f32 v{XR+2*dt+p}, v{sv}, v{sv+1}')
            e(f'ds_write_b64 v{vT+1}, v[{XR+2*dt}:{XR+2*dt+1}] offset:{dt*32}')
        e('s_waitcnt lgkmcnt(0)')
        e('s_barrier')
        e(f's_add_u32 s{s.s_t0}, s{s.s_xl}, {XT}')
        e(f'v_add_u32 v{vT+1}, s{s.s_t0}, v{s.vL16}')
        OR = RP
        ns = (0, 1) if is_a else (2,)
        for n in ns:
            e(f'ds_read_b128 v[{OR+4*(n%2)}:{OR+4*(n%2)+3}], v{vT+1} offset:{n*1024}')
        e('s_waitcnt lgkmcnt(0)')
        for n in ns:
            if n == 2: set_exec(e, 0xffffffff, 0)
            e(f'buffer_store_dwordx4 v[{OR+4*(n%2)}:{OR+4*(n%2)+3}], v{s.vXO+n}, s[{s.sO}:{s.sO+3}], 0 offen')
        e(f's_mov_b64 exec, s[{s.s_ex}:{s.s_ex+1}]')
    NBAR = 6
    def loader(self, spoll):
        e = self.e; s = self
        s_wb, s_l5 = 35, 36
        e(f'v_lshlrev_b32 v4, 4, v{s.vLane}')
        e(f's_mul_i32 s{s_wb}, s{s.s_db}, {5*24*1024}')
        e(f's_lshl_b32 s{s.s_t0}, s{s.s_wl}, 10')
        e(f's_add_u32 s{s_wb}, s{s_wb}, s{s.s_t0}')
        e(f's_add_u32 s{s_wb}, s{s_wb}, {WOF}')
        e(f's_mul_i32 s{s_l5}, s{s.s_wl}, 5120')
        def grp(g):
            for u in range(5):
                e(f's_add_u32 m0, s{s_l5}, {(4*g*5 + u)*1024}')
                e(f's_add_u32 s{s.s_t0}, s{s_wb}, {(u*24 + 4*g)*1024}')
                e(f'buffer_load_dwordx4 v4, s[{s.sWS}:{s.sWS+3}], s{s.s_t0} offen {LF} lds')
        e('s_sleep 4')
        for g in (0, 3, 1, 4, 2, 5): grp(g)
        e('s_barrier')
        e('s_waitcnt vmcnt(20)')
        e('s_barrier')
        spoll()
        e('s_waitcnt vmcnt(10)')
        e('s_barrier')
        e('s_waitcnt vmcnt(0)')
        e('s_barrier')
        e('s_barrier'); e('s_barrier'); e('s_barrier')
```

```python
from common import *
import k1 as K1
import k3b as K3
import k3c
import os
HCP = 4160
CW_U = 4 * HCP
CW_SZ = CW_U + 512 + 4096
CONV0 = 65536
Z1L = K1.Z1L
LDSF = Z1L + 12288
BLOCKF = 768
NAME = 'recurrent_scan__ssm_conv_h3__mixer_gmlp__prompt_kernel'
POLL_MAX = 1 << 21

s_rb, s_cb, s_w, s_wl = 32, 33, 34, 55
s_t0, s_t1, s_t2 = 40, 41, 42
s_mask = 47; s_ex = 52
sWS = 16; sD = 4
P = 56
vLane, vQ, vL15 = 1, 2, 3

class Hooks:
    def __init__(self):
        self.nb = {}
    def flag_addr(self, e, v, vt):
        e(f's_lshl_b32 s{s_t0}, s{s_cb}, 7')
        e(f's_lshl_b32 s{s_t1}, s{s_rb}, 2')
        e(f's_add_u32 s{s_t0}, s{s_t0}, s{s_t1}')
        e(f's_add_u32 s{s_t1}, s{s_t0}, {FL2A}')
        e(f's_add_u32 s{s_t0}, s{s_t0}, {FL1}')
        e(f'v_mov_b32 v{v}, s{s_t0}')
        e(f'v_mov_b32 v{vt}, s{s_t1}')
        e(f'v_cmp_eq_u32 vcc, 1, v{vLane}')
        e(f'v_cndmask_b32 v{v}, v{v}, v{vt}, vcc')
        e(f's_lshl_b32 s{s_t0}, s{s_rb}, 5')
        e(f's_lshl_b32 s{s_t1}, s{s_cb}, 2')
        e(f's_add_u32 s{s_t0}, s{s_t0}, s{s_t1}')
        e(f's_add_u32 s{s_t0}, s{s_t0}, {FL2B}')
        e(f'v_mov_b32 v{vt}, s{s_t0}')
        e(f'v_cmp_eq_u32 vcc, 2, v{vLane}')
        e(f'v_cndmask_b32 v{v}, v{v}, v{vt}, vcc')
        e(f's_lshl_b32 s{s_t0}, s{s_cb}, 7')
        e(f's_lshl_b32 s{s_t1}, s{s_rb}, 2')
        e(f's_add_u32 s{s_t0}, s{s_t0}, s{s_t1}')
        e(f's_add_u32 s{s_t0}, s{s_t0}, {FLKV}')
        e(f'v_mov_b32 v{vt}, s{s_t0}')
        e(f'v_cmp_eq_u32 vcc, 3, v{vLane}')
        e(f'v_cndmask_b32 v{v}, v{v}, v{vt}, vcc')

    def after_A(self, e, stp, bar1):
        e('s_waitcnt vmcnt(0)')
        bar1('A')
        p1 = os.environ.get('P1ST') == '1'
        stp.mute = False
        stp.stamp(e)
        stp.mute = p1
        self.g2(e, stp)
    def after_B(self, e, stB, bar1):
        e(f's_cmp_eq_u32 s{s_w}, 7')
        e('s_cbranch_scc0 F2_NOCNT')
        e('s_waitcnt vmcnt(0)')
        set_exec(e, 0xffffffff, 0)
        e('v_cmp_gt_u32 vcc, 8, v167')
        e(f's_mov_b64 exec, s[{s_ex}:{s_ex+1}]')
        e('s_cmp_eq_u64 vcc, 0')
        e('s_cbranch_scc1 F2_NOCNT')
        e(f'v_lshlrev_b32 v6, 2, v{vLane}')
        self.poll(e, 'CNT', 6, 7, sD, 0xffffffff, 0, 8, ge=True)
        e.label('F2_NOCNT')
        e('s_waitcnt lgkmcnt(0)')
        self.c2(e, stB, bar1)
    def after_L(self, e, bar1):
        self.l2(e, bar1)

    def g2(self, e, stp):
        nb = [0]
        def bar():
            e('s_barrier'); nb[0] += 1
        sB = 12
        s_fh, s_kh, s_st, s_bz, s_kz, s_sd = 35, 36, 37, 38, 39, 43
        vB0, vB1, vA, vT = 4, 5, 6, 9
        BF = 16; ACC = 48; ZA = 96
        e.c('phase 2: G')
        if os.environ.get('PRIOG'): e(f"s_setprio {os.environ['PRIOG']}")
        e(f's_load_dwordx2 s[{P}:{P+1}], s[0:1], 72')
        e(f's_and_b32 s{s_fh}, s{s_w}, 1')
        e(f's_lshr_b32 s{s_kh}, s{s_w}, 1')
        e(f'v_xor_b32 v{vT}, v{vQ}, v{vL15}')
        e(f'v_lshlrev_b32 v{vT}, 4, v{vT}')
        e(f's_lshl_b32 s{s_t0}, s{s_kh}, 6')
        e(f'v_xor_b32 v{vT}, s{s_t0}, v{vT}')
        e(f'v_lshlrev_b32 v{vT+1}, 8, v{vL15}')
        e(f'v_add_u32 v{vB0}, v{vT}, v{vT+1}')
        e(f'v_xor_b32 v{vB1}, 128, v{vB0}')
        e(f's_mul_i32 s{s_t0}, s{s_cb}, 6')
        e(f's_mul_i32 s{s_t1}, s{s_fh}, 3')
        e(f's_add_u32 s{s_t0}, s{s_t0}, s{s_t1}')
        e(f's_lshl_b32 s{s_t0}, s{s_t0}, 16')
        e(f's_add_u32 s{s_t0}, s{s_t0}, {Z2F}')
        e(f'v_lshlrev_b32 v{vT}, 4, v{vLane}')
        for ft in range(3):
            e(f's_add_u32 s{s_t1}, s{s_t0}, {ft*65536}')
            e(f'v_add_u32 v{vA+ft}, s{s_t1}, v{vT}')
        e(f's_lshl_b32 s{s_kz}, s{s_kh}, 10')
        for i in range(48): e(f'v_mov_b32 v{ACC+i}, 0')
        e('s_waitcnt lgkmcnt(0)')
        srd(e, sB, P, S*2)
        def zl(n6, s_off):
            return [f'buffer_load_dwordx4 v[{ZA+(n6*3+ft)*4}:{ZA+(n6*3+ft)*4+3}], v{vA+ft}, s[{sWS}:{sWS+3}], s{s_off} offen sc1' for ft in range(3)]
        bar()
        stp.stamp(e)
        for n in range(5):
            e(f's_add_u32 s{s_bz}, s{s_kz}, {2*n*1024}')
            for x in zl(n, s_bz): e(x)
        def brd(buf, vb):
            return [f'ds_read_b128 v[{BF+buf*16+tt*4}:{BF+buf*16+tt*4+3}], v{vb} offset:{tt*4096}' for tt in range(4)]
        def mfl(buf, n6):
            L = []
            for tt in range(4):
                for ft in range(3):
                    a = ACC + (ft*4+tt)*4; z = ZA + (n6*3+ft)*4; b = BF + buf*16 + tt*4
                    L.append(f'v_mfma_f32_16x16x32_bf16 v[{a}:{a+3}], v[{z}:{z+3}], v[{b}:{b+3}], v[{a}:{a+3}]')
            return L
        def zoff(add):
            e(f's_lshl_b32 s{s_t0}, s{s_st}, 1')
            e(f's_add_u32 s{s_t0}, s{s_t0}, {add}')
            e(f's_lshl_b32 s{s_bz}, s{s_t0}, 11')
            e(f's_add_u32 s{s_bz}, s{s_bz}, s{s_kz}')
            e(f's_cmp_lt_u32 s{s_t0}, 32')
            e(f's_cselect_b32 s{s_bz}, s{s_bz}, 0x80000000')
        e(f's_mov_b32 s{s_st}, 0')
        if K1.BARST:
            e('s_mov_b32 m0, 0'); e('s_memtime s[90:91]'); e('v_mov_b32 v15, 0')
        for x in brd(0, vB0): e(x)
        e.label('F2_GLOOP')
        for u in range(3):
            n0 = (2*u) % 6; n1 = (2*u + 1) % 6
            zoff(5)
            e('s_waitcnt vmcnt(12) lgkmcnt(0)')
            fills = [[] for _ in range(12)]
            for k_, r in enumerate(brd(1, vB1)): fills[k_].append(r)
            for k_, z in enumerate(zl((n0 + 5) % 6, s_bz)): fills[4 + 2*k_].append(z)
            weave(e, mfl(0, n0), fills)
            e(f's_and_b32 s{s_t0}, s{s_st}, 3')
            e(f's_movk_i32 s{s_sd}, 16384')
            e(f's_cmp_eq_u32 s{s_t0}, 3')
            e(f's_cselect_b32 s{s_sd}, {(-49152) & 0xffffffff}, s{s_sd}')
            zoff(6)
            e('s_waitcnt lgkmcnt(0)')
            if K1.BARST:
                e('v_writelane_b32 v15, s90, m0'); e('s_add_u32 m0, m0, 1')
            e('s_barrier')
            if K1.BARST: e('s_memtime s[90:91]')
            e(f'v_add_u32 v{vB0}, s{s_sd}, v{vB0}')
            e('s_waitcnt vmcnt(12)')
            fills = [[] for _ in range(12)]
            for k_, r in enumerate(brd(0, vB0)): fills[k_].append(r)
            for k_, z in enumerate(zl((n1 + 5) % 6, s_bz)): fills[4 + 2*k_].append(z)
            weave(e, mfl(1, n1), fills)
            e(f'v_add_u32 v{vB1}, s{s_sd}, v{vB1}')
            e(f's_add_u32 s{s_st}, s{s_st}, 1')
            e(f's_cmp_eq_u32 s{s_st}, 16')
            if u < 2: e('s_cbranch_scc1 F2_GDONE')
            else: e('s_cbranch_scc0 F2_GLOOP')
        e.label('F2_GDONE')
        nb[0] += 16
        if K1.BARST:
            e('s_waitcnt lgkmcnt(0)')
            e('v_writelane_b32 v15, s90, m0')
            e(f's_lshl_b32 s{s_t0}, s2, 3'); e(f's_add_u32 s{s_t0}, s{s_t0}, s{s_w}'); e(f's_lshl_b32 s{s_t0}, s{s_t0}, 7')
            e(f's_add_u32 s{s_t0}, s{s_t0}, {TSB + 1*0x40000}')
            e(f'v_lshlrev_b32 v14, 2, v{vLane}')
            set_exec(e, 0xffffffff, 0)
            e(f'buffer_store_dword v15, v14, s[{sWS}:{sWS+3}], s{s_t0} offen')
            e(f's_mov_b64 exec, s[{s_ex}:{s_ex+1}]')
        stp.stamp(e)
        e.c('G epilogue')
        BS = vT + 6
        e(f's_lshl_b32 s{s_t0}, s{s_rb}, 2')
        e(f's_add_u32 s45, s{s_t0}, s{s_w}')
        e(f'v_lshlrev_b32 v{vT+1}, 1, v{vL15}')
        e(f's_lshl_b32 s{s_t0}, s45, 5')
        e(f'buffer_load_ushort v{BS}, v{vT+1}, s[{sB}:{sB+3}], s{s_t0} offen')
        e('s_waitcnt lgkmcnt(0)')
        bar()
        e(f's_mul_i32 s{s_t0}, s{s_w}, 3072')
        e(f'v_lshlrev_b32 v{vT}, 4, v{vLane}')
        e(f'v_add_u32 v{vT+1}, s{s_t0}, v{vT}')
        for tt in range(4):
            for ft in range(3):
                a = ACC + (ft*4 + tt)*4
                e(f'ds_write_b128 v{vT+1}, v[{a}:{a+3}] offset:{tt*12288 + ft*1024}')
                if (tt*3 + ft) % 6 == 5: e('s_waitcnt lgkmcnt(6)')
        e('s_waitcnt lgkmcnt(0)')
        bar()
        RX = 16
        e(f's_mul_i32 s{s_t0}, s{s_w}, 12288')
        e(f'v_add_u32 v{vT+1}, s{s_t0}, v{vT}')
        for v in range(4):
            for ft in range(3):
                r = RX + (v*3 + ft)*4
                e(f'ds_read_b128 v[{r}:{r+3}], v{vT+1} offset:{v*3072 + ft*1024}')
            if v == 2: e('s_waitcnt lgkmcnt(6)')
        Z1 = 64
        e(f's_mul_i32 s{s_t0}, s{s_w}, 3072')
        e(f's_add_u32 s{s_t0}, s{s_t0}, {Z1L}')
        e(f'v_lshlrev_b32 v{vT+2}, 3, v{vLane}')
        e(f'v_add_u32 v{vT+2}, s{s_t0}, v{vT+2}')
        e('s_waitcnt lgkmcnt(6)')
        for ftg in range(6):
            e(f'ds_read_b64 v[{Z1+2*ftg}:{Z1+2*ftg+1}], v{vT+2} offset:{ftg*512}')
        e('s_waitcnt vmcnt(0)')
        BSP = 92
        e(f'v_lshlrev_b32 v{BSP}, 16, v{BS}')
        e(f's_mul_i32 s{s_t0}, s45, {24*1024}')
        e(f's_mul_i32 s{s_t1}, s{s_cb}, {3*1024}')
        e(f's_add_u32 s{s_t0}, s{s_t0}, s{s_t1}')
        e(f's_add_u32 s{s_t0}, s{s_t0}, {PF}')
        e('s_waitcnt lgkmcnt(0)')
        OUTP = 76
        TU = 88
        for ftg in range(6):
            fh, ft = ftg // 3, ftg % 3
            a = RX + ((fh + 0)*3 + ft)*4
            b = RX + ((fh + 2)*3 + ft)*4
            for p in range(2): e(f'v_pk_add_f32 v[{a+2*p}:{a+2*p+1}], v[{a+2*p}:{a+2*p+1}], v[{b+2*p}:{b+2*p+1}]')
            for p in range(2):
                e(f'v_lshlrev_b32 v{TU+2*p}, 16, v{Z1+2*ftg+p}')
                e(f'v_and_b32 v{TU+2*p+1}, s{s_mask}, v{Z1+2*ftg+p}')
            for p in range(2): e(f'v_pk_add_f32 v[{a+2*p}:{a+2*p+1}], v[{a+2*p}:{a+2*p+1}], v[{BSP}:{BSP+1}] op_sel_hi:[1,0]')
            for p in range(2): e(f'v_pk_mul_f32 v[{a+2*p}:{a+2*p+1}], v[{a+2*p}:{a+2*p+1}], v[{TU+2*p}:{TU+2*p+1}]')
            for p in range(2):
                e(f'v_cvt_pk_bf16_f32 v{OUTP+2*ftg+p}, v{a+2*p}, v{a+2*p+1}')
            if ftg % 2 == 1:
                j = ftg // 2
                e(f'buffer_store_dwordx4 v[{OUTP+4*j}:{OUTP+4*j+3}], v{vT}, s[{sWS}:{sWS+3}], s{s_t0} offen offset:{j*1024} sc1')
        e('s_waitcnt vmcnt(0)')
        bar()
        stp.stamp(e)
        self.p3.setup(True)
        bar()
        stp.stamp(e)
        self.p3.main(True, 'a')
        if K1.DIAG:
            e('s_memrealtime s[56:57]'); e('s_memtime s[58:59]'); e('s_waitcnt lgkmcnt(0)')
            e('s_sub_u32 s60, s56, s96'); e('s_sub_u32 s61, s58, s98')
            e(f's_cmp_eq_u32 s{s_w}, 0'); e('s_cbranch_scc0 FD_END')
            e('s_and_b32 s62, s2, 63'); e('s_cmp_eq_u32 s62, 0'); e('s_cbranch_scc0 FD_END')
            e('s_lshr_b32 s62, s2, 6'); e('s_lshl_b32 s62, s62, 4')
            e('v_mov_b32 v12, s62'); e('v_mov_b32 v16, s60'); e('v_mov_b32 v17, s61'); e('v_mov_b32 v18, s96'); e('v_mov_b32 v19, s56')
            set_exec(e, 1, 0)
            e(f'buffer_store_dwordx4 v[16:19], v12, s[{sD}:{sD+3}], 0 offen')
            e.label('FD_END')
        stp.flush(e, 0, sWS, 12, s_w)
        e('s_endpgm')
        self.nb['A2'] = nb[0]

    def poll(self, e, tag, vaddr, vval, srd, nlanes_lo, nlanes_hi, want, ge=False):
        e(f's_mov_b32 s{s_t2}, 0')
        set_exec(e, nlanes_lo, nlanes_hi)
        e.label(f'FP_{tag}')
        e(f'buffer_load_dword v{vval}, v{vaddr}, s[{srd}:{srd+3}], 0 offen offset:{K1.CB if srd == sD else 0} sc1')
        e('s_waitcnt vmcnt(0)')
        e(f'v_cmp_{"gt" if ge else "ne"}_u32 vcc, {want}, v{vval}')
        e(f's_add_u32 s{s_t2}, s{s_t2}, 1')
        e('s_cmp_eq_u64 vcc, 0')
        e(f's_cbranch_scc1 FP_{tag}_OK')
        e(f's_cmp_lt_u32 s{s_t2}, {POLL_MAX}')
        e(f's_cbranch_scc0 FP_{tag}_OK')
        e('s_sleep 1')
        e(f's_branch FP_{tag}')
        e.label(f'FP_{tag}_OK')
        e(f's_mov_b64 exec, s[{s_ex}:{s_ex+1}]')

    def spoll(self, e, tag, off_sgpr, first, n):
        e(f's_add_u32 s74, s{off_sgpr}, {first*4}')
        e(f's_mov_b32 s{s_t2}, 0')
        e.label(f'SP_{tag}')
        e(f's_load_dwordx{n} s[56:{56+n-1}], s[72:73], s74 glc')
        e('s_waitcnt lgkmcnt(0)')
        k = n
        while k > 1:
            k //= 2
            for i in range(0, k, 2) if k >= 2 else [0]:
                if k >= 2: e(f's_and_b64 s[{56+i}:{57+i}], s[{56+i}:{57+i}], s[{56+k+i}:{57+k+i}]')
                else: e(f's_and_b32 s56, s56, s57')
        e(f's_add_u32 s{s_t2}, s{s_t2}, 1')
        e('s_cmp_eq_u32 s56, 1')
        e(f's_cbranch_scc1 SP_{tag}_OK')
        e(f's_cmp_lt_u32 s{s_t2}, {POLL_MAX}')
        e(f's_cbranch_scc1 SP_{tag}')
        e.label(f'SP_{tag}_OK')

    def kv_store(self, e, vt):
        KVS, KVP_ = K1.KVS, K1.KVP_
        KO = 16
        e('s_sleep 3')
        e(f's_sub_u32 s{s_t2}, s{s_w}, 4')
        e(f'v_lshrrev_b32 v{vt}, 3, v{vLane}')
        e(f's_lshl_b32 s{s_t0}, s{s_t2}, 3')
        e(f'v_add_u32 v{vt}, s{s_t0}, v{vt}')
        e(f'v_and_b32 v{vt+1}, 7, v{vLane}')
        e(f'v_lshlrev_b32 v{vt+1}, 4, v{vt+1}')
        e(f'v_mul_u32_u24 v{vt+2}, {KVP_}, v{vt}')
        e(f'v_add_u32 v{vt+2}, v{vt+2}, v{vt+1}')
        e(f'v_add_u32 v{vt+2}, {KVS}, v{vt+2}')
        e(f'v_lshlrev_b32 v{vt}, 12, v{vt}')
        e(f'v_add_u32 v{vt}, v{vt}, v{vt+1}')
        for n in range(4):
            e(f'ds_read_b128 v[{KO+4*n}:{KO+4*n+3}], v{vt+2} offset:{n*24*KVP_}')
        e(f's_mul_i32 s{s_t0}, s{s_cb}, {80*4096}')
        e(f's_lshl_b32 s{s_t1}, s{s_rb}, 7')
        e(f's_add_u32 s{s_t0}, s{s_t0}, s{s_t1}')
        e(f's_add_u32 s{s_t0}, s{s_t0}, {KVT}')
        e('s_waitcnt lgkmcnt(0)')
        for n in range(4):
            if n == 3:
                e(f's_cmp_eq_u32 s{s_t2}, 0')
                e(f's_cselect_b32 s{s_t0}, s{s_t0}, 0x80000000')
            e(f'buffer_store_dwordx4 v[{KO+4*n}:{KO+4*n+3}], v{vt}, s[{sWS}:{sWS+3}], s{s_t0} offen sc1')
            e(f's_add_u32 s{s_t0}, s{s_t0}, {24*4096}')

    def cnt_early(self, e):
        sH, sDd = 20, 24
        HC = 136; X = 160; DV = 166
        e(f's_load_dwordx4 s[{P+8}:{P+11}], s[0:1], 32')
        e(f's_sub_u32 s{s_t2}, s{s_w}, 4')
        e(f's_mul_i32 s44, s{s_cb}, 80')
        e(f's_mul_i32 s{s_t0}, s{s_rb}, 3')
        e(f's_lshl_b32 s{s_t1}, s{s_rb}, 1')
        e(f's_add_u32 s{s_t1}, s{s_t1}, 16')
        e(f's_cmp_lt_u32 s{s_rb}, 16')
        e(f's_cselect_b32 s{s_t0}, s{s_t0}, s{s_t1}')
        e(f's_cselect_b32 s{s_t1}, 3, 2')
        e(f's_add_u32 s44, s44, s{s_t0}')
        e(f's_add_u32 s44, s44, s{s_t2}')
        e(f's_cmp_lt_u32 s{s_t2}, s{s_t1}')
        e(f's_cselect_b32 s45, 1, 0')
        e(f's_cmp_eq_u32 s{s_w}, 7')
        e('s_cbranch_scc0 F2_NOCE')
        e(f'v_lshlrev_b32 v166, 2, v{vLane}')
        e(f'buffer_load_dword v167, v166, s[{sD}:{sD+3}], 0 offen offset:{K1.CB} sc1')
        e.label('F2_NOCE')


    def h_loads(self, e):
        sH, sDd = 20, 24
        HC = 136; X = 160; DV = 166
        e('s_waitcnt lgkmcnt(0)')
        e(f's_lshl_b32 s{s_t0}, s44, 12')
        e(f's_add_u32 s{sH}, s{P+8}, s{s_t0}')
        e(f's_addc_u32 s{sH+1}, s{P+9}, 0')
        e(f's_and_b32 s{sH+1}, s{sH+1}, 0xffff')
        e(f's_mov_b32 s{sH+2}, 4096')
        e(f's_mov_b32 s{sH+3}, 0x20000')
        srd(e, sDd, P+10, D*2)
        e(f'v_lshlrev_b32 v167, 4, v{vLane}')
        for n in range(4):
            c = HC + n*6
            e(f'buffer_load_dwordx4 v[{c}:{c+3}], v167, s[{sH}:{sH+3}], 0 offen offset:{n*1024} {NT1}')
            e(f'buffer_load_dwordx2 v[{c+4}:{c+5}], v167, s[{sH}:{sH+3}], 0 offen offset:{n*1024+16} {NT1}')
        e(f'v_mov_b32 v167, 0')
        e(f'buffer_load_dwordx2 v[{X+4}:{X+5}], v167, s[{sH}:{sH+3}], 0 offen')
        e(f's_lshl_b32 s{s_t0}, s44, 1')
        e(f'buffer_load_ushort v{DV}, v167, s[{sDd}:{sDd+3}], s{s_t0} offen')

    def c2(self, e, stC, bar1):
        nb = [0]
        def bar():
            e('s_barrier'); nb[0] += 1
        sH, sDd = 20, 24
        s_d, s_base, s_p = 35, 36, 37
        vA_, vB_ = 4, 5
        vT = 6
        HC = 136; X = 160; DV = 46; ACC = 48
        e.c('phase 2: B stream')
        e(f's_cmp_eq_u32 s{s_w}, 7')
        e('s_cbranch_scc1 F2_SYNC')
        e(f's_cmp_eq_u32 s45, 0')
        e('s_cbranch_scc1 F2_IDLE')
        e(f's_mov_b32 s{s_d}, s44')
        e(f's_sub_u32 s{s_t2}, s{s_w}, 4')
        e(f's_mul_i32 s{s_base}, s{s_t2}, {CW_SZ}')
        e(f's_add_u32 s{s_base}, s{s_base}, {CONV0}')
        e(f'v_add_u32 v{vT+4}, 1, v{vL15}')
        e(f'v_and_b32 v{vT+4}, 3, v{vT+4}')
        e(f'v_lshrrev_b32 v{vT+5}, 1, v{vQ}')
        e(f'v_and_b32 v{vT+6}, 1, v{vQ}')
        e(f'v_lshlrev_b32 v{vT+7}, 4, v{vT+5}')
        e(f'v_add_u32 v{vT+7}, v{vT+7}, v{vL15}')
        e(f'v_lshlrev_b32 v{vT+8}, 3, v{vT+6}')
        e(f'v_sub_u32 v{vT+7}, v{vT+7}, v{vT+8}')
        e(f'v_add_u32 v{vT+7}, 9, v{vT+7}')
        e(f'v_sub_u32 v{vT+7}, v{vT+7}, v{vT+4}')
        e(f'v_lshlrev_b32 v{vT+7}, 1, v{vT+7}')
        e(f'v_mul_u32_u24 v{vT+4}, {HCP}, v{vT+4}')
        e(f'v_add_u32 v{vT+7}, v{vT+7}, v{vT+4}')
        e(f'v_add_u32 v{vA_}, s{s_base}, v{vT+7}')
        e(f'v_sub_u32 v{vT+7}, v{vL15}, v{vT+5}')
        e(f'v_lshlrev_b32 v{vT+7}, 1, v{vT+7}')
        e(f'v_add_u32 v{vT+7}, v{vT+7}, v{vT+6}')
        e(f'v_lshlrev_b32 v{vT+7}, 4, v{vT+7}')
        e(f's_add_u32 s{s_t0}, s{s_base}, {CW_U + 512}')
        e(f'v_add_u32 v{vB_}, s{s_t0}, v{vT+7}')
        e('s_waitcnt vmcnt(0)')
        stC.stamp(e)
        bar1('B')
        stC.stamp(e)
        self.kv_store(e, 8)
        self.h_loads(e)
        bar()
        e('s_waitcnt vmcnt(0)')
        e(f'v_mov_b32 v{DV}, v166')
        e(f'v_mov_b32 v{vT+2}, 0'); e(f'v_mov_b32 v{vT+3}, 0')
        e(f'v_lshlrev_b32 v{vT+4}, 3, v{vLane}')
        e(f'v_add_u32 v{vT+4}, s{s_base}, v{vT+4}')
        e(f'ds_write_b64 v{vT+4}, v[{vT+2}:{vT+3}] offset:{CW_U}')
        e(f'v_lshlrev_b32 v{vT+4}, 4, v{vLane}')
        e(f'v_add_u32 v{vT+4}, s{s_base}, v{vT+4}')
        TM = 80
        def copies(c, off, k):
            t_ = TM + (k % 4)*12
            e(f'v_alignbit_b32 v{t_+0}, v{c+1}, v{c+0}, 16')
            e(f'v_alignbit_b32 v{t_+1}, v{c+2}, v{c+1}, 16')
            e(f'v_alignbit_b32 v{t_+2}, v{c+3}, v{c+2}, 16')
            e(f'v_alignbit_b32 v{t_+3}, v{c+4}, v{c+3}, 16')
            e(f'v_mov_b32 v{t_+4}, v{c+1}'); e(f'v_mov_b32 v{t_+5}, v{c+2}')
            e(f'v_mov_b32 v{t_+6}, v{c+3}'); e(f'v_mov_b32 v{t_+7}, v{c+4}')
            e(f'v_mov_b32 v{t_+8}, v{t_+1}'); e(f'v_mov_b32 v{t_+9}, v{t_+2}'); e(f'v_mov_b32 v{t_+10}, v{t_+3}')
            e(f'v_alignbit_b32 v{t_+11}, v{c+5}, v{c+4}, 16')
            e(f'ds_write_b128 v{vT+4}, v[{c}:{c+3}] offset:{off}')
            e(f'ds_write_b128 v{vT+4}, v[{t_}:{t_+3}] offset:{off + HCP}')
            e(f'ds_write_b128 v{vT+4}, v[{t_+4}:{t_+7}] offset:{off + 2*HCP}')
            e(f'ds_write_b128 v{vT+4}, v[{t_+8}:{t_+11}] offset:{off + 3*HCP}')
        for n in range(4):
            copies(HC + n*6, 32 + n*1024, n)
            e('s_waitcnt lgkmcnt(4)')
            if n == 1:
                e('s_waitcnt vmcnt(0)')
                bar()
            if n == 2: bar()
        for i in range(4): e(f'v_mov_b32 v{X+i}, 0')
        e(f'v_cmp_eq_u32 vcc, 1, v{vLane}')
        e(f'v_cndmask_b32 v{X+4}, 0, v{X+4}, vcc')
        e(f'v_cndmask_b32 v{X+5}, 0, v{X+5}, vcc')
        e('s_waitcnt lgkmcnt(0)')
        set_exec(e, 3, 0)
        copies(X, 0, 0)
        e(f's_mov_b64 exec, s[{s_ex}:{s_ex+1}]')
        e(f'v_lshlrev_b32 v{DV}, 16, v{DV}')
        for i in range(32): e(f'v_mov_b32 v{ACC+i}, 0')
        e('s_waitcnt vmcnt(0) lgkmcnt(0)')
        for _ in range(3): bar()
        e(f'v_lshlrev_b32 v{vT}, 4, v{vLane}')
        e(f's_lshl_b32 s{s_t0}, s{s_d}, 12')
        e(f's_add_u32 s{s_t0}, s{s_t0}, {KVT}')
        for n in range(4):
            e(f's_add_u32 m0, s{s_base}, {CW_U + 512 + n*1024}')
            e(f's_add_u32 s{s_t1}, s{s_t0}, {n*1024}')
            e(f'buffer_load_dwordx4 v{vT}, s[{sWS}:{sWS+3}], s{s_t1} offen sc1 lds')
        AFr = 80; B0 = 112
        def a_rd(m):
            a = AFr + m*4
            return [f'ds_read_b64 v[{a}:{a+1}], v{vA_} offset:{m*512}', f'ds_read_b64 v[{a+2}:{a+3}], v{vA_} offset:{m*512+8}']
        def b_rd(ee):
            b = B0 + 4*ee
            return [f'ds_read_b128 v[{b}:{b+3}], v{vB_} offset:{ee*512}']
        for m in range(8):
            for x in a_rd(m): e(x)
            if m % 4 == 3: e('s_waitcnt lgkmcnt(6)')
        bar()
        e('s_waitcnt vmcnt(0)')
        for m in range(8):
            for x in b_rd(m): e(x)
        e(f's_mov_b32 s{s_p}, 0')
        e.label('F2_CLOOP')
        for half in range(2):
            e(f'v_add_u32 v{vA_}, 64, v{vA_}')
            e(f'v_subrev_u32 v{vB_}, 64, v{vB_}')
            e('s_waitcnt lgkmcnt(0)')
            for m in range(8):
                for c in range(m, 8):
                    a = AFr + m*4; b = B0 + (c-m)*4; d = ACC + c*4
                    e(f'v_mfma_f32_16x16x32_bf16 v[{d}:{d+3}], v[{a}:{a+3}], v[{b}:{b+3}], v[{d}:{d+3}]')
                for x in a_rd(m): e(x)
                for x in b_rd(7 - m): e(x)
                if m in (3, 6): e('s_waitcnt lgkmcnt(6)')
                if (half == 0 and m == 3) or (half == 1 and m == 1): e('s_barrier')
        e('s_barrier')
        e(f's_add_u32 s{s_p}, s{s_p}, 2')
        e(f's_cmp_lt_u32 s{s_p}, 8')
        e('s_cbranch_scc1 F2_CLOOP')
        nb[0] += 12
        e('s_waitcnt lgkmcnt(0)')
        e(f'v_lshlrev_b32 v{vT}, 5, v{vL15}')
        e(f'v_lshrrev_b32 v{vT+1}, 1, v{vQ}')
        e(f'v_lshlrev_b32 v{vT+1}, 4, v{vT+1}')
        e(f'v_add_u32 v{vT}, v{vT}, v{vT+1}')
        e(f'v_and_b32 v{vT+1}, 1, v{vQ}')
        e(f'v_xor_b32 v{vT+1}, 1, v{vT+1}')
        e(f'v_lshlrev_b32 v{vT+1}, 3, v{vT+1}')
        e(f'v_add_u32 v{vT}, v{vT}, v{vT+1}')
        e(f's_add_u32 s{s_t0}, s{s_base}, {CW_U + 512}')
        e(f'v_add_u32 v{vT}, s{s_t0}, v{vT}')
        KV = AFr
        for c in range(8):
            e(f'ds_read_b64 v[{KV+2*c}:{KV+2*c+1}], v{vT} offset:{c*512}')
        e(f'v_lshlrev_b32 v{vT+2}, 5, v{vL15}')
        e(f'v_lshlrev_b32 v{vT+3}, 3, v{vQ}')
        e(f'v_add_u32 v{vT+2}, v{vT+2}, v{vT+3}')
        e(f's_lshl_b32 s{s_t0}, s{s_d}, 12')
        e(f's_add_u32 s{s_t0}, s{s_t0}, {YYT}')
        e('s_waitcnt lgkmcnt(0)')
        U = B0
        for c in range(8):
            a = ACC + c*4; k0 = KV + 2*c; u = U + (c % 4)*8
            e(f'v_and_b32 v{u+0}, s{s_mask}, v{k0+1}')
            e(f'v_lshlrev_b32 v{u+1}, 16, v{k0+1}')
            e(f'v_and_b32 v{u+2}, s{s_mask}, v{k0}')
            e(f'v_lshlrev_b32 v{u+3}, 16, v{k0}')
            for r in range(4): e(f'v_fmac_f32 v{a+r}, v{u+r}, v{DV}')
            e(f'v_cvt_pk_bf16_f32 v{u+4}, v{a}, v{a+1}')
            e(f'v_cvt_pk_bf16_f32 v{u+5}, v{a+2}, v{a+3}')
            e(f'buffer_store_dwordx2 v[{u+4}:{u+5}], v{vT+2}, s[{sWS}:{sWS+3}], s{s_t0} offen offset:{c*512} sc1')
        e('s_waitcnt vmcnt(0)')
        bar()
        n_c = nb[0]
        e.label('F3_IDLE')
        self.p3.setup(False)
        e('s_barrier')
        e.label('F3_BMAIN')
        self.p3.main(False, 'b')
        stC.flush(e, 0, sWS, vT, s_w)
        e('s_endpgm')
        e.label('F2_IDLE')
        e('s_waitcnt vmcnt(0)')
        bar1('I1')
        self.kv_store(e, 8)
        e('s_barrier')
        e('s_waitcnt vmcnt(0)')
        for _ in range(n_c - 1): e('s_barrier')
        e('s_branch F3_IDLE')
        e.label('F2_SYNC')
        vt = 150
        e('s_load_dwordx2 s[72:73], s[0:1], 104')
        e('s_waitcnt lgkmcnt(0)')
        sSP = 8
        e(f's_load_dwordx2 s[70:71], s[0:1], 64')
        e(f's_lshl_b32 s{s_t0}, s{s_rb}, 6')
        e(f's_lshl_b32 s{s_t1}, s{s_cb}, 3')
        e(f's_add_u32 s{s_t0}, s{s_t0}, s{s_t1}')
        e(f'v_lshrrev_b32 v20, 3, v{vLane}')
        e(f'v_add_u32 v20, s{s_t0}, v20')
        e(f'v_lshlrev_b32 v20, 12, v20')
        e(f'v_and_b32 v21, 7, v{vLane}')
        e(f'v_lshlrev_b32 v21, 6, v21')
        e(f'v_add_u32 v20, v20, v21')
        e(f'v_lshrrev_b32 v22, 2, v{vLane}')
        e(f'v_add_u32 v22, s{s_t0}, v22')
        e(f'v_lshlrev_b32 v22, 12, v22')
        e(f'v_and_b32 v21, 3, v{vLane}')
        e(f'v_lshlrev_b32 v21, 6, v21')
        e(f'v_add_u32 v22, v22, v21')
        e('s_waitcnt lgkmcnt(0)')
        srd(e, sSP, 70, S*S*2)
        JIT = os.environ.get('TOUCH', 'p2') == 'jit'
        self.flag_addr(e, vt+2, vt+3)
        e(f'v_mov_b32 v{vt+4}, 1')
        e('s_waitcnt vmcnt(0)')
        bar1('I2')
        stS = Stamper(); stS.n = 1
        stS.stamp(e)
        set_exec(e, 1, 0)
        e(f'buffer_store_dword v{vt+4}, v{vt+2}, s[{sWS}:{sWS+3}], 0 offen sc1')
        e(f's_mov_b64 exec, s[{s_ex}:{s_ex+1}]')
        for p in range(1, 3 if JIT else 0):
            e(f'buffer_load_dword v{24+p}, v20, s[{sSP}:{sSP+3}], 0 offen offset:{p*512}')
        SPOLL = os.environ.get('SPOLL', '1') == '1'
        e(f's_lshl_b32 s{s_t0}, s{s_cb}, 7')
        e(f's_add_u32 s75, s{s_t0}, {FL1}')
        e(f's_add_u32 s{s_t0}, s{s_t0}, {FL1}')
        e(f'v_lshlrev_b32 v{vt}, 2, v{vLane}')
        e(f'v_add_u32 v{vt}, s{s_t0}, v{vt}')
        if SPOLL:
            self.spoll(e, 'F1a', 75, 0, 8)
        else:
            self.poll(e, 'F1a', vt, vt+1, sWS, 0x3f, 0, 1)
        stS.stamp(e)
        e('s_barrier')
        stS.stamp(e)
        def mbar(i):
            e('s_barrier')
            j = i + 6
            if j < 16 and JIT:
                e('s_mov_b32 exec_hi, 0')
                e(f's_movk_i32 s{s_t0}, {j*256}')
                e(f'buffer_load_dword v{28 + (i % 4)}, v22, s[{sSP}:{sSP+3}], s{s_t0} offen')
                e('s_mov_b32 exec_hi, -1')
        mbar(0)
        set_exec(e, 8, 0)
        e(f'buffer_store_dword v{vt+4}, v{vt+2}, s[{sWS}:{sWS+3}], 0 offen sc1')
        e(f's_mov_b64 exec, s[{s_ex}:{s_ex+1}]')
        self.spoll(e, 'F1b', 75, 8, 8)
        mbar(1)
        mbar(2)
        self.spoll(e, 'F1c', 75, 16, 16)
        mbar(3)
        e(f's_add_u32 s75, s75, {FLKV - FL1}')
        self.spoll(e, 'FKa', 75, 0, 16)
        self.spoll(e, 'FKb', 75, 16, 16)
        for i in range(4, 16): mbar(i)
        e('s_barrier')
        self.p3.setup(False)
        e('s_barrier'); e('s_barrier')
        set_exec(e, 6, 0)
        e(f'buffer_store_dword v{vt+4}, v{vt+2}, s[{sWS}:{sWS+3}], 0 offen sc1')
        e(f's_mov_b64 exec, s[{s_ex}:{s_ex+1}]')
        e(f's_lshl_b32 s{s_t0}, s{s_rb}, 5')
        e(f's_add_u32 s75, s{s_t0}, {FL2B}')
        self.spoll(e, 'F2B', 75, 0, 8)
        e('s_barrier')
        e('s_branch F3_BMAIN')
        self.nb['B2'] = n_c

    def l2_pre(self, e):
        sSP = 8
        vD = 4; t = 10
        s_bw, s_m = 38, 39
        e.c('phase 2: L (pre)')
        e(f's_load_dwordx2 s[{P}:{P+1}], s[0:1], 64')
        e(f's_load_dwordx2 s[{P+4}:{P+5}], s[0:1], 104')
        e(f's_lshl_b32 s{s_t0}, s{s_rb}, 6')
        e(f's_lshl_b32 s{s_t1}, s{s_wl}, 4')
        e(f's_add_u32 s{s_t0}, s{s_t0}, s{s_t1}')
        for tt in range(4):
            e(f'v_add_u32 v{t}, {4*tt}, v{vQ}')
            e(f'v_xor_b32 v{t+1}, v{t}, v{vL15}')
            e(f'v_lshlrev_b32 v{t+1}, 4, v{t+1}')
            e(f'v_add_u32 v{t}, s{s_t0}, v{t}')
            e(f'v_lshlrev_b32 v{t}, 12, v{t}')
            e(f'v_add_u32 v{vD+tt}, v{t}, v{t+1}')
        e(f's_lshl_b32 s{s_m}, s{s_wl}, 12')
        e('s_waitcnt lgkmcnt(0)')
        srd(e, sSP, P, S*S*2)
        srd(e, sWS, P+4, WS_SIZE)
        self.lcnt = [0]; self.ldone = {}
    def lissue(self, e, j):
        sSP = 8; vD = 4; s_bw, s_m = 38, 39
        e(f's_movk_i32 s{s_bw}, {j*256}')
        for tt in range(4):
            e(f's_add_u32 m0, s{s_m}, {(j % 4)*16384 + tt*1024}')
            e('s_nop 0')
            e(f'buffer_load_dwordx4 v{vD+tt}, s[{sSP}:{sSP+3}], s{s_bw} offen {NT3} lds')
        self.lcnt[0] += 4; self.ldone[j] = self.lcnt[0]

    def l2(self, e, bar1):
        nb = [0]
        def bar():
            e('s_barrier'); nb[0] += 1
        cnt, done = self.lcnt, self.ldone
        issue = lambda j: self.lissue(e, j)
        def lbar(j):
            e(f's_waitcnt vmcnt({cnt[0] - done[j]})'); bar()
        bar1('L')
        e('s_sleep 5')
        for j in range(2): issue(j)
        lbar(0)
        LA = int(os.environ.get('LA', '3'))
        nxt = max(done) + 1
        while nxt < LA + 1:
            issue(nxt); nxt += 1
        for i in range(16):
            if i + 1 < 16: lbar(i + 1)
            else: bar()
            while nxt < 16 and nxt <= i + 1 + LA:
                issue(nxt); nxt += 1
        bar(); bar()
        bar()
        self.nb['L2'] = nb[0]
        def yy_poll():
            e(f's_cmp_eq_u32 s{s_w}, 8')
            e('s_cbranch_scc0 F3_NOYP')
            e('s_load_dwordx2 s[72:73], s[0:1], 104')
            e(f's_lshl_b32 s75, s{s_cb}, 7')
            e(f's_add_u32 s75, s75, {FL2A}')
            e('s_waitcnt lgkmcnt(0)')
            self.spoll(e, 'F2Aa', 75, 0, 16)
            self.spoll(e, 'F2Ab', 75, 16, 16)
            e.label('F3_NOYP')
        self.p3.loader(yy_poll)
        e('s_endpgm')

def gen_kf():
    e = Emitter()
    H = Hooks(); H.name = NAME
    H.p3 = k3c.P3(e)
    nbar = K1.gen_k1(e=e, fused=True, H=H)
    print('phase1 barriers', nbar, 'phase2', H.nb, 'phase3')
    assert nbar['A'] == nbar['L'] == 23 and nbar['B'] == 23 and nbar['I1'] == 1 and nbar['I2'] == 1, nbar
    assert H.nb['A2'] - 1 == H.nb['B2'] == H.nb['L2'] == 20, H.nb
    e.label('KF_CODE_END')
    nn = e.finalize()
    return kernel_wrap(NAME, e.text(), vgpr=168, sgpr=102 if K1.DIAG else 96), nn
```

```python
from common import *
WO_SZ = 122880
XT = WO_SZ
YT = XT + 10240
RED3 = 143360 + 512
NB3 = 5
LF = 'sc1'
import os
OUTF = os.environ.get('OUTF', '')

class P3:
    def __init__(self, e):
        self.e = e
        self.sX, self.sO, self.sWS = 8, 12, 16
    vLane, vQ, vL15 = 1, 2, 3
    vL16 = 4; vXO = 5; vYO = 8; vT = 12; ST = 24; vWB = 26
    AFr = 28; ACC = 68; PFR = 88
    s_tb, s_db, s_w, s_wl = 32, 33, 34, 55
    s_t0, s_t1, s_t2 = 40, 41, 42
    s_mask = 47; s_ex = 52; s_one = 48
    s_tt, s_pb, s_xl, s_yo, s_kh = 35, 36, 37, 38, 39
    P = 56
    def setup(self, is_a):
        e = self.e; s = self
        vT = s.vT; P = s.P
        e(f's_load_dwordx2 s[{P}:{P+1}], s[0:1], 0')
        e(f's_load_dwordx2 s[{P+2}:{P+3}], s[0:1], 88')
        e(f'v_lshlrev_b32 v{s.vL16}, 4, v{s.vLane}')
        e(f's_lshl_b32 s{s.s_tt}, s{s.s_tb}, 2')
        e(f's_add_u32 s{s.s_tt}, s{s.s_tt}, s{s.s_wl}')
        e(f's_lshr_b32 s{s.s_kh}, s{s.s_w}, 2')
        e(f's_mul_i32 s{s.s_pb}, s{s.s_tt}, {24*1024}')
        e(f's_mul_i32 s{s.s_t0}, s{s.s_kh}, {12*1024}')
        e(f's_add_u32 s{s.s_pb}, s{s.s_pb}, s{s.s_t0}')
        e(f's_add_u32 s{s.s_pb}, s{s.s_pb}, {PF}')
        e(f's_mul_i32 s{s.s_t0}, s{s.s_kh}, {60*1024}')
        e(f'v_add_u32 v{s.vWB}, s{s.s_t0}, v{s.vL16}')
        e(f's_lshl_b32 s{s.s_t0}, s{s.s_tt}, 4')
        e(f's_mul_i32 s{s.s_t0}, s{s.s_t0}, 1280')
        e(f's_mul_i32 s{s.s_t1}, s{s.s_db}, 160')
        e(f's_add_u32 s{s.s_t0}, s{s.s_t0}, s{s.s_t1}')
        for n in range(3):
            e(f'v_add_u32 v{vT}, {64*n}, v{s.vLane}')
            e(f'v_mul_u32_u24 v{vT+1}, 6554, v{vT}')
            e(f'v_lshrrev_b32 v{vT+1}, 16, v{vT+1}')
            e(f'v_mul_u32_u24 v{vT+2}, 10, v{vT+1}')
            e(f'v_sub_u32 v{vT+2}, v{vT}, v{vT+2}')
            e(f'v_lshlrev_b32 v{vT+2}, 4, v{vT+2}')
            e(f'v_mul_u32_u24 v{vT+1}, 1280, v{vT+1}')
            e(f'v_add_u32 v{vT+1}, v{vT+1}, v{vT+2}')
            e(f'v_add_u32 v{s.vXO+n}, s{s.s_t0}, v{vT+1}')
            if not is_a:
                e(f'v_lshrrev_b32 v{vT+1}, 1, v{vT}')
                e(f'v_lshlrev_b32 v{vT+1}, 12, v{vT+1}')
                e(f'v_and_b32 v{vT+2}, 1, v{vT}')
                e(f'v_lshlrev_b32 v{vT+2}, 4, v{vT+2}')
                e(f'v_add_u32 v{s.vYO+n}, v{vT+1}, v{vT+2}')
        e(f's_mul_i32 s{s.s_xl}, s{s.s_wl}, 2560')
        e(f's_mul_i32 s{s.s_yo}, s{s.s_db}, {80*4096}')
        e(f's_lshl_b32 s{s.s_t1}, s{s.s_tt}, 5')
        e(f's_add_u32 s{s.s_yo}, s{s.s_yo}, s{s.s_t1}')
        e(f's_add_u32 s{s.s_yo}, s{s.s_yo}, {YYT}')
        e(f's_lshl_b32 s{s.s_t0}, s{s.s_wl}, 6')
        e(f's_add_u32 s{s.s_t0}, s{s.s_t0}, 143360')
        e(f'v_lshlrev_b32 v{vT+9}, 2, v{s.vL15}')
        e(f'v_add_u32 v{vT+9}, s{s.s_t0}, v{vT+9}')
        e(f'ds_read_b32 v{s.ST}, v{vT+9}')
        e(f'ds_read_b32 v{s.ST+1}, v{vT+9} offset:256')
        for i in range(20): e(f'v_mov_b32 v{s.ACC+i}, 0')
        e('s_waitcnt lgkmcnt(0)')
        srd(e, s.sX, P, S*D*2)
        srd(e, s.sO, P+2, S*D*2)
        if is_a:
            for n in range(3):
                if n == 2: e('s_mov_b32 exec_hi, 0')
                e(f's_add_u32 m0, s{s.s_xl}, {XT + n*1024}')
                e('s_nop 0')
                e(f'buffer_load_dwordx4 v{s.vXO+n}, s[{s.sX}:{s.sX+3}], 0 offen lds')
            e('s_mov_b32 exec_hi, -1')
    def main(self, is_a, tag, stp=None):
        e = self.e; s = self
        vT = s.vT; AFr, ACC, PFR = s.AFr, s.ACC, s.PFR
        def pl(ks):
            r = PFR + ks*4
            return [f's_add_u32 s{s.s_t0}, s{s.s_pb}, {(ks // 4)*4096}',
                    f'buffer_load_dwordx4 v[{r}:{r+3}], v{s.vL16}, s[{s.sWS}:{s.sWS+3}], s{s.s_t0} offen offset:{(ks % 4)*1024} {LF}']
        order = []
        LOOK = 5
        for ks in range(LOOK):
            for x in pl(ks): e(x)
            order.append(('p', ks))
        def rds(buf, ks):
            return [f'ds_read_b128 v[{AFr+buf*20+dt*4}:{AFr+buf*20+dt*4+3}], v{s.vWB} offset:{(ks*5+dt)*1024}' for dt in range(5)]
        e('s_barrier')
        if stp: stp.stamp(e)
        for x in rds(0, 0): e(x)
        for ks in range(12):
            buf = ks % 2
            nvm = len(order) - 1 - order.index(('p', ks))
            nxt = []
            e(f's_waitcnt vmcnt({nvm}) lgkmcnt(0)')
            if ks + 1 < 12:
                if ks % 4 == 3:
                    e('s_barrier')
                    if stp: stp.stamp(e)
                nxt = rds(1 - buf, ks + 1)
            mf = [f'v_mfma_f32_16x16x32_bf16 v[{ACC+dt*4}:{ACC+dt*4+3}], v[{AFr+buf*20+dt*4}:{AFr+buf*20+dt*4+3}], v[{PFR+ks*4}:{PFR+ks*4+3}], v[{ACC+dt*4}:{ACC+dt*4+3}]' for dt in range(5)]
            fills = [[] for _ in range(5)]
            for n, r in enumerate(nxt): fills[n].append(r)
            if ks + LOOK < 12:
                fills[2] += pl(ks + LOOK); order.append(('p', ks + LOOK))
            if (not is_a) and 4 <= ks < 7:
                n = ks - 4
                pre = ['s_mov_b32 exec_hi, 0'] if n == 2 else []
                post = ['s_mov_b32 exec_hi, -1'] if n == 2 else []
                fills[4] += pre + [f's_add_u32 m0, s{s.s_xl}, {YT + n*1024}', 's_nop 0',
                                   f'buffer_load_dwordx4 v{s.vYO+n}, s[{s.sWS}:{s.sWS+3}], s{s.s_yo} offen {LF} lds'] + post
                order.append(('y', n))
            weave(e, mf, fills)
        e('s_waitcnt vmcnt(0) lgkmcnt(0)')
        e('s_barrier')
        if stp: stp.stamp(e)
        e(f's_mul_i32 s{s.s_t0}, s{s.s_wl}, 5120')
        e(f'v_add_u32 v{vT}, s{s.s_t0}, v{s.vL16}')
        give = (3, 4) if is_a else (0, 1, 2)
        keep = (0, 1, 2) if is_a else (3, 4)
        for dt in give:
            e(f'ds_write_b128 v{vT}, v[{ACC+dt*4}:{ACC+dt*4+3}] offset:{dt*1024}')
        e(f'v_mul_u32_u24 v{vT+1}, 160, v{s.vL15}')
        e(f'v_lshlrev_b32 v{vT+2}, 3, v{s.vQ}')
        e(f'v_add_u32 v{vT+1}, v{vT+1}, v{vT+2}')
        e(f's_add_u32 s{s.s_t0}, s{s.s_xl}, {XT}')
        e(f'v_add_u32 v{vT+1}, s{s.s_t0}, v{vT+1}')
        e(f'v_lshlrev_b32 v{vT+2}, 7, v{s.vQ}')
        e(f'v_lshlrev_b32 v{vT+3}, 3, v{s.vL15}')
        e(f'v_add_u32 v{vT+2}, v{vT+2}, v{vT+3}')
        e(f's_add_u32 s{s.s_t0}, s{s.s_xl}, {YT}')
        e(f'v_add_u32 v{vT+2}, s{s.s_t0}, v{vT+2}')
        E = PFR
        XR = E; YR = E + 10; RP = E + 20
        for dt in keep:
            e(f'ds_read_b64 v[{XR+2*dt}:{XR+2*dt+1}], v{vT+1} offset:{dt*32}')
            e(f'ds_read_b64_tr_b16 v[{YR+2*dt}:{YR+2*dt+1}], v{vT+2} offset:{dt*512}')
        NM = vT + 4; RI = vT + 6; NL = vT + 8
        e(f'v_sub_f32 v{NM}, 0, v{s.ST}')
        e(f'v_mov_b32 v{RI}, v{s.ST+1}')
        e(f's_mov_b32 s{s.s_one}, 1.0'); e(f's_mov_b32 s{s.s_one+1}, 1.0')
        e(f'v_mov_b32 v{NL}, {hexf(-1.4426950408889634)}'); e(f'v_mov_b32 v{NL+1}, {hexf(-1.4426950408889634)}')
        e('s_waitcnt lgkmcnt(0)')
        e('s_barrier')
        for dt in keep:
            e(f'ds_read_b128 v[{RP+4*dt}:{RP+4*dt+3}], v{vT} offset:{dt*1024}')
        e('s_waitcnt lgkmcnt(0)')
        W = AFr
        for dt in keep:
            for p in range(2):
                a = ACC + dt*4 + 2*p
                x = W + (p*8); y = x + 2; g = x + 4; sv = x + 6
                e(f'v_pk_add_f32 v[{a}:{a+1}], v[{a}:{a+1}], v[{RP+4*dt+2*p}:{RP+4*dt+2*p+1}]')
                e(f'v_lshlrev_b32 v{x}, 16, v{XR+2*dt+p}')
                e(f'v_and_b32 v{x+1}, s{s.s_mask}, v{XR+2*dt+p}')
                e(f'v_pk_mul_f32 v[{g}:{g+1}], v[{a}:{a+1}], v[{NL}:{NL+1}]')
                e(f'v_lshlrev_b32 v{y}, 16, v{YR+2*dt+p}')
                e(f'v_and_b32 v{y+1}, s{s.s_mask}, v{YR+2*dt+p}')
                e(f'v_exp_f32 v{g}, v{g}')
                e(f'v_exp_f32 v{g+1}, v{g+1}')
                e(f'v_pk_add_f32 v[{sv}:{sv+1}], v[{x}:{x+1}], v[{NM}:{NM+1}] op_sel_hi:[1,0]')
                e(f'v_pk_add_f32 v[{g}:{g+1}], v[{g}:{g+1}], s[{s.s_one}:{s.s_one+1}]')
                e(f'v_pk_mul_f32 v[{sv}:{sv+1}], v[{sv}:{sv+1}], v[{RI}:{RI+1}] op_sel_hi:[1,0]')
                e(f'v_rcp_f32 v{g}, v{g}')
                e(f'v_rcp_f32 v{g+1}, v{g+1}')
                e(f'v_pk_mul_f32 v[{sv}:{sv+1}], v[{sv}:{sv+1}], v[{y}:{y+1}]')
                e(f'v_pk_mul_f32 v[{g}:{g+1}], v[{g}:{g+1}], v[{a}:{a+1}]')
                e(f'v_pk_fma_f32 v[{sv}:{sv+1}], v[{sv}:{sv+1}], v[{g}:{g+1}], v[{x}:{x+1}]')
                import os
                if os.environ.get('ERR1') and is_a and dt == 0 and p == 0:
                    e(f's_or_b32 s{s.s_t0}, s2, s{s.s_w}')
                    e(f's_cmp_eq_u32 s{s.s_t0}, 0')
                    e(f's_cselect_b32 s{s.s_t0}, {hexf(float(os.environ["ERR1"]))}, 0')
                    e(f'v_mov_b32 v{g}, s{s.s_t0}')
                    e(f'v_cmp_eq_u32 vcc, 0, v{s.vLane}')
                    e(f'v_cndmask_b32 v{g}, 0, v{g}, vcc')
                    e(f'v_add_f32 v{sv}, v{sv}, v{g}')
                if os.environ.get('ERR2'):
                    e(f's_cmp_lt_u32 s2, {int(os.environ["ERR2"])}')
                    e(f's_cselect_b32 s{s.s_t0}, {hexf(1.03)}, 1.0')
                    e(f'v_mul_f32 v{sv}, s{s.s_t0}, v{sv}')
                    e(f'v_mul_f32 v{sv+1}, s{s.s_t0}, v{sv+1}')
                e(f'v_cvt_pk_bf16_f32 v{XR+2*dt+p}, v{sv}, v{sv+1}')
            e(f'ds_write_b64 v{vT+1}, v[{XR+2*dt}:{XR+2*dt+1}] offset:{dt*32}')
        e('s_waitcnt lgkmcnt(0)')
        e('s_barrier')
        e(f's_add_u32 s{s.s_t0}, s{s.s_xl}, {XT}')
        e(f'v_add_u32 v{vT+1}, s{s.s_t0}, v{s.vL16}')
        OR = RP
        ns = (0, 1) if is_a else (2,)
        for n in ns:
            e(f'ds_read_b128 v[{OR+4*(n%2)}:{OR+4*(n%2)+3}], v{vT+1} offset:{n*1024}')
        e('s_waitcnt lgkmcnt(0)')
        for n in ns:
            if n == 2: set_exec(e, 0xffffffff, 0)
            e(f'buffer_store_dwordx4 v[{OR+4*(n%2)}:{OR+4*(n%2)+3}], v{s.vXO+n}, s[{s.sO}:{s.sO+3}], 0 offen {OUTF}')
        e(f's_mov_b64 exec, s[{s.s_ex}:{s.s_ex+1}]')
    NBAR = 6
    def loader(self, spoll):
        e = self.e; s = self
        s_wb, s_l5 = 35, 36
        e(f'v_lshlrev_b32 v4, 4, v{s.vLane}')
        e(f's_mul_i32 s{s_wb}, s{s.s_db}, {5*24*1024}')
        e(f's_lshl_b32 s{s.s_t0}, s{s.s_wl}, 10')
        e(f's_add_u32 s{s_wb}, s{s_wb}, s{s.s_t0}')
        e(f's_add_u32 s{s_wb}, s{s_wb}, {WOF}')
        e(f's_mul_i32 s{s_l5}, s{s.s_wl}, 5120')
        def grp(g):
            for u in range(5):
                e(f's_add_u32 m0, s{s_l5}, {(4*g*5 + u)*1024}')
                e(f's_add_u32 s{s.s_t0}, s{s_wb}, {(u*24 + 4*g)*1024}')
                e(f'buffer_load_dwordx4 v4, s[{s.sWS}:{s.sWS+3}], s{s.s_t0} offen {LF} lds')
        e('s_sleep 4')
        for g in (0, 3, 1, 4, 2, 5): grp(g)
        e('s_barrier')
        e('s_waitcnt vmcnt(20)')
        e('s_barrier')
        spoll()
        e('s_waitcnt vmcnt(10)')
        e('s_barrier')
        e('s_waitcnt vmcnt(0)')
        e('s_barrier')
        e('s_barrier'); e('s_barrier'); e('s_barrier')
```

```python
from common import *

WSLOT = 12288; NSLOT = 5
XB0 = NSLOT * WSLOT
XST = 8192
PREP = XB0
PREPV = 11520
MISC = XB0 + 10 * XST
L_M1 = MISC; L_R1 = MISC + 256
L_CSA = MISC + 512
L_CSB = MISC + 1280
L_PS = MISC + 2048
L_PQ = MISC + 2560
L_W2 = MISC + 3072
LDS1 = 147456
import os
PREFETCH = os.environ.get('PREFETCH', '1') == '1'
XP_NOPREP = os.environ.get('XP_NOPREP', '0') == '1'
XP_NODOT = os.environ.get('XP_NODOT', '0') == '1'
XP_NOCOMP = os.environ.get('XP_NOCOMP', '0')
BLOCK1 = 768
DIAG = os.environ.get('DIAG') == '1'
CB = 128 if DIAG else 0
BARST = os.environ.get('BARST') == '1'
SENT = 0xbf800000

K1c = -2.0 * 1.4426950408889634 * 0.7978845608028654
K2c = K1c * 0.044715

KVS = 49152; KVP_ = 144; Z1L = 147456
def gen_k1(e=None, fused=False, H=None):
    if e is None: e = Emitter()
    SC = 'sc1' if fused else ''
    sX, sW, sWS, sK, sV, sT = 8, 12, 16, 20, 24, 28
    s_rb, s_cb, s_w, s_wr, s_wc, s_wl = 32, 33, 34, 35, 36, 55
    s_i, s_j, s_off, s_t0, s_t1, s_t2 = 37, 38, 39, 40, 41, 42
    s_z2b, s_z1b, s_slot, s_mask = 43, 44, 45, 47
    s_k2 = 48; s_one = 50; s_ex = 52; s_xo = 54
    sD = 4
    P = 56
    vLane, vQ, vL15 = 1, 2, 3
    vXA, vXB, vW = 4, 6, 8
    vT = 14
    XF = 26; WF = 42; ACC = 66; CS = 90; ONE = 102; SUM = 106; GR = 110; AP = 114; E = 126
    nbar = {'A': 0, 'B': 0, 'L': 0}
    def bar(role, name=''):
        e('s_barrier'); nbar[role] = nbar.get(role, 0) + 1

    e.c('---- k1: GEMM1 (LN1 folded) + gelu + LN2 + kv prep + w_out retile ; roles A(0-3) B(4-7) L(8)')
    e('s_cmp_ge_u32 s2, 256')
    e('s_cbranch_scc1 K1_END')
    stp = Stamper(); stp.start(e)
    if DIAG:
        e('s_memrealtime s[96:97]'); e('s_memtime s[98:99]')
    stp.mute = fused and os.environ.get('P1ST') != '1'
    e(f's_load_dwordx4 s[{P}:{P+3}], s[0:1], 0')
    e(f's_load_dwordx4 s[{P+4}:{P+7}], s[0:1], 16')
    e(f's_load_dwordx2 s[{P+8}:{P+9}], s[0:1], 56')
    e(f's_load_dwordx2 s[{P+10}:{P+11}], s[0:1], 80')
    e(f's_load_dwordx4 s[{P+12}:{P+15}], s[0:1], 96')
    e(f's_load_dwordx2 s[{P+18}:{P+19}], s[0:1], 64')
    e(f's_load_dwordx2 s[{P+20}:{P+21}], s[0:1], 32')
    e(f'v_and_b32 v{vLane}, 63, v0')
    e(f'v_lshrrev_b32 v{vT}, 6, v0')
    e(f'v_lshrrev_b32 v{vQ}, 4, v{vLane}')
    e(f'v_readfirstlane_b32 s{s_w}, v{vT}')
    e(f'v_and_b32 v{vL15}, 15, v{vLane}')
    e(f's_and_b32 s{s_t0}, s2, 7')
    e(f's_lshr_b32 s{s_t1}, s2, 3')
    e(f's_lshr_b32 s{s_rb}, s{s_t0}, 1')
    e(f's_lshl_b32 s{s_rb}, s{s_rb}, 3')
    e(f's_lshr_b32 s{s_t2}, s{s_t1}, 2')
    e(f's_add_u32 s{s_rb}, s{s_rb}, s{s_t2}')
    e(f's_and_b32 s{s_cb}, s{s_t0}, 1')
    e(f's_lshl_b32 s{s_cb}, s{s_cb}, 2')
    e(f's_and_b32 s{s_t2}, s{s_t1}, 3')
    e(f's_add_u32 s{s_cb}, s{s_cb}, s{s_t2}')
    e(f's_and_b32 s{s_wl}, s{s_w}, 3')
    e(f's_lshr_b32 s{s_wr}, s{s_wl}, 1')
    e(f's_and_b32 s{s_wc}, s{s_wl}, 1')
    e(f's_mov_b32 s{s_mask}, 0xffff0000')
    e(f's_mov_b64 s[{s_ex}:{s_ex+1}], exec')
    e(f's_mul_i32 s{s_z1b}, s{s_cb}, 192')
    e(f's_add_u32 s{s_z2b}, s{s_z1b}, {768*2}')
    e(f's_cmp_ge_u32 s{s_w}, 8')
    e('s_cbranch_scc0 K1_AB')

    e.c('loader (4 waves; L = w&3 handles instr n = 4h + L of each stage)')
    stL = Stamper(); stL.n = 1; stL.mute = fused
    vP, vPr = 4, 5
    VX = 8
    VW = 12
    t = 30
    s_L = s_wl
    s_xs, s_ws_, s_lb = s_j, s_off, s_slot
    e(f's_lshl_b32 s{s_t0}, s{s_rb}, 6')
    e(f's_lshl_b32 s{s_t1}, s{s_L}, 3')
    e(f's_add_u32 s{s_t0}, s{s_t0}, s{s_t1}')
    e(f's_lshl_b32 s{s_lb}, s{s_L}, 10')
    e(f'v_lshrrev_b32 v{t}, 3, v{vLane}')
    e(f'v_add_u32 v{t+2}, s{s_t1}, v{t}')
    e(f'v_lshrrev_b32 v{t+1}, 1, v{t+2}')
    e(f'v_xor_b32 v{t+1}, v{t+1}, v{vLane}')
    e(f'v_and_b32 v{t+1}, 7, v{t+1}')
    e(f'v_lshlrev_b32 v{t+1}, 4, v{t+1}')
    e(f'v_add_u32 v{t}, s{s_t0}, v{t}')
    e(f'v_mul_u32_u24 v{t}, 1280, v{t}')
    e(f'v_add_u32 v{VX}, v{t}, v{t+1}')
    e(f'v_add_u32 v{VX+1}, {32*1280}, v{VX}')
    e('s_waitcnt lgkmcnt(0)')
    stL.stamp(e)
    srd(e, sX, P, S*D*2)
    srd(e, sW, P+8, D*F*2)
    cnt = [0]; done_at = {}
    s_rot = s_i
    e(f's_and_b32 s{s_t0}, s{s_rb}, 7')
    e(f's_and_b32 s{s_t1}, s{s_cb}, 3')
    e(f's_mul_i32 s{s_t1}, s{s_t1}, 3')
    e(f's_add_u32 s{s_rot}, s{s_t0}, s{s_t1}')
    e(f's_sub_u32 s{s_t0}, s{s_rot}, 10')
    e(f's_cmp_ge_u32 s{s_rot}, 10')
    e(f's_cselect_b32 s{s_rot}, s{s_t0}, s{s_rot}')
    def kslice(j, dst):
        e(f's_add_u32 s{dst}, s{s_rot}, {j % 10}')
        e(f's_sub_u32 s{s_t0}, s{dst}, 10')
        e(f's_cmp_ge_u32 s{dst}, 10')
        e(f's_cselect_b32 s{dst}, s{s_t0}, s{dst}')
    def issue_x(j):
        kslice(j, s_xs)
        e(f's_lshl_b32 s{s_xs}, s{s_xs}, 7')
        for h in range(2):
            e(f's_add_u32 m0, s{s_lb}, {XB0 + j*XST + 4096*h}')
            e('s_nop 0')
            e(f'buffer_load_dwordx4 v{VX+h}, s[{sX}:{sX+3}], s{s_xs} offen {NT2} lds')
        cnt[0] += 2
    def issue_w(j):
        base = s_z2b if j < 10 else s_z1b
        kslice(j, s_ws_)
        e(f's_mul_i32 s{s_ws_}, s{s_ws_}, {64*3072}')
        e(f's_add_u32 s{s_ws_}, s{s_ws_}, s{base}')
        for h in range(3):
            e(f's_add_u32 m0, s{s_lb}, {(j % NSLOT)*WSLOT + 4096*h}')
            e('s_nop 0')
            e(f'buffer_load_dwordx4 v{VW+h}, s[{sW}:{sW+3}], s{s_ws_} offen {NT2} lds')
        cnt[0] += 3
    for h in range(3):
        e(f's_lshl_b32 s{s_t0}, s{s_L}, 6')
        e(f's_add_u32 s{s_t0}, s{s_t0}, {64*4*h}')
        e(f'v_add_u32 v{t}, s{s_t0}, v{vLane}')
        e(f'v_mul_u32_u24 v{t+1}, 5462, v{t}')
        e(f'v_lshrrev_b32 v{t+1}, 16, v{t+1}')
        e(f'v_mul_u32_u24 v{t+2}, 12, v{t+1}')
        e(f'v_sub_u32 v{t+2}, v{t}, v{t+2}')
        e(f'v_lshrrev_b32 v{t+3}, 2, v{t+1}')
        e(f'v_and_b32 v{t+3}, 2, v{t+3}')
        e(f'v_xor_b32 v{t+2}, v{t+2}, v{t+3}')
        e(f'v_lshlrev_b32 v{t+2}, 4, v{t+2}')
        e(f'v_mul_u32_u24 v{t+1}, 3072, v{t+1}')
        e(f'v_add_u32 v{VW+h}, v{t+1}, v{t+2}')
    stL.stamp(e)
    issue_x(0)
    issue_w(0); done_at[0] = cnt[0]
    def issue(j):
        if j < 10: issue_x(j)
        issue_w(j)
        done_at[j] = cnt[0]
    def lbar(k):
        n = cnt[0] - done_at[k]
        e(f's_waitcnt vmcnt({min(n, 63)})'); bar('L')
    vK0 = 20
    sa, sb, sc = 46, 78, 79
    PW = 6720
    def setup_prep():
        e(f'v_mul_u32_u24 v{vPr}, 6554, v{vLane}')
        e(f'v_lshrrev_b32 v{vPr}, 16, v{vPr}')
        e(f'v_mul_u32_u24 v{vP}, 10, v{vPr}')
        e(f'v_sub_u32 v{vP}, v{vLane}, v{vP}')
        e(f'v_lshlrev_b32 v{vP}, 4, v{vP}')
        e(f'v_mul_u32_u24 v{t}, 1280, v{vPr}')
        e(f'v_add_u32 v{vP}, v{vP}, v{t}')
        srd(e, sK, P+2, S*D*2)
        srd(e, sV, P+4, S*D*2)
        e(f's_lshl_b32 s{s_t0}, s{s_rb}, 6')
        e(f's_lshl_b32 s{s_t1}, s{s_L}, 4')
        e(f's_add_u32 s{s_t0}, s{s_t0}, s{s_t1}')
        e(f's_mul_i32 s{sa}, s{s_t0}, 1280')
        e(f's_mul_i32 s{s_t1}, s{s_cb}, 160')
        e(f's_add_u32 s{sa}, s{sa}, s{s_t1}')
        e(f's_mul_i32 s{sb}, s{s_L}, {PW}')
        e(f's_add_u32 s{sb}, s{sb}, {PREP}')
        e(f'v_mov_b32 v{vK0}, v{vP}')
        e(f's_sub_u32 s{sc}, s{sa}, {3*1280}')
        e(f's_cmp_eq_u32 s{s_t0}, 0')
        e('s_cbranch_scc0 K1_NONNEG')
        e(f'v_subrev_u32 v{vK0}, {3*1280}, v{vP}')
        e(f'v_cmp_gt_u32 vcc, 3, v{vPr}')
        e(f'v_mov_b32 v{t+1}, 0x80000000')
        e(f'v_cndmask_b32 v{vK0}, v{vK0}, v{t+1}, vcc')
        e(f's_mov_b32 s{sc}, s{sa}')
        e.label('K1_NONNEG')
        srd(e, sT, P+6, D*4*2)
        e(f'v_lshlrev_b32 v21, 4, v{vLane}')
        e(f's_mul_i32 s54, s{s_cb}, 640')
    def issue_prep():
        set_exec(e, 0xffffffff, 0x0fffffff)
        for n in range(4):
            e(f's_add_u32 m0, s{sb}, {n*960}')
            if n > 0: e(f's_add_u32 s{sc}, s{sa}, {(6*n-3)*1280}')
            else: e('s_nop 0')
            e(f'buffer_load_dwordx4 v{vK0 if n == 0 else vP}, s[{sK}:{sK+3}], s{sc} offen {NT1} lds')
        for n in range(3):
            e(f's_add_u32 m0, s{sb}, {3840 + n*960}')
            e(f's_add_u32 s{sc}, s{sa}, {6*n*1280}')
            e(f'buffer_load_dwordx4 v{vP}, s[{sV}:{sV+3}], s{sc} offen {NT1} lds')
        e(f's_mov_b64 exec, s[{s_ex}:{s_ex+1}]')
        e(f'buffer_load_dwordx4 v[156:159], v21, s[{sT}:{sT+3}], s54 offen')
        cnt[0] += 8
    def prefetch_tail():
        e(f'v_lshlrev_b32 v{t}, 6, v{vLane}')
        e(f's_and_b32 s{s_t0}, s2, 7')
        e(f's_lshl_b32 s{s_t0}, s{s_t0}, 8')
        e(f's_lshr_b32 s{s_t1}, s2, 3')
        e(f's_lshl_b32 s{s_t1}, s{s_t1}, 3')
        e(f's_add_u32 s{s_t0}, s{s_t0}, s{s_t1}')
        e(f's_lshl_b32 s{s_t1}, s{s_L}, 1')
        e(f's_add_u32 s{s_t0}, s{s_t0}, s{s_t1}')
        e(f's_lshl_b32 s{s_t0}, s{s_t0}, 12')
        srd(e, sK, P+18, S*S*2)
        for r in range(2):
            e(f'buffer_load_dword v{t+1+r}, v{t}, s[{sK}:{sK+3}], s{s_t0} offen')
            e(f's_add_u32 s{s_t0}, s{s_t0}, 4096')
        srd(e, sV, P+20, D*S*2)
        e(f's_mul_i32 s{s_t0}, s2, 3')
        e(f's_add_u32 s{s_t0}, s{s_t0}, s{s_L}')
        e(f's_lshl_b32 s{s_t0}, s{s_t0}, 12')
        e(f's_cmp_eq_u32 s{s_L}, 3')
        e(f's_cselect_b32 s{s_t0}, 0x80000000, s{s_t0}')
        e(f'buffer_load_dword v{t+5}, v{t}, s[{sV}:{sV+3}], s{s_t0} offen')
        cnt[0] += 3
    xs = {1: [1, 2], 2: [3, 4], 3: [5, 6], 4: [7, 8], 5: [9]}
    wn = 1
    if os.environ.get('UP1', '1') == '1':
        issue_x(1); issue_w(1); done_at[1] = cnt[0]; wn = 2
        xs = {1: [2, 3], 2: [4, 5], 3: [6, 7], 4: [8, 9]}
    for k in range(20):
        if k >= 1:
            lim = {1: 3 if os.environ.get('UP1', '1') == '1' else 2, 2: 4}.get(k, min(19, k + 2 if k <= 5 else k + 3))
            todo_x = list(xs.get(k, []))
            while wn <= lim or todo_x:
                if todo_x: issue_x(todo_x.pop(0))
                if wn <= lim:
                    issue_w(wn); done_at[wn] = cnt[0]; wn += 1
                    if wn == 20: issue_prep()
        if k == 11: setup_prep()
        lbar(k)
        if k in (0, 1): stL.stamp(e)
    assert wn == 20
    SKL = 156; KR = 40; VRr = 59; KP = 76; CP = 114; KVP = 122; OUT = 40
    vt = 30
    e('s_waitcnt vmcnt(0)')
    e(f'v_lshlrev_b32 v{vt}, 2, v{vLane}')
    e(f'v_min_u32 v{vt}, 156, v{vt}')
    e(f'v_add_u32 v{vt}, s{sb}, v{vt}')
    for r in range(19):
        e(f'ds_read_b32 v{KR+r}, v{vt} offset:{r*160}')
        if r == 13: e('s_waitcnt lgkmcnt(6)')
    bar('L')
    for r in range(16):
        if r in (2, 10): e('s_waitcnt lgkmcnt(6)')
        e(f'ds_read_b32 v{VRr+r}, v{vt} offset:{3840 + r*160}')
    e(f'v_lshlrev_b32 v{CP+0}, 16, v{SKL+0}'); e(f'v_lshlrev_b32 v{CP+1}, 16, v{SKL+2}')
    e(f'v_and_b32 v{CP+2}, s{s_mask}, v{SKL+0}'); e(f'v_and_b32 v{CP+3}, s{s_mask}, v{SKL+2}')
    e(f'v_lshlrev_b32 v{CP+4}, 16, v{SKL+1}'); e(f'v_lshlrev_b32 v{CP+5}, 16, v{SKL+3}')
    e(f'v_and_b32 v{CP+6}, s{s_mask}, v{SKL+1}'); e(f'v_and_b32 v{CP+7}, s{s_mask}, v{SKL+3}')
    e('s_waitcnt lgkmcnt(0)')
    bar('L')
    for r in range(19):
        e(f'v_lshlrev_b32 v{KP+2*r}, 16, v{KR+r}')
        e(f'v_and_b32 v{KP+2*r+1}, s{s_mask}, v{KR+r}')
    for i in range(16):
        t_ = KVP + 2*i
        e(f'v_pk_mul_f32 v[{t_}:{t_+1}], v[{CP+6}:{CP+7}], v[{KP+2*i}:{KP+2*i+1}]')
        e(f'v_lshlrev_b32 v{vt+2}, 16, v{VRr+i}')
        e(f'v_pk_fma_f32 v[{t_}:{t_+1}], v[{CP+4}:{CP+5}], v[{KP+2*i+2}:{KP+2*i+3}], v[{t_}:{t_+1}]')
        e(f'v_and_b32 v{vt+3}, s{s_mask}, v{VRr+i}')
        e(f'v_pk_fma_f32 v[{t_}:{t_+1}], v[{CP+2}:{CP+3}], v[{KP+2*i+4}:{KP+2*i+5}], v[{t_}:{t_+1}]')
        e(f'v_pk_fma_f32 v[{t_}:{t_+1}], v[{CP+0}:{CP+1}], v[{KP+2*i+6}:{KP+2*i+7}], v[{t_}:{t_+1}]')
        e(f'v_pk_mul_f32 v[{t_}:{t_+1}], v[{t_}:{t_+1}], v[{vt+2}:{vt+3}]')
    for dd in range(2):
        for g in range(2):
            for n in range(4):
                lo = KVP + 2*(8*g + 7 - 2*n) + dd
                hi = KVP + 2*(8*g + 6 - 2*n) + dd
                e(f'v_cvt_pk_bf16_f32 v{OUT + dd*8 + g*4 + n}, v{lo}, v{hi}')
    e(f'v_mul_u32_u24 v{vt}, {2*KVP_}, v{vLane}')
    e(f's_lshl_b32 s{s_t0}, s{s_wl}, 5')
    e(f's_add_u32 s{s_t0}, s{s_t0}, {KVS}')
    e(f'v_add_u32 v{vt}, s{s_t0}, v{vt}')
    set_exec(e, 0xffffffff, 0xff)
    for dd in range(2):
        for g in range(2):
            o = OUT + dd*8 + g*4
            e(f'ds_write_b128 v{vt}, v[{o}:{o+3}] offset:{dd*KVP_ + g*16}')
    e(f's_mov_b64 exec, s[{s_ex}:{s_ex+1}]')
    H.l2_pre(e)
    e('s_waitcnt lgkmcnt(0)')
    H.after_L(e, bar)
    if STAMPS and not fused:
        srd(e, sWS, P+14, WS_SIZE) if False else None
        e(f's_load_dwordx2 s[{P+14}:{P+15}], s[0:1], 104')
        e('s_waitcnt lgkmcnt(0)')
        srd(e, sWS, P+14, WS_SIZE)
        stL.flush(e, 3, sWS, t, s_wl)
    if not fused: e('s_endpgm')

    e.label('K1_AB')
    e(f'v_lshrrev_b32 v{vT+3}, 1, v{vL15}')
    e(f'v_xor_b32 v{vT+3}, v{vT+3}, v{vQ}')
    e(f'v_lshlrev_b32 v{vT+3}, 4, v{vT+3}')
    e(f'v_lshlrev_b32 v{vT+4}, 7, v{vL15}')
    e(f'v_add_u32 v{vT+3}, v{vT+3}, v{vT+4}')
    e(f'v_xor_b32 v{vT+4}, 64, v{vT+3}')
    e(f's_lshl_b32 s{s_t0}, s{s_wr}, 12')
    e(f's_lshl_b32 s{s_t1}, s{s_wc}, 11')
    e(f's_add_u32 s{s_t2}, s{s_t0}, s{s_t1}')
    e(f's_add_u32 s{s_t2}, s{s_t2}, {XB0}')
    e(f'v_add_u32 v{vXA}, s{s_t2}, v{vT+3}')
    e(f'v_add_u32 v{vXA+1}, s{s_t2}, v{vT+4}')
    e(f's_xor_b32 s{s_t1}, s{s_t1}, 2048')
    e(f's_add_u32 s{s_t2}, s{s_t0}, s{s_t1}')
    e(f's_add_u32 s{s_t2}, s{s_t2}, {XB0}')
    e(f'v_add_u32 v{vXB}, s{s_t2}, v{vT+3}')
    e(f'v_add_u32 v{vXB+1}, s{s_t2}, v{vT+4}')
    e(f'v_lshrrev_b32 v{vT+3}, 2, v{vLane}')
    e(f'v_and_b32 v{vT+3}, 3, v{vT+3}')
    e(f'v_lshlrev_b32 v{vT+4}, 3, v{vQ}')
    e(f'v_add_u32 v{vT+3}, v{vT+3}, v{vT+4}')
    e(f'v_mul_u32_u24 v{vT+3}, 192, v{vT+3}')
    e(f'v_and_b32 v{vT+4}, 3, v{vLane}')
    e(f'v_lshlrev_b32 v{vT+4}, 3, v{vT+4}')
    e(f'v_add_u32 v{vT+3}, v{vT+3}, v{vT+4}')
    e(f'v_and_b32 v{vT+5}, 1, v{vQ}')
    e(f's_mul_i32 s{s_t0}, s{s_wc}, 3')
    for ft in range(3):
        e(f's_add_u32 s{s_t1}, s{s_t0}, {ft}')
        e(f'v_xor_b32 v{vT+4}, s{s_t1}, v{vT+5}')
        e(f'v_lshlrev_b32 v{vT+4}, 5, v{vT+4}')
        e(f'v_add_u32 v{vW+ft}, v{vT+3}, v{vT+4}')
    e(f's_mov_b32 s{s_k2}, {hexf(K2c)}'); e(f's_mov_b32 s{s_k2+1}, {hexf(K2c)}')
    e(f's_mov_b32 s{s_one}, 1.0'); e(f's_mov_b32 s{s_one+1}, 1.0')
    e('s_waitcnt lgkmcnt(0)')
    srd(e, sWS, P+14, WS_SIZE)
    srd(e, sD, P+12, 256)
    e(f's_cmp_ge_u32 s{s_w}, 4')
    e('s_cbranch_scc1 K1_B')

    def rd_list(buf, ksl, xoff, woff):
        L = []
        L.append(f'ds_read_b128 v[{XF+buf*8}:{XF+buf*8+3}], v{vXA+ksl} offset:{xoff}')
        for ft in range(3):
            b = WF + buf*12 + ft*4
            L.append(f'ds_read_b64_tr_b16 v[{b}:{b+1}], v{vW+ft} offset:{woff+ksl*6144}')
            L.append(f'ds_read_b64_tr_b16 v[{b+2}:{b+3}], v{vW+ft} offset:{woff+ksl*6144+768}')
            if ft == 0:
                L.append(f'ds_read_b128 v[{XF+buf*8+4}:{XF+buf*8+7}], v{vXB+ksl} offset:{xoff}')
        return L
    def phase(buf, ksl, p, tag, nxt_reads):
        mf = []
        for ft in range(3):
            for T in range(2):
                a = ACC + (T*3+ft)*4
                x = f'v[{XF+buf*8+T*4}:{XF+buf*8+T*4+3}]'
                w = f'v[{WF+buf*12+ft*4}:{WF+buf*12+ft*4+3}]'
                if p == 1: mf.append(f'v_mfma_f32_16x16x32_bf16 v[{a}:{a+3}], {x}, {w}, v[{a}:{a+3}]')
                else:      mf.append(f'v_mfma_f32_16x16x32_bf16 v[{a}:{a+3}], {w}, {x}, v[{a}:{a+3}]')
        fills = [nxt_reads[0:2], nxt_reads[2:4], nxt_reads[4:6], nxt_reads[6:8], [], []]
        if p == 1 and not XP_NODOT:
            x = f'v[{XF+buf*8}:{XF+buf*8+3}]'
            mf.append(f'v_mfma_f32_16x16x32_bf16 v[{SUM}:{SUM+3}], v[{ONE}:{ONE+3}], {x}, v[{SUM}:{SUM+3}]')
            mf.append(f'v_mfma_f32_16x16x32_bf16 v[{GR}:{GR+3}], {x}, {x}, v[{GR}:{GR+3}]')
        if XP_NOCOMP == '2': fills = [[] for _ in fills]
        if XP_NOCOMP == '3': mf = ['s_nop 0'] * len(mf)
        weave(e, mf, fills)
        e(f's_cmp_eq_u32 s{s_wr}, {ksl}')
        e(f's_cbranch_scc0 K1_SK_{tag}')
        for ft in range(3):
            a = CS + ft*4
            w = f'v[{WF+buf*12+ft*4}:{WF+buf*12+ft*4+3}]'
            o = f'v[{ONE}:{ONE+3}]'
            if p == 1: e(f'v_mfma_f32_16x16x32_bf16 v[{a}:{a+3}], {o}, {w}, v[{a}:{a+3}]')
            else:      e(f'v_mfma_f32_16x16x32_bf16 v[{a}:{a+3}], {w}, {o}, v[{a}:{a+3}]')
        e.label(f'K1_SK_{tag}')
    def init_acc():
        for i in range(4): e(f'v_mov_b32 v{ONE+i}, 0x3f803f80')
        for i in range(24): e(f'v_mov_b32 v{ACC+i}, 0')
        for i in range(12): e(f'v_mov_b32 v{CS+i}, 0')
        for i in range(8): e(f'v_mov_b32 v{SUM+i}, 0')
    def loop(p, role):
        L = f'K1_LOOP{p}'
        if BARST:
            e('s_mov_b32 m0, 0'); e('s_memtime s[90:91]'); e('v_mov_b32 v150, 0')
        if XP_NOCOMP == '1':
            for _ in range(10): bar(role)
            return
        e(f's_mov_b32 s{s_i}, 0')
        for x in rd_list(0, 0, 0, 0): e(x)
        e.label(L)
        for u in range(5):
            e('s_waitcnt lgkmcnt(0)')
            phase(0, 0, p, f'{p}a{u}', rd_list(1, 1, u*XST, u*WSLOT))
            e('s_waitcnt lgkmcnt(0)')
            if BARST:
                e('v_writelane_b32 v150, s90, m0')
                e('s_add_u32 m0, m0, 1')
            e('s_barrier')
            if BARST: e('s_memtime s[90:91]')
            if u == 4:
                for r in (vXA, vXA+1, vXB, vXB+1):
                    e(f'v_add_u32 v{r}, {5*XST}, v{r}')
                nx = rd_list(0, 0, 0, 0)
            else:
                nx = rd_list(0, 0, (u+1)*XST, (u+1)*WSLOT)
            phase(1, 1, p, f'{p}b{u}', nx)
            if p == 2 and PREFETCH and (not fused or os.environ.get('TOUCH', 'p2') == 'p2'):
                e(f's_and_b32 s{s_t0}, s46, 3')
                e(f's_cmp_eq_u32 s{s_t0}, s{s_wl}')
                e(f's_cbranch_scc0 K1_NT{u}')
                e('s_cmp_lt_u32 s46, 8')
                e(f's_cbranch_scc0 K1_NT{u}')
                e(f'buffer_load_dword v148, v144, s[{sK}:{sK+3}], s54 offen')
                e.label(f'K1_NT{u}')
                e('s_add_u32 s46, s46, 1')
                e('s_add_u32 s54, s54, 4096')
        e(f's_add_u32 s{s_i}, s{s_i}, 1')
        e(f's_cmp_lt_u32 s{s_i}, 2')
        e(f's_cbranch_scc1 {L}')
        nbar[role] += 10
        if BARST:
            e('s_waitcnt lgkmcnt(0)')
            e('v_writelane_b32 v150, s90, m0')
            e(f's_lshl_b32 s{s_t0}, s2, 3'); e(f's_add_u32 s{s_t0}, s{s_t0}, s{s_w}'); e(f's_lshl_b32 s{s_t0}, s{s_t0}, 6')
            e(f's_add_u32 s{s_t0}, s{s_t0}, {TSB + 3*0x40000}')
            e(f'v_lshlrev_b32 v151, 2, v{vLane}')
            set_exec(e, 0xffff, 0)
            e(f'buffer_store_dword v150, v151, s[{sWS}:{sWS+3}], s{s_t0} offen')
            e(f's_mov_b64 exec, s[{s_ex}:{s_ex+1}]')
    K1V = E + 0
    G = E + 2
    def gelu_pair_sc(t, u):
        for h in range(2):
            e(f'v_mul_f32 v{u+h}, v{t+h}, v{t+h}')
        for h in range(2):
            e(f'v_fma_f32 v{u+h}, v{u+h}, s{s_k2}, v{K1V}')
        for h in range(2):
            e(f'v_mul_f32 v{u+h}, v{u+h}, v{t+h}')
        for h in range(2):
            e(f'v_exp_f32 v{u+h}, v{u+h}')
        for h in range(2):
            e(f'v_add_f32 v{u+h}, 1.0, v{u+h}')
        for h in range(2):
            e(f'v_rcp_f32 v{u+h}, v{u+h}')
        for h in range(2):
            e(f'v_mul_f32 v{u+h}, v{u+h}, v{t+h}')
    def gelu_pair(t, u):
        e(f'v_pk_mul_f32 v[{u}:{u+1}], v[{t}:{t+1}], v[{t}:{t+1}]')
        e(f'v_pk_fma_f32 v[{u}:{u+1}], v[{u}:{u+1}], s[{s_k2}:{s_k2+1}], v[{K1V}:{K1V+1}]')
        e(f'v_pk_mul_f32 v[{u}:{u+1}], v[{u}:{u+1}], v[{t}:{t+1}]')
        e(f'v_exp_f32 v{u}, v{u}')
        e(f'v_exp_f32 v{u+1}, v{u+1}')
        e(f'v_pk_add_f32 v[{u}:{u+1}], v[{u}:{u+1}], s[{s_one}:{s_one+1}]')
        e(f'v_rcp_f32 v{u}, v{u}')
        e(f'v_rcp_f32 v{u+1}, v{u+1}')
        e(f'v_pk_mul_f32 v[{u}:{u+1}], v[{u}:{u+1}], v[{t}:{t+1}]')

    e.c('role A')
    init_acc()
    bar('A')
    stp.stamp(e)
    loop(1, 'A')
    stp.stamp(e)
    e.c('A epilogue')
    e('s_setprio 2')
    e(f's_lshl_b32 s{s_t0}, s{s_rb}, 2')
    e(f'v_mov_b32 v{vT+8}, s{s_t0}')
    PC = vT + 9
    e(f'v_and_b32 v{vT}, 3, v{vL15}')
    e(f'v_cmp_eq_u32 vcc, 1, v{vT}')
    e(f'v_cndmask_b32 v{GR}, v{GR}, v{GR+1}, vcc')
    e(f'v_cmp_eq_u32 vcc, 2, v{vT}')
    e(f'v_cndmask_b32 v{GR}, v{GR}, v{GR+2}, vcc')
    e(f'v_cmp_eq_u32 vcc, 3, v{vT}')
    e(f'v_cndmask_b32 v{GR}, v{GR}, v{GR+3}, vcc')
    ln_finalize(e, SUM, GR, D, vT+2, vT+3, vT+4, vT+5)
    e(f's_lshl_b32 s{s_t0}, s{s_wr}, 5')
    e(f's_lshl_b32 s{s_t1}, s{s_wc}, 4')
    e(f's_add_u32 s{s_t0}, s{s_t0}, s{s_t1}')
    e(f'v_add_u32 v{vT+4}, s{s_t0}, v{vL15}')
    e(f'v_lshlrev_b32 v{vT+5}, 2, v{vT+4}')
    e(f'v_add_u32 v{vT+5}, {L_M1}, v{vT+5}')
    set_exec(e, 0x00f0000f, 0xf0000f00)
    e(f'ds_write_b32 v{vT+5}, v{vT+2}')
    e(f'ds_write_b32 v{vT+5}, v{vT+3} offset:256')
    if fused: e('s_branch K1_NOST1X')
    e(f's_cmp_eq_u32 s{s_cb}, 0')
    e('s_cbranch_scc0 K1_NOST1X')
    e(f's_lshl_b32 s{s_t1}, s{s_rb}, 9')
    e(f's_add_u32 s{s_t1}, s{s_t1}, {ST1}')
    e(f'v_lshlrev_b32 v{vT+4}, 3, v{vT+4}')
    e(f'buffer_store_dwordx2 v[{vT+2}:{vT+3}], v{vT+4}, s[{sWS}:{sWS+3}], s{s_t1} offen {SC}')
    e.label('K1_NOST1X')
    e(f's_mov_b64 exec, s[{s_ex}:{s_ex+1}]')
    e(f's_mul_i32 s{s_t0}, s{s_wl}, 192')
    e(f's_add_u32 s{s_t0}, s{s_t0}, {L_CSA}')
    e(f'v_lshlrev_b32 v{vT+6}, 2, v{vL15}')
    e(f'v_add_u32 v{vT+6}, s{s_t0}, v{vT+6}')
    for ft in range(3):
        e(f'ds_write_b32 v{vT+6}, v{CS+ft*4} offset:{ft*64}')
    e('s_waitcnt lgkmcnt(0)')
    bar('A')
    e(f's_xor_b32 s{s_t1}, s{s_wl}, 2')
    e(f's_mul_i32 s{s_t1}, s{s_t1}, 192')
    e(f's_add_u32 s{s_t1}, s{s_t1}, {L_CSA}')
    e(f'v_lshlrev_b32 v{vT+4}, 2, v{vL15}')
    e(f'v_add_u32 v{vT+4}, s{s_t1}, v{vT+4}')
    NCS = E + 10
    for ft in range(3):
        e(f'ds_read_b32 v{NCS+2*ft}, v{vT+4} offset:{ft*64}')
    M1 = XF
    R1 = XF + 8
    e(f's_lshl_b32 s{s_t0}, s{s_wr}, 7')
    e(f's_lshl_b32 s{s_t1}, s{s_wc}, 6')
    e(f's_add_u32 s{s_t0}, s{s_t0}, s{s_t1}')
    e(f's_add_u32 s{s_t0}, s{s_t0}, {L_M1}')
    e(f'v_lshlrev_b32 v{vT+5}, 4, v{vQ}')
    e(f'v_add_u32 v{vT+5}, s{s_t0}, v{vT+5}')
    e(f'v_xor_b32 v{vT+6}, 64, v{vT+5}')
    e(f'ds_read_b128 v[{M1}:{M1+3}], v{vT+5}')
    e(f'ds_read_b128 v[{M1+4}:{M1+7}], v{vT+6}')
    e(f'ds_read_b128 v[{R1}:{R1+3}], v{vT+5} offset:256')
    e(f'ds_read_b128 v[{R1+4}:{R1+7}], v{vT+6} offset:256')
    e(f'v_mov_b32 v{K1V}, {hexf(K1c)}'); e(f'v_mov_b32 v{K1V+1}, {hexf(K1c)}')
    SA = WF
    for i in range(16): e(f'v_mov_b32 v{SA+i}, 0')
    e('s_waitcnt lgkmcnt(0)')
    for ft in range(3):
        e(f'v_add_f32 v{NCS+2*ft}, v{NCS+2*ft}, v{CS+ft*4}')
        e(f'v_sub_f32 v{NCS+2*ft}, 0, v{NCS+2*ft}')
    AEP = os.environ.get('AEP', 'sc')
    if AEP == 'pk':
        for ft in range(3):
            for T in range(2):
                for p in range(2):
                    a = ACC + (T*3+ft)*4 + 2*p
                    n = NCS + 2*ft
                    g = G + 4*p
                    e(f'v_pk_fma_f32 v[{a}:{a+1}], v[{M1+T*4+2*p}:{M1+T*4+2*p+1}], v[{n}:{n+1}], v[{a}:{a+1}] op_sel_hi:[1,0,1]')
                    e(f'v_pk_mul_f32 v[{a}:{a+1}], v[{a}:{a+1}], v[{R1+T*4+2*p}:{R1+T*4+2*p+1}]')
                    gelu_pair(a, g)
                    e(f'v_cvt_pk_bf16_f32 v{AP+ft*4+T*2+p}, v{g}, v{g+1}')
                    s_ = SA + T*4 + 2*p
                    e(f'v_pk_add_f32 v[{s_}:{s_+1}], v[{s_}:{s_+1}], v[{g}:{g+1}]')
                    e(f'v_pk_fma_f32 v[{s_+8}:{s_+9}], v[{g}:{g+1}], v[{g}:{g+1}], v[{s_+8}:{s_+9}]')
    else:
        npair = 0
        for ft in range(3):
            for T in range(2):
                for p in range(2):
                    a = ACC + (T*3+ft)*4 + 2*p
                    n = NCS + 2*ft
                    g = G + 4*p
                    for h in range(2):
                        e(f'v_fma_f32 v{a+h}, v{M1+T*4+2*p+h}, v{n}, v{a+h}')
                    for h in range(2):
                        e(f'v_mul_f32 v{a+h}, v{a+h}, v{R1+T*4+2*p+h}')
                    gelu_pair_sc(a, g)
                    e(f'v_cvt_pk_bf16_f32 v{AP+ft*4+T*2+p}, v{g}, v{g+1}')
                    s_ = SA + T*4 + 2*p
                    for h in range(2):
                        e(f'v_add_f32 v{s_+h}, v{s_+h}, v{g+h}')
                    for h in range(2):
                        e(f'v_fma_f32 v{s_+8+h}, v{g+h}, v{g+h}, v{s_+8+h}')
                    npair += 1
                    if npair in (2, 5, 7, 10, 12): bar('A')
    for k, sh in enumerate((8, 4, 2, 1)):
        for i in range(16):
            e(f'v_add_f32_dpp v{SA+i}, v{SA+i}, v{SA+i} row_ror:{sh} row_mask:0xf bank_mask:0xf')
    e(f's_lshl_b32 s{s_t0}, s{s_wc}, 8')
    e(f's_add_u32 s{s_t0}, s{s_t0}, {L_PS - L_M1}')
    e(f'v_add_u32 v{vT+5}, s{s_t0}, v{vT+5}')
    e(f'v_add_u32 v{vT+6}, s{s_t0}, v{vT+6}')
    set_exec(e, 0x00010001, 0x00010001)
    e(f'ds_write_b128 v{vT+5}, v[{SA}:{SA+3}]')
    e(f'ds_write_b128 v{vT+6}, v[{SA+4}:{SA+7}]')
    e(f'ds_write_b128 v{vT+5}, v[{SA+8}:{SA+11}] offset:{L_PQ-L_PS}')
    e(f'ds_write_b128 v{vT+6}, v[{SA+12}:{SA+15}] offset:{L_PQ-L_PS}')
    e(f's_mov_b64 exec, s[{s_ex}:{s_ex+1}]')
    e('s_waitcnt lgkmcnt(0)')
    bar('A')
    e(f's_cmp_eq_u32 s{s_w}, 0')
    e('s_cbranch_scc0 K1_NOPUB')
    e(f'v_lshlrev_b32 v{vT}, 2, v{vLane}')
    e(f'v_add_u32 v{vT}, {L_PS}, v{vT}')
    e(f'ds_read_b32 v{vT+2}, v{vT}')
    e(f'ds_read_b32 v{vT+4}, v{vT} offset:256')
    e(f'ds_read_b32 v{vT+3}, v{vT} offset:{L_PQ-L_PS}')
    e(f'ds_read_b32 v{vT+5}, v{vT} offset:{L_PQ-L_PS+256}')
    e(f's_lshl_b32 s{s_t0}, s{s_rb}, 3')
    e(f's_add_u32 s{s_t0}, s{s_t0}, s{s_cb}')
    e(f's_lshl_b32 s{s_t0}, s{s_t0}, 9')
    e(f's_add_u32 s{s_t0}, s{s_t0}, {XCH}')
    e(f'v_lshlrev_b32 v{vT+1}, 3, v{vLane}')
    e('s_waitcnt lgkmcnt(0)')
    e(f'v_add_f32 v{vT+2}, v{vT+2}, v{vT+4}')
    e(f'v_add_f32 v{vT+3}, v{vT+3}, v{vT+5}')
    e(f'v_max_f32 v{vT+3}, 0, v{vT+3}')
    e(f'buffer_store_dwordx2 v[{vT+2}:{vT+3}], v{vT+1}, s[{sWS}:{sWS+3}], s{s_t0} offen sc1')
    e.label('K1_NOPUB')
    stp.stamp(e)
    e(f's_mul_i32 s{s_t0}, s{s_cb}, 6')
    e(f's_mul_i32 s{s_t1}, s{s_wc}, 3')
    e(f's_add_u32 s{s_t0}, s{s_t0}, s{s_t1}')
    e(f's_lshl_b32 s{s_t0}, s{s_t0}, 6')
    e(f's_lshl_b32 s{s_t1}, s{s_rb}, 1')
    e(f's_add_u32 s{s_t0}, s{s_t0}, s{s_t1}')
    e(f's_add_u32 s{s_t0}, s{s_t0}, s{s_wr}')
    e(f's_lshl_b32 s{s_t0}, s{s_t0}, 10')
    e(f's_add_u32 s{s_off}, s{s_t0}, {Z2F}')
    e(f'v_and_b32 v{vT+7}, 1, v{vQ}')
    e(f'v_lshlrev_b32 v{vT+7}, 1, v{vT+7}')
    e(f'v_lshrrev_b32 v{vT+10}, 1, v{vQ}')
    e(f'v_or_b32 v{vT+7}, v{vT+7}, v{vT+10}')
    e(f's_lshl_b32 s{s_t1}, s{s_wc}, 1')
    e(f'v_xor_b32 v{vT+7}, s{s_t1}, v{vT+7}')
    e(f'v_lshlrev_b32 v{vT+7}, 4, v{vT+7}')
    e(f'v_add_u32 v{vT+7}, v{vT+7}, v{vL15}')
    e(f'v_lshlrev_b32 v{vT+7}, 4, v{vT+7}')
    e(f'v_and_b32 v{vT+10}, 31, v{vLane}')
    e(f's_lshl_b32 s{s_j}, s{s_wr}, 5')
    e(f'v_add_u32 v{vT+10}, s{s_j}, v{vT+10}')
    e(f'v_lshlrev_b32 v{vT+10}, 3, v{vT+10}')
    e(f's_lshl_b32 s{s_j}, s{s_rb}, 12')
    e(f's_add_u32 s{s_j}, s{s_j}, {XCH}')
    e(f'buffer_load_dword v{PC}, v{vT+8}, s[{sD}:{sD+3}], 0 offen offset:{CB} sc1')
    for _ in range(4 if AEP == 'pk' else 3): bar('A')
    e('s_waitcnt vmcnt(0)')
    e('s_mov_b32 s54, 0')
    e.label('K1_CCHK')
    e(f'v_readfirstlane_b32 s{s_t0}, v{PC}')
    e(f's_cmp_ge_u32 s{s_t0}, 8')
    e('s_cbranch_scc1 K1_COK')
    e('s_add_u32 s54, s54, 1')
    e('s_cmp_lt_u32 s54, 0x200000')
    e('s_cbranch_scc0 K1_COK')
    e('s_sleep 4')
    e(f'buffer_load_dword v{PC}, v{vT+8}, s[{sD}:{sD+3}], 0 offen offset:{CB} sc1')
    e('s_waitcnt vmcnt(0)')
    e('s_branch K1_CCHK')
    e.label('K1_COK')
    XP = WF + 2
    for c in range(8):
        e(f'buffer_load_dwordx2 v[{XP+2*c}:{XP+2*c+1}], v{vT+10}, s[{sWS}:{sWS+3}], s{s_j} offen offset:{c*512} sc1')
    if AEP == 'pk':
        for _ in range(3): bar('A')
        e('s_waitcnt vmcnt(0)')
        APK_CHECK = True
    else:
        bar('A')
        e('s_setprio 0')
        e('s_waitcnt vmcnt(0)')
    e('s_mov_b32 s54, 0')
    e.label('K1_CHECK')
    e(f's_mov_b32 s{s_t0}, {hex(SENT)}')
    e(f'v_cmp_eq_u32 vcc, s{s_t0}, v{XP+1}')
    for c in range(1, 8):
        e(f'v_cmp_eq_u32 s[{P}:{P+1}], s{s_t0}, v{XP+2*c+1}')
        e(f's_or_b64 vcc, vcc, s[{P}:{P+1}]')
    e('s_cmp_eq_u64 vcc, 0')
    e('s_cbranch_scc1 K1_POLLED')
    e('s_add_u32 s54, s54, 1')
    e('s_cmp_lt_u32 s54, 0x200000')
    e('s_cbranch_scc0 K1_POLLED')
    for c in range(8):
        e(f'buffer_load_dwordx2 v[{XP+2*c}:{XP+2*c+1}], v{vT+10}, s[{sWS}:{sWS+3}], s{s_j} offen offset:{c*512} sc1')
    e('s_waitcnt vmcnt(0)')
    e('s_branch K1_CHECK')
    e.label('K1_POLLED')
    stp.stamp(e)
    for c in range(1, 8):
        e(f'v_pk_add_f32 v[{XP}:{XP+1}], v[{XP}:{XP+1}], v[{XP+2*c}:{XP+2*c+1}]')
    ln_finalize(e, XP, XP+1, FH, vT+2, vT+3, vT+4, vT+5)
    e(f'v_mul_f32 v{vT+2}, v{vT+2}, v{vT+3}')
    e(f'v_sub_f32 v{vT+2}, 0, v{vT+2}')
    e(f's_lshl_b32 s{s_t0}, s{s_wl}, 8')
    e(f's_add_u32 s{s_t0}, s{s_t0}, {L_W2}')
    e(f'v_and_b32 v{vT+4}, 31, v{vLane}')
    e(f'v_lshlrev_b32 v{vT+4}, 2, v{vT+4}')
    e(f'v_add_u32 v{vT+4}, s{s_t0}, v{vT+4}')
    e(f'ds_write_b32 v{vT+4}, v{vT+2}')
    e(f'ds_write_b32 v{vT+4}, v{vT+3} offset:128')
    e(f's_lshl_b32 s{s_t1}, s{s_wc}, 6')
    e(f's_add_u32 s{s_t0}, s{s_t0}, s{s_t1}')
    e(f'v_lshlrev_b32 v{vT+5}, 4, v{vQ}')
    e(f'v_add_u32 v{vT+5}, s{s_t0}, v{vT+5}')
    e(f'v_xor_b32 v{vT+6}, 64, v{vT+5}')
    e('s_waitcnt lgkmcnt(0)')
    e(f'ds_read_b128 v[{M1}:{M1+3}], v{vT+5}')
    e(f'ds_read_b128 v[{M1+4}:{M1+7}], v{vT+6}')
    e(f'ds_read_b128 v[{R1}:{R1+3}], v{vT+5} offset:128')
    e(f'ds_read_b128 v[{R1+4}:{R1+7}], v{vT+6} offset:128')
    if AEP == 'pk':
        bar('A'); bar('A')
        e('s_setprio 0')
    e('s_waitcnt lgkmcnt(0)')
    for ft in range(3):
        for T in range(2):
            for p in range(2):
                a = AP + ft*4 + T*2 + p
                g = G + 4*p
                e(f'v_lshlrev_b32 v{g}, 16, v{a}')
                e(f'v_and_b32 v{g+1}, s{s_mask}, v{a}')
                e(f'v_pk_fma_f32 v[{g}:{g+1}], v[{g}:{g+1}], v[{R1+T*4+2*p}:{R1+T*4+2*p+1}], v[{M1+T*4+2*p}:{M1+T*4+2*p+1}]')
                e(f'v_cvt_pk_bf16_f32 v{a}, v{g}, v{g+1}')
        b = AP + ft*4
        e(f'v_permlane16_swap_b32 v{b}, v{b+2}')
        e(f'v_permlane16_swap_b32 v{b+1}, v{b+3}')
        e(f's_add_u32 s{s_t1}, s{s_off}, {ft*65536}')
        e(f'buffer_store_dwordx4 v[{b}:{b+3}], v{vT+7}, s[{sWS}:{sWS+3}], s{s_t1} offen sc1')
    if fused:
        H.after_A(e, stp, bar)
    else:
        stp.flush(e, 0, sWS, vT, s_w)
        e('s_endpgm')

    e.label('K1_B')
    e.c('role B')
    stB = Stamper(); stB.n = 1; stB.mute = fused and os.environ.get('P1ST') != '1'
    SK = 160; WR = 152; WO = 164
    e(f's_cmp_eq_u32 s{s_w}, 4')
    e('s_cbranch_scc0 K1_NORST')
    e(f's_lshl_b32 s{s_t0}, s{s_rb}, 3')
    e(f's_add_u32 s{s_t0}, s{s_t0}, s{s_cb}')
    e(f's_lshl_b32 s{s_t0}, s{s_t0}, 9')
    e(f's_add_u32 s{s_t0}, s{s_t0}, {XCH}')
    e(f'v_lshlrev_b32 v{vT+1}, 3, v{vLane}')
    e(f'v_mov_b32 v{vT+6}, 0')
    e(f'v_mov_b32 v{vT+7}, {hex(SENT)}')
    e(f'buffer_store_dwordx2 v[{vT+6}:{vT+7}], v{vT+1}, s[{sWS}:{sWS+3}], s{s_t0} offen sc1')
    if fused:
        H.flag_addr(e, vT+1, vT+2)
        set_exec(e, 15, 0)
        e(f'buffer_store_dword v{vT+6}, v{vT+1}, s[{sWS}:{sWS+3}], 0 offen sc1')
        e(f's_mov_b64 exec, s[{s_ex}:{s_ex+1}]')
    e.label('K1_NORST')
    DUM = 140
    vTP = 144; vKV = 145; s_tpw = 54; s_tps = 46; s_kv = 78
    if fused and os.environ.get('CODEPF', '0') == '1':
        e(f's_cmp_eq_u32 s{s_w}, 5')
        e('s_cbranch_scc0 K1_NOCPF')
        e(f's_getpc_b64 s[{sK}:{sK+1}]')
        e.label('K1_PCREF')
        e(f's_sub_u32 s{sK}, s{sK}, K1_PCREF-{H.name}')
        e(f's_subb_u32 s{sK+1}, s{sK+1}, 0')
        e(f's_and_b32 s{sK+1}, s{sK+1}, 0xffff')
        e(f's_mov_b32 s{sK+2}, KF_CODE_END-{H.name}')
        e(f's_mov_b32 s{sK+3}, 0x20000')
        e(f'v_lshlrev_b32 v{vT+8}, 6, v{vLane}')
        e(f's_lshr_b32 s{s_t0}, s2, 3')
        e(f's_lshl_b32 s{s_t0}, s{s_t0}, 10')
        set_exec(e, 0xffff, 0)
        e(f'buffer_load_dword v141, v{vT+8}, s[{sK}:{sK+3}], s{s_t0} offen')
        e(f's_mov_b64 exec, s[{s_ex}:{s_ex+1}]')
        e.label('K1_NOCPF')
    e(f's_lshl_b32 s{s_t0}, s2, 2')
    e(f's_add_u32 s{s_t0}, s{s_t0}, s{s_wl}')
    e(f's_mul_i32 s{s_t1}, s{s_t0}, 2731')
    e(f's_lshr_b32 s{s_t1}, s{s_t1}, 16')
    e(f's_mul_i32 s{s_t2}, s{s_t1}, 24')
    e(f's_sub_u32 s{s_t2}, s{s_t0}, s{s_t2}')
    e(f's_mov_b32 s{P+16}, s{s_t0}')
    e(f'v_mul_u32_u24 v{vT+3}, {4*1280}, v{vQ}')
    e(f'v_lshlrev_b32 v{vT+4}, 1, v{vL15}')
    e(f'v_add_u32 v{vT+3}, v{vT+3}, v{vT+4}')
    e(f's_lshl_b32 s{s_t1}, s{s_t1}, 5')
    e(f's_mul_i32 s{s_t2}, s{s_t2}, {32*1280}')
    e(f's_add_u32 s{s_t1}, s{s_t1}, s{s_t2}')
    e(f's_add_u32 s{s_t2}, s{s_t1}, {16*1280}')
    bar('B')
    stB.stamp(e)
    srd(e, sT, P+10, FH*D*2)
    for j in range(8):
        so = s_t1 if j < 4 else s_t2
        e(f'buffer_load_ushort v{WR + j}, v{vT+3}, s[{sT}:{sT+3}], s{so} offen offset:{(j%4)*1280} {NT1}')
    for k in range(1, 10):
        if PREFETCH and k == 9:
            e(f'v_lshlrev_b32 v{vTP}, 6, v{vLane}')
            e(f's_and_b32 s{s_tpw}, s2, 7')
            e(f's_lshl_b32 s{s_tpw}, s{s_tpw}, 8')
            e(f's_lshr_b32 s{s_off}, s2, 3')
            e(f's_lshl_b32 s{s_off}, s{s_off}, 3')
            e(f's_add_u32 s{s_tpw}, s{s_tpw}, s{s_off}')
            e(f's_lshl_b32 s{s_tpw}, s{s_tpw}, 12')
            srd(e, sK, P+18, S*S*2)
            e('s_mov_b32 s46, 0')
        if k == int(os.environ.get('CNTK', '3')):
            e(f's_cmp_eq_u32 s{s_w}, 4')
            e('s_cbranch_scc0 K1_NOCNT')
            e('s_waitcnt vmcnt(8)')
            e(f's_lshl_b32 s{s_off}, s{s_rb}, 2')
            e(f'v_mov_b32 v{vT+6}, s{s_off}')
            e(f'v_mov_b32 v{vT+7}, 1')
            set_exec(e, 1, 0)
            e(f'buffer_atomic_add v{vT+7}, v{vT+6}, s[{sD}:{sD+3}], 0 offen offset:{CB} sc1')
            e(f's_mov_b64 exec, s[{s_ex}:{s_ex+1}]')
            e.label('K1_NOCNT')
        if k == 9:
            e(f's_cmp_ge_u32 s{P+16}, 960')
            e('s_cbranch_scc1 K1_NOWOF')
            e('s_waitcnt vmcnt(0)')
            for j in range(4):
                e(f'v_lshl_or_b32 v{WO+j}, v{WR+2*j+1}, 16, v{WR+2*j}')
            e(f'v_lshlrev_b32 v{vT+3}, 4, v{vLane}')
            e(f's_lshl_b32 s{s_t0}, s{P+16}, 10')
            e(f's_add_u32 s{s_t0}, s{s_t0}, {WOF}')
            e(f'buffer_store_dwordx4 v[{WO}:{WO+3}], v{vT+3}, s[{sWS}:{sWS+3}], s{s_t0} offen {SC if fused else STF_EARLY}')
            e.label('K1_NOWOF')
        bar('B')
    init_acc()
    bar('B')
    stB.stamp(e)
    loop(2, 'B')
    stB.stamp(e)
    e.c('B epilogue')
    e(f's_mul_i32 s{s_t0}, s{s_wl}, 192')
    e(f's_add_u32 s{s_t0}, s{s_t0}, {L_CSB}')
    e(f'v_lshlrev_b32 v{vT+4}, 4, v{vQ}')
    e(f'v_add_u32 v{vT+5}, s{s_t0}, v{vT+4}')
    set_exec(e, 0x00010001, 0x00010001)
    for ft in range(3):
        e(f'ds_write_b128 v{vT+5}, v[{CS+ft*4}:{CS+ft*4+3}] offset:{ft*64}')
    e(f's_mov_b64 exec, s[{s_ex}:{s_ex+1}]')
    e(f'v_mov_b32 v{K1V}, {hexf(K1c)}'); e(f'v_mov_b32 v{K1V+1}, {hexf(K1c)}')
    e('s_waitcnt lgkmcnt(0)')
    bar('B')
    if fused: H.cnt_early(e)
    e(f's_xor_b32 s{s_t1}, s{s_wl}, 2')
    e(f's_mul_i32 s{s_t1}, s{s_t1}, 192')
    e(f's_add_u32 s{s_t1}, s{s_t1}, {L_CSB}')
    e(f'v_add_u32 v{vT+5}, s{s_t1}, v{vT+4}')
    NC2 = XF
    for ft in range(3):
        e(f'ds_read_b128 v[{NC2+ft*4}:{NC2+ft*4+3}], v{vT+5} offset:{ft*64}')
    MR = WF
    e(f's_lshl_b32 s{s_t0}, s{s_wr}, 7')
    e(f's_lshl_b32 s{s_t1}, s{s_wc}, 6')
    e(f's_add_u32 s{s_t0}, s{s_t0}, s{s_t1}')
    e(f's_add_u32 s{s_t0}, s{s_t0}, {L_M1}')
    e(f'v_lshlrev_b32 v{vT+6}, 2, v{vL15}')
    e(f'v_add_u32 v{vT+6}, s{s_t0}, v{vT+6}')
    e(f'v_xor_b32 v{vT+7}, 64, v{vT+6}')
    e(f'ds_read_b32 v{MR+0}, v{vT+6}')
    e(f'ds_read_b32 v{MR+2}, v{vT+7}')
    e(f'ds_read_b32 v{MR+4}, v{vT+6} offset:256')
    e(f'ds_read_b32 v{MR+6}, v{vT+7} offset:256')
    e(f's_lshl_b32 s{s_t0}, s{s_rb}, 2')
    e(f's_lshl_b32 s{s_t1}, s{s_wr}, 1')
    e(f's_add_u32 s{s_t0}, s{s_t0}, s{s_t1}')
    e(f's_add_u32 s{s_t1}, s{s_t0}, s{s_wc}')
    e(f's_xor_b32 s{s_t2}, s{s_t1}, 1')
    e(f's_mul_i32 s{s_off}, s{s_cb}, 6')
    e(f's_mul_i32 s{s_j}, s{s_wc}, 3')
    e(f's_add_u32 s{s_off}, s{s_off}, s{s_j}')
    e(f's_mul_i32 s{s_t1}, s{s_t1}, 48')
    e(f's_add_u32 s{s_t1}, s{s_t1}, s{s_off}')
    e(f's_lshl_b32 s{s_t1}, s{s_t1}, 9')
    e(f's_add_u32 s{s_t1}, s{s_t1}, {Z1F}')
    e(f's_mul_i32 s{s_t2}, s{s_t2}, 48')
    e(f's_add_u32 s{s_t2}, s{s_t2}, s{s_off}')
    e(f's_lshl_b32 s{s_t2}, s{s_t2}, 9')
    e(f's_add_u32 s{s_t2}, s{s_t2}, {Z1F}')
    e(f'v_lshlrev_b32 v{vT+6}, 3, v{vLane}')
    if fused:
        e(f's_lshl_b32 s{s_j}, s{s_wr}, 1')
        e(f's_add_u32 s{s_j}, s{s_j}, s{s_wc}')
        e(f's_mul_i32 s{s_off}, s{s_j}, 3072')
        e(f's_mul_i32 s{s_t0}, s{s_wc}, 1536')
        e(f's_add_u32 s{s_off}, s{s_off}, s{s_t0}')
        e(f's_add_u32 s{s_off}, s{s_off}, {Z1L}')
        e(f'v_add_u32 v{vT+8}, s{s_off}, v{vT+6}')
        e(f's_xor_b32 s{s_j}, s{s_j}, 1')
        e(f's_mul_i32 s{s_off}, s{s_j}, 3072')
        e(f's_add_u32 s{s_off}, s{s_off}, s{s_t0}')
        e(f's_add_u32 s{s_off}, s{s_off}, {Z1L}')
        e(f'v_add_u32 v{vT+9}, s{s_off}, v{vT+6}')
    e('s_waitcnt lgkmcnt(0)')
    for i in range(12):
        e(f'v_add_f32 v{NC2+i}, v{NC2+i}, v{CS+i}')
        e(f'v_sub_f32 v{NC2+i}, 0, v{NC2+i}')
    ZO = AP
    for T in range(2):
        for ft in range(3):
            for p in range(2):
                a = ACC + (T*3+ft)*4 + 2*p
                n = NC2 + ft*4 + 2*p
                m = MR + 2*T; r = MR + 4 + 2*T
                g = G + 4*p
                e(f'v_pk_fma_f32 v[{a}:{a+1}], v[{n}:{n+1}], v[{m}:{m+1}], v[{a}:{a+1}] op_sel_hi:[1,0,1]')
                e(f'v_pk_mul_f32 v[{a}:{a+1}], v[{a}:{a+1}], v[{r}:{r+1}] op_sel_hi:[1,0]')
                gelu_pair(a, g)
                e(f'v_cvt_pk_bf16_f32 v{ZO+(T*3+ft)*2+p}, v{g}, v{g+1}')
            so = s_t1 if T == 0 else s_t2
            z = ZO + (T*3+ft)*2
            if fused:
                e(f'ds_write_b64 v{vT+8+T}, v[{z}:{z+1}] offset:{ft*512}')
            else:
                e(f'buffer_store_dwordx2 v[{z}:{z+1}], v{vT+6}, s[{sWS}:{sWS+3}], s{so} offen offset:{ft*512} {STF_EARLY}')
    if fused:
        H.after_B(e, stB, bar)
    if not fused: stB.flush(e, 0, sWS, vT, s_w)
    e.label('K1_END')
    e('s_endpgm')
    if fused: return nbar
    print('k1 barriers', nbar)
    assert nbar['A'] == nbar['B'] == nbar['L'], nbar
    nn = e.finalize()
    return kernel_wrap('k1_kernel', e.text(), vgpr=168, sgpr=96), nn
```

```python
from common import *
import k1 as K1
import k3b as K3
import k3c
import os
HCP = 4160
CW_U = 4 * HCP
CW_SZ = CW_U + 512 + 4096
CONV0 = 65536
Z1L = K1.Z1L
LDSF = Z1L + 12288
BLOCKF = 768
NAME = 'recurrent_scan__ssm_conv_h3__mixer_gmlp__prompt_kernel'
POLL_MAX = 1 << 21

s_rb, s_cb, s_w, s_wl = 32, 33, 34, 55
s_t0, s_t1, s_t2 = 40, 41, 42
s_mask = 47; s_ex = 52
sWS = 16; sD = 4
P = 56
vLane, vQ, vL15 = 1, 2, 3

class Hooks:
    def __init__(self):
        self.nb = {}
    def flag_addr(self, e, v, vt):
        e(f's_lshl_b32 s{s_t0}, s{s_cb}, 7')
        e(f's_lshl_b32 s{s_t1}, s{s_rb}, 2')
        e(f's_add_u32 s{s_t0}, s{s_t0}, s{s_t1}')
        e(f's_add_u32 s{s_t1}, s{s_t0}, {FL2A}')
        e(f's_add_u32 s{s_t0}, s{s_t0}, {FL1}')
        e(f'v_mov_b32 v{v}, s{s_t0}')
        e(f'v_mov_b32 v{vt}, s{s_t1}')
        e(f'v_cmp_eq_u32 vcc, 1, v{vLane}')
        e(f'v_cndmask_b32 v{v}, v{v}, v{vt}, vcc')
        e(f's_lshl_b32 s{s_t0}, s{s_rb}, 5')
        e(f's_lshl_b32 s{s_t1}, s{s_cb}, 2')
        e(f's_add_u32 s{s_t0}, s{s_t0}, s{s_t1}')
        e(f's_add_u32 s{s_t0}, s{s_t0}, {FL2B}')
        e(f'v_mov_b32 v{vt}, s{s_t0}')
        e(f'v_cmp_eq_u32 vcc, 2, v{vLane}')
        e(f'v_cndmask_b32 v{v}, v{v}, v{vt}, vcc')
        e(f's_lshl_b32 s{s_t0}, s{s_cb}, 7')
        e(f's_lshl_b32 s{s_t1}, s{s_rb}, 2')
        e(f's_add_u32 s{s_t0}, s{s_t0}, s{s_t1}')
        e(f's_add_u32 s{s_t0}, s{s_t0}, {FLKV}')
        e(f'v_mov_b32 v{vt}, s{s_t0}')
        e(f'v_cmp_eq_u32 vcc, 3, v{vLane}')
        e(f'v_cndmask_b32 v{v}, v{v}, v{vt}, vcc')

    def after_A(self, e, stp, bar1):
        e('s_waitcnt vmcnt(0)')
        bar1('A')
        p1 = os.environ.get('P1ST') == '1'
        stp.mute = False
        stp.stamp(e)
        stp.mute = p1
        self.g2(e, stp)
    def after_B(self, e, stB, bar1):
        e(f's_cmp_eq_u32 s{s_w}, 7')
        e('s_cbranch_scc0 F2_NOCNT')
        e('s_waitcnt vmcnt(0)')
        set_exec(e, 0xffffffff, 0)
        e('v_cmp_gt_u32 vcc, 8, v167')
        e(f's_mov_b64 exec, s[{s_ex}:{s_ex+1}]')
        e('s_cmp_eq_u64 vcc, 0')
        e('s_cbranch_scc1 F2_NOCNT')
        e(f'v_lshlrev_b32 v6, 2, v{vLane}')
        self.poll(e, 'CNT', 6, 7, sD, 0xffffffff, 0, 8, ge=True)
        e.label('F2_NOCNT')
        e('s_waitcnt lgkmcnt(0)')
        self.c2(e, stB, bar1)
    def after_L(self, e, bar1):
        self.l2(e, bar1)

    def g2(self, e, stp):
        nb = [0]
        def bar():
            e('s_barrier'); nb[0] += 1
        sB = 12
        s_fh, s_kh, s_st, s_bz, s_kz, s_sd = 35, 36, 37, 38, 39, 43
        vB0, vB1, vA, vT = 4, 5, 6, 9
        BF = 16; ACC = 48; ZA = 96
        e.c('phase 2: G')
        if os.environ.get('PRIOG'): e(f"s_setprio {os.environ['PRIOG']}")
        e(f's_load_dwordx2 s[{P}:{P+1}], s[0:1], 72')
        e(f's_and_b32 s{s_fh}, s{s_w}, 1')
        e(f's_lshr_b32 s{s_kh}, s{s_w}, 1')
        e(f'v_xor_b32 v{vT}, v{vQ}, v{vL15}')
        e(f'v_lshlrev_b32 v{vT}, 4, v{vT}')
        e(f's_lshl_b32 s{s_t0}, s{s_kh}, 6')
        e(f'v_xor_b32 v{vT}, s{s_t0}, v{vT}')
        e(f'v_lshlrev_b32 v{vT+1}, 8, v{vL15}')
        e(f'v_add_u32 v{vB0}, v{vT}, v{vT+1}')
        e(f'v_xor_b32 v{vB1}, 128, v{vB0}')
        e(f's_mul_i32 s{s_t0}, s{s_cb}, 6')
        e(f's_mul_i32 s{s_t1}, s{s_fh}, 3')
        e(f's_add_u32 s{s_t0}, s{s_t0}, s{s_t1}')
        e(f's_lshl_b32 s{s_t0}, s{s_t0}, 16')
        e(f's_add_u32 s{s_t0}, s{s_t0}, {Z2F}')
        e(f'v_lshlrev_b32 v{vT}, 4, v{vLane}')
        for ft in range(3):
            e(f's_add_u32 s{s_t1}, s{s_t0}, {ft*65536}')
            e(f'v_add_u32 v{vA+ft}, s{s_t1}, v{vT}')
        e(f's_lshl_b32 s{s_kz}, s{s_kh}, 10')
        for i in range(48): e(f'v_mov_b32 v{ACC+i}, 0')
        e('s_waitcnt lgkmcnt(0)')
        srd(e, sB, P, S*2)
        def zl(n6, s_off):
            return [f'buffer_load_dwordx4 v[{ZA+(n6*3+ft)*4}:{ZA+(n6*3+ft)*4+3}], v{vA+ft}, s[{sWS}:{sWS+3}], s{s_off} offen sc1' for ft in range(3)]
        bar()
        stp.stamp(e)
        for n in range(5):
            e(f's_add_u32 s{s_bz}, s{s_kz}, {2*n*1024}')
            for x in zl(n, s_bz): e(x)
        def brd(buf, vb):
            return [f'ds_read_b128 v[{BF+buf*16+tt*4}:{BF+buf*16+tt*4+3}], v{vb} offset:{tt*4096}' for tt in range(4)]
        def mfl(buf, n6):
            L = []
            for tt in range(4):
                for ft in range(3):
                    a = ACC + (ft*4+tt)*4; z = ZA + (n6*3+ft)*4; b = BF + buf*16 + tt*4
                    L.append(f'v_mfma_f32_16x16x32_bf16 v[{a}:{a+3}], v[{z}:{z+3}], v[{b}:{b+3}], v[{a}:{a+3}]')
            return L
        def zoff(add):
            e(f's_lshl_b32 s{s_t0}, s{s_st}, 1')
            e(f's_add_u32 s{s_t0}, s{s_t0}, {add}')
            e(f's_lshl_b32 s{s_bz}, s{s_t0}, 11')
            e(f's_add_u32 s{s_bz}, s{s_bz}, s{s_kz}')
            e(f's_cmp_lt_u32 s{s_t0}, 32')
            e(f's_cselect_b32 s{s_bz}, s{s_bz}, 0x80000000')
        e(f's_mov_b32 s{s_st}, 0')
        if K1.BARST:
            e('s_mov_b32 m0, 0'); e('s_memtime s[90:91]'); e('v_mov_b32 v15, 0')
        for x in brd(0, vB0): e(x)
        e.label('F2_GLOOP')
        for u in range(3):
            n0 = (2*u) % 6; n1 = (2*u + 1) % 6
            zoff(5)
            e('s_waitcnt vmcnt(12) lgkmcnt(0)')
            fills = [[] for _ in range(12)]
            for k_, r in enumerate(brd(1, vB1)): fills[k_].append(r)
            for k_, z in enumerate(zl((n0 + 5) % 6, s_bz)): fills[4 + 2*k_].append(z)
            weave(e, mfl(0, n0), fills)
            e(f's_and_b32 s{s_t0}, s{s_st}, 3')
            e(f's_movk_i32 s{s_sd}, 16384')
            e(f's_cmp_eq_u32 s{s_t0}, 3')
            e(f's_cselect_b32 s{s_sd}, {(-49152) & 0xffffffff}, s{s_sd}')
            zoff(6)
            e('s_waitcnt lgkmcnt(0)')
            if K1.BARST:
                e('v_writelane_b32 v15, s90, m0'); e('s_add_u32 m0, m0, 1')
            e('s_barrier')
            if K1.BARST: e('s_memtime s[90:91]')
            e(f'v_add_u32 v{vB0}, s{s_sd}, v{vB0}')
            e('s_waitcnt vmcnt(12)')
            fills = [[] for _ in range(12)]
            for k_, r in enumerate(brd(0, vB0)): fills[k_].append(r)
            for k_, z in enumerate(zl((n1 + 5) % 6, s_bz)): fills[4 + 2*k_].append(z)
            weave(e, mfl(1, n1), fills)
            e(f'v_add_u32 v{vB1}, s{s_sd}, v{vB1}')
            e(f's_add_u32 s{s_st}, s{s_st}, 1')
            e(f's_cmp_eq_u32 s{s_st}, 16')
            if u < 2: e('s_cbranch_scc1 F2_GDONE')
            else: e('s_cbranch_scc0 F2_GLOOP')
        e.label('F2_GDONE')
        nb[0] += 16
        if K1.BARST:
            e('s_waitcnt lgkmcnt(0)')
            e('v_writelane_b32 v15, s90, m0')
            e(f's_lshl_b32 s{s_t0}, s2, 3'); e(f's_add_u32 s{s_t0}, s{s_t0}, s{s_w}'); e(f's_lshl_b32 s{s_t0}, s{s_t0}, 7')
            e(f's_add_u32 s{s_t0}, s{s_t0}, {TSB + 1*0x40000}')
            e(f'v_lshlrev_b32 v14, 2, v{vLane}')
            set_exec(e, 0xffffffff, 0)
            e(f'buffer_store_dword v15, v14, s[{sWS}:{sWS+3}], s{s_t0} offen')
            e(f's_mov_b64 exec, s[{s_ex}:{s_ex+1}]')
        stp.stamp(e)
        e.c('G epilogue')
        BS = vT + 6
        e(f's_lshl_b32 s{s_t0}, s{s_rb}, 2')
        e(f's_add_u32 s45, s{s_t0}, s{s_w}')
        e(f'v_lshlrev_b32 v{vT+1}, 1, v{vL15}')
        e(f's_lshl_b32 s{s_t0}, s45, 5')
        e(f'buffer_load_ushort v{BS}, v{vT+1}, s[{sB}:{sB+3}], s{s_t0} offen')
        e('s_waitcnt lgkmcnt(0)')
        bar()
        e(f's_mul_i32 s{s_t0}, s{s_w}, 3072')
        e(f'v_lshlrev_b32 v{vT}, 4, v{vLane}')
        e(f'v_add_u32 v{vT+1}, s{s_t0}, v{vT}')
        for tt in range(4):
            for ft in range(3):
                a = ACC + (ft*4 + tt)*4
                e(f'ds_write_b128 v{vT+1}, v[{a}:{a+3}] offset:{tt*12288 + ft*1024}')
                if (tt*3 + ft) % 6 == 5: e('s_waitcnt lgkmcnt(6)')
        e('s_waitcnt lgkmcnt(0)')
        bar()
        RX = 16
        e(f's_mul_i32 s{s_t0}, s{s_w}, 12288')
        e(f'v_add_u32 v{vT+1}, s{s_t0}, v{vT}')
        for v in range(4):
            for ft in range(3):
                r = RX + (v*3 + ft)*4
                e(f'ds_read_b128 v[{r}:{r+3}], v{vT+1} offset:{v*3072 + ft*1024}')
            if v == 2: e('s_waitcnt lgkmcnt(6)')
        Z1 = 64
        e(f's_mul_i32 s{s_t0}, s{s_w}, 3072')
        e(f's_add_u32 s{s_t0}, s{s_t0}, {Z1L}')
        e(f'v_lshlrev_b32 v{vT+2}, 3, v{vLane}')
        e(f'v_add_u32 v{vT+2}, s{s_t0}, v{vT+2}')
        e('s_waitcnt lgkmcnt(6)')
        for ftg in range(6):
            e(f'ds_read_b64 v[{Z1+2*ftg}:{Z1+2*ftg+1}], v{vT+2} offset:{ftg*512}')
        e('s_waitcnt vmcnt(0)')
        BSP = 92
        e(f'v_lshlrev_b32 v{BSP}, 16, v{BS}')
        e(f's_mul_i32 s{s_t0}, s45, {24*1024}')
        e(f's_mul_i32 s{s_t1}, s{s_cb}, {3*1024}')
        e(f's_add_u32 s{s_t0}, s{s_t0}, s{s_t1}')
        e(f's_add_u32 s{s_t0}, s{s_t0}, {PF}')
        e('s_waitcnt lgkmcnt(0)')
        OUTP = 76
        TU = 88
        for ftg in range(6):
            fh, ft = ftg // 3, ftg % 3
            a = RX + ((fh + 0)*3 + ft)*4
            b = RX + ((fh + 2)*3 + ft)*4
            for p in range(2): e(f'v_pk_add_f32 v[{a+2*p}:{a+2*p+1}], v[{a+2*p}:{a+2*p+1}], v[{b+2*p}:{b+2*p+1}]')
            for p in range(2):
                e(f'v_lshlrev_b32 v{TU+2*p}, 16, v{Z1+2*ftg+p}')
                e(f'v_and_b32 v{TU+2*p+1}, s{s_mask}, v{Z1+2*ftg+p}')
            for p in range(2): e(f'v_pk_add_f32 v[{a+2*p}:{a+2*p+1}], v[{a+2*p}:{a+2*p+1}], v[{BSP}:{BSP+1}] op_sel_hi:[1,0]')
            for p in range(2): e(f'v_pk_mul_f32 v[{a+2*p}:{a+2*p+1}], v[{a+2*p}:{a+2*p+1}], v[{TU+2*p}:{TU+2*p+1}]')
            for p in range(2):
                e(f'v_cvt_pk_bf16_f32 v{OUTP+2*ftg+p}, v{a+2*p}, v{a+2*p+1}')
            if ftg % 2 == 1:
                j = ftg // 2
                e(f'buffer_store_dwordx4 v[{OUTP+4*j}:{OUTP+4*j+3}], v{vT}, s[{sWS}:{sWS+3}], s{s_t0} offen offset:{j*1024} sc1')
        e('s_waitcnt vmcnt(0)')
        bar()
        stp.stamp(e)
        self.p3.setup(True)
        bar()
        stp.stamp(e)
        self.p3.main(True, 'a')
        if K1.DIAG:
            e('s_memrealtime s[56:57]'); e('s_memtime s[58:59]'); e('s_waitcnt lgkmcnt(0)')
            e('s_sub_u32 s60, s56, s96'); e('s_sub_u32 s61, s58, s98')
            e(f's_cmp_eq_u32 s{s_w}, 0'); e('s_cbranch_scc0 FD_END')
            e('s_and_b32 s62, s2, 63'); e('s_cmp_eq_u32 s62, 0'); e('s_cbranch_scc0 FD_END')
            e('s_lshr_b32 s62, s2, 6'); e('s_lshl_b32 s62, s62, 4')
            e('v_mov_b32 v12, s62'); e('v_mov_b32 v16, s60'); e('v_mov_b32 v17, s61'); e('v_mov_b32 v18, s96'); e('v_mov_b32 v19, s56')
            set_exec(e, 1, 0)
            e(f'buffer_store_dwordx4 v[16:19], v12, s[{sD}:{sD+3}], 0 offen')
            e.label('FD_END')
        stp.flush(e, 0, sWS, 12, s_w)
        e('s_endpgm')
        self.nb['A2'] = nb[0]

    def poll(self, e, tag, vaddr, vval, srd, nlanes_lo, nlanes_hi, want, ge=False):
        e(f's_mov_b32 s{s_t2}, 0')
        set_exec(e, nlanes_lo, nlanes_hi)
        e.label(f'FP_{tag}')
        e(f'buffer_load_dword v{vval}, v{vaddr}, s[{srd}:{srd+3}], 0 offen offset:{K1.CB if srd == sD else 0} sc1')
        e('s_waitcnt vmcnt(0)')
        e(f'v_cmp_{"gt" if ge else "ne"}_u32 vcc, {want}, v{vval}')
        e(f's_add_u32 s{s_t2}, s{s_t2}, 1')
        e('s_cmp_eq_u64 vcc, 0')
        e(f's_cbranch_scc1 FP_{tag}_OK')
        e(f's_cmp_lt_u32 s{s_t2}, {POLL_MAX}')
        e(f's_cbranch_scc0 FP_{tag}_OK')
        e('s_sleep 1')
        e(f's_branch FP_{tag}')
        e.label(f'FP_{tag}_OK')
        e(f's_mov_b64 exec, s[{s_ex}:{s_ex+1}]')

    def spoll(self, e, tag, off_sgpr, first, n):
        e(f's_add_u32 s74, s{off_sgpr}, {first*4}')
        e(f's_mov_b32 s{s_t2}, 0')
        e.label(f'SP_{tag}')
        e(f's_load_dwordx{n} s[56:{56+n-1}], s[72:73], s74 glc')
        e('s_waitcnt lgkmcnt(0)')
        k = n
        while k > 1:
            k //= 2
            for i in range(0, k, 2) if k >= 2 else [0]:
                if k >= 2: e(f's_and_b64 s[{56+i}:{57+i}], s[{56+i}:{57+i}], s[{56+k+i}:{57+k+i}]')
                else: e(f's_and_b32 s56, s56, s57')
        e(f's_add_u32 s{s_t2}, s{s_t2}, 1')
        e('s_cmp_eq_u32 s56, 1')
        e(f's_cbranch_scc1 SP_{tag}_OK')
        e(f's_cmp_lt_u32 s{s_t2}, {POLL_MAX}')
        e(f's_cbranch_scc1 SP_{tag}')
        e.label(f'SP_{tag}_OK')

    def kv_store(self, e, vt):
        KVS, KVP_ = K1.KVS, K1.KVP_
        KO = 16
        e('s_sleep 3')
        e(f's_sub_u32 s{s_t2}, s{s_w}, 4')
        e(f'v_lshrrev_b32 v{vt}, 3, v{vLane}')
        e(f's_lshl_b32 s{s_t0}, s{s_t2}, 3')
        e(f'v_add_u32 v{vt}, s{s_t0}, v{vt}')
        e(f'v_and_b32 v{vt+1}, 7, v{vLane}')
        e(f'v_lshlrev_b32 v{vt+1}, 4, v{vt+1}')
        e(f'v_mul_u32_u24 v{vt+2}, {KVP_}, v{vt}')
        e(f'v_add_u32 v{vt+2}, v{vt+2}, v{vt+1}')
        e(f'v_add_u32 v{vt+2}, {KVS}, v{vt+2}')
        e(f'v_lshlrev_b32 v{vt}, 12, v{vt}')
        e(f'v_add_u32 v{vt}, v{vt}, v{vt+1}')
        for n in range(4):
            e(f'ds_read_b128 v[{KO+4*n}:{KO+4*n+3}], v{vt+2} offset:{n*24*KVP_}')
        e(f's_mul_i32 s{s_t0}, s{s_cb}, {80*4096}')
        e(f's_lshl_b32 s{s_t1}, s{s_rb}, 7')
        e(f's_add_u32 s{s_t0}, s{s_t0}, s{s_t1}')
        e(f's_add_u32 s{s_t0}, s{s_t0}, {KVT}')
        e('s_waitcnt lgkmcnt(0)')
        for n in range(4):
            if n == 3:
                e(f's_cmp_eq_u32 s{s_t2}, 0')
                e(f's_cselect_b32 s{s_t0}, s{s_t0}, 0x80000000')
            e(f'buffer_store_dwordx4 v[{KO+4*n}:{KO+4*n+3}], v{vt}, s[{sWS}:{sWS+3}], s{s_t0} offen sc1')
            e(f's_add_u32 s{s_t0}, s{s_t0}, {24*4096}')

    def cnt_early(self, e):
        sH, sDd = 20, 24
        HC = 136; X = 160; DV = 166
        e(f's_load_dwordx4 s[{P+8}:{P+11}], s[0:1], 32')
        e(f's_sub_u32 s{s_t2}, s{s_w}, 4')
        e(f's_mul_i32 s44, s{s_cb}, 80')
        e(f's_mul_i32 s{s_t0}, s{s_rb}, 3')
        e(f's_lshl_b32 s{s_t1}, s{s_rb}, 1')
        e(f's_add_u32 s{s_t1}, s{s_t1}, 16')
        e(f's_cmp_lt_u32 s{s_rb}, 16')
        e(f's_cselect_b32 s{s_t0}, s{s_t0}, s{s_t1}')
        e(f's_cselect_b32 s{s_t1}, 3, 2')
        e(f's_add_u32 s44, s44, s{s_t0}')
        e(f's_add_u32 s44, s44, s{s_t2}')
        e(f's_cmp_lt_u32 s{s_t2}, s{s_t1}')
        e(f's_cselect_b32 s45, 1, 0')
        e(f's_cmp_eq_u32 s{s_w}, 7')
        e('s_cbranch_scc0 F2_NOCE')
        e(f'v_lshlrev_b32 v166, 2, v{vLane}')
        e(f'buffer_load_dword v167, v166, s[{sD}:{sD+3}], 0 offen offset:{K1.CB} sc1')
        e.label('F2_NOCE')


    def h_loads(self, e):
        sH, sDd = 20, 24
        HC = 136; X = 160; DV = 166
        e('s_waitcnt lgkmcnt(0)')
        e(f's_lshl_b32 s{s_t0}, s44, 12')
        e(f's_add_u32 s{sH}, s{P+8}, s{s_t0}')
        e(f's_addc_u32 s{sH+1}, s{P+9}, 0')
        e(f's_and_b32 s{sH+1}, s{sH+1}, 0xffff')
        e(f's_mov_b32 s{sH+2}, 4096')
        e(f's_mov_b32 s{sH+3}, 0x20000')
        srd(e, sDd, P+10, D*2)
        e(f'v_lshlrev_b32 v167, 4, v{vLane}')
        for n in range(4):
            c = HC + n*6
            e(f'buffer_load_dwordx4 v[{c}:{c+3}], v167, s[{sH}:{sH+3}], 0 offen offset:{n*1024} {NT1}')
            e(f'buffer_load_dwordx2 v[{c+4}:{c+5}], v167, s[{sH}:{sH+3}], 0 offen offset:{n*1024+16} {NT1}')
        e(f'v_mov_b32 v167, 0')
        e(f'buffer_load_dwordx2 v[{X+4}:{X+5}], v167, s[{sH}:{sH+3}], 0 offen')
        e(f's_lshl_b32 s{s_t0}, s44, 1')
        e(f'buffer_load_ushort v{DV}, v167, s[{sDd}:{sDd+3}], s{s_t0} offen')

    def c2(self, e, stC, bar1):
        nb = [0]
        def bar():
            e('s_barrier'); nb[0] += 1
        sH, sDd = 20, 24
        s_d, s_base, s_p = 35, 36, 37
        vA_, vB_ = 4, 5
        vT = 6
        HC = 136; X = 160; DV = 46; ACC = 48
        e.c('phase 2: B stream')
        e(f's_cmp_eq_u32 s{s_w}, 7')
        e('s_cbranch_scc1 F2_SYNC')
        e(f's_cmp_eq_u32 s45, 0')
        e('s_cbranch_scc1 F2_IDLE')
        e(f's_mov_b32 s{s_d}, s44')
        e(f's_sub_u32 s{s_t2}, s{s_w}, 4')
        e(f's_mul_i32 s{s_base}, s{s_t2}, {CW_SZ}')
        e(f's_add_u32 s{s_base}, s{s_base}, {CONV0}')
        e(f'v_add_u32 v{vT+4}, 1, v{vL15}')
        e(f'v_and_b32 v{vT+4}, 3, v{vT+4}')
        e(f'v_lshrrev_b32 v{vT+5}, 1, v{vQ}')
        e(f'v_and_b32 v{vT+6}, 1, v{vQ}')
        e(f'v_lshlrev_b32 v{vT+7}, 4, v{vT+5}')
        e(f'v_add_u32 v{vT+7}, v{vT+7}, v{vL15}')
        e(f'v_lshlrev_b32 v{vT+8}, 3, v{vT+6}')
        e(f'v_sub_u32 v{vT+7}, v{vT+7}, v{vT+8}')
        e(f'v_add_u32 v{vT+7}, 9, v{vT+7}')
        e(f'v_sub_u32 v{vT+7}, v{vT+7}, v{vT+4}')
        e(f'v_lshlrev_b32 v{vT+7}, 1, v{vT+7}')
        e(f'v_mul_u32_u24 v{vT+4}, {HCP}, v{vT+4}')
        e(f'v_add_u32 v{vT+7}, v{vT+7}, v{vT+4}')
        e(f'v_add_u32 v{vA_}, s{s_base}, v{vT+7}')
        e(f'v_sub_u32 v{vT+7}, v{vL15}, v{vT+5}')
        e(f'v_lshlrev_b32 v{vT+7}, 1, v{vT+7}')
        e(f'v_add_u32 v{vT+7}, v{vT+7}, v{vT+6}')
        e(f'v_lshlrev_b32 v{vT+7}, 4, v{vT+7}')
        e(f's_add_u32 s{s_t0}, s{s_base}, {CW_U + 512}')
        e(f'v_add_u32 v{vB_}, s{s_t0}, v{vT+7}')
        e('s_waitcnt vmcnt(0)')
        stC.stamp(e)
        bar1('B')
        stC.stamp(e)
        self.kv_store(e, 8)
        self.h_loads(e)
        bar()
        e('s_waitcnt vmcnt(0)')
        e(f'v_mov_b32 v{DV}, v166')
        e(f'v_mov_b32 v{vT+2}, 0'); e(f'v_mov_b32 v{vT+3}, 0')
        e(f'v_lshlrev_b32 v{vT+4}, 3, v{vLane}')
        e(f'v_add_u32 v{vT+4}, s{s_base}, v{vT+4}')
        e(f'ds_write_b64 v{vT+4}, v[{vT+2}:{vT+3}] offset:{CW_U}')
        e(f'v_lshlrev_b32 v{vT+4}, 4, v{vLane}')
        e(f'v_add_u32 v{vT+4}, s{s_base}, v{vT+4}')
        TM = 80
        def copies(c, off, k):
            t_ = TM + (k % 4)*12
            e(f'v_alignbit_b32 v{t_+0}, v{c+1}, v{c+0}, 16')
            e(f'v_alignbit_b32 v{t_+1}, v{c+2}, v{c+1}, 16')
            e(f'v_alignbit_b32 v{t_+2}, v{c+3}, v{c+2}, 16')
            e(f'v_alignbit_b32 v{t_+3}, v{c+4}, v{c+3}, 16')
            e(f'v_mov_b32 v{t_+4}, v{c+1}'); e(f'v_mov_b32 v{t_+5}, v{c+2}')
            e(f'v_mov_b32 v{t_+6}, v{c+3}'); e(f'v_mov_b32 v{t_+7}, v{c+4}')
            e(f'v_mov_b32 v{t_+8}, v{t_+1}'); e(f'v_mov_b32 v{t_+9}, v{t_+2}'); e(f'v_mov_b32 v{t_+10}, v{t_+3}')
            e(f'v_alignbit_b32 v{t_+11}, v{c+5}, v{c+4}, 16')
            e(f'ds_write_b128 v{vT+4}, v[{c}:{c+3}] offset:{off}')
            e(f'ds_write_b128 v{vT+4}, v[{t_}:{t_+3}] offset:{off + HCP}')
            e(f'ds_write_b128 v{vT+4}, v[{t_+4}:{t_+7}] offset:{off + 2*HCP}')
            e(f'ds_write_b128 v{vT+4}, v[{t_+8}:{t_+11}] offset:{off + 3*HCP}')
        for n in range(4):
            copies(HC + n*6, 32 + n*1024, n)
            e('s_waitcnt lgkmcnt(4)')
            if n == 1:
                e('s_waitcnt vmcnt(0)')
                bar()
            if n == 2: bar()
        for i in range(4): e(f'v_mov_b32 v{X+i}, 0')
        e(f'v_cmp_eq_u32 vcc, 1, v{vLane}')
        e(f'v_cndmask_b32 v{X+4}, 0, v{X+4}, vcc')
        e(f'v_cndmask_b32 v{X+5}, 0, v{X+5}, vcc')
        e('s_waitcnt lgkmcnt(0)')
        set_exec(e, 3, 0)
        copies(X, 0, 0)
        e(f's_mov_b64 exec, s[{s_ex}:{s_ex+1}]')
        e(f'v_lshlrev_b32 v{DV}, 16, v{DV}')
        for i in range(32): e(f'v_mov_b32 v{ACC+i}, 0')
        e('s_waitcnt vmcnt(0) lgkmcnt(0)')
        for _ in range(3): bar()
        e(f'v_lshlrev_b32 v{vT}, 4, v{vLane}')
        e(f's_lshl_b32 s{s_t0}, s{s_d}, 12')
        e(f's_add_u32 s{s_t0}, s{s_t0}, {KVT}')
        for n in range(4):
            e(f's_add_u32 m0, s{s_base}, {CW_U + 512 + n*1024}')
            e(f's_add_u32 s{s_t1}, s{s_t0}, {n*1024}')
            e(f'buffer_load_dwordx4 v{vT}, s[{sWS}:{sWS+3}], s{s_t1} offen sc1 lds')
        AFr = 80; B0 = 112
        def a_rd(m):
            a = AFr + m*4
            return [f'ds_read_b64 v[{a}:{a+1}], v{vA_} offset:{m*512}', f'ds_read_b64 v[{a+2}:{a+3}], v{vA_} offset:{m*512+8}']
        def b_rd(ee):
            b = B0 + 4*ee
            return [f'ds_read_b128 v[{b}:{b+3}], v{vB_} offset:{ee*512}']
        for m in range(8):
            for x in a_rd(m): e(x)
            if m % 4 == 3: e('s_waitcnt lgkmcnt(6)')
        bar()
        e('s_waitcnt vmcnt(0)')
        for m in range(8):
            for x in b_rd(m): e(x)
        e(f's_mov_b32 s{s_p}, 0')
        e.label('F2_CLOOP')
        for half in range(2):
            e(f'v_add_u32 v{vA_}, 64, v{vA_}')
            e(f'v_subrev_u32 v{vB_}, 64, v{vB_}')
            e('s_waitcnt lgkmcnt(0)')
            for m in range(8):
                for c in range(m, 8):
                    a = AFr + m*4; b = B0 + (c-m)*4; d = ACC + c*4
                    e(f'v_mfma_f32_16x16x32_bf16 v[{d}:{d+3}], v[{a}:{a+3}], v[{b}:{b+3}], v[{d}:{d+3}]')
                for x in a_rd(m): e(x)
                for x in b_rd(7 - m): e(x)
                if m in (3, 6): e('s_waitcnt lgkmcnt(6)')
                if (half == 0 and m == 3) or (half == 1 and m == 1): e('s_barrier')
        e('s_barrier')
        e(f's_add_u32 s{s_p}, s{s_p}, 2')
        e(f's_cmp_lt_u32 s{s_p}, 8')
        e('s_cbranch_scc1 F2_CLOOP')
        nb[0] += 12
        e('s_waitcnt lgkmcnt(0)')
        e(f'v_lshlrev_b32 v{vT}, 5, v{vL15}')
        e(f'v_lshrrev_b32 v{vT+1}, 1, v{vQ}')
        e(f'v_lshlrev_b32 v{vT+1}, 4, v{vT+1}')
        e(f'v_add_u32 v{vT}, v{vT}, v{vT+1}')
        e(f'v_and_b32 v{vT+1}, 1, v{vQ}')
        e(f'v_xor_b32 v{vT+1}, 1, v{vT+1}')
        e(f'v_lshlrev_b32 v{vT+1}, 3, v{vT+1}')
        e(f'v_add_u32 v{vT}, v{vT}, v{vT+1}')
        e(f's_add_u32 s{s_t0}, s{s_base}, {CW_U + 512}')
        e(f'v_add_u32 v{vT}, s{s_t0}, v{vT}')
        KV = AFr
        for c in range(8):
            e(f'ds_read_b64 v[{KV+2*c}:{KV+2*c+1}], v{vT} offset:{c*512}')
        e(f'v_lshlrev_b32 v{vT+2}, 5, v{vL15}')
        e(f'v_lshlrev_b32 v{vT+3}, 3, v{vQ}')
        e(f'v_add_u32 v{vT+2}, v{vT+2}, v{vT+3}')
        e(f's_lshl_b32 s{s_t0}, s{s_d}, 12')
        e(f's_add_u32 s{s_t0}, s{s_t0}, {YYT}')
        e('s_waitcnt lgkmcnt(0)')
        U = B0
        for c in range(8):
            a = ACC + c*4; k0 = KV + 2*c; u = U + (c % 4)*8
            e(f'v_and_b32 v{u+0}, s{s_mask}, v{k0+1}')
            e(f'v_lshlrev_b32 v{u+1}, 16, v{k0+1}')
            e(f'v_and_b32 v{u+2}, s{s_mask}, v{k0}')
            e(f'v_lshlrev_b32 v{u+3}, 16, v{k0}')
            for r in range(4): e(f'v_fmac_f32 v{a+r}, v{u+r}, v{DV}')
            e(f'v_cvt_pk_bf16_f32 v{u+4}, v{a}, v{a+1}')
            e(f'v_cvt_pk_bf16_f32 v{u+5}, v{a+2}, v{a+3}')
            e(f'buffer_store_dwordx2 v[{u+4}:{u+5}], v{vT+2}, s[{sWS}:{sWS+3}], s{s_t0} offen offset:{c*512} sc1')
        e('s_waitcnt vmcnt(0)')
        bar()
        n_c = nb[0]
        e.label('F3_IDLE')
        self.p3.setup(False)
        e('s_barrier')
        e.label('F3_BMAIN')
        self.p3.main(False, 'b')
        stC.flush(e, 0, sWS, vT, s_w)
        e('s_endpgm')
        e.label('F2_IDLE')
        e('s_waitcnt vmcnt(0)')
        bar1('I1')
        self.kv_store(e, 8)
        e('s_barrier')
        e('s_waitcnt vmcnt(0)')
        for _ in range(n_c - 1): e('s_barrier')
        e('s_branch F3_IDLE')
        e.label('F2_SYNC')
        vt = 150
        JIT = os.environ.get('TOUCH', 'p2') == 'jit'
        TRIM = os.environ.get('TRIM', '1') == '1'
        sSP = 8
        e('s_load_dwordx2 s[72:73], s[0:1], 104')
        if not TRIM: e('s_waitcnt lgkmcnt(0)')
        if JIT or not TRIM:
            e(f's_load_dwordx2 s[70:71], s[0:1], 64')
            e(f's_lshl_b32 s{s_t0}, s{s_rb}, 6')
            e(f's_lshl_b32 s{s_t1}, s{s_cb}, 3')
            e(f's_add_u32 s{s_t0}, s{s_t0}, s{s_t1}')
            e(f'v_lshrrev_b32 v20, 3, v{vLane}')
            e(f'v_add_u32 v20, s{s_t0}, v20')
            e(f'v_lshlrev_b32 v20, 12, v20')
            e(f'v_and_b32 v21, 7, v{vLane}')
            e(f'v_lshlrev_b32 v21, 6, v21')
            e(f'v_add_u32 v20, v20, v21')
            e(f'v_lshrrev_b32 v22, 2, v{vLane}')
            e(f'v_add_u32 v22, s{s_t0}, v22')
            e(f'v_lshlrev_b32 v22, 12, v22')
            e(f'v_and_b32 v21, 3, v{vLane}')
            e(f'v_lshlrev_b32 v21, 6, v21')
            e(f'v_add_u32 v22, v22, v21')
            e('s_waitcnt lgkmcnt(0)')
            srd(e, sSP, 70, S*S*2)
        self.flag_addr(e, vt+2, vt+3)
        e(f'v_mov_b32 v{vt+4}, 1')
        e('s_waitcnt vmcnt(0) lgkmcnt(0)')
        bar1('I2')
        stS = Stamper(); stS.n = 1
        stS.stamp(e)
        set_exec(e, 1, 0)
        e(f'buffer_store_dword v{vt+4}, v{vt+2}, s[{sWS}:{sWS+3}], 0 offen sc1')
        e(f's_mov_b64 exec, s[{s_ex}:{s_ex+1}]')
        for p in range(1, 3 if JIT else 0):
            e(f'buffer_load_dword v{24+p}, v20, s[{sSP}:{sSP+3}], 0 offen offset:{p*512}')
        SPOLL = os.environ.get('SPOLL', '1') == '1'
        e(f's_lshl_b32 s{s_t0}, s{s_cb}, 7')
        e(f's_add_u32 s75, s{s_t0}, {FL1}')
        e(f's_add_u32 s{s_t0}, s{s_t0}, {FL1}')
        e(f'v_lshlrev_b32 v{vt}, 2, v{vLane}')
        e(f'v_add_u32 v{vt}, s{s_t0}, v{vt}')
        if SPOLL:
            self.spoll(e, 'F1a', 75, 0, 8)
        else:
            self.poll(e, 'F1a', vt, vt+1, sWS, 0x3f, 0, 1)
        stS.stamp(e)
        e('s_barrier')
        stS.stamp(e)
        def mbar(i):
            e('s_barrier')
            j = i + 6
            if j < 16 and JIT:
                e('s_mov_b32 exec_hi, 0')
                e(f's_movk_i32 s{s_t0}, {j*256}')
                e(f'buffer_load_dword v{28 + (i % 4)}, v22, s[{sSP}:{sSP+3}], s{s_t0} offen')
                e('s_mov_b32 exec_hi, -1')
        mbar(0)
        set_exec(e, 8, 0)
        e(f'buffer_store_dword v{vt+4}, v{vt+2}, s[{sWS}:{sWS+3}], 0 offen sc1')
        e(f's_mov_b64 exec, s[{s_ex}:{s_ex+1}]')
        self.spoll(e, 'F1b', 75, 8, 8)
        mbar(1)
        mbar(2)
        self.spoll(e, 'F1c', 75, 16, 16)
        mbar(3)
        e(f's_add_u32 s75, s75, {FLKV - FL1}')
        self.spoll(e, 'FKa', 75, 0, 16)
        self.spoll(e, 'FKb', 75, 16, 16)
        for i in range(4, 16): mbar(i)
        e('s_barrier')
        self.p3.setup(False)
        e('s_barrier'); e('s_barrier')
        set_exec(e, 6, 0)
        e(f'buffer_store_dword v{vt+4}, v{vt+2}, s[{sWS}:{sWS+3}], 0 offen sc1')
        e(f's_mov_b64 exec, s[{s_ex}:{s_ex+1}]')
        e(f's_lshl_b32 s{s_t0}, s{s_rb}, 5')
        e(f's_add_u32 s75, s{s_t0}, {FL2B}')
        self.spoll(e, 'F2B', 75, 0, 8)
        e('s_barrier')
        e('s_branch F3_BMAIN')
        self.nb['B2'] = n_c

    def l2_pre(self, e):
        sSP = 8
        vD = 4; t = 10
        s_bw, s_m = 38, 39
        e.c('phase 2: L (pre)')
        e(f's_load_dwordx2 s[{P}:{P+1}], s[0:1], 64')
        e(f's_load_dwordx2 s[{P+4}:{P+5}], s[0:1], 104')
        e(f's_lshl_b32 s{s_t0}, s{s_rb}, 6')
        e(f's_lshl_b32 s{s_t1}, s{s_wl}, 4')
        e(f's_add_u32 s{s_t0}, s{s_t0}, s{s_t1}')
        for tt in range(4):
            e(f'v_add_u32 v{t}, {4*tt}, v{vQ}')
            e(f'v_xor_b32 v{t+1}, v{t}, v{vL15}')
            e(f'v_lshlrev_b32 v{t+1}, 4, v{t+1}')
            e(f'v_add_u32 v{t}, s{s_t0}, v{t}')
            e(f'v_lshlrev_b32 v{t}, 12, v{t}')
            e(f'v_add_u32 v{vD+tt}, v{t}, v{t+1}')
        e(f's_lshl_b32 s{s_m}, s{s_wl}, 12')
        e('s_waitcnt lgkmcnt(0)')
        srd(e, sSP, P, S*S*2)
        srd(e, sWS, P+4, WS_SIZE)
        self.lcnt = [0]; self.ldone = {}
    def lissue(self, e, j):
        sSP = 8; vD = 4; s_bw, s_m = 38, 39
        e(f's_movk_i32 s{s_bw}, {j*256}')
        for tt in range(4):
            e(f's_add_u32 m0, s{s_m}, {(j % 4)*16384 + tt*1024}')
            e('s_nop 0')
            e(f'buffer_load_dwordx4 v{vD+tt}, s[{sSP}:{sSP+3}], s{s_bw} offen {NT3} lds')
        self.lcnt[0] += 4; self.ldone[j] = self.lcnt[0]

    def l2(self, e, bar1):
        nb = [0]
        def bar():
            e('s_barrier'); nb[0] += 1
        cnt, done = self.lcnt, self.ldone
        issue = lambda j: self.lissue(e, j)
        def lbar(j):
            e(f's_waitcnt vmcnt({cnt[0] - done[j]})'); bar()
        bar1('L')
        e('s_sleep 5')
        for j in range(2): issue(j)
        lbar(0)
        LA = int(os.environ.get('LA', '3'))
        nxt = max(done) + 1
        while nxt < LA + 1:
            issue(nxt); nxt += 1
        for i in range(16):
            if i + 1 < 16: lbar(i + 1)
            else: bar()
            while nxt < 16 and nxt <= i + 1 + LA:
                issue(nxt); nxt += 1
        bar(); bar()
        bar()
        self.nb['L2'] = nb[0]
        def yy_poll():
            e(f's_cmp_eq_u32 s{s_w}, 8')
            e('s_cbranch_scc0 F3_NOYP')
            e('s_load_dwordx2 s[72:73], s[0:1], 104')
            e(f's_lshl_b32 s75, s{s_cb}, 7')
            e(f's_add_u32 s75, s75, {FL2A}')
            e('s_waitcnt lgkmcnt(0)')
            self.spoll(e, 'F2Aa', 75, 0, 16)
            self.spoll(e, 'F2Ab', 75, 16, 16)
            e.label('F3_NOYP')
        self.p3.loader(yy_poll)
        e('s_endpgm')

def gen_kf():
    e = Emitter()
    H = Hooks(); H.name = NAME
    H.p3 = k3c.P3(e)
    nbar = K1.gen_k1(e=e, fused=True, H=H)
    print('phase1 barriers', nbar, 'phase2', H.nb, 'phase3')
    assert nbar['A'] == nbar['L'] == 23 and nbar['B'] == 23 and nbar['I1'] == 1 and nbar['I2'] == 1, nbar
    assert H.nb['A2'] - 1 == H.nb['B2'] == H.nb['L2'] == 20, H.nb
    e.label('KF_CODE_END')
    nn = e.finalize()
    return kernel_wrap(NAME, e.text(), vgpr=168, sgpr=102 if K1.DIAG else 96), nn
```

```python
from common import *
import k1 as K1
import k3b as K3
import k3c
import os
HCP = 4160
CW_U = 4 * HCP
CW_SZ = CW_U + 512 + 4096
CONV0 = 65536
Z1L = K1.Z1L
LDSF = Z1L + 12288
BLOCKF = 768
NAME = 'recurrent_scan__ssm_conv_h3__mixer_gmlp__prompt_kernel'
POLL_MAX = 1 << 21

s_rb, s_cb, s_w, s_wl = 32, 33, 34, 55
s_t0, s_t1, s_t2 = 40, 41, 42
s_mask = 47; s_ex = 52
sWS = 16; sD = 4
P = 56
vLane, vQ, vL15 = 1, 2, 3

class Hooks:
    def __init__(self):
        self.nb = {}
    def flag_addr(self, e, v, vt):
        e(f's_lshl_b32 s{s_t0}, s{s_cb}, 7')
        e(f's_lshl_b32 s{s_t1}, s{s_rb}, 2')
        e(f's_add_u32 s{s_t0}, s{s_t0}, s{s_t1}')
        e(f's_add_u32 s{s_t1}, s{s_t0}, {FL2A}')
        e(f's_add_u32 s{s_t0}, s{s_t0}, {FL1}')
        e(f'v_mov_b32 v{v}, s{s_t0}')
        e(f'v_mov_b32 v{vt}, s{s_t1}')
        e(f'v_cmp_eq_u32 vcc, 1, v{vLane}')
        e(f'v_cndmask_b32 v{v}, v{v}, v{vt}, vcc')
        e(f's_lshl_b32 s{s_t0}, s{s_rb}, 5')
        e(f's_lshl_b32 s{s_t1}, s{s_cb}, 2')
        e(f's_add_u32 s{s_t0}, s{s_t0}, s{s_t1}')
        e(f's_add_u32 s{s_t0}, s{s_t0}, {FL2B}')
        e(f'v_mov_b32 v{vt}, s{s_t0}')
        e(f'v_cmp_eq_u32 vcc, 2, v{vLane}')
        e(f'v_cndmask_b32 v{v}, v{v}, v{vt}, vcc')
        e(f's_lshl_b32 s{s_t0}, s{s_cb}, 7')
        e(f's_lshl_b32 s{s_t1}, s{s_rb}, 2')
        e(f's_add_u32 s{s_t0}, s{s_t0}, s{s_t1}')
        e(f's_add_u32 s{s_t0}, s{s_t0}, {FLKV}')
        e(f'v_mov_b32 v{vt}, s{s_t0}')
        e(f'v_cmp_eq_u32 vcc, 3, v{vLane}')
        e(f'v_cndmask_b32 v{v}, v{v}, v{vt}, vcc')

    def after_A(self, e, stp, bar1):
        e('s_waitcnt vmcnt(0)')
        bar1('A')
        p1 = os.environ.get('P1ST') == '1'
        stp.mute = False
        stp.stamp(e)
        stp.mute = p1
        self.g2(e, stp)
    def after_B(self, e, stB, bar1):
        e(f's_cmp_eq_u32 s{s_w}, 7')
        e('s_cbranch_scc0 F2_NOCNT')
        e('s_waitcnt vmcnt(0)')
        set_exec(e, 0xffffffff, 0)
        e('v_cmp_gt_u32 vcc, 8, v167')
        e(f's_mov_b64 exec, s[{s_ex}:{s_ex+1}]')
        e('s_cmp_eq_u64 vcc, 0')
        e('s_cbranch_scc1 F2_NOCNT')
        e(f'v_lshlrev_b32 v6, 2, v{vLane}')
        self.poll(e, 'CNT', 6, 7, sD, 0xffffffff, 0, 8, ge=True)
        e.label('F2_NOCNT')
        e('s_waitcnt lgkmcnt(0)')
        self.c2(e, stB, bar1)
    def after_L(self, e, bar1):
        self.l2(e, bar1)

    def g2(self, e, stp):
        nb = [0]
        def bar():
            e('s_barrier'); nb[0] += 1
        sB = 12
        s_fh, s_kh, s_st, s_bz, s_kz, s_sd = 35, 36, 37, 38, 39, 43
        vB0, vB1, vA, vT = 4, 5, 6, 9
        BF = 16; ACC = 48; ZA = 96
        e.c('phase 2: G')
        if os.environ.get('PRIOG'): e(f"s_setprio {os.environ['PRIOG']}")
        e(f's_load_dwordx2 s[{P}:{P+1}], s[0:1], 72')
        e(f's_and_b32 s{s_fh}, s{s_w}, 1')
        e(f's_lshr_b32 s{s_kh}, s{s_w}, 1')
        e(f'v_xor_b32 v{vT}, v{vQ}, v{vL15}')
        e(f'v_lshlrev_b32 v{vT}, 4, v{vT}')
        e(f's_lshl_b32 s{s_t0}, s{s_kh}, 6')
        e(f'v_xor_b32 v{vT}, s{s_t0}, v{vT}')
        e(f'v_lshlrev_b32 v{vT+1}, 8, v{vL15}')
        e(f'v_add_u32 v{vB0}, v{vT}, v{vT+1}')
        e(f'v_xor_b32 v{vB1}, 128, v{vB0}')
        e(f's_mul_i32 s{s_t0}, s{s_cb}, 6')
        e(f's_mul_i32 s{s_t1}, s{s_fh}, 3')
        e(f's_add_u32 s{s_t0}, s{s_t0}, s{s_t1}')
        e(f's_lshl_b32 s{s_t0}, s{s_t0}, 16')
        e(f's_add_u32 s{s_t0}, s{s_t0}, {Z2F}')
        e(f'v_lshlrev_b32 v{vT}, 4, v{vLane}')
        for ft in range(3):
            e(f's_add_u32 s{s_t1}, s{s_t0}, {ft*65536}')
            e(f'v_add_u32 v{vA+ft}, s{s_t1}, v{vT}')
        e(f's_lshl_b32 s{s_kz}, s{s_kh}, 10')
        for i in range(48): e(f'v_mov_b32 v{ACC+i}, 0')
        e('s_waitcnt lgkmcnt(0)')
        srd(e, sB, P, S*2)
        def zl(n6, s_off):
            return [f'buffer_load_dwordx4 v[{ZA+(n6*3+ft)*4}:{ZA+(n6*3+ft)*4+3}], v{vA+ft}, s[{sWS}:{sWS+3}], s{s_off} offen sc1' for ft in range(3)]
        bar()
        stp.stamp(e)
        for n in range(5):
            e(f's_add_u32 s{s_bz}, s{s_kz}, {2*n*1024}')
            for x in zl(n, s_bz): e(x)
        def brd(buf, vb):
            return [f'ds_read_b128 v[{BF+buf*16+tt*4}:{BF+buf*16+tt*4+3}], v{vb} offset:{tt*4096}' for tt in range(4)]
        def mfl(buf, n6):
            L = []
            for tt in range(4):
                for ft in range(3):
                    a = ACC + (ft*4+tt)*4; z = ZA + (n6*3+ft)*4; b = BF + buf*16 + tt*4
                    L.append(f'v_mfma_f32_16x16x32_bf16 v[{a}:{a+3}], v[{z}:{z+3}], v[{b}:{b+3}], v[{a}:{a+3}]')
            return L
        def zoff(add):
            e(f's_lshl_b32 s{s_t0}, s{s_st}, 1')
            e(f's_add_u32 s{s_t0}, s{s_t0}, {add}')
            e(f's_lshl_b32 s{s_bz}, s{s_t0}, 11')
            e(f's_add_u32 s{s_bz}, s{s_bz}, s{s_kz}')
            e(f's_cmp_lt_u32 s{s_t0}, 32')
            e(f's_cselect_b32 s{s_bz}, s{s_bz}, 0x80000000')
        e(f's_mov_b32 s{s_st}, 0')
        if K1.BARST:
            e('s_mov_b32 m0, 0'); e('s_memtime s[90:91]'); e('v_mov_b32 v15, 0')
        for x in brd(0, vB0): e(x)
        e.label('F2_GLOOP')
        for u in range(3):
            n0 = (2*u) % 6; n1 = (2*u + 1) % 6
            zoff(5)
            e('s_waitcnt vmcnt(12) lgkmcnt(0)')
            fills = [[] for _ in range(12)]
            for k_, r in enumerate(brd(1, vB1)): fills[k_].append(r)
            for k_, z in enumerate(zl((n0 + 5) % 6, s_bz)): fills[4 + 2*k_].append(z)
            weave(e, mfl(0, n0), fills)
            e(f's_and_b32 s{s_t0}, s{s_st}, 3')
            e(f's_movk_i32 s{s_sd}, 16384')
            e(f's_cmp_eq_u32 s{s_t0}, 3')
            e(f's_cselect_b32 s{s_sd}, {(-49152) & 0xffffffff}, s{s_sd}')
            zoff(6)
            e('s_waitcnt lgkmcnt(0)')
            if K1.BARST:
                e('v_writelane_b32 v15, s90, m0'); e('s_add_u32 m0, m0, 1')
            e('s_barrier')
            if K1.BARST: e('s_memtime s[90:91]')
            e(f'v_add_u32 v{vB0}, s{s_sd}, v{vB0}')
            e('s_waitcnt vmcnt(12)')
            fills = [[] for _ in range(12)]
            for k_, r in enumerate(brd(0, vB0)): fills[k_].append(r)
            for k_, z in enumerate(zl((n1 + 5) % 6, s_bz)): fills[4 + 2*k_].append(z)
            weave(e, mfl(1, n1), fills)
            e(f'v_add_u32 v{vB1}, s{s_sd}, v{vB1}')
            e(f's_add_u32 s{s_st}, s{s_st}, 1')
            e(f's_cmp_eq_u32 s{s_st}, 16')
            if u < 2: e('s_cbranch_scc1 F2_GDONE')
            else: e('s_cbranch_scc0 F2_GLOOP')
        e.label('F2_GDONE')
        nb[0] += 16
        if K1.BARST:
            e('s_waitcnt lgkmcnt(0)')
            e('v_writelane_b32 v15, s90, m0')
            e(f's_lshl_b32 s{s_t0}, s2, 3'); e(f's_add_u32 s{s_t0}, s{s_t0}, s{s_w}'); e(f's_lshl_b32 s{s_t0}, s{s_t0}, 7')
            e(f's_add_u32 s{s_t0}, s{s_t0}, {TSB + 1*0x40000}')
            e(f'v_lshlrev_b32 v14, 2, v{vLane}')
            set_exec(e, 0xffffffff, 0)
            e(f'buffer_store_dword v15, v14, s[{sWS}:{sWS+3}], s{s_t0} offen')
            e(f's_mov_b64 exec, s[{s_ex}:{s_ex+1}]')
        stp.stamp(e)
        e.c('G epilogue')
        BS = vT + 6
        e(f's_lshl_b32 s{s_t0}, s{s_rb}, 2')
        e(f's_add_u32 s45, s{s_t0}, s{s_w}')
        e(f'v_lshlrev_b32 v{vT+1}, 1, v{vL15}')
        e(f's_lshl_b32 s{s_t0}, s45, 5')
        e(f'buffer_load_ushort v{BS}, v{vT+1}, s[{sB}:{sB+3}], s{s_t0} offen')
        e(f's_mul_i32 s{s_t0}, s{s_w}, 3072')
        e(f'v_lshlrev_b32 v{vT}, 4, v{vLane}')
        e(f'v_add_u32 v{vT+1}, s{s_t0}, v{vT}')
        for tt in range(4):
            for ft in range(3):
                a = ACC + (ft*4 + tt)*4
                e(f'ds_write_b128 v{vT+1}, v[{a}:{a+3}] offset:{tt*12288 + ft*1024}')
                if (tt*3 + ft) % 6 == 5: e('s_waitcnt lgkmcnt(6)')
        e('s_waitcnt lgkmcnt(0)')
        bar()
        RX = 16
        e(f's_mul_i32 s{s_t0}, s{s_w}, 12288')
        e(f'v_add_u32 v{vT+1}, s{s_t0}, v{vT}')
        for v in range(4):
            for ft in range(3):
                r = RX + (v*3 + ft)*4
                e(f'ds_read_b128 v[{r}:{r+3}], v{vT+1} offset:{v*3072 + ft*1024}')
            if v == 2: e('s_waitcnt lgkmcnt(6)')
        Z1 = 64
        e(f's_mul_i32 s{s_t0}, s{s_w}, 3072')
        e(f's_add_u32 s{s_t0}, s{s_t0}, {Z1L}')
        e(f'v_lshlrev_b32 v{vT+2}, 3, v{vLane}')
        e(f'v_add_u32 v{vT+2}, s{s_t0}, v{vT+2}')
        e('s_waitcnt lgkmcnt(6)')
        for ftg in range(6):
            e(f'ds_read_b64 v[{Z1+2*ftg}:{Z1+2*ftg+1}], v{vT+2} offset:{ftg*512}')
        bar()
        e('s_waitcnt vmcnt(0)')
        BSP = 92
        e(f'v_lshlrev_b32 v{BSP}, 16, v{BS}')
        e(f's_mul_i32 s{s_t0}, s45, {24*1024}')
        e(f's_mul_i32 s{s_t1}, s{s_cb}, {3*1024}')
        e(f's_add_u32 s{s_t0}, s{s_t0}, s{s_t1}')
        e(f's_add_u32 s{s_t0}, s{s_t0}, {PF}')
        e('s_waitcnt lgkmcnt(0)')
        OUTP = 76
        TU = 88
        for ftg in range(6):
            fh, ft = ftg // 3, ftg % 3
            a = RX + ((fh + 0)*3 + ft)*4
            b = RX + ((fh + 2)*3 + ft)*4
            for p in range(2): e(f'v_pk_add_f32 v[{a+2*p}:{a+2*p+1}], v[{a+2*p}:{a+2*p+1}], v[{b+2*p}:{b+2*p+1}]')
            for p in range(2):
                e(f'v_lshlrev_b32 v{TU+2*p}, 16, v{Z1+2*ftg+p}')
                e(f'v_and_b32 v{TU+2*p+1}, s{s_mask}, v{Z1+2*ftg+p}')
            for p in range(2): e(f'v_pk_add_f32 v[{a+2*p}:{a+2*p+1}], v[{a+2*p}:{a+2*p+1}], v[{BSP}:{BSP+1}] op_sel_hi:[1,0]')
            for p in range(2): e(f'v_pk_mul_f32 v[{a+2*p}:{a+2*p+1}], v[{a+2*p}:{a+2*p+1}], v[{TU+2*p}:{TU+2*p+1}]')
            for p in range(2):
                e(f'v_cvt_pk_bf16_f32 v{OUTP+2*ftg+p}, v{a+2*p}, v{a+2*p+1}')
            if ftg % 2 == 1:
                j = ftg // 2
                e(f'buffer_store_dwordx4 v[{OUTP+4*j}:{OUTP+4*j+3}], v{vT}, s[{sWS}:{sWS+3}], s{s_t0} offen offset:{j*1024} sc1')
        e('s_waitcnt vmcnt(0)')
        bar()
        stp.stamp(e)
        self.p3.setup(True)
        bar()
        stp.stamp(e)
        self.p3.main(True, 'a')
        if K1.DIAG:
            e('s_memrealtime s[56:57]'); e('s_memtime s[58:59]'); e('s_waitcnt lgkmcnt(0)')
            e('s_sub_u32 s60, s56, s96'); e('s_sub_u32 s61, s58, s98')
            e(f's_cmp_eq_u32 s{s_w}, 0'); e('s_cbranch_scc0 FD_END')
            e('s_and_b32 s62, s2, 63'); e('s_cmp_eq_u32 s62, 0'); e('s_cbranch_scc0 FD_END')
            e('s_lshr_b32 s62, s2, 6'); e('s_lshl_b32 s62, s62, 4')
            e('v_mov_b32 v12, s62'); e('v_mov_b32 v16, s60'); e('v_mov_b32 v17, s61'); e('v_mov_b32 v18, s96'); e('v_mov_b32 v19, s56')
            set_exec(e, 1, 0)
            e(f'buffer_store_dwordx4 v[16:19], v12, s[{sD}:{sD+3}], 0 offen')
            e.label('FD_END')
        stp.flush(e, 0, sWS, 12, s_w)
        e('s_endpgm')
        self.nb['A2'] = nb[0]

    def poll(self, e, tag, vaddr, vval, srd, nlanes_lo, nlanes_hi, want, ge=False):
        e(f's_mov_b32 s{s_t2}, 0')
        set_exec(e, nlanes_lo, nlanes_hi)
        e.label(f'FP_{tag}')
        e(f'buffer_load_dword v{vval}, v{vaddr}, s[{srd}:{srd+3}], 0 offen offset:{K1.CB if srd == sD else 0} sc1')
        e('s_waitcnt vmcnt(0)')
        e(f'v_cmp_{"gt" if ge else "ne"}_u32 vcc, {want}, v{vval}')
        e(f's_add_u32 s{s_t2}, s{s_t2}, 1')
        e('s_cmp_eq_u64 vcc, 0')
        e(f's_cbranch_scc1 FP_{tag}_OK')
        e(f's_cmp_lt_u32 s{s_t2}, {POLL_MAX}')
        e(f's_cbranch_scc0 FP_{tag}_OK')
        e('s_sleep 1')
        e(f's_branch FP_{tag}')
        e.label(f'FP_{tag}_OK')
        e(f's_mov_b64 exec, s[{s_ex}:{s_ex+1}]')

    def spoll(self, e, tag, off_sgpr, first, n):
        e(f's_add_u32 s74, s{off_sgpr}, {first*4}')
        e(f's_mov_b32 s{s_t2}, 0')
        e.label(f'SP_{tag}')
        e(f's_load_dwordx{n} s[56:{56+n-1}], s[72:73], s74 glc')
        e('s_waitcnt lgkmcnt(0)')
        k = n
        while k > 1:
            k //= 2
            for i in range(0, k, 2) if k >= 2 else [0]:
                if k >= 2: e(f's_and_b64 s[{56+i}:{57+i}], s[{56+i}:{57+i}], s[{56+k+i}:{57+k+i}]')
                else: e(f's_and_b32 s56, s56, s57')
        e(f's_add_u32 s{s_t2}, s{s_t2}, 1')
        e('s_cmp_eq_u32 s56, 1')
        e(f's_cbranch_scc1 SP_{tag}_OK')
        e(f's_cmp_lt_u32 s{s_t2}, {POLL_MAX}')
        e(f's_cbranch_scc1 SP_{tag}')
        e.label(f'SP_{tag}_OK')

    def kv_store(self, e, vt):
        KVS, KVP_ = K1.KVS, K1.KVP_
        KO = 16
        if os.environ.get('SLP') == '1': e('s_sleep 3')
        e(f's_sub_u32 s{s_t2}, s{s_w}, 4')
        e(f'v_lshrrev_b32 v{vt}, 3, v{vLane}')
        e(f's_lshl_b32 s{s_t0}, s{s_t2}, 3')
        e(f'v_add_u32 v{vt}, s{s_t0}, v{vt}')
        e(f'v_and_b32 v{vt+1}, 7, v{vLane}')
        e(f'v_lshlrev_b32 v{vt+1}, 4, v{vt+1}')
        e(f'v_mul_u32_u24 v{vt+2}, {KVP_}, v{vt}')
        e(f'v_add_u32 v{vt+2}, v{vt+2}, v{vt+1}')
        e(f'v_add_u32 v{vt+2}, {KVS}, v{vt+2}')
        e(f'v_lshlrev_b32 v{vt}, 12, v{vt}')
        e(f'v_add_u32 v{vt}, v{vt}, v{vt+1}')
        for n in range(4):
            e(f'ds_read_b128 v[{KO+4*n}:{KO+4*n+3}], v{vt+2} offset:{n*24*KVP_}')
        e(f's_mul_i32 s{s_t0}, s{s_cb}, {80*4096}')
        e(f's_lshl_b32 s{s_t1}, s{s_rb}, 7')
        e(f's_add_u32 s{s_t0}, s{s_t0}, s{s_t1}')
        e(f's_add_u32 s{s_t0}, s{s_t0}, {KVT}')
        e('s_waitcnt lgkmcnt(0)')
        for n in range(4):
            if n == 3:
                e(f's_cmp_eq_u32 s{s_t2}, 0')
                e(f's_cselect_b32 s{s_t0}, s{s_t0}, 0x80000000')
            e(f'buffer_store_dwordx4 v[{KO+4*n}:{KO+4*n+3}], v{vt}, s[{sWS}:{sWS+3}], s{s_t0} offen sc1')
            e(f's_add_u32 s{s_t0}, s{s_t0}, {24*4096}')

    def cnt_early(self, e):
        sH, sDd = 20, 24
        HC = 136; X = 160; DV = 166
        e(f's_load_dwordx4 s[{P+8}:{P+11}], s[0:1], 32')
        e(f's_sub_u32 s{s_t2}, s{s_w}, 4')
        e(f's_mul_i32 s44, s{s_cb}, 80')
        e(f's_mul_i32 s{s_t0}, s{s_rb}, 3')
        e(f's_lshl_b32 s{s_t1}, s{s_rb}, 1')
        e(f's_add_u32 s{s_t1}, s{s_t1}, 16')
        e(f's_cmp_lt_u32 s{s_rb}, 16')
        e(f's_cselect_b32 s{s_t0}, s{s_t0}, s{s_t1}')
        e(f's_cselect_b32 s{s_t1}, 3, 2')
        e(f's_add_u32 s44, s44, s{s_t0}')
        e(f's_add_u32 s44, s44, s{s_t2}')
        e(f's_cmp_lt_u32 s{s_t2}, s{s_t1}')
        e(f's_cselect_b32 s45, 1, 0')
        e(f's_cmp_eq_u32 s{s_w}, 7')
        e('s_cbranch_scc0 F2_NOCE')
        e(f'v_lshlrev_b32 v166, 2, v{vLane}')
        e(f'buffer_load_dword v167, v166, s[{sD}:{sD+3}], 0 offen offset:{K1.CB} sc1')
        e.label('F2_NOCE')


    def h_loads(self, e):
        sH, sDd = 20, 24
        HC = 136; X = 160; DV = 166
        e('s_waitcnt lgkmcnt(0)')
        e(f's_lshl_b32 s{s_t0}, s44, 12')
        e(f's_add_u32 s{sH}, s{P+8}, s{s_t0}')
        e(f's_addc_u32 s{sH+1}, s{P+9}, 0')
        e(f's_and_b32 s{sH+1}, s{sH+1}, 0xffff')
        e(f's_mov_b32 s{sH+2}, 4096')
        e(f's_mov_b32 s{sH+3}, 0x20000')
        srd(e, sDd, P+10, D*2)
        e(f'v_lshlrev_b32 v167, 4, v{vLane}')
        for n in range(4):
            c = HC + n*6
            e(f'buffer_load_dwordx4 v[{c}:{c+3}], v167, s[{sH}:{sH+3}], 0 offen offset:{n*1024} {NT1}')
            e(f'buffer_load_dwordx2 v[{c+4}:{c+5}], v167, s[{sH}:{sH+3}], 0 offen offset:{n*1024+16} {NT1}')
        e(f'v_mov_b32 v167, 0')
        e(f'buffer_load_dwordx2 v[{X+4}:{X+5}], v167, s[{sH}:{sH+3}], 0 offen')
        e(f's_lshl_b32 s{s_t0}, s44, 1')
        e(f'buffer_load_ushort v{DV}, v167, s[{sDd}:{sDd+3}], s{s_t0} offen')

    def c2(self, e, stC, bar1):
        nb = [0]
        def bar():
            e('s_barrier'); nb[0] += 1
        sH, sDd = 20, 24
        s_d, s_base, s_p = 35, 36, 37
        vA_, vB_ = 4, 5
        vT = 6
        HC = 136; X = 160; DV = 46; ACC = 48
        e.c('phase 2: B stream')
        e(f's_cmp_eq_u32 s{s_w}, 7')
        e('s_cbranch_scc1 F2_SYNC')
        e(f's_cmp_eq_u32 s45, 0')
        e('s_cbranch_scc1 F2_IDLE')
        e(f's_mov_b32 s{s_d}, s44')
        e(f's_sub_u32 s{s_t2}, s{s_w}, 4')
        e(f's_mul_i32 s{s_base}, s{s_t2}, {CW_SZ}')
        e(f's_add_u32 s{s_base}, s{s_base}, {CONV0}')
        e(f'v_add_u32 v{vT+4}, 1, v{vL15}')
        e(f'v_and_b32 v{vT+4}, 3, v{vT+4}')
        e(f'v_lshrrev_b32 v{vT+5}, 1, v{vQ}')
        e(f'v_and_b32 v{vT+6}, 1, v{vQ}')
        e(f'v_lshlrev_b32 v{vT+7}, 4, v{vT+5}')
        e(f'v_add_u32 v{vT+7}, v{vT+7}, v{vL15}')
        e(f'v_lshlrev_b32 v{vT+8}, 3, v{vT+6}')
        e(f'v_sub_u32 v{vT+7}, v{vT+7}, v{vT+8}')
        e(f'v_add_u32 v{vT+7}, 9, v{vT+7}')
        e(f'v_sub_u32 v{vT+7}, v{vT+7}, v{vT+4}')
        e(f'v_lshlrev_b32 v{vT+7}, 1, v{vT+7}')
        e(f'v_mul_u32_u24 v{vT+4}, {HCP}, v{vT+4}')
        e(f'v_add_u32 v{vT+7}, v{vT+7}, v{vT+4}')
        e(f'v_add_u32 v{vA_}, s{s_base}, v{vT+7}')
        e(f'v_sub_u32 v{vT+7}, v{vL15}, v{vT+5}')
        e(f'v_lshlrev_b32 v{vT+7}, 1, v{vT+7}')
        e(f'v_add_u32 v{vT+7}, v{vT+7}, v{vT+6}')
        e(f'v_lshlrev_b32 v{vT+7}, 4, v{vT+7}')
        e(f's_add_u32 s{s_t0}, s{s_base}, {CW_U + 512}')
        e(f'v_add_u32 v{vB_}, s{s_t0}, v{vT+7}')
        e('s_waitcnt vmcnt(0)')
        stC.stamp(e)
        bar1('B')
        stC.stamp(e)
        self.kv_store(e, 8)
        self.h_loads(e)
        bar()
        e('s_waitcnt vmcnt(0)')
        e(f'v_mov_b32 v{DV}, v166')
        e(f'v_mov_b32 v{vT+2}, 0'); e(f'v_mov_b32 v{vT+3}, 0')
        e(f'v_lshlrev_b32 v{vT+4}, 3, v{vLane}')
        e(f'v_add_u32 v{vT+4}, s{s_base}, v{vT+4}')
        e(f'ds_write_b64 v{vT+4}, v[{vT+2}:{vT+3}] offset:{CW_U}')
        e(f'v_lshlrev_b32 v{vT+4}, 4, v{vLane}')
        e(f'v_add_u32 v{vT+4}, s{s_base}, v{vT+4}')
        TM = 80
        def copies(c, off, k):
            t_ = TM + (k % 4)*12
            e(f'v_alignbit_b32 v{t_+0}, v{c+1}, v{c+0}, 16')
            e(f'v_alignbit_b32 v{t_+1}, v{c+2}, v{c+1}, 16')
            e(f'v_alignbit_b32 v{t_+2}, v{c+3}, v{c+2}, 16')
            e(f'v_alignbit_b32 v{t_+3}, v{c+4}, v{c+3}, 16')
            e(f'v_mov_b32 v{t_+4}, v{c+1}'); e(f'v_mov_b32 v{t_+5}, v{c+2}')
            e(f'v_mov_b32 v{t_+6}, v{c+3}'); e(f'v_mov_b32 v{t_+7}, v{c+4}')
            e(f'v_mov_b32 v{t_+8}, v{t_+1}'); e(f'v_mov_b32 v{t_+9}, v{t_+2}'); e(f'v_mov_b32 v{t_+10}, v{t_+3}')
            e(f'v_alignbit_b32 v{t_+11}, v{c+5}, v{c+4}, 16')
            e(f'ds_write_b128 v{vT+4}, v[{c}:{c+3}] offset:{off}')
            e(f'ds_write_b128 v{vT+4}, v[{t_}:{t_+3}] offset:{off + HCP}')
            e(f'ds_write_b128 v{vT+4}, v[{t_+4}:{t_+7}] offset:{off + 2*HCP}')
            e(f'ds_write_b128 v{vT+4}, v[{t_+8}:{t_+11}] offset:{off + 3*HCP}')
        for n in range(4):
            copies(HC + n*6, 32 + n*1024, n)
            e('s_waitcnt lgkmcnt(4)')
            if n == 1:
                e('s_waitcnt vmcnt(0)')
                bar()
            if n == 2: bar()
        for i in range(4): e(f'v_mov_b32 v{X+i}, 0')
        e(f'v_cmp_eq_u32 vcc, 1, v{vLane}')
        e(f'v_cndmask_b32 v{X+4}, 0, v{X+4}, vcc')
        e(f'v_cndmask_b32 v{X+5}, 0, v{X+5}, vcc')
        e('s_waitcnt lgkmcnt(0)')
        set_exec(e, 3, 0)
        copies(X, 0, 0)
        e(f's_mov_b64 exec, s[{s_ex}:{s_ex+1}]')
        e(f'v_lshlrev_b32 v{DV}, 16, v{DV}')
        for i in range(32): e(f'v_mov_b32 v{ACC+i}, 0')
        e('s_waitcnt vmcnt(0) lgkmcnt(0)')
        for _ in range(3): bar()
        e(f'v_lshlrev_b32 v{vT}, 4, v{vLane}')
        e(f's_lshl_b32 s{s_t0}, s{s_d}, 12')
        e(f's_add_u32 s{s_t0}, s{s_t0}, {KVT}')
        for n in range(4):
            e(f's_add_u32 m0, s{s_base}, {CW_U + 512 + n*1024}')
            e(f's_add_u32 s{s_t1}, s{s_t0}, {n*1024}')
            e(f'buffer_load_dwordx4 v{vT}, s[{sWS}:{sWS+3}], s{s_t1} offen sc1 lds')
        AFr = 80; B0 = 112
        def a_rd(m):
            a = AFr + m*4
            return [f'ds_read_b64 v[{a}:{a+1}], v{vA_} offset:{m*512}', f'ds_read_b64 v[{a+2}:{a+3}], v{vA_} offset:{m*512+8}']
        def b_rd(ee):
            b = B0 + 4*ee
            return [f'ds_read_b128 v[{b}:{b+3}], v{vB_} offset:{ee*512}']
        for m in range(8):
            for x in a_rd(m): e(x)
            if m % 4 == 3: e('s_waitcnt lgkmcnt(6)')
        bar()
        e('s_waitcnt vmcnt(0)')
        for m in range(8):
            for x in b_rd(m): e(x)
        e(f's_mov_b32 s{s_p}, 0')
        e.label('F2_CLOOP')
        for half in range(2):
            e(f'v_add_u32 v{vA_}, 64, v{vA_}')
            e(f'v_subrev_u32 v{vB_}, 64, v{vB_}')
            e('s_waitcnt lgkmcnt(0)')
            for m in range(8):
                for c in range(m, 8):
                    a = AFr + m*4; b = B0 + (c-m)*4; d = ACC + c*4
                    e(f'v_mfma_f32_16x16x32_bf16 v[{d}:{d+3}], v[{a}:{a+3}], v[{b}:{b+3}], v[{d}:{d+3}]')
                for x in a_rd(m): e(x)
                for x in b_rd(7 - m): e(x)
                if m in (3, 6): e('s_waitcnt lgkmcnt(6)')
                if (half == 0 and m == 3) or (half == 1 and m == 1): e('s_barrier')
        e('s_barrier')
        e(f's_add_u32 s{s_p}, s{s_p}, 2')
        e(f's_cmp_lt_u32 s{s_p}, 8')
        e('s_cbranch_scc1 F2_CLOOP')
        nb[0] += 12
        e('s_waitcnt lgkmcnt(0)')
        e(f'v_lshlrev_b32 v{vT}, 5, v{vL15}')
        e(f'v_lshrrev_b32 v{vT+1}, 1, v{vQ}')
        e(f'v_lshlrev_b32 v{vT+1}, 4, v{vT+1}')
        e(f'v_add_u32 v{vT}, v{vT}, v{vT+1}')
        e(f'v_and_b32 v{vT+1}, 1, v{vQ}')
        e(f'v_xor_b32 v{vT+1}, 1, v{vT+1}')
        e(f'v_lshlrev_b32 v{vT+1}, 3, v{vT+1}')
        e(f'v_add_u32 v{vT}, v{vT}, v{vT+1}')
        e(f's_add_u32 s{s_t0}, s{s_base}, {CW_U + 512}')
        e(f'v_add_u32 v{vT}, s{s_t0}, v{vT}')
        KV = AFr
        for c in range(8):
            e(f'ds_read_b64 v[{KV+2*c}:{KV+2*c+1}], v{vT} offset:{c*512}')
        e(f'v_lshlrev_b32 v{vT+2}, 5, v{vL15}')
        e(f'v_lshlrev_b32 v{vT+3}, 3, v{vQ}')
        e(f'v_add_u32 v{vT+2}, v{vT+2}, v{vT+3}')
        e(f's_lshl_b32 s{s_t0}, s{s_d}, 12')
        e(f's_add_u32 s{s_t0}, s{s_t0}, {YYT}')
        e('s_waitcnt lgkmcnt(0)')
        U = B0
        for c in range(8):
            a = ACC + c*4; k0 = KV + 2*c; u = U + (c % 4)*8
            e(f'v_and_b32 v{u+0}, s{s_mask}, v{k0+1}')
            e(f'v_lshlrev_b32 v{u+1}, 16, v{k0+1}')
            e(f'v_and_b32 v{u+2}, s{s_mask}, v{k0}')
            e(f'v_lshlrev_b32 v{u+3}, 16, v{k0}')
            for r in range(4): e(f'v_fmac_f32 v{a+r}, v{u+r}, v{DV}')
            e(f'v_cvt_pk_bf16_f32 v{u+4}, v{a}, v{a+1}')
            e(f'v_cvt_pk_bf16_f32 v{u+5}, v{a+2}, v{a+3}')
            e(f'buffer_store_dwordx2 v[{u+4}:{u+5}], v{vT+2}, s[{sWS}:{sWS+3}], s{s_t0} offen offset:{c*512} sc1')
        e('s_waitcnt vmcnt(0)')
        bar()
        n_c = nb[0]
        e.label('F3_IDLE')
        self.p3.setup(False)
        e('s_barrier')
        e.label('F3_BMAIN')
        self.p3.main(False, 'b')
        stC.flush(e, 0, sWS, vT, s_w)
        e('s_endpgm')
        e.label('F2_IDLE')
        e('s_waitcnt vmcnt(0)')
        bar1('I1')
        self.kv_store(e, 8)
        e('s_barrier')
        e('s_waitcnt vmcnt(0)')
        for _ in range(n_c - 1): e('s_barrier')
        e('s_branch F3_IDLE')
        e.label('F2_SYNC')
        vt = 150
        JIT = os.environ.get('TOUCH', 'p2') == 'jit'
        TRIM = os.environ.get('TRIM', '0') == '1'
        sSP = 8
        e('s_load_dwordx2 s[72:73], s[0:1], 104')
        if not TRIM: e('s_waitcnt lgkmcnt(0)')
        if JIT or not TRIM:
            e(f's_load_dwordx2 s[70:71], s[0:1], 64')
            e(f's_lshl_b32 s{s_t0}, s{s_rb}, 6')
            e(f's_lshl_b32 s{s_t1}, s{s_cb}, 3')
            e(f's_add_u32 s{s_t0}, s{s_t0}, s{s_t1}')
            e(f'v_lshrrev_b32 v20, 3, v{vLane}')
            e(f'v_add_u32 v20, s{s_t0}, v20')
            e(f'v_lshlrev_b32 v20, 12, v20')
            e(f'v_and_b32 v21, 7, v{vLane}')
            e(f'v_lshlrev_b32 v21, 6, v21')
            e(f'v_add_u32 v20, v20, v21')
            e(f'v_lshrrev_b32 v22, 2, v{vLane}')
            e(f'v_add_u32 v22, s{s_t0}, v22')
            e(f'v_lshlrev_b32 v22, 12, v22')
            e(f'v_and_b32 v21, 3, v{vLane}')
            e(f'v_lshlrev_b32 v21, 6, v21')
            e(f'v_add_u32 v22, v22, v21')
            e('s_waitcnt lgkmcnt(0)')
            srd(e, sSP, 70, S*S*2)
        self.flag_addr(e, vt+2, vt+3)
        e(f'v_mov_b32 v{vt+4}, 1')
        e('s_waitcnt vmcnt(0) lgkmcnt(0)')
        bar1('I2')
        stS = Stamper(); stS.n = 1
        stS.stamp(e)
        set_exec(e, 1, 0)
        e(f'buffer_store_dword v{vt+4}, v{vt+2}, s[{sWS}:{sWS+3}], 0 offen sc1')
        e(f's_mov_b64 exec, s[{s_ex}:{s_ex+1}]')
        for p in range(1, 3 if JIT else 0):
            e(f'buffer_load_dword v{24+p}, v20, s[{sSP}:{sSP+3}], 0 offen offset:{p*512}')
        SPOLL = os.environ.get('SPOLL', '1') == '1'
        e(f's_lshl_b32 s{s_t0}, s{s_cb}, 7')
        e(f's_add_u32 s75, s{s_t0}, {FL1}')
        e(f's_add_u32 s{s_t0}, s{s_t0}, {FL1}')
        e(f'v_lshlrev_b32 v{vt}, 2, v{vLane}')
        e(f'v_add_u32 v{vt}, s{s_t0}, v{vt}')
        if SPOLL:
            self.spoll(e, 'F1a', 75, 0, 8)
        else:
            self.poll(e, 'F1a', vt, vt+1, sWS, 0x3f, 0, 1)
        stS.stamp(e)
        e('s_barrier')
        stS.stamp(e)
        def mbar(i):
            e('s_barrier')
            j = i + 6
            if j < 16 and JIT:
                e('s_mov_b32 exec_hi, 0')
                e(f's_movk_i32 s{s_t0}, {j*256}')
                e(f'buffer_load_dword v{28 + (i % 4)}, v22, s[{sSP}:{sSP+3}], s{s_t0} offen')
                e('s_mov_b32 exec_hi, -1')
        mbar(0)
        set_exec(e, 8, 0)
        e(f'buffer_store_dword v{vt+4}, v{vt+2}, s[{sWS}:{sWS+3}], 0 offen sc1')
        e(f's_mov_b64 exec, s[{s_ex}:{s_ex+1}]')
        self.spoll(e, 'F1b', 75, 8, 8)
        mbar(1)
        mbar(2)
        self.spoll(e, 'F1c', 75, 16, 16)
        mbar(3)
        e(f's_add_u32 s75, s75, {FLKV - FL1}')
        self.spoll(e, 'FKa', 75, 0, 16)
        self.spoll(e, 'FKb', 75, 16, 16)
        for i in range(4, 16): mbar(i)
        e('s_barrier')
        self.p3.setup(False)
        e('s_barrier'); e('s_barrier')
        set_exec(e, 6, 0)
        e(f'buffer_store_dword v{vt+4}, v{vt+2}, s[{sWS}:{sWS+3}], 0 offen sc1')
        e(f's_mov_b64 exec, s[{s_ex}:{s_ex+1}]')
        e(f's_lshl_b32 s{s_t0}, s{s_rb}, 5')
        e(f's_add_u32 s75, s{s_t0}, {FL2B}')
        self.spoll(e, 'F2B', 75, 0, 8)
        e('s_barrier')
        e('s_branch F3_BMAIN')
        self.nb['B2'] = n_c

    def l2_pre(self, e):
        sSP = 8
        vD = 4; t = 10
        s_bw, s_m = 38, 39
        e.c('phase 2: L (pre)')
        e(f's_load_dwordx2 s[{P}:{P+1}], s[0:1], 64')
        e(f's_load_dwordx2 s[{P+4}:{P+5}], s[0:1], 104')
        e(f's_lshl_b32 s{s_t0}, s{s_rb}, 6')
        e(f's_lshl_b32 s{s_t1}, s{s_wl}, 4')
        e(f's_add_u32 s{s_t0}, s{s_t0}, s{s_t1}')
        for tt in range(4):
            e(f'v_add_u32 v{t}, {4*tt}, v{vQ}')
            e(f'v_xor_b32 v{t+1}, v{t}, v{vL15}')
            e(f'v_lshlrev_b32 v{t+1}, 4, v{t+1}')
            e(f'v_add_u32 v{t}, s{s_t0}, v{t}')
            e(f'v_lshlrev_b32 v{t}, 12, v{t}')
            e(f'v_add_u32 v{vD+tt}, v{t}, v{t+1}')
        e(f's_lshl_b32 s{s_m}, s{s_wl}, 12')
        e('s_waitcnt lgkmcnt(0)')
        srd(e, sSP, P, S*S*2)
        srd(e, sWS, P+4, WS_SIZE)
        self.lcnt = [0]; self.ldone = {}
    def lissue(self, e, j):
        sSP = 8; vD = 4; s_bw, s_m = 38, 39
        e(f's_movk_i32 s{s_bw}, {j*256}')
        for tt in range(4):
            e(f's_add_u32 m0, s{s_m}, {(j % 4)*16384 + tt*1024}')
            e('s_nop 0')
            e(f'buffer_load_dwordx4 v{vD+tt}, s[{sSP}:{sSP+3}], s{s_bw} offen {NT3} lds')
        self.lcnt[0] += 4; self.ldone[j] = self.lcnt[0]

    def l2(self, e, bar1):
        nb = [0]
        def bar():
            e('s_barrier'); nb[0] += 1
        cnt, done = self.lcnt, self.ldone
        issue = lambda j: self.lissue(e, j)
        def lbar(j):
            e(f's_waitcnt vmcnt({cnt[0] - done[j]})'); bar()
        bar1('L')
        if os.environ.get('SLP') == '1': e('s_sleep 5')
        for j in range(int(os.environ.get('PRE', '3'))): issue(j)
        lbar(0)
        LA = int(os.environ.get('LA', '2'))
        nxt = max(done) + 1
        while nxt < LA + 1:
            issue(nxt); nxt += 1
        for i in range(16):
            if i + 1 < 16: lbar(i + 1)
            else: bar()
            while nxt < 16 and nxt <= i + 1 + LA:
                issue(nxt); nxt += 1
        bar(); bar()
        bar()
        self.nb['L2'] = nb[0]
        def yy_poll():
            e(f's_cmp_eq_u32 s{s_w}, 8')
            e('s_cbranch_scc0 F3_NOYP')
            e('s_load_dwordx2 s[72:73], s[0:1], 104')
            e(f's_lshl_b32 s75, s{s_cb}, 7')
            e(f's_add_u32 s75, s75, {FL2A}')
            e('s_waitcnt lgkmcnt(0)')
            self.spoll(e, 'F2Aa', 75, 0, 16)
            self.spoll(e, 'F2Ab', 75, 16, 16)
            e.label('F3_NOYP')
        self.p3.loader(yy_poll)
        e('s_endpgm')

def gen_kf():
    e = Emitter()
    H = Hooks(); H.name = NAME
    H.p3 = k3c.P3(e)
    nbar = K1.gen_k1(e=e, fused=True, H=H)
    print('phase1 barriers', nbar, 'phase2', H.nb, 'phase3')
    assert nbar['A'] == nbar['L'] == 23 and nbar['B'] == 23 and nbar['I1'] == 1 and nbar['I2'] == 1, nbar
    assert H.nb['A2'] - 1 == H.nb['B2'] == H.nb['L2'] == 20, H.nb
    e.label('KF_CODE_END')
    nn = e.finalize()
    return kernel_wrap(NAME, e.text(), vgpr=168, sgpr=102 if K1.DIAG else 96), nn
```

```python
from common import *

WSLOT = 12288; NSLOT = 5
XB0 = NSLOT * WSLOT
XST = 8192
PREP = XB0
PREPV = 11520
MISC = XB0 + 10 * XST
L_M1 = MISC; L_R1 = MISC + 256
L_CSA = MISC + 512
L_CSB = MISC + 1280
L_PS = MISC + 2048
L_PQ = MISC + 2560
L_W2 = MISC + 3072
LDS1 = 147456
import os
PREFETCH = os.environ.get('PREFETCH', '1') == '1'
XP_NOPREP = os.environ.get('XP_NOPREP', '0') == '1'
XP_NODOT = os.environ.get('XP_NODOT', '0') == '1'
XP_NOCOMP = os.environ.get('XP_NOCOMP', '0')
BLOCK1 = 768
DIAG = os.environ.get('DIAG') == '1'
CB = 128 if DIAG else 0
BARST = os.environ.get('BARST') == '1'
SENT = 0xbf800000

K1c = -2.0 * 1.4426950408889634 * 0.7978845608028654
K2c = K1c * 0.044715

KVS = 49152; KVP_ = 144; Z1L = 147456
def gen_k1(e=None, fused=False, H=None):
    if e is None: e = Emitter()
    SC = 'sc1' if fused else ''
    sX, sW, sWS, sK, sV, sT = 8, 12, 16, 20, 24, 28
    s_rb, s_cb, s_w, s_wr, s_wc, s_wl = 32, 33, 34, 35, 36, 55
    s_i, s_j, s_off, s_t0, s_t1, s_t2 = 37, 38, 39, 40, 41, 42
    s_z2b, s_z1b, s_slot, s_mask = 43, 44, 45, 47
    s_k2 = 48; s_one = 50; s_ex = 52; s_xo = 54
    sD = 4
    P = 56
    vLane, vQ, vL15 = 1, 2, 3
    vXA, vXB, vW = 4, 6, 8
    vT = 14
    XF = 26; WF = 42; ACC = 66; CS = 90; ONE = 102; SUM = 106; GR = 110; AP = 114; E = 126
    nbar = {'A': 0, 'B': 0, 'L': 0}
    def bar(role, name=''):
        e('s_barrier'); nbar[role] = nbar.get(role, 0) + 1

    e.c('---- k1: GEMM1 (LN1 folded) + gelu + LN2 + kv prep + w_out retile ; roles A(0-3) B(4-7) L(8)')
    e('s_cmp_ge_u32 s2, 256')
    e('s_cbranch_scc1 K1_END')
    stp = Stamper(); stp.start(e)
    if DIAG:
        e('s_memrealtime s[96:97]'); e('s_memtime s[98:99]')
    stp.mute = fused and os.environ.get('P1ST') != '1'
    e(f's_load_dwordx4 s[{P}:{P+3}], s[0:1], 0')
    e(f's_load_dwordx4 s[{P+4}:{P+7}], s[0:1], 16')
    e(f's_load_dwordx2 s[{P+8}:{P+9}], s[0:1], 56')
    e(f's_load_dwordx2 s[{P+10}:{P+11}], s[0:1], 80')
    e(f's_load_dwordx4 s[{P+12}:{P+15}], s[0:1], 96')
    e(f's_load_dwordx2 s[{P+18}:{P+19}], s[0:1], 64')
    e(f's_load_dwordx2 s[{P+20}:{P+21}], s[0:1], 32')
    e(f'v_and_b32 v{vLane}, 63, v0')
    e(f'v_lshrrev_b32 v{vT}, 6, v0')
    e(f'v_lshrrev_b32 v{vQ}, 4, v{vLane}')
    e(f'v_readfirstlane_b32 s{s_w}, v{vT}')
    e(f'v_and_b32 v{vL15}, 15, v{vLane}')
    e(f's_and_b32 s{s_t0}, s2, 7')
    e(f's_lshr_b32 s{s_t1}, s2, 3')
    e(f's_lshr_b32 s{s_rb}, s{s_t0}, 1')
    e(f's_lshl_b32 s{s_rb}, s{s_rb}, 3')
    e(f's_lshr_b32 s{s_t2}, s{s_t1}, 2')
    e(f's_add_u32 s{s_rb}, s{s_rb}, s{s_t2}')
    e(f's_and_b32 s{s_cb}, s{s_t0}, 1')
    e(f's_lshl_b32 s{s_cb}, s{s_cb}, 2')
    e(f's_and_b32 s{s_t2}, s{s_t1}, 3')
    e(f's_add_u32 s{s_cb}, s{s_cb}, s{s_t2}')
    e(f's_and_b32 s{s_wl}, s{s_w}, 3')
    e(f's_lshr_b32 s{s_wr}, s{s_wl}, 1')
    e(f's_and_b32 s{s_wc}, s{s_wl}, 1')
    e(f's_mov_b32 s{s_mask}, 0xffff0000')
    e(f's_mov_b64 s[{s_ex}:{s_ex+1}], exec')
    e(f's_mul_i32 s{s_z1b}, s{s_cb}, 192')
    e(f's_add_u32 s{s_z2b}, s{s_z1b}, {768*2}')
    e(f's_cmp_ge_u32 s{s_w}, 8')
    e('s_cbranch_scc0 K1_AB')

    e.c('loader (4 waves; L = w&3 handles instr n = 4h + L of each stage)')
    stL = Stamper(); stL.n = 1; stL.mute = fused
    vP, vPr = 4, 5
    VX = 8
    VW = 12
    t = 30
    s_L = s_wl
    s_xs, s_ws_, s_lb = s_j, s_off, s_slot
    e(f's_lshl_b32 s{s_t0}, s{s_rb}, 6')
    e(f's_lshl_b32 s{s_t1}, s{s_L}, 3')
    e(f's_add_u32 s{s_t0}, s{s_t0}, s{s_t1}')
    e(f's_lshl_b32 s{s_lb}, s{s_L}, 10')
    e(f'v_lshrrev_b32 v{t}, 3, v{vLane}')
    e(f'v_add_u32 v{t+2}, s{s_t1}, v{t}')
    e(f'v_lshrrev_b32 v{t+1}, 1, v{t+2}')
    e(f'v_xor_b32 v{t+1}, v{t+1}, v{vLane}')
    e(f'v_and_b32 v{t+1}, 7, v{t+1}')
    e(f'v_lshlrev_b32 v{t+1}, 4, v{t+1}')
    e(f'v_add_u32 v{t}, s{s_t0}, v{t}')
    e(f'v_mul_u32_u24 v{t}, 1280, v{t}')
    e(f'v_add_u32 v{VX}, v{t}, v{t+1}')
    e(f'v_add_u32 v{VX+1}, {32*1280}, v{VX}')
    e('s_waitcnt lgkmcnt(0)')
    stL.stamp(e)
    srd(e, sX, P, S*D*2)
    srd(e, sW, P+8, D*F*2)
    cnt = [0]; done_at = {}
    s_rot = s_i
    e(f's_and_b32 s{s_t0}, s{s_rb}, 7')
    e(f's_and_b32 s{s_t1}, s{s_cb}, 3')
    e(f's_mul_i32 s{s_t1}, s{s_t1}, 3')
    e(f's_add_u32 s{s_rot}, s{s_t0}, s{s_t1}')
    e(f's_sub_u32 s{s_t0}, s{s_rot}, 10')
    e(f's_cmp_ge_u32 s{s_rot}, 10')
    e(f's_cselect_b32 s{s_rot}, s{s_t0}, s{s_rot}')
    def kslice(j, dst):
        e(f's_add_u32 s{dst}, s{s_rot}, {j % 10}')
        e(f's_sub_u32 s{s_t0}, s{dst}, 10')
        e(f's_cmp_ge_u32 s{dst}, 10')
        e(f's_cselect_b32 s{dst}, s{s_t0}, s{dst}')
    def issue_x(j):
        kslice(j, s_xs)
        e(f's_lshl_b32 s{s_xs}, s{s_xs}, 7')
        for h in range(2):
            e(f's_add_u32 m0, s{s_lb}, {XB0 + j*XST + 4096*h}')
            e('s_nop 0')
            e(f'buffer_load_dwordx4 v{VX+h}, s[{sX}:{sX+3}], s{s_xs} offen {NT2} lds')
        cnt[0] += 2
    def issue_w(j):
        base = s_z2b if j < 10 else s_z1b
        kslice(j, s_ws_)
        e(f's_mul_i32 s{s_ws_}, s{s_ws_}, {64*3072}')
        e(f's_add_u32 s{s_ws_}, s{s_ws_}, s{base}')
        for h in range(3):
            e(f's_add_u32 m0, s{s_lb}, {(j % NSLOT)*WSLOT + 4096*h}')
            e('s_nop 0')
            e(f'buffer_load_dwordx4 v{VW+h}, s[{sW}:{sW+3}], s{s_ws_} offen {NT2} lds')
        cnt[0] += 3
    for h in range(3):
        e(f's_lshl_b32 s{s_t0}, s{s_L}, 6')
        e(f's_add_u32 s{s_t0}, s{s_t0}, {64*4*h}')
        e(f'v_add_u32 v{t}, s{s_t0}, v{vLane}')
        e(f'v_mul_u32_u24 v{t+1}, 5462, v{t}')
        e(f'v_lshrrev_b32 v{t+1}, 16, v{t+1}')
        e(f'v_mul_u32_u24 v{t+2}, 12, v{t+1}')
        e(f'v_sub_u32 v{t+2}, v{t}, v{t+2}')
        e(f'v_lshrrev_b32 v{t+3}, 2, v{t+1}')
        e(f'v_and_b32 v{t+3}, 2, v{t+3}')
        e(f'v_xor_b32 v{t+2}, v{t+2}, v{t+3}')
        e(f'v_lshlrev_b32 v{t+2}, 4, v{t+2}')
        e(f'v_mul_u32_u24 v{t+1}, 3072, v{t+1}')
        e(f'v_add_u32 v{VW+h}, v{t+1}, v{t+2}')
    stL.stamp(e)
    issue_x(0)
    issue_w(0); done_at[0] = cnt[0]
    def issue(j):
        if j < 10: issue_x(j)
        issue_w(j)
        done_at[j] = cnt[0]
    def lbar(k):
        n = cnt[0] - done_at[k]
        e(f's_waitcnt vmcnt({min(n, 63)})'); bar('L')
    vK0 = 20
    sa, sb, sc = 46, 78, 79
    PW = 6720
    def setup_prep():
        e(f'v_mul_u32_u24 v{vPr}, 6554, v{vLane}')
        e(f'v_lshrrev_b32 v{vPr}, 16, v{vPr}')
        e(f'v_mul_u32_u24 v{vP}, 10, v{vPr}')
        e(f'v_sub_u32 v{vP}, v{vLane}, v{vP}')
        e(f'v_lshlrev_b32 v{vP}, 4, v{vP}')
        e(f'v_mul_u32_u24 v{t}, 1280, v{vPr}')
        e(f'v_add_u32 v{vP}, v{vP}, v{t}')
        srd(e, sK, P+2, S*D*2)
        srd(e, sV, P+4, S*D*2)
        e(f's_lshl_b32 s{s_t0}, s{s_rb}, 6')
        e(f's_lshl_b32 s{s_t1}, s{s_L}, 4')
        e(f's_add_u32 s{s_t0}, s{s_t0}, s{s_t1}')
        e(f's_mul_i32 s{sa}, s{s_t0}, 1280')
        e(f's_mul_i32 s{s_t1}, s{s_cb}, 160')
        e(f's_add_u32 s{sa}, s{sa}, s{s_t1}')
        e(f's_mul_i32 s{sb}, s{s_L}, {PW}')
        e(f's_add_u32 s{sb}, s{sb}, {PREP}')
        e(f'v_mov_b32 v{vK0}, v{vP}')
        e(f's_sub_u32 s{sc}, s{sa}, {3*1280}')
        e(f's_cmp_eq_u32 s{s_t0}, 0')
        e('s_cbranch_scc0 K1_NONNEG')
        e(f'v_subrev_u32 v{vK0}, {3*1280}, v{vP}')
        e(f'v_cmp_gt_u32 vcc, 3, v{vPr}')
        e(f'v_mov_b32 v{t+1}, 0x80000000')
        e(f'v_cndmask_b32 v{vK0}, v{vK0}, v{t+1}, vcc')
        e(f's_mov_b32 s{sc}, s{sa}')
        e.label('K1_NONNEG')
        srd(e, sT, P+6, D*4*2)
        e(f'v_lshlrev_b32 v21, 4, v{vLane}')
        e(f's_mul_i32 s54, s{s_cb}, 640')
    def issue_prep():
        set_exec(e, 0xffffffff, 0x0fffffff)
        for n in range(4):
            e(f's_add_u32 m0, s{sb}, {n*960}')
            if n > 0: e(f's_add_u32 s{sc}, s{sa}, {(6*n-3)*1280}')
            else: e('s_nop 0')
            e(f'buffer_load_dwordx4 v{vK0 if n == 0 else vP}, s[{sK}:{sK+3}], s{sc} offen {NT1} lds')
        for n in range(3):
            e(f's_add_u32 m0, s{sb}, {3840 + n*960}')
            e(f's_add_u32 s{sc}, s{sa}, {6*n*1280}')
            e(f'buffer_load_dwordx4 v{vP}, s[{sV}:{sV+3}], s{sc} offen {NT1} lds')
        e(f's_mov_b64 exec, s[{s_ex}:{s_ex+1}]')
        e(f'buffer_load_dwordx4 v[156:159], v21, s[{sT}:{sT+3}], s54 offen')
        cnt[0] += 8
    def prefetch_tail():
        e(f'v_lshlrev_b32 v{t}, 6, v{vLane}')
        e(f's_and_b32 s{s_t0}, s2, 7')
        e(f's_lshl_b32 s{s_t0}, s{s_t0}, 8')
        e(f's_lshr_b32 s{s_t1}, s2, 3')
        e(f's_lshl_b32 s{s_t1}, s{s_t1}, 3')
        e(f's_add_u32 s{s_t0}, s{s_t0}, s{s_t1}')
        e(f's_lshl_b32 s{s_t1}, s{s_L}, 1')
        e(f's_add_u32 s{s_t0}, s{s_t0}, s{s_t1}')
        e(f's_lshl_b32 s{s_t0}, s{s_t0}, 12')
        srd(e, sK, P+18, S*S*2)
        for r in range(2):
            e(f'buffer_load_dword v{t+1+r}, v{t}, s[{sK}:{sK+3}], s{s_t0} offen')
            e(f's_add_u32 s{s_t0}, s{s_t0}, 4096')
        srd(e, sV, P+20, D*S*2)
        e(f's_mul_i32 s{s_t0}, s2, 3')
        e(f's_add_u32 s{s_t0}, s{s_t0}, s{s_L}')
        e(f's_lshl_b32 s{s_t0}, s{s_t0}, 12')
        e(f's_cmp_eq_u32 s{s_L}, 3')
        e(f's_cselect_b32 s{s_t0}, 0x80000000, s{s_t0}')
        e(f'buffer_load_dword v{t+5}, v{t}, s[{sV}:{sV+3}], s{s_t0} offen')
        cnt[0] += 3
    xs = {1: [1, 2], 2: [3, 4], 3: [5, 6], 4: [7, 8], 5: [9]}
    wn = 1
    if os.environ.get('UP1', '1') == '1':
        issue_x(1); issue_w(1); done_at[1] = cnt[0]; wn = 2
        xs = {1: [2, 3], 2: [4, 5], 3: [6, 7], 4: [8, 9]}
    EVEN = os.environ.get('SCHED', '')
    if EVEN:
        la = int(EVEN)
        xs = {}
        nx = wn
        for k_ in range(1, 20):
            while nx <= min(9, k_ + la):
                xs.setdefault(k_, []).append(nx); nx += 1
    for k in range(20):
        if k >= 1:
            lim = {1: 3 if os.environ.get('UP1', '1') == '1' else 2, 2: 4}.get(k, min(19, k + 2 if k <= 5 else k + 3))
            if EVEN: lim = min(19, k + la if k <= 9 else k + 3)
            todo_x = list(xs.get(k, []))
            while wn <= lim or todo_x:
                if todo_x: issue_x(todo_x.pop(0))
                if wn <= lim:
                    issue_w(wn); done_at[wn] = cnt[0]; wn += 1
                    if wn == 20: issue_prep()
        if k == 11: setup_prep()
        lbar(k)
        if k in (0, 1): stL.stamp(e)
    assert wn == 20
    SKL = 156; KR = 40; VRr = 59; KP = 76; CP = 114; KVP = 122; OUT = 40
    vt = 30
    e('s_waitcnt vmcnt(0)')
    e(f'v_lshlrev_b32 v{vt}, 2, v{vLane}')
    e(f'v_min_u32 v{vt}, 156, v{vt}')
    e(f'v_add_u32 v{vt}, s{sb}, v{vt}')
    for r in range(19):
        e(f'ds_read_b32 v{KR+r}, v{vt} offset:{r*160}')
        if r == 13: e('s_waitcnt lgkmcnt(6)')
    bar('L')
    for r in range(16):
        if r in (2, 10): e('s_waitcnt lgkmcnt(6)')
        e(f'ds_read_b32 v{VRr+r}, v{vt} offset:{3840 + r*160}')
    e(f'v_lshlrev_b32 v{CP+0}, 16, v{SKL+0}'); e(f'v_lshlrev_b32 v{CP+1}, 16, v{SKL+2}')
    e(f'v_and_b32 v{CP+2}, s{s_mask}, v{SKL+0}'); e(f'v_and_b32 v{CP+3}, s{s_mask}, v{SKL+2}')
    e(f'v_lshlrev_b32 v{CP+4}, 16, v{SKL+1}'); e(f'v_lshlrev_b32 v{CP+5}, 16, v{SKL+3}')
    e(f'v_and_b32 v{CP+6}, s{s_mask}, v{SKL+1}'); e(f'v_and_b32 v{CP+7}, s{s_mask}, v{SKL+3}')
    e('s_waitcnt lgkmcnt(0)')
    bar('L')
    for r in range(19):
        e(f'v_lshlrev_b32 v{KP+2*r}, 16, v{KR+r}')
        e(f'v_and_b32 v{KP+2*r+1}, s{s_mask}, v{KR+r}')
    for i in range(16):
        t_ = KVP + 2*i
        e(f'v_pk_mul_f32 v[{t_}:{t_+1}], v[{CP+6}:{CP+7}], v[{KP+2*i}:{KP+2*i+1}]')
        e(f'v_lshlrev_b32 v{vt+2}, 16, v{VRr+i}')
        e(f'v_pk_fma_f32 v[{t_}:{t_+1}], v[{CP+4}:{CP+5}], v[{KP+2*i+2}:{KP+2*i+3}], v[{t_}:{t_+1}]')
        e(f'v_and_b32 v{vt+3}, s{s_mask}, v{VRr+i}')
        e(f'v_pk_fma_f32 v[{t_}:{t_+1}], v[{CP+2}:{CP+3}], v[{KP+2*i+4}:{KP+2*i+5}], v[{t_}:{t_+1}]')
        e(f'v_pk_fma_f32 v[{t_}:{t_+1}], v[{CP+0}:{CP+1}], v[{KP+2*i+6}:{KP+2*i+7}], v[{t_}:{t_+1}]')
        e(f'v_pk_mul_f32 v[{t_}:{t_+1}], v[{t_}:{t_+1}], v[{vt+2}:{vt+3}]')
    for dd in range(2):
        for g in range(2):
            for n in range(4):
                lo = KVP + 2*(8*g + 7 - 2*n) + dd
                hi = KVP + 2*(8*g + 6 - 2*n) + dd
                e(f'v_cvt_pk_bf16_f32 v{OUT + dd*8 + g*4 + n}, v{lo}, v{hi}')
    e(f'v_mul_u32_u24 v{vt}, {2*KVP_}, v{vLane}')
    e(f's_lshl_b32 s{s_t0}, s{s_wl}, 5')
    e(f's_add_u32 s{s_t0}, s{s_t0}, {KVS}')
    e(f'v_add_u32 v{vt}, s{s_t0}, v{vt}')
    set_exec(e, 0xffffffff, 0xff)
    for dd in range(2):
        for g in range(2):
            o = OUT + dd*8 + g*4
            e(f'ds_write_b128 v{vt}, v[{o}:{o+3}] offset:{dd*KVP_ + g*16}')
    e(f's_mov_b64 exec, s[{s_ex}:{s_ex+1}]')
    H.l2_pre(e)
    e('s_waitcnt lgkmcnt(0)')
    H.after_L(e, bar)
    if STAMPS and not fused:
        srd(e, sWS, P+14, WS_SIZE) if False else None
        e(f's_load_dwordx2 s[{P+14}:{P+15}], s[0:1], 104')
        e('s_waitcnt lgkmcnt(0)')
        srd(e, sWS, P+14, WS_SIZE)
        stL.flush(e, 3, sWS, t, s_wl)
    if not fused: e('s_endpgm')

    e.label('K1_AB')
    e(f'v_lshrrev_b32 v{vT+3}, 1, v{vL15}')
    e(f'v_xor_b32 v{vT+3}, v{vT+3}, v{vQ}')
    e(f'v_lshlrev_b32 v{vT+3}, 4, v{vT+3}')
    e(f'v_lshlrev_b32 v{vT+4}, 7, v{vL15}')
    e(f'v_add_u32 v{vT+3}, v{vT+3}, v{vT+4}')
    e(f'v_xor_b32 v{vT+4}, 64, v{vT+3}')
    e(f's_lshl_b32 s{s_t0}, s{s_wr}, 12')
    e(f's_lshl_b32 s{s_t1}, s{s_wc}, 11')
    e(f's_add_u32 s{s_t2}, s{s_t0}, s{s_t1}')
    e(f's_add_u32 s{s_t2}, s{s_t2}, {XB0}')
    e(f'v_add_u32 v{vXA}, s{s_t2}, v{vT+3}')
    e(f'v_add_u32 v{vXA+1}, s{s_t2}, v{vT+4}')
    e(f's_xor_b32 s{s_t1}, s{s_t1}, 2048')
    e(f's_add_u32 s{s_t2}, s{s_t0}, s{s_t1}')
    e(f's_add_u32 s{s_t2}, s{s_t2}, {XB0}')
    e(f'v_add_u32 v{vXB}, s{s_t2}, v{vT+3}')
    e(f'v_add_u32 v{vXB+1}, s{s_t2}, v{vT+4}')
    e(f'v_lshrrev_b32 v{vT+3}, 2, v{vLane}')
    e(f'v_and_b32 v{vT+3}, 3, v{vT+3}')
    e(f'v_lshlrev_b32 v{vT+4}, 3, v{vQ}')
    e(f'v_add_u32 v{vT+3}, v{vT+3}, v{vT+4}')
    e(f'v_mul_u32_u24 v{vT+3}, 192, v{vT+3}')
    e(f'v_and_b32 v{vT+4}, 3, v{vLane}')
    e(f'v_lshlrev_b32 v{vT+4}, 3, v{vT+4}')
    e(f'v_add_u32 v{vT+3}, v{vT+3}, v{vT+4}')
    e(f'v_and_b32 v{vT+5}, 1, v{vQ}')
    e(f's_mul_i32 s{s_t0}, s{s_wc}, 3')
    for ft in range(3):
        e(f's_add_u32 s{s_t1}, s{s_t0}, {ft}')
        e(f'v_xor_b32 v{vT+4}, s{s_t1}, v{vT+5}')
        e(f'v_lshlrev_b32 v{vT+4}, 5, v{vT+4}')
        e(f'v_add_u32 v{vW+ft}, v{vT+3}, v{vT+4}')
    e(f's_mov_b32 s{s_k2}, {hexf(K2c)}'); e(f's_mov_b32 s{s_k2+1}, {hexf(K2c)}')
    e(f's_mov_b32 s{s_one}, 1.0'); e(f's_mov_b32 s{s_one+1}, 1.0')
    e('s_waitcnt lgkmcnt(0)')
    srd(e, sWS, P+14, WS_SIZE)
    srd(e, sD, P+12, 256)
    e(f's_cmp_ge_u32 s{s_w}, 4')
    e('s_cbranch_scc1 K1_B')

    def rd_list(buf, ksl, xoff, woff):
        L = []
        L.append(f'ds_read_b128 v[{XF+buf*8}:{XF+buf*8+3}], v{vXA+ksl} offset:{xoff}')
        for ft in range(3):
            b = WF + buf*12 + ft*4
            L.append(f'ds_read_b64_tr_b16 v[{b}:{b+1}], v{vW+ft} offset:{woff+ksl*6144}')
            L.append(f'ds_read_b64_tr_b16 v[{b+2}:{b+3}], v{vW+ft} offset:{woff+ksl*6144+768}')
            if ft == 0:
                L.append(f'ds_read_b128 v[{XF+buf*8+4}:{XF+buf*8+7}], v{vXB+ksl} offset:{xoff}')
        return L
    def phase(buf, ksl, p, tag, nxt_reads):
        mf = []
        for ft in range(3):
            for T in range(2):
                a = ACC + (T*3+ft)*4
                x = f'v[{XF+buf*8+T*4}:{XF+buf*8+T*4+3}]'
                w = f'v[{WF+buf*12+ft*4}:{WF+buf*12+ft*4+3}]'
                if p == 1: mf.append(f'v_mfma_f32_16x16x32_bf16 v[{a}:{a+3}], {x}, {w}, v[{a}:{a+3}]')
                else:      mf.append(f'v_mfma_f32_16x16x32_bf16 v[{a}:{a+3}], {w}, {x}, v[{a}:{a+3}]')
        fills = [nxt_reads[0:2], nxt_reads[2:4], nxt_reads[4:6], nxt_reads[6:8], [], []]
        if p == 1 and not XP_NODOT:
            x = f'v[{XF+buf*8}:{XF+buf*8+3}]'
            mf.append(f'v_mfma_f32_16x16x32_bf16 v[{SUM}:{SUM+3}], v[{ONE}:{ONE+3}], {x}, v[{SUM}:{SUM+3}]')
            mf.append(f'v_mfma_f32_16x16x32_bf16 v[{GR}:{GR+3}], {x}, {x}, v[{GR}:{GR+3}]')
        if XP_NOCOMP == '2': fills = [[] for _ in fills]
        if XP_NOCOMP == '3': mf = ['s_nop 0'] * len(mf)
        weave(e, mf, fills)
        e(f's_cmp_eq_u32 s{s_wr}, {ksl}')
        e(f's_cbranch_scc0 K1_SK_{tag}')
        for ft in range(3):
            a = CS + ft*4
            w = f'v[{WF+buf*12+ft*4}:{WF+buf*12+ft*4+3}]'
            o = f'v[{ONE}:{ONE+3}]'
            if p == 1: e(f'v_mfma_f32_16x16x32_bf16 v[{a}:{a+3}], {o}, {w}, v[{a}:{a+3}]')
            else:      e(f'v_mfma_f32_16x16x32_bf16 v[{a}:{a+3}], {w}, {o}, v[{a}:{a+3}]')
        e.label(f'K1_SK_{tag}')
    def init_acc():
        for i in range(4): e(f'v_mov_b32 v{ONE+i}, 0x3f803f80')
        for i in range(24): e(f'v_mov_b32 v{ACC+i}, 0')
        for i in range(12): e(f'v_mov_b32 v{CS+i}, 0')
        for i in range(8): e(f'v_mov_b32 v{SUM+i}, 0')
    def loop(p, role):
        L = f'K1_LOOP{p}'
        if BARST:
            e('s_mov_b32 m0, 0'); e('s_memtime s[90:91]'); e('v_mov_b32 v150, 0')
        if XP_NOCOMP == '1':
            for _ in range(10): bar(role)
            return
        e(f's_mov_b32 s{s_i}, 0')
        for x in rd_list(0, 0, 0, 0): e(x)
        e.label(L)
        for u in range(5):
            e('s_waitcnt lgkmcnt(0)')
            phase(0, 0, p, f'{p}a{u}', rd_list(1, 1, u*XST, u*WSLOT))
            e('s_waitcnt lgkmcnt(0)')
            if BARST:
                e('v_writelane_b32 v150, s90, m0')
                e('s_add_u32 m0, m0, 1')
            e('s_barrier')
            if BARST: e('s_memtime s[90:91]')
            if u == 4:
                for r in (vXA, vXA+1, vXB, vXB+1):
                    e(f'v_add_u32 v{r}, {5*XST}, v{r}')
                nx = rd_list(0, 0, 0, 0)
            else:
                nx = rd_list(0, 0, (u+1)*XST, (u+1)*WSLOT)
            phase(1, 1, p, f'{p}b{u}', nx)
            if p == 2 and PREFETCH and (not fused or os.environ.get('TOUCH', 'p2') == 'p2'):
                e(f's_and_b32 s{s_t0}, s46, 3')
                e(f's_cmp_eq_u32 s{s_t0}, s{s_wl}')
                e(f's_cbranch_scc0 K1_NT{u}')
                e('s_cmp_lt_u32 s46, 8')
                e(f's_cbranch_scc0 K1_NT{u}')
                e(f'buffer_load_dword v148, v144, s[{sK}:{sK+3}], s54 offen')
                e.label(f'K1_NT{u}')
                e('s_add_u32 s46, s46, 1')
                e('s_add_u32 s54, s54, 4096')
        e(f's_add_u32 s{s_i}, s{s_i}, 1')
        e(f's_cmp_lt_u32 s{s_i}, 2')
        e(f's_cbranch_scc1 {L}')
        nbar[role] += 10
        if BARST:
            e('s_waitcnt lgkmcnt(0)')
            e('v_writelane_b32 v150, s90, m0')
            e(f's_lshl_b32 s{s_t0}, s2, 3'); e(f's_add_u32 s{s_t0}, s{s_t0}, s{s_w}'); e(f's_lshl_b32 s{s_t0}, s{s_t0}, 6')
            e(f's_add_u32 s{s_t0}, s{s_t0}, {TSB + 3*0x40000}')
            e(f'v_lshlrev_b32 v151, 2, v{vLane}')
            set_exec(e, 0xffff, 0)
            e(f'buffer_store_dword v150, v151, s[{sWS}:{sWS+3}], s{s_t0} offen')
            e(f's_mov_b64 exec, s[{s_ex}:{s_ex+1}]')
    K1V = E + 0
    G = E + 2
    def gelu_pair_sc(t, u):
        for h in range(2):
            e(f'v_mul_f32 v{u+h}, v{t+h}, v{t+h}')
        for h in range(2):
            e(f'v_fma_f32 v{u+h}, v{u+h}, s{s_k2}, v{K1V}')
        for h in range(2):
            e(f'v_mul_f32 v{u+h}, v{u+h}, v{t+h}')
        for h in range(2):
            e(f'v_exp_f32 v{u+h}, v{u+h}')
        for h in range(2):
            e(f'v_add_f32 v{u+h}, 1.0, v{u+h}')
        for h in range(2):
            e(f'v_rcp_f32 v{u+h}, v{u+h}')
        for h in range(2):
            e(f'v_mul_f32 v{u+h}, v{u+h}, v{t+h}')
    def gelu_pair(t, u):
        e(f'v_pk_mul_f32 v[{u}:{u+1}], v[{t}:{t+1}], v[{t}:{t+1}]')
        e(f'v_pk_fma_f32 v[{u}:{u+1}], v[{u}:{u+1}], s[{s_k2}:{s_k2+1}], v[{K1V}:{K1V+1}]')
        e(f'v_pk_mul_f32 v[{u}:{u+1}], v[{u}:{u+1}], v[{t}:{t+1}]')
        e(f'v_exp_f32 v{u}, v{u}')
        e(f'v_exp_f32 v{u+1}, v{u+1}')
        e(f'v_pk_add_f32 v[{u}:{u+1}], v[{u}:{u+1}], s[{s_one}:{s_one+1}]')
        e(f'v_rcp_f32 v{u}, v{u}')
        e(f'v_rcp_f32 v{u+1}, v{u+1}')
        e(f'v_pk_mul_f32 v[{u}:{u+1}], v[{u}:{u+1}], v[{t}:{t+1}]')

    e.c('role A')
    init_acc()
    bar('A')
    stp.stamp(e)
    loop(1, 'A')
    stp.stamp(e)
    e.c('A epilogue')
    e('s_setprio 2')
    e(f's_lshl_b32 s{s_t0}, s{s_rb}, 2')
    e(f'v_mov_b32 v{vT+8}, s{s_t0}')
    PC = vT + 9
    e(f'v_and_b32 v{vT}, 3, v{vL15}')
    e(f'v_cmp_eq_u32 vcc, 1, v{vT}')
    e(f'v_cndmask_b32 v{GR}, v{GR}, v{GR+1}, vcc')
    e(f'v_cmp_eq_u32 vcc, 2, v{vT}')
    e(f'v_cndmask_b32 v{GR}, v{GR}, v{GR+2}, vcc')
    e(f'v_cmp_eq_u32 vcc, 3, v{vT}')
    e(f'v_cndmask_b32 v{GR}, v{GR}, v{GR+3}, vcc')
    ln_finalize(e, SUM, GR, D, vT+2, vT+3, vT+4, vT+5)
    e(f's_lshl_b32 s{s_t0}, s{s_wr}, 5')
    e(f's_lshl_b32 s{s_t1}, s{s_wc}, 4')
    e(f's_add_u32 s{s_t0}, s{s_t0}, s{s_t1}')
    e(f'v_add_u32 v{vT+4}, s{s_t0}, v{vL15}')
    e(f'v_lshlrev_b32 v{vT+5}, 2, v{vT+4}')
    e(f'v_add_u32 v{vT+5}, {L_M1}, v{vT+5}')
    set_exec(e, 0x00f0000f, 0xf0000f00)
    e(f'ds_write_b32 v{vT+5}, v{vT+2}')
    e(f'ds_write_b32 v{vT+5}, v{vT+3} offset:256')
    if fused: e('s_branch K1_NOST1X')
    e(f's_cmp_eq_u32 s{s_cb}, 0')
    e('s_cbranch_scc0 K1_NOST1X')
    e(f's_lshl_b32 s{s_t1}, s{s_rb}, 9')
    e(f's_add_u32 s{s_t1}, s{s_t1}, {ST1}')
    e(f'v_lshlrev_b32 v{vT+4}, 3, v{vT+4}')
    e(f'buffer_store_dwordx2 v[{vT+2}:{vT+3}], v{vT+4}, s[{sWS}:{sWS+3}], s{s_t1} offen {SC}')
    e.label('K1_NOST1X')
    e(f's_mov_b64 exec, s[{s_ex}:{s_ex+1}]')
    e(f's_mul_i32 s{s_t0}, s{s_wl}, 192')
    e(f's_add_u32 s{s_t0}, s{s_t0}, {L_CSA}')
    e(f'v_lshlrev_b32 v{vT+6}, 2, v{vL15}')
    e(f'v_add_u32 v{vT+6}, s{s_t0}, v{vT+6}')
    for ft in range(3):
        e(f'ds_write_b32 v{vT+6}, v{CS+ft*4} offset:{ft*64}')
    e('s_waitcnt lgkmcnt(0)')
    bar('A')
    e(f's_xor_b32 s{s_t1}, s{s_wl}, 2')
    e(f's_mul_i32 s{s_t1}, s{s_t1}, 192')
    e(f's_add_u32 s{s_t1}, s{s_t1}, {L_CSA}')
    e(f'v_lshlrev_b32 v{vT+4}, 2, v{vL15}')
    e(f'v_add_u32 v{vT+4}, s{s_t1}, v{vT+4}')
    NCS = E + 10
    for ft in range(3):
        e(f'ds_read_b32 v{NCS+2*ft}, v{vT+4} offset:{ft*64}')
    M1 = XF
    R1 = XF + 8
    e(f's_lshl_b32 s{s_t0}, s{s_wr}, 7')
    e(f's_lshl_b32 s{s_t1}, s{s_wc}, 6')
    e(f's_add_u32 s{s_t0}, s{s_t0}, s{s_t1}')
    e(f's_add_u32 s{s_t0}, s{s_t0}, {L_M1}')
    e(f'v_lshlrev_b32 v{vT+5}, 4, v{vQ}')
    e(f'v_add_u32 v{vT+5}, s{s_t0}, v{vT+5}')
    e(f'v_xor_b32 v{vT+6}, 64, v{vT+5}')
    e(f'ds_read_b128 v[{M1}:{M1+3}], v{vT+5}')
    e(f'ds_read_b128 v[{M1+4}:{M1+7}], v{vT+6}')
    e(f'ds_read_b128 v[{R1}:{R1+3}], v{vT+5} offset:256')
    e(f'ds_read_b128 v[{R1+4}:{R1+7}], v{vT+6} offset:256')
    e(f'v_mov_b32 v{K1V}, {hexf(K1c)}'); e(f'v_mov_b32 v{K1V+1}, {hexf(K1c)}')
    SA = WF
    for i in range(16): e(f'v_mov_b32 v{SA+i}, 0')
    e('s_waitcnt lgkmcnt(0)')
    for ft in range(3):
        e(f'v_add_f32 v{NCS+2*ft}, v{NCS+2*ft}, v{CS+ft*4}')
        e(f'v_sub_f32 v{NCS+2*ft}, 0, v{NCS+2*ft}')
    AEP = os.environ.get('AEP', 'sc')
    if AEP == 'pk':
        for ft in range(3):
            for T in range(2):
                for p in range(2):
                    a = ACC + (T*3+ft)*4 + 2*p
                    n = NCS + 2*ft
                    g = G + 4*p
                    e(f'v_pk_fma_f32 v[{a}:{a+1}], v[{M1+T*4+2*p}:{M1+T*4+2*p+1}], v[{n}:{n+1}], v[{a}:{a+1}] op_sel_hi:[1,0,1]')
                    e(f'v_pk_mul_f32 v[{a}:{a+1}], v[{a}:{a+1}], v[{R1+T*4+2*p}:{R1+T*4+2*p+1}]')
                    gelu_pair(a, g)
                    e(f'v_cvt_pk_bf16_f32 v{AP+ft*4+T*2+p}, v{g}, v{g+1}')
                    s_ = SA + T*4 + 2*p
                    e(f'v_pk_add_f32 v[{s_}:{s_+1}], v[{s_}:{s_+1}], v[{g}:{g+1}]')
                    e(f'v_pk_fma_f32 v[{s_+8}:{s_+9}], v[{g}:{g+1}], v[{g}:{g+1}], v[{s_+8}:{s_+9}]')
    else:
        npair = 0
        for ft in range(3):
            for T in range(2):
                for p in range(2):
                    a = ACC + (T*3+ft)*4 + 2*p
                    n = NCS + 2*ft
                    g = G + 4*p
                    for h in range(2):
                        e(f'v_fma_f32 v{a+h}, v{M1+T*4+2*p+h}, v{n}, v{a+h}')
                    for h in range(2):
                        e(f'v_mul_f32 v{a+h}, v{a+h}, v{R1+T*4+2*p+h}')
                    gelu_pair_sc(a, g)
                    e(f'v_cvt_pk_bf16_f32 v{AP+ft*4+T*2+p}, v{g}, v{g+1}')
                    s_ = SA + T*4 + 2*p
                    for h in range(2):
                        e(f'v_add_f32 v{s_+h}, v{s_+h}, v{g+h}')
                    for h in range(2):
                        e(f'v_fma_f32 v{s_+8+h}, v{g+h}, v{g+h}, v{s_+8+h}')
                    npair += 1
                    if npair in (2, 5, 7, 10, 12): bar('A')
                if npair == 10 and os.environ.get('ACH', 'late') == 'early':
                    e(f'buffer_load_dword v{PC}, v{vT+8}, s[{sD}:{sD+3}], 0 offen offset:{CB} sc1')
    for k, sh in enumerate((8, 4, 2, 1)):
        for i in range(16):
            e(f'v_add_f32_dpp v{SA+i}, v{SA+i}, v{SA+i} row_ror:{sh} row_mask:0xf bank_mask:0xf')
    e(f's_lshl_b32 s{s_t0}, s{s_wc}, 8')
    e(f's_add_u32 s{s_t0}, s{s_t0}, {L_PS - L_M1}')
    e(f'v_add_u32 v{vT+5}, s{s_t0}, v{vT+5}')
    e(f'v_add_u32 v{vT+6}, s{s_t0}, v{vT+6}')
    set_exec(e, 0x00010001, 0x00010001)
    e(f'ds_write_b128 v{vT+5}, v[{SA}:{SA+3}]')
    e(f'ds_write_b128 v{vT+6}, v[{SA+4}:{SA+7}]')
    e(f'ds_write_b128 v{vT+5}, v[{SA+8}:{SA+11}] offset:{L_PQ-L_PS}')
    e(f'ds_write_b128 v{vT+6}, v[{SA+12}:{SA+15}] offset:{L_PQ-L_PS}')
    e(f's_mov_b64 exec, s[{s_ex}:{s_ex+1}]')
    e('s_waitcnt lgkmcnt(0)')
    bar('A')
    e(f's_cmp_eq_u32 s{s_w}, 0')
    e('s_cbranch_scc0 K1_NOPUB')
    e(f'v_lshlrev_b32 v{vT}, 2, v{vLane}')
    e(f'v_add_u32 v{vT}, {L_PS}, v{vT}')
    e(f'ds_read_b32 v{vT+2}, v{vT}')
    e(f'ds_read_b32 v{vT+4}, v{vT} offset:256')
    e(f'ds_read_b32 v{vT+3}, v{vT} offset:{L_PQ-L_PS}')
    e(f'ds_read_b32 v{vT+5}, v{vT} offset:{L_PQ-L_PS+256}')
    e(f's_lshl_b32 s{s_t0}, s{s_rb}, 3')
    e(f's_add_u32 s{s_t0}, s{s_t0}, s{s_cb}')
    e(f's_lshl_b32 s{s_t0}, s{s_t0}, 9')
    e(f's_add_u32 s{s_t0}, s{s_t0}, {XCH}')
    e(f'v_lshlrev_b32 v{vT+1}, 3, v{vLane}')
    e('s_waitcnt lgkmcnt(0)')
    e(f'v_add_f32 v{vT+2}, v{vT+2}, v{vT+4}')
    e(f'v_add_f32 v{vT+3}, v{vT+3}, v{vT+5}')
    e(f'v_max_f32 v{vT+3}, 0, v{vT+3}')
    e(f'buffer_store_dwordx2 v[{vT+2}:{vT+3}], v{vT+1}, s[{sWS}:{sWS+3}], s{s_t0} offen sc1')
    e.label('K1_NOPUB')
    stp.stamp(e)
    e(f's_mul_i32 s{s_t0}, s{s_cb}, 6')
    e(f's_mul_i32 s{s_t1}, s{s_wc}, 3')
    e(f's_add_u32 s{s_t0}, s{s_t0}, s{s_t1}')
    e(f's_lshl_b32 s{s_t0}, s{s_t0}, 6')
    e(f's_lshl_b32 s{s_t1}, s{s_rb}, 1')
    e(f's_add_u32 s{s_t0}, s{s_t0}, s{s_t1}')
    e(f's_add_u32 s{s_t0}, s{s_t0}, s{s_wr}')
    e(f's_lshl_b32 s{s_t0}, s{s_t0}, 10')
    e(f's_add_u32 s{s_off}, s{s_t0}, {Z2F}')
    e(f'v_and_b32 v{vT+7}, 1, v{vQ}')
    e(f'v_lshlrev_b32 v{vT+7}, 1, v{vT+7}')
    e(f'v_lshrrev_b32 v{vT+10}, 1, v{vQ}')
    e(f'v_or_b32 v{vT+7}, v{vT+7}, v{vT+10}')
    e(f's_lshl_b32 s{s_t1}, s{s_wc}, 1')
    e(f'v_xor_b32 v{vT+7}, s{s_t1}, v{vT+7}')
    e(f'v_lshlrev_b32 v{vT+7}, 4, v{vT+7}')
    e(f'v_add_u32 v{vT+7}, v{vT+7}, v{vL15}')
    e(f'v_lshlrev_b32 v{vT+7}, 4, v{vT+7}')
    e(f'v_and_b32 v{vT+10}, 31, v{vLane}')
    e(f's_lshl_b32 s{s_j}, s{s_wr}, 5')
    e(f'v_add_u32 v{vT+10}, s{s_j}, v{vT+10}')
    e(f'v_lshlrev_b32 v{vT+10}, 3, v{vT+10}')
    e(f's_lshl_b32 s{s_j}, s{s_rb}, 12')
    e(f's_add_u32 s{s_j}, s{s_j}, {XCH}')
    EARLY = AEP != 'pk' and os.environ.get('ACH', 'late') == 'early'
    if EARLY:
        bar('A'); bar('A')
        e('s_waitcnt vmcnt(0)')
    else:
        e(f'buffer_load_dword v{PC}, v{vT+8}, s[{sD}:{sD+3}], 0 offen offset:{CB} sc1')
        for _ in range(4 if AEP == 'pk' else 3): bar('A')
        e('s_waitcnt vmcnt(0)')
    e('s_mov_b32 s54, 0')
    e.label('K1_CCHK')
    e(f'v_readfirstlane_b32 s{s_t0}, v{PC}')
    e(f's_cmp_ge_u32 s{s_t0}, 8')
    e('s_cbranch_scc1 K1_COK')
    e('s_add_u32 s54, s54, 1')
    e('s_cmp_lt_u32 s54, 0x200000')
    e('s_cbranch_scc0 K1_COK')
    e('s_sleep 4')
    e(f'buffer_load_dword v{PC}, v{vT+8}, s[{sD}:{sD+3}], 0 offen offset:{CB} sc1')
    e('s_waitcnt vmcnt(0)')
    e('s_branch K1_CCHK')
    e.label('K1_COK')
    XP = WF + 2
    for c in range(8):
        e(f'buffer_load_dwordx2 v[{XP+2*c}:{XP+2*c+1}], v{vT+10}, s[{sWS}:{sWS+3}], s{s_j} offen offset:{c*512} sc1')
    if AEP == 'pk':
        for _ in range(3): bar('A')
        e('s_waitcnt vmcnt(0)')
        APK_CHECK = True
    elif EARLY:
        bar('A')
        e('s_waitcnt vmcnt(0)')
    else:
        bar('A')
        e('s_setprio 0')
        e('s_waitcnt vmcnt(0)')
    e('s_mov_b32 s54, 0')
    e.label('K1_CHECK')
    e(f's_mov_b32 s{s_t0}, {hex(SENT)}')
    e(f'v_cmp_eq_u32 vcc, s{s_t0}, v{XP+1}')
    for c in range(1, 8):
        e(f'v_cmp_eq_u32 s[{P}:{P+1}], s{s_t0}, v{XP+2*c+1}')
        e(f's_or_b64 vcc, vcc, s[{P}:{P+1}]')
    e('s_cmp_eq_u64 vcc, 0')
    e('s_cbranch_scc1 K1_POLLED')
    e('s_add_u32 s54, s54, 1')
    e('s_cmp_lt_u32 s54, 0x200000')
    e('s_cbranch_scc0 K1_POLLED')
    for c in range(8):
        e(f'buffer_load_dwordx2 v[{XP+2*c}:{XP+2*c+1}], v{vT+10}, s[{sWS}:{sWS+3}], s{s_j} offen offset:{c*512} sc1')
    e('s_waitcnt vmcnt(0)')
    e('s_branch K1_CHECK')
    e.label('K1_POLLED')
    stp.stamp(e)
    for c in range(1, 8):
        e(f'v_add_f32 v{XP}, v{XP}, v{XP+2*c}')
        e(f'v_add_f32 v{XP+1}, v{XP+1}, v{XP+2*c+1}')
    ln_finalize(e, XP, XP+1, FH, vT+2, vT+3, vT+4, vT+5)
    e(f'v_mul_f32 v{vT+2}, v{vT+2}, v{vT+3}')
    e(f'v_sub_f32 v{vT+2}, 0, v{vT+2}')
    e(f's_lshl_b32 s{s_t0}, s{s_wl}, 8')
    e(f's_add_u32 s{s_t0}, s{s_t0}, {L_W2}')
    e(f'v_and_b32 v{vT+4}, 31, v{vLane}')
    e(f'v_lshlrev_b32 v{vT+4}, 2, v{vT+4}')
    e(f'v_add_u32 v{vT+4}, s{s_t0}, v{vT+4}')
    e(f'ds_write_b32 v{vT+4}, v{vT+2}')
    e(f'ds_write_b32 v{vT+4}, v{vT+3} offset:128')
    e(f's_lshl_b32 s{s_t1}, s{s_wc}, 6')
    e(f's_add_u32 s{s_t0}, s{s_t0}, s{s_t1}')
    e(f'v_lshlrev_b32 v{vT+5}, 4, v{vQ}')
    e(f'v_add_u32 v{vT+5}, s{s_t0}, v{vT+5}')
    e(f'v_xor_b32 v{vT+6}, 64, v{vT+5}')
    e('s_waitcnt lgkmcnt(0)')
    e(f'ds_read_b128 v[{M1}:{M1+3}], v{vT+5}')
    e(f'ds_read_b128 v[{M1+4}:{M1+7}], v{vT+6}')
    e(f'ds_read_b128 v[{R1}:{R1+3}], v{vT+5} offset:128')
    e(f'ds_read_b128 v[{R1+4}:{R1+7}], v{vT+6} offset:128')
    if AEP == 'pk':
        bar('A'); bar('A')
        e('s_setprio 0')
    elif EARLY:
        bar('A')
        e('s_setprio 0')
    e('s_waitcnt lgkmcnt(0)')
    for ft in range(3):
        for T in range(2):
            for p in range(2):
                a = AP + ft*4 + T*2 + p
                g = G + 4*p
                e(f'v_lshlrev_b32 v{g}, 16, v{a}')
                e(f'v_and_b32 v{g+1}, s{s_mask}, v{a}')
                e(f'v_pk_fma_f32 v[{g}:{g+1}], v[{g}:{g+1}], v[{R1+T*4+2*p}:{R1+T*4+2*p+1}], v[{M1+T*4+2*p}:{M1+T*4+2*p+1}]')
                e(f'v_cvt_pk_bf16_f32 v{a}, v{g}, v{g+1}')
        b = AP + ft*4
        e(f'v_permlane16_swap_b32 v{b}, v{b+2}')
        e(f'v_permlane16_swap_b32 v{b+1}, v{b+3}')
        e(f's_add_u32 s{s_t1}, s{s_off}, {ft*65536}')
        e(f'buffer_store_dwordx4 v[{b}:{b+3}], v{vT+7}, s[{sWS}:{sWS+3}], s{s_t1} offen sc1')
    if fused:
        H.after_A(e, stp, bar)
    else:
        stp.flush(e, 0, sWS, vT, s_w)
        e('s_endpgm')

    e.label('K1_B')
    e.c('role B')
    stB = Stamper(); stB.n = 1; stB.mute = fused and os.environ.get('P1ST') != '1'
    SK = 160; WR = 152; WO = 164
    e(f's_cmp_eq_u32 s{s_w}, 4')
    e('s_cbranch_scc0 K1_NORST')
    e(f's_lshl_b32 s{s_t0}, s{s_rb}, 3')
    e(f's_add_u32 s{s_t0}, s{s_t0}, s{s_cb}')
    e(f's_lshl_b32 s{s_t0}, s{s_t0}, 9')
    e(f's_add_u32 s{s_t0}, s{s_t0}, {XCH}')
    e(f'v_lshlrev_b32 v{vT+1}, 3, v{vLane}')
    e(f'v_mov_b32 v{vT+6}, 0')
    e(f'v_mov_b32 v{vT+7}, {hex(SENT)}')
    e(f'buffer_store_dwordx2 v[{vT+6}:{vT+7}], v{vT+1}, s[{sWS}:{sWS+3}], s{s_t0} offen sc1')
    if fused:
        H.flag_addr(e, vT+1, vT+2)
        set_exec(e, 15, 0)
        e(f'buffer_store_dword v{vT+6}, v{vT+1}, s[{sWS}:{sWS+3}], 0 offen sc1')
        e(f's_mov_b64 exec, s[{s_ex}:{s_ex+1}]')
    e.label('K1_NORST')
    DUM = 140
    vTP = 144; vKV = 145; s_tpw = 54; s_tps = 46; s_kv = 78
    if fused and os.environ.get('CODEPF', '0') == '1':
        e(f's_cmp_eq_u32 s{s_w}, 5')
        e('s_cbranch_scc0 K1_NOCPF')
        e(f's_getpc_b64 s[{sK}:{sK+1}]')
        e.label('K1_PCREF')
        e(f's_sub_u32 s{sK}, s{sK}, K1_PCREF-{H.name}')
        e(f's_subb_u32 s{sK+1}, s{sK+1}, 0')
        e(f's_and_b32 s{sK+1}, s{sK+1}, 0xffff')
        e(f's_mov_b32 s{sK+2}, KF_CODE_END-{H.name}')
        e(f's_mov_b32 s{sK+3}, 0x20000')
        e(f'v_lshlrev_b32 v{vT+8}, 6, v{vLane}')
        e(f's_lshr_b32 s{s_t0}, s2, 3')
        e(f's_lshl_b32 s{s_t0}, s{s_t0}, 10')
        set_exec(e, 0xffff, 0)
        e(f'buffer_load_dword v141, v{vT+8}, s[{sK}:{sK+3}], s{s_t0} offen')
        e(f's_mov_b64 exec, s[{s_ex}:{s_ex+1}]')
        e.label('K1_NOCPF')
    e(f's_lshl_b32 s{s_t0}, s2, 2')
    e(f's_add_u32 s{s_t0}, s{s_t0}, s{s_wl}')
    e(f's_mul_i32 s{s_t1}, s{s_t0}, 2731')
    e(f's_lshr_b32 s{s_t1}, s{s_t1}, 16')
    e(f's_mul_i32 s{s_t2}, s{s_t1}, 24')
    e(f's_sub_u32 s{s_t2}, s{s_t0}, s{s_t2}')
    e(f's_mov_b32 s{P+16}, s{s_t0}')
    e(f'v_mul_u32_u24 v{vT+3}, {4*1280}, v{vQ}')
    e(f'v_lshlrev_b32 v{vT+4}, 1, v{vL15}')
    e(f'v_add_u32 v{vT+3}, v{vT+3}, v{vT+4}')
    e(f's_lshl_b32 s{s_t1}, s{s_t1}, 5')
    e(f's_mul_i32 s{s_t2}, s{s_t2}, {32*1280}')
    e(f's_add_u32 s{s_t1}, s{s_t1}, s{s_t2}')
    e(f's_add_u32 s{s_t2}, s{s_t1}, {16*1280}')
    bar('B')
    stB.stamp(e)
    srd(e, sT, P+10, FH*D*2)
    for j in range(8):
        so = s_t1 if j < 4 else s_t2
        e(f'buffer_load_ushort v{WR + j}, v{vT+3}, s[{sT}:{sT+3}], s{so} offen offset:{(j%4)*1280} {NT1}')
    for k in range(1, 10):
        if PREFETCH and k == 9:
            e(f'v_lshlrev_b32 v{vTP}, 6, v{vLane}')
            e(f's_and_b32 s{s_tpw}, s2, 7')
            e(f's_lshl_b32 s{s_tpw}, s{s_tpw}, 8')
            e(f's_lshr_b32 s{s_off}, s2, 3')
            e(f's_lshl_b32 s{s_off}, s{s_off}, 3')
            e(f's_add_u32 s{s_tpw}, s{s_tpw}, s{s_off}')
            e(f's_lshl_b32 s{s_tpw}, s{s_tpw}, 12')
            srd(e, sK, P+18, S*S*2)
            e('s_mov_b32 s46, 0')
        if k == int(os.environ.get('CNTK', '3')):
            e(f's_cmp_eq_u32 s{s_w}, 4')
            e('s_cbranch_scc0 K1_NOCNT')
            e('s_waitcnt vmcnt(8)')
            e(f's_lshl_b32 s{s_off}, s{s_rb}, 2')
            e(f'v_mov_b32 v{vT+6}, s{s_off}')
            e(f'v_mov_b32 v{vT+7}, 1')
            set_exec(e, 1, 0)
            e(f'buffer_atomic_add v{vT+7}, v{vT+6}, s[{sD}:{sD+3}], 0 offen offset:{CB} sc1')
            e(f's_mov_b64 exec, s[{s_ex}:{s_ex+1}]')
            e.label('K1_NOCNT')
        if k == 9:
            e(f's_cmp_ge_u32 s{P+16}, 960')
            e('s_cbranch_scc1 K1_NOWOF')
            e('s_waitcnt vmcnt(0)')
            for j in range(4):
                e(f'v_lshl_or_b32 v{WO+j}, v{WR+2*j+1}, 16, v{WR+2*j}')
            e(f'v_lshlrev_b32 v{vT+3}, 4, v{vLane}')
            e(f's_lshl_b32 s{s_t0}, s{P+16}, 10')
            e(f's_add_u32 s{s_t0}, s{s_t0}, {WOF}')
            e(f'buffer_store_dwordx4 v[{WO}:{WO+3}], v{vT+3}, s[{sWS}:{sWS+3}], s{s_t0} offen {SC if fused else STF_EARLY}')
            e.label('K1_NOWOF')
        bar('B')
    init_acc()
    bar('B')
    stB.stamp(e)
    loop(2, 'B')
    stB.stamp(e)
    e.c('B epilogue')
    e(f's_mul_i32 s{s_t0}, s{s_wl}, 192')
    e(f's_add_u32 s{s_t0}, s{s_t0}, {L_CSB}')
    e(f'v_lshlrev_b32 v{vT+4}, 4, v{vQ}')
    e(f'v_add_u32 v{vT+5}, s{s_t0}, v{vT+4}')
    set_exec(e, 0x00010001, 0x00010001)
    for ft in range(3):
        e(f'ds_write_b128 v{vT+5}, v[{CS+ft*4}:{CS+ft*4+3}] offset:{ft*64}')
    e(f's_mov_b64 exec, s[{s_ex}:{s_ex+1}]')
    e(f'v_mov_b32 v{K1V}, {hexf(K1c)}'); e(f'v_mov_b32 v{K1V+1}, {hexf(K1c)}')
    e('s_waitcnt lgkmcnt(0)')
    bar('B')
    if fused: H.cnt_early(e)
    e(f's_xor_b32 s{s_t1}, s{s_wl}, 2')
    e(f's_mul_i32 s{s_t1}, s{s_t1}, 192')
    e(f's_add_u32 s{s_t1}, s{s_t1}, {L_CSB}')
    e(f'v_add_u32 v{vT+5}, s{s_t1}, v{vT+4}')
    NC2 = XF
    for ft in range(3):
        e(f'ds_read_b128 v[{NC2+ft*4}:{NC2+ft*4+3}], v{vT+5} offset:{ft*64}')
    MR = WF
    e(f's_lshl_b32 s{s_t0}, s{s_wr}, 7')
    e(f's_lshl_b32 s{s_t1}, s{s_wc}, 6')
    e(f's_add_u32 s{s_t0}, s{s_t0}, s{s_t1}')
    e(f's_add_u32 s{s_t0}, s{s_t0}, {L_M1}')
    e(f'v_lshlrev_b32 v{vT+6}, 2, v{vL15}')
    e(f'v_add_u32 v{vT+6}, s{s_t0}, v{vT+6}')
    e(f'v_xor_b32 v{vT+7}, 64, v{vT+6}')
    e(f'ds_read_b32 v{MR+0}, v{vT+6}')
    e(f'ds_read_b32 v{MR+2}, v{vT+7}')
    e(f'ds_read_b32 v{MR+4}, v{vT+6} offset:256')
    e(f'ds_read_b32 v{MR+6}, v{vT+7} offset:256')
    e(f's_lshl_b32 s{s_t0}, s{s_rb}, 2')
    e(f's_lshl_b32 s{s_t1}, s{s_wr}, 1')
    e(f's_add_u32 s{s_t0}, s{s_t0}, s{s_t1}')
    e(f's_add_u32 s{s_t1}, s{s_t0}, s{s_wc}')
    e(f's_xor_b32 s{s_t2}, s{s_t1}, 1')
    e(f's_mul_i32 s{s_off}, s{s_cb}, 6')
    e(f's_mul_i32 s{s_j}, s{s_wc}, 3')
    e(f's_add_u32 s{s_off}, s{s_off}, s{s_j}')
    e(f's_mul_i32 s{s_t1}, s{s_t1}, 48')
    e(f's_add_u32 s{s_t1}, s{s_t1}, s{s_off}')
    e(f's_lshl_b32 s{s_t1}, s{s_t1}, 9')
    e(f's_add_u32 s{s_t1}, s{s_t1}, {Z1F}')
    e(f's_mul_i32 s{s_t2}, s{s_t2}, 48')
    e(f's_add_u32 s{s_t2}, s{s_t2}, s{s_off}')
    e(f's_lshl_b32 s{s_t2}, s{s_t2}, 9')
    e(f's_add_u32 s{s_t2}, s{s_t2}, {Z1F}')
    e(f'v_lshlrev_b32 v{vT+6}, 3, v{vLane}')
    if fused:
        e(f's_lshl_b32 s{s_j}, s{s_wr}, 1')
        e(f's_add_u32 s{s_j}, s{s_j}, s{s_wc}')
        e(f's_mul_i32 s{s_off}, s{s_j}, 3072')
        e(f's_mul_i32 s{s_t0}, s{s_wc}, 1536')
        e(f's_add_u32 s{s_off}, s{s_off}, s{s_t0}')
        e(f's_add_u32 s{s_off}, s{s_off}, {Z1L}')
        e(f'v_add_u32 v{vT+8}, s{s_off}, v{vT+6}')
        e(f's_xor_b32 s{s_j}, s{s_j}, 1')
        e(f's_mul_i32 s{s_off}, s{s_j}, 3072')
        e(f's_add_u32 s{s_off}, s{s_off}, s{s_t0}')
        e(f's_add_u32 s{s_off}, s{s_off}, {Z1L}')
        e(f'v_add_u32 v{vT+9}, s{s_off}, v{vT+6}')
    e('s_waitcnt lgkmcnt(0)')
    for i in range(12):
        e(f'v_add_f32 v{NC2+i}, v{NC2+i}, v{CS+i}')
        e(f'v_sub_f32 v{NC2+i}, 0, v{NC2+i}')
    ZO = AP
    for T in range(2):
        for ft in range(3):
            for p in range(2):
                a = ACC + (T*3+ft)*4 + 2*p
                n = NC2 + ft*4 + 2*p
                m = MR + 2*T; r = MR + 4 + 2*T
                g = G + 4*p
                e(f'v_pk_fma_f32 v[{a}:{a+1}], v[{n}:{n+1}], v[{m}:{m+1}], v[{a}:{a+1}] op_sel_hi:[1,0,1]')
                e(f'v_pk_mul_f32 v[{a}:{a+1}], v[{a}:{a+1}], v[{r}:{r+1}] op_sel_hi:[1,0]')
                gelu_pair(a, g)
                e(f'v_cvt_pk_bf16_f32 v{ZO+(T*3+ft)*2+p}, v{g}, v{g+1}')
            so = s_t1 if T == 0 else s_t2
            z = ZO + (T*3+ft)*2
            if fused:
                e(f'ds_write_b64 v{vT+8+T}, v[{z}:{z+1}] offset:{ft*512}')
            else:
                e(f'buffer_store_dwordx2 v[{z}:{z+1}], v{vT+6}, s[{sWS}:{sWS+3}], s{so} offen offset:{ft*512} {STF_EARLY}')
    if fused:
        H.after_B(e, stB, bar)
    if not fused: stB.flush(e, 0, sWS, vT, s_w)
    e.label('K1_END')
    e('s_endpgm')
    if fused: return nbar
    print('k1 barriers', nbar)
    assert nbar['A'] == nbar['B'] == nbar['L'], nbar
    nn = e.finalize()
    return kernel_wrap('k1_kernel', e.text(), vgpr=168, sgpr=96), nn
```

```python
from common import *
WO_SZ = 122880
XT = WO_SZ
YT = XT + 10240
RED3 = 143360 + 512
NB3 = 5
LF = 'sc1'
import os
OUTF = os.environ.get('OUTF', '')

class P3:
    def __init__(self, e):
        self.e = e
        self.sX, self.sO, self.sWS = 8, 12, 16
    vLane, vQ, vL15 = 1, 2, 3
    vL16 = 4; vXO = 5; vYO = 8; vT = 12; ST = 24; vWB = 26
    AFr = 28; ACC = 68; PFR = 88
    s_tb, s_db, s_w, s_wl = 32, 33, 34, 55
    s_t0, s_t1, s_t2 = 40, 41, 42
    s_mask = 47; s_ex = 52; s_one = 48
    s_tt, s_pb, s_xl, s_yo, s_kh = 35, 36, 37, 38, 39
    P = 56
    def setup(self, is_a):
        e = self.e; s = self
        vT = s.vT; P = s.P
        e(f's_load_dwordx2 s[{P}:{P+1}], s[0:1], 0')
        e(f's_load_dwordx2 s[{P+2}:{P+3}], s[0:1], 88')
        e(f'v_lshlrev_b32 v{s.vL16}, 4, v{s.vLane}')
        e(f's_lshl_b32 s{s.s_tt}, s{s.s_tb}, 2')
        e(f's_add_u32 s{s.s_tt}, s{s.s_tt}, s{s.s_wl}')
        e(f's_lshr_b32 s{s.s_kh}, s{s.s_w}, 2')
        e(f's_mul_i32 s{s.s_pb}, s{s.s_tt}, {24*1024}')
        e(f's_mul_i32 s{s.s_t0}, s{s.s_kh}, {12*1024}')
        e(f's_add_u32 s{s.s_pb}, s{s.s_pb}, s{s.s_t0}')
        e(f's_add_u32 s{s.s_pb}, s{s.s_pb}, {PF}')
        e(f's_mul_i32 s{s.s_t0}, s{s.s_kh}, {60*1024}')
        e(f'v_add_u32 v{s.vWB}, s{s.s_t0}, v{s.vL16}')
        e(f's_lshl_b32 s{s.s_t0}, s{s.s_tt}, 4')
        e(f's_mul_i32 s{s.s_t0}, s{s.s_t0}, 1280')
        e(f's_mul_i32 s{s.s_t1}, s{s.s_db}, 160')
        e(f's_add_u32 s{s.s_t0}, s{s.s_t0}, s{s.s_t1}')
        for n in range(3):
            e(f'v_add_u32 v{vT}, {64*n}, v{s.vLane}')
            e(f'v_mul_u32_u24 v{vT+1}, 6554, v{vT}')
            e(f'v_lshrrev_b32 v{vT+1}, 16, v{vT+1}')
            e(f'v_mul_u32_u24 v{vT+2}, 10, v{vT+1}')
            e(f'v_sub_u32 v{vT+2}, v{vT}, v{vT+2}')
            e(f'v_lshlrev_b32 v{vT+2}, 4, v{vT+2}')
            e(f'v_mul_u32_u24 v{vT+1}, 1280, v{vT+1}')
            e(f'v_add_u32 v{vT+1}, v{vT+1}, v{vT+2}')
            e(f'v_add_u32 v{s.vXO+n}, s{s.s_t0}, v{vT+1}')
            if not is_a:
                e(f'v_lshrrev_b32 v{vT+1}, 1, v{vT}')
                e(f'v_lshlrev_b32 v{vT+1}, 12, v{vT+1}')
                e(f'v_and_b32 v{vT+2}, 1, v{vT}')
                e(f'v_lshlrev_b32 v{vT+2}, 4, v{vT+2}')
                e(f'v_add_u32 v{s.vYO+n}, v{vT+1}, v{vT+2}')
        e(f's_mul_i32 s{s.s_xl}, s{s.s_wl}, 2560')
        e(f's_mul_i32 s{s.s_yo}, s{s.s_db}, {80*4096}')
        e(f's_lshl_b32 s{s.s_t1}, s{s.s_tt}, 5')
        e(f's_add_u32 s{s.s_yo}, s{s.s_yo}, s{s.s_t1}')
        e(f's_add_u32 s{s.s_yo}, s{s.s_yo}, {YYT}')
        e(f's_lshl_b32 s{s.s_t0}, s{s.s_wl}, 6')
        e(f's_add_u32 s{s.s_t0}, s{s.s_t0}, 143360')
        e(f'v_lshlrev_b32 v{vT+9}, 2, v{s.vL15}')
        e(f'v_add_u32 v{vT+9}, s{s.s_t0}, v{vT+9}')
        e(f'ds_read_b32 v{s.ST}, v{vT+9}')
        e(f'ds_read_b32 v{s.ST+1}, v{vT+9} offset:256')
        for i in range(20): e(f'v_mov_b32 v{s.ACC+i}, 0')
        e('s_waitcnt lgkmcnt(0)')
        srd(e, s.sX, P, S*D*2)
        srd(e, s.sO, P+2, S*D*2)
        if is_a:
            for n in range(3):
                if n == 2: e('s_mov_b32 exec_hi, 0')
                e(f's_add_u32 m0, s{s.s_xl}, {XT + n*1024}')
                e('s_nop 0')
                e(f'buffer_load_dwordx4 v{s.vXO+n}, s[{s.sX}:{s.sX+3}], 0 offen lds')
            e('s_mov_b32 exec_hi, -1')
    def main(self, is_a, tag, stp=None):
        e = self.e; s = self
        vT = s.vT; AFr, ACC, PFR = s.AFr, s.ACC, s.PFR
        def pl(ks):
            r = PFR + ks*4
            return [f's_add_u32 s{s.s_t0}, s{s.s_pb}, {(ks // 4)*4096}',
                    f'buffer_load_dwordx4 v[{r}:{r+3}], v{s.vL16}, s[{s.sWS}:{s.sWS+3}], s{s.s_t0} offen offset:{(ks % 4)*1024} {LF}']
        order = []
        LOOK = 5
        for ks in range(LOOK):
            for x in pl(ks): e(x)
            order.append(('p', ks))
        def rds(buf, ks):
            return [f'ds_read_b128 v[{AFr+buf*20+dt*4}:{AFr+buf*20+dt*4+3}], v{s.vWB} offset:{(ks*5+dt)*1024}' for dt in range(5)]
        e('s_barrier')
        if stp: stp.stamp(e)
        for x in rds(0, 0): e(x)
        for ks in range(12):
            buf = ks % 2
            nvm = len(order) - 1 - order.index(('p', ks))
            nxt = []
            e(f's_waitcnt vmcnt({nvm}) lgkmcnt(0)')
            if ks + 1 < 12:
                if ks % 4 == 3:
                    e('s_barrier')
                    if stp: stp.stamp(e)
                nxt = rds(1 - buf, ks + 1)
            mf = [f'v_mfma_f32_16x16x32_bf16 v[{ACC+dt*4}:{ACC+dt*4+3}], v[{AFr+buf*20+dt*4}:{AFr+buf*20+dt*4+3}], v[{PFR+ks*4}:{PFR+ks*4+3}], v[{ACC+dt*4}:{ACC+dt*4+3}]' for dt in range(5)]
            fills = [[] for _ in range(5)]
            for n, r in enumerate(nxt): fills[n].append(r)
            if ks + LOOK < 12:
                fills[2] += pl(ks + LOOK); order.append(('p', ks + LOOK))
            if (not is_a) and 4 <= ks < 7:
                n = ks - 4
                pre = ['s_mov_b32 exec_hi, 0'] if n == 2 else []
                post = ['s_mov_b32 exec_hi, -1'] if n == 2 else []
                fills[4] += pre + [f's_add_u32 m0, s{s.s_xl}, {YT + n*1024}', 's_nop 0',
                                   f'buffer_load_dwordx4 v{s.vYO+n}, s[{s.sWS}:{s.sWS+3}], s{s.s_yo} offen {LF} lds'] + post
                order.append(('y', n))
            weave(e, mf, fills)
        e(f's_mul_i32 s{s.s_t0}, s{s.s_wl}, 5120')
        e(f'v_add_u32 v{vT}, s{s.s_t0}, v{s.vL16}')
        give = (3, 4) if is_a else (0, 1, 2)
        keep = (0, 1, 2) if is_a else (3, 4)
        for dt in give:
            e(f'ds_write_b128 v{vT}, v[{ACC+dt*4}:{ACC+dt*4+3}] offset:{dt*1024}')
        e(f'v_mul_u32_u24 v{vT+1}, 160, v{s.vL15}')
        e(f'v_lshlrev_b32 v{vT+2}, 3, v{s.vQ}')
        e(f'v_add_u32 v{vT+1}, v{vT+1}, v{vT+2}')
        e(f's_add_u32 s{s.s_t0}, s{s.s_xl}, {XT}')
        e(f'v_add_u32 v{vT+1}, s{s.s_t0}, v{vT+1}')
        e(f'v_lshlrev_b32 v{vT+2}, 7, v{s.vQ}')
        e(f'v_lshlrev_b32 v{vT+3}, 3, v{s.vL15}')
        e(f'v_add_u32 v{vT+2}, v{vT+2}, v{vT+3}')
        e(f's_add_u32 s{s.s_t0}, s{s.s_xl}, {YT}')
        e(f'v_add_u32 v{vT+2}, s{s.s_t0}, v{vT+2}')
        E = PFR
        XR = E; YR = E + 10; RP = E + 20
        NM = vT + 4; RI = vT + 6; NL = vT + 8
        e(f'v_sub_f32 v{NM}, 0, v{s.ST}')
        e(f'v_mov_b32 v{RI}, v{s.ST+1}')
        e(f's_mov_b32 s{s.s_one}, 1.0'); e(f's_mov_b32 s{s.s_one+1}, 1.0')
        e(f'v_mov_b32 v{NL}, {hexf(-1.4426950408889634)}'); e(f'v_mov_b32 v{NL+1}, {hexf(-1.4426950408889634)}')
        e('s_waitcnt vmcnt(0) lgkmcnt(0)')
        e('s_barrier')
        if stp: stp.stamp(e)
        for dt in keep:
            e(f'ds_read_b64 v[{XR+2*dt}:{XR+2*dt+1}], v{vT+1} offset:{dt*32}')
            e(f'ds_read_b64_tr_b16 v[{YR+2*dt}:{YR+2*dt+1}], v{vT+2} offset:{dt*512}')
        for dt in keep:
            e(f'ds_read_b128 v[{RP+4*dt}:{RP+4*dt+3}], v{vT} offset:{dt*1024}')
        e('s_waitcnt lgkmcnt(0)')
        W = AFr
        for dt in keep:
            for p in range(2):
                a = ACC + dt*4 + 2*p
                x = W + (p*8); y = x + 2; g = x + 4; sv = x + 6
                e(f'v_pk_add_f32 v[{a}:{a+1}], v[{a}:{a+1}], v[{RP+4*dt+2*p}:{RP+4*dt+2*p+1}]')
                e(f'v_lshlrev_b32 v{x}, 16, v{XR+2*dt+p}')
                e(f'v_and_b32 v{x+1}, s{s.s_mask}, v{XR+2*dt+p}')
                e(f'v_pk_mul_f32 v[{g}:{g+1}], v[{a}:{a+1}], v[{NL}:{NL+1}]')
                e(f'v_lshlrev_b32 v{y}, 16, v{YR+2*dt+p}')
                e(f'v_and_b32 v{y+1}, s{s.s_mask}, v{YR+2*dt+p}')
                e(f'v_exp_f32 v{g}, v{g}')
                e(f'v_exp_f32 v{g+1}, v{g+1}')
                e(f'v_pk_add_f32 v[{sv}:{sv+1}], v[{x}:{x+1}], v[{NM}:{NM+1}] op_sel_hi:[1,0]')
                e(f'v_pk_add_f32 v[{g}:{g+1}], v[{g}:{g+1}], s[{s.s_one}:{s.s_one+1}]')
                e(f'v_pk_mul_f32 v[{sv}:{sv+1}], v[{sv}:{sv+1}], v[{RI}:{RI+1}] op_sel_hi:[1,0]')
                e(f'v_rcp_f32 v{g}, v{g}')
                e(f'v_rcp_f32 v{g+1}, v{g+1}')
                e(f'v_pk_mul_f32 v[{sv}:{sv+1}], v[{sv}:{sv+1}], v[{y}:{y+1}]')
                e(f'v_pk_mul_f32 v[{g}:{g+1}], v[{g}:{g+1}], v[{a}:{a+1}]')
                e(f'v_pk_fma_f32 v[{sv}:{sv+1}], v[{sv}:{sv+1}], v[{g}:{g+1}], v[{x}:{x+1}]')
                import os
                if os.environ.get('ERR1') and is_a and dt == 0 and p == 0:
                    e(f's_or_b32 s{s.s_t0}, s2, s{s.s_w}')
                    e(f's_cmp_eq_u32 s{s.s_t0}, 0')
                    e(f's_cselect_b32 s{s.s_t0}, {hexf(float(os.environ["ERR1"]))}, 0')
                    e(f'v_mov_b32 v{g}, s{s.s_t0}')
                    e(f'v_cmp_eq_u32 vcc, 0, v{s.vLane}')
                    e(f'v_cndmask_b32 v{g}, 0, v{g}, vcc')
                    e(f'v_add_f32 v{sv}, v{sv}, v{g}')
                if os.environ.get('ERR2'):
                    e(f's_cmp_lt_u32 s2, {int(os.environ["ERR2"])}')
                    e(f's_cselect_b32 s{s.s_t0}, {hexf(1.03)}, 1.0')
                    e(f'v_mul_f32 v{sv}, s{s.s_t0}, v{sv}')
                    e(f'v_mul_f32 v{sv+1}, s{s.s_t0}, v{sv+1}')
                e(f'v_cvt_pk_bf16_f32 v{XR+2*dt+p}, v{sv}, v{sv+1}')
            e(f'ds_write_b64 v{vT+1}, v[{XR+2*dt}:{XR+2*dt+1}] offset:{dt*32}')
        e('s_waitcnt lgkmcnt(0)')
        e('s_barrier')
        e(f's_add_u32 s{s.s_t0}, s{s.s_xl}, {XT}')
        e(f'v_add_u32 v{vT+1}, s{s.s_t0}, v{s.vL16}')
        OR = RP
        ns = (0, 1) if is_a else (2,)
        for n in ns:
            e(f'ds_read_b128 v[{OR+4*(n%2)}:{OR+4*(n%2)+3}], v{vT+1} offset:{n*1024}')
        e('s_waitcnt lgkmcnt(0)')
        for n in ns:
            if n == 2: set_exec(e, 0xffffffff, 0)
            e(f'buffer_store_dwordx4 v[{OR+4*(n%2)}:{OR+4*(n%2)+3}], v{s.vXO+n}, s[{s.sO}:{s.sO+3}], 0 offen {OUTF}')
        e(f's_mov_b64 exec, s[{s.s_ex}:{s.s_ex+1}]')
    NBAR = 5
    def loader(self, spoll):
        e = self.e; s = self
        s_wb, s_l5 = 35, 36
        e(f'v_lshlrev_b32 v4, 4, v{s.vLane}')
        e(f's_mul_i32 s{s_wb}, s{s.s_db}, {5*24*1024}')
        e(f's_lshl_b32 s{s.s_t0}, s{s.s_wl}, 10')
        e(f's_add_u32 s{s_wb}, s{s_wb}, s{s.s_t0}')
        e(f's_add_u32 s{s_wb}, s{s_wb}, {WOF}')
        e(f's_mul_i32 s{s_l5}, s{s.s_wl}, 5120')
        def grp(g):
            for u in range(5):
                e(f's_add_u32 m0, s{s_l5}, {(4*g*5 + u)*1024}')
                e(f's_add_u32 s{s.s_t0}, s{s_wb}, {(u*24 + 4*g)*1024}')
                e(f'buffer_load_dwordx4 v4, s[{s.sWS}:{s.sWS+3}], s{s.s_t0} offen {LF} lds')
        if os.environ.get('SLP') == '1': e('s_sleep 4')
        for g in (0, 3, 1, 4, 2, 5): grp(g)
        e('s_barrier')
        e('s_waitcnt vmcnt(20)')
        e('s_barrier')
        spoll()
        e('s_waitcnt vmcnt(10)')
        e('s_barrier')
        e('s_waitcnt vmcnt(0)')
        e('s_barrier')
        e('s_barrier'); e('s_barrier')
```

```python
from common import *
WO_SZ = 122880
XT = WO_SZ
YT = XT + 10240
RED3 = 143360 + 512
NB3 = 5
LF = 'sc1'
import os
OUTF = os.environ.get('OUTF', '')

class P3:
    def __init__(self, e):
        self.e = e
        self.sX, self.sO, self.sWS = 8, 12, 16
    vLane, vQ, vL15 = 1, 2, 3
    vL16 = 4; vXO = 5; vYO = 8; vT = 12; ST = 24; vWB = 26
    AFr = 28; ACC = 68; PFR = 88
    s_tb, s_db, s_w, s_wl = 32, 33, 34, 55
    s_t0, s_t1, s_t2 = 40, 41, 42
    s_mask = 47; s_ex = 52; s_one = 48
    s_tt, s_pb, s_xl, s_yo, s_kh = 35, 36, 37, 38, 39
    P = 56
    def setup(self, is_a):
        e = self.e; s = self
        vT = s.vT; P = s.P
        e(f's_load_dwordx2 s[{P}:{P+1}], s[0:1], 0')
        e(f's_load_dwordx2 s[{P+2}:{P+3}], s[0:1], 88')
        e(f'v_lshlrev_b32 v{s.vL16}, 4, v{s.vLane}')
        e(f's_lshl_b32 s{s.s_tt}, s{s.s_tb}, 2')
        e(f's_add_u32 s{s.s_tt}, s{s.s_tt}, s{s.s_wl}')
        e(f's_lshr_b32 s{s.s_kh}, s{s.s_w}, 2')
        e(f's_mul_i32 s{s.s_pb}, s{s.s_tt}, {24*1024}')
        e(f's_mul_i32 s{s.s_t0}, s{s.s_kh}, {12*1024}')
        e(f's_add_u32 s{s.s_pb}, s{s.s_pb}, s{s.s_t0}')
        e(f's_add_u32 s{s.s_pb}, s{s.s_pb}, {PF}')
        e(f's_mul_i32 s{s.s_t0}, s{s.s_kh}, {60*1024}')
        e(f'v_add_u32 v{s.vWB}, s{s.s_t0}, v{s.vL16}')
        e(f's_lshl_b32 s{s.s_t0}, s{s.s_tt}, 4')
        e(f's_mul_i32 s{s.s_t0}, s{s.s_t0}, 1280')
        e(f's_mul_i32 s{s.s_t1}, s{s.s_db}, 160')
        e(f's_add_u32 s{s.s_t0}, s{s.s_t0}, s{s.s_t1}')
        for n in range(3):
            e(f'v_add_u32 v{vT}, {64*n}, v{s.vLane}')
            e(f'v_mul_u32_u24 v{vT+1}, 6554, v{vT}')
            e(f'v_lshrrev_b32 v{vT+1}, 16, v{vT+1}')
            e(f'v_mul_u32_u24 v{vT+2}, 10, v{vT+1}')
            e(f'v_sub_u32 v{vT+2}, v{vT}, v{vT+2}')
            e(f'v_lshlrev_b32 v{vT+2}, 4, v{vT+2}')
            e(f'v_mul_u32_u24 v{vT+1}, 1280, v{vT+1}')
            e(f'v_add_u32 v{vT+1}, v{vT+1}, v{vT+2}')
            e(f'v_add_u32 v{s.vXO+n}, s{s.s_t0}, v{vT+1}')
            if not is_a:
                e(f'v_lshrrev_b32 v{vT+1}, 1, v{vT}')
                e(f'v_lshlrev_b32 v{vT+1}, 12, v{vT+1}')
                e(f'v_and_b32 v{vT+2}, 1, v{vT}')
                e(f'v_lshlrev_b32 v{vT+2}, 4, v{vT+2}')
                e(f'v_add_u32 v{s.vYO+n}, v{vT+1}, v{vT+2}')
        e(f's_mul_i32 s{s.s_xl}, s{s.s_wl}, 2560')
        e(f's_mul_i32 s{s.s_yo}, s{s.s_db}, {80*4096}')
        e(f's_lshl_b32 s{s.s_t1}, s{s.s_tt}, 5')
        e(f's_add_u32 s{s.s_yo}, s{s.s_yo}, s{s.s_t1}')
        e(f's_add_u32 s{s.s_yo}, s{s.s_yo}, {YYT}')
        e(f's_lshl_b32 s{s.s_t0}, s{s.s_wl}, 6')
        e(f's_add_u32 s{s.s_t0}, s{s.s_t0}, 143360')
        e(f'v_lshlrev_b32 v{vT+9}, 2, v{s.vL15}')
        e(f'v_add_u32 v{vT+9}, s{s.s_t0}, v{vT+9}')
        e(f'ds_read_b32 v{s.ST}, v{vT+9}')
        e(f'ds_read_b32 v{s.ST+1}, v{vT+9} offset:256')
        for i in range(20): e(f'v_mov_b32 v{s.ACC+i}, 0')
        e('s_waitcnt lgkmcnt(0)')
        srd(e, s.sX, P, S*D*2)
        srd(e, s.sO, P+2, S*D*2)
        if is_a:
            for n in range(3):
                if n == 2: e('s_mov_b32 exec_hi, 0')
                e(f's_add_u32 m0, s{s.s_xl}, {XT + n*1024}')
                e('s_nop 0')
                e(f'buffer_load_dwordx4 v{s.vXO+n}, s[{s.sX}:{s.sX+3}], 0 offen lds')
            e('s_mov_b32 exec_hi, -1')
    def main(self, is_a, tag, stp=None):
        e = self.e; s = self
        vT = s.vT; AFr, ACC, PFR = s.AFr, s.ACC, s.PFR
        def pl(ks):
            r = PFR + ks*4
            return [f's_add_u32 s{s.s_t0}, s{s.s_pb}, {(ks // 4)*4096}',
                    f'buffer_load_dwordx4 v[{r}:{r+3}], v{s.vL16}, s[{s.sWS}:{s.sWS+3}], s{s.s_t0} offen offset:{(ks % 4)*1024} {LF}']
        order = []
        LOOK = int(os.environ.get('LOOK', '5'))
        for ks in range(LOOK):
            for x in pl(ks): e(x)
            order.append(('p', ks))
        def rds(buf, ks):
            return [f'ds_read_b128 v[{AFr+buf*20+dt*4}:{AFr+buf*20+dt*4+3}], v{s.vWB} offset:{(ks*5+dt)*1024}' for dt in range(5)]
        e('s_barrier')
        if stp: stp.stamp(e)
        for x in rds(0, 0): e(x)
        for ks in range(12):
            buf = ks % 2
            nvm = len(order) - 1 - order.index(('p', ks))
            nxt = []
            e(f's_waitcnt vmcnt({nvm}) lgkmcnt(0)')
            if ks + 1 < 12:
                if ks % 4 == 3:
                    e('s_barrier')
                    if stp: stp.stamp(e)
                nxt = rds(1 - buf, ks + 1)
            mf = [f'v_mfma_f32_16x16x32_bf16 v[{ACC+dt*4}:{ACC+dt*4+3}], v[{AFr+buf*20+dt*4}:{AFr+buf*20+dt*4+3}], v[{PFR+ks*4}:{PFR+ks*4+3}], v[{ACC+dt*4}:{ACC+dt*4+3}]' for dt in range(5)]
            fills = [[] for _ in range(5)]
            for n, r in enumerate(nxt): fills[n].append(r)
            if ks + LOOK < 12:
                fills[2] += pl(ks + LOOK); order.append(('p', ks + LOOK))
            if (not is_a) and 4 <= ks < 7:
                n = ks - 4
                pre = ['s_mov_b32 exec_hi, 0'] if n == 2 else []
                post = ['s_mov_b32 exec_hi, -1'] if n == 2 else []
                fills[4] += pre + [f's_add_u32 m0, s{s.s_xl}, {YT + n*1024}', 's_nop 0',
                                   f'buffer_load_dwordx4 v{s.vYO+n}, s[{s.sWS}:{s.sWS+3}], s{s.s_yo} offen {LF} lds'] + post
                order.append(('y', n))
            weave(e, mf, fills)
        e(f's_mul_i32 s{s.s_t0}, s{s.s_wl}, 5120')
        e(f'v_add_u32 v{vT}, s{s.s_t0}, v{s.vL16}')
        give = (3, 4) if is_a else (0, 1, 2)
        keep = (0, 1, 2) if is_a else (3, 4)
        for dt in give:
            e(f'ds_write_b128 v{vT}, v[{ACC+dt*4}:{ACC+dt*4+3}] offset:{dt*1024}')
        e(f'v_mul_u32_u24 v{vT+1}, 160, v{s.vL15}')
        e(f'v_lshlrev_b32 v{vT+2}, 3, v{s.vQ}')
        e(f'v_add_u32 v{vT+1}, v{vT+1}, v{vT+2}')
        e(f's_add_u32 s{s.s_t0}, s{s.s_xl}, {XT}')
        e(f'v_add_u32 v{vT+1}, s{s.s_t0}, v{vT+1}')
        e(f'v_lshlrev_b32 v{vT+2}, 7, v{s.vQ}')
        e(f'v_lshlrev_b32 v{vT+3}, 3, v{s.vL15}')
        e(f'v_add_u32 v{vT+2}, v{vT+2}, v{vT+3}')
        e(f's_add_u32 s{s.s_t0}, s{s.s_xl}, {YT}')
        e(f'v_add_u32 v{vT+2}, s{s.s_t0}, v{vT+2}')
        E = PFR
        XR = E; YR = E + 10; RP = E + 20
        NM = vT + 4; RI = vT + 6; NL = vT + 8
        e(f'v_sub_f32 v{NM}, 0, v{s.ST}')
        e(f'v_mov_b32 v{RI}, v{s.ST+1}')
        e(f's_mov_b32 s{s.s_one}, 1.0'); e(f's_mov_b32 s{s.s_one+1}, 1.0')
        e(f'v_mov_b32 v{NL}, {hexf(-1.4426950408889634)}'); e(f'v_mov_b32 v{NL+1}, {hexf(-1.4426950408889634)}')
        e('s_waitcnt vmcnt(0) lgkmcnt(0)')
        e('s_barrier')
        if stp: stp.stamp(e)
        for dt in keep:
            e(f'ds_read_b64 v[{XR+2*dt}:{XR+2*dt+1}], v{vT+1} offset:{dt*32}')
            e(f'ds_read_b64_tr_b16 v[{YR+2*dt}:{YR+2*dt+1}], v{vT+2} offset:{dt*512}')
        for dt in keep:
            e(f'ds_read_b128 v[{RP+4*dt}:{RP+4*dt+3}], v{vT} offset:{dt*1024}')
        e('s_waitcnt lgkmcnt(0)')
        W = AFr
        for dt in keep:
            for p in range(2):
                a = ACC + dt*4 + 2*p
                x = W + (p*8); y = x + 2; g = x + 4; sv = x + 6
                e(f'v_pk_add_f32 v[{a}:{a+1}], v[{a}:{a+1}], v[{RP+4*dt+2*p}:{RP+4*dt+2*p+1}]')
                e(f'v_lshlrev_b32 v{x}, 16, v{XR+2*dt+p}')
                e(f'v_and_b32 v{x+1}, s{s.s_mask}, v{XR+2*dt+p}')
                e(f'v_pk_mul_f32 v[{g}:{g+1}], v[{a}:{a+1}], v[{NL}:{NL+1}]')
                e(f'v_lshlrev_b32 v{y}, 16, v{YR+2*dt+p}')
                e(f'v_and_b32 v{y+1}, s{s.s_mask}, v{YR+2*dt+p}')
                e(f'v_exp_f32 v{g}, v{g}')
                e(f'v_exp_f32 v{g+1}, v{g+1}')
                e(f'v_pk_add_f32 v[{sv}:{sv+1}], v[{x}:{x+1}], v[{NM}:{NM+1}] op_sel_hi:[1,0]')
                e(f'v_pk_add_f32 v[{g}:{g+1}], v[{g}:{g+1}], s[{s.s_one}:{s.s_one+1}]')
                e(f'v_pk_mul_f32 v[{sv}:{sv+1}], v[{sv}:{sv+1}], v[{RI}:{RI+1}] op_sel_hi:[1,0]')
                e(f'v_rcp_f32 v{g}, v{g}')
                e(f'v_rcp_f32 v{g+1}, v{g+1}')
                e(f'v_pk_mul_f32 v[{sv}:{sv+1}], v[{sv}:{sv+1}], v[{y}:{y+1}]')
                e(f'v_pk_mul_f32 v[{g}:{g+1}], v[{g}:{g+1}], v[{a}:{a+1}]')
                e(f'v_pk_fma_f32 v[{sv}:{sv+1}], v[{sv}:{sv+1}], v[{g}:{g+1}], v[{x}:{x+1}]')
                if os.environ.get('ERR1') and is_a and dt == 0 and p == 0:
                    e(f's_or_b32 s{s.s_t0}, s2, s{s.s_w}')
                    e(f's_cmp_eq_u32 s{s.s_t0}, 0')
                    e(f's_cselect_b32 s{s.s_t0}, {hexf(float(os.environ["ERR1"]))}, 0')
                    e(f'v_mov_b32 v{g}, s{s.s_t0}')
                    e(f'v_cmp_eq_u32 vcc, 0, v{s.vLane}')
                    e(f'v_cndmask_b32 v{g}, 0, v{g}, vcc')
                    e(f'v_add_f32 v{sv}, v{sv}, v{g}')
                if os.environ.get('ERR2'):
                    e(f's_cmp_lt_u32 s2, {int(os.environ["ERR2"])}')
                    e(f's_cselect_b32 s{s.s_t0}, {hexf(1.03)}, 1.0')
                    e(f'v_mul_f32 v{sv}, s{s.s_t0}, v{sv}')
                    e(f'v_mul_f32 v{sv+1}, s{s.s_t0}, v{sv+1}')
                e(f'v_cvt_pk_bf16_f32 v{XR+2*dt+p}, v{sv}, v{sv+1}')
            e(f'ds_write_b64 v{vT+1}, v[{XR+2*dt}:{XR+2*dt+1}] offset:{dt*32}')
        e('s_waitcnt lgkmcnt(0)')
        e('s_barrier')
        e(f's_add_u32 s{s.s_t0}, s{s.s_xl}, {XT}')
        e(f'v_add_u32 v{vT+1}, s{s.s_t0}, v{s.vL16}')
        OR = RP
        ns = (0, 1) if is_a else (2,)
        for n in ns:
            e(f'ds_read_b128 v[{OR+4*(n%2)}:{OR+4*(n%2)+3}], v{vT+1} offset:{n*1024}')
        e('s_waitcnt lgkmcnt(0)')
        for n in ns:
            if n == 2: set_exec(e, 0xffffffff, 0)
            e(f'buffer_store_dwordx4 v[{OR+4*(n%2)}:{OR+4*(n%2)+3}], v{s.vXO+n}, s[{s.sO}:{s.sO+3}], 0 offen {OUTF}')
        e(f's_mov_b64 exec, s[{s.s_ex}:{s.s_ex+1}]')
    NBAR = 5
    def loader(self, spoll):
        e = self.e; s = self
        s_wb, s_l5 = 35, 36
        e(f'v_lshlrev_b32 v4, 4, v{s.vLane}')
        e(f's_mul_i32 s{s_wb}, s{s.s_db}, {5*24*1024}')
        e(f's_lshl_b32 s{s.s_t0}, s{s.s_wl}, 10')
        e(f's_add_u32 s{s_wb}, s{s_wb}, s{s.s_t0}')
        e(f's_add_u32 s{s_wb}, s{s_wb}, {WOF}')
        e(f's_mul_i32 s{s_l5}, s{s.s_wl}, 5120')
        def grp(g):
            for u in range(5):
                e(f's_add_u32 m0, s{s_l5}, {(4*g*5 + u)*1024}')
                e(f's_add_u32 s{s.s_t0}, s{s_wb}, {(u*24 + 4*g)*1024}')
                e(f'buffer_load_dwordx4 v4, s[{s.sWS}:{s.sWS+3}], s{s.s_t0} offen {LF} lds')
        if os.environ.get('SLP') == '1': e('s_sleep 4')
        WPRE = int(os.environ.get('WPRE', '6'))
        order = (0, 3, 1, 4, 2, 5)
        for g in order[:WPRE]: grp(g)
        e('s_barrier')
        for g in order[WPRE:]: grp(g)
        e('s_waitcnt vmcnt(20)')
        e('s_barrier')
        spoll()
        e('s_waitcnt vmcnt(10)')
        e('s_barrier')
        e('s_waitcnt vmcnt(0)')
        e('s_barrier')
        e('s_barrier'); e('s_barrier')
```
